```python
import torch

def _softmax(x, axis=-1):
    return torch.softmax(x, dim=axis)
def _gelu(x):
    return torch.nn.functional.gelu(x, approximate="tanh")
def _silu(x):
    return torch.nn.functional.silu(x)
def _sigmoid(x):
    return torch.sigmoid(x)
def _layernorm(x, axis=-1, eps=1e-5):
    m = x.mean(dim=axis, keepdim=True)
    v = x.var(dim=axis, keepdim=True, unbiased=False)
    return (x - m) / torch.sqrt(v + eps)
def _scatter_add(tgt, idx, src, axis=0):
    return tgt.clone().index_add_(axis, idx, src)
def _segment_sum(src, seg, n):
    out = torch.zeros((n,) + src.shape[1:], dtype=src.dtype)
    return out.index_add_(0, seg, src)
def _pad(x, pw):
    flat = tuple(v for pair in reversed(pw) for v in pair)
    return torch.nn.functional.pad(x, flat)

kernel_name = 'gather_scatter__mpnn_edge_mlp__graph'

def setup_inputs():

    _w = (lambda a: (lambda t: t.to(torch.bfloat16) if t.is_floating_point() else t)(torch.as_tensor(a)))
    N, deg, D, De = 10000, 16, 256, max(0, 1)
    E = N * deg
    return {
        "x": _w((lambda *s: torch.randn(*s, dtype=torch.bfloat16) * 0.05)(N, D)),
        "e_attr": _w((lambda *s: torch.randn(*s, dtype=torch.bfloat16) * 0.4)(E, De)),
        "src": _w((lambda lo, hi, *s: torch.randint(lo, hi, s))(0, N, E).to(torch.int64)),
        "dst": _w((lambda lo, hi, *s: torch.randint(lo, hi, s))(0, N, E).to(torch.int64)),
        "w_msg": _w((lambda *s: torch.randn(*s, dtype=torch.bfloat16) * 0.4)(2 * D + De, D)),
        "w_upd": _w((lambda *s: torch.randn(*s, dtype=torch.bfloat16) * 0.05)(2 * D, D)),
    }

def reference(x, e_attr, src, dst, w_msg, w_upd):
    N, D = x.shape
    m_in = torch.concatenate([x[src], x[dst], e_attr], axis=-1)
    msg = _silu(m_in @ w_msg)
    agg = _segment_sum(msg, dst, N)
    return _silu(torch.concatenate([x, agg], axis=-1) @ w_upd)
```

```python
import sys

N = 10000
WS_P = 0
WS_WPACK = 0x500000
WS_OVFC = 0x560000
WS_OVF = 0x570000
WS_CELL = 0x700000
WS_END = 0xB00000
NCHUNK = 64
CHUNK = 2500
CAP = 31
NEGL2E = 0xBFB8AA3B
NEGLN2 = 0xBF317218

class Asm:
    def __init__(self):
        self.l = []
    def __call__(self, s):
        for line in s.strip("\n").split("\n"):
            line = line.strip()
            if not line:
                continue
            if line.endswith(":"):
                self.l.append(line)
            else:
                self.l.append("    " + line)
    def text(self):
        return "\n".join(self.l) + "\n"

def vr(a, n):
    return f"v[{a}:{a+n-1}]" if n > 1 else f"v{a}"

def srd(o, d, lo, hi, size, extra_hi=None):
    o(f"s_mov_b32 s{d}, s{lo}")
    if extra_hi is None:
        o(f"s_mov_b32 s{d+1}, s{hi}")
    else:
        o(f"s_or_b32 s{d+1}, s{hi}, {extra_hi:#x}")
    o(f"s_mov_b32 s{d+2}, {size}")
    o(f"s_mov_b32 s{d+3}, 0x20000")

def load_args(o):
    o("s_load_dwordx16 s[8:23], s[0:1], 0")
    o("s_load_dwordx2 s[24:25], s[0:1], 64")

K1_GRID = 64 + 6 + 256
def gen_k1(o):
    o(f"""
.globl k1_kernel
.p2align 8
.type k1_kernel,@function
k1_kernel:
s_cmp_ge_u32 s2, {K1_GRID}
s_cbranch_scc1 K1_end
""")
    load_args(o)
    o("""
v_and_b32 v1, 63, v0
v_lshrrev_b32 v2, 6, v0
s_nop 0
v_readfirstlane_b32 s3, v2
s_cmp_lt_u32 s2, 64
s_cbranch_scc1 K1_bin
""")
    o("""
s_sub_u32 s26, s2, 64
s_cmp_lt_u32 s26, 6
s_cbranch_scc1 K1_packsel
s_sub_u32 s26, s26, 6
s_lshr_b32 s5, s26, 4
s_lshl_b32 s5, s5, 3
s_and_b32 s27, s26, 7
s_add_u32 s5, s5, s27
s_lshr_b32 s4, s26, 3
s_and_b32 s4, s4, 1
s_cmp_ge_u32 s5, 125
s_cbranch_scc1 K1_end
s_mov_b32 s6, 0
s_waitcnt lgkmcnt(0)
s_mov_b32 s28, s16
s_mov_b32 s29, s17
s_branch K1_common
K1_packsel:
s_and_b32 s4, s26, 1
s_lshr_b32 s5, s26, 1
s_mov_b32 s6, 1
s_waitcnt lgkmcnt(0)
s_cmp_eq_u32 s5, 0
s_cselect_b32 s28, s16, s18
s_cselect_b32 s29, s17, s19
s_cmp_eq_u32 s5, 1
s_cselect_b32 s27, 0, 0x20000
s_add_u32 s28, s28, s27
s_addc_u32 s29, s29, 0
K1_common:
s_lshl_b32 s27, s4, 8
s_add_u32 s28, s28, s27
s_addc_u32 s29, s29, 0
s_sub_u32 s30, 0x20000, s27
s_mov_b32 s31, 0x20000
""")
    srd(o, 32, 24, 25, WS_END)
    srd(o, 36, 8, 9, N * 512)
    o("""
v_and_b32 v3, 15, v1
v_lshrrev_b32 v4, 4, v1
s_mul_i32 s7, s5, 80
s_lshl_b32 s27, s3, 4
s_add_u32 s7, s7, s27
v_add_u32 v5, s7, v3
v_lshlrev_b32 v5, 9, v5
v_lshl_add_u32 v6, v4, 4, v5
s_cmp_eq_u32 s6, 1
s_cbranch_scc1 K1_noX
""")
    XF = 16
    for ks in range(8):
        o(f"buffer_load_dwordx4 {vr(XF+4*ks,4)}, v6, s[36:39], 0 offen offset:{ks*64}")
    o("K1_noX:")
    o("""
v_lshrrev_b32 v7, 1, v3
v_xor_b32 v7, v7, v4
v_lshlrev_b32 v7, 5, v7
v_and_b32 v8, 1, v3
v_lshl_add_u32 v7, v8, 4, v7
v_lshl_add_u32 v7, v4, 9, v7
s_mov_b32 s26, s3
""")
    for i in range(13):
        if i == 12:
            o("s_cmp_ge_u32 s26, 64\ns_cbranch_scc1 K1_dmadone")
        t = 8 + (i & 1)
        o(f"""
s_and_b32 s27, s26, 2
s_lshl_b32 s27, s27, 6
v_xor_b32 v{t}, s27, v7
s_lshl_b32 m0, s26, 10
s_lshl_b32 s27, s26, 11
buffer_load_dwordx4 v{t}, s[28:31], s27 offen lds
s_add_u32 s26, s26, 5
""")
    o("K1_dmadone:")
    o("""
v_bfe_u32 v12, v1, 2, 2
v_and_b32 v13, 3, v1
v_lshl_add_u32 v10, v4, 3, v12
v_lshlrev_b32 v10, 8, v10
v_lshl_add_u32 v10, v13, 3, v10
v_and_b32 v11, 1, v4
v_lshl_or_b32 v11, v11, 2, v12
v_lshlrev_b32 v11, 5, v11
s_cmp_eq_u32 s6, 1
s_cbranch_scc1 K1_pack
""")
    TA = 48
    ACC = 56
    WF = 88
    for j in range(8):
        o(f"v_xor_b32 v{TA+j}, {j*32}, v11\nv_add_u32 v{TA+j}, v{TA+j}, v10")
    o("s_waitcnt vmcnt(0)\ns_barrier")
    seq = [(ks, j) for ks in range(8) for j in range(8)]
    def rd(i):
        ks, j = seq[i]
        w = WF + 4 * (i % 4)
        o(f"ds_read_b64_tr_b16 {vr(w,2)}, v{TA+j} offset:{ks*8192}")
        o(f"ds_read_b64_tr_b16 {vr(w+2,2)}, v{TA+j} offset:{ks*8192+1024}")
    for i in range(3):
        rd(i)
    for i in range(64):
        ks, j = seq[i]
        if i + 3 < 64:
            rd(i + 3)
        o(f"s_waitcnt lgkmcnt({2*min(3, 63-i)})")
        c = "0" if ks == 0 else vr(ACC+4*j, 4)
        o(f"v_mfma_f32_16x16x32_bf16 {vr(ACC+4*j,4)}, {vr(WF+4*(i%4),4)}, {vr(XF+4*ks,4)}, {c}")
    o(f"""
s_mov_b32 s40, {NEGL2E:#x}
s_mov_b32 s41, {NEGL2E:#x}
s_lshl_b32 s27, s4, 8
s_nop 4
""")
    for j in range(8):
        for h in range(2):
            a = ACC + 4*j + 2*h
            o(f"v_pk_mul_f32 {vr(a,2)}, {vr(a,2)}, s[40:41]")
    PK = 16
    for s in range(4):
        for u in range(4):
            a = ACC + 8*s + 2*u
            o(f"v_cvt_pk_bf16_f32 v{PK+4*s+u}, v{a}, v{a+1}")
        o(f"buffer_store_dwordx4 {vr(PK+4*s,4)}, v6, s[32:35], s27 offen offset:{s*64}")
    o("s_endpgm")
    o("K1_pack:\ns_waitcnt vmcnt(0)\ns_barrier\ns_mov_b32 s26, s3")
    for i in range(13):
        if i == 12:
            o("s_cmp_ge_u32 s26, 64\ns_cbranch_scc1 K1_pk1")
        o(f"""
s_lshr_b32 s27, s26, 3
s_lshl_b32 s27, s27, 5
s_and_b32 s40, s26, 7
s_lshl_b32 s40, s40, 13
v_xor_b32 v12, s27, v11
v_add3_u32 v12, v12, v10, s40
ds_read_b64_tr_b16 {vr(16+4*i,2)}, v12
ds_read_b64_tr_b16 {vr(18+4*i,2)}, v12 offset:1024
s_add_u32 s26, s26, 5
""")
    o(f"""
K1_pk1:
s_lshl_b32 s27, s5, 17
s_lshl_b32 s40, s4, 16
s_add_u32 s27, s27, s40
s_add_u32 s27, s27, {WS_WPACK}
s_lshl_b32 s40, s3, 10
s_add_u32 s27, s27, s40
v_lshlrev_b32 v12, 4, v1
s_waitcnt lgkmcnt(0)
""")
    for i in range(13):
        if i == 12:
            o("s_cmp_ge_u32 s3, 4\ns_cbranch_scc1 K1_end")
        o(f"buffer_store_dwordx4 {vr(16+4*i,4)}, v12, s[32:35], s27 offen")
        o("s_add_u32 s27, s27, 5120")
    o("s_endpgm")
    o("""
K1_bin:
v_lshlrev_b32 v2, 2, v0
v_mov_b32 v3, 0
ds_write_b32 v2, v3
v_lshlrev_b32 v4, 4, v0
v_lshlrev_b32 v5, 3, v0
s_mul_i32 s4, s2, 10000
s_add_u32 s5, s4, 5120
s_mul_i32 s6, s2, 5000
s_add_u32 s7, s6, 2560
s_waitcnt lgkmcnt(0)
""")
    srd(o, 28, 14, 15, 640000)
    srd(o, 36, 12, 13, 640000)
    srd(o, 40, 10, 11, 320000)
    srd(o, 32, 24, 25, WS_END)
    DST, SRC, EA, OWN, RK = 8, 16, 24, 28, 36
    o(f"""
buffer_load_dwordx4 {vr(DST,4)}, v4, s[28:31], s4 offen
buffer_load_dwordx4 {vr(DST+4,4)}, v4, s[28:31], s5 offen
buffer_load_dwordx4 {vr(SRC,4)}, v4, s[36:39], s4 offen
buffer_load_dwordx4 {vr(SRC+4,4)}, v4, s[36:39], s5 offen
buffer_load_dwordx2 {vr(EA,2)}, v5, s[40:43], s6 offen
buffer_load_dwordx2 {vr(EA+2,2)}, v5, s[40:43], s7 offen
s_barrier
v_cmp_gt_u32 s[44:45], 305, v0
""".replace("v_cmp_gt_u32 s[44:45], 305, v0", "s_movk_i32 s46, 305\nv_cmp_gt_u32 s[44:45], s46, v0"))
    o(f"""
s_mov_b32 s46, 429497
s_movk_i32 s47, 625
v_mov_b32 v6, 1
s_waitcnt vmcnt(4)
""")
    for k in range(8):
        if k == 4:
            o("s_mov_b64 exec, s[44:45]")
        o(f"""
v_mul_u32_u24 v{OWN+k}, s46, v{DST+k}
v_lshrrev_b32 v{OWN+k}, 24, v{OWN+k}
v_lshlrev_b32 v7, 2, v{OWN+k}
ds_add_rtn_u32 v{RK+k}, v7, v6
v_mad_u32_u24 v7, v{OWN+k}, s47, 15
v_lshrrev_b32 v7, 4, v7
v_sub_u32 v{DST+k}, v{DST+k}, v7
""")
    o("s_mov_b64 exec, -1\ns_waitcnt vmcnt(0)")
    R0 = 44
    for k in range(8):
        e = EA + k // 2
        o(f"v_lshl_or_b32 v{R0+2*k}, v{DST+k}, 16, v{SRC+k}")
        if k % 2 == 0:
            o(f"v_and_b32 v{R0+2*k+1}, 0xffff, v{e}")
        else:
            o(f"v_lshrrev_b32 v{R0+2*k+1}, 16, v{e}")
        o(f"v_lshl_or_b32 v{R0+2*k+1}, v{OWN+k}, 16, v{R0+2*k+1}")
    o(f"""
s_lshl_b32 s4, s2, 8
s_add_u32 s4, s4, {WS_CELL}
s_add_u32 s5, s4, 8
s_mul_i32 s6, s2, {CHUNK*8}
s_add_u32 s6, s6, {WS_OVF}
v_mov_b32 v60, 1024
s_waitcnt lgkmcnt(0)
""")
    for k in range(8):
        if k == 4:
            o("s_mov_b64 exec, s[44:45]")
        o(f"""
v_lshlrev_b32 v7, 14, v{OWN+k}
v_lshl_add_u32 v7, v{RK+k}, 3, v7
v_cmp_gt_u32 vcc, {CAP}, v{RK+k}
s_and_saveexec_b64 s[48:49], vcc
buffer_store_dwordx2 {vr(R0+2*k,2)}, v7, s[32:35], s5 offen
s_andn2_b64 exec, s[48:49], exec
s_cbranch_execz K1_no{k}
ds_add_rtn_u32 v61, v60, v6
s_waitcnt lgkmcnt(0)
v_lshlrev_b32 v61, 3, v61
buffer_store_dwordx2 {vr(R0+2*k,2)}, v61, s[32:35], s6 offen
K1_no{k}:
s_mov_b64 exec, s[48:49]
""")
    o(f"""
s_mov_b64 exec, -1
s_barrier
ds_read_b32 v8, v2
v_lshlrev_b32 v9, 14, v0
s_lshl_b32 s6, s2, 2
s_add_u32 s6, s6, {WS_OVFC}
s_sub_u32 s6, s6, s4
v_mov_b32 v10, s6
s_movk_i32 s7, 256
v_cmp_eq_u32 vcc, s7, v0
s_waitcnt lgkmcnt(0)
v_min_u32 v11, {CAP}, v8
v_cndmask_b32 v9, v9, v10, vcc
v_cndmask_b32 v11, v11, v8, vcc
v_cmp_ge_u32 vcc, s7, v0
s_and_saveexec_b64 s[48:49], vcc
s_cbranch_execz K1_end
v_add_u32 v9, s4, v9
buffer_store_dword v11, v9, s[32:35], 0 offen
K1_end:
s_endpgm
""")

R = 8
KMAX = 24
RS = 1040
L_QS = 0
L_AGG = 48 * RS
L_XS = (L_AGG + 40 * RS + 511) // 512 * 512
L_IDX = L_XS + 48 * 512
L_ET = L_IDX + 2064 * 4
L_CNT = L_ET + 2052 * 16
L_END = L_CNT + 256
RING, IX, A, Q, T, E, NN, D = 4, 36, 38, 42, 46, 50, 54, 58
VI, VE, VN, VC, VEND, VOVF, VEL = 62, 63, 64, 65, 66, 67, 68
TMP = 69
W, ACC = 76, 108
sWAVE, sN0, sCNT, sP, sP1, sLIM, sSEGE, sSEGS, sNEND, sK, sTOT, sRND = 3, 4, 5, 48, 49, 50, 51, 52, 53, 54, 55, 56
sOB = 57
sOC = 58
sV0, sV1 = 60, 62
sOM = 64
sRET, sRET2 = 66, 68
sM = 70
sONE = 72
sSC = 74
sT0, sT1, sT2 = 76, 77, 78
sBND = 79

def gemm_phase(o, base_reg, first_zero):
    XFR = [T, E, NN]
    for ks in range(8):
        if ks == 0:
            a = base_reg
        else:
            a = TMP + 6
            o(f"v_xor_b32 v{a}, {64*ks}, v{base_reg}")
        for rt in range(3):
            o(f"ds_read_b128 {vr(XFR[rt],4)}, v{a} offset:{rt*8192}")
        for rt in range(3):
            o(f"s_waitcnt lgkmcnt({2-rt})")
            c = "0" if (ks == 0 and first_zero) else vr(ACC+4*rt, 4)
            o(f"v_mfma_f32_16x16x32_bf16 {vr(ACC+4*rt,4)}, {vr(W+4*ks,4)}, {vr(XFR[rt],4)}, {c}")

def wloads(o, mat):
    o(f"""
s_lshl_b32 s{sT0}, s{sWAVE}, 13
s_add_u32 s{sT0}, s{sT0}, {WS_WPACK + mat*131072}
s_add_u32 s{sT1}, s{sT0}, 4096
v_lshlrev_b32 v{TMP+5}, 4, v1
""")
    for ks in range(8):
        o(f"buffer_load_dwordx4 {vr(W+4*ks,4)}, v{TMP+5}, s[32:35], s{sT0 if ks < 4 else sT1} offen offset:{(ks%4)*1024}")

def gen_k2(o):
    REC, RK0, RK1, XA, XB, W3A, W3B = 46, 50, 51, 52, 56, 60, 61
    o(f"""
.globl k2_kernel
.p2align 8
.type k2_kernel,@function
k2_kernel:
s_cmp_ge_u32 s2, 256
s_cbranch_scc1 K2_end
""")
    load_args(o)
    o(f"""
v_and_b32 v1, 63, v0
v_lshrrev_b32 v2, 6, v0
s_mul_i32 s{sN0}, s2, 625
v_readfirstlane_b32 s{sWAVE}, v2
s_add_u32 s{sCNT}, s{sN0}, 640
s_add_u32 s{sN0}, s{sN0}, 15
s_lshr_b32 s{sN0}, s{sN0}, 4
s_lshr_b32 s{sCNT}, s{sCNT}, 4
s_sub_u32 s{sCNT}, s{sCNT}, s{sN0}
v_lshlrev_b32 v2, 4, v0
v_lshlrev_b32 v{IX+1}, 2, v1
s_lshl_b32 s{sT0}, s2, 14
s_add_u32 s{sT0}, s{sT0}, {WS_CELL}
s_mov_b32 s{sT1}, {WS_OVFC}
s_lshl_b32 s{sT2}, s{sN0}, 9
""")
    o(f"""
v_lshrrev_b32 v3, 4, v1
v_lshlrev_b32 v{VC}, 5, v3
v_bfe_u32 v{TMP}, v1, 1, 1
v_lshl_add_u32 v{VC}, v{TMP}, 4, v{VC}
v_bfe_u32 v{TMP}, v1, 2, 2
v_lshl_add_u32 v{VC}, v{TMP}, 2, v{VC}
v_and_b32 v{TMP}, 1, v1
v_lshl_add_u32 v{VC}, v{TMP}, 1, v{VC}
v_lshlrev_b32 v{TMP+1}, 1, v{VC}
v_lshlrev_b32 v{VC}, 2, v{VC}
v_add_u32 v{TMP+2}, 0x4000, v2
v_mov_b32 v{TMP+3}, 0x7ffffff0
s_movk_i32 s{sK}, 256
v_cmp_gt_u32 vcc, s{sK}, v0
s_waitcnt lgkmcnt(0)
s_nop 0
v_cndmask_b32 v{TMP+2}, v{TMP+3}, v{TMP+2}, vcc
""")
    srd(o, 28, 8, 9, N * 512)
    srd(o, 32, 24, 25, WS_END)
    srd(o, 36, 24, 25, N, extra_hi=512 << 16)
    srd(o, 40, 20, 21, N * 512)
    srd(o, 44, 16, 17, 513 * 512)
    o(f"""
buffer_load_dwordx4 {vr(REC,4)}, v2, s[32:35], s{sT0} offen
buffer_load_dword v{VOVF}, v{IX+1}, s[32:35], s{sT1} offen
buffer_load_dwordx4 {vr(XA,4)}, v2, s[28:31], s{sT2} offen
buffer_load_dwordx4 {vr(XB,4)}, v{TMP+2}, s[28:31], s{sT2} offen
s_mov_b32 s{sT1}, {512*512}
buffer_load_dword v{W3A}, v{TMP+1}, s[44:47], s{sT1} offen
buffer_load_dword v{W3B}, v{TMP+1}, s[44:47], s{sT1} offen offset:256
""")
    wloads(o, 0)
    Z = RING
    o(f"""
v_mov_b64 {vr(Z,2)}, 0
v_mov_b64 {vr(Z+2,2)}, 0
v_add_u32 v{TMP}, {L_AGG}, v2
ds_write_b128 v{TMP}, {vr(Z,4)}
ds_write_b128 v{TMP}, {vr(Z,4)} offset:16384
s_movk_i32 s{sT0}, {2600-2048}
v_cmp_gt_u32 vcc, s{sT0}, v0
s_and_saveexec_b64 s[{sM}:{sM+1}], vcc
ds_write_b128 v{TMP}, {vr(Z,4)} offset:32768
s_mov_b64 exec, s[{sM}:{sM+1}]
v_add_u32 v{TMP+4}, {L_CNT}, v{IX+1}
ds_write_b32 v{TMP+4}, v{Z}
""")
    o(f"""
v_and_b32 v{TMP}, 3, v1
v_bfe_u32 v{TMP+1}, v1, 2, 2
v_cmp_eq_u32 vcc, v{TMP+1}, v3
v_and_b32 v{TMP+2}, 1, v1
v_lshlrev_b32 v{TMP+2}, 4, v{TMP+2}
v_mov_b32 v{TMP+3}, 0x3f80
v_lshlrev_b32 v{TMP+3}, v{TMP+2}, v{TMP+3}
v_cndmask_b32 v{TMP+3}, 0, v{TMP+3}, vcc
v_xor_b32 v{VEL}, 2, v{TMP}
v_lshlrev_b32 v{VEL}, 2, v{VEL}
v_add_u32 v{VEL}, {L_ET}, v{VEL}
v_mov_b32 v{TMP+2}, 0x30000
v_cndmask_b32 v{VEL}, v{TMP+2}, v{VEL}, vcc
v_cmp_gt_u32 vcc, 2, v{TMP}
s_mov_b32 s{sONE}, 1.0
s_mov_b32 s{sONE+1}, 1.0
v_cndmask_b32 v{A}, 0, v{TMP+3}, vcc
v_cndmask_b32 v{A+1}, v{TMP+3}, 0, vcc
v_mov_b64 {vr(A+2,2)}, 0
s_mov_b32 s{sBND}, 0x7b800000
s_mov_b32 s{sRND}, 0
s_mov_b32 s{sK}, {KMAX}
s_waitcnt lgkmcnt(0)
s_barrier
""".replace(f"v_cndmask_b32 v{A+1}, v{TMP+3}, 0, vcc", f"v_cndmask_b32_e64 v{A+1}, v{TMP+3}, 0, vcc"))
    o(f"""
v_and_b32 v{TMP}, 15, v0
v_lshlrev_b32 v{TMP}, 1, v{TMP}
s_waitcnt vmcnt(13)
v_mov_b32_dpp v{TMP+1}, v{REC} row_newbcast:0 row_mask:0xf bank_mask:0xf
v_add_u32 v{TMP+2}, -1, v{TMP}
v_cmp_gt_u32 s[{sV0}:{sV0+1}], v{TMP+1}, v{TMP+2}
v_cmp_gt_u32 s[{sV1}:{sV1+1}], v{TMP+1}, v{TMP}
s_mov_b64 vcc, 0
K2_round:
v_lshrrev_b32 v{TMP}, 14, v{REC}
v_lshrrev_b32 v{TMP+1}, 14, v{REC+2}
v_and_b32 v{TMP}, 0xfc, v{TMP}
v_and_b32 v{TMP+1}, 0xfc, v{TMP+1}
v_add_u32 v{TMP+2}, {L_CNT}, v{TMP}
v_add_u32 v{TMP+3}, {L_CNT}, v{TMP+1}
v_mov_b32 v{TMP+4}, 1
s_mov_b64 exec, s[{sV0}:{sV0+1}]
ds_add_rtn_u32 v{RK0}, v{TMP+2}, v{TMP+4}
s_mov_b64 exec, s[{sV1}:{sV1+1}]
ds_add_rtn_u32 v{RK1}, v{TMP+3}, v{TMP+4}
s_mov_b64 exec, -1
s_cmp_lg_u32 s{sRND}, 0
s_cbranch_scc1 K2_nox
v_lshrrev_b32 v{TMP+2}, 5, v0
v_and_b32 v{TMP+2}, 15, v{TMP+2}
v_lshlrev_b32 v{TMP+2}, 4, v{TMP+2}
v_xor_b32 v{TMP+2}, v{TMP+2}, v2
v_add_u32 v{TMP+2}, {L_XS}, v{TMP+2}
s_waitcnt vmcnt(10)
ds_write_b128 v{TMP+2}, {vr(XA,4)}
s_cmp_ge_u32 s{sWAVE}, 4
s_cbranch_scc1 K2_nox
ds_write_b128 v{TMP+2}, {vr(XB,4)} offset:16384
K2_nox:
s_waitcnt lgkmcnt(0)
s_barrier
v_add_u32 v{TMP+4}, {L_CNT}, v{IX+1}
ds_read_b32 v{TMP+2}, v{TMP+4}
s_waitcnt lgkmcnt(0)
v_mov_b32 v{VEND}, v{TMP+2}
s_nop 1
v_add_u32_dpp v{VEND}, v{VEND}, v{VEND} row_shr:1 row_mask:0xf bank_mask:0xf bound_ctrl:0
s_nop 1
v_add_u32_dpp v{VEND}, v{VEND}, v{VEND} row_shr:2 row_mask:0xf bank_mask:0xf bound_ctrl:0
s_nop 1
v_add_u32_dpp v{VEND}, v{VEND}, v{VEND} row_shr:4 row_mask:0xf bank_mask:0xf bound_ctrl:0
s_nop 1
v_add_u32_dpp v{VEND}, v{VEND}, v{VEND} row_shr:8 row_mask:0xf bank_mask:0xf bound_ctrl:0
s_nop 1
v_add_u32_dpp v{VEND}, v{VEND}, v{VEND} row_bcast:15 row_mask:0xa bank_mask:0xf
s_nop 1
v_add_u32_dpp v{VEND}, v{VEND}, v{VEND} row_bcast:31 row_mask:0xc bank_mask:0xf
v_sub_u32 v{TMP+2}, v{VEND}, v{TMP+2}
v_readlane_b32 s{sTOT}, v{VEND}, 63
ds_bpermute_b32 v{TMP}, v{TMP}, v{TMP+2}
ds_bpermute_b32 v{TMP+1}, v{TMP+1}, v{TMP+2}
v_mov_b64 {vr(XA,2)}, 0
v_mov_b64 {vr(XB,2)}, 0
v_and_b32 v{XA+2}, 0xffff, v{REC+1}
v_lshlrev_b32 v{XA+3}, 16, v{REC+1}
v_and_b32 v{XB+2}, 0xffff, v{REC+3}
v_lshlrev_b32 v{XB+3}, 16, v{REC+3}
v_and_b32 v{REC}, 0xffff, v{REC}
v_and_b32 v{REC+2}, 0xffff, v{REC+2}
s_lshl_b32 s{sT0}, s{sTOT}, 4
s_add_u32 s{sT0}, s{sT0}, {L_ET}
v_mov_b32 v{TMP+5}, s{sT0}
s_waitcnt lgkmcnt(0)
v_add_u32 v{TMP}, v{TMP}, v{RK0}
v_add_u32 v{TMP+1}, v{TMP+1}, v{RK1}
v_lshlrev_b32 v{TMP+2}, 2, v{TMP}
v_lshlrev_b32 v{TMP+3}, 2, v{TMP+1}
v_add_u32 v{TMP+2}, {L_IDX}, v{TMP+2}
v_add_u32 v{TMP+3}, {L_IDX}, v{TMP+3}
v_lshlrev_b32 v{TMP}, 4, v{TMP}
v_lshlrev_b32 v{TMP+1}, 4, v{TMP+1}
v_add_u32 v{TMP}, {L_ET}, v{TMP}
v_add_u32 v{TMP+1}, {L_ET}, v{TMP+1}
s_mov_b64 exec, s[{sV0}:{sV0+1}]
ds_write_b32 v{TMP+2}, v{REC}
ds_write_b128 v{TMP}, {vr(XA,4)}
s_mov_b64 exec, s[{sV1}:{sV1+1}]
ds_write_b32 v{TMP+3}, v{REC+2}
ds_write_b128 v{TMP+1}, {vr(XB,4)}
s_mov_b64 exec, 1
ds_write_b64 v{TMP+5}, {vr(XA,2)}
s_mov_b64 exec, -1
s_mul_i32 s{sP}, s{sTOT}, s{sWAVE}
s_add_u32 s{sP1}, s{sP}, s{sTOT}
s_lshr_b32 s{sP}, s{sP}, 4
s_lshr_b32 s{sP1}, s{sP1}, 4
s_sub_u32 s{sLIM}, s{sP1}, {R}
s_cmp_lg_u32 s{sRND}, 0
s_cbranch_scc1 K2_now3
s_mov_b32 s{sT0}, {NEGL2E:#x}
s_waitcnt vmcnt(8)
v_lshlrev_b32 v{TMP}, 16, v{W3A}
v_and_b32 v{TMP+1}, 0xffff0000, v{W3A}
v_lshlrev_b32 v{TMP+2}, 16, v{W3B}
v_and_b32 v{TMP+3}, 0xffff0000, v{W3B}
v_mul_f32 v{TMP}, s{sT0}, v{TMP}
v_mul_f32 v{TMP+1}, s{sT0}, v{TMP+1}
v_mul_f32 v{TMP+2}, s{sT0}, v{TMP+2}
v_mul_f32 v{TMP+3}, s{sT0}, v{TMP+3}
v_cvt_pk_bf16_f32 v{RING+2}, v{TMP}, v{TMP+1}
v_cvt_pk_bf16_f32 v{RING+3}, v{TMP+2}, v{TMP+3}
""")
    for s in range(1, R):
        o(f"v_mov_b64 {vr(RING+4*s+2,2)}, {vr(RING+2,2)}")
    o(f"""
K2_now3:
s_waitcnt lgkmcnt(0)
s_barrier
v_mov_b32 v{TMP}, 0
ds_write_b32 v{TMP+4}, v{TMP}
s_call_b64 s[{sRET2}:{sRET2+1}], K2_prime
s_cmp_lg_u32 s{sRND}, 0
s_cbranch_scc1 K2_noq
v_and_b32 v{TMP}, 15, v1
v_xor_b32 v{TMP+1}, v{TMP}, v3
v_lshlrev_b32 v{TMP+1}, 4, v{TMP+1}
v_lshl_add_u32 v{TMP+1}, v{TMP}, 9, v{TMP+1}
v_add_u32 v{TMP+1}, {L_XS}, v{TMP+1}
s_waitcnt vmcnt({2*R})
""")
    gemm_phase(o, TMP+1, True)
    o(f"""
s_mov_b32 s{sSC}, {NEGL2E:#x}
s_mov_b32 s{sSC+1}, {NEGL2E:#x}
s_movk_i32 s{sT0}, {RS}
v_mul_u32_u24 v{TMP}, s{sT0}, v{TMP}
v_lshl_add_u32 v{TMP}, v3, 4, v{TMP}
s_lshl_b32 s{sT0}, s{sWAVE}, 6
v_add_u32 v{TMP}, s{sT0}, v{TMP}
s_nop 1
""")
    for rt in range(3):
        for h in range(2):
            a = ACC + 4*rt + 2*h
            o(f"v_pk_mul_f32 {vr(a,2)}, {vr(a,2)}, s[{sSC}:{sSC+1}]")
        o(f"ds_write_b128 v{TMP}, {vr(ACC+4*rt,4)} offset:{L_QS + rt*16*RS}")
    o(f"""
s_waitcnt lgkmcnt(0)
s_barrier
K2_noq:
s_cmp_ge_u32 s{sP}, s{sP1}
s_cbranch_scc1 K2_loopdone
s_mov_b32 s{sNEND}, 0
s_call_b64 s[{sRET}:{sRET+1}], K2_reinit
K2_top:
""")
    for k in range(R):
        B = RING + 4*k
        o(f"""
s_waitcnt vmcnt({2*(R-1)}) lgkmcnt(0)
v_mfma_f32_16x16x32_bf16 {vr(T,4)}, {vr(A,4)}, {vr(B,4)}, {vr(Q,4)}
s_cmp_lt_i32 s{sP}, s{sLIM}
s_cselect_b32 s38, {N}, 0
buffer_load_dword v{B}, {vr(IX,2)}, s[36:39], 0 idxen offen
buffer_load_dword v{B+1}, {vr(IX,2)}, s[36:39], 0 idxen offen offset:256
ds_read_b32 v{IX}, v{VI} offset:{4*(k+R+1)}
ds_read2_b32 {vr(A+2,2)}, v{VE} offset0:{4*(k+1)} offset1:{4*(k+1)+2}
s_add_u32 s{sP}, s{sP}, 1
s_cbranch_vccnz K2_slow{k}
K2_back{k}:
v_exp_f32 v{E}, v{T}
v_exp_f32 v{E+1}, v{T+1}
v_exp_f32 v{E+2}, v{T+2}
v_exp_f32 v{E+3}, v{T+3}
v_pk_fma_f32 {vr(NN,2)}, {vr(NN,2)}, {vr(E,2)}, {vr(NN,2)}
v_pk_fma_f32 {vr(NN+2,2)}, {vr(NN+2,2)}, {vr(E+2,2)}, {vr(NN+2,2)}
v_pk_fma_f32 {vr(NN,2)}, {vr(T,2)}, {vr(D,2)}, {vr(NN,2)}
v_pk_fma_f32 {vr(NN+2,2)}, {vr(T+2,2)}, {vr(D+2,2)}, {vr(NN+2,2)}
v_pk_fma_f32 {vr(D,2)}, {vr(D,2)}, {vr(E,2)}, {vr(D,2)}
v_pk_fma_f32 {vr(D+2,2)}, {vr(D+2,2)}, {vr(E+2,2)}, {vr(D+2,2)}
s_cmp_eq_u32 s{sP}, s{sSEGE}
s_cbranch_scc1 K2_call{k}
K2_next{k}:
""")
    o(f"""
v_add_u32 v{VI}, {4*R}, v{VI}
v_add_u32 v{VE}, {16*R}, v{VE}
s_branch K2_top
""")
    for k in range(R):
        o(f"""
K2_call{k}:
s_call_b64 s[{sRET}:{sRET+1}], K2_flush
s_cbranch_scc1 K2_next{k}
s_branch K2_special
K2_slow{k}:
v_min_f32 v{T}, 0x42fc0000, v{T}
v_min_f32 v{T+1}, 0x42fc0000, v{T+1}
v_min_f32 v{T+2}, 0x42fc0000, v{T+2}
v_min_f32 v{T+3}, 0x42fc0000, v{T+3}
s_branch K2_back{k}
""")
    o(f"""
K2_flush:
v_rcp_f32 v{E}, v{D}
v_rcp_f32 v{E+1}, v{D+1}
v_rcp_f32 v{E+2}, v{D+2}
v_rcp_f32 v{E+3}, v{D+3}
s_cbranch_vccnz K2_nochk
v_pk_fma_f32 {vr(T,2)}, {vr(NN,2)}, 0, {vr(D,2)}
v_pk_fma_f32 {vr(T+2,2)}, {vr(NN+2,2)}, 0, {vr(D+2,2)}
v_pk_add_f32 {vr(T,2)}, {vr(T,2)}, {vr(T+2,2)}
v_add_f32 v{T}, v{T}, v{T+1}
v_cmp_nle_f32 s[{sM}:{sM+1}], v{T}, s{sBND}
s_nop 3
s_cmp_eq_u64 s[{sM}:{sM+1}], 0
s_cbranch_scc1 K2_nochk
s_mov_b32 s{sP}, s{sSEGS}
s_setpc_b64 s[{sRET}:{sRET+1}]
K2_nochk:
v_pk_mul_f32 {vr(E,2)}, {vr(NN,2)}, {vr(E,2)}
v_pk_mul_f32 {vr(E+2,2)}, {vr(NN+2,2)}, {vr(E+2,2)}
ds_add_f32 v{VN}, v{E} offset:{L_AGG}
ds_add_f32 v{VN}, v{E+1} offset:{L_AGG+4}
ds_add_f32 v{VN}, v{E+2} offset:{L_AGG+512}
ds_add_f32 v{VN}, v{E+3} offset:{L_AGG+516}
s_cmp_lg_u32 s{sP}, s{sP1}
s_cbranch_scc1 K2_reinit
s_setpc_b64 s[{sRET}:{sRET+1}]
K2_reinit:
v_mov_b64 {vr(NN,2)}, 0
v_mov_b64 {vr(NN+2,2)}, 0
v_mov_b64 {vr(D,2)}, s[{sONE}:{sONE+1}]
v_mov_b64 {vr(D+2,2)}, s[{sONE}:{sONE+1}]
s_cmp_lt_u32 s{sP}, s{sNEND}
s_cbranch_scc1 K2_samenode
v_cmp_ge_u32 s[{sM}:{sM+1}], s{sP}, v{VEND}
s_nop 3
s_bcnt1_i32_b64 s{sT0}, s[{sM}:{sM+1}]
s_mul_i32 s{sT1}, s{sT0}, {RS}
v_readlane_b32 s{sNEND}, v{VEND}, s{sT0}
v_add_u32 v{VN}, s{sT1}, v{VC}
ds_read2_b64 {vr(Q,4)}, v{VN} offset0:0 offset1:64
s_nop 1
K2_samenode:
s_mov_b32 s{sSEGS}, s{sP}
s_add_u32 s{sSEGE}, s{sP}, s{sK}
s_min_u32 s{sSEGE}, s{sSEGE}, s{sNEND}
s_min_u32 s{sSEGE}, s{sSEGE}, s{sP1}
s_cmp_eq_u32 s{sP}, s{sP}
s_setpc_b64 s[{sRET}:{sRET+1}]
K2_special:
s_cmp_eq_u32 s{sP}, s{sP1}
s_cbranch_scc1 K2_loopdone
s_mov_b64 vcc, -1
s_mov_b32 s{sK}, 1
s_waitcnt vmcnt(0) lgkmcnt(0)
s_call_b64 s[{sRET2}:{sRET2+1}], K2_prime
s_call_b64 s[{sRET}:{sRET+1}], K2_reinit
s_branch K2_top
K2_prime:
s_lshl_b32 s{sT0}, s{sP}, 2
s_add_u32 s{sT0}, s{sT0}, {L_IDX}
v_mov_b32 v{VI}, s{sT0}
s_lshl_b32 s{sT0}, s{sP}, 4
v_add_u32 v{VE}, s{sT0}, v{VEL}
""")
    for k in range(R):
        o(f"ds_read_b32 v{T+2*k}, v{VI} offset:{4*k}")
    o(f"ds_read_b32 v{IX}, v{VI} offset:{4*R}")
    o(f"ds_read2_b32 {vr(A+2,2)}, v{VE} offset0:0 offset1:2")
    for k in range(R):
        o(f"v_mov_b32 v{T+2*k+1}, v{IX+1}")
    o(f"s_mov_b32 s{sT0}, s{sP}\ns_waitcnt lgkmcnt(0)")
    for k in range(R):
        B = RING + 4*k
        o(f"""
s_cmp_lt_u32 s{sT0}, s{sP1}
s_cselect_b32 s38, {N}, 0
buffer_load_dword v{B}, {vr(T+2*k,2)}, s[36:39], 0 idxen offen
buffer_load_dword v{B+1}, {vr(T+2*k,2)}, s[36:39], 0 idxen offen offset:256
s_add_u32 s{sT0}, s{sT0}, 1
""")
    o(f"""
s_setpc_b64 s[{sRET2}:{sRET2+1}]
K2_loopdone:
s_waitcnt vmcnt(0) lgkmcnt(0)
s_barrier
s_cmp_lg_u32 s{sRND}, 0
s_cbranch_scc1 K2_rn
s_mov_b32 s{sRND}, 1
v_cmp_ne_u32 s[{sOM}:{sOM+1}], 0, v{VOVF}
s_mov_b32 s{sOB}, 0
s_nop 3
K2_rn:
s_cmp_eq_u64 s[{sOM}:{sOM+1}], 0
s_cbranch_scc1 K2_epi
s_ff1_i32_b64 s{sT0}, s[{sOM}:{sOM+1}]
s_mul_i32 s{sT1}, s{sT0}, {CHUNK*8}
v_readlane_b32 s{sOC}, v{VOVF}, s{sT0}
s_lshl_b32 s{sT2}, s{sOB}, 3
s_add_u32 s{sT1}, s{sT1}, s{sT2}
s_add_u32 s{sT1}, s{sT1}, {WS_OVF}
buffer_load_dwordx4 {vr(REC,4)}, v2, s[32:35], s{sT1} offen
v_lshlrev_b32 v{TMP}, 1, v0
v_add_u32 v{TMP}, s{sOB}, v{TMP}
v_add_u32 v{TMP+1}, 1, v{TMP}
v_cmp_gt_u32 s[{sV0}:{sV0+1}], s{sOC}, v{TMP}
v_cmp_gt_u32 s[{sV1}:{sV1+1}], s{sOC}, v{TMP+1}
s_add_u32 s{sOB}, s{sOB}, 2048
s_cmp_lt_u32 s{sOB}, s{sOC}
s_cbranch_scc1 K2_rn2
s_bitset0_b64 s[{sOM}:{sOM+1}], s{sT0}
s_mov_b32 s{sOB}, 0
K2_rn2:
s_waitcnt vmcnt(0)
v_lshrrev_b32 v{TMP}, 16, v{REC+1}
v_lshrrev_b32 v{TMP+1}, 16, v{REC+3}
v_cmp_eq_u32 s[{sM}:{sM+1}], s2, v{TMP}
s_nop 3
s_and_b64 s[{sV0}:{sV0+1}], s[{sV0}:{sV0+1}], s[{sM}:{sM+1}]
v_cmp_eq_u32 s[{sM}:{sM+1}], s2, v{TMP+1}
s_nop 3
s_and_b64 s[{sV1}:{sV1+1}], s[{sV1}:{sV1+1}], s[{sM}:{sM+1}]
s_branch K2_round
K2_epi:
""")
    wloads(o, 1)
    o(f"""
s_mov_b32 s{sSC}, {NEGLN2:#x}
s_mov_b32 s{sSC+1}, {NEGLN2:#x}
s_movk_i32 s{sT0}, {RS}
v_lshrrev_b32 v{TMP}, 5, v0
v_and_b32 v{TMP+1}, 31, v0
v_mul_u32_u24 v{TMP+2}, s{sT0}, v{TMP}
v_lshl_add_u32 v{TMP+2}, v{TMP+1}, 5, v{TMP+2}
v_add_u32 v{TMP+2}, {L_AGG}, v{TMP+2}
v_and_b32 v{TMP}, 15, v{TMP}
v_lshlrev_b32 v{TMP}, 4, v{TMP}
v_xor_b32 v{TMP}, v{TMP}, v2
""")
    C0 = RING
    def conv(off_in, off_out):
        o(f"ds_read_b128 {vr(C0,4)}, v{TMP+2} offset:{off_in}")
        o(f"ds_read_b128 {vr(C0+4,4)}, v{TMP+2} offset:{off_in+16}")
        o("s_waitcnt lgkmcnt(0)")
        for h in range(4):
            o(f"v_pk_mul_f32 {vr(C0+2*h,2)}, {vr(C0+2*h,2)}, s[{sSC}:{sSC+1}]")
        for h in range(4):
            o(f"v_cvt_pk_bf16_f32 v{C0+8+h}, v{C0+2*h}, v{C0+2*h+1}")
        o(f"ds_write_b128 v{TMP}, {vr(C0+8,4)} offset:{L_QS+off_out}")
    conv(0, 0)
    o(f"s_cmp_ge_u32 s{sWAVE}, 4\ns_cbranch_scc1 K2_cv2")
    conv(32 * RS, 16384)
    o(f"""
K2_cv2:
v_and_b32 v{TMP}, 15, v1
v_xor_b32 v{TMP+1}, v{TMP}, v3
v_lshlrev_b32 v{TMP+1}, 4, v{TMP+1}
v_lshl_add_u32 v{TMP+1}, v{TMP}, 9, v{TMP+1}
v_add_u32 v{TMP+2}, {L_XS}, v{TMP+1}
s_waitcnt vmcnt(0)
""")
    gemm_phase(o, TMP+2, True)
    wloads(o, 2)
    o("s_waitcnt lgkmcnt(0)\ns_barrier\ns_waitcnt vmcnt(0)")
    gemm_phase(o, TMP+1, False)
    o(f"""
s_mov_b32 s{sSC}, {NEGL2E:#x}
s_mov_b32 s{sSC+1}, {NEGL2E:#x}
v_add_u32 v{TMP+2}, s{sN0}, v{TMP}
v_lshlrev_b32 v{TMP+2}, 9, v{TMP+2}
v_lshl_add_u32 v{TMP+2}, v3, 3, v{TMP+2}
s_lshl_b32 s{sT0}, s{sWAVE}, 5
s_add_u32 s{sT1}, s{sT0}, 8192
s_add_u32 s{sT2}, s{sT0}, 16384
s_sub_u32 s{sCNT}, s{sCNT}, 32
""")
    for rt in range(3):
        a = ACC + 4*rt
        o(f"""
v_pk_mul_f32 {vr(T,2)}, {vr(a,2)}, s[{sSC}:{sSC+1}]
v_pk_mul_f32 {vr(T+2,2)}, {vr(a+2,2)}, s[{sSC}:{sSC+1}]
v_exp_f32 v{T}, v{T}
v_exp_f32 v{T+1}, v{T+1}
v_exp_f32 v{T+2}, v{T+2}
v_exp_f32 v{T+3}, v{T+3}
v_pk_add_f32 {vr(T,2)}, {vr(T,2)}, s[{sONE}:{sONE+1}]
v_pk_add_f32 {vr(T+2,2)}, {vr(T+2,2)}, s[{sONE}:{sONE+1}]
v_rcp_f32 v{T}, v{T}
v_rcp_f32 v{T+1}, v{T+1}
v_rcp_f32 v{T+2}, v{T+2}
v_rcp_f32 v{T+3}, v{T+3}
v_pk_mul_f32 {vr(a,2)}, {vr(a,2)}, {vr(T,2)}
v_pk_mul_f32 {vr(a+2,2)}, {vr(a+2,2)}, {vr(T+2,2)}
v_cvt_pk_bf16_f32 v{a}, v{a}, v{a+1}
v_cvt_pk_bf16_f32 v{a+1}, v{a+2}, v{a+3}
""")
        if rt == 2:
            o(f"v_cmp_gt_u32 vcc, s{sCNT}, v{TMP}\ns_and_saveexec_b64 s[{sM}:{sM+1}], vcc")
        o(f"buffer_store_dwordx2 {vr(a,2)}, v{TMP+2}, s[40:43], s{[sT0,sT1,sT2][rt]} offen")
    o("K2_end:\ns_endpgm")

def desc(name, vgpr, sgpr):
    return f""".p2align 6
.amdhsa_kernel {name}
  .amdhsa_next_free_vgpr {vgpr}
  .amdhsa_next_free_sgpr {sgpr}
  .amdhsa_accum_offset {(vgpr+3)//4*4}
  .amdhsa_group_segment_fixed_size 0
  .amdhsa_kernarg_size 72
  .amdhsa_user_sgpr_count 2
  .amdhsa_user_sgpr_kernarg_segment_ptr 1
  .amdhsa_system_sgpr_workgroup_id_x 1
.end_amdhsa_kernel
"""

def main(path):
    o = Asm()
    gen_k1(o)
    gen_k2(o)
    hdr = f"""; MPNN edge-MLP + segment sum + node update, two launches.
; @launch kernel=k1_kernel grid=({K1_GRID},1,1) block=(320,1,1) lds=65536
; @launch kernel=k2_kernel grid=(256,1,1) block=(1024,1,1) lds={L_END}
.amdgcn_target "amdgcn-amd-amdhsa--gfx950"
.text
"""
    s = hdr + o.text() + '.section .rodata,"a"\n' + desc("k1_kernel", 104, 64) + desc("k2_kernel", 120, 96)
    open(path, "w").write(s)

if __name__ == "__main__":
    main(sys.argv[1] if len(sys.argv) > 1 else "gather_scatter__mpnn_edge_mlp__graph.s")
```

```python
import sys

N = 10000
WS_P = 0
WS_WPACK = 0x500000
WS_OVFC = 0x560000
WS_OVF = 0x570000
WS_CELL = 0x700000
WS_END = 0xB00000
NCHUNK = 64
CHUNK = 2500
CAP = 31
NEGL2E = 0xBFB8AA3B
NEGLN2 = 0xBF317218

STAMP = False
WS_STAMP = 0xC00000
def stamp(o, i):
    if STAMP:
        if "clk" in OPT and i in (1, 6):
            return
        o(f"s_memrealtime s[{80+2*i}:{81+2*i}]")
        if "clk" in OPT and i in (0, 5):
            j = 1 if i == 0 else 6
            o(f"s_memtime s[{80+2*j}:{81+2*j}]")
def stamp_out(o, kern, wave_sgpr):
    if not STAMP:
        return
    o(f"""
s_memrealtime s[94:95]
s_mov_b64 exec, 1
s_lshl_b32 s26, s2, 4
s_add_u32 s26, s26, s{wave_sgpr}
s_lshl_b32 s26, s26, 5
s_add_u32 s26, s26, {WS_STAMP + kern*0x100000}
s_mov_b32 s34, 0x1000000
v_mov_b32 v0, 0
s_waitcnt lgkmcnt(0)
""")
    for i in range(8):
        o(f"v_mov_b32 v{4+i}, s{80+2*i}")
    o("buffer_store_dwordx4 v[4:7], v0, s[32:35], s26 offen\nbuffer_store_dwordx4 v[8:11], v0, s[32:35], s26 offen offset:16")

OPT = set()
class Asm:
    def __init__(self):
        self.l = []
    def __call__(self, s):
        for line in s.strip("\n").split("\n"):
            line = line.strip()
            if not line:
                continue
            if line.endswith(":"):
                self.l.append(line)
            else:
                self.l.append("    " + line)
    def text(self):
        l = self.l
        if "noadd" in OPT:
            l = [("    s_nop 0" if x.strip().startswith("ds_add_f32") else x) for x in l]
        if "noloop_ld" in OPT:
            a = l.index("K2_top:"); b = l.index("K2_call0:")
            l = l[:a] + [("    s_nop 0" if x.strip().startswith("buffer_load") else x) for x in l[a:b]] + l[b:]
        if "addu32" in OPT:
            l = [x.replace("ds_add_f32", "ds_add_u32") for x in l]
        return "\n".join(l) + "\n"

def vr(a, n):
    return f"v[{a}:{a+n-1}]" if n > 1 else f"v{a}"

def srd(o, d, lo, hi, size, extra_hi=None):
    o(f"s_mov_b32 s{d}, s{lo}")
    if extra_hi is None:
        o(f"s_mov_b32 s{d+1}, s{hi}")
    else:
        o(f"s_or_b32 s{d+1}, s{hi}, {extra_hi:#x}")
    o(f"s_mov_b32 s{d+2}, {size}")
    o(f"s_mov_b32 s{d+3}, 0x20000")

def load_args(o):
    o("s_load_dwordx16 s[8:23], s[0:1], 0")
    o("s_load_dwordx2 s[24:25], s[0:1], 64")

K1_GRID = 64 + 6 + 256
K1_LDS = 65536 + 1280
def gen_k1(o):
    XNT = "" if "nont" in OPT else "nt"
    PST = {"p_sc1": "sc1", "p_nt": "nt", "p_sc0sc1": "sc0 sc1"}
    PST = next((v for k, v in PST.items() if k in OPT), "")
    CST = PST
    o(f"""
.globl k1_kernel
.p2align 8
.type k1_kernel,@function
k1_kernel:
s_cmp_ge_u32 s2, {K1_GRID}
s_cbranch_scc1 K1_end
""")
    stamp(o, 0)
    if STAMP:
        o("s_getreg_b32 s92, hwreg(HW_REG_HW_ID)\ns_getreg_b32 s93, hwreg(HW_REG_XCC_ID)\ns_and_b32 s92, s92, 0xffff\ns_lshl_b32 s93, s93, 16\ns_or_b32 s92, s92, s93")
    load_args(o)
    o("""
v_and_b32 v1, 63, v0
v_lshrrev_b32 v2, 6, v0
s_nop 0
v_readfirstlane_b32 s3, v2
s_cmp_lt_u32 s2, 64
s_cbranch_scc1 K1_bin
""")
    o("""
s_sub_u32 s26, s2, 64
s_cmp_lt_u32 s26, 6
s_cbranch_scc1 K1_packsel
s_sub_u32 s26, s26, 6
s_lshr_b32 s5, s26, 4
s_lshl_b32 s5, s5, 3
s_and_b32 s27, s26, 7
s_add_u32 s5, s5, s27
s_lshr_b32 s4, s26, 3
s_and_b32 s4, s4, 1
s_cmp_ge_u32 s5, 125
s_cbranch_scc1 K1_end
s_mov_b32 s6, 0
s_waitcnt lgkmcnt(0)
s_mov_b32 s28, s16
s_mov_b32 s29, s17
s_branch K1_common
K1_packsel:
s_and_b32 s4, s26, 1
s_lshr_b32 s5, s26, 1
s_mov_b32 s6, 1
s_waitcnt lgkmcnt(0)
s_cmp_eq_u32 s5, 0
s_cselect_b32 s28, s16, s18
s_cselect_b32 s29, s17, s19
s_cmp_eq_u32 s5, 1
s_cselect_b32 s27, 0, 0x20000
s_add_u32 s28, s28, s27
s_addc_u32 s29, s29, 0
K1_common:
s_lshl_b32 s27, s4, 8
s_add_u32 s28, s28, s27
s_addc_u32 s29, s29, 0
s_sub_u32 s30, 0x20000, s27
s_mov_b32 s31, 0x20000
""")
    srd(o, 32, 24, 25, WS_END)
    srd(o, 36, 8, 9, N * 512)
    o("""
v_and_b32 v3, 15, v1
v_lshrrev_b32 v4, 4, v1
s_mul_i32 s7, s5, 80
s_lshl_b32 s27, s3, 4
s_add_u32 s7, s7, s27
v_add_u32 v5, s7, v3
v_lshlrev_b32 v5, 9, v5
v_lshl_add_u32 v6, v4, 4, v5
s_cmp_eq_u32 s6, 1
s_cbranch_scc1 K1_noX
""")
    XF = 16
    for ks in range(8):
        o(f"buffer_load_dwordx4 {vr(XF+4*ks,4)}, v6, s[36:39], 0 offen offset:{ks*64} {XNT}")
    o("K1_noX:")
    o("""
v_lshrrev_b32 v7, 1, v3
v_xor_b32 v7, v7, v4
v_lshlrev_b32 v7, 5, v7
v_and_b32 v8, 1, v3
v_lshl_add_u32 v7, v8, 4, v7
v_lshl_add_u32 v7, v4, 9, v7
s_mov_b32 s26, s3
""")
    for i in range(13):
        if i == 12:
            o("s_cmp_ge_u32 s26, 64\ns_cbranch_scc1 K1_dmadone")
        t = 8 + (i & 1)
        o(f"""
s_and_b32 s27, s26, 2
s_lshl_b32 s27, s27, 6
v_xor_b32 v{t}, s27, v7
s_lshl_b32 m0, s26, 10
s_lshl_b32 s27, s26, 11
buffer_load_dwordx4 v{t}, s[28:31], s27 offen lds
s_add_u32 s26, s26, 5
""")
    o("K1_dmadone:")
    o("""
v_bfe_u32 v12, v1, 2, 2
v_and_b32 v13, 3, v1
v_lshl_add_u32 v10, v4, 3, v12
v_lshlrev_b32 v10, 8, v10
v_lshl_add_u32 v10, v13, 3, v10
v_and_b32 v11, 1, v4
v_lshl_or_b32 v11, v11, 2, v12
v_lshlrev_b32 v11, 5, v11
s_cmp_eq_u32 s6, 1
s_cbranch_scc1 K1_pack
""")
    TA = 48
    ACC = 56
    WF = 88
    for j in range(8):
        o(f"v_xor_b32 v{TA+j}, {j*32}, v11\nv_add_u32 v{TA+j}, v{TA+j}, v10")
    stamp(o, 1)
    o("s_waitcnt vmcnt(0)")
    stamp(o, 2)
    o("s_barrier")
    stamp(o, 3)
    if STAMP: o("s_waitcnt lgkmcnt(0)")
    seq = [(ks, j) for ks in range(8) for j in range(8)]
    def rd(i):
        ks, j = seq[i]
        w = WF + 4 * (i % 4)
        o(f"ds_read_b64_tr_b16 {vr(w,2)}, v{TA+j} offset:{ks*8192}")
        o(f"ds_read_b64_tr_b16 {vr(w+2,2)}, v{TA+j} offset:{ks*8192+1024}")
    for i in range(3):
        rd(i)
    for i in range(64):
        ks, j = seq[i]
        if i + 3 < 64:
            rd(i + 3)
        o(f"s_waitcnt lgkmcnt({2*min(3, 63-i)})")
        c = "0" if ks == 0 else vr(ACC+4*j, 4)
        o(f"v_mfma_f32_16x16x32_bf16 {vr(ACC+4*j,4)}, {vr(WF+4*(i%4),4)}, {vr(XF+4*ks,4)}, {c}")
    o(f"""
s_mov_b32 s40, {NEGL2E:#x}
s_mov_b32 s41, {NEGL2E:#x}
s_lshl_b32 s27, s4, 8
s_nop 4
""")
    stamp(o, 4)
    for j in range(8):
        for h in range(2):
            a = ACC + 4*j + 2*h
            o(f"v_pk_mul_f32 {vr(a,2)}, {vr(a,2)}, s[40:41]")
    PK = 16
    for s in range(4):
        for u in range(4):
            a = ACC + 8*s + 2*u
            o(f"v_cvt_pk_bf16_f32 v{PK+4*s+u}, v{a}, v{a+1}")
        o(f"buffer_store_dwordx4 {vr(PK+4*s,4)}, v6, s[32:35], s27 offen offset:{s*64} {PST}")
    stamp(o, 5)
    if STAMP: o("s_waitcnt vmcnt(0)")
    stamp_out(o, 0, 3)
    o("s_endpgm")
    o("K1_pack:\ns_waitcnt vmcnt(0)\ns_barrier\ns_mov_b32 s26, s3")
    for i in range(13):
        if i == 12:
            o("s_cmp_ge_u32 s26, 64\ns_cbranch_scc1 K1_pk1")
        o(f"""
s_lshr_b32 s27, s26, 3
s_lshl_b32 s27, s27, 5
s_and_b32 s40, s26, 7
s_lshl_b32 s40, s40, 13
v_xor_b32 v12, s27, v11
v_add3_u32 v12, v12, v10, s40
ds_read_b64_tr_b16 {vr(16+4*i,2)}, v12
ds_read_b64_tr_b16 {vr(18+4*i,2)}, v12 offset:1024
s_add_u32 s26, s26, 5
""")
    o(f"""
K1_pk1:
s_lshl_b32 s27, s5, 17
s_lshl_b32 s40, s4, 16
s_add_u32 s27, s27, s40
s_add_u32 s27, s27, {WS_WPACK}
s_lshl_b32 s40, s3, 10
s_add_u32 s27, s27, s40
v_lshlrev_b32 v12, 4, v1
s_waitcnt lgkmcnt(0)
""")
    for i in range(13):
        if i == 12:
            o("s_cmp_ge_u32 s3, 4\ns_cbranch_scc1 K1_end")
        o(f"buffer_store_dwordx4 {vr(16+4*i,4)}, v12, s[32:35], s27 offen {PST}")
        o("s_add_u32 s27, s27, 5120")
    o("s_endpgm")
    LCNT = 65536
    o(f"""
K1_bin:
v_lshlrev_b32 v2, 2, v0
v_add_u32 v2, {LCNT}, v2
v_mov_b32 v3, 0
ds_write_b32 v2, v3
v_lshlrev_b32 v4, 4, v0
v_lshlrev_b32 v5, 3, v0
s_mul_i32 s4, s2, 10000
s_add_u32 s5, s4, 5120
s_mul_i32 s6, s2, 5000
s_add_u32 s7, s6, 2560
s_waitcnt lgkmcnt(0)
""")
    srd(o, 28, 14, 15, 640000)
    srd(o, 36, 12, 13, 640000)
    srd(o, 40, 10, 11, 320000)
    srd(o, 32, 24, 25, WS_END)
    DST, SRC, EA, OWN, RK = 8, 16, 24, 28, 36
    nt = XNT
    o(f"""
buffer_load_dwordx4 {vr(DST,4)}, v4, s[28:31], s4 offen {nt}
buffer_load_dwordx4 {vr(DST+4,4)}, v4, s[28:31], s5 offen {nt}
buffer_load_dwordx4 {vr(SRC,4)}, v4, s[36:39], s4 offen {nt}
buffer_load_dwordx4 {vr(SRC+4,4)}, v4, s[36:39], s5 offen {nt}
buffer_load_dwordx2 {vr(EA,2)}, v5, s[40:43], s6 offen {nt}
buffer_load_dwordx2 {vr(EA+2,2)}, v5, s[40:43], s7 offen {nt}
s_barrier
s_movk_i32 s46, 305
v_cmp_gt_u32 s[44:45], s46, v0
s_mov_b32 s46, 429497
s_movk_i32 s47, 625
s_mov_b32 s50, {LCNT}
v_mov_b32 v6, 1
""")
    stamp(o, 1)
    o("s_waitcnt vmcnt(4)")
    stamp(o, 2)
    for k in range(8):
        if k == 4:
            o("s_mov_b64 exec, s[44:45]")
        o(f"""
v_mul_u32_u24 v{OWN+k}, s46, v{DST+k}
v_lshrrev_b32 v{OWN+k}, 24, v{OWN+k}
v_lshl_add_u32 v7, v{OWN+k}, 2, s50
ds_add_rtn_u32 v{RK+k}, v7, v6
v_mad_u32_u24 v7, v{OWN+k}, s47, 15
v_lshrrev_b32 v7, 4, v7
v_sub_u32 v{DST+k}, v{DST+k}, v7
""")
    o("s_mov_b64 exec, -1\ns_waitcnt vmcnt(0)")
    R0 = 44
    for k in range(8):
        e = EA + k // 2
        o(f"v_lshl_or_b32 v{R0+2*k}, v{DST+k}, 16, v{SRC+k}")
        if k % 2 == 0:
            o(f"v_and_b32 v{R0+2*k+1}, 0xffff, v{e}")
        else:
            o(f"v_lshrrev_b32 v{R0+2*k+1}, 16, v{e}")
        o(f"v_lshl_or_b32 v{R0+2*k+1}, v{OWN+k}, 16, v{R0+2*k+1}")
    o(f"""
s_lshl_b32 s4, s2, 8
s_add_u32 s4, s4, {WS_CELL}
s_mul_i32 s6, s2, {CHUNK*8}
s_add_u32 s6, s6, {WS_OVF}
v_mov_b32 v60, {LCNT+1024}
s_waitcnt lgkmcnt(0)
""")
    stamp(o, 3)
    for k in range(8):
        if k == 4:
            o("s_mov_b64 exec, s[44:45]")
        o(f"""
v_lshlrev_b32 v7, 8, v{OWN+k}
v_lshl_add_u32 v7, v{RK+k}, 3, v7
v_cmp_gt_u32 vcc, {CAP}, v{RK+k}
s_and_saveexec_b64 s[48:49], vcc
ds_write_b64 v7, {vr(R0+2*k,2)} offset:8
s_andn2_b64 exec, s[48:49], exec
s_cbranch_execz K1_no{k}
ds_add_rtn_u32 v61, v60, v6
s_waitcnt lgkmcnt(0)
v_lshlrev_b32 v61, 3, v61
buffer_store_dwordx2 {vr(R0+2*k,2)}, v61, s[32:35], s6 offen
K1_no{k}:
s_mov_b64 exec, s[48:49]
""")
    o(f"""
s_mov_b64 exec, -1
v_lshrrev_b32 v8, 3, v0
v_and_b32 v9, 7, v0
v_lshlrev_b32 v10, 8, v8
v_lshl_add_u32 v10, v9, 4, v10
v_lshlrev_b32 v11, 14, v8
v_lshl_add_u32 v11, v9, 4, v11
v_lshl_add_u32 v8, v8, 2, s50
v_cmp_eq_u32 s[46:47], 0, v9
s_movk_i32 s5, 128
v_cmp_gt_u32 s[44:45], s5, v0
s_waitcnt lgkmcnt(0)
s_barrier
""")
    stamp(o, 4)
    if STAMP: o("s_waitcnt lgkmcnt(0)")
    CP, CN = 12, 44
    for i in range(7):
        o(f"ds_read_b128 {vr(CP+4*i,4)}, v10 offset:{i*40*256}")
        o(f"ds_read_b32 v{CN+i}, v8 offset:{i*160}")
    o(f"ds_read_b32 v52, v60")
    o("s_mov_b32 s5, s4")
    for i in range(7):
        o(f"s_waitcnt lgkmcnt({2*(6-i)+1})")
        if i == 6:
            o("s_mov_b64 exec, s[44:45]")
        o(f"""
v_min_u32 v53, {CAP}, v{CN+i}
v_cndmask_b32 v{CP+4*i}, v{CP+4*i}, v53, s[46:47]
buffer_store_dwordx4 {vr(CP+4*i,4)}, v11, s[32:35], s5 offen {CST}
v_cmp_lt_u32 vcc, 15, v{CN+i}
s_and_saveexec_b64 s[48:49], vcc
s_cbranch_execz K1_n2{i}
ds_read_b128 v[56:59], v10 offset:{i*40*256+128}
s_waitcnt lgkmcnt(0)
buffer_store_dwordx4 v[56:59], v11, s[32:35], s5 offen offset:128 {CST}
K1_n2{i}:
s_mov_b64 exec, s[48:49]
s_add_u32 s5, s5, {40*16384}
""")
    o(f"""
s_cmp_lg_u32 s3, 0
s_cbranch_scc1 K1_bend
s_mov_b64 exec, 1
s_lshl_b32 s6, s2, 2
s_add_u32 s6, s6, {WS_OVFC}
v_mov_b32 v9, 0
s_waitcnt lgkmcnt(0)
buffer_store_dword v52, v9, s[32:35], s6 offen
K1_bend:
""")
    stamp(o, 5)
    if STAMP: o("s_waitcnt vmcnt(0)")
    stamp_out(o, 0, 3)
    o("K1_end:\ns_endpgm")

R = 8
PAD = R + 2
KMAX = 24
RS = 1040
L_QS = 0
L_AGG = (48 * RS + 511) // 512 * 512
L_XS = (L_AGG + 40 * RS + 511) // 512 * 512
L_IDX = L_XS + 48 * 512
L_ET = L_IDX + (2048 + 16 * PAD) * 4
L_CNT = L_ET + 2052 * 16
L_END = L_CNT + 256
AG0, AG1 = L_AGG // 512, L_AGG // 512 + 1
RING = 4
A0, A1, Q, T0, T1, E, NN, D, AC, HD = 36, 40, 44, 48, 52, 56, 60, 64, 68, 72
IX, AD, LO, VI, VE, VN, VNH, VC, VEND, VOVF, VEL = 76, 77, 78, 79, 80, 81, 82, 83, 84, 85, 86
TMP = 87
W = 94
K2_VGPR = 126
sWAVE, sN0, sCNT = 3, 4, 5
sP, sP1, sREM, sSEGE, sSEGS, sNEND, sK, sTOT, sRND, sOB, sOC, sOFF = 48, 49, 50, 51, 52, 53, 54, 55, 56, 57, 58, 59
sV0, sV1, sOM, sRET, sRET2, sM, sONE, sSC = 60, 62, 64, 66, 68, 70, 72, 74
sT0, sT1, sT2, sBND = 76, 77, 78, 79
sHEAD, sHV, sW1, sMULTI = 6, 7, 26, 27

def gemm_phase(o, base_reg, first_zero, wreg, acc, xfr):
    for ks in range(8):
        if ks == 0:
            a = base_reg
        else:
            a = TMP + 6
            o(f"v_xor_b32 v{a}, {64*ks}, v{base_reg}")
        for rt in range(3):
            o(f"ds_read_b128 {vr(xfr[rt],4)}, v{a} offset:{rt*8192}")
        for rt in range(3):
            o(f"s_waitcnt lgkmcnt({2-rt})")
            c = "0" if (ks == 0 and first_zero) else vr(acc+4*rt, 4)
            o(f"v_mfma_f32_16x16x32_bf16 {vr(acc+4*rt,4)}, {vr(wreg+4*ks,4)}, {vr(xfr[rt],4)}, {c}")

def wloads(o, mat, wreg):
    o(f"""
s_lshl_b32 s{sT0}, s{sWAVE}, 13
s_add_u32 s{sT0}, s{sT0}, {WS_WPACK + mat*131072}
s_add_u32 s{sT1}, s{sT0}, 4096
v_lshlrev_b32 v{TMP+5}, 4, v1
""")
    for ks in range(8):
        o(f"buffer_load_dwordx4 {vr(wreg+4*ks,4)}, v{TMP+5}, s[32:35], s{sT0 if ks < 4 else sT1} offen offset:{(ks%4)*1024}")

def valu_block(T):
    return f"""
v_exp_f32 v{E}, v{T}
v_exp_f32 v{E+1}, v{T+1}
v_exp_f32 v{E+2}, v{T+2}
v_exp_f32 v{E+3}, v{T+3}
""", f"""
v_pk_fma_f32 {vr(NN,2)}, {vr(NN,2)}, {vr(E,2)}, {vr(NN,2)}
v_pk_fma_f32 {vr(NN+2,2)}, {vr(NN+2,2)}, {vr(E+2,2)}, {vr(NN+2,2)}
v_pk_fma_f32 {vr(NN,2)}, {vr(T,2)}, {vr(D,2)}, {vr(NN,2)}
v_pk_fma_f32 {vr(NN+2,2)}, {vr(T+2,2)}, {vr(D+2,2)}, {vr(NN+2,2)}
v_pk_fma_f32 {vr(D,2)}, {vr(D,2)}, {vr(E,2)}, {vr(D,2)}
v_pk_fma_f32 {vr(D+2,2)}, {vr(D+2,2)}, {vr(E+2,2)}, {vr(D+2,2)}
"""

def gen_k2(o):
    REC, RK0, RK1, XA, XB, W3A, W3B = 48, 52, 53, 56, 60, 64, 65
    QACC, QXF = 44, [56, 60, 64]
    FACC, FXF, W2R = 36, [48, 52, 56], RING
    AA = [A0, A1]
    TT = [T0, T1]
    o(f"""
.globl k2_kernel
.p2align 8
.type k2_kernel,@function
k2_kernel:
s_cmp_ge_u32 s2, 256
s_cbranch_scc1 K2_end
""")
    stamp(o, 0)
    load_args(o)
    o(f"""
v_and_b32 v1, 63, v0
v_lshrrev_b32 v2, 6, v0
s_mul_i32 s{sN0}, s2, 625
v_readfirstlane_b32 s{sWAVE}, v2
s_add_u32 s{sCNT}, s{sN0}, 640
s_add_u32 s{sN0}, s{sN0}, 15
s_lshr_b32 s{sN0}, s{sN0}, 4
s_lshr_b32 s{sCNT}, s{sCNT}, 4
s_sub_u32 s{sCNT}, s{sCNT}, s{sN0}
v_lshlrev_b32 v2, 4, v0
v_lshlrev_b32 v{LO}, 2, v1
s_lshl_b32 s{sT0}, s2, 14
s_add_u32 s{sT0}, s{sT0}, {WS_CELL}
s_mov_b32 s{sT1}, {WS_OVFC}
s_lshl_b32 s{sT2}, s{sN0}, 9
v_lshrrev_b32 v3, 4, v1
v_lshlrev_b32 v{VC}, 5, v3
v_bfe_u32 v{TMP}, v1, 1, 1
v_lshl_add_u32 v{VC}, v{TMP}, 4, v{VC}
v_bfe_u32 v{TMP}, v1, 2, 2
v_lshl_add_u32 v{VC}, v{TMP}, 2, v{VC}
v_and_b32 v{TMP}, 1, v1
v_lshl_add_u32 v{VC}, v{TMP}, 1, v{VC}
v_lshlrev_b32 v{TMP+1}, 1, v{VC}
v_lshlrev_b32 v{VC}, 2, v{VC}
v_add_u32 v{TMP+2}, 0x4000, v2
v_mov_b32 v{TMP+3}, 0x7ffffff0
s_movk_i32 s{sK}, 256
v_cmp_gt_u32 vcc, s{sK}, v0
s_waitcnt lgkmcnt(0)
""")
    srd(o, 32, 24, 25, WS_END)
    o(f"""
buffer_load_dwordx4 {vr(REC,4)}, v2, s[32:35], s{sT0} offen
buffer_load_dword v{VOVF}, v{LO}, s[32:35], s{sT1} offen
v_cndmask_b32 v{TMP+2}, v{TMP+3}, v{TMP+2}, vcc
""")
    srd(o, 28, 8, 9, N * 512)
    srd(o, 44, 16, 17, 513 * 512)
    o(f"""
buffer_load_dwordx4 {vr(XA,4)}, v2, s[28:31], s{sT2} offen
buffer_load_dwordx4 {vr(XB,4)}, v{TMP+2}, s[28:31], s{sT2} offen
s_mov_b32 s{sT1}, {512*512}
buffer_load_dword v{W3A}, v{TMP+1}, s[44:47], s{sT1} offen
buffer_load_dword v{W3B}, v{TMP+1}, s[44:47], s{sT1} offen offset:256
""")
    srd(o, 36, 24, 25, N * 512)
    srd(o, 40, 20, 21, N * 512)
    Z = RING
    o(f"""
v_mov_b64 {vr(Z,2)}, 0
v_mov_b64 {vr(Z+2,2)}, 0
v_add_u32 v{TMP+4}, {L_CNT}, v{LO}
ds_write_b32 v{TMP+4}, v{Z}
s_waitcnt lgkmcnt(0)
s_barrier
""")
    wloads(o, 0, W)
    o(f"""
v_add_u32 v{TMP}, {L_AGG}, v2
ds_write_b128 v{TMP}, {vr(Z,4)}
ds_write_b128 v{TMP}, {vr(Z,4)} offset:16384
s_movk_i32 s{sT0}, {2600-2048}
v_cmp_gt_u32 vcc, s{sT0}, v0
s_and_saveexec_b64 s[{sM}:{sM+1}], vcc
ds_write_b128 v{TMP}, {vr(Z,4)} offset:32768
s_mov_b64 exec, s[{sM}:{sM+1}]
v_and_b32 v{TMP}, 3, v1
v_bfe_u32 v{TMP+1}, v1, 2, 2
v_cmp_eq_u32 vcc, v{TMP+1}, v3
v_and_b32 v{TMP+2}, 1, v1
v_lshlrev_b32 v{TMP+2}, 4, v{TMP+2}
v_mov_b32 v{TMP+3}, 0x3f80
v_lshlrev_b32 v{TMP+3}, v{TMP+2}, v{TMP+3}
v_cndmask_b32 v{TMP+3}, 0, v{TMP+3}, vcc
v_xor_b32 v{VEL}, 2, v{TMP}
v_lshlrev_b32 v{VEL}, 2, v{VEL}
v_add_u32 v{VEL}, {L_ET}, v{VEL}
v_mov_b32 v{TMP+2}, 0x30000
v_cndmask_b32 v{VEL}, v{TMP+2}, v{VEL}, vcc
v_cmp_gt_u32 vcc, 2, v{TMP}
s_mov_b32 s{sONE}, 1.0
s_mov_b32 s{sONE+1}, 1.0
v_cndmask_b32 v{A0}, 0, v{TMP+3}, vcc
v_cndmask_b32_e64 v{A0+1}, v{TMP+3}, 0, vcc
v_mov_b64 {vr(A1,2)}, {vr(A0,2)}
s_mov_b32 s{sBND}, 0x7b800000
s_mov_b32 s{sRND}, 0
s_mov_b32 s{sW1}, 0
v_and_b32 v{TMP}, 15, v0
v_lshlrev_b32 v{TMP}, 1, v{TMP}
s_waitcnt vmcnt(13)
""")
    stamp(o, 1)
    o(f"""
v_mov_b32_dpp v{TMP+1}, v{REC} row_newbcast:0 row_mask:0xf bank_mask:0xf
v_add_u32 v{TMP+2}, -1, v{TMP}
v_cmp_gt_u32 s[{sV0}:{sV0+1}], v{TMP+1}, v{TMP+2}
v_cmp_gt_u32 s[{sV1}:{sV1+1}], v{TMP+1}, v{TMP}
K2_round:
v_lshrrev_b32 v{TMP}, 14, v{REC}
v_lshrrev_b32 v{TMP+1}, 14, v{REC+2}
v_and_b32 v{TMP}, 0xfc, v{TMP}
v_and_b32 v{TMP+1}, 0xfc, v{TMP+1}
v_add_u32 v{TMP+2}, {L_CNT}, v{TMP}
v_add_u32 v{TMP+3}, {L_CNT}, v{TMP+1}
v_mov_b32 v{TMP+4}, 1
s_mov_b64 exec, s[{sV0}:{sV0+1}]
ds_add_rtn_u32 v{RK0}, v{TMP+2}, v{TMP+4}
s_mov_b64 exec, s[{sV1}:{sV1+1}]
ds_add_rtn_u32 v{RK1}, v{TMP+3}, v{TMP+4}
s_mov_b64 exec, -1
s_mov_b64 vcc, 0
s_mov_b32 s{sK}, {KMAX}
s_cmp_lg_u32 s{sRND}, 0
s_cbranch_scc1 K2_nox
v_lshrrev_b32 v{TMP+2}, 5, v0
v_and_b32 v{TMP+2}, 15, v{TMP+2}
v_lshlrev_b32 v{TMP+2}, 4, v{TMP+2}
v_xor_b32 v{TMP+2}, v{TMP+2}, v2
v_add_u32 v{TMP+2}, {L_XS}, v{TMP+2}
s_waitcnt vmcnt(10)
ds_write_b128 v{TMP+2}, {vr(XA,4)}
s_cmp_ge_u32 s{sWAVE}, 4
s_cbranch_scc1 K2_nox
ds_write_b128 v{TMP+2}, {vr(XB,4)} offset:16384
K2_nox:
s_waitcnt lgkmcnt(0)
s_barrier
v_add_u32 v{TMP+4}, {L_CNT}, v{LO}
ds_read_b32 v{TMP+2}, v{TMP+4}
v_mov_b64 {vr(XA,2)}, 0
v_mov_b64 {vr(XB,2)}, 0
v_and_b32 v{XA+2}, 0xffff, v{REC+1}
v_lshlrev_b32 v{XA+3}, 16, v{REC+1}
v_and_b32 v{XB+2}, 0xffff, v{REC+3}
v_lshlrev_b32 v{XB+3}, 16, v{REC+3}
v_and_b32 v{REC}, 0xffff, v{REC}
v_and_b32 v{REC+2}, 0xffff, v{REC+2}
v_lshlrev_b32 v{REC}, 9, v{REC}
v_lshlrev_b32 v{REC+2}, 9, v{REC+2}
s_waitcnt lgkmcnt(0)
v_add_u32_dpp v{VEND}, v{TMP+2}, v{TMP+2} row_shr:1 row_mask:0xf bank_mask:0xf bound_ctrl:0
s_nop 1
v_add_u32_dpp v{VEND}, v{VEND}, v{VEND} row_shr:2 row_mask:0xf bank_mask:0xf bound_ctrl:0
s_nop 1
v_add_u32_dpp v{VEND}, v{VEND}, v{VEND} row_shr:4 row_mask:0xf bank_mask:0xf bound_ctrl:0
s_nop 1
v_add_u32_dpp v{VEND}, v{VEND}, v{VEND} row_shr:8 row_mask:0xf bank_mask:0xf bound_ctrl:0
s_nop 1
v_add_u32_dpp v{VEND}, v{VEND}, v{VEND} row_bcast:15 row_mask:0xa bank_mask:0xf
s_nop 1
v_add_u32_dpp v{VEND}, v{VEND}, v{VEND} row_bcast:31 row_mask:0xc bank_mask:0xf
v_sub_u32 v{TMP+3}, v{VEND}, v{TMP+2}
v_readlane_b32 s{sTOT}, v{VEND}, 63
ds_bpermute_b32 v{TMP}, v{TMP}, v{TMP+3}
ds_bpermute_b32 v{TMP+1}, v{TMP+1}, v{TMP+3}
s_nop 1
s_add_u32 s{sT2}, s{sTOT}, 15
s_lshr_b32 s{sT2}, s{sT2}, 4
v_cvt_f32_u32 v{TMP+5}, s{sT2}
v_rcp_f32 v{TMP+5}, v{TMP+5}
v_cmp_lt_u32 s[{sM}:{sM+1}], s{sT2}, v{TMP+2}
v_mul_f32 v{TMP+5}, 0x49800000, v{TMP+5}
v_cvt_u32_f32 v{TMP+5}, v{TMP+5}
v_add_u32 v{TMP+5}, 2, v{TMP+5}
s_mul_i32 s{sP}, s{sT2}, s{sWAVE}
s_add_u32 s{sP1}, s{sP}, s{sT2}
s_min_u32 s{sP}, s{sP}, s{sTOT}
s_min_u32 s{sP1}, s{sP1}, s{sTOT}
s_mul_i32 s{sOFF}, s{sWAVE}, {4*PAD}
s_add_u32 s{sOFF}, s{sOFF}, {L_IDX}
s_cmp_lg_u64 s[{sM}:{sM+1}], 0
s_cselect_b32 s{sMULTI}, 1, 0
s_lshl_b32 s{sT0}, s{sTOT}, 4
s_add_u32 s{sT0}, s{sT0}, {L_ET}
s_lshl_b32 s{sT1}, s{sP1}, 2
s_add_u32 s{sT1}, s{sT1}, s{sOFF}
v_mov_b32 v{TMP+6}, s{sT0}
v_add_u32 v{VI}, s{sT1}, v{LO}
v_mov_b32 v{IX}, 0x80000000
s_movk_i32 s{sT1}, {4*PAD}
s_waitcnt lgkmcnt(0)
v_add_u32 v{TMP}, v{TMP}, v{RK0}
v_add_u32 v{TMP+1}, v{TMP+1}, v{RK1}
v_mul_u32_u24 v{TMP+2}, v{TMP}, v{TMP+5}
v_mul_u32_u24 v{TMP+3}, v{TMP+1}, v{TMP+5}
v_lshrrev_b32 v{TMP+2}, 20, v{TMP+2}
v_lshrrev_b32 v{TMP+3}, 20, v{TMP+3}
v_mul_u32_u24 v{TMP+2}, s{sT1}, v{TMP+2}
v_mul_u32_u24 v{TMP+3}, s{sT1}, v{TMP+3}
v_lshl_add_u32 v{TMP+2}, v{TMP}, 2, v{TMP+2}
v_lshl_add_u32 v{TMP+3}, v{TMP+1}, 2, v{TMP+3}
v_add_u32 v{TMP+2}, {L_IDX}, v{TMP+2}
v_add_u32 v{TMP+3}, {L_IDX}, v{TMP+3}
v_lshlrev_b32 v{TMP}, 4, v{TMP}
v_lshlrev_b32 v{TMP+1}, 4, v{TMP+1}
v_add_u32 v{TMP}, {L_ET}, v{TMP}
v_add_u32 v{TMP+1}, {L_ET}, v{TMP+1}
s_mov_b64 exec, s[{sV0}:{sV0+1}]
ds_write_b32 v{TMP+2}, v{REC}
ds_write_b128 v{TMP}, {vr(XA,4)}
s_mov_b64 exec, s[{sV1}:{sV1+1}]
ds_write_b32 v{TMP+3}, v{REC+2}
ds_write_b128 v{TMP+1}, {vr(XB,4)}
s_mov_b64 exec, {(1 << PAD) - 1:#x}
ds_write_b32 v{VI}, v{IX}
s_mov_b64 exec, 1
ds_write_b64 v{TMP+6}, {vr(XA,2)}
s_mov_b64 exec, -1
s_cmp_lg_u32 s{sRND}, 0
s_cbranch_scc1 K2_now3
s_mov_b32 s{sT0}, {NEGL2E:#x}
s_waitcnt vmcnt(8)
v_lshlrev_b32 v{TMP}, 16, v{W3A}
v_and_b32 v{TMP+1}, 0xffff0000, v{W3A}
v_lshlrev_b32 v{TMP+2}, 16, v{W3B}
v_and_b32 v{TMP+3}, 0xffff0000, v{W3B}
v_mul_f32 v{TMP}, s{sT0}, v{TMP}
v_mul_f32 v{TMP+1}, s{sT0}, v{TMP+1}
v_mul_f32 v{TMP+2}, s{sT0}, v{TMP+2}
v_mul_f32 v{TMP+3}, s{sT0}, v{TMP+3}
v_cvt_pk_bf16_f32 v{RING+2}, v{TMP}, v{TMP+1}
v_cvt_pk_bf16_f32 v{RING+3}, v{TMP+2}, v{TMP+3}
""")
    for s_ in range(1, R):
        o(f"v_mov_b64 {vr(RING+4*s_+2,2)}, {vr(RING+2,2)}")
    o(f"""
K2_now3:
s_waitcnt lgkmcnt(0)
s_barrier
v_mov_b32 v{TMP}, 0
ds_write_b32 v{TMP+4}, v{TMP}
""")
    stamp(o, 2)
    PT = 48
    o(f"""
s_lshl_b32 s{sT0}, s{sP}, 2
s_add_u32 s{sT0}, s{sT0}, s{sOFF}
v_mov_b32 v{VI}, s{sT0}
s_lshl_b32 s{sT0}, s{sP}, 4
v_add_u32 v{VE}, s{sT0}, v{VEL}
""")
    for k in range(0, R, 2):
        o(f"ds_read2_b32 {vr(PT+k,2)}, v{VI} offset0:{k} offset1:{k+1}")
    o(f"""
ds_read_b32 v{IX}, v{VI} offset:{4*R}
ds_read2_b32 {vr(A0+2,2)}, v{VE} offset0:0 offset1:2
ds_read2_b32 {vr(A1+2,2)}, v{VE} offset0:4 offset1:6
s_waitcnt lgkmcnt(0)
""")
    for k in range(R):
        o(f"v_add_u32 v{PT+k}, v{PT+k}, v{LO}")
    for k in range(R):
        B = RING + 4*k
        o(f"buffer_load_dword v{B}, v{PT+k}, s[36:39], 0 offen")
        o(f"buffer_load_dword v{B+1}, v{PT+k}, s[36:39], 0 offen offset:256")
    o(f"""
s_cmp_lg_u32 s{sRND}, 0
s_cbranch_scc1 K2_noq
v_and_b32 v{TMP}, 15, v1
v_xor_b32 v{TMP+1}, v{TMP}, v3
v_lshlrev_b32 v{TMP+1}, 4, v{TMP+1}
v_lshl_add_u32 v{TMP+1}, v{TMP}, 9, v{TMP+1}
v_add_u32 v{TMP+1}, {L_XS}, v{TMP+1}
s_waitcnt vmcnt({2*R})
""")
    stamp(o, 3)
    if STAMP: o("s_waitcnt lgkmcnt(0)")
    gemm_phase(o, TMP+1, True, W, QACC, QXF)
    o(f"""
s_mov_b32 s{sSC}, {NEGL2E:#x}
s_mov_b32 s{sSC+1}, {NEGL2E:#x}
s_movk_i32 s{sT0}, {RS}
v_mul_u32_u24 v{TMP}, s{sT0}, v{TMP}
v_lshl_add_u32 v{TMP}, v3, 4, v{TMP}
s_lshl_b32 s{sT0}, s{sWAVE}, 6
v_add_u32 v{TMP}, s{sT0}, v{TMP}
s_nop 1
""")
    for rt in range(3):
        for h in range(2):
            a = QACC + 4*rt + 2*h
            o(f"v_pk_mul_f32 {vr(a,2)}, {vr(a,2)}, s[{sSC}:{sSC+1}]")
        o(f"ds_write_b128 v{TMP}, {vr(QACC+4*rt,4)} offset:{L_QS + rt*16*RS}")
    o(f"""
s_waitcnt lgkmcnt(0)
s_barrier
K2_noq:
""")
    stamp(o, 4)
    o(f"""
s_mov_b32 s{sHV}, 0
s_cmp_ge_u32 s{sP}, s{sP1}
s_cbranch_scc1 K2_loopdone
s_mov_b32 s{sNEND}, 0
s_call_b64 s[{sRET}:{sRET+1}], K2_reinit
v_cmp_eq_u32 s[{sM}:{sM+1}], s{sP}, v{VEND}
v_mov_b32 v{VNH}, v{VN}
s_cmp_eq_u32 s{sP}, 0
s_cselect_b32 s{sT0}, 1, 0
s_nop 1
s_cmp_lg_u64 s[{sM}:{sM+1}], 0
s_cselect_b32 s{sT0}, 1, s{sT0}
s_xor_b32 s{sHEAD}, s{sT0}, 1
s_mov_b32 s{sHV}, s{sHEAD}
s_waitcnt vmcnt({2*(R-1)}) lgkmcnt(0)
v_mfma_f32_16x16x32_bf16 {vr(T0,4)}, {vr(A0,4)}, {vr(RING,4)}, {vr(Q,4)}
s_cmp_eq_u32 s{sHEAD}, 0
s_cbranch_scc1 K2_nohd
v_mov_b64 {vr(AC,2)}, 0
v_mov_b64 {vr(AC+2,2)}, 0
K2_nohd:
s_nop 3
K2_top:
""")
    for k in range(R):
        B = RING + 4*k
        B1 = RING + 4*((k+1) % R)
        ex, pk = valu_block(TT[k & 1])
        o(f"""
s_waitcnt vmcnt({2*(R-2)}) lgkmcnt(0)
v_add_u32 v{AD}, v{IX}, v{LO}
v_mfma_f32_16x16x32_bf16 {vr(TT[(k+1)&1],4)}, {vr(AA[(k+1)&1],4)}, {vr(B1,4)}, {vr(Q,4)}
{ex}
buffer_load_dword v{B}, v{AD}, s[36:39], 0 offen
buffer_load_dword v{B+1}, v{AD}, s[36:39], 0 offen offset:256
ds_read_b32 v{IX}, v{VI} offset:{4*(k+R+1)}
ds_read2_b32 {vr(AA[k&1]+2,2)}, v{VE} offset0:{4*(k+2)} offset1:{4*(k+2)+2}
{pk}
s_sub_u32 s{sREM}, s{sREM}, 1
s_cbranch_scc1 K2_call{k}
K2_next{k}:
""")
    o(f"""
v_add_u32 v{VI}, {4*R}, v{VI}
v_add_u32 v{VE}, {16*R}, v{VE}
s_branch K2_top
""")
    for k in range(R):
        B1 = RING + 4*((k+1) % R)
        o(f"""
K2_call{k}:
s_call_b64 s[{sRET}:{sRET+1}], K2_flush
s_cbranch_scc0 K2_special
s_waitcnt lgkmcnt(0)
v_mfma_f32_16x16x32_bf16 {vr(TT[(k+1)&1],4)}, {vr(AA[(k+1)&1],4)}, {vr(B1,4)}, {vr(Q,4)}
s_nop 3
s_branch K2_next{k}
""")
    CK = TMP + 1
    o(f"""
K2_flush:
v_rcp_f32 v{E}, v{D}
v_rcp_f32 v{E+1}, v{D+1}
v_rcp_f32 v{E+2}, v{D+2}
v_rcp_f32 v{E+3}, v{D+3}
s_mov_b32 s{sP}, s{sSEGE}
s_cbranch_vccnz K2_nochk
v_pk_fma_f32 {vr(CK,2)}, {vr(NN,2)}, 0, {vr(D,2)}
v_pk_fma_f32 {vr(CK+2,2)}, {vr(NN+2,2)}, 0, {vr(D+2,2)}
v_pk_add_f32 {vr(CK,2)}, {vr(CK,2)}, {vr(CK+2,2)}
v_add_f32 v{CK}, v{CK}, v{CK+1}
v_cmp_nle_f32 s[{sM}:{sM+1}], v{CK}, s{sBND}
s_nop 3
s_cmp_eq_u64 s[{sM}:{sM+1}], 0
s_cbranch_scc1 K2_nochk
s_mov_b32 s{sP}, s{sSEGS}
s_setpc_b64 s[{sRET}:{sRET+1}]
K2_nochk:
v_pk_fma_f32 {vr(AC,2)}, {vr(NN,2)}, {vr(E,2)}, {vr(AC,2)}
v_pk_fma_f32 {vr(AC+2,2)}, {vr(NN+2,2)}, {vr(E+2,2)}, {vr(AC+2,2)}
s_cmp_lg_u32 s{sHEAD}, 0
s_cbranch_scc1 K2_tohead
ds_write2st64_b64 v{VN}, {vr(AC,2)}, {vr(AC+2,2)} offset0:{AG0} offset1:{AG1}
K2_wrote:
s_cmp_lg_u32 s{sW1}, 0
{"s_branch" if "now1" in OPT else "s_cbranch_scc1"} K2_havew
s_mov_b32 s{sW1}, 1
""")
    wloads(o, 1, W)
    o(f"""
K2_havew:
s_cmp_lg_u32 s{sP}, s{sP1}
s_cbranch_scc1 K2_reinit
s_setpc_b64 s[{sRET}:{sRET+1}]
K2_tohead:
v_mov_b64 {vr(HD,2)}, {vr(AC,2)}
v_mov_b64 {vr(HD+2,2)}, {vr(AC+2,2)}
s_branch K2_wrote
K2_reinit:
v_mov_b64 {vr(NN,2)}, 0
v_mov_b64 {vr(NN+2,2)}, 0
v_mov_b64 {vr(D,2)}, s[{sONE}:{sONE+1}]
v_mov_b64 {vr(D+2,2)}, s[{sONE}:{sONE+1}]
s_cmp_lt_u32 s{sP}, s{sNEND}
s_cbranch_scc1 K2_samenode
v_cmp_ge_u32 s[{sM}:{sM+1}], s{sP}, v{VEND}
s_mov_b32 s{sHEAD}, 0
s_nop 2
s_bcnt1_i32_b64 s{sT0}, s[{sM}:{sM+1}]
s_mul_i32 s{sT1}, s{sT0}, {RS}
v_readlane_b32 s{sNEND}, v{VEND}, s{sT0}
v_add_u32 v{VN}, s{sT1}, v{VC}
ds_read2st64_b64 {vr(Q,4)}, v{VN} offset0:0 offset1:1
ds_read2st64_b64 {vr(AC,4)}, v{VN} offset0:{AG0} offset1:{AG1}
s_nop 0
K2_samenode:
s_mov_b32 s{sSEGS}, s{sP}
s_add_u32 s{sSEGE}, s{sP}, s{sK}
s_min_u32 s{sSEGE}, s{sSEGE}, s{sNEND}
s_min_u32 s{sSEGE}, s{sSEGE}, s{sP1}
s_sub_u32 s{sREM}, s{sSEGE}, s{sP}
s_sub_u32 s{sREM}, s{sREM}, 1
s_cmp_eq_u32 s{sP}, s{sP}
s_setpc_b64 s[{sRET}:{sRET+1}]
K2_special:
s_cmp_eq_u32 s{sP}, s{sP1}
s_cbranch_scc1 K2_loopdone
s_mov_b64 vcc, -1
s_mov_b32 s{sK}, 1
s_waitcnt vmcnt(0) lgkmcnt(0)
s_call_b64 s[{sRET}:{sRET+1}], K2_reinit
K2_slow:
s_lshl_b32 s{sT0}, s{sP}, 2
s_add_u32 s{sT0}, s{sT0}, s{sOFF}
v_mov_b32 v{VI}, s{sT0}
s_lshl_b32 s{sT0}, s{sP}, 4
v_add_u32 v{VE}, s{sT0}, v{VEL}
ds_read_b32 v{IX}, v{VI}
ds_read2_b32 {vr(A0+2,2)}, v{VE} offset0:0 offset1:2
s_waitcnt lgkmcnt(0)
v_add_u32 v{AD}, v{IX}, v{LO}
buffer_load_dword v{RING}, v{AD}, s[36:39], 0 offen
buffer_load_dword v{RING+1}, v{AD}, s[36:39], 0 offen offset:256
s_waitcnt vmcnt(0)
v_mfma_f32_16x16x32_bf16 {vr(T0,4)}, {vr(A0,4)}, {vr(RING,4)}, {vr(Q,4)}
s_nop 7
v_min_f32 v{T0}, 0x42fc0000, v{T0}
v_min_f32 v{T0+1}, 0x42fc0000, v{T0+1}
v_min_f32 v{T0+2}, 0x42fc0000, v{T0+2}
v_min_f32 v{T0+3}, 0x42fc0000, v{T0+3}
{valu_block(T0)[0]}
{valu_block(T0)[1]}
s_call_b64 s[{sRET}:{sRET+1}], K2_flush
s_cbranch_scc1 K2_slow
K2_loopdone:
""")
    stamp(o, 5)
    o(f"""
s_cmp_lg_u32 s{sW1}, 0
s_cbranch_scc1 K2_ld2
s_mov_b32 s{sW1}, 1
""")
    wloads(o, 1, W)
    o(f"""
K2_ld2:
s_cmp_lg_u32 s{sRND}, 0
s_cbranch_scc1 K2_rn0
s_mov_b32 s{sRND}, 1
v_cmp_ne_u32 s[{sOM}:{sOM+1}], 0, v{VOVF}
s_mov_b32 s{sOB}, 0
s_nop 2
K2_rn0:
s_waitcnt vmcnt(0)
s_cmp_lg_u64 s[{sOM}:{sOM+1}], 0
s_cbranch_scc1 K2_nopre
""")
    wloads(o, 2, W2R)
    o(f"""
v_and_b32 v{TMP}, 15, v1
v_xor_b32 v{TMP+1}, v{TMP}, v3
v_lshlrev_b32 v{TMP+1}, 4, v{TMP+1}
v_lshl_add_u32 v{TMP+1}, v{TMP}, 9, v{TMP+1}
v_add_u32 v{TMP+2}, {L_XS}, v{TMP+1}
""")
    gemm_phase(o, TMP+2, True, W, FACC, FXF)
    o(f"""
K2_nopre:
s_waitcnt lgkmcnt(0)
s_barrier
s_mov_b32 s{sT2}, 0
K2_hf:
s_cmp_eq_u32 s{sHV}, 0
s_cbranch_scc1 K2_hf2
s_cmp_eq_u32 s{sMULTI}, 0
s_cbranch_scc1 K2_hf1
s_cmp_lg_u32 s{sT2}, s{sWAVE}
s_cbranch_scc1 K2_hf2
K2_hf1:
ds_read2st64_b64 {vr(AC,4)}, v{VNH} offset0:{AG0} offset1:{AG1}
s_waitcnt lgkmcnt(0)
v_pk_add_f32 {vr(AC,2)}, {vr(AC,2)}, {vr(HD,2)}
v_pk_add_f32 {vr(AC+2,2)}, {vr(AC+2,2)}, {vr(HD+2,2)}
ds_write2st64_b64 v{VNH}, {vr(AC,2)}, {vr(AC+2,2)} offset0:{AG0} offset1:{AG1}
s_waitcnt lgkmcnt(0)
K2_hf2:
s_barrier
s_add_u32 s{sT2}, s{sT2}, 1
s_cmp_eq_u32 s{sMULTI}, 0
s_cbranch_scc1 K2_rn
s_cmp_lt_u32 s{sT2}, 16
s_cbranch_scc1 K2_hf
K2_rn:
s_cmp_eq_u64 s[{sOM}:{sOM+1}], 0
s_cbranch_scc1 K2_epi
s_ff1_i32_b64 s{sT0}, s[{sOM}:{sOM+1}]
s_mul_i32 s{sT1}, s{sT0}, {CHUNK*8}
v_readlane_b32 s{sOC}, v{VOVF}, s{sT0}
s_lshl_b32 s{sT2}, s{sOB}, 3
s_add_u32 s{sT1}, s{sT1}, s{sT2}
s_add_u32 s{sT1}, s{sT1}, {WS_OVF}
buffer_load_dwordx4 {vr(REC,4)}, v2, s[32:35], s{sT1} offen
v_lshlrev_b32 v{TMP}, 1, v0
v_add_u32 v{TMP}, s{sOB}, v{TMP}
v_add_u32 v{TMP+1}, 1, v{TMP}
v_cmp_gt_u32 s[{sV0}:{sV0+1}], s{sOC}, v{TMP}
v_cmp_gt_u32 s[{sV1}:{sV1+1}], s{sOC}, v{TMP+1}
s_add_u32 s{sOB}, s{sOB}, 2048
s_cmp_lt_u32 s{sOB}, s{sOC}
s_cbranch_scc1 K2_rn2
s_bitset0_b64 s[{sOM}:{sOM+1}], s{sT0}
s_mov_b32 s{sOB}, 0
K2_rn2:
s_waitcnt vmcnt(0)
v_lshrrev_b32 v{TMP}, 16, v{REC+1}
v_lshrrev_b32 v{TMP+1}, 16, v{REC+3}
v_cmp_eq_u32 s[{sM}:{sM+1}], s2, v{TMP}
s_nop 3
s_and_b64 s[{sV0}:{sV0+1}], s[{sV0}:{sV0+1}], s[{sM}:{sM+1}]
v_cmp_eq_u32 s[{sM}:{sM+1}], s2, v{TMP+1}
s_nop 3
s_and_b64 s[{sV1}:{sV1+1}], s[{sV1}:{sV1+1}], s[{sM}:{sM+1}]
s_branch K2_round
K2_epi:
s_mov_b32 s{sSC}, {NEGLN2:#x}
s_mov_b32 s{sSC+1}, {NEGLN2:#x}
s_movk_i32 s{sT0}, {RS}
v_lshrrev_b32 v{TMP+3}, 5, v0
v_and_b32 v{TMP+4}, 31, v0
v_mul_u32_u24 v{TMP+2}, s{sT0}, v{TMP+3}
v_lshl_add_u32 v{TMP+2}, v{TMP+4}, 5, v{TMP+2}
v_add_u32 v{TMP+2}, {L_AGG}, v{TMP+2}
v_and_b32 v{TMP+3}, 15, v{TMP+3}
v_lshlrev_b32 v{TMP+3}, 4, v{TMP+3}
v_xor_b32 v{TMP+3}, v{TMP+3}, v2
""")
    C0 = 48
    def conv(off_in, off_out):
        o(f"ds_read_b128 {vr(C0,4)}, v{TMP+2} offset:{off_in}")
        o(f"ds_read_b128 {vr(C0+4,4)}, v{TMP+2} offset:{off_in+16}")
        o("s_waitcnt lgkmcnt(0)")
        for h in range(4):
            o(f"v_pk_mul_f32 {vr(C0+2*h,2)}, {vr(C0+2*h,2)}, s[{sSC}:{sSC+1}]")
        for h in range(4):
            o(f"v_cvt_pk_bf16_f32 v{C0+8+h}, v{C0+2*h}, v{C0+2*h+1}")
        o(f"ds_write_b128 v{TMP+3}, {vr(C0+8,4)} offset:{L_QS+off_out}")
    conv(0, 0)
    o(f"s_cmp_ge_u32 s{sWAVE}, 4\ns_cbranch_scc1 K2_cv2")
    conv(32 * RS, 16384)
    o("K2_cv2:\ns_waitcnt lgkmcnt(0)\ns_barrier\ns_waitcnt vmcnt(0)")
    stamp(o, 6)
    if STAMP: o("s_waitcnt lgkmcnt(0)")
    gemm_phase(o, TMP+1, False, W2R, FACC, FXF)
    o(f"""
s_mov_b32 s{sSC}, {NEGL2E:#x}
s_mov_b32 s{sSC+1}, {NEGL2E:#x}
v_add_u32 v{TMP+2}, s{sN0}, v{TMP}
v_lshlrev_b32 v{TMP+2}, 9, v{TMP+2}
v_lshl_add_u32 v{TMP+2}, v3, 3, v{TMP+2}
s_lshl_b32 s{sT0}, s{sWAVE}, 5
s_add_u32 s{sT1}, s{sT0}, 8192
s_add_u32 s{sT2}, s{sT0}, 16384
s_sub_u32 s{sCNT}, s{sCNT}, 32
""")
    T = T0
    for rt in range(3):
        a = FACC + 4*rt
        o(f"""
v_pk_mul_f32 {vr(T,2)}, {vr(a,2)}, s[{sSC}:{sSC+1}]
v_pk_mul_f32 {vr(T+2,2)}, {vr(a+2,2)}, s[{sSC}:{sSC+1}]
v_exp_f32 v{T}, v{T}
v_exp_f32 v{T+1}, v{T+1}
v_exp_f32 v{T+2}, v{T+2}
v_exp_f32 v{T+3}, v{T+3}
v_pk_add_f32 {vr(T,2)}, {vr(T,2)}, s[{sONE}:{sONE+1}]
v_pk_add_f32 {vr(T+2,2)}, {vr(T+2,2)}, s[{sONE}:{sONE+1}]
v_rcp_f32 v{T}, v{T}
v_rcp_f32 v{T+1}, v{T+1}
v_rcp_f32 v{T+2}, v{T+2}
v_rcp_f32 v{T+3}, v{T+3}
v_pk_mul_f32 {vr(a,2)}, {vr(a,2)}, {vr(T,2)}
v_pk_mul_f32 {vr(a+2,2)}, {vr(a+2,2)}, {vr(T+2,2)}
v_cvt_pk_bf16_f32 v{a}, v{a}, v{a+1}
v_cvt_pk_bf16_f32 v{a+1}, v{a+2}, v{a+3}
""")
        if rt == 2:
            o(f"v_cmp_gt_u32 vcc, s{sCNT}, v{TMP}\ns_and_saveexec_b64 s[{sM}:{sM+1}], vcc")
        o(f"buffer_store_dwordx2 {vr(a,2)}, v{TMP+2}, s[40:43], s{[sT0,sT1,sT2][rt]} offen")
    if STAMP: o("s_waitcnt vmcnt(0)")
    stamp_out(o, 1, sWAVE)
    o("K2_end:\ns_endpgm")

def desc(name, vgpr, sgpr):
    return f""".p2align 6
.amdhsa_kernel {name}
  .amdhsa_next_free_vgpr {vgpr}
  .amdhsa_next_free_sgpr {sgpr}
  .amdhsa_accum_offset {(vgpr+3)//4*4}
  .amdhsa_group_segment_fixed_size 0
  .amdhsa_kernarg_size 72
  .amdhsa_user_sgpr_count 2
  .amdhsa_user_sgpr_kernarg_segment_ptr 1
  .amdhsa_system_sgpr_workgroup_id_x 1
.end_amdhsa_kernel
"""

def main(path):
    o = Asm()
    gen_k1(o)
    gen_k2(o)
    hdr = f"""; MPNN edge-MLP + segment sum + node update, two launches.
; @launch kernel=k1_kernel grid=({K1_GRID},1,1) block=(320,1,1) lds={K1_LDS}
; @launch kernel=k2_kernel grid=(256,1,1) block=(1024,1,1) lds={L_END}
.amdgcn_target "amdgcn-amd-amdhsa--gfx950"
.text
"""
    s = hdr + o.text() + '.section .rodata,"a"\n' + desc("k1_kernel", 104, 96) + desc("k2_kernel", K2_VGPR, 96)
    open(path, "w").write(s)

if __name__ == "__main__":
    if "--stamp" in sys.argv:
        sys.argv.remove("--stamp")
        STAMP = True
    for a in list(sys.argv):
        if a.startswith("--opt="):
            sys.argv.remove(a)
            OPT |= set(a[6:].split(","))
    main(sys.argv[1] if len(sys.argv) > 1 else "gather_scatter__mpnn_edge_mlp__graph.s")
```

```python
import sys

N = 10000
WS_WPACK = 0x500000
WS_OVFC = 0x560000
WS_OVF = 0x570000
WS_FLAG = 0x6E0000
WS_CELL = 0x700000
WS_END = 0xB00000
WS_STAMP = 0xC00000
CHUNK = 2500
CAP = 28
NEGL2E = 0xBFB8AA3B
NEGLN2 = 0xBF317218
KNAME = "gather_scatter__mpnn_edge_mlp__graph_kernel"
STAMP = False
STEP_POLL = 17
STEPS = ["s-1", "pst", "drain", "cell"]
OPT = set()

class Asm:
    def __init__(self):
        self.l = []
    def __call__(self, s):
        for line in s.strip("\n").split("\n"):
            line = line.strip()
            if line:
                self.l.append(line if line.endswith(":") else "    " + line)
    def text(self):
        l = self.l
        def sub(a_lab, b_lab, pref):
            a = l.index(a_lab); b = l.index(b_lab)
            return l[:a] + [("    s_nop 0" if any(x.strip().startswith(p) for p in pref) else x) for x in l[a:b]] + l[b:]
        if "noloop_ld" in OPT: l = sub("L_top:", "L_call0:", ["buffer_load"])
        return "\n".join(l) + "\n"

def vr(a, n):
    return f"v[{a}:{a+n-1}]" if n > 1 else f"v{a}"

def srd(o, d, lo, hi, size):
    o(f"s_mov_b32 s{d}, s{lo}\ns_mov_b32 s{d+1}, s{hi}\ns_mov_b32 s{d+2}, {size}\ns_mov_b32 s{d+3}, 0x20000")

def stamp(o, i):
    if STAMP:
        o(f"s_memrealtime s[{80+2*i}:{81+2*i}]\ns_waitcnt lgkmcnt(0)")

R = 6
PAD = R + 2
KMAX = 24
RS = 1040
L_QS = 0
L_AGB = (48 * RS + 511) // 512 * 512
L_HB = L_AGB + 48 * 512
L_IDX = L_HB + 16 * 1024
L_ET = L_IDX + 2064 * 4
L_CNT = (L_ET + 2052 * 16 + 255) // 256 * 256
L_HF = L_CNT + 256
L_XS = (L_HF + 256 + 511) // 512 * 512
L_END = L_XS + 48 * 512
L_IMG = 65536
L_BCNT = 131072
PSTR = 528
L_PST = 32768
assert L_BCNT + 1100 <= L_CNT and L_END <= 163840
RING = 4
A0, A1, Q, T0, T1, E, NN, D, AC, UA = 28, 32, 36, 40, 44, 48, 52, 56, 60, 64
VOVF, VB, IX, AD, LO, VI, VE, VN, VC, VEND, VEL = 76, 78, 79, 80, 81, 82, 83, 84, 85, 86, 126
TMP = 87
W = 94
NV = 127
QA, VXA, VWA, VWS, VTG, ZR = 48, AD, 18, 17, 19, 20
XFB, WFB = [W, W + 16], [W + 12, W + 28]
W3, TG0 = 62, 60
TAG = 92
sWAVE, sN0, sCNT, sHEAD, sIT, sW1, sCH = 3, 4, 5, 6, 7, 26, 27
sP, sP1, sREM, sSEGE, sSEGS, sNEND, sK, sTOT, sRND, sOB, sOC, sOFF = range(48, 60)
sV0, sV1, sOM, sRET, sSO, sM, sONE, sSC = 60, 62, 64, 66, 68, 70, 72, 74
sM0 = 69
sT0, sT1, sT2, sBND = 76, 77, 78, 79
sLN2 = 44
REC, RK0, RK1 = 40, 44, 45
CK = TMP + 1

def valu_block(T):
    ex = "\n".join(f"v_exp_f32 v{E+i}, v{T+i}" for i in range(4))
    pk = f"""
v_pk_fma_f32 {vr(NN,2)}, {vr(NN,2)}, {vr(E,2)}, {vr(NN,2)}
v_pk_fma_f32 {vr(NN+2,2)}, {vr(NN+2,2)}, {vr(E+2,2)}, {vr(NN+2,2)}
v_pk_fma_f32 {vr(NN,2)}, {vr(T,2)}, {vr(D,2)}, {vr(NN,2)}
v_pk_fma_f32 {vr(NN+2,2)}, {vr(T+2,2)}, {vr(D+2,2)}, {vr(NN+2,2)}
v_pk_fma_f32 {vr(D,2)}, {vr(D,2)}, {vr(E,2)}, {vr(D,2)}
v_pk_fma_f32 {vr(D+2,2)}, {vr(D+2,2)}, {vr(E+2,2)}, {vr(D+2,2)}
"""
    return ex, pk

def poll(o, tag, soff, count):
    o(f"""
v_lshlrev_b32 v{TMP}, 7, v1
s_mov_b32 s{sT1}, 0
s_mov_b64 exec, {"-1" if count == 64 else hex((1 << count) - 1)}
F_pl{tag}:
buffer_load_dwordx2 {vr(TMP+1,2)}, v{TMP}, s[32:35], {soff} offen sc1
s_add_u32 s{sT1}, s{sT1}, 1
s_waitcnt vmcnt(0)
v_cmpx_ne_u64 vcc, s[100:101], {vr(TMP+1,2)}
s_nop 4
s_cbranch_execz F_pd{tag}
s_sleep 2
s_cmp_lt_u32 s{sT1}, 0x40000
s_cbranch_scc1 F_pl{tag}
F_pd{tag}:
s_mov_b64 exec, -1
""")

def get_tag(o, tag):
    o(f"""
s_mov_b32 s{sT1}, 0
F_tg{tag}:
v_readfirstlane_b32 s100, v{TAG}
v_readfirstlane_b32 s101, v{TAG+1}
s_add_u32 s{sT1}, s{sT1}, 1
s_cmp_ge_u32 s{sT1}, 0x40000
s_cbranch_scc1 F_th{tag}
s_cmp_lg_u32 s100, 0
s_cbranch_scc1 F_th{tag}
buffer_load_dwordx2 {vr(TAG,2)}, v{VTG}, s[96:99], 0 offen sc1
s_waitcnt vmcnt(0)
s_branch F_tg{tag}
F_th{tag}:
""")

def put_flag(o, soff):
    o(f"""
v_mov_b32 v{TMP+1}, s100
v_mov_b32 v{TMP+2}, s101
s_mov_b64 exec, 1
buffer_store_dwordx2 {vr(TMP+1,2)}, v{VTG}, s[32:35], {soff} offen sc1
s_mov_b64 exec, -1
""")

def sort_rank(o):
    o(f"""
s_mov_b32 s{sT0}, {L_CNT}
v_mov_b32 v{TMP+4}, 0xfc
v_mov_b32 v{TMP+3}, 1
v_and_or_b32 v{TMP}, v{REC}, v{TMP+4}, s{sT0}
v_and_or_b32 v{TMP+1}, v{REC+2}, v{TMP+4}, s{sT0}
s_mov_b64 exec, s[{sV0}:{sV0+1}]
ds_add_rtn_u32 v{RK0}, v{TMP}, v{TMP+3}
s_mov_b64 exec, s[{sV1}:{sV1+1}]
ds_add_rtn_u32 v{RK1}, v{TMP+1}, v{TMP+3}
s_mov_b64 exec, -1
v_add_u32 v{TMP+4}, s{sT0}, v{LO}
""")

def sort_scatter(o):
    o(f"""
ds_read_b32 v{TMP+2}, v{TMP+4}
v_and_b32 v{REC}, 0xfffffe00, v{REC}
v_and_b32 v{REC+2}, 0xfffffe00, v{REC+2}
s_mov_b32 s{sT0}, {L_IDX}
s_mov_b32 s{sT1}, {L_ET}
s_waitcnt lgkmcnt(0)
v_add_u32_dpp v{VEND}, v{TMP+2}, v{TMP+2} row_shr:1 row_mask:0xf bank_mask:0xf bound_ctrl:0
s_nop 1
v_add_u32_dpp v{VEND}, v{VEND}, v{VEND} row_shr:2 row_mask:0xf bank_mask:0xf bound_ctrl:0
s_nop 1
v_add_u32_dpp v{VEND}, v{VEND}, v{VEND} row_shr:4 row_mask:0xf bank_mask:0xf bound_ctrl:0
s_nop 1
v_add_u32_dpp v{VEND}, v{VEND}, v{VEND} row_shr:8 row_mask:0xf bank_mask:0xf bound_ctrl:0
s_nop 1
v_add_u32_dpp v{VEND}, v{VEND}, v{VEND} row_bcast:15 row_mask:0xa bank_mask:0xf
s_nop 1
v_add_u32_dpp v{VEND}, v{VEND}, v{VEND} row_bcast:31 row_mask:0xc bank_mask:0xf
v_sub_u32 v{TMP+3}, v{VEND}, v{TMP+2}
v_readlane_b32 s{sTOT}, v{VEND}, 63
ds_bpermute_b32 v{TMP}, v{TMP}, v{TMP+3}
ds_bpermute_b32 v{TMP+1}, v{TMP+1}, v{TMP+3}
s_nop 1
s_add_u32 s{sCH}, s{sTOT}, 15
s_lshr_b32 s{sCH}, s{sCH}, 4
s_mul_i32 s{sP}, s{sCH}, s{sWAVE}
s_add_u32 s{sP1}, s{sP}, s{sCH}
s_min_u32 s{sP}, s{sP}, s{sTOT}
s_min_u32 s{sP1}, s{sP1}, s{sTOT}
s_waitcnt lgkmcnt(0)
v_add_u32 v{TMP}, v{TMP}, v{RK0}
v_add_u32 v{TMP+1}, v{TMP+1}, v{RK1}
v_lshl_add_u32 v{TMP+2}, v{TMP}, 2, s{sT0}
v_lshl_add_u32 v{TMP+3}, v{TMP+1}, 2, s{sT0}
v_lshl_add_u32 v{TMP}, v{TMP}, 4, s{sT1}
v_lshl_add_u32 v{TMP+1}, v{TMP+1}, 4, s{sT1}
s_mov_b64 exec, s[{sV0}:{sV0+1}]
ds_write_b32 v{TMP+2}, v{REC}
ds_write_b16 v{TMP}, v{REC+1} offset:8
ds_write_b16 v{TMP}, v{REC+1} offset:14
s_mov_b64 exec, s[{sV1}:{sV1+1}]
ds_write_b32 v{TMP+3}, v{REC+2}
ds_write_b16 v{TMP+1}, v{REC+3} offset:8
ds_write_b16 v{TMP+1}, v{REC+3} offset:14
s_mov_b64 exec, -1
""")

def zero_cnt(o):
    o(f"v_mov_b32 v{TMP}, 0\nds_write_b32 v{TMP+4}, v{TMP}")

def prime(o):
    PT = T0
    o(f"""
s_lshl_b32 s{sT0}, s{sP}, 2
s_add_u32 s{sT0}, s{sT0}, {L_IDX}
v_mov_b32 v{VI}, s{sT0}
s_lshl_b32 s{sT0}, s{sP}, 4
v_add_u32 v{VE}, s{sT0}, v{VEL}
""")
    for k in range(0, R, 2):
        o(f"ds_read2_b32 {vr(PT+k,2)}, v{VI} offset0:{k} offset1:{k+1}")
    o(f"""
ds_read_b32 v{IX}, v{VI} offset:{4*R}
ds_read2_b32 {vr(A0+2,2)}, v{VE} offset0:0 offset1:2
ds_read2_b32 {vr(A1+2,2)}, v{VE} offset0:4 offset1:6
s_waitcnt lgkmcnt(0)
""")
    for k in range(R):
        o(f"v_add_u32 v{PT+k}, v{PT+k}, v{LO}")
    for k in range(R):
        B = RING + 4*k
        o(f"buffer_load_dword v{B}, v{PT+k}, s[36:39], 0 offen sc1")
        o(f"buffer_load_dword v{B+1}, v{PT+k}, s[36:39], 0 offen offset:256 sc1")

def wloads(o, mat=2):
    o(f"""
s_lshl_b32 s{sT0}, s{sWAVE}, 13
s_add_u32 s{sT0}, s{sT0}, {WS_WPACK + mat*131072}
s_add_u32 s{sT1}, s{sT0}, 4096
v_lshlrev_b32 v{TMP+5}, 4, v1
""")
    for ks in range(8):
        o(f"buffer_load_dwordx4 {vr(W+4*ks,4)}, v{TMP+5}, s[32:35], s{sT0 if ks < 4 else sT1} offen offset:{(ks%4)*1024} {'' if 'wplain' in OPT else 'sc1'}")

DST, SRC, EA, OWN, RK, R0 = 28, 32, 36, 48, 52, 56
EW = [EA, 38, EA + 1, 39]
sBM = 58
def bin_rank(o):
    o(f"v_mov_b32 v{TMP+3}, 1\ns_mov_b64 exec, s[{sBM}:{sBM+1}]")
    for k in range(4):
        o(f"""
v_mul_u32_u24 v{OWN+k}, s56, v{DST+k}
v_lshrrev_b32 v{OWN+k}, 24, v{OWN+k}
v_lshl_add_u32 v{TMP+4}, v{OWN+k}, 2, s60
ds_add_rtn_u32 v{RK+k}, v{TMP+4}, v{TMP+3}
""")
    for k in range(4):
        o(f"""
v_mad_u32_u24 v{TMP+1}, v{OWN+k}, s57, 15
v_lshrrev_b32 v{TMP+1}, 4, v{TMP+1}
v_sub_u32 v{DST+k}, v{DST+k}, v{TMP+1}
v_lshl_add_u32 v{R0+k}, v{SRC+k}, 7, v{DST+k}
v_lshlrev_b32 v{R0+k}, 2, v{R0+k}
v_lshl_add_u32 v{DST+k}, v{OWN+k}, 8, s61
""")
    o(f"""
v_lshrrev_b32 v38, 16, v{EA}
v_lshrrev_b32 v39, 16, v{EA+1}
s_waitcnt lgkmcnt(0)
v_max3_u32 v{TMP}, v{RK}, v{RK+1}, v{RK+2}
v_max_u32 v{TMP}, v{TMP}, v{RK+3}
v_cmp_le_u32 vcc, {CAP}, v{TMP}
""")
    for k in range(4):
        o(f"""
v_mul_u32_u24 v{SRC+k}, 37, v{RK+k}
v_lshrrev_b32 v{SRC+k}, 8, v{SRC+k}
v_add_u32 v{SRC+k}, v{SRC+k}, v{RK+k}
v_lshl_add_u32 v{DST+k}, v{SRC+k}, 3, v{DST+k}
""")
    o("s_cbranch_vccnz F_ovf")
    for k in range(4):
        o(f"ds_write2_b32 v{DST+k}, v{R0+k}, v{EW[k]} offset0:2 offset1:3")
    o("F_ovfback:\ns_mov_b64 exec, -1")

def bin_overflow(o):
    o(f"F_ovf:\ns_mul_i32 s50, s2, {CHUNK*8}\ns_add_u32 s50, s50, {WS_OVF}\nv_mov_b32 v{TMP}, {L_BCNT+1024}")
    for k in range(4):
        o(f"""
v_cmp_gt_u32 vcc, {CAP}, v{RK+k}
s_and_saveexec_b64 s[62:63], vcc
ds_write2_b32 v{DST+k}, v{R0+k}, v{EW[k]} offset0:2 offset1:3
s_andn2_b64 exec, s[62:63], exec
s_cbranch_execz F_no{k}
ds_add_rtn_u32 v{TMP+4}, v{TMP}, v{TMP+3}
v_mov_b32 v{TMP+1}, v{R0+k}
v_and_b32 v{TMP+2}, 0xffff, v{EW[k]}
v_lshl_or_b32 v{TMP+2}, v{OWN+k}, 16, v{TMP+2}
s_waitcnt lgkmcnt(0)
v_lshlrev_b32 v{TMP+4}, 3, v{TMP+4}
buffer_store_dwordx2 {vr(TMP+1,2)}, v{TMP+4}, s[32:35], s50 offen sc1
s_waitcnt vmcnt(0)
F_no{k}:
s_mov_b64 exec, s[62:63]
""")
    o("s_branch F_ovfback")

def bin_copy(o):
    o(f"""
v_lshrrev_b32 v56, 3, v0
v_and_b32 v57, 7, v0
v_lshlrev_b32 v57, 4, v57
v_lshl_add_u32 v58, v56, 8, v57
v_lshl_add_u32 v59, v56, 14, v57
v_add_u32 v58, s61, v58
v_lshl_add_u32 v56, v56, 2, s60
ds_read_b32 v36, v56
ds_read_b32 v37, v56 offset:512
ds_read_b128 v[28:31], v58
ds_read_b128 v[32:35], v58 offset:32768
ds_read_b128 v[48:51], v58 offset:128
ds_read_b128 v[52:55], v58 offset:{32768+128}
v_mov_b32 v38, {L_BCNT+1024}
ds_read_b32 v38, v38
v_and_b32 v57, 48, v57
v_cmp_eq_u32 s[{sBM}:{sBM+1}], 0, v57
s_lshl_b32 s49, s2, 8
s_add_u32 s49, s49, {WS_CELL}
s_add_u32 s50, s49, {128*16384}
v_mov_b32 v57, 0x7ffff000
v_mov_b32 v39, s100
s_waitcnt lgkmcnt(5)
v_cmp_lt_u32 vcc, 14, v36
v_min_u32 v36, {CAP}, v36
v_cmp_lt_u32 s[62:63], 14, v37
v_min_u32 v37, {CAP}, v37
v_cndmask_b32 v56, v57, v59, vcc
v_cndmask_b32 v57, v57, v59, s[62:63]
""")
    for n, (reg, cnt, adr, so, off) in enumerate(((28, 36, 59, 49, 0), (32, 37, 59, 50, 0), (48, 36, 56, 49, 128), (52, 37, 57, 50, 128))):
        o(f"""
s_waitcnt lgkmcnt({4 - n})
v_cndmask_b32 v{reg}, v{reg}, v{cnt}, s[{sBM}:{sBM+1}]
v_cndmask_b32 v{reg+1}, v{reg+1}, v39, s[{sBM}:{sBM+1}]
buffer_store_dwordx4 {vr(reg,4)}, v{adr}, s[32:35], s{so} offen offset:{off} sc1
""")
    o(f"""
s_cmp_lg_u32 s{sWAVE}, 0
s_cbranch_scc1 F_bc1
s_lshl_b32 s50, s2, 3
s_add_u32 s50, s50, {WS_OVFC}
s_mov_b64 exec, 1
s_waitcnt lgkmcnt(0)
buffer_store_dwordx2 v[38:39], v{VTG}, s[32:35], s50 offen sc1
s_mov_b64 exec, -1
F_bc1:
""")

def gen(o):
    XNT = "" if "nont" in OPT else "nt"
    AA = [A0, A1]
    TT = [T0, T1]
    o(f"""
.globl {KNAME}
.p2align 8
.type {KNAME},@function
{KNAME}:
s_cmp_ge_u32 s2, 256
s_cbranch_scc1 L_end
s_load_dwordx2 s[28:29], s[0:1], 0
s_load_dwordx2 s[44:45], s[0:1], 32
s_load_dwordx2 s[36:37], s[0:1], 24
s_load_dwordx2 s[12:13], s[0:1], 16
s_load_dwordx2 s[52:53], s[0:1], 8
s_load_dwordx2 s[40:41], s[0:1], 40
s_load_dwordx2 s[32:33], s[0:1], 64
s_load_dwordx2 s[96:97], s[0:1], 56
s_load_dwordx2 s[20:21], s[0:1], 48
s_memrealtime s[100:101]
""")
    if STAMP: o("s_memrealtime s[80:81]")
    o(f"""
v_lshrrev_b32 v2, 6, v0
v_and_b32 v1, 63, v0
s_mul_i32 s{sN0}, s2, 625
v_readfirstlane_b32 s{sWAVE}, v2
v_lshrrev_b32 v4, 5, v1
v_and_b32 v6, 31, v1
s_add_u32 s{sCNT}, s{sN0}, 640
s_add_u32 s{sN0}, s{sN0}, 15
s_lshr_b32 s{sN0}, s{sN0}, 4
s_lshl_b32 s50, s{sWAVE}, 1
v_add_u32 v5, s50, v4
v_lshlrev_b32 v2, 4, v0
v_and_b32 v7, 15, v5
v_xor_b32 v7, v7, v6
v_lshlrev_b32 v7, 4, v7
v_lshl_add_u32 v7, v4, 9, v7
s_mov_b32 s30, {N*512}
s_mov_b32 s31, 0x20000
s_mov_b32 s46, {513*512}
s_mov_b32 s47, 0x20000
s_mov_b32 s42, {512*512}
s_mov_b32 s43, 0x20000
s_lshl_b32 s{sSO}, s{sWAVE}, 10
s_lshl_b32 s51, s{sN0}, 9
s_add_u32 s51, s51, s{sSO}
v_and_b32 v{TMP}, 3, v5
v_bfe_u32 v{TMP+1}, v5, 3, 1
v_lshl_or_b32 v{TMP}, v{TMP+1}, 2, v{TMP}
v_lshlrev_b32 v{TMP}, 1, v{TMP}
v_xor_b32 v{TMP}, v{TMP}, v6
v_lshlrev_b32 v{TMP}, 4, v{TMP}
v_lshl_add_u32 v{VWS}, v4, 9, v{TMP}
v_lshlrev_b32 v{LO}, 2, v1
s_sub_u32 s48, s2, 64
s_waitcnt lgkmcnt(0)
s_cmp_ge_u32 s48, 24
s_cbranch_scc1 F_npd
s_cmp_ge_u32 s48, 8
s_cselect_b32 s36, s40, s44
s_cselect_b32 s37, s41, s45
s_mov_b32 s38, {512*512}
s_mov_b32 s39, 0x20000
s_lshl_b32 s49, s48, 14
s_add_u32 s49, s49, 131072
s_and_b32 s49, s49, {512*512 - 1}
s_add_u32 m0, s{sSO}, {L_IMG}
s_add_u32 s49, s49, s{sSO}
buffer_load_dwordx4 v{VWS}, s[36:39], s49 offen lds
s_barrier
F_npd:
s_add_u32 m0, s{sSO}, {L_XS}
s_cmp_ge_u32 s{sWAVE}, 4
buffer_load_dwordx4 v7, s[28:31], s51 offen {XNT} lds
s_cbranch_scc1 F_nox2
s_add_u32 m0, s{sSO}, {L_XS + 16384}
s_add_u32 s50, s51, 16384
buffer_load_dwordx4 v7, s[28:31], s50 offen {XNT} lds
F_nox2:
s_cmp_lg_u32 s{sWAVE}, 15
s_cbranch_scc1 F_ntc
s_lshr_b32 s49, s2, 3
s_lshl_b32 s49, s49, 12
v_lshlrev_b32 v5, 6, v1
buffer_load_dword v{TMP}, v5, s[44:47], s49 offen
F_ntc:
""")
    ops = []
    def vm(target):
        return len(ops) - 1 - max(i for i, x in enumerate(ops) if x == target)
    def dma(s):
        o(f"""
s_add_u32 m0, s{sSO}, {(s & 3) * 16384}
s_add_u32 s{sM0}, s{sSO}, {s * 16384}
buffer_load_dwordx4 v{VWS}, s[44:47], s{sM0} offen lds
""")
        ops.append(("d", s))
    for s in range(4):
        dma(s)
        if s < 2 and "nokmaj" not in OPT:
            o("s_barrier")
    o(f"""
s_mov_b32 s50, {512*512}
buffer_load_dword v{W3}, v{LO}, s[44:47], s50 offen
buffer_load_dword v{W3+1}, v{LO}, s[44:47], s50 offen offset:256
s_cmp_ge_u32 s2, 64
s_cbranch_scc1 F_nobl
s_mov_b32 s38, 640000
s_mov_b32 s39, 0x20000
s_mov_b32 s14, 640000
s_mov_b32 s15, 0x20000
s_mov_b32 s54, 320000
s_mov_b32 s55, 0x20000
s_mul_i32 s49, s2, 10000
s_mul_i32 s50, s2, 5000
v_lshlrev_b32 v5, 3, v0
buffer_load_dwordx4 {vr(DST,4)}, v2, s[36:39], s49 offen {XNT}
buffer_load_dwordx4 {vr(SRC,4)}, v2, s[12:15], s49 offen {XNT}
buffer_load_dwordx2 {vr(EA,2)}, v5, s[52:55], s50 offen {XNT}
v_lshlrev_b32 v6, 2, v0
v_add_u32 v6, {L_BCNT}, v6
v_mov_b32 v4, 0
s_movk_i32 s57, 625
v_cmp_gt_u32 s[{sBM}:{sBM+1}], s57, v0
s_mov_b32 s56, 429497
s_mov_b32 s60, {L_BCNT}
s_mov_b32 s61, {L_IMG}
s_cmp_ge_u32 s{sWAVE}, 5
s_cbranch_scc1 F_nobl
ds_write_b32 v6, v4
F_nobl:
s_mov_b32 s34, {WS_END}
s_mov_b32 s35, 0x20000
s_mov_b32 s98, 256
s_mov_b32 s99, 0x20000
v_mov_b32 v{VTG}, 0
s_cmp_lg_u32 s2, 255
s_cbranch_scc1 F_nont
s_cmp_lg_u32 s{sWAVE}, 0
s_cbranch_scc1 F_nont
s_or_b32 s49, s100, 1
v_mov_b32 v4, s49
v_mov_b32 v5, s101
s_mov_b64 exec, 1
buffer_store_dwordx2 v[4:5], v{VTG}, s[96:99], 0 offen sc1
s_mov_b64 exec, -1
F_nont:
s_lshr_b32 s{sCNT}, s{sCNT}, 4
s_sub_u32 s{sCNT}, s{sCNT}, s{sN0}
v_lshlrev_b32 v{VC}, 3, v1
v_lshrrev_b32 v3, 4, v1
v_and_b32 v4, 15, v1
v_xor_b32 v{VXA}, v4, v3
v_lshlrev_b32 v{VXA}, 4, v{VXA}
v_lshl_add_u32 v{VXA}, v4, 9, v{VXA}
v_add_u32 v{VXA}, {L_XS}, v{VXA}
v_bfe_u32 v5, v1, 2, 2
v_and_b32 v6, 3, v1
v_lshl_add_u32 v{VWA}, v3, 3, v5
v_lshlrev_b32 v{VWA}, 9, v{VWA}
v_lshl_add_u32 v{VWA}, v6, 3, v{VWA}
v_and_b32 v6, 1, v3
v_lshl_or_b32 v6, v6, 2, v5
v_xor_b32 v6, s{sWAVE}, v6
v_lshl_add_u32 v{VWA}, v6, 5, v{VWA}
v_add_u32 v{TMP+4}, {L_CNT}, v{LO}
ds_write2st64_b32 v{TMP+4}, v{VTG}, v{VTG} offset0:0 offset1:1
s_mov_b32 s{sSC}, {NEGL2E:#x}
s_mov_b32 s{sSC+1}, {NEGL2E:#x}
s_movk_i32 s{sT0}, {PSTR}
v_mul_u32_u24 v{VN}, s{sT0}, v4
v_lshl_add_u32 v{VN}, v3, 3, v{VN}
s_lshl_b32 s{sT1}, s{sWAVE}, 5
s_add_u32 s{sT1}, s{sT1}, {L_PST}
v_add_u32 v{VN}, s{sT1}, v{VN}
v_lshrrev_b32 v{VB}, 5, v0
v_mul_u32_u24 v{VB}, s{sT0}, v{VB}
v_and_b32 v5, 31, v0
v_lshl_add_u32 v{VB}, v5, 4, v{VB}
v_add_u32 v{VB}, {L_PST}, v{VB}
s_lshl_b32 s{sT0}, s{sCNT}, 5
s_sub_u32 s{sT0}, s{sT0}, 1024
v_cmp_gt_u32 vcc, s{sT0}, v0
v_add_u32 v{VI}, 0x4000, v2
v_mov_b32 v5, 0x7ffffff0
s_lshl_b32 s{sK}, s{sN0}, 9
v_cndmask_b32 v{VI}, v5, v{VI}, vcc
s_cmp_ge_u32 s48, 24
s_cbranch_scc1 F_d0
s_waitcnt vmcnt(7)
s_barrier
v_add_u32 v40, {L_IMG}, v{VWA}
ds_read_b64_tr_b16 v[44:45], v40
ds_read_b64_tr_b16 v[46:47], v40 offset:2048
s_lshl_b32 s50, s{sWAVE}, 13
s_and_b32 s49, s48, 7
s_lshl_b32 s49, s49, 10
s_add_u32 s50, s50, s49
s_lshr_b32 s49, s48, 3
s_lshl_b32 s49, s49, 17
s_add_u32 s50, s50, s49
s_add_u32 s50, s50, {WS_WPACK}
v_lshlrev_b32 v41, 4, v1
s_waitcnt lgkmcnt(0)
buffer_store_dwordx4 v[44:47], v41, s[32:35], s50 offen sc1
buffer_load_dwordx2 {vr(TAG,2)}, v{VTG}, s[96:99], 0 offen sc1
F_d0:
""")
    ops += ["w3", "w3"]
    def st(name):
        if name in STEPS: stamp(o, (1, 2, 3, 4, 6)[STEPS.index(name)])
    def reads(s):
        a = VXA
        if s:
            a = TMP + 6
            o(f"v_xor_b32 v{a}, {64*s}, v{VXA}")
        xf, wf = XFB[s & 1], WFB[s & 1]
        o(f"ds_read_b64_tr_b16 {vr(wf,2)}, v{VWA} offset:{(s&3)*16384}")
        o(f"ds_read_b64_tr_b16 {vr(wf+2,2)}, v{VWA} offset:{(s&3)*16384 + 2048}")
        for rt in range(3):
            o(f"ds_read_b128 {vr(xf+4*rt,4)}, v{a} offset:{rt*8192}")
    def wait_bin(n, extra, lab, tail):
        o(f"s_cmp_lt_u32 s2, 64\ns_cbranch_scc1 {lab}\ns_waitcnt vmcnt({n})\n{lab}:\ns_waitcnt vmcnt({n + extra}){tail}")
    for s in range(-1, 8):
        n = vm(("d", s + 1)) if s < 7 else None
        if s == 0:
            o("s_cmp_ge_u32 s48, 24\ns_cbranch_scc1 F_np0\ns_waitcnt vmcnt(0)\nF_np0:")
        if s <= 2:
            wait_bin(n, 3, f"F_wb{s+1}", " lgkmcnt(0)\ns_barrier")
        elif n is not None:
            o(f"s_waitcnt vmcnt({n}) lgkmcnt(0)\ns_barrier")
        else:
            o("s_waitcnt lgkmcnt(0)\ns_barrier")
        st(f"s{s}")
        if s == 0:
            o(f"s_cmp_lg_u32 s{sWAVE}, 0\ns_cbranch_scc1 F_d5\ns_cmp_ge_u32 s48, 24\ns_cbranch_scc1 F_d5")
            get_tag(o, "d")
            o(f"s_lshl_b32 s{sT0}, s48, 7\ns_add_u32 s{sT0}, s{sT0}, {WS_FLAG + 256*128}")
            put_flag(o, f"s{sT0}")
            o("F_d5:")
        if s == 0:
            o(f"buffer_load_dwordx2 {vr(TG0,2)}, v{VTG}, s[96:99], 0 offen sc1")
            ops.append("tag")
        if 0 <= s <= 3:
            dma(s + 4)
        if s < 7:
            reads(s + 1)
        if s >= 0:
            for rt in range(3):
                c = "0" if s == 0 else vr(UA+4*rt, 4)
                o(f"v_mfma_f32_16x16x32_bf16 {vr(UA+4*rt,4)}, {vr(WFB[s&1],4)}, {vr(XFB[s&1]+4*rt,4)}, {c}")
        if s == 3:
            o(f"v_mov_b64 {vr(TAG,2)}, {vr(TG0,2)}")
            get_tag(o, "m")
    o(f"s_mov_b64 s[36:37], s[32:33]\ns_mov_b32 s38, {N*512}\ns_mov_b32 s39, 0x20000\ns_nop 2")
    for rt in range(3):
        a_ = UA + 4*rt
        o(f"""
v_pk_mul_f32 {vr(a_,2)}, {vr(a_,2)}, s[{sSC}:{sSC+1}]
v_pk_mul_f32 {vr(a_+2,2)}, {vr(a_+2,2)}, s[{sSC}:{sSC+1}]
v_cvt_pk_bf16_f32 v{T0+2*rt}, v{a_}, v{a_+1}
v_cvt_pk_bf16_f32 v{T0+2*rt+1}, v{a_+2}, v{a_+3}
ds_write_b64 v{VN}, {vr(T0+2*rt,2)} offset:{rt*16*PSTR}
""")
    PSF = {"ps_nt": "sc1 nt", "ps_01": "sc0 sc1"}
    PSF = next((v for k, v in PSF.items() if k in OPT), "sc1")
    o(f"s_cmp_lg_u32 s{sWAVE}, 1\ns_cbranch_scc1 F_npa\ns_mov_b32 s{sT0}, {WS_FLAG + 256*128}")
    poll(o, "a", f"s{sT0}", 16)
    o(f"""
s_lshr_b32 s{sT0}, s2, 3
s_lshl_b32 s{sT0}, s{sT0}, 13
s_add_u32 s{sT0}, s{sT0}, {WS_WPACK}
s_add_u32 s{sT1}, s{sT0}, 4096
v_lshlrev_b32 v{TMP}, 6, v1
buffer_load_dword v26, v{TMP}, s[32:35], s{sT0} offen sc1
buffer_load_dword v27, v{TMP}, s[32:35], s{sT1} offen sc1
F_npa:
s_waitcnt lgkmcnt(0)
s_barrier
ds_read_b128 {vr(T0,4)}, v{VB}
ds_read_b128 {vr(T1,4)}, v{VB} offset:{32*PSTR}
s_waitcnt lgkmcnt(0)
buffer_store_dwordx4 {vr(T0,4)}, v2, s[36:39], s{sK} offen {PSF}
buffer_store_dwordx4 {vr(T1,4)}, v{VI}, s[36:39], s{sK} offen {PSF}
""")
    st("pst")
    o("s_cmp_ge_u32 s2, 64\ns_cbranch_scc1 F_nbr")
    bin_rank(o)
    o("s_waitcnt lgkmcnt(0)\ns_barrier")
    bin_copy(o)
    o("F_nbr:")
    wloads(o, 0)
    o(f"""
v_and_b32 v{TMP}, 3, v1
v_bfe_u32 v{TMP+1}, v1, 2, 2
v_cmp_eq_u32 vcc, v{TMP+1}, v3
v_and_b32 v{TMP+2}, 1, v1
v_lshlrev_b32 v{TMP+2}, 4, v{TMP+2}
v_mov_b32 v{TMP+3}, 0x3f80
v_lshlrev_b32 v{TMP+3}, v{TMP+2}, v{TMP+3}
v_cndmask_b32 v{TMP+3}, 0, v{TMP+3}, vcc
v_xor_b32 v{VEL}, 2, v{TMP}
v_lshlrev_b32 v{VEL}, 2, v{VEL}
v_add_u32 v{VEL}, {L_ET}, v{VEL}
v_mov_b32 v{TMP+2}, 0x30000
v_cndmask_b32 v{VEL}, v{TMP+2}, v{VEL}, vcc
v_cmp_gt_u32 vcc, 2, v{TMP}
s_mov_b32 s{sONE}, 1.0
s_mov_b32 s{sONE+1}, 1.0
v_cndmask_b32 v24, 0, v{TMP+3}, vcc
v_cndmask_b32_e64 v25, v{TMP+3}, 0, vcc
v_lshlrev_b32 v{TMP}, 16, v{W3}
v_and_b32 v{TMP+1}, 0xffff0000, v{W3}
v_lshlrev_b32 v{TMP+2}, 16, v{W3+1}
v_and_b32 v{TMP+3}, 0xffff0000, v{W3+1}
v_mul_f32 v{TMP}, s{sSC}, v{TMP}
v_mul_f32 v{TMP+1}, s{sSC}, v{TMP+1}
v_mul_f32 v{TMP+2}, s{sSC}, v{TMP+2}
v_mul_f32 v{TMP+3}, s{sSC}, v{TMP+3}
v_cvt_pk_bf16_f32 v{W3}, v{TMP}, v{TMP+1}
v_cvt_pk_bf16_f32 v{W3+1}, v{TMP+2}, v{TMP+3}
s_mov_b32 s{sBND}, 0x7b800000
s_mov_b32 s{sW1}, 0
s_mov_b64 s[40:41], s[20:21]
s_mov_b32 s42, {N*512}
s_mov_b32 s{sLN2}, {NEGLN2:#x}
s_mov_b32 s{sLN2+1}, {NEGLN2:#x}
s_movk_i32 s{sT0}, {RS}
v_and_b32 v{VN}, 15, v1
v_mul_u32_u24 v{VN}, s{sT0}, v{VN}
v_lshl_add_u32 v{VN}, v3, 4, v{VN}
s_lshl_b32 s{sT0}, s{sWAVE}, 6
v_add_u32 v{VN}, s{sT0}, v{VN}
v_mov_b64 {vr(ZR,2)}, 0
v_mov_b64 {vr(ZR+2,2)}, 0
s_waitcnt vmcnt(7) lgkmcnt(0)
s_barrier
""")
    st("drain")
    o(f"s_cmp_lg_u32 s{sWAVE}, 0\ns_cbranch_scc1 F_nfp\ns_lshl_b32 s{sT0}, s2, 7\ns_add_u32 s{sT0}, s{sT0}, {WS_FLAG}")
    put_flag(o, f"s{sT0}")
    o(f"""
F_nfp:
s_lshl_b32 s{sT0}, s{sWAVE}, 13
s_add_u32 s{sT0}, s{sT0}, {WS_WPACK + 131072}
s_add_u32 s{sT1}, s{sT0}, 4096
""")
    def reg_gemm(acc, xf, waits, post=None):
        for ks in range(8):
            a = VXA
            if ks:
                a = TMP + 6
                o(f"v_xor_b32 v{a}, {64*ks}, v{VXA}")
            for rt in range(3):
                o(f"ds_read_b128 {vr(xf[rt],4)}, v{a} offset:{rt*8192}")
            waits(ks)
            for rt in range(3):
                o(f"s_waitcnt lgkmcnt({2-rt})")
                c = "0" if ks == 0 else vr(acc+4*rt, 4)
                o(f"v_mfma_f32_16x16x32_bf16 {vr(acc+4*rt,4)}, {vr(W+4*ks,4)}, {vr(xf[rt],4)}, {c}")
            if post: post(ks)
    reg_gemm(QA, [4, 8, 12], lambda ks: o("s_waitcnt vmcnt(7)"),
             lambda ks: o(f"buffer_load_dwordx4 {vr(W+4*ks,4)}, v{TMP+5}, s[32:35], s{sT0 if ks < 4 else sT1} offen offset:{(ks%4)*1024} sc1"))
    st("q")
    o(f"""
s_lshl_b32 s{sOFF}, s2, 14
s_add_u32 s{sOFF}, s{sOFF}, {WS_CELL}
buffer_load_dwordx4 {vr(REC,4)}, v2, s[32:35], s{sOFF} offen sc1
v_mov_b64 {vr(A0,2)}, v[24:25]
v_mov_b64 {vr(A1,2)}, v[24:25]
v_add_u32 v{TMP}, {L_ET}, v2
v_add_u32 v{TMP+1}, {L_AGB}, v2
ds_write_b128 v{TMP}, {vr(ZR,4)}
ds_write_b128 v{TMP}, {vr(ZR,4)} offset:16384
ds_write_b128 v{TMP}, {vr(ZR,4)} offset:16448
ds_write_b128 v{TMP+1}, {vr(ZR,4)}
ds_write_b128 v{TMP+1}, {vr(ZR,4)} offset:4096
""")
    for rt in range(3):
        o(f"""
v_pk_mul_f32 {vr(QA+4*rt,2)}, {vr(QA+4*rt,2)}, s[{sSC}:{sSC+1}]
v_pk_mul_f32 {vr(QA+4*rt+2,2)}, {vr(QA+4*rt+2,2)}, s[{sSC}:{sSC+1}]
ds_write_b128 v{VN}, {vr(QA+4*rt,4)} offset:{L_QS + rt*16*RS}
""")
    reg_gemm(UA, [4, 8, 12], lambda ks: o(f"s_waitcnt vmcnt({8 - ks})"))
    st("u")
    o(f"""
v_bfe_u32 v{RK0}, v0, 2, 2
v_mul_u32_u24 v{RK0}, 7, v{RK0}
v_and_b32 v{TMP}, 3, v0
v_lshl_add_u32 v{RK1}, v{TMP}, 1, v{RK0}
v_cmp_eq_u32 vcc, 0, v{TMP}
v_add_u32 v46, -1, v{RK1}
v_mov_b32 v47, 64
s_mov_b32 s{sT2}, 0
v_cndmask_b32 v46, v46, v47, vcc
s_mov_b32 s{sRND}, 0
s_waitcnt vmcnt(0)
F_cl:
v_mov_b32_dpp v{TMP}, v{REC+1} row_newbcast:0 row_mask:0xf bank_mask:0xf
v_mov_b32_dpp v{TMP+1}, v{REC} row_newbcast:0 row_mask:0xf bank_mask:0xf
v_mov_b32_dpp v{TMP+2}, v{REC+1} quad_perm:[0,0,0,0] row_mask:0xf bank_mask:0xf
v_cmp_eq_u32 vcc, s100, v{TMP}
v_cmp_ne_u32 s[{sM}:{sM+1}], s100, v{TMP+2}
s_add_u32 s{sT2}, s{sT2}, 1
v_cndmask_b32 v{TMP+1}, 0, v{TMP+1}, vcc
v_max_u32 v{TMP+3}, 1, v{TMP+1}
v_cmp_lt_u32 vcc, v{RK0}, v{TMP+3}
s_cmp_ge_u32 s{sT2}, 0x40000
s_cbranch_scc1 F_cd
s_and_b64 exec, vcc, s[{sM}:{sM+1}]
s_cbranch_execz F_cd
s_sleep 1
buffer_load_dwordx4 {vr(REC,4)}, v2, s[32:35], s{sOFF} offen sc1
s_mov_b64 exec, -1
s_waitcnt vmcnt(0)
s_branch F_cl
F_cd:
s_mov_b64 exec, -1
v_cmp_gt_u32 s[{sV0}:{sV0+1}], v{TMP+1}, v46
v_cmp_gt_u32 s[{sV1}:{sV1+1}], v{TMP+1}, v{RK1}
""")
    st("cell")
    sort_rank(o)
    for k in range(R):
        o(f"v_mov_b64 {vr(RING+4*k+2,2)}, {vr(W3,2)}")
    o("s_waitcnt lgkmcnt(0)\ns_barrier")
    sort_scatter(o)
    o(f"""
s_cmp_ge_u32 s{sWAVE}, 5
s_cbranch_scc1 F_npp
s_lshl_b32 s{sT0}, s{sWAVE}, 13
s_add_u32 s{sT0}, s{sT0}, {WS_FLAG}
s_cmp_eq_u32 s{sWAVE}, 4
s_cbranch_scc1 F_ppk
""")
    poll(o, "p", f"s{sT0}", 64)
    o(f"s_branch F_npp\nF_ppk:\ns_mov_b32 s{sT0}, {WS_FLAG + 272*128}")
    poll(o, "k", f"s{sT0}", 8)
    o(f"""
F_npp:
s_mov_b32 s{sT0}, {WS_OVFC}
buffer_load_dwordx2 {vr(VOVF,2)}, v{VC}, s[32:35], s{sT0} offen sc1
s_waitcnt lgkmcnt(0)
s_barrier
L_pr:
""")
    st("b3")
    zero_cnt(o)
    prime(o)
    o(f"""
L_go:
""")
    stamp(o, 5)
    o(f"""
s_mov_b64 vcc, 0
s_mov_b32 s{sK}, {KMAX}
s_add_u32 s{sRND}, s{sRND}, 1
s_cmp_ge_u32 s{sP}, s{sP1}
s_cbranch_scc1 L_loopdone
v_cmp_eq_u32 s[{sM}:{sM+1}], s{sP}, v{VEND}
s_sub_u32 s{sIT}, s{sP1}, s{sP}
s_add_u32 s{sIT}, s{sIT}, {R-1}
s_mul_i32 s{sIT}, s{sIT}, {-(-256 // R)}
s_lshr_b32 s{sIT}, s{sIT}, 8
s_cmp_eq_u32 s{sP}, 0
s_cselect_b32 s{sT2}, 1, 0
s_cmp_lg_u64 s[{sM}:{sM+1}], 0
s_cselect_b32 s{sT2}, 1, s{sT2}
s_xor_b32 s{sHEAD}, s{sT2}, 1
s_call_b64 s[{sRET}:{sRET+1}], L_newnode
s_setprio 3
s_waitcnt vmcnt({2*(R-1)}) lgkmcnt(0)
v_mfma_f32_16x16x32_bf16 {vr(T0,4)}, {vr(A0,4)}, {vr(RING,4)}, {vr(Q,4)}
s_nop 4
L_top:
""")
    for k in range(R):
        B = RING + 4*k
        B1 = RING + 4*((k+1) % R)
        ex, pk = valu_block(TT[k & 1])
        o(f"""
s_waitcnt vmcnt({2*(R-2)}) lgkmcnt(0)
v_add_u32 v{AD}, v{IX}, v{LO}
v_mfma_f32_16x16x32_bf16 {vr(TT[(k+1)&1],4)}, {vr(AA[(k+1)&1],4)}, {vr(B1,4)}, {vr(Q,4)}
{ex}
buffer_load_dword v{B}, v{AD}, s[36:39], 0 offen sc1
buffer_load_dword v{B+1}, v{AD}, s[36:39], 0 offen offset:256 sc1
ds_read_b32 v{IX}, v{VI} offset:{4*(k+R+1)}
ds_read2_b32 {vr(AA[k&1]+2,2)}, v{VE} offset0:{4*(k+2)} offset1:{4*(k+2)+2}
{pk}
s_sub_u32 s{sREM}, s{sREM}, 1
s_cbranch_scc1 L_call{k}
L_next{k}:
""")
    o(f"""
v_add_u32 v{VI}, {4*R}, v{VI}
v_add_u32 v{VE}, {16*R}, v{VE}
s_sub_u32 s{sIT}, s{sIT}, 1
s_cmp_ge_u32 s{sIT}, 4
s_cbranch_scc1 L_top
s_setprio 2
s_cmp_eq_u32 s{sIT}, 3
s_cbranch_scc1 L_top
s_setprio 1
s_cmp_eq_u32 s{sIT}, 2
s_cbranch_scc1 L_top
s_setprio 0
s_branch L_top
""")
    for k in range(R):
        B1 = RING + 4*((k+1) % R)
        o(f"""
L_call{k}:
s_call_b64 s[{sRET}:{sRET+1}], L_flush
s_cbranch_scc0 L_special
s_waitcnt lgkmcnt(0)
v_mfma_f32_16x16x32_bf16 {vr(TT[(k+1)&1],4)}, {vr(AA[(k+1)&1],4)}, {vr(B1,4)}, {vr(Q,4)}
s_nop 3
s_branch L_next{k}
""")
    o(f"""
L_flush:
v_rcp_f32 v{E}, v{D}
v_rcp_f32 v{E+1}, v{D+1}
v_rcp_f32 v{E+2}, v{D+2}
v_rcp_f32 v{E+3}, v{D+3}
s_mov_b32 s{sP}, s{sSEGE}
s_cbranch_vccnz L_nochk
v_pk_fma_f32 {vr(CK,2)}, {vr(NN,2)}, 0, {vr(D,2)}
v_pk_fma_f32 {vr(CK+2,2)}, {vr(NN+2,2)}, 0, {vr(D+2,2)}
v_pk_add_f32 {vr(CK,2)}, {vr(CK,2)}, {vr(CK+2,2)}
v_add_f32 v{CK}, v{CK}, v{CK+1}
v_cmp_nle_f32 s[{sM}:{sM+1}], v{CK}, s{sBND}
s_nop 3
s_cmp_eq_u64 s[{sM}:{sM+1}], 0
s_cbranch_scc1 L_nochk
s_mov_b32 s{sP}, s{sSEGS}
s_setpc_b64 s[{sRET}:{sRET+1}]
L_nochk:
v_pk_fma_f32 {vr(AC,2)}, {vr(NN,2)}, {vr(E,2)}, {vr(AC,2)}
v_pk_fma_f32 {vr(AC+2,2)}, {vr(NN+2,2)}, {vr(E+2,2)}, {vr(AC+2,2)}
s_cmp_lg_u32 s{sW1}, 0
s_cbranch_scc1 L_havew
s_mov_b32 s{sW1}, 1
""")
    wloads(o)
    o(f"""
L_havew:
s_cmp_eq_u32 s{sP}, s{sNEND}
s_cbranch_scc1 L_fin
s_cmp_lg_u32 s{sP}, s{sP1}
s_cbranch_scc1 L_reinit
s_cmp_lg_u32 s{sHEAD}, 0
s_cbranch_scc1 L_pub
s_mov_b32 s{sT0}, s{sWAVE}
s_mov_b32 s{sT1}, s{sP1}
L_col:
s_add_u32 s{sT0}, s{sT0}, 1
s_lshl_b32 s{sT2}, s{sT0}, 2
s_add_u32 s{sT2}, s{sT2}, {L_HF}
v_mov_b32 v{CK}, s{sT2}
L_poll:
ds_read_b32 v{CK+1}, v{CK}
s_waitcnt lgkmcnt(0)
v_readfirstlane_b32 s{sT2}, v{CK+1}
s_nop 3
s_cmp_eq_u32 s{sT2}, s{sRND}
s_cbranch_scc1 L_got
s_sleep 1
s_branch L_poll
L_got:
s_lshl_b32 s{sT2}, s{sT0}, 10
s_add_u32 s{sT2}, s{sT2}, {L_HB}
v_add_u32 v{CK}, s{sT2}, v{VC}
ds_read2st64_b64 {vr(E,4)}, v{CK} offset0:0 offset1:1
s_add_u32 s{sT1}, s{sT1}, s{sCH}
s_waitcnt lgkmcnt(0)
v_pk_add_f32 {vr(AC,2)}, {vr(AC,2)}, {vr(E,2)}
v_pk_add_f32 {vr(AC+2,2)}, {vr(AC+2,2)}, {vr(E+2,2)}
s_cmp_lt_u32 s{sT1}, s{sNEND}
s_cbranch_scc1 L_col
s_branch L_wr
L_fin:
s_cmp_lg_u32 s{sHEAD}, 0
s_cbranch_scc1 L_pub
L_wr:
v_pk_mul_f32 {vr(AC,2)}, {vr(AC,2)}, s[{sLN2}:{sLN2+1}]
v_pk_mul_f32 {vr(AC+2,2)}, {vr(AC+2,2)}, s[{sLN2}:{sLN2+1}]
v_cvt_pk_bf16_f32 v{E}, v{AC}, v{AC+1}
v_cvt_pk_bf16_f32 v{E+1}, v{AC+2}, v{AC+3}
ds_write2st64_b32 v{VB}, v{E}, v{E+1} offset0:0 offset1:1
L_more:
s_mov_b32 s{sHEAD}, 0
s_cmp_lg_u32 s{sP}, s{sP1}
s_cbranch_scc1 L_newnode
s_setpc_b64 s[{sRET}:{sRET+1}]
L_pub:
s_lshl_b32 s{sT2}, s{sWAVE}, 10
s_add_u32 s{sT2}, s{sT2}, {L_HB}
v_add_u32 v{CK}, s{sT2}, v{VC}
s_lshl_b32 s{sT2}, s{sWAVE}, 2
s_add_u32 s{sT2}, s{sT2}, {L_HF}
v_mov_b32 v{CK+1}, s{sT2}
v_mov_b32 v{CK+2}, s{sRND}
ds_write2st64_b64 v{CK}, {vr(AC,2)}, {vr(AC+2,2)} offset0:0 offset1:1
s_waitcnt lgkmcnt(0)
ds_write_b32 v{CK+1}, v{CK+2}
s_branch L_more
L_old:
s_cmp_lg_u32 s{sHEAD}, 0
s_cbranch_scc1 L_reinit
ds_read2st64_b32 {vr(E,2)}, v{VB} offset0:0 offset1:1
s_waitcnt lgkmcnt(0)
v_lshlrev_b32 v{AC}, 16, v{E}
v_and_b32 v{AC+1}, 0xffff0000, v{E}
v_lshlrev_b32 v{AC+2}, 16, v{E+1}
v_and_b32 v{AC+3}, 0xffff0000, v{E+1}
v_pk_mul_f32 {vr(AC,2)}, {vr(AC,2)}, s[{sSC}:{sSC+1}]
v_pk_mul_f32 {vr(AC+2,2)}, {vr(AC+2,2)}, s[{sSC}:{sSC+1}]
s_branch L_reinit
L_newnode:
v_cmp_ge_u32 s[{sM}:{sM+1}], s{sP}, v{VEND}
v_mov_b64 {vr(AC,2)}, 0
v_mov_b64 {vr(AC+2,2)}, 0
s_nop 1
s_bcnt1_i32_b64 s{sT0}, s[{sM}:{sM+1}]
s_mul_i32 s{sT1}, s{sT0}, {RS}
v_readlane_b32 s{sNEND}, v{VEND}, s{sT0}
v_add_u32 v{VN}, s{sT1}, v{VC}
ds_read2st64_b64 {vr(Q,4)}, v{VN} offset0:0 offset1:1
s_and_b32 s{sT1}, s{sT0}, 15
s_lshl_b32 s{sT1}, s{sT1}, 4
s_lshl_b32 s{sT0}, s{sT0}, 9
s_or_b32 s{sT0}, s{sT0}, s{sT1}
s_add_u32 s{sT0}, s{sT0}, {L_AGB}
v_xor_b32 v{VB}, s{sT0}, v{LO}
s_cmp_lg_u32 s{sRND}, 1
s_cbranch_scc1 L_old
L_reinit:
v_mov_b64 {vr(NN,2)}, 0
v_mov_b64 {vr(NN+2,2)}, 0
v_mov_b64 {vr(D,2)}, s[{sONE}:{sONE+1}]
v_mov_b64 {vr(D+2,2)}, s[{sONE}:{sONE+1}]
s_mov_b32 s{sSEGS}, s{sP}
s_add_u32 s{sSEGE}, s{sP}, s{sK}
s_min_u32 s{sSEGE}, s{sSEGE}, s{sNEND}
s_min_u32 s{sSEGE}, s{sSEGE}, s{sP1}
s_sub_u32 s{sREM}, s{sSEGE}, s{sP}
s_sub_u32 s{sREM}, s{sREM}, 1
s_cmp_eq_u32 s{sP}, s{sP}
s_setpc_b64 s[{sRET}:{sRET+1}]
L_special:
s_cmp_eq_u32 s{sP}, s{sP1}
s_cbranch_scc1 L_loopdone
s_mov_b64 vcc, -1
s_mov_b32 s{sK}, 1
s_waitcnt vmcnt(0) lgkmcnt(0)
s_call_b64 s[{sRET}:{sRET+1}], L_reinit
L_slow:
s_lshl_b32 s{sT0}, s{sP}, 2
s_add_u32 s{sT0}, s{sT0}, {L_IDX}
v_mov_b32 v{VI}, s{sT0}
s_lshl_b32 s{sT0}, s{sP}, 4
v_add_u32 v{VE}, s{sT0}, v{VEL}
ds_read_b32 v{IX}, v{VI}
ds_read2_b32 {vr(A0+2,2)}, v{VE} offset0:0 offset1:2
s_waitcnt lgkmcnt(0)
v_add_u32 v{AD}, v{IX}, v{LO}
buffer_load_dword v{RING}, v{AD}, s[36:39], 0 offen sc1
buffer_load_dword v{RING+1}, v{AD}, s[36:39], 0 offen offset:256 sc1
s_waitcnt vmcnt(0)
v_mfma_f32_16x16x32_bf16 {vr(T0,4)}, {vr(A0,4)}, {vr(RING,4)}, {vr(Q,4)}
s_nop 7
v_min_f32 v{T0}, 0x42fc0000, v{T0}
v_min_f32 v{T0+1}, 0x42fc0000, v{T0+1}
v_min_f32 v{T0+2}, 0x42fc0000, v{T0+2}
v_min_f32 v{T0+3}, 0x42fc0000, v{T0+3}
{valu_block(T0)[0]}
{valu_block(T0)[1]}
s_call_b64 s[{sRET}:{sRET+1}], L_flush
s_cbranch_scc1 L_slow
L_loopdone:
""")
    if len(STEPS) < 5: stamp(o, 6)
    o(f"""
s_setprio 0
s_cmp_lg_u32 s{sW1}, 0
s_cbranch_scc1 L_ld2
s_mov_b32 s{sW1}, 1
""")
    wloads(o)
    o(f"""
L_ld2:
s_cmp_lg_u32 s{sRND}, 1
s_cbranch_scc1 L_rn0
s_mov_b32 s{sOB}, 0
s_mov_b32 s{sT0}, {WS_OVFC}
L_ov:
s_waitcnt vmcnt(0)
v_cmp_ne_u32 vcc, s100, v{VOVF+1}
v_cmp_ne_u32 s[{sOM}:{sOM+1}], 0, v{VOVF}
s_add_u32 s{sOB}, s{sOB}, 1
s_cmp_ge_u32 s{sOB}, 0x40000
s_cbranch_scc1 L_ovd
s_nop 0
s_cbranch_vccz L_ovd
buffer_load_dwordx2 {vr(VOVF,2)}, v{VC}, s[32:35], s{sT0} offen sc1
s_branch L_ov
L_ovd:
s_mov_b32 s{sOB}, 0
L_rn0:
v_and_b32 v{TMP}, 15, v1
v_xor_b32 v{TMP+1}, v{TMP}, v3
v_lshlrev_b32 v{TMP+1}, 4, v{TMP+1}
v_lshl_add_u32 v{TMP+1}, v{TMP}, 9, v{TMP+1}
v_add_u32 v{TMP+1}, {L_AGB}, v{TMP+1}
s_waitcnt vmcnt(0) lgkmcnt(0)
s_barrier
s_cmp_eq_u64 s[{sOM}:{sOM+1}], 0
s_cbranch_scc0 L_round
""")
    FXF = [T0, T1, E]
    for ks in range(8):
        a = TMP + 1
        if ks:
            a = TMP + 6
            o(f"v_xor_b32 v{a}, {64*ks}, v{TMP+1}")
        for rt in range(3):
            o(f"ds_read_b128 {vr(FXF[rt],4)}, v{a} offset:{rt*8192}")
        for rt in range(3):
            o(f"s_waitcnt lgkmcnt({2-rt})")
            o(f"v_mfma_f32_16x16x32_bf16 {vr(UA+4*rt,4)}, {vr(W+4*ks,4)}, {vr(FXF[rt],4)}, {vr(UA+4*rt,4)}")
    o(f"""
v_add_u32 v{TMP+2}, s{sN0}, v{TMP}
v_lshlrev_b32 v{TMP+2}, 9, v{TMP+2}
v_lshl_add_u32 v{TMP+2}, v3, 3, v{TMP+2}
s_lshl_b32 s{sT0}, s{sWAVE}, 5
s_add_u32 s{sT1}, s{sT0}, 8192
s_add_u32 s{sT2}, s{sT0}, 16384
s_sub_u32 s{sCNT}, s{sCNT}, 32
s_nop 1
""")
    T = NN
    for rt in range(3):
        a = UA + 4*rt
        o(f"""
v_pk_mul_f32 {vr(T,2)}, {vr(a,2)}, s[{sSC}:{sSC+1}]
v_pk_mul_f32 {vr(T+2,2)}, {vr(a+2,2)}, s[{sSC}:{sSC+1}]
v_exp_f32 v{T}, v{T}
v_exp_f32 v{T+1}, v{T+1}
v_exp_f32 v{T+2}, v{T+2}
v_exp_f32 v{T+3}, v{T+3}
v_pk_add_f32 {vr(T,2)}, {vr(T,2)}, s[{sONE}:{sONE+1}]
v_pk_add_f32 {vr(T+2,2)}, {vr(T+2,2)}, s[{sONE}:{sONE+1}]
v_rcp_f32 v{T}, v{T}
v_rcp_f32 v{T+1}, v{T+1}
v_rcp_f32 v{T+2}, v{T+2}
v_rcp_f32 v{T+3}, v{T+3}
v_pk_mul_f32 {vr(a,2)}, {vr(a,2)}, {vr(T,2)}
v_pk_mul_f32 {vr(a+2,2)}, {vr(a+2,2)}, {vr(T+2,2)}
v_cvt_pk_bf16_f32 v{a}, v{a}, v{a+1}
v_cvt_pk_bf16_f32 v{a+1}, v{a+2}, v{a+3}
""")
        if rt == 2:
            o(f"v_cmp_gt_u32 vcc, s{sCNT}, v{TMP}\ns_and_saveexec_b64 s[{sM}:{sM+1}], vcc")
        o(f"buffer_store_dwordx2 {vr(a,2)}, v{TMP+2}, s[40:43], s{[sT0,sT1,sT2][rt]} offen")
    if STAMP:
        o(f"""
s_waitcnt vmcnt(0)
s_memrealtime s[94:95]
s_mov_b64 exec, 1
s_lshl_b32 s26, s2, 4
s_add_u32 s26, s26, s{sWAVE}
s_lshl_b32 s26, s26, 5
s_add_u32 s26, s26, {WS_STAMP + 0x100000}
s_mov_b32 s34, 0x1000000
v_mov_b32 v0, 0
s_waitcnt lgkmcnt(0)
""")
        for i in range(8):
            o(f"v_mov_b32 v{4+i}, s{80+2*i}")
        o("buffer_store_dwordx4 v[4:7], v0, s[32:35], s26 offen\nbuffer_store_dwordx4 v[8:11], v0, s[32:35], s26 offen offset:16")
    o(f"""
L_end:
s_endpgm
L_round:
s_ff1_i32_b64 s{sT0}, s[{sOM}:{sOM+1}]
s_mul_i32 s{sT1}, s{sT0}, {CHUNK*8}
v_readlane_b32 s{sOC}, v{VOVF}, s{sT0}
s_lshl_b32 s{sT2}, s{sOB}, 3
s_add_u32 s{sT1}, s{sT1}, s{sT2}
s_add_u32 s{sT1}, s{sT1}, {WS_OVF}
buffer_load_dwordx4 {vr(REC,4)}, v2, s[32:35], s{sT1} offen sc1
v_lshlrev_b32 v{TMP}, 1, v0
v_add_u32 v{TMP}, s{sOB}, v{TMP}
v_add_u32 v{TMP+1}, 1, v{TMP}
v_cmp_gt_u32 s[{sV0}:{sV0+1}], s{sOC}, v{TMP}
v_cmp_gt_u32 s[{sV1}:{sV1+1}], s{sOC}, v{TMP+1}
s_add_u32 s{sOB}, s{sOB}, 2048
s_cmp_lt_u32 s{sOB}, s{sOC}
s_cbranch_scc1 L_rn2
s_bitset0_b64 s[{sOM}:{sOM+1}], s{sT0}
s_mov_b32 s{sOB}, 0
L_rn2:
s_waitcnt vmcnt(0)
v_lshrrev_b32 v{TMP}, 16, v{REC+1}
v_lshrrev_b32 v{TMP+1}, 16, v{REC+3}
v_cmp_eq_u32 s[{sM}:{sM+1}], s2, v{TMP}
s_nop 3
s_and_b64 s[{sV0}:{sV0+1}], s[{sV0}:{sV0+1}], s[{sM}:{sM+1}]
v_cmp_eq_u32 s[{sM}:{sM+1}], s2, v{TMP+1}
s_nop 3
s_and_b64 s[{sV1}:{sV1+1}], s[{sV1}:{sV1+1}], s[{sM}:{sM+1}]
""")
    sort_rank(o)
    o("s_waitcnt lgkmcnt(0)\ns_barrier")
    sort_scatter(o)
    o("s_waitcnt lgkmcnt(0)\ns_barrier")
    o("s_branch L_pr")
    bin_overflow(o)

def main(path):
    o = Asm()
    gen(o)
    hdr = f"""; MPNN edge-MLP + segment sum + node update in one launch (256 co-resident workgroups, one per CU).
; @launch grid=(256,1,1) block=(1024,1,1) lds={L_END}
.amdgcn_target "amdgcn-amd-amdhsa--gfx950"
.text
"""
    desc = f""".section .rodata,"a"
.p2align 6
.amdhsa_kernel {KNAME}
  .amdhsa_next_free_vgpr {NV}
  .amdhsa_next_free_sgpr 102
  .amdhsa_accum_offset {(NV+3)//4*4}
  .amdhsa_group_segment_fixed_size 0
  .amdhsa_kernarg_size 72
  .amdhsa_user_sgpr_count 2
  .amdhsa_user_sgpr_kernarg_segment_ptr 1
  .amdhsa_system_sgpr_workgroup_id_x 1
.end_amdhsa_kernel
"""
    open(path, "w").write(hdr + o.text() + desc)

if __name__ == "__main__":
    if "--stamp" in sys.argv:
        sys.argv.remove("--stamp")
        STAMP = True
    for a in list(sys.argv):
        if a.startswith("--steps="):
            sys.argv.remove(a)
            STEPS = a[8:].split(",")
        if a.startswith("--poll="):
            sys.argv.remove(a)
            STEP_POLL = int(a[7:])
        if a.startswith("--opt="):
            sys.argv.remove(a)
            OPT |= set(a[6:].split(","))
    main(sys.argv[1] if len(sys.argv) > 1 else "gather_scatter__mpnn_edge_mlp__graph.s")
```

```python
import sys

N = 10000
WS_WPACK = 0x500000
WS_OVFC = 0x560000
WS_OVF = 0x570000
WS_FLAG = 0x6E0000
WS_CELL = 0x700000
WS_END = 0xB00000
WS_STAMP = 0xC00000
CHUNK = 2500
CAP = 28
NEGL2E = 0xBFB8AA3B
NEGLN2 = 0xBF317218
KNAME = "gather_scatter__mpnn_edge_mlp__graph_kernel"
STAMP = False
STEP_POLL = 17
STEPS = ["s-1", "pst", "drain", "cell"]
OPT = set()

class Asm:
    def __init__(self):
        self.l = []
    def __call__(self, s):
        for line in s.strip("\n").split("\n"):
            line = line.strip()
            if line:
                self.l.append(line if line.endswith(":") else "    " + line)
    def text(self):
        l = self.l
        def sub(a_lab, b_lab, pref):
            a = l.index(a_lab); b = l.index(b_lab)
            return l[:a] + [("    s_nop 0" if any(x.strip().startswith(p) for p in pref) else x) for x in l[a:b]] + l[b:]
        if "noloop_ld" in OPT: l = sub("L_top:", "L_call0:", ["buffer_load"])
        return "\n".join(l) + "\n"

def vr(a, n):
    return f"v[{a}:{a+n-1}]" if n > 1 else f"v{a}"

def srd(o, d, lo, hi, size):
    o(f"s_mov_b32 s{d}, s{lo}\ns_mov_b32 s{d+1}, s{hi}\ns_mov_b32 s{d+2}, {size}\ns_mov_b32 s{d+3}, 0x20000")

def stamp(o, i):
    if STAMP:
        o(f"s_memrealtime s[{80+2*i}:{81+2*i}]\ns_waitcnt lgkmcnt(0)")

R = 6
PAD = R + 2
KMAX = 24
RS = 1040
L_QS = 0
L_AGB = (48 * RS + 511) // 512 * 512
L_HB = L_AGB + 48 * 512
L_IDX = L_HB + 16 * 1024
L_ET = L_IDX + 2064 * 4
L_CNT = (L_ET + 2052 * 16 + 255) // 256 * 256
L_HF = L_CNT + 256
L_XS = (L_HF + 256 + 511) // 512 * 512
L_END = L_XS + 48 * 512
L_IMG = 65536
L_BCNT = 131072
PSTR = 528
L_PST = 32768
assert L_BCNT + 1100 <= L_CNT and L_END <= 163840
RING = 4
A0, A1, Q, T0, T1, E, NN, D, AC, UA = 28, 32, 36, 40, 44, 48, 52, 56, 60, 64
VOVF, VB, IX, AD, LO, VI, VE, VN, VC, VEND, VEL = 76, 78, 79, 80, 81, 82, 83, 84, 85, 86, 126
TMP = 87
W = 94
NV = 127
QA, VXA, VWA, VWS, VTG, ZR = 48, AD, 18, 17, 19, 20
XFB, WFB = [W, W + 16], [W + 12, W + 28]
W3, TG0 = 62, 60
TAG = 92
sWAVE, sN0, sCNT, sHEAD, sIT, sW1, sCH = 3, 4, 5, 6, 7, 26, 27
sP, sP1, sREM, sSEGE, sSEGS, sNEND, sK, sTOT, sRND, sOB, sOC, sOFF = range(48, 60)
sV0, sV1, sOM, sRET, sSO, sM, sONE, sSC = 60, 62, 64, 66, 68, 70, 72, 74
sM0 = 69
sT0, sT1, sT2, sBND = 76, 77, 78, 79
sLN2 = 44
REC, RK0, RK1 = 40, 44, 45
CK = TMP + 1

def valu_block(T):
    ex = "\n".join(f"v_exp_f32 v{E+i}, v{T+i}" for i in range(4))
    pk = f"""
v_pk_fma_f32 {vr(NN,2)}, {vr(NN,2)}, {vr(E,2)}, {vr(NN,2)}
v_pk_fma_f32 {vr(NN+2,2)}, {vr(NN+2,2)}, {vr(E+2,2)}, {vr(NN+2,2)}
v_pk_fma_f32 {vr(NN,2)}, {vr(T,2)}, {vr(D,2)}, {vr(NN,2)}
v_pk_fma_f32 {vr(NN+2,2)}, {vr(T+2,2)}, {vr(D+2,2)}, {vr(NN+2,2)}
v_pk_fma_f32 {vr(D,2)}, {vr(D,2)}, {vr(E,2)}, {vr(D,2)}
v_pk_fma_f32 {vr(D+2,2)}, {vr(D+2,2)}, {vr(E+2,2)}, {vr(D+2,2)}
"""
    return ex, pk

def poll(o, tag, soff, count):
    o(f"""
v_lshlrev_b32 v{TMP}, 7, v1
s_mov_b32 s{sT1}, 0
s_mov_b64 exec, {"-1" if count == 64 else hex((1 << count) - 1)}
F_pl{tag}:
buffer_load_dwordx2 {vr(TMP+1,2)}, v{TMP}, s[32:35], {soff} offen sc1
s_add_u32 s{sT1}, s{sT1}, 1
s_waitcnt vmcnt(0)
v_cmpx_ne_u64 vcc, s[100:101], {vr(TMP+1,2)}
s_nop 4
s_cbranch_execz F_pd{tag}
s_sleep 2
s_cmp_lt_u32 s{sT1}, 0x40000
s_cbranch_scc1 F_pl{tag}
F_pd{tag}:
s_mov_b64 exec, -1
""")

def get_tag(o, tag):
    o(f"""
s_mov_b32 s{sT1}, 0
F_tg{tag}:
v_readfirstlane_b32 s100, v{TAG}
v_readfirstlane_b32 s101, v{TAG+1}
s_add_u32 s{sT1}, s{sT1}, 1
s_cmp_ge_u32 s{sT1}, 0x40000
s_cbranch_scc1 F_th{tag}
s_cmp_lg_u32 s100, 0
s_cbranch_scc1 F_th{tag}
buffer_load_dwordx2 {vr(TAG,2)}, v{VTG}, s[96:99], 0 offen sc1
s_waitcnt vmcnt(0)
s_branch F_tg{tag}
F_th{tag}:
""")

def put_flag(o, soff):
    o(f"""
v_mov_b32 v{TMP+1}, s100
v_mov_b32 v{TMP+2}, s101
s_mov_b64 exec, 1
buffer_store_dwordx2 {vr(TMP+1,2)}, v{VTG}, s[32:35], {soff} offen sc1
s_mov_b64 exec, -1
""")

def sort_rank(o):
    o(f"""
s_mov_b32 s{sT0}, {L_CNT}
v_mov_b32 v{TMP+4}, 0xfc
v_mov_b32 v{TMP+3}, 1
v_and_or_b32 v{TMP}, v{REC}, v{TMP+4}, s{sT0}
v_and_or_b32 v{TMP+1}, v{REC+2}, v{TMP+4}, s{sT0}
s_mov_b64 exec, s[{sV0}:{sV0+1}]
ds_add_rtn_u32 v{RK0}, v{TMP}, v{TMP+3}
s_mov_b64 exec, s[{sV1}:{sV1+1}]
ds_add_rtn_u32 v{RK1}, v{TMP+1}, v{TMP+3}
s_mov_b64 exec, -1
v_add_u32 v{TMP+4}, s{sT0}, v{LO}
""")

def sort_scatter(o):
    o(f"""
ds_read_b32 v{TMP+2}, v{TMP+4}
v_and_b32 v{REC}, 0xfffffe00, v{REC}
v_and_b32 v{REC+2}, 0xfffffe00, v{REC+2}
s_mov_b32 s{sT0}, {L_IDX}
s_mov_b32 s{sT1}, {L_ET}
s_waitcnt lgkmcnt(0)
v_add_u32_dpp v{VEND}, v{TMP+2}, v{TMP+2} row_shr:1 row_mask:0xf bank_mask:0xf bound_ctrl:0
s_nop 1
v_add_u32_dpp v{VEND}, v{VEND}, v{VEND} row_shr:2 row_mask:0xf bank_mask:0xf bound_ctrl:0
s_nop 1
v_add_u32_dpp v{VEND}, v{VEND}, v{VEND} row_shr:4 row_mask:0xf bank_mask:0xf bound_ctrl:0
s_nop 1
v_add_u32_dpp v{VEND}, v{VEND}, v{VEND} row_shr:8 row_mask:0xf bank_mask:0xf bound_ctrl:0
s_nop 1
v_add_u32_dpp v{VEND}, v{VEND}, v{VEND} row_bcast:15 row_mask:0xa bank_mask:0xf
s_nop 1
v_add_u32_dpp v{VEND}, v{VEND}, v{VEND} row_bcast:31 row_mask:0xc bank_mask:0xf
v_sub_u32 v{TMP+3}, v{VEND}, v{TMP+2}
v_readlane_b32 s{sTOT}, v{VEND}, 63
ds_bpermute_b32 v{TMP}, v{TMP}, v{TMP+3}
ds_bpermute_b32 v{TMP+1}, v{TMP+1}, v{TMP+3}
s_nop 1
s_add_u32 s{sCH}, s{sTOT}, 15
s_lshr_b32 s{sCH}, s{sCH}, 4
s_mul_i32 s{sP}, s{sCH}, s{sWAVE}
s_add_u32 s{sP1}, s{sP}, s{sCH}
s_min_u32 s{sP}, s{sP}, s{sTOT}
s_min_u32 s{sP1}, s{sP1}, s{sTOT}
s_waitcnt lgkmcnt(0)
v_add_u32 v{TMP}, v{TMP}, v{RK0}
v_add_u32 v{TMP+1}, v{TMP+1}, v{RK1}
v_lshl_add_u32 v{TMP+2}, v{TMP}, 2, s{sT0}
v_lshl_add_u32 v{TMP+3}, v{TMP+1}, 2, s{sT0}
v_lshl_add_u32 v{TMP}, v{TMP}, 4, s{sT1}
v_lshl_add_u32 v{TMP+1}, v{TMP+1}, 4, s{sT1}
s_mov_b64 exec, s[{sV0}:{sV0+1}]
ds_write_b32 v{TMP+2}, v{REC}
ds_write_b16 v{TMP}, v{REC+1} offset:8
ds_write_b16 v{TMP}, v{REC+1} offset:14
s_mov_b64 exec, s[{sV1}:{sV1+1}]
ds_write_b32 v{TMP+3}, v{REC+2}
ds_write_b16 v{TMP+1}, v{REC+3} offset:8
ds_write_b16 v{TMP+1}, v{REC+3} offset:14
s_mov_b64 exec, -1
""")

def zero_cnt(o):
    o(f"v_mov_b32 v{TMP}, 0\nds_write_b32 v{TMP+4}, v{TMP}")

def prime(o):
    PT = T0
    o(f"""
s_lshl_b32 s{sT0}, s{sP}, 2
s_add_u32 s{sT0}, s{sT0}, {L_IDX}
v_mov_b32 v{VI}, s{sT0}
s_lshl_b32 s{sT0}, s{sP}, 4
v_add_u32 v{VE}, s{sT0}, v{VEL}
""")
    for k in range(0, R, 2):
        o(f"ds_read2_b32 {vr(PT+k,2)}, v{VI} offset0:{k} offset1:{k+1}")
    o(f"""
ds_read_b32 v{IX}, v{VI} offset:{4*R}
ds_read2_b32 {vr(A0+2,2)}, v{VE} offset0:0 offset1:2
ds_read2_b32 {vr(A1+2,2)}, v{VE} offset0:4 offset1:6
s_waitcnt lgkmcnt(0)
""")
    for k in range(R):
        o(f"v_add_u32 v{PT+k}, v{PT+k}, v{LO}")
    for k in range(R):
        B = RING + 4*k
        o(f"buffer_load_dword v{B}, v{PT+k}, s[36:39], 0 offen sc1")
        o(f"buffer_load_dword v{B+1}, v{PT+k}, s[36:39], 0 offen offset:256 sc1")

def wloads(o, mat=2):
    o(f"""
s_lshl_b32 s{sT0}, s{sWAVE}, 13
s_add_u32 s{sT0}, s{sT0}, {WS_WPACK + mat*131072}
s_add_u32 s{sT1}, s{sT0}, 4096
v_lshlrev_b32 v{TMP+5}, 4, v1
""")
    for ks in range(8):
        o(f"buffer_load_dwordx4 {vr(W+4*ks,4)}, v{TMP+5}, s[32:35], s{sT0 if ks < 4 else sT1} offen offset:{(ks%4)*1024} {'' if 'wplain' in OPT else 'sc1'}")

DST, SRC, EA, OWN, RK, R0 = 28, 32, 36, 48, 52, 56
EW = [EA, 38, EA + 1, 39]
sBM = 58
def bin_rank(o):
    o(f"v_mov_b32 v{TMP+3}, 1\ns_mov_b64 exec, s[{sBM}:{sBM+1}]")
    for k in range(4):
        o(f"""
v_mul_u32_u24 v{OWN+k}, s56, v{DST+k}
v_lshrrev_b32 v{OWN+k}, 24, v{OWN+k}
v_lshl_add_u32 v{TMP+4}, v{OWN+k}, 2, s60
ds_add_rtn_u32 v{RK+k}, v{TMP+4}, v{TMP+3}
""")
    for k in range(4):
        o(f"""
v_mad_u32_u24 v{TMP+1}, v{OWN+k}, s57, 15
v_lshrrev_b32 v{TMP+1}, 4, v{TMP+1}
v_sub_u32 v{DST+k}, v{DST+k}, v{TMP+1}
v_lshl_add_u32 v{R0+k}, v{SRC+k}, 7, v{DST+k}
v_lshlrev_b32 v{R0+k}, 2, v{R0+k}
v_lshl_add_u32 v{DST+k}, v{OWN+k}, 8, s61
""")
    o(f"""
v_lshrrev_b32 v38, 16, v{EA}
v_lshrrev_b32 v39, 16, v{EA+1}
s_waitcnt lgkmcnt(0)
v_max3_u32 v{TMP}, v{RK}, v{RK+1}, v{RK+2}
v_max_u32 v{TMP}, v{TMP}, v{RK+3}
v_cmp_le_u32 vcc, {CAP}, v{TMP}
""")
    for k in range(4):
        o(f"""
v_mul_u32_u24 v{SRC+k}, 37, v{RK+k}
v_lshrrev_b32 v{SRC+k}, 8, v{SRC+k}
v_add_u32 v{SRC+k}, v{SRC+k}, v{RK+k}
v_lshl_add_u32 v{DST+k}, v{SRC+k}, 3, v{DST+k}
""")
    o("s_cbranch_vccnz F_ovf")
    for k in range(4):
        o(f"ds_write2_b32 v{DST+k}, v{R0+k}, v{EW[k]} offset0:2 offset1:3")
    o("F_ovfback:\ns_mov_b64 exec, -1")

def bin_overflow(o):
    o(f"F_ovf:\ns_mul_i32 s50, s2, {CHUNK*8}\ns_add_u32 s50, s50, {WS_OVF}\nv_mov_b32 v{TMP}, {L_BCNT+1024}")
    for k in range(4):
        o(f"""
v_cmp_gt_u32 vcc, {CAP}, v{RK+k}
s_and_saveexec_b64 s[62:63], vcc
ds_write2_b32 v{DST+k}, v{R0+k}, v{EW[k]} offset0:2 offset1:3
s_andn2_b64 exec, s[62:63], exec
s_cbranch_execz F_no{k}
ds_add_rtn_u32 v{TMP+4}, v{TMP}, v{TMP+3}
v_mov_b32 v{TMP+1}, v{R0+k}
v_and_b32 v{TMP+2}, 0xffff, v{EW[k]}
v_lshl_or_b32 v{TMP+2}, v{OWN+k}, 16, v{TMP+2}
s_waitcnt lgkmcnt(0)
v_lshlrev_b32 v{TMP+4}, 3, v{TMP+4}
buffer_store_dwordx2 {vr(TMP+1,2)}, v{TMP+4}, s[32:35], s50 offen sc1
s_waitcnt vmcnt(0)
F_no{k}:
s_mov_b64 exec, s[62:63]
""")
    o("s_branch F_ovfback")

def bin_copy(o):
    o(f"""
v_lshrrev_b32 v56, 3, v0
v_and_b32 v57, 7, v0
v_lshlrev_b32 v57, 4, v57
v_lshl_add_u32 v58, v56, 8, v57
v_lshl_add_u32 v59, v56, 14, v57
v_add_u32 v58, s61, v58
v_lshl_add_u32 v56, v56, 2, s60
ds_read_b32 v36, v56
ds_read_b32 v37, v56 offset:512
ds_read_b128 v[28:31], v58
ds_read_b128 v[32:35], v58 offset:32768
ds_read_b128 v[48:51], v58 offset:128
ds_read_b128 v[52:55], v58 offset:{32768+128}
v_mov_b32 v38, {L_BCNT+1024}
ds_read_b32 v38, v38
v_and_b32 v57, 48, v57
v_cmp_eq_u32 s[{sBM}:{sBM+1}], 0, v57
s_lshl_b32 s49, s2, 8
s_add_u32 s49, s49, {WS_CELL}
s_add_u32 s50, s49, {128*16384}
v_mov_b32 v57, 0x7ffff000
v_mov_b32 v39, s100
s_waitcnt lgkmcnt(5)
v_cmp_lt_u32 vcc, 14, v36
v_min_u32 v36, {CAP}, v36
v_cmp_lt_u32 s[62:63], 14, v37
v_min_u32 v37, {CAP}, v37
v_cndmask_b32 v56, v57, v59, vcc
v_cndmask_b32 v57, v57, v59, s[62:63]
""")
    for n, (reg, cnt, adr, so, off) in enumerate(((28, 36, 59, 49, 0), (32, 37, 59, 50, 0), (48, 36, 56, 49, 128), (52, 37, 57, 50, 128))):
        o(f"""
s_waitcnt lgkmcnt({4 - n})
v_cndmask_b32 v{reg}, v{reg}, v{cnt}, s[{sBM}:{sBM+1}]
v_cndmask_b32 v{reg+1}, v{reg+1}, v39, s[{sBM}:{sBM+1}]
buffer_store_dwordx4 {vr(reg,4)}, v{adr}, s[32:35], s{so} offen offset:{off} sc1
""")
    o(f"""
s_cmp_lg_u32 s{sWAVE}, 0
s_cbranch_scc1 F_bc1
s_lshl_b32 s50, s2, 3
s_add_u32 s50, s50, {WS_OVFC}
s_mov_b64 exec, 1
s_waitcnt lgkmcnt(0)
buffer_store_dwordx2 v[38:39], v{VTG}, s[32:35], s50 offen sc1
s_mov_b64 exec, -1
F_bc1:
""")

def gen(o):
    XNT = "" if "nont" in OPT else "nt"
    AA = [A0, A1]
    TT = [T0, T1]
    o(f"""
.globl {KNAME}
.p2align 8
.type {KNAME},@function
{KNAME}:
s_cmp_ge_u32 s2, 256
s_cbranch_scc1 L_end
s_load_dwordx2 s[28:29], s[0:1], 0
s_load_dwordx2 s[44:45], s[0:1], 32
s_load_dwordx2 s[36:37], s[0:1], 24
s_load_dwordx2 s[12:13], s[0:1], 16
s_load_dwordx2 s[52:53], s[0:1], 8
s_load_dwordx2 s[40:41], s[0:1], 40
s_load_dwordx2 s[32:33], s[0:1], 64
s_load_dwordx2 s[96:97], s[0:1], 56
s_load_dwordx2 s[20:21], s[0:1], 48
s_memrealtime s[100:101]
""")
    if STAMP: o("s_memrealtime s[80:81]")
    o(f"""
v_lshrrev_b32 v2, 6, v0
v_and_b32 v1, 63, v0
s_mul_i32 s{sN0}, s2, 625
v_readfirstlane_b32 s{sWAVE}, v2
v_lshrrev_b32 v4, 5, v1
v_and_b32 v6, 31, v1
s_add_u32 s{sCNT}, s{sN0}, 640
s_add_u32 s{sN0}, s{sN0}, 15
s_lshr_b32 s{sN0}, s{sN0}, 4
s_lshl_b32 s50, s{sWAVE}, 1
v_add_u32 v5, s50, v4
v_lshlrev_b32 v2, 4, v0
v_and_b32 v7, 15, v5
v_xor_b32 v7, v7, v6
v_lshlrev_b32 v7, 4, v7
v_lshl_add_u32 v7, v4, 9, v7
s_mov_b32 s30, {N*512}
s_mov_b32 s31, 0x20000
s_mov_b32 s46, {513*512}
s_mov_b32 s47, 0x20000
s_mov_b32 s42, {512*512}
s_mov_b32 s43, 0x20000
s_mov_b32 s38, 640000
s_mov_b32 s39, 0x20000
s_mov_b32 s14, 640000
s_mov_b32 s15, 0x20000
s_mov_b32 s54, 320000
s_mov_b32 s55, 0x20000
s_lshl_b32 s{sSO}, s{sWAVE}, 10
s_lshl_b32 s51, s{sN0}, 9
s_add_u32 s51, s51, s{sSO}
v_and_b32 v{TMP}, 3, v5
v_bfe_u32 v{TMP+1}, v5, 3, 1
v_lshl_or_b32 v{TMP}, v{TMP+1}, 2, v{TMP}
v_lshlrev_b32 v{TMP}, 1, v{TMP}
v_xor_b32 v{TMP}, v{TMP}, v6
v_lshlrev_b32 v{TMP}, 4, v{TMP}
v_lshl_add_u32 v{VWS}, v4, 9, v{TMP}
v_lshlrev_b32 v{LO}, 2, v1
s_sub_u32 s48, s2, 64
s_waitcnt lgkmcnt(0)
s_cmp_ge_u32 s48, 24
s_cbranch_scc1 F_npd
s_cmp_ge_u32 s48, 8
s_cselect_b32 s36, s40, s44
s_cselect_b32 s37, s41, s45
s_mov_b32 s38, {512*512}
s_lshl_b32 s49, s48, 14
s_add_u32 s49, s49, 131072
s_and_b32 s49, s49, {512*512 - 1}
s_add_u32 m0, s{sSO}, {L_IMG}
s_add_u32 s49, s49, s{sSO}
buffer_load_dwordx4 v{VWS}, s[36:39], s49 offen lds
s_barrier
F_npd:
s_add_u32 m0, s{sSO}, {L_XS}
s_cmp_ge_u32 s{sWAVE}, 4
buffer_load_dwordx4 v7, s[28:31], s51 offen {XNT} lds
s_cbranch_scc1 F_nox2
s_add_u32 m0, s{sSO}, {L_XS + 16384}
s_add_u32 s50, s51, 16384
buffer_load_dwordx4 v7, s[28:31], s50 offen {XNT} lds
F_nox2:
s_cmp_lg_u32 s{sWAVE}, 15
s_cbranch_scc1 F_ntc
s_lshr_b32 s49, s2, 3
s_lshl_b32 s49, s49, 12
v_lshlrev_b32 v5, 6, v1
buffer_load_dword v{TMP}, v5, s[44:47], s49 offen
F_ntc:
""")
    ops = []
    def vm(target):
        return len(ops) - 1 - max(i for i, x in enumerate(ops) if x == target)
    def dma(s):
        o(f"""
s_add_u32 m0, s{sSO}, {(s & 3) * 16384}
s_add_u32 s{sM0}, s{sSO}, {s * 16384}
buffer_load_dwordx4 v{VWS}, s[44:47], s{sM0} offen lds
""")
        ops.append(("d", s))
    for s in range(4):
        dma(s)
        if s < 2 and "nokmaj" not in OPT:
            o("s_barrier")
    o(f"""
s_mov_b32 s50, {512*512}
buffer_load_dword v{W3}, v{LO}, s[44:47], s50 offen
buffer_load_dword v{W3+1}, v{LO}, s[44:47], s50 offen offset:256
s_cmp_ge_u32 s2, 64
s_cbranch_scc1 F_nobl
v_lshlrev_b32 v6, 2, v0
v_add_u32 v6, {L_BCNT}, v6
v_mov_b32 v4, 0
s_movk_i32 s57, 625
v_cmp_gt_u32 s[{sBM}:{sBM+1}], s57, v0
s_mov_b32 s56, 429497
s_mov_b32 s60, {L_BCNT}
s_mov_b32 s61, {L_IMG}
s_cmp_ge_u32 s{sWAVE}, 5
s_cbranch_scc1 F_nobl
ds_write_b32 v6, v4
F_nobl:
s_mov_b32 s34, {WS_END}
s_mov_b32 s35, 0x20000
s_mov_b32 s98, 256
s_mov_b32 s99, 0x20000
v_mov_b32 v{VTG}, 0
s_cmp_lg_u32 s2, 255
s_cbranch_scc1 F_nont
s_cmp_lg_u32 s{sWAVE}, 0
s_cbranch_scc1 F_nont
s_or_b32 s49, s100, 1
v_mov_b32 v4, s49
v_mov_b32 v5, s101
s_mov_b64 exec, 1
buffer_store_dwordx2 v[4:5], v{VTG}, s[96:99], 0 offen sc1
s_mov_b64 exec, -1
F_nont:
s_lshr_b32 s{sCNT}, s{sCNT}, 4
s_sub_u32 s{sCNT}, s{sCNT}, s{sN0}
v_lshlrev_b32 v{VC}, 3, v1
v_lshrrev_b32 v3, 4, v1
v_and_b32 v4, 15, v1
v_xor_b32 v{VXA}, v4, v3
v_lshlrev_b32 v{VXA}, 4, v{VXA}
v_lshl_add_u32 v{VXA}, v4, 9, v{VXA}
v_add_u32 v{VXA}, {L_XS}, v{VXA}
v_bfe_u32 v5, v1, 2, 2
v_and_b32 v6, 3, v1
v_lshl_add_u32 v{VWA}, v3, 3, v5
v_lshlrev_b32 v{VWA}, 9, v{VWA}
v_lshl_add_u32 v{VWA}, v6, 3, v{VWA}
v_and_b32 v6, 1, v3
v_lshl_or_b32 v6, v6, 2, v5
v_xor_b32 v6, s{sWAVE}, v6
v_lshl_add_u32 v{VWA}, v6, 5, v{VWA}
v_add_u32 v{TMP+4}, {L_CNT}, v{LO}
ds_write2st64_b32 v{TMP+4}, v{VTG}, v{VTG} offset0:0 offset1:1
s_mov_b32 s{sSC}, {NEGL2E:#x}
s_mov_b32 s{sSC+1}, {NEGL2E:#x}
s_movk_i32 s{sT0}, {PSTR}
v_mul_u32_u24 v{VN}, s{sT0}, v4
v_lshl_add_u32 v{VN}, v3, 3, v{VN}
s_lshl_b32 s{sT1}, s{sWAVE}, 5
s_add_u32 s{sT1}, s{sT1}, {L_PST}
v_add_u32 v{VN}, s{sT1}, v{VN}
s_lshl_b32 s{sT1}, s{sWAVE}, 2
v_lshrrev_b32 v{VB}, 5, v1
v_add_u32 v{VB}, s{sT1}, v{VB}
v_add_u32 v5, 2, v{VB}
v_cmp_gt_u32 vcc, s{sCNT}, v5
v_mul_u32_u24 v{VB}, s{sT0}, v{VB}
v_and_b32 v5, 31, v1
v_lshl_add_u32 v{VB}, v5, 4, v{VB}
v_add_u32 v{VB}, {L_PST}, v{VB}
v_lshlrev_b32 v{VE}, 4, v1
v_add_u32 v{VI}, 1024, v{VE}
v_mov_b32 v5, 0x7ffffff0
v_cndmask_b32 v{VI}, v5, v{VI}, vcc
s_cmp_ge_u32 s48, 24
s_cbranch_scc1 F_d0
s_waitcnt vmcnt(7)
s_barrier
v_add_u32 v40, {L_IMG}, v{VWA}
ds_read_b64_tr_b16 v[44:45], v40
ds_read_b64_tr_b16 v[46:47], v40 offset:2048
s_lshl_b32 s50, s{sWAVE}, 13
s_and_b32 s49, s48, 7
s_lshl_b32 s49, s49, 10
s_add_u32 s50, s50, s49
s_lshr_b32 s49, s48, 3
s_lshl_b32 s49, s49, 17
s_add_u32 s50, s50, s49
s_add_u32 s50, s50, {WS_WPACK}
v_lshlrev_b32 v41, 4, v1
s_waitcnt lgkmcnt(0)
buffer_store_dwordx4 v[44:47], v41, s[32:35], s50 offen sc1
buffer_load_dwordx2 {vr(TAG,2)}, v{VTG}, s[96:99], 0 offen sc1
s_waitcnt vmcnt(0)
s_barrier
s_cmp_lg_u32 s{sWAVE}, 0
s_cbranch_scc1 F_d0
""")
    get_tag(o, "d")
    o(f"s_lshl_b32 s{sT0}, s48, 7\ns_add_u32 s{sT0}, s{sT0}, {WS_FLAG + 256*128}")
    put_flag(o, f"s{sT0}")
    o("F_d0:")
    ops += ["w3", "w3"]
    def st(name):
        if name in STEPS: stamp(o, (1, 2, 3, 4, 6)[STEPS.index(name)])
    def reads(s):
        a = VXA
        if s:
            a = TMP + 6
            o(f"v_xor_b32 v{a}, {64*s}, v{VXA}")
        xf, wf = XFB[s & 1], WFB[s & 1]
        o(f"ds_read_b64_tr_b16 {vr(wf,2)}, v{VWA} offset:{(s&3)*16384}")
        o(f"ds_read_b64_tr_b16 {vr(wf+2,2)}, v{VWA} offset:{(s&3)*16384 + 2048}")
        for rt in range(3):
            o(f"ds_read_b128 {vr(xf+4*rt,4)}, v{a} offset:{rt*8192}")
    def wait_bin(n, extra, lab, tail):
        o(f"s_cmp_lt_u32 s2, 64\ns_cbranch_scc1 {lab}\ns_waitcnt vmcnt({n})\n{lab}:\ns_waitcnt vmcnt({n + extra}){tail}")
    for s in range(-1, 8):
        n = vm(("d", s + 1)) if s < 7 else None
        if 4 <= s <= 6:
            wait_bin(n, 3, f"F_wb{s+1}", " lgkmcnt(0)\ns_barrier")
        elif n is not None:
            o(f"s_waitcnt vmcnt({n}) lgkmcnt(0)\ns_barrier")
        else:
            o("s_waitcnt lgkmcnt(0)\ns_barrier")
        st(f"s{s}")
        if s == 0:
            o(f"buffer_load_dwordx2 {vr(TG0,2)}, v{VTG}, s[96:99], 0 offen sc1")
            ops.append("tag")
        if 0 <= s <= 3:
            dma(s + 4)
        if s == 3:
            o(f"""
s_cmp_ge_u32 s2, 64
s_cbranch_scc1 F_nel
s_mul_i32 s49, s2, 10000
s_mul_i32 s50, s2, 5000
v_lshlrev_b32 v5, 3, v0
buffer_load_dwordx4 {vr(DST,4)}, v2, s[36:39], s49 offen {XNT}
buffer_load_dwordx4 {vr(SRC,4)}, v2, s[12:15], s49 offen {XNT}
buffer_load_dwordx2 {vr(EA,2)}, v5, s[52:55], s50 offen {XNT}
F_nel:
""")
        if s < 7:
            reads(s + 1)
        if s >= 0:
            for rt in range(3):
                c = "0" if s == 0 else vr(UA+4*rt, 4)
                o(f"v_mfma_f32_16x16x32_bf16 {vr(UA+4*rt,4)}, {vr(WFB[s&1],4)}, {vr(XFB[s&1]+4*rt,4)}, {c}")
        if s == 3:
            o(f"v_mov_b64 {vr(TAG,2)}, {vr(TG0,2)}")
            get_tag(o, "m")
    o(f"s_mov_b64 s[8:9], s[32:33]\ns_mov_b32 s10, {N*512}\ns_mov_b32 s11, 0x20000\ns_nop 2")
    for rt in range(3):
        a_ = UA + 4*rt
        o(f"""
v_pk_mul_f32 {vr(a_,2)}, {vr(a_,2)}, s[{sSC}:{sSC+1}]
v_pk_mul_f32 {vr(a_+2,2)}, {vr(a_+2,2)}, s[{sSC}:{sSC+1}]
v_cvt_pk_bf16_f32 v{T0+2*rt}, v{a_}, v{a_+1}
v_cvt_pk_bf16_f32 v{T0+2*rt+1}, v{a_+2}, v{a_+3}
ds_write_b64 v{VN}, {vr(T0+2*rt,2)} offset:{rt*16*PSTR}
""")
    PSF = {"ps_nt": "sc1 nt", "ps_01": "sc0 sc1"}
    PSF = next((v for k, v in PSF.items() if k in OPT), "sc1")
    o(f"""
s_lshl_b32 s{sT2}, s{sN0}, 9
s_lshl_b32 s{sT1}, s{sWAVE}, 11
s_add_u32 s{sT2}, s{sT2}, s{sT1}
s_waitcnt lgkmcnt(0)
s_barrier
s_cmp_ge_u32 s{sWAVE}, 10
s_cbranch_scc1 F_nps
ds_read_b128 {vr(T0,4)}, v{VB}
ds_read_b128 {vr(T1,4)}, v{VB} offset:{2*PSTR}
s_waitcnt lgkmcnt(1)
buffer_store_dwordx4 {vr(T0,4)}, v{VE}, s[8:11], s{sT2} offen {PSF}
s_waitcnt lgkmcnt(0)
buffer_store_dwordx4 {vr(T1,4)}, v{VI}, s[8:11], s{sT2} offen {PSF}
s_branch F_npa
F_nps:
s_cmp_lg_u32 s{sWAVE}, 10
s_cbranch_scc1 F_npa
s_mov_b32 s{sT0}, {WS_FLAG + 256*128}
""")
    poll(o, "a", f"s{sT0}", 16)
    o(f"""
s_lshr_b32 s{sT0}, s2, 3
s_lshl_b32 s{sT0}, s{sT0}, 13
s_add_u32 s{sT0}, s{sT0}, {WS_WPACK}
s_add_u32 s{sT1}, s{sT0}, 4096
v_lshlrev_b32 v{TMP}, 6, v1
buffer_load_dword v26, v{TMP}, s[32:35], s{sT0} offen sc1
buffer_load_dword v27, v{TMP}, s[32:35], s{sT1} offen sc1
F_npa:
s_barrier
""")
    st("pst")
    wloads(o, 0)
    o("s_cmp_ge_u32 s2, 64\ns_cbranch_scc1 F_nbr\ns_waitcnt vmcnt(10)\ns_cmp_lt_u32 s3, 10\ns_cbranch_scc1 F_bw\ns_waitcnt vmcnt(8)\nF_bw:")
    bin_rank(o)
    o("s_waitcnt lgkmcnt(0)\ns_barrier")
    bin_copy(o)
    o(f"""
F_nbr:
v_and_b32 v{TMP}, 3, v1
v_bfe_u32 v{TMP+1}, v1, 2, 2
v_cmp_eq_u32 vcc, v{TMP+1}, v3
v_and_b32 v{TMP+2}, 1, v1
v_lshlrev_b32 v{TMP+2}, 4, v{TMP+2}
v_mov_b32 v{TMP+3}, 0x3f80
v_lshlrev_b32 v{TMP+3}, v{TMP+2}, v{TMP+3}
v_cndmask_b32 v{TMP+3}, 0, v{TMP+3}, vcc
v_xor_b32 v{VEL}, 2, v{TMP}
v_lshlrev_b32 v{VEL}, 2, v{VEL}
v_add_u32 v{VEL}, {L_ET}, v{VEL}
v_mov_b32 v{TMP+2}, 0x30000
v_cndmask_b32 v{VEL}, v{TMP+2}, v{VEL}, vcc
v_cmp_gt_u32 vcc, 2, v{TMP}
s_mov_b32 s{sONE}, 1.0
s_mov_b32 s{sONE+1}, 1.0
v_cndmask_b32 v24, 0, v{TMP+3}, vcc
v_cndmask_b32_e64 v25, v{TMP+3}, 0, vcc
v_lshlrev_b32 v{TMP}, 16, v{W3}
v_and_b32 v{TMP+1}, 0xffff0000, v{W3}
v_lshlrev_b32 v{TMP+2}, 16, v{W3+1}
v_and_b32 v{TMP+3}, 0xffff0000, v{W3+1}
v_mul_f32 v{TMP}, s{sSC}, v{TMP}
v_mul_f32 v{TMP+1}, s{sSC}, v{TMP+1}
v_mul_f32 v{TMP+2}, s{sSC}, v{TMP+2}
v_mul_f32 v{TMP+3}, s{sSC}, v{TMP+3}
v_cvt_pk_bf16_f32 v{W3}, v{TMP}, v{TMP+1}
v_cvt_pk_bf16_f32 v{W3+1}, v{TMP+2}, v{TMP+3}
s_mov_b32 s{sBND}, 0x7b800000
s_mov_b32 s{sW1}, 0
s_mov_b64 s[40:41], s[20:21]
s_mov_b32 s42, {N*512}
s_mov_b64 s[36:37], s[32:33]
s_mov_b32 s38, {N*512}
s_mov_b32 s39, 0x20000
s_mov_b32 s{sLN2}, {NEGLN2:#x}
s_mov_b32 s{sLN2+1}, {NEGLN2:#x}
s_movk_i32 s{sT0}, {RS}
v_and_b32 v{VN}, 15, v1
v_mul_u32_u24 v{VN}, s{sT0}, v{VN}
v_lshl_add_u32 v{VN}, v3, 4, v{VN}
s_lshl_b32 s{sT0}, s{sWAVE}, 6
v_add_u32 v{VN}, s{sT0}, v{VN}
v_mov_b64 {vr(ZR,2)}, 0
v_mov_b64 {vr(ZR+2,2)}, 0
""")
    wait_bin(7, 4, "F_wd", " lgkmcnt(0)\ns_barrier")
    st("drain")
    o(f"s_cmp_lg_u32 s{sWAVE}, 0\ns_cbranch_scc1 F_nfp\ns_lshl_b32 s{sT0}, s2, 7\ns_add_u32 s{sT0}, s{sT0}, {WS_FLAG}")
    put_flag(o, f"s{sT0}")
    o(f"""
F_nfp:
s_lshl_b32 s{sT0}, s{sWAVE}, 13
s_add_u32 s{sT0}, s{sT0}, {WS_WPACK + 131072}
s_add_u32 s{sT1}, s{sT0}, 4096
""")
    def reg_gemm(acc, xf, waits, post=None):
        for ks in range(8):
            a = VXA
            if ks:
                a = TMP + 6
                o(f"v_xor_b32 v{a}, {64*ks}, v{VXA}")
            for rt in range(3):
                o(f"ds_read_b128 {vr(xf[rt],4)}, v{a} offset:{rt*8192}")
            waits(ks)
            for rt in range(3):
                o(f"s_waitcnt lgkmcnt({2-rt})")
                c = "0" if ks == 0 else vr(acc+4*rt, 4)
                o(f"v_mfma_f32_16x16x32_bf16 {vr(acc+4*rt,4)}, {vr(W+4*ks,4)}, {vr(xf[rt],4)}, {c}")
            if post: post(ks)
    reg_gemm(QA, [4, 8, 12], lambda ks: wait_bin(7, 4, f"F_wq{ks}", ""),
             lambda ks: o(f"buffer_load_dwordx4 {vr(W+4*ks,4)}, v{TMP+5}, s[32:35], s{sT0 if ks < 4 else sT1} offen offset:{(ks%4)*1024} sc1"))
    st("q")
    o(f"""
s_lshl_b32 s{sOFF}, s2, 14
s_add_u32 s{sOFF}, s{sOFF}, {WS_CELL}
buffer_load_dwordx4 {vr(REC,4)}, v2, s[32:35], s{sOFF} offen sc1
v_mov_b64 {vr(A0,2)}, v[24:25]
v_mov_b64 {vr(A1,2)}, v[24:25]
v_add_u32 v{TMP}, {L_ET}, v2
v_add_u32 v{TMP+1}, {L_AGB}, v2
ds_write_b128 v{TMP}, {vr(ZR,4)}
ds_write_b128 v{TMP}, {vr(ZR,4)} offset:16384
ds_write_b128 v{TMP}, {vr(ZR,4)} offset:16448
ds_write_b128 v{TMP+1}, {vr(ZR,4)}
ds_write_b128 v{TMP+1}, {vr(ZR,4)} offset:4096
""")
    for rt in range(3):
        o(f"""
v_pk_mul_f32 {vr(QA+4*rt,2)}, {vr(QA+4*rt,2)}, s[{sSC}:{sSC+1}]
v_pk_mul_f32 {vr(QA+4*rt+2,2)}, {vr(QA+4*rt+2,2)}, s[{sSC}:{sSC+1}]
ds_write_b128 v{VN}, {vr(QA+4*rt,4)} offset:{L_QS + rt*16*RS}
""")
    reg_gemm(UA, [4, 8, 12], lambda ks: o(f"s_waitcnt vmcnt({8 - ks})"))
    st("u")
    o(f"""
v_bfe_u32 v{RK0}, v0, 2, 2
v_mul_u32_u24 v{RK0}, 7, v{RK0}
v_and_b32 v{TMP}, 3, v0
v_lshl_add_u32 v{RK1}, v{TMP}, 1, v{RK0}
v_cmp_eq_u32 vcc, 0, v{TMP}
v_add_u32 v46, -1, v{RK1}
v_mov_b32 v47, 64
s_mov_b32 s{sT2}, 0
v_cndmask_b32 v46, v46, v47, vcc
s_mov_b32 s{sRND}, 0
s_waitcnt vmcnt(0)
F_cl:
v_mov_b32_dpp v{TMP}, v{REC+1} row_newbcast:0 row_mask:0xf bank_mask:0xf
v_mov_b32_dpp v{TMP+1}, v{REC} row_newbcast:0 row_mask:0xf bank_mask:0xf
v_mov_b32_dpp v{TMP+2}, v{REC+1} quad_perm:[0,0,0,0] row_mask:0xf bank_mask:0xf
v_cmp_eq_u32 vcc, s100, v{TMP}
v_cmp_ne_u32 s[{sM}:{sM+1}], s100, v{TMP+2}
s_add_u32 s{sT2}, s{sT2}, 1
v_cndmask_b32 v{TMP+1}, 0, v{TMP+1}, vcc
v_max_u32 v{TMP+3}, 1, v{TMP+1}
v_cmp_lt_u32 vcc, v{RK0}, v{TMP+3}
s_cmp_ge_u32 s{sT2}, 0x40000
s_cbranch_scc1 F_cd
s_and_b64 exec, vcc, s[{sM}:{sM+1}]
s_cbranch_execz F_cd
s_sleep 1
buffer_load_dwordx4 {vr(REC,4)}, v2, s[32:35], s{sOFF} offen sc1
s_mov_b64 exec, -1
s_waitcnt vmcnt(0)
s_branch F_cl
F_cd:
s_mov_b64 exec, -1
v_cmp_gt_u32 s[{sV0}:{sV0+1}], v{TMP+1}, v46
v_cmp_gt_u32 s[{sV1}:{sV1+1}], v{TMP+1}, v{RK1}
""")
    st("cell")
    sort_rank(o)
    for k in range(R):
        o(f"v_mov_b64 {vr(RING+4*k+2,2)}, {vr(W3,2)}")
    o("s_waitcnt lgkmcnt(0)\ns_barrier")
    sort_scatter(o)
    o(f"""
s_cmp_ge_u32 s{sWAVE}, 5
s_cbranch_scc1 F_npp
s_lshl_b32 s{sT0}, s{sWAVE}, 13
s_add_u32 s{sT0}, s{sT0}, {WS_FLAG}
s_cmp_eq_u32 s{sWAVE}, 4
s_cbranch_scc1 F_ppk
""")
    poll(o, "p", f"s{sT0}", 64)
    o(f"s_branch F_npp\nF_ppk:\ns_mov_b32 s{sT0}, {WS_FLAG + 272*128}")
    poll(o, "k", f"s{sT0}", 8)
    o(f"""
F_npp:
s_mov_b32 s{sT0}, {WS_OVFC}
buffer_load_dwordx2 {vr(VOVF,2)}, v{VC}, s[32:35], s{sT0} offen sc1
s_waitcnt lgkmcnt(0)
s_barrier
L_pr:
""")
    st("b3")
    zero_cnt(o)
    prime(o)
    o(f"""
L_go:
""")
    stamp(o, 5)
    o(f"""
s_mov_b64 vcc, 0
s_mov_b32 s{sK}, {KMAX}
s_add_u32 s{sRND}, s{sRND}, 1
s_cmp_ge_u32 s{sP}, s{sP1}
s_cbranch_scc1 L_loopdone
v_cmp_eq_u32 s[{sM}:{sM+1}], s{sP}, v{VEND}
s_sub_u32 s{sIT}, s{sP1}, s{sP}
s_add_u32 s{sIT}, s{sIT}, {R-1}
s_mul_i32 s{sIT}, s{sIT}, {-(-256 // R)}
s_lshr_b32 s{sIT}, s{sIT}, 8
s_cmp_eq_u32 s{sP}, 0
s_cselect_b32 s{sT2}, 1, 0
s_cmp_lg_u64 s[{sM}:{sM+1}], 0
s_cselect_b32 s{sT2}, 1, s{sT2}
s_xor_b32 s{sHEAD}, s{sT2}, 1
s_call_b64 s[{sRET}:{sRET+1}], L_newnode
s_setprio 3
s_waitcnt vmcnt({2*(R-1)}) lgkmcnt(0)
v_mfma_f32_16x16x32_bf16 {vr(T0,4)}, {vr(A0,4)}, {vr(RING,4)}, {vr(Q,4)}
s_nop 4
L_top:
""")
    for k in range(R):
        B = RING + 4*k
        B1 = RING + 4*((k+1) % R)
        ex, pk = valu_block(TT[k & 1])
        o(f"""
s_waitcnt vmcnt({2*(R-2)}) lgkmcnt(0)
v_add_u32 v{AD}, v{IX}, v{LO}
v_mfma_f32_16x16x32_bf16 {vr(TT[(k+1)&1],4)}, {vr(AA[(k+1)&1],4)}, {vr(B1,4)}, {vr(Q,4)}
{ex}
buffer_load_dword v{B}, v{AD}, s[36:39], 0 offen sc1
buffer_load_dword v{B+1}, v{AD}, s[36:39], 0 offen offset:256 sc1
ds_read_b32 v{IX}, v{VI} offset:{4*(k+R+1)}
ds_read2_b32 {vr(AA[k&1]+2,2)}, v{VE} offset0:{4*(k+2)} offset1:{4*(k+2)+2}
{pk}
s_sub_u32 s{sREM}, s{sREM}, 1
s_cbranch_scc1 L_call{k}
L_next{k}:
""")
    o(f"""
v_add_u32 v{VI}, {4*R}, v{VI}
v_add_u32 v{VE}, {16*R}, v{VE}
s_sub_u32 s{sIT}, s{sIT}, 1
s_cmp_ge_u32 s{sIT}, 4
s_cbranch_scc1 L_top
s_setprio 2
s_cmp_eq_u32 s{sIT}, 3
s_cbranch_scc1 L_top
s_setprio 1
s_cmp_eq_u32 s{sIT}, 2
s_cbranch_scc1 L_top
s_setprio 0
s_branch L_top
""")
    for k in range(R):
        B1 = RING + 4*((k+1) % R)
        o(f"""
L_call{k}:
s_call_b64 s[{sRET}:{sRET+1}], L_flush
s_cbranch_scc0 L_special
s_waitcnt lgkmcnt(0)
v_mfma_f32_16x16x32_bf16 {vr(TT[(k+1)&1],4)}, {vr(AA[(k+1)&1],4)}, {vr(B1,4)}, {vr(Q,4)}
s_nop 3
s_branch L_next{k}
""")
    o(f"""
L_flush:
v_rcp_f32 v{E}, v{D}
v_rcp_f32 v{E+1}, v{D+1}
v_rcp_f32 v{E+2}, v{D+2}
v_rcp_f32 v{E+3}, v{D+3}
s_mov_b32 s{sP}, s{sSEGE}
s_cbranch_vccnz L_nochk
v_pk_fma_f32 {vr(CK,2)}, {vr(NN,2)}, 0, {vr(D,2)}
v_pk_fma_f32 {vr(CK+2,2)}, {vr(NN+2,2)}, 0, {vr(D+2,2)}
v_pk_add_f32 {vr(CK,2)}, {vr(CK,2)}, {vr(CK+2,2)}
v_add_f32 v{CK}, v{CK}, v{CK+1}
v_cmp_nle_f32 s[{sM}:{sM+1}], v{CK}, s{sBND}
s_nop 3
s_cmp_eq_u64 s[{sM}:{sM+1}], 0
s_cbranch_scc1 L_nochk
s_mov_b32 s{sP}, s{sSEGS}
s_setpc_b64 s[{sRET}:{sRET+1}]
L_nochk:
v_pk_fma_f32 {vr(AC,2)}, {vr(NN,2)}, {vr(E,2)}, {vr(AC,2)}
v_pk_fma_f32 {vr(AC+2,2)}, {vr(NN+2,2)}, {vr(E+2,2)}, {vr(AC+2,2)}
s_cmp_lg_u32 s{sW1}, 0
s_cbranch_scc1 L_havew
s_mov_b32 s{sW1}, 1
""")
    wloads(o)
    o(f"""
L_havew:
s_cmp_eq_u32 s{sP}, s{sNEND}
s_cbranch_scc1 L_fin
s_cmp_lg_u32 s{sP}, s{sP1}
s_cbranch_scc1 L_reinit
s_cmp_lg_u32 s{sHEAD}, 0
s_cbranch_scc1 L_pub
s_mov_b32 s{sT0}, s{sWAVE}
s_mov_b32 s{sT1}, s{sP1}
L_col:
s_add_u32 s{sT0}, s{sT0}, 1
s_lshl_b32 s{sT2}, s{sT0}, 2
s_add_u32 s{sT2}, s{sT2}, {L_HF}
v_mov_b32 v{CK}, s{sT2}
L_poll:
ds_read_b32 v{CK+1}, v{CK}
s_waitcnt lgkmcnt(0)
v_readfirstlane_b32 s{sT2}, v{CK+1}
s_nop 3
s_cmp_eq_u32 s{sT2}, s{sRND}
s_cbranch_scc1 L_got
s_sleep 1
s_branch L_poll
L_got:
s_lshl_b32 s{sT2}, s{sT0}, 10
s_add_u32 s{sT2}, s{sT2}, {L_HB}
v_add_u32 v{CK}, s{sT2}, v{VC}
ds_read2st64_b64 {vr(E,4)}, v{CK} offset0:0 offset1:1
s_add_u32 s{sT1}, s{sT1}, s{sCH}
s_waitcnt lgkmcnt(0)
v_pk_add_f32 {vr(AC,2)}, {vr(AC,2)}, {vr(E,2)}
v_pk_add_f32 {vr(AC+2,2)}, {vr(AC+2,2)}, {vr(E+2,2)}
s_cmp_lt_u32 s{sT1}, s{sNEND}
s_cbranch_scc1 L_col
s_branch L_wr
L_fin:
s_cmp_lg_u32 s{sHEAD}, 0
s_cbranch_scc1 L_pub
L_wr:
v_pk_mul_f32 {vr(AC,2)}, {vr(AC,2)}, s[{sLN2}:{sLN2+1}]
v_pk_mul_f32 {vr(AC+2,2)}, {vr(AC+2,2)}, s[{sLN2}:{sLN2+1}]
v_cvt_pk_bf16_f32 v{E}, v{AC}, v{AC+1}
v_cvt_pk_bf16_f32 v{E+1}, v{AC+2}, v{AC+3}
ds_write2st64_b32 v{VB}, v{E}, v{E+1} offset0:0 offset1:1
L_more:
s_mov_b32 s{sHEAD}, 0
s_cmp_lg_u32 s{sP}, s{sP1}
s_cbranch_scc1 L_newnode
s_setpc_b64 s[{sRET}:{sRET+1}]
L_pub:
s_lshl_b32 s{sT2}, s{sWAVE}, 10
s_add_u32 s{sT2}, s{sT2}, {L_HB}
v_add_u32 v{CK}, s{sT2}, v{VC}
s_lshl_b32 s{sT2}, s{sWAVE}, 2
s_add_u32 s{sT2}, s{sT2}, {L_HF}
v_mov_b32 v{CK+1}, s{sT2}
v_mov_b32 v{CK+2}, s{sRND}
ds_write2st64_b64 v{CK}, {vr(AC,2)}, {vr(AC+2,2)} offset0:0 offset1:1
s_waitcnt lgkmcnt(0)
ds_write_b32 v{CK+1}, v{CK+2}
s_branch L_more
L_old:
s_cmp_lg_u32 s{sHEAD}, 0
s_cbranch_scc1 L_reinit
ds_read2st64_b32 {vr(E,2)}, v{VB} offset0:0 offset1:1
s_waitcnt lgkmcnt(0)
v_lshlrev_b32 v{AC}, 16, v{E}
v_and_b32 v{AC+1}, 0xffff0000, v{E}
v_lshlrev_b32 v{AC+2}, 16, v{E+1}
v_and_b32 v{AC+3}, 0xffff0000, v{E+1}
v_pk_mul_f32 {vr(AC,2)}, {vr(AC,2)}, s[{sSC}:{sSC+1}]
v_pk_mul_f32 {vr(AC+2,2)}, {vr(AC+2,2)}, s[{sSC}:{sSC+1}]
s_branch L_reinit
L_newnode:
v_cmp_ge_u32 s[{sM}:{sM+1}], s{sP}, v{VEND}
v_mov_b64 {vr(AC,2)}, 0
v_mov_b64 {vr(AC+2,2)}, 0
s_nop 1
s_bcnt1_i32_b64 s{sT0}, s[{sM}:{sM+1}]
s_mul_i32 s{sT1}, s{sT0}, {RS}
v_readlane_b32 s{sNEND}, v{VEND}, s{sT0}
v_add_u32 v{VN}, s{sT1}, v{VC}
ds_read2st64_b64 {vr(Q,4)}, v{VN} offset0:0 offset1:1
s_and_b32 s{sT1}, s{sT0}, 15
s_lshl_b32 s{sT1}, s{sT1}, 4
s_lshl_b32 s{sT0}, s{sT0}, 9
s_or_b32 s{sT0}, s{sT0}, s{sT1}
s_add_u32 s{sT0}, s{sT0}, {L_AGB}
v_xor_b32 v{VB}, s{sT0}, v{LO}
s_cmp_lg_u32 s{sRND}, 1
s_cbranch_scc1 L_old
L_reinit:
v_mov_b64 {vr(NN,2)}, 0
v_mov_b64 {vr(NN+2,2)}, 0
v_mov_b64 {vr(D,2)}, s[{sONE}:{sONE+1}]
v_mov_b64 {vr(D+2,2)}, s[{sONE}:{sONE+1}]
s_mov_b32 s{sSEGS}, s{sP}
s_add_u32 s{sSEGE}, s{sP}, s{sK}
s_min_u32 s{sSEGE}, s{sSEGE}, s{sNEND}
s_min_u32 s{sSEGE}, s{sSEGE}, s{sP1}
s_sub_u32 s{sREM}, s{sSEGE}, s{sP}
s_sub_u32 s{sREM}, s{sREM}, 1
s_cmp_eq_u32 s{sP}, s{sP}
s_setpc_b64 s[{sRET}:{sRET+1}]
L_special:
s_cmp_eq_u32 s{sP}, s{sP1}
s_cbranch_scc1 L_loopdone
s_mov_b64 vcc, -1
s_mov_b32 s{sK}, 1
s_waitcnt vmcnt(0) lgkmcnt(0)
s_call_b64 s[{sRET}:{sRET+1}], L_reinit
L_slow:
s_lshl_b32 s{sT0}, s{sP}, 2
s_add_u32 s{sT0}, s{sT0}, {L_IDX}
v_mov_b32 v{VI}, s{sT0}
s_lshl_b32 s{sT0}, s{sP}, 4
v_add_u32 v{VE}, s{sT0}, v{VEL}
ds_read_b32 v{IX}, v{VI}
ds_read2_b32 {vr(A0+2,2)}, v{VE} offset0:0 offset1:2
s_waitcnt lgkmcnt(0)
v_add_u32 v{AD}, v{IX}, v{LO}
buffer_load_dword v{RING}, v{AD}, s[36:39], 0 offen sc1
buffer_load_dword v{RING+1}, v{AD}, s[36:39], 0 offen offset:256 sc1
s_waitcnt vmcnt(0)
v_mfma_f32_16x16x32_bf16 {vr(T0,4)}, {vr(A0,4)}, {vr(RING,4)}, {vr(Q,4)}
s_nop 7
v_min_f32 v{T0}, 0x42fc0000, v{T0}
v_min_f32 v{T0+1}, 0x42fc0000, v{T0+1}
v_min_f32 v{T0+2}, 0x42fc0000, v{T0+2}
v_min_f32 v{T0+3}, 0x42fc0000, v{T0+3}
{valu_block(T0)[0]}
{valu_block(T0)[1]}
s_call_b64 s[{sRET}:{sRET+1}], L_flush
s_cbranch_scc1 L_slow
L_loopdone:
""")
    if len(STEPS) < 5: stamp(o, 6)
    o(f"""
s_setprio 0
s_cmp_lg_u32 s{sW1}, 0
s_cbranch_scc1 L_ld2
s_mov_b32 s{sW1}, 1
""")
    wloads(o)
    o(f"""
L_ld2:
s_cmp_lg_u32 s{sRND}, 1
s_cbranch_scc1 L_rn0
s_mov_b32 s{sOB}, 0
s_mov_b32 s{sT0}, {WS_OVFC}
L_ov:
s_waitcnt vmcnt(0)
v_cmp_ne_u32 vcc, s100, v{VOVF+1}
v_cmp_ne_u32 s[{sOM}:{sOM+1}], 0, v{VOVF}
s_add_u32 s{sOB}, s{sOB}, 1
s_cmp_ge_u32 s{sOB}, 0x40000
s_cbranch_scc1 L_ovd
s_nop 0
s_cbranch_vccz L_ovd
buffer_load_dwordx2 {vr(VOVF,2)}, v{VC}, s[32:35], s{sT0} offen sc1
s_branch L_ov
L_ovd:
s_mov_b32 s{sOB}, 0
L_rn0:
v_and_b32 v{TMP}, 15, v1
v_xor_b32 v{TMP+1}, v{TMP}, v3
v_lshlrev_b32 v{TMP+1}, 4, v{TMP+1}
v_lshl_add_u32 v{TMP+1}, v{TMP}, 9, v{TMP+1}
v_add_u32 v{TMP+1}, {L_AGB}, v{TMP+1}
s_waitcnt vmcnt(0) lgkmcnt(0)
s_barrier
s_cmp_eq_u64 s[{sOM}:{sOM+1}], 0
s_cbranch_scc0 L_round
""")
    FXF = [T0, T1, E]
    for ks in range(8):
        a = TMP + 1
        if ks:
            a = TMP + 6
            o(f"v_xor_b32 v{a}, {64*ks}, v{TMP+1}")
        for rt in range(3):
            o(f"ds_read_b128 {vr(FXF[rt],4)}, v{a} offset:{rt*8192}")
        for rt in range(3):
            o(f"s_waitcnt lgkmcnt({2-rt})")
            o(f"v_mfma_f32_16x16x32_bf16 {vr(UA+4*rt,4)}, {vr(W+4*ks,4)}, {vr(FXF[rt],4)}, {vr(UA+4*rt,4)}")
    o(f"""
v_add_u32 v{TMP+2}, s{sN0}, v{TMP}
v_lshlrev_b32 v{TMP+2}, 9, v{TMP+2}
v_lshl_add_u32 v{TMP+2}, v3, 3, v{TMP+2}
s_lshl_b32 s{sT0}, s{sWAVE}, 5
s_add_u32 s{sT1}, s{sT0}, 8192
s_add_u32 s{sT2}, s{sT0}, 16384
s_sub_u32 s{sCNT}, s{sCNT}, 32
s_nop 1
""")
    T = NN
    for rt in range(3):
        a = UA + 4*rt
        o(f"""
v_pk_mul_f32 {vr(T,2)}, {vr(a,2)}, s[{sSC}:{sSC+1}]
v_pk_mul_f32 {vr(T+2,2)}, {vr(a+2,2)}, s[{sSC}:{sSC+1}]
v_exp_f32 v{T}, v{T}
v_exp_f32 v{T+1}, v{T+1}
v_exp_f32 v{T+2}, v{T+2}
v_exp_f32 v{T+3}, v{T+3}
v_pk_add_f32 {vr(T,2)}, {vr(T,2)}, s[{sONE}:{sONE+1}]
v_pk_add_f32 {vr(T+2,2)}, {vr(T+2,2)}, s[{sONE}:{sONE+1}]
v_rcp_f32 v{T}, v{T}
v_rcp_f32 v{T+1}, v{T+1}
v_rcp_f32 v{T+2}, v{T+2}
v_rcp_f32 v{T+3}, v{T+3}
v_pk_mul_f32 {vr(a,2)}, {vr(a,2)}, {vr(T,2)}
v_pk_mul_f32 {vr(a+2,2)}, {vr(a+2,2)}, {vr(T+2,2)}
v_cvt_pk_bf16_f32 v{a}, v{a}, v{a+1}
v_cvt_pk_bf16_f32 v{a+1}, v{a+2}, v{a+3}
""")
        if rt == 2:
            o(f"v_cmp_gt_u32 vcc, s{sCNT}, v{TMP}\ns_and_saveexec_b64 s[{sM}:{sM+1}], vcc")
        o(f"buffer_store_dwordx2 {vr(a,2)}, v{TMP+2}, s[40:43], s{[sT0,sT1,sT2][rt]} offen")
    if STAMP:
        o(f"""
s_waitcnt vmcnt(0)
s_memrealtime s[94:95]
s_mov_b64 exec, 1
s_lshl_b32 s26, s2, 4
s_add_u32 s26, s26, s{sWAVE}
s_lshl_b32 s26, s26, 5
s_add_u32 s26, s26, {WS_STAMP + 0x100000}
s_mov_b32 s34, 0x1000000
v_mov_b32 v0, 0
s_waitcnt lgkmcnt(0)
""")
        for i in range(8):
            o(f"v_mov_b32 v{4+i}, s{80+2*i}")
        if "dbgst" in OPT:
            o("v_not_b32 v12, v4\nv_not_b32 v13, v9\nv_not_b32 v14, v5\nv_not_b32 v15, v10")
            for i in range(12):
                o(f"buffer_atomic_umax v{4+i}, v0, s[96:99], 0 offen offset:{8+4*i} sc1")
        else:
            o("buffer_store_dwordx4 v[4:7], v0, s[32:35], s26 offen\nbuffer_store_dwordx4 v[8:11], v0, s[32:35], s26 offen offset:16")
    o(f"""
L_end:
s_endpgm
L_round:
s_ff1_i32_b64 s{sT0}, s[{sOM}:{sOM+1}]
s_mul_i32 s{sT1}, s{sT0}, {CHUNK*8}
v_readlane_b32 s{sOC}, v{VOVF}, s{sT0}
s_lshl_b32 s{sT2}, s{sOB}, 3
s_add_u32 s{sT1}, s{sT1}, s{sT2}
s_add_u32 s{sT1}, s{sT1}, {WS_OVF}
buffer_load_dwordx4 {vr(REC,4)}, v2, s[32:35], s{sT1} offen sc1
v_lshlrev_b32 v{TMP}, 1, v0
v_add_u32 v{TMP}, s{sOB}, v{TMP}
v_add_u32 v{TMP+1}, 1, v{TMP}
v_cmp_gt_u32 s[{sV0}:{sV0+1}], s{sOC}, v{TMP}
v_cmp_gt_u32 s[{sV1}:{sV1+1}], s{sOC}, v{TMP+1}
s_add_u32 s{sOB}, s{sOB}, 2048
s_cmp_lt_u32 s{sOB}, s{sOC}
s_cbranch_scc1 L_rn2
s_bitset0_b64 s[{sOM}:{sOM+1}], s{sT0}
s_mov_b32 s{sOB}, 0
L_rn2:
s_waitcnt vmcnt(0)
v_lshrrev_b32 v{TMP}, 16, v{REC+1}
v_lshrrev_b32 v{TMP+1}, 16, v{REC+3}
v_cmp_eq_u32 s[{sM}:{sM+1}], s2, v{TMP}
s_nop 3
s_and_b64 s[{sV0}:{sV0+1}], s[{sV0}:{sV0+1}], s[{sM}:{sM+1}]
v_cmp_eq_u32 s[{sM}:{sM+1}], s2, v{TMP+1}
s_nop 3
s_and_b64 s[{sV1}:{sV1+1}], s[{sV1}:{sV1+1}], s[{sM}:{sM+1}]
""")
    sort_rank(o)
    o("s_waitcnt lgkmcnt(0)\ns_barrier")
    sort_scatter(o)
    o("s_waitcnt lgkmcnt(0)\ns_barrier")
    o("s_branch L_pr")
    bin_overflow(o)

def main(path):
    o = Asm()
    gen(o)
    hdr = f"""; MPNN edge-MLP + segment sum + node update in one launch (256 co-resident workgroups, one per CU).
; @launch grid=(256,1,1) block=(1024,1,1) lds={L_END}
.amdgcn_target "amdgcn-amd-amdhsa--gfx950"
.text
"""
    desc = f""".section .rodata,"a"
.p2align 6
.amdhsa_kernel {KNAME}
  .amdhsa_next_free_vgpr {NV}
  .amdhsa_next_free_sgpr 102
  .amdhsa_accum_offset {(NV+3)//4*4}
  .amdhsa_group_segment_fixed_size 0
  .amdhsa_kernarg_size 72
  .amdhsa_user_sgpr_count 2
  .amdhsa_user_sgpr_kernarg_segment_ptr 1
  .amdhsa_system_sgpr_workgroup_id_x 1
.end_amdhsa_kernel
"""
    open(path, "w").write(hdr + o.text() + desc)

if __name__ == "__main__":
    if "--stamp" in sys.argv:
        sys.argv.remove("--stamp")
        STAMP = True
    for a in list(sys.argv):
        if a.startswith("--steps="):
            sys.argv.remove(a)
            STEPS = a[8:].split(",")
        if a.startswith("--poll="):
            sys.argv.remove(a)
            STEP_POLL = int(a[7:])
        if a.startswith("--opt="):
            sys.argv.remove(a)
            OPT |= set(a[6:].split(","))
    main(sys.argv[1] if len(sys.argv) > 1 else "gather_scatter__mpnn_edge_mlp__graph.s")
```

```python
import sys

N = 10000
WS_WPACK = 0x500000
WS_OVFC = 0x560000
WS_OVF = 0x570000
WS_FLAG = 0x6E0000
WS_CELL = 0x700000
WS_END = 0xB00000
WS_STAMP = 0xC00000
CHUNK = 2500
CAP = 28
NEGL2E = 0xBFB8AA3B
NEGLN2 = 0xBF317218
KNAME = "gather_scatter__mpnn_edge_mlp__graph_kernel"
STAMP = False
STEP_POLL = 17
STEPS = ["s-1", "pst", "drain", "cell"]
OPT = set()

class Asm:
    def __init__(self):
        self.l = []
    def __call__(self, s):
        for line in s.strip("\n").split("\n"):
            line = line.strip()
            if line:
                self.l.append(line if line.endswith(":") else "    " + line)
    def text(self):
        l = self.l
        def sub(a_lab, b_lab, pref):
            a = l.index(a_lab); b = l.index(b_lab)
            return l[:a] + [("    s_nop 0" if any(x.strip().startswith(p) for p in pref) else x) for x in l[a:b]] + l[b:]
        if "noloop_ld" in OPT: l = sub("L_top:", "L_call0:", ["buffer_load"])
        return "\n".join(l) + "\n"

def vr(a, n):
    return f"v[{a}:{a+n-1}]" if n > 1 else f"v{a}"

def srd(o, d, lo, hi, size):
    o(f"s_mov_b32 s{d}, s{lo}\ns_mov_b32 s{d+1}, s{hi}\ns_mov_b32 s{d+2}, {size}\ns_mov_b32 s{d+3}, 0x20000")

def stamp(o, i):
    if STAMP:
        o(f"s_memrealtime s[{80+2*i}:{81+2*i}]\ns_waitcnt lgkmcnt(0)")

R = 6
PAD = R + 2
KMAX = 24
RS = 1040
L_QS = 0
L_AGB = (48 * RS + 511) // 512 * 512
L_HB = L_AGB + 48 * 512
L_IDX = L_HB + 16 * 1024
L_ET = L_IDX + 2064 * 4
L_CNT = (L_ET + 2052 * 16 + 255) // 256 * 256
L_HF = L_CNT + 256
L_XS = (L_HF + 256 + 511) // 512 * 512
L_END = L_XS + 48 * 512
L_IMG = 65536
L_BCNT = 131072
PSTR = 528
L_PST = 32768
assert L_BCNT + 1100 <= L_CNT and L_END <= 163840
RING = 4
A0, A1, Q, T0, T1, E, NN, D, AC, UA = 28, 32, 36, 40, 44, 48, 52, 56, 60, 64
VOVF, VB, IX, AD, LO, VI, VE, VN, VC, VEND, VEL = 76, 78, 79, 80, 81, 82, 83, 84, 85, 86, 126
TMP = 87
W = 94
NV = 127
QA, VXA, VWA, VWS, VTG, ZR = 48, AD, 18, 17, 19, 20
XFB, WFB = [W, W + 16], [W + 12, W + 28]
W3, TG0 = 62, 60
TAG = 92
sWAVE, sN0, sCNT, sHEAD, sIT, sW1, sCH = 3, 4, 5, 6, 7, 26, 27
sP, sP1, sREM, sSEGE, sSEGS, sNEND, sK, sTOT, sRND, sOB, sOC, sOFF = range(48, 60)
sV0, sV1, sOM, sRET, sSO, sM, sONE, sSC = 60, 62, 64, 66, 68, 70, 72, 74
sM0 = 69
sT0, sT1, sT2, sBND = 76, 77, 78, 79
sLN2 = 44
REC, RK0, RK1 = 40, 44, 45
CK = TMP + 1

def valu_block(T):
    ex = "\n".join(f"v_exp_f32 v{E+i}, v{T+i}" for i in range(4))
    pk = f"""
v_pk_fma_f32 {vr(NN,2)}, {vr(NN,2)}, {vr(E,2)}, {vr(NN,2)}
v_pk_fma_f32 {vr(NN+2,2)}, {vr(NN+2,2)}, {vr(E+2,2)}, {vr(NN+2,2)}
v_pk_fma_f32 {vr(NN,2)}, {vr(T,2)}, {vr(D,2)}, {vr(NN,2)}
v_pk_fma_f32 {vr(NN+2,2)}, {vr(T+2,2)}, {vr(D+2,2)}, {vr(NN+2,2)}
v_pk_fma_f32 {vr(D,2)}, {vr(D,2)}, {vr(E,2)}, {vr(D,2)}
v_pk_fma_f32 {vr(D+2,2)}, {vr(D+2,2)}, {vr(E+2,2)}, {vr(D+2,2)}
"""
    return ex, pk

def poll(o, tag, soff, count):
    o(f"""
v_lshlrev_b32 v{TMP}, 7, v1
s_mov_b32 s{sT1}, 0
s_mov_b64 exec, {"-1" if count == 64 else hex((1 << count) - 1)}
F_pl{tag}:
buffer_load_dwordx2 {vr(TMP+1,2)}, v{TMP}, s[32:35], {soff} offen sc1
s_add_u32 s{sT1}, s{sT1}, 1
s_waitcnt vmcnt(0)
v_cmpx_ne_u64 vcc, s[100:101], {vr(TMP+1,2)}
s_nop 4
s_cbranch_execz F_pd{tag}
s_sleep 2
s_cmp_lt_u32 s{sT1}, 0x40000
s_cbranch_scc1 F_pl{tag}
F_pd{tag}:
s_mov_b64 exec, -1
""")

def get_tag(o, tag):
    o(f"""
s_mov_b32 s{sT1}, 0
F_tg{tag}:
v_readfirstlane_b32 s100, v{TAG}
v_readfirstlane_b32 s101, v{TAG+1}
s_add_u32 s{sT1}, s{sT1}, 1
s_cmp_ge_u32 s{sT1}, 0x40000
s_cbranch_scc1 F_th{tag}
s_cmp_lg_u32 s100, 0
s_cbranch_scc1 F_th{tag}
buffer_load_dwordx2 {vr(TAG,2)}, v{VTG}, s[96:99], 0 offen sc1
s_waitcnt vmcnt(0)
s_branch F_tg{tag}
F_th{tag}:
""")

def put_flag(o, soff):
    o(f"""
v_mov_b32 v{TMP+1}, s100
v_mov_b32 v{TMP+2}, s101
s_mov_b64 exec, 1
buffer_store_dwordx2 {vr(TMP+1,2)}, v{VTG}, s[32:35], {soff} offen sc1
s_mov_b64 exec, -1
""")

def sort_rank(o):
    o(f"""
s_mov_b32 s{sT0}, {L_CNT}
v_mov_b32 v{TMP+4}, 0xfc
v_mov_b32 v{TMP+3}, 1
v_and_or_b32 v{TMP}, v{REC}, v{TMP+4}, s{sT0}
v_and_or_b32 v{TMP+1}, v{REC+2}, v{TMP+4}, s{sT0}
s_mov_b64 exec, s[{sV0}:{sV0+1}]
ds_add_rtn_u32 v{RK0}, v{TMP}, v{TMP+3}
s_mov_b64 exec, s[{sV1}:{sV1+1}]
ds_add_rtn_u32 v{RK1}, v{TMP+1}, v{TMP+3}
s_mov_b64 exec, -1
v_add_u32 v{TMP+4}, s{sT0}, v{LO}
""")

def sort_scatter(o):
    o(f"""
ds_read_b32 v{TMP+2}, v{TMP+4}
v_and_b32 v{REC}, 0xfffffe00, v{REC}
v_and_b32 v{REC+2}, 0xfffffe00, v{REC+2}
s_mov_b32 s{sT0}, {L_IDX}
s_mov_b32 s{sT1}, {L_ET}
s_waitcnt lgkmcnt(0)
v_add_u32_dpp v{VEND}, v{TMP+2}, v{TMP+2} row_shr:1 row_mask:0xf bank_mask:0xf bound_ctrl:0
s_nop 1
v_add_u32_dpp v{VEND}, v{VEND}, v{VEND} row_shr:2 row_mask:0xf bank_mask:0xf bound_ctrl:0
s_nop 1
v_add_u32_dpp v{VEND}, v{VEND}, v{VEND} row_shr:4 row_mask:0xf bank_mask:0xf bound_ctrl:0
s_nop 1
v_add_u32_dpp v{VEND}, v{VEND}, v{VEND} row_shr:8 row_mask:0xf bank_mask:0xf bound_ctrl:0
s_nop 1
v_add_u32_dpp v{VEND}, v{VEND}, v{VEND} row_bcast:15 row_mask:0xa bank_mask:0xf
s_nop 1
v_add_u32_dpp v{VEND}, v{VEND}, v{VEND} row_bcast:31 row_mask:0xc bank_mask:0xf
v_sub_u32 v{TMP+3}, v{VEND}, v{TMP+2}
v_readlane_b32 s{sTOT}, v{VEND}, 63
ds_bpermute_b32 v{TMP}, v{TMP}, v{TMP+3}
ds_bpermute_b32 v{TMP+1}, v{TMP+1}, v{TMP+3}
s_nop 1
s_add_u32 s{sCH}, s{sTOT}, 15
s_lshr_b32 s{sCH}, s{sCH}, 4
s_mul_i32 s{sP}, s{sCH}, s{sWAVE}
s_add_u32 s{sP1}, s{sP}, s{sCH}
s_min_u32 s{sP}, s{sP}, s{sTOT}
s_min_u32 s{sP1}, s{sP1}, s{sTOT}
s_waitcnt lgkmcnt(0)
v_add_u32 v{TMP}, v{TMP}, v{RK0}
v_add_u32 v{TMP+1}, v{TMP+1}, v{RK1}
v_lshl_add_u32 v{TMP+2}, v{TMP}, 2, s{sT0}
v_lshl_add_u32 v{TMP+3}, v{TMP+1}, 2, s{sT0}
v_lshl_add_u32 v{TMP}, v{TMP}, 4, s{sT1}
v_lshl_add_u32 v{TMP+1}, v{TMP+1}, 4, s{sT1}
s_mov_b64 exec, s[{sV0}:{sV0+1}]
ds_write_b32 v{TMP+2}, v{REC}
ds_write_b16 v{TMP}, v{REC+1} offset:8
ds_write_b16 v{TMP}, v{REC+1} offset:14
s_mov_b64 exec, s[{sV1}:{sV1+1}]
ds_write_b32 v{TMP+3}, v{REC+2}
ds_write_b16 v{TMP+1}, v{REC+3} offset:8
ds_write_b16 v{TMP+1}, v{REC+3} offset:14
s_mov_b64 exec, -1
""")

def zero_cnt(o):
    o(f"v_mov_b32 v{TMP}, 0\nds_write_b32 v{TMP+4}, v{TMP}")

def prime(o):
    PT = T0
    o(f"""
s_lshl_b32 s{sT0}, s{sP}, 2
s_add_u32 s{sT0}, s{sT0}, {L_IDX}
v_mov_b32 v{VI}, s{sT0}
s_lshl_b32 s{sT0}, s{sP}, 4
v_add_u32 v{VE}, s{sT0}, v{VEL}
""")
    for k in range(0, R, 2):
        o(f"ds_read2_b32 {vr(PT+k,2)}, v{VI} offset0:{k} offset1:{k+1}")
    o(f"""
ds_read_b32 v{IX}, v{VI} offset:{4*R}
ds_read2_b32 {vr(A0+2,2)}, v{VE} offset0:0 offset1:2
ds_read2_b32 {vr(A1+2,2)}, v{VE} offset0:4 offset1:6
s_waitcnt lgkmcnt(0)
""")
    for k in range(R):
        o(f"v_add_u32 v{PT+k}, v{PT+k}, v{LO}")
    for k in range(R):
        B = RING + 4*k
        o(f"buffer_load_dword v{B}, v{PT+k}, s[36:39], 0 offen sc1")
        o(f"buffer_load_dword v{B+1}, v{PT+k}, s[36:39], 0 offen offset:256 sc1")

def wloads(o, mat=2):
    o(f"""
s_lshl_b32 s{sT0}, s{sWAVE}, 13
s_add_u32 s{sT0}, s{sT0}, {WS_WPACK + mat*131072}
s_add_u32 s{sT1}, s{sT0}, 4096
v_lshlrev_b32 v{TMP+5}, 4, v1
""")
    for ks in range(8):
        o(f"buffer_load_dwordx4 {vr(W+4*ks,4)}, v{TMP+5}, s[32:35], s{sT0 if ks < 4 else sT1} offen offset:{(ks%4)*1024} {'' if 'wplain' in OPT else 'sc1'}")

DST, SRC, EA, OWN, RK, R0 = 28, 32, 36, 48, 52, 56
EW = [EA, 38, EA + 1, 39]
sBM = 58
def bin_rank(o):
    o(f"v_mov_b32 v{TMP+3}, 1\ns_mov_b64 exec, s[{sBM}:{sBM+1}]")
    for k in range(4):
        o(f"""
v_mul_u32_u24 v{OWN+k}, s56, v{DST+k}
v_lshrrev_b32 v{OWN+k}, 24, v{OWN+k}
v_lshl_add_u32 v{TMP+4}, v{OWN+k}, 2, s60
ds_add_rtn_u32 v{RK+k}, v{TMP+4}, v{TMP+3}
""")
    for k in range(4):
        o(f"""
v_mad_u32_u24 v{TMP+1}, v{OWN+k}, s57, 15
v_lshrrev_b32 v{TMP+1}, 4, v{TMP+1}
v_sub_u32 v{DST+k}, v{DST+k}, v{TMP+1}
v_lshl_add_u32 v{R0+k}, v{SRC+k}, 7, v{DST+k}
v_lshlrev_b32 v{R0+k}, 2, v{R0+k}
v_lshl_add_u32 v{DST+k}, v{OWN+k}, 8, s61
""")
    o(f"""
v_lshrrev_b32 v38, 16, v{EA}
v_lshrrev_b32 v39, 16, v{EA+1}
s_waitcnt lgkmcnt(0)
v_max3_u32 v{TMP}, v{RK}, v{RK+1}, v{RK+2}
v_max_u32 v{TMP}, v{TMP}, v{RK+3}
v_cmp_le_u32 vcc, {CAP}, v{TMP}
""")
    for k in range(4):
        o(f"""
v_mul_u32_u24 v{SRC+k}, 37, v{RK+k}
v_lshrrev_b32 v{SRC+k}, 8, v{SRC+k}
v_add_u32 v{SRC+k}, v{SRC+k}, v{RK+k}
v_lshl_add_u32 v{DST+k}, v{SRC+k}, 3, v{DST+k}
""")
    o("s_cbranch_vccnz F_ovf")
    for k in range(4):
        o(f"ds_write2_b32 v{DST+k}, v{R0+k}, v{EW[k]} offset0:2 offset1:3")
    o("F_ovfback:\ns_mov_b64 exec, -1")

def bin_overflow(o):
    o(f"F_ovf:\ns_mul_i32 s50, s2, {CHUNK*8}\ns_add_u32 s50, s50, {WS_OVF}\nv_mov_b32 v{TMP}, {L_BCNT+1024}")
    for k in range(4):
        o(f"""
v_cmp_gt_u32 vcc, {CAP}, v{RK+k}
s_and_saveexec_b64 s[62:63], vcc
ds_write2_b32 v{DST+k}, v{R0+k}, v{EW[k]} offset0:2 offset1:3
s_andn2_b64 exec, s[62:63], exec
s_cbranch_execz F_no{k}
ds_add_rtn_u32 v{TMP+4}, v{TMP}, v{TMP+3}
v_mov_b32 v{TMP+1}, v{R0+k}
v_and_b32 v{TMP+2}, 0xffff, v{EW[k]}
v_lshl_or_b32 v{TMP+2}, v{OWN+k}, 16, v{TMP+2}
s_waitcnt lgkmcnt(0)
v_lshlrev_b32 v{TMP+4}, 3, v{TMP+4}
buffer_store_dwordx2 {vr(TMP+1,2)}, v{TMP+4}, s[32:35], s50 offen sc1
s_waitcnt vmcnt(0)
F_no{k}:
s_mov_b64 exec, s[62:63]
""")
    o("s_branch F_ovfback")

def bin_copy(o):
    o(f"""
v_lshrrev_b32 v56, 3, v0
v_and_b32 v57, 7, v0
v_lshlrev_b32 v57, 4, v57
v_lshl_add_u32 v58, v56, 8, v57
v_lshl_add_u32 v59, v56, 14, v57
v_add_u32 v58, s61, v58
v_lshl_add_u32 v56, v56, 2, s60
ds_read_b32 v36, v56
ds_read_b32 v37, v56 offset:512
ds_read_b128 v[28:31], v58
ds_read_b128 v[32:35], v58 offset:32768
ds_read_b128 v[48:51], v58 offset:128
ds_read_b128 v[52:55], v58 offset:{32768+128}
v_mov_b32 v38, {L_BCNT+1024}
ds_read_b32 v38, v38
v_and_b32 v57, 48, v57
v_cmp_eq_u32 s[{sBM}:{sBM+1}], 0, v57
s_lshl_b32 s49, s2, 8
s_add_u32 s49, s49, {WS_CELL}
s_add_u32 s50, s49, {128*16384}
v_mov_b32 v57, 0x7ffff000
v_mov_b32 v39, s100
s_waitcnt lgkmcnt(5)
v_cmp_lt_u32 vcc, 14, v36
v_min_u32 v36, {CAP}, v36
v_cmp_lt_u32 s[62:63], 14, v37
v_min_u32 v37, {CAP}, v37
v_cndmask_b32 v56, v57, v59, vcc
v_cndmask_b32 v57, v57, v59, s[62:63]
""")
    for n, (reg, cnt, adr, so, off) in enumerate(((28, 36, 59, 49, 0), (32, 37, 59, 50, 0), (48, 36, 56, 49, 128), (52, 37, 57, 50, 128))):
        o(f"""
s_waitcnt lgkmcnt({4 - n})
v_cndmask_b32 v{reg}, v{reg}, v{cnt}, s[{sBM}:{sBM+1}]
v_cndmask_b32 v{reg+1}, v{reg+1}, v39, s[{sBM}:{sBM+1}]
buffer_store_dwordx4 {vr(reg,4)}, v{adr}, s[32:35], s{so} offen offset:{off} sc1
""")
    o(f"""
s_cmp_lg_u32 s{sWAVE}, 0
s_cbranch_scc1 F_bc1
s_lshl_b32 s50, s2, 3
s_add_u32 s50, s50, {WS_OVFC}
s_mov_b64 exec, 1
s_waitcnt lgkmcnt(0)
buffer_store_dwordx2 v[38:39], v{VTG}, s[32:35], s50 offen sc1
s_mov_b64 exec, -1
F_bc1:
""")

def gen(o):
    XNT = "" if "nont" in OPT else "nt"
    AA = [A0, A1]
    TT = [T0, T1]
    o(f"""
.globl {KNAME}
.p2align 8
.type {KNAME},@function
{KNAME}:
s_cmp_ge_u32 s2, 256
s_cbranch_scc1 L_end
s_load_dwordx2 s[28:29], s[0:1], 0
s_load_dwordx2 s[44:45], s[0:1], 32
s_load_dwordx2 s[36:37], s[0:1], 24
s_load_dwordx2 s[12:13], s[0:1], 16
s_load_dwordx2 s[52:53], s[0:1], 8
s_load_dwordx2 s[40:41], s[0:1], 40
s_load_dwordx2 s[32:33], s[0:1], 64
s_load_dwordx2 s[96:97], s[0:1], 56
s_load_dwordx2 s[20:21], s[0:1], 48
s_memrealtime s[100:101]
""")
    if STAMP: o("s_memrealtime s[80:81]")
    o(f"""
v_lshrrev_b32 v2, 6, v0
v_and_b32 v1, 63, v0
s_mul_i32 s{sN0}, s2, 625
v_readfirstlane_b32 s{sWAVE}, v2
v_lshrrev_b32 v4, 5, v1
v_and_b32 v6, 31, v1
s_add_u32 s{sCNT}, s{sN0}, 640
s_add_u32 s{sN0}, s{sN0}, 15
s_lshr_b32 s{sN0}, s{sN0}, 4
s_lshl_b32 s50, s{sWAVE}, 1
v_add_u32 v5, s50, v4
v_lshlrev_b32 v2, 4, v0
v_and_b32 v7, 15, v5
v_xor_b32 v7, v7, v6
v_lshlrev_b32 v7, 4, v7
v_lshl_add_u32 v7, v4, 9, v7
s_mov_b32 s30, {N*512}
s_mov_b32 s31, 0x20000
s_mov_b32 s46, {513*512}
s_mov_b32 s47, 0x20000
s_mov_b32 s42, {512*512}
s_mov_b32 s43, 0x20000
s_mov_b32 s38, 640000
s_mov_b32 s39, 0x20000
s_mov_b32 s14, 640000
s_mov_b32 s15, 0x20000
s_mov_b32 s54, 320000
s_mov_b32 s55, 0x20000
s_lshl_b32 s{sSO}, s{sWAVE}, 10
s_lshl_b32 s51, s{sN0}, 9
s_add_u32 s51, s51, s{sSO}
v_and_b32 v{TMP}, 3, v5
v_bfe_u32 v{TMP+1}, v5, 3, 1
v_lshl_or_b32 v{TMP}, v{TMP+1}, 2, v{TMP}
v_lshlrev_b32 v{TMP}, 1, v{TMP}
v_xor_b32 v{TMP}, v{TMP}, v6
v_lshlrev_b32 v{TMP}, 4, v{TMP}
v_lshl_add_u32 v{VWS}, v4, 9, v{TMP}
v_lshlrev_b32 v{LO}, 2, v1
s_sub_u32 s48, s2, 64
s_waitcnt lgkmcnt(0)
s_cmp_ge_u32 s48, 24
s_cbranch_scc1 F_npd
s_cmp_ge_u32 s48, 8
s_cselect_b32 s36, s40, s44
s_cselect_b32 s37, s41, s45
s_mov_b32 s38, {512*512}
s_lshl_b32 s49, s48, 14
s_add_u32 s49, s49, 131072
s_and_b32 s49, s49, {512*512 - 1}
s_add_u32 m0, s{sSO}, {L_IMG}
s_add_u32 s49, s49, s{sSO}
buffer_load_dwordx4 v{VWS}, s[36:39], s49 offen lds
s_barrier
F_npd:
s_add_u32 m0, s{sSO}, {L_XS}
s_cmp_ge_u32 s{sWAVE}, 4
buffer_load_dwordx4 v7, s[28:31], s51 offen {XNT} lds
s_cbranch_scc1 F_nox2
s_add_u32 m0, s{sSO}, {L_XS + 16384}
s_add_u32 s50, s51, 16384
buffer_load_dwordx4 v7, s[28:31], s50 offen {XNT} lds
F_nox2:
s_cmp_lg_u32 s{sWAVE}, 15
s_cbranch_scc1 F_ntc
s_lshr_b32 s49, s2, 3
s_lshl_b32 s49, s49, 12
v_lshlrev_b32 v5, 6, v1
buffer_load_dword v{TMP}, v5, s[44:47], s49 offen
F_ntc:
""")
    ops = []
    def vm(target):
        return len(ops) - 1 - max(i for i, x in enumerate(ops) if x == target)
    def dma(s):
        o(f"""
s_add_u32 m0, s{sSO}, {(s & 3) * 16384}
s_add_u32 s{sM0}, s{sSO}, {s * 16384}
buffer_load_dwordx4 v{VWS}, s[44:47], s{sM0} offen lds
""")
        ops.append(("d", s))
    for s in range(4):
        dma(s)
        if s < 2 and "nokmaj" not in OPT:
            o("s_barrier")
    o(f"""
s_mov_b32 s50, {512*512}
buffer_load_dword v{W3}, v{LO}, s[44:47], s50 offen
buffer_load_dword v{W3+1}, v{LO}, s[44:47], s50 offen offset:256
s_cmp_ge_u32 s2, 64
s_cbranch_scc1 F_nobl
v_lshlrev_b32 v6, 2, v0
v_add_u32 v6, {L_BCNT}, v6
v_mov_b32 v4, 0
s_movk_i32 s57, 625
v_cmp_gt_u32 s[{sBM}:{sBM+1}], s57, v0
s_mov_b32 s56, 429497
s_mov_b32 s60, {L_BCNT}
s_mov_b32 s61, {L_IMG}
s_cmp_ge_u32 s{sWAVE}, 5
s_cbranch_scc1 F_nobl
ds_write_b32 v6, v4
F_nobl:
s_mov_b32 s34, {WS_END}
s_mov_b32 s35, 0x20000
s_mov_b32 s98, 256
s_mov_b32 s99, 0x20000
v_mov_b32 v{VTG}, 0
s_cmp_lg_u32 s2, 255
s_cbranch_scc1 F_nont
s_cmp_lg_u32 s{sWAVE}, 0
s_cbranch_scc1 F_nont
s_or_b32 s49, s100, 1
v_mov_b32 v4, s49
v_mov_b32 v5, s101
s_mov_b64 exec, 1
buffer_store_dwordx2 v[4:5], v{VTG}, s[96:99], 0 offen sc1
s_mov_b64 exec, -1
F_nont:
s_lshr_b32 s{sCNT}, s{sCNT}, 4
s_sub_u32 s{sCNT}, s{sCNT}, s{sN0}
v_lshlrev_b32 v{VC}, 3, v1
v_lshrrev_b32 v3, 4, v1
v_and_b32 v4, 15, v1
v_xor_b32 v{VXA}, v4, v3
v_lshlrev_b32 v{VXA}, 4, v{VXA}
v_lshl_add_u32 v{VXA}, v4, 9, v{VXA}
v_add_u32 v{VXA}, {L_XS}, v{VXA}
v_bfe_u32 v5, v1, 2, 2
v_and_b32 v6, 3, v1
v_lshl_add_u32 v{VWA}, v3, 3, v5
v_lshlrev_b32 v{VWA}, 9, v{VWA}
v_lshl_add_u32 v{VWA}, v6, 3, v{VWA}
v_and_b32 v6, 1, v3
v_lshl_or_b32 v6, v6, 2, v5
v_xor_b32 v6, s{sWAVE}, v6
v_lshl_add_u32 v{VWA}, v6, 5, v{VWA}
v_add_u32 v{TMP+4}, {L_CNT}, v{LO}
ds_write2st64_b32 v{TMP+4}, v{VTG}, v{VTG} offset0:0 offset1:1
s_mov_b32 s{sSC}, {NEGL2E:#x}
s_mov_b32 s{sSC+1}, {NEGL2E:#x}
s_movk_i32 s{sT0}, {PSTR}
v_mul_u32_u24 v{VN}, s{sT0}, v4
v_lshl_add_u32 v{VN}, v3, 3, v{VN}
s_lshl_b32 s{sT1}, s{sWAVE}, 5
s_add_u32 s{sT1}, s{sT1}, {L_PST}
v_add_u32 v{VN}, s{sT1}, v{VN}
s_lshl_b32 s{sT1}, s{sWAVE}, 2
v_lshrrev_b32 v{VB}, 5, v1
v_add_u32 v{VB}, s{sT1}, v{VB}
v_add_u32 v5, 2, v{VB}
v_cmp_gt_u32 vcc, s{sCNT}, v5
v_mul_u32_u24 v{VB}, s{sT0}, v{VB}
v_and_b32 v5, 31, v1
v_lshl_add_u32 v{VB}, v5, 4, v{VB}
v_add_u32 v{VB}, {L_PST}, v{VB}
v_lshlrev_b32 v{VE}, 4, v1
v_add_u32 v{VI}, 1024, v{VE}
v_mov_b32 v5, 0x7ffffff0
v_cndmask_b32 v{VI}, v5, v{VI}, vcc
s_cmp_ge_u32 s48, 24
s_cbranch_scc1 F_d0
s_waitcnt vmcnt(7)
s_barrier
v_add_u32 v40, {L_IMG}, v{VWA}
ds_read_b64_tr_b16 v[44:45], v40
ds_read_b64_tr_b16 v[46:47], v40 offset:2048
s_lshl_b32 s50, s{sWAVE}, 13
s_and_b32 s49, s48, 7
s_lshl_b32 s49, s49, 10
s_add_u32 s50, s50, s49
s_lshr_b32 s49, s48, 3
s_lshl_b32 s49, s49, 17
s_add_u32 s50, s50, s49
s_add_u32 s50, s50, {WS_WPACK}
v_lshlrev_b32 v41, 4, v1
s_waitcnt lgkmcnt(0)
buffer_store_dwordx4 v[44:47], v41, s[32:35], s50 offen sc1
buffer_load_dwordx2 {vr(TAG,2)}, v{VTG}, s[96:99], 0 offen sc1
s_waitcnt vmcnt(0)
s_barrier
s_cmp_lg_u32 s{sWAVE}, 0
s_cbranch_scc1 F_d0
""")
    get_tag(o, "d")
    o(f"s_lshl_b32 s{sT0}, s48, 7\ns_add_u32 s{sT0}, s{sT0}, {WS_FLAG + 256*128}")
    put_flag(o, f"s{sT0}")
    o("F_d0:")
    ops += ["w3", "w3"]
    def st(name):
        if name in STEPS: stamp(o, (1, 2, 3, 4, 6)[STEPS.index(name)])
    def reads(s):
        a = VXA
        if s:
            a = TMP + 6
            o(f"v_xor_b32 v{a}, {64*s}, v{VXA}")
        xf, wf = XFB[s & 1], WFB[s & 1]
        o(f"ds_read_b64_tr_b16 {vr(wf,2)}, v{VWA} offset:{(s&3)*16384}")
        o(f"ds_read_b64_tr_b16 {vr(wf+2,2)}, v{VWA} offset:{(s&3)*16384 + 2048}")
        for rt in range(3):
            o(f"ds_read_b128 {vr(xf+4*rt,4)}, v{a} offset:{rt*8192}")
    def wait_bin(n, extra, lab, tail):
        o(f"s_cmp_lt_u32 s2, 64\ns_cbranch_scc1 {lab}\ns_waitcnt vmcnt({n})\n{lab}:\ns_waitcnt vmcnt({n + extra}){tail}")
    for s in range(-1, 8):
        n = vm(("d", s + 1)) if s < 7 else None
        if 4 <= s <= 6:
            wait_bin(n, 3, f"F_wb{s+1}", " lgkmcnt(0)\ns_barrier")
        elif n is not None:
            o(f"s_waitcnt vmcnt({n}) lgkmcnt(0)\ns_barrier")
        else:
            o("s_waitcnt lgkmcnt(0)\ns_barrier")
        st(f"s{s}")
        if s == 0:
            o(f"buffer_load_dwordx2 {vr(TG0,2)}, v{VTG}, s[96:99], 0 offen sc1")
            ops.append("tag")
        if 0 <= s <= 3:
            dma(s + 4)
        if s == 3:
            o(f"""
s_cmp_ge_u32 s2, 64
s_cbranch_scc1 F_nel
s_mul_i32 s49, s2, 10000
s_mul_i32 s50, s2, 5000
v_lshlrev_b32 v5, 3, v0
buffer_load_dwordx4 {vr(DST,4)}, v2, s[36:39], s49 offen {XNT}
buffer_load_dwordx4 {vr(SRC,4)}, v2, s[12:15], s49 offen {XNT}
buffer_load_dwordx2 {vr(EA,2)}, v5, s[52:55], s50 offen {XNT}
F_nel:
""")
        if s < 7:
            reads(s + 1)
        if s >= 0:
            for rt in range(3):
                c = "0" if s == 0 else vr(UA+4*rt, 4)
                o(f"v_mfma_f32_16x16x32_bf16 {vr(UA+4*rt,4)}, {vr(WFB[s&1],4)}, {vr(XFB[s&1]+4*rt,4)}, {c}")
        if s == 3:
            o(f"v_mov_b64 {vr(TAG,2)}, {vr(TG0,2)}")
            get_tag(o, "m")
    o(f"s_mov_b64 s[8:9], s[32:33]\ns_mov_b32 s10, {N*512}\ns_mov_b32 s11, 0x20000\ns_nop 2")
    for rt in range(3):
        a_ = UA + 4*rt
        o(f"""
v_pk_mul_f32 {vr(a_,2)}, {vr(a_,2)}, s[{sSC}:{sSC+1}]
v_pk_mul_f32 {vr(a_+2,2)}, {vr(a_+2,2)}, s[{sSC}:{sSC+1}]
v_cvt_pk_bf16_f32 v{T0+2*rt}, v{a_}, v{a_+1}
v_cvt_pk_bf16_f32 v{T0+2*rt+1}, v{a_+2}, v{a_+3}
ds_write_b64 v{VN}, {vr(T0+2*rt,2)} offset:{rt*16*PSTR}
""")
    PSF = {"ps_nt": "sc1 nt", "ps_01": "sc0 sc1"}
    PSF = next((v for k, v in PSF.items() if k in OPT), "sc1")
    o(f"""
s_lshl_b32 s{sT2}, s{sN0}, 9
s_lshl_b32 s{sT1}, s{sWAVE}, 11
s_add_u32 s{sT2}, s{sT2}, s{sT1}
s_waitcnt lgkmcnt(0)
s_barrier
s_cmp_ge_u32 s{sWAVE}, 10
s_cbranch_scc1 F_nps
ds_read_b128 {vr(T0,4)}, v{VB}
ds_read_b128 {vr(T1,4)}, v{VB} offset:{2*PSTR}
s_waitcnt lgkmcnt(1)
buffer_store_dwordx4 {vr(T0,4)}, v{VE}, s[8:11], s{sT2} offen {PSF}
s_waitcnt lgkmcnt(0)
buffer_store_dwordx4 {vr(T1,4)}, v{VI}, s[8:11], s{sT2} offen {PSF}
s_branch F_npa
F_nps:
s_cmp_lg_u32 s{sWAVE}, 10
s_cbranch_scc1 F_npa
s_mov_b32 s{sT0}, {WS_FLAG + 256*128}
""")
    poll(o, "a", f"s{sT0}", 16)
    o(f"""
s_lshr_b32 s{sT0}, s2, 3
s_lshl_b32 s{sT0}, s{sT0}, 13
s_add_u32 s{sT0}, s{sT0}, {WS_WPACK}
s_add_u32 s{sT1}, s{sT0}, 4096
v_lshlrev_b32 v{TMP}, 6, v1
buffer_load_dword v26, v{TMP}, s[32:35], s{sT0} offen sc1
buffer_load_dword v27, v{TMP}, s[32:35], s{sT1} offen sc1
F_npa:
s_barrier
""")
    st("pst")
    wloads(o, 0)
    o("s_cmp_ge_u32 s2, 64\ns_cbranch_scc1 F_nbr\ns_waitcnt vmcnt(10)\ns_cmp_lt_u32 s3, 10\ns_cbranch_scc1 F_bw\ns_waitcnt vmcnt(8)\nF_bw:")
    bin_rank(o)
    o("s_waitcnt lgkmcnt(0)\ns_barrier")
    bin_copy(o)
    o(f"""
F_nbr:
v_and_b32 v{TMP}, 3, v1
v_bfe_u32 v{TMP+1}, v1, 2, 2
v_cmp_eq_u32 vcc, v{TMP+1}, v3
v_and_b32 v{TMP+2}, 1, v1
v_lshlrev_b32 v{TMP+2}, 4, v{TMP+2}
v_mov_b32 v{TMP+3}, 0x3f80
v_lshlrev_b32 v{TMP+3}, v{TMP+2}, v{TMP+3}
v_cndmask_b32 v{TMP+3}, 0, v{TMP+3}, vcc
v_xor_b32 v{VEL}, 2, v{TMP}
v_lshlrev_b32 v{VEL}, 2, v{VEL}
v_add_u32 v{VEL}, {L_ET}, v{VEL}
v_mov_b32 v{TMP+2}, 0x30000
v_cndmask_b32 v{VEL}, v{TMP+2}, v{VEL}, vcc
v_cmp_gt_u32 vcc, 2, v{TMP}
s_mov_b32 s{sONE}, 1.0
s_mov_b32 s{sONE+1}, 1.0
v_cndmask_b32 v24, 0, v{TMP+3}, vcc
v_cndmask_b32_e64 v25, v{TMP+3}, 0, vcc
v_lshlrev_b32 v{TMP}, 16, v{W3}
v_and_b32 v{TMP+1}, 0xffff0000, v{W3}
v_lshlrev_b32 v{TMP+2}, 16, v{W3+1}
v_and_b32 v{TMP+3}, 0xffff0000, v{W3+1}
v_mul_f32 v{TMP}, s{sSC}, v{TMP}
v_mul_f32 v{TMP+1}, s{sSC}, v{TMP+1}
v_mul_f32 v{TMP+2}, s{sSC}, v{TMP+2}
v_mul_f32 v{TMP+3}, s{sSC}, v{TMP+3}
v_cvt_pk_bf16_f32 v{W3}, v{TMP}, v{TMP+1}
v_cvt_pk_bf16_f32 v{W3+1}, v{TMP+2}, v{TMP+3}
s_mov_b32 s{sBND}, 0x7b800000
s_mov_b32 s{sW1}, 0
s_mov_b64 s[40:41], s[20:21]
s_mov_b32 s42, {N*512}
s_mov_b64 s[36:37], s[32:33]
s_mov_b32 s38, {N*512}
s_mov_b32 s39, 0x20000
s_mov_b32 s{sLN2}, {NEGLN2:#x}
s_mov_b32 s{sLN2+1}, {NEGLN2:#x}
s_movk_i32 s{sT0}, {RS}
v_and_b32 v{VN}, 15, v1
v_mul_u32_u24 v{VN}, s{sT0}, v{VN}
v_lshl_add_u32 v{VN}, v3, 4, v{VN}
s_lshl_b32 s{sT0}, s{sWAVE}, 6
v_add_u32 v{VN}, s{sT0}, v{VN}
v_mov_b64 {vr(ZR,2)}, 0
v_mov_b64 {vr(ZR+2,2)}, 0
""")
    wait_bin(7, 4, "F_wd", " lgkmcnt(0)\ns_barrier")
    st("drain")
    o(f"s_cmp_lg_u32 s{sWAVE}, 0\ns_cbranch_scc1 F_nfp\ns_lshl_b32 s{sT0}, s2, 7\ns_add_u32 s{sT0}, s{sT0}, {WS_FLAG}")
    put_flag(o, f"s{sT0}")
    o(f"""
F_nfp:
s_lshl_b32 s{sT0}, s{sWAVE}, 13
s_add_u32 s{sT0}, s{sT0}, {WS_WPACK + 131072}
s_add_u32 s{sT1}, s{sT0}, 4096
""")
    def reg_gemm(acc, xf, waits, post=None):
        for ks in range(8):
            a = VXA
            if ks:
                a = TMP + 6
                o(f"v_xor_b32 v{a}, {64*ks}, v{VXA}")
            for rt in range(3):
                o(f"ds_read_b128 {vr(xf[rt],4)}, v{a} offset:{rt*8192}")
            waits(ks)
            for rt in range(3):
                o(f"s_waitcnt lgkmcnt({2-rt})")
                c = "0" if ks == 0 else vr(acc+4*rt, 4)
                o(f"v_mfma_f32_16x16x32_bf16 {vr(acc+4*rt,4)}, {vr(W+4*ks,4)}, {vr(xf[rt],4)}, {c}")
            if post: post(ks)
    reg_gemm(QA, [4, 8, 12], lambda ks: wait_bin(7, 4, f"F_wq{ks}", ""),
             lambda ks: o(f"buffer_load_dwordx4 {vr(W+4*ks,4)}, v{TMP+5}, s[32:35], s{sT0 if ks < 4 else sT1} offen offset:{(ks%4)*1024} sc1"))
    st("q")
    o(f"""
s_lshl_b32 s{sOFF}, s2, 14
s_add_u32 s{sOFF}, s{sOFF}, {WS_CELL}
buffer_load_dwordx4 {vr(REC,4)}, v2, s[32:35], s{sOFF} offen sc1
v_mov_b64 {vr(A0,2)}, v[24:25]
v_mov_b64 {vr(A1,2)}, v[24:25]
v_add_u32 v{TMP}, {L_ET}, v2
v_add_u32 v{TMP+1}, {L_AGB}, v2
ds_write_b128 v{TMP}, {vr(ZR,4)}
ds_write_b128 v{TMP}, {vr(ZR,4)} offset:16384
ds_write_b128 v{TMP}, {vr(ZR,4)} offset:16448
ds_write_b128 v{TMP+1}, {vr(ZR,4)}
ds_write_b128 v{TMP+1}, {vr(ZR,4)} offset:4096
""")
    for rt in range(3):
        o(f"""
v_pk_mul_f32 {vr(QA+4*rt,2)}, {vr(QA+4*rt,2)}, s[{sSC}:{sSC+1}]
v_pk_mul_f32 {vr(QA+4*rt+2,2)}, {vr(QA+4*rt+2,2)}, s[{sSC}:{sSC+1}]
ds_write_b128 v{VN}, {vr(QA+4*rt,4)} offset:{L_QS + rt*16*RS}
""")
    reg_gemm(UA, [4, 8, 12], lambda ks: o(f"s_waitcnt vmcnt({8 - ks})"))
    st("u")
    o(f"""
v_bfe_u32 v{RK0}, v0, 2, 2
v_mul_u32_u24 v{RK0}, 7, v{RK0}
v_and_b32 v{TMP}, 3, v0
v_lshl_add_u32 v{RK1}, v{TMP}, 1, v{RK0}
v_cmp_eq_u32 vcc, 0, v{TMP}
v_add_u32 v46, -1, v{RK1}
v_mov_b32 v47, 64
s_mov_b32 s{sT2}, 0
v_cndmask_b32 v46, v46, v47, vcc
s_mov_b32 s{sRND}, 0
s_waitcnt vmcnt(0)
F_cl:
v_mov_b32_dpp v{TMP}, v{REC+1} row_newbcast:0 row_mask:0xf bank_mask:0xf
v_mov_b32_dpp v{TMP+1}, v{REC} row_newbcast:0 row_mask:0xf bank_mask:0xf
v_mov_b32_dpp v{TMP+2}, v{REC+1} quad_perm:[0,0,0,0] row_mask:0xf bank_mask:0xf
v_cmp_eq_u32 vcc, s100, v{TMP}
v_cmp_ne_u32 s[{sM}:{sM+1}], s100, v{TMP+2}
s_add_u32 s{sT2}, s{sT2}, 1
v_cndmask_b32 v{TMP+1}, 0, v{TMP+1}, vcc
v_max_u32 v{TMP+3}, 1, v{TMP+1}
v_cmp_lt_u32 vcc, v{RK0}, v{TMP+3}
s_cmp_ge_u32 s{sT2}, 0x40000
s_cbranch_scc1 F_cd
s_and_b64 exec, vcc, s[{sM}:{sM+1}]
s_cbranch_execz F_cd
s_sleep 1
buffer_load_dwordx4 {vr(REC,4)}, v2, s[32:35], s{sOFF} offen sc1
s_mov_b64 exec, -1
s_waitcnt vmcnt(0)
s_branch F_cl
F_cd:
s_mov_b64 exec, -1
v_cmp_gt_u32 s[{sV0}:{sV0+1}], v{TMP+1}, v46
v_cmp_gt_u32 s[{sV1}:{sV1+1}], v{TMP+1}, v{RK1}
""")
    st("cell")
    sort_rank(o)
    for k in range(R):
        o(f"v_mov_b64 {vr(RING+4*k+2,2)}, {vr(W3,2)}")
    o("s_waitcnt lgkmcnt(0)\ns_barrier")
    sort_scatter(o)
    o(f"""
s_cmp_ge_u32 s{sWAVE}, 5
s_cbranch_scc1 F_npp
s_lshl_b32 s{sT0}, s{sWAVE}, 13
s_add_u32 s{sT0}, s{sT0}, {WS_FLAG}
s_cmp_eq_u32 s{sWAVE}, 4
s_cbranch_scc1 F_ppk
""")
    poll(o, "p", f"s{sT0}", 64)
    o(f"s_branch F_npp\nF_ppk:\ns_mov_b32 s{sT0}, {WS_FLAG + 272*128}")
    poll(o, "k", f"s{sT0}", 8)
    o(f"""
F_npp:
s_mov_b32 s{sT0}, {WS_OVFC}
buffer_load_dwordx2 {vr(VOVF,2)}, v{VC}, s[32:35], s{sT0} offen sc1
s_waitcnt lgkmcnt(0)
s_barrier
L_pr:
""")
    st("b3")
    zero_cnt(o)
    prime(o)
    o(f"""
L_go:
""")
    stamp(o, 5)
    o(f"""
s_mov_b64 vcc, 0
s_mov_b32 s{sK}, {KMAX}
s_add_u32 s{sRND}, s{sRND}, 1
s_cmp_ge_u32 s{sP}, s{sP1}
s_cbranch_scc1 L_loopdone
v_cmp_eq_u32 s[{sM}:{sM+1}], s{sP}, v{VEND}
s_sub_u32 s{sIT}, s{sP1}, s{sP}
s_add_u32 s{sIT}, s{sIT}, {R-1}
s_mul_i32 s{sIT}, s{sIT}, {-(-256 // R)}
s_lshr_b32 s{sIT}, s{sIT}, 8
s_cmp_eq_u32 s{sP}, 0
s_cselect_b32 s{sT2}, 1, 0
s_cmp_lg_u64 s[{sM}:{sM+1}], 0
s_cselect_b32 s{sT2}, 1, s{sT2}
s_xor_b32 s{sHEAD}, s{sT2}, 1
s_call_b64 s[{sRET}:{sRET+1}], L_newnode
s_setprio 3
s_waitcnt vmcnt({2*(R-1)}) lgkmcnt(0)
v_mfma_f32_16x16x32_bf16 {vr(T0,4)}, {vr(A0,4)}, {vr(RING,4)}, {vr(Q,4)}
s_nop 4
L_top:
""")
    for k in range(R):
        B = RING + 4*k
        B1 = RING + 4*((k+1) % R)
        ex, pk = valu_block(TT[k & 1])
        o(f"""
s_waitcnt vmcnt({2*(R-2)}) lgkmcnt(0)
v_add_u32 v{AD}, v{IX}, v{LO}
v_mfma_f32_16x16x32_bf16 {vr(TT[(k+1)&1],4)}, {vr(AA[(k+1)&1],4)}, {vr(B1,4)}, {vr(Q,4)}
{ex}
buffer_load_dword v{B}, v{AD}, s[36:39], 0 offen sc1
buffer_load_dword v{B+1}, v{AD}, s[36:39], 0 offen offset:256 sc1
ds_read_b32 v{IX}, v{VI} offset:{4*(k+R+1)}
ds_read2_b32 {vr(AA[k&1]+2,2)}, v{VE} offset0:{4*(k+2)} offset1:{4*(k+2)+2}
{pk}
s_sub_u32 s{sREM}, s{sREM}, 1
s_cbranch_scc1 L_call{k}
L_next{k}:
""")
    o(f"""
v_add_u32 v{VI}, {4*R}, v{VI}
v_add_u32 v{VE}, {16*R}, v{VE}
s_sub_u32 s{sIT}, s{sIT}, 1
s_cmp_ge_u32 s{sIT}, 4
s_cbranch_scc1 L_top
s_setprio 2
s_cmp_eq_u32 s{sIT}, 3
s_cbranch_scc1 L_top
s_setprio 1
s_cmp_eq_u32 s{sIT}, 2
s_cbranch_scc1 L_top
s_setprio 0
s_branch L_top
""")
    for k in range(R):
        B1 = RING + 4*((k+1) % R)
        o(f"""
L_call{k}:
s_call_b64 s[{sRET}:{sRET+1}], L_flush
s_cbranch_scc0 L_special
s_waitcnt lgkmcnt(0)
v_mfma_f32_16x16x32_bf16 {vr(TT[(k+1)&1],4)}, {vr(AA[(k+1)&1],4)}, {vr(B1,4)}, {vr(Q,4)}
s_nop 3
s_branch L_next{k}
""")
    o(f"""
L_flush:
v_rcp_f32 v{E}, v{D}
v_rcp_f32 v{E+1}, v{D+1}
v_rcp_f32 v{E+2}, v{D+2}
v_rcp_f32 v{E+3}, v{D+3}
s_mov_b32 s{sP}, s{sSEGE}
s_cbranch_vccnz L_nochk
v_pk_fma_f32 {vr(CK,2)}, {vr(NN,2)}, 0, {vr(D,2)}
v_pk_fma_f32 {vr(CK+2,2)}, {vr(NN+2,2)}, 0, {vr(D+2,2)}
v_pk_add_f32 {vr(CK,2)}, {vr(CK,2)}, {vr(CK+2,2)}
v_add_f32 v{CK}, v{CK}, v{CK+1}
v_cmp_nle_f32 s[{sM}:{sM+1}], v{CK}, s{sBND}
s_nop 3
s_cmp_eq_u64 s[{sM}:{sM+1}], 0
s_cbranch_scc1 L_nochk
s_mov_b32 s{sP}, s{sSEGS}
s_setpc_b64 s[{sRET}:{sRET+1}]
L_nochk:
v_pk_fma_f32 {vr(AC,2)}, {vr(NN,2)}, {vr(E,2)}, {vr(AC,2)}
v_pk_fma_f32 {vr(AC+2,2)}, {vr(NN+2,2)}, {vr(E+2,2)}, {vr(AC+2,2)}
s_cmp_lg_u32 s{sW1}, 0
s_cbranch_scc1 L_havew
s_mov_b32 s{sW1}, 1
""")
    wloads(o)
    o(f"""
L_havew:
s_cmp_eq_u32 s{sP}, s{sNEND}
s_cbranch_scc1 L_fin
s_cmp_lg_u32 s{sP}, s{sP1}
s_cbranch_scc1 L_reinit
s_cmp_lg_u32 s{sHEAD}, 0
s_cbranch_scc1 L_pub
s_mov_b32 s{sT0}, s{sWAVE}
s_mov_b32 s{sT1}, s{sP1}
L_col:
s_add_u32 s{sT0}, s{sT0}, 1
s_lshl_b32 s{sT2}, s{sT0}, 2
s_add_u32 s{sT2}, s{sT2}, {L_HF}
v_mov_b32 v{CK}, s{sT2}
L_poll:
ds_read_b32 v{CK+1}, v{CK}
s_waitcnt lgkmcnt(0)
v_readfirstlane_b32 s{sT2}, v{CK+1}
s_nop 3
s_cmp_eq_u32 s{sT2}, s{sRND}
s_cbranch_scc1 L_got
s_sleep 1
s_branch L_poll
L_got:
s_lshl_b32 s{sT2}, s{sT0}, 10
s_add_u32 s{sT2}, s{sT2}, {L_HB}
v_add_u32 v{CK}, s{sT2}, v{VC}
ds_read2st64_b64 {vr(E,4)}, v{CK} offset0:0 offset1:1
s_add_u32 s{sT1}, s{sT1}, s{sCH}
s_waitcnt lgkmcnt(0)
v_pk_add_f32 {vr(AC,2)}, {vr(AC,2)}, {vr(E,2)}
v_pk_add_f32 {vr(AC+2,2)}, {vr(AC+2,2)}, {vr(E+2,2)}
s_cmp_lt_u32 s{sT1}, s{sNEND}
s_cbranch_scc1 L_col
s_branch L_wr
L_fin:
s_cmp_lg_u32 s{sHEAD}, 0
s_cbranch_scc1 L_pub
L_wr:
v_pk_mul_f32 {vr(AC,2)}, {vr(AC,2)}, s[{sLN2}:{sLN2+1}]
v_pk_mul_f32 {vr(AC+2,2)}, {vr(AC+2,2)}, s[{sLN2}:{sLN2+1}]
v_cvt_pk_bf16_f32 v{E}, v{AC}, v{AC+1}
v_cvt_pk_bf16_f32 v{E+1}, v{AC+2}, v{AC+3}
ds_write2st64_b32 v{VB}, v{E}, v{E+1} offset0:0 offset1:1
L_more:
s_mov_b32 s{sHEAD}, 0
s_cmp_lg_u32 s{sP}, s{sP1}
s_cbranch_scc1 L_newnode
s_setpc_b64 s[{sRET}:{sRET+1}]
L_pub:
s_lshl_b32 s{sT2}, s{sWAVE}, 10
s_add_u32 s{sT2}, s{sT2}, {L_HB}
v_add_u32 v{CK}, s{sT2}, v{VC}
s_lshl_b32 s{sT2}, s{sWAVE}, 2
s_add_u32 s{sT2}, s{sT2}, {L_HF}
v_mov_b32 v{CK+1}, s{sT2}
v_mov_b32 v{CK+2}, s{sRND}
ds_write2st64_b64 v{CK}, {vr(AC,2)}, {vr(AC+2,2)} offset0:0 offset1:1
s_waitcnt lgkmcnt(0)
ds_write_b32 v{CK+1}, v{CK+2}
s_branch L_more
L_old:
s_cmp_lg_u32 s{sHEAD}, 0
s_cbranch_scc1 L_reinit
ds_read2st64_b32 {vr(E,2)}, v{VB} offset0:0 offset1:1
s_waitcnt lgkmcnt(0)
v_lshlrev_b32 v{AC}, 16, v{E}
v_and_b32 v{AC+1}, 0xffff0000, v{E}
v_lshlrev_b32 v{AC+2}, 16, v{E+1}
v_and_b32 v{AC+3}, 0xffff0000, v{E+1}
v_pk_mul_f32 {vr(AC,2)}, {vr(AC,2)}, s[{sSC}:{sSC+1}]
v_pk_mul_f32 {vr(AC+2,2)}, {vr(AC+2,2)}, s[{sSC}:{sSC+1}]
s_branch L_reinit
L_newnode:
v_cmp_ge_u32 s[{sM}:{sM+1}], s{sP}, v{VEND}
v_mov_b64 {vr(AC,2)}, 0
v_mov_b64 {vr(AC+2,2)}, 0
s_nop 1
s_bcnt1_i32_b64 s{sT0}, s[{sM}:{sM+1}]
s_mul_i32 s{sT1}, s{sT0}, {RS}
v_readlane_b32 s{sNEND}, v{VEND}, s{sT0}
v_add_u32 v{VN}, s{sT1}, v{VC}
ds_read2st64_b64 {vr(Q,4)}, v{VN} offset0:0 offset1:1
s_and_b32 s{sT1}, s{sT0}, 15
s_lshl_b32 s{sT1}, s{sT1}, 4
s_lshl_b32 s{sT0}, s{sT0}, 9
s_or_b32 s{sT0}, s{sT0}, s{sT1}
s_add_u32 s{sT0}, s{sT0}, {L_AGB}
v_xor_b32 v{VB}, s{sT0}, v{LO}
s_cmp_lg_u32 s{sRND}, 1
s_cbranch_scc1 L_old
L_reinit:
v_mov_b64 {vr(NN,2)}, 0
v_mov_b64 {vr(NN+2,2)}, 0
v_mov_b64 {vr(D,2)}, s[{sONE}:{sONE+1}]
v_mov_b64 {vr(D+2,2)}, s[{sONE}:{sONE+1}]
s_mov_b32 s{sSEGS}, s{sP}
s_add_u32 s{sSEGE}, s{sP}, s{sK}
s_min_u32 s{sSEGE}, s{sSEGE}, s{sNEND}
s_min_u32 s{sSEGE}, s{sSEGE}, s{sP1}
s_sub_u32 s{sREM}, s{sSEGE}, s{sP}
s_sub_u32 s{sREM}, s{sREM}, 1
s_cmp_eq_u32 s{sP}, s{sP}
s_setpc_b64 s[{sRET}:{sRET+1}]
L_special:
s_cmp_eq_u32 s{sP}, s{sP1}
s_cbranch_scc1 L_loopdone
s_mov_b64 vcc, -1
s_mov_b32 s{sK}, 1
s_waitcnt vmcnt(0) lgkmcnt(0)
s_call_b64 s[{sRET}:{sRET+1}], L_reinit
L_slow:
s_lshl_b32 s{sT0}, s{sP}, 2
s_add_u32 s{sT0}, s{sT0}, {L_IDX}
v_mov_b32 v{VI}, s{sT0}
s_lshl_b32 s{sT0}, s{sP}, 4
v_add_u32 v{VE}, s{sT0}, v{VEL}
ds_read_b32 v{IX}, v{VI}
ds_read2_b32 {vr(A0+2,2)}, v{VE} offset0:0 offset1:2
s_waitcnt lgkmcnt(0)
v_add_u32 v{AD}, v{IX}, v{LO}
buffer_load_dword v{RING}, v{AD}, s[36:39], 0 offen sc1
buffer_load_dword v{RING+1}, v{AD}, s[36:39], 0 offen offset:256 sc1
s_waitcnt vmcnt(0)
v_mfma_f32_16x16x32_bf16 {vr(T0,4)}, {vr(A0,4)}, {vr(RING,4)}, {vr(Q,4)}
s_nop 7
v_min_f32 v{T0}, 0x42fc0000, v{T0}
v_min_f32 v{T0+1}, 0x42fc0000, v{T0+1}
v_min_f32 v{T0+2}, 0x42fc0000, v{T0+2}
v_min_f32 v{T0+3}, 0x42fc0000, v{T0+3}
{valu_block(T0)[0]}
{valu_block(T0)[1]}
s_call_b64 s[{sRET}:{sRET+1}], L_flush
s_cbranch_scc1 L_slow
L_loopdone:
""")
    if len(STEPS) < 5: stamp(o, 6)
    o(f"""
s_setprio 0
s_cmp_lg_u32 s{sW1}, 0
s_cbranch_scc1 L_ld2
s_mov_b32 s{sW1}, 1
""")
    wloads(o)
    o(f"""
L_ld2:
s_cmp_lg_u32 s{sRND}, 1
s_cbranch_scc1 L_rn0
s_mov_b32 s{sOB}, 0
s_mov_b32 s{sT0}, {WS_OVFC}
L_ov:
s_waitcnt vmcnt(0)
v_cmp_ne_u32 vcc, s100, v{VOVF+1}
v_cmp_ne_u32 s[{sOM}:{sOM+1}], 0, v{VOVF}
s_add_u32 s{sOB}, s{sOB}, 1
s_cmp_ge_u32 s{sOB}, 0x40000
s_cbranch_scc1 L_ovd
s_nop 0
s_cbranch_vccz L_ovd
buffer_load_dwordx2 {vr(VOVF,2)}, v{VC}, s[32:35], s{sT0} offen sc1
s_branch L_ov
L_ovd:
s_mov_b32 s{sOB}, 0
L_rn0:
v_and_b32 v{TMP}, 15, v1
v_xor_b32 v{TMP+1}, v{TMP}, v3
v_lshlrev_b32 v{TMP+1}, 4, v{TMP+1}
v_lshl_add_u32 v{TMP+1}, v{TMP}, 9, v{TMP+1}
v_add_u32 v{TMP+1}, {L_AGB}, v{TMP+1}
s_waitcnt vmcnt(0) lgkmcnt(0)
s_barrier
s_cmp_eq_u64 s[{sOM}:{sOM+1}], 0
s_cbranch_scc0 L_round
""")
    FXF = [T0, T1, E]
    for ks in range(8):
        a = TMP + 1
        if ks:
            a = TMP + 6
            o(f"v_xor_b32 v{a}, {64*ks}, v{TMP+1}")
        for rt in range(3):
            o(f"ds_read_b128 {vr(FXF[rt],4)}, v{a} offset:{rt*8192}")
        for rt in range(3):
            o(f"s_waitcnt lgkmcnt({2-rt})")
            o(f"v_mfma_f32_16x16x32_bf16 {vr(UA+4*rt,4)}, {vr(W+4*ks,4)}, {vr(FXF[rt],4)}, {vr(UA+4*rt,4)}")
    o(f"""
v_add_u32 v{TMP+2}, s{sN0}, v{TMP}
v_lshlrev_b32 v{TMP+2}, 9, v{TMP+2}
v_lshl_add_u32 v{TMP+2}, v3, 3, v{TMP+2}
s_lshl_b32 s{sT0}, s{sWAVE}, 5
s_add_u32 s{sT1}, s{sT0}, 8192
s_add_u32 s{sT2}, s{sT0}, 16384
s_sub_u32 s{sCNT}, s{sCNT}, 32
s_nop 1
""")
    T = NN
    for rt in range(3):
        a = UA + 4*rt
        o(f"""
v_pk_mul_f32 {vr(T,2)}, {vr(a,2)}, s[{sSC}:{sSC+1}]
v_pk_mul_f32 {vr(T+2,2)}, {vr(a+2,2)}, s[{sSC}:{sSC+1}]
v_exp_f32 v{T}, v{T}
v_exp_f32 v{T+1}, v{T+1}
v_exp_f32 v{T+2}, v{T+2}
v_exp_f32 v{T+3}, v{T+3}
v_pk_add_f32 {vr(T,2)}, {vr(T,2)}, s[{sONE}:{sONE+1}]
v_pk_add_f32 {vr(T+2,2)}, {vr(T+2,2)}, s[{sONE}:{sONE+1}]
v_rcp_f32 v{T}, v{T}
v_rcp_f32 v{T+1}, v{T+1}
v_rcp_f32 v{T+2}, v{T+2}
v_rcp_f32 v{T+3}, v{T+3}
v_pk_mul_f32 {vr(a,2)}, {vr(a,2)}, {vr(T,2)}
v_pk_mul_f32 {vr(a+2,2)}, {vr(a+2,2)}, {vr(T+2,2)}
v_cvt_pk_bf16_f32 v{a}, v{a}, v{a+1}
v_cvt_pk_bf16_f32 v{a+1}, v{a+2}, v{a+3}
""")
        if rt == 2:
            o(f"v_cmp_gt_u32 vcc, s{sCNT}, v{TMP}\ns_and_saveexec_b64 s[{sM}:{sM+1}], vcc")
        o(f"buffer_store_dwordx2 {vr(a,2)}, v{TMP+2}, s[40:43], s{[sT0,sT1,sT2][rt]} offen")
    if STAMP:
        o(f"""
s_waitcnt vmcnt(0)
s_memrealtime s[94:95]
s_mov_b64 exec, 1
s_lshl_b32 s26, s2, 4
s_add_u32 s26, s26, s{sWAVE}
s_lshl_b32 s26, s26, 5
s_add_u32 s26, s26, {WS_STAMP + 0x100000}
s_mov_b32 s34, 0x1000000
v_mov_b32 v0, 0
s_waitcnt lgkmcnt(0)
""")
        xd = next((x for x in OPT if x.startswith("xdel")), None)
        if xd:
            k = int(xd[4:])
            o(f"""
s_sub_u32 s26, s{80+2*k}, s80
s_mul_i32 s26, s26, 10
s_add_u32 s26, s26, s94
X_spin:
s_memrealtime s[92:93]
s_waitcnt lgkmcnt(0)
s_sub_u32 s27, s92, s26
s_cmp_lt_i32 s27, 0
s_cbranch_scc1 X_spin
s_endpgm
""")
        for i in range(8):
            o(f"v_mov_b32 v{4+i}, s{80+2*i}")
        if "dbgst" in OPT:
            o("v_not_b32 v12, v4\nv_not_b32 v13, v9\nv_not_b32 v14, v5\nv_not_b32 v15, v10")
            for i in range(12):
                o(f"buffer_atomic_umax v{4+i}, v0, s[96:99], 0 offen offset:{8+4*i} sc1")
        else:
            o("buffer_store_dwordx4 v[4:7], v0, s[32:35], s26 offen\nbuffer_store_dwordx4 v[8:11], v0, s[32:35], s26 offen offset:16")
    o(f"""
L_end:
s_endpgm
L_round:
s_ff1_i32_b64 s{sT0}, s[{sOM}:{sOM+1}]
s_mul_i32 s{sT1}, s{sT0}, {CHUNK*8}
v_readlane_b32 s{sOC}, v{VOVF}, s{sT0}
s_lshl_b32 s{sT2}, s{sOB}, 3
s_add_u32 s{sT1}, s{sT1}, s{sT2}
s_add_u32 s{sT1}, s{sT1}, {WS_OVF}
buffer_load_dwordx4 {vr(REC,4)}, v2, s[32:35], s{sT1} offen sc1
v_lshlrev_b32 v{TMP}, 1, v0
v_add_u32 v{TMP}, s{sOB}, v{TMP}
v_add_u32 v{TMP+1}, 1, v{TMP}
v_cmp_gt_u32 s[{sV0}:{sV0+1}], s{sOC}, v{TMP}
v_cmp_gt_u32 s[{sV1}:{sV1+1}], s{sOC}, v{TMP+1}
s_add_u32 s{sOB}, s{sOB}, 2048
s_cmp_lt_u32 s{sOB}, s{sOC}
s_cbranch_scc1 L_rn2
s_bitset0_b64 s[{sOM}:{sOM+1}], s{sT0}
s_mov_b32 s{sOB}, 0
L_rn2:
s_waitcnt vmcnt(0)
v_lshrrev_b32 v{TMP}, 16, v{REC+1}
v_lshrrev_b32 v{TMP+1}, 16, v{REC+3}
v_cmp_eq_u32 s[{sM}:{sM+1}], s2, v{TMP}
s_nop 3
s_and_b64 s[{sV0}:{sV0+1}], s[{sV0}:{sV0+1}], s[{sM}:{sM+1}]
v_cmp_eq_u32 s[{sM}:{sM+1}], s2, v{TMP+1}
s_nop 3
s_and_b64 s[{sV1}:{sV1+1}], s[{sV1}:{sV1+1}], s[{sM}:{sM+1}]
""")
    sort_rank(o)
    o("s_waitcnt lgkmcnt(0)\ns_barrier")
    sort_scatter(o)
    o("s_waitcnt lgkmcnt(0)\ns_barrier")
    o("s_branch L_pr")
    bin_overflow(o)

def main(path):
    o = Asm()
    gen(o)
    hdr = f"""; MPNN edge-MLP + segment sum + node update in one launch (256 co-resident workgroups, one per CU).
; @launch grid=(256,1,1) block=(1024,1,1) lds={L_END}
.amdgcn_target "amdgcn-amd-amdhsa--gfx950"
.text
"""
    desc = f""".section .rodata,"a"
.p2align 6
.amdhsa_kernel {KNAME}
  .amdhsa_next_free_vgpr {NV}
  .amdhsa_next_free_sgpr 102
  .amdhsa_accum_offset {(NV+3)//4*4}
  .amdhsa_group_segment_fixed_size 0
  .amdhsa_kernarg_size 72
  .amdhsa_user_sgpr_count 2
  .amdhsa_user_sgpr_kernarg_segment_ptr 1
  .amdhsa_system_sgpr_workgroup_id_x 1
.end_amdhsa_kernel
"""
    open(path, "w").write(hdr + o.text() + desc)

if __name__ == "__main__":
    if "--stamp" in sys.argv:
        sys.argv.remove("--stamp")
        STAMP = True
    for a in list(sys.argv):
        if a.startswith("--steps="):
            sys.argv.remove(a)
            STEPS = a[8:].split(",")
        if a.startswith("--poll="):
            sys.argv.remove(a)
            STEP_POLL = int(a[7:])
        if a.startswith("--opt="):
            sys.argv.remove(a)
            OPT |= set(a[6:].split(","))
    main(sys.argv[1] if len(sys.argv) > 1 else "gather_scatter__mpnn_edge_mlp__graph.s")
```

```python
import sys

N = 10000
WS_WPACK = 0x500000
WS_OVFC = 0x560000
WS_OVF = 0x570000
WS_FLAG = 0x6E0000
WS_CELL = 0x700000
WS_END = 0xB00000
WS_STAMP = 0xC00000
CHUNK = 2500
CAP = 28
NEGL2E = 0xBFB8AA3B
NEGLN2 = 0xBF317218
KNAME = "gather_scatter__mpnn_edge_mlp__graph_kernel"
STAMP = False
STEP_FLAG = 14
STEPS = ["s-1", "pst", "drain", "cell"]
OPT = set()

class Asm:
    def __init__(self):
        self.l = []
    def __call__(self, s):
        for line in s.strip("\n").split("\n"):
            line = line.strip()
            if line:
                self.l.append(line if line.endswith(":") else "    " + line)
    def text(self):
        l = self.l
        def sub(a_lab, b_lab, pref):
            a = l.index(a_lab); b = l.index(b_lab)
            return l[:a] + [("    s_nop 0" if any(x.strip().startswith(p) for p in pref) else x) for x in l[a:b]] + l[b:]
        if "gplain" in OPT:
            l = [x.replace(" sc1", "") if "s[36:39], 0 offen" in x else x for x in l]
        if "gnt" in OPT:
            l = [x + " nt" if "s[36:39], 0 offen" in x else x for x in l]
        if "noprio" in OPT:
            l = [x for x in l if "s_setprio" not in x]
        if "noloop_ld" in OPT: l = sub("L_top:", "L_call0:", ["buffer_load"])
        return "\n".join(l) + "\n"

def vr(a, n):
    return f"v[{a}:{a+n-1}]" if n > 1 else f"v{a}"

def srd(o, d, lo, hi, size):
    o(f"s_mov_b32 s{d}, s{lo}\ns_mov_b32 s{d+1}, s{hi}\ns_mov_b32 s{d+2}, {size}\ns_mov_b32 s{d+3}, 0x20000")

def stamp(o, i):
    if STAMP:
        if "clk2" in OPT:
            if i in (1, 2):
                o(f"s_memrealtime s[{80+2*i}:{81+2*i}]\ns_memtime s[{84+2*i}:{85+2*i}]\ns_waitcnt lgkmcnt(0)")
            elif i not in (3, 4):
                o(f"s_memrealtime s[{80+2*i}:{81+2*i}]\ns_waitcnt lgkmcnt(0)")
            return
        o(f"s_memrealtime s[{80+2*i}:{81+2*i}]\ns_waitcnt lgkmcnt(0)")

R = 6
KMAX = 24
RS = 1040
L_QS = 0
L_AGB = (48 * RS + 511) // 512 * 512
L_HB = L_AGB + 48 * 512
L_IDX = L_HB + 16 * 1024
L_ET = L_IDX + 2064 * 4
L_CNT = (L_ET + 2052 * 16 + 255) // 256 * 256
L_HF = L_CNT + 256
L_XS = (L_HF + 256 + 511) // 512 * 512
L_END = L_XS + 48 * 512
L_IMG = 65536
L_BCNT = 131072
L_PST = L_HB
L_PK = 3 * 32768
L_ALLOC = L_END
assert L_BCNT + 1100 <= L_CNT and L_END <= 163840
RING = 4
A0, A1, Q, T0, T1, E, NN, D, AC, UA = 28, 32, 36, 40, 44, 48, 52, 56, 60, 64
VOVF, VB, IX, AD, LO, VI, VE, VN, VC, VEND, VEL = 76, 78, 79, 80, 81, 82, 83, 84, 85, 86, 126
TMP = 87
W = 94
NV = 127
PA, QA, VXA, VWA, VWS, VTG, W3, TG0, ZR = UA, 48, AD, 36, 38, 76, 62, 60, 44
XFB, WFB = [W, W + 20], [W + 12, 40]
VWB = VE
TAG = 92
sWAVE, sN0, sCNT, sHEAD, sIT, sW1, sCH = 3, 4, 5, 6, 7, 26, 27
sP, sP1, sREM, sSEGE, sSEGS, sNEND, sK, sTOT, sRND, sOB, sOC, sOFF = range(48, 60)
sV0, sV1, sOM, sRET, sSO, sM, sONE, sSC = 60, 62, 64, 66, 68, 70, 72, 74
sM0, sLD = 69, 16
sT0, sT1, sT2, sBND = 76, 77, 78, 79
sLN2 = 44
REC, RK0, RK1 = 40, 4, 5
CK = TMP + 1

def valu_block(T):
    ex = "\n".join(f"v_exp_f32 v{E+i}, v{T+i}" for i in range(4))
    pk = f"""
v_pk_fma_f32 {vr(NN,2)}, {vr(NN,2)}, {vr(E,2)}, {vr(NN,2)}
v_pk_fma_f32 {vr(NN+2,2)}, {vr(NN+2,2)}, {vr(E+2,2)}, {vr(NN+2,2)}
v_pk_fma_f32 {vr(NN,2)}, {vr(T,2)}, {vr(D,2)}, {vr(NN,2)}
v_pk_fma_f32 {vr(NN+2,2)}, {vr(T+2,2)}, {vr(D+2,2)}, {vr(NN+2,2)}
v_pk_fma_f32 {vr(D,2)}, {vr(D,2)}, {vr(E,2)}, {vr(D,2)}
v_pk_fma_f32 {vr(D+2,2)}, {vr(D+2,2)}, {vr(E+2,2)}, {vr(D+2,2)}
"""
    return ex, pk

def poll(o, tag, soff, count):
    o(f"""
v_lshlrev_b32 v{TMP}, 7, v1
s_mov_b32 s{sT1}, 0
s_mov_b64 exec, {"-1" if count == 64 else hex((1 << count) - 1)}
F_pl{tag}:
buffer_load_dwordx2 {vr(TMP+1,2)}, v{TMP}, s[32:35], {soff} offen sc1
s_add_u32 s{sT1}, s{sT1}, 1
s_waitcnt vmcnt(0)
v_cmpx_ne_u64 vcc, s[100:101], {vr(TMP+1,2)}
s_nop 4
s_cbranch_execz F_pd{tag}
s_sleep 2
s_cmp_lt_u32 s{sT1}, 0x10000
s_cbranch_scc1 F_pl{tag}
F_pd{tag}:
s_mov_b64 exec, -1
""")

def get_tag(o, tag):
    o(f"""
s_mov_b32 s{sT1}, 0
F_tg{tag}:
v_readfirstlane_b32 s100, v{TAG}
v_readfirstlane_b32 s101, v{TAG+1}
s_add_u32 s{sT1}, s{sT1}, 1
s_cmp_ge_u32 s{sT1}, 0x10000
s_cbranch_scc1 F_th{tag}
s_cmp_lg_u32 s100, 0
s_cbranch_scc1 F_th{tag}
buffer_load_dwordx2 {vr(TAG,2)}, v{VTG}, s[96:99], 0 offen sc1
s_waitcnt vmcnt(0)
s_branch F_tg{tag}
F_th{tag}:
""")

def put_flag(o, soff):
    o(f"""
v_mov_b32 v{TMP+1}, s100
v_mov_b32 v{TMP+2}, s101
s_mov_b64 exec, 1
buffer_store_dwordx2 {vr(TMP+1,2)}, v{VTG}, s[32:35], {soff} offen sc1
s_mov_b64 exec, -1
""")

def sort_rank(o):
    o(f"""
s_mov_b32 s{sT0}, {L_CNT}
v_mov_b32 v{TMP+4}, 0xfc
v_mov_b32 v{TMP+3}, 1
v_and_or_b32 v{TMP}, v{REC}, v{TMP+4}, s{sT0}
v_and_or_b32 v{TMP+1}, v{REC+2}, v{TMP+4}, s{sT0}
s_mov_b64 exec, s[{sV0}:{sV0+1}]
ds_add_rtn_u32 v{RK0}, v{TMP}, v{TMP+3}
s_mov_b64 exec, s[{sV1}:{sV1+1}]
ds_add_rtn_u32 v{RK1}, v{TMP+1}, v{TMP+3}
s_mov_b64 exec, -1
v_add_u32 v{TMP+4}, s{sT0}, v{LO}
""")

def sort_scatter(o):
    o(f"""
ds_read_b32 v{TMP+2}, v{TMP+4}
v_and_b32 v{REC}, 0xfffffe00, v{REC}
v_and_b32 v{REC+2}, 0xfffffe00, v{REC+2}
s_mov_b32 s{sT0}, {L_IDX}
s_mov_b32 s{sT1}, {L_ET}
s_waitcnt lgkmcnt(0)
v_add_u32_dpp v{VEND}, v{TMP+2}, v{TMP+2} row_shr:1 row_mask:0xf bank_mask:0xf bound_ctrl:0
s_nop 1
v_add_u32_dpp v{VEND}, v{VEND}, v{VEND} row_shr:2 row_mask:0xf bank_mask:0xf bound_ctrl:0
s_nop 1
v_add_u32_dpp v{VEND}, v{VEND}, v{VEND} row_shr:4 row_mask:0xf bank_mask:0xf bound_ctrl:0
s_nop 1
v_add_u32_dpp v{VEND}, v{VEND}, v{VEND} row_shr:8 row_mask:0xf bank_mask:0xf bound_ctrl:0
s_nop 1
v_add_u32_dpp v{VEND}, v{VEND}, v{VEND} row_bcast:15 row_mask:0xa bank_mask:0xf
s_nop 1
v_add_u32_dpp v{VEND}, v{VEND}, v{VEND} row_bcast:31 row_mask:0xc bank_mask:0xf
v_sub_u32 v{TMP+3}, v{VEND}, v{TMP+2}
v_readlane_b32 s{sTOT}, v{VEND}, 63
ds_bpermute_b32 v{TMP}, v{TMP}, v{TMP+3}
ds_bpermute_b32 v{TMP+1}, v{TMP+1}, v{TMP+3}
s_nop 1
s_add_u32 s{sCH}, s{sTOT}, 15
s_lshr_b32 s{sCH}, s{sCH}, 4
s_mul_i32 s{sP}, s{sCH}, s{sWAVE}
s_add_u32 s{sP1}, s{sP}, s{sCH}
s_min_u32 s{sP}, s{sP}, s{sTOT}
s_min_u32 s{sP1}, s{sP1}, s{sTOT}
s_waitcnt lgkmcnt(0)
v_add_u32 v{TMP}, v{TMP}, v{RK0}
v_add_u32 v{TMP+1}, v{TMP+1}, v{RK1}
v_lshl_add_u32 v{TMP+2}, v{TMP}, 2, s{sT0}
v_lshl_add_u32 v{TMP+3}, v{TMP+1}, 2, s{sT0}
v_lshl_add_u32 v{TMP}, v{TMP}, 4, s{sT1}
v_lshl_add_u32 v{TMP+1}, v{TMP+1}, 4, s{sT1}
s_mov_b64 exec, s[{sV0}:{sV0+1}]
ds_write_b32 v{TMP+2}, v{REC}
ds_write_b16 v{TMP}, v{REC+1} offset:8
ds_write_b16 v{TMP}, v{REC+1} offset:14
s_mov_b64 exec, s[{sV1}:{sV1+1}]
ds_write_b32 v{TMP+3}, v{REC+2}
ds_write_b16 v{TMP+1}, v{REC+3} offset:8
ds_write_b16 v{TMP+1}, v{REC+3} offset:14
s_mov_b64 exec, -1
""")

def zero_cnt(o):
    o(f"v_mov_b32 v{TMP}, 0\nds_write_b32 v{TMP+4}, v{TMP}")

def prime(o):
    PT = T0
    o(f"""
s_lshl_b32 s{sT0}, s{sP}, 2
s_add_u32 s{sT0}, s{sT0}, {L_IDX}
v_mov_b32 v{VI}, s{sT0}
s_lshl_b32 s{sT0}, s{sP}, 4
v_add_u32 v{VE}, s{sT0}, v{VEL}
""")
    for k in range(0, R, 2):
        o(f"ds_read2_b32 {vr(PT+k,2)}, v{VI} offset0:{k} offset1:{k+1}")
    o(f"""
ds_read_b32 v{IX}, v{VI} offset:{4*R}
ds_read2_b32 {vr(A0+2,2)}, v{VE} offset0:0 offset1:2
ds_read2_b32 {vr(A1+2,2)}, v{VE} offset0:4 offset1:6
s_waitcnt lgkmcnt(0)
""")
    for k in range(R):
        o(f"v_add_u32 v{PT+k}, v{PT+k}, v{LO}")
    for k in range(R):
        B = RING + 4*k
        o(f"buffer_load_dword v{B}, v{PT+k}, s[36:39], 0 offen sc1")
        o(f"buffer_load_dword v{B+1}, v{PT+k}, s[36:39], 0 offen offset:256 sc1")

def wloads(o, mat, wreg):
    o(f"""
s_lshl_b32 s{sT0}, s{sWAVE}, 13
s_add_u32 s{sT0}, s{sT0}, {WS_WPACK + mat*131072}
s_add_u32 s{sT1}, s{sT0}, 4096
v_lshlrev_b32 v{TMP+5}, 4, v1
""")
    for ks in range(8):
        o(f"buffer_load_dwordx4 {vr(wreg+4*ks,4)}, v{TMP+5}, s[32:35], s{sT0 if ks < 4 else sT1} offen offset:{(ks%4)*1024} sc1")

DST, SRC, EA, OWN, RK, R0 = 8, 12, 16, 20, 24, 28
EW = [EA, 18, EA + 1, 19]
sBM = 58
def bin_rank(o):
    o(f"v_mov_b32 v{TMP+3}, 1\ns_mov_b64 exec, s[{sBM}:{sBM+1}]")
    for k in range(4):
        o(f"""
v_mul_u32_u24 v{OWN+k}, s56, v{DST+k}
v_lshrrev_b32 v{OWN+k}, 24, v{OWN+k}
v_lshl_add_u32 v{TMP+4}, v{OWN+k}, 2, s60
ds_add_rtn_u32 v{RK+k}, v{TMP+4}, v{TMP+3}
""")
    for k in range(4):
        o(f"""
v_mad_u32_u24 v{TMP+1}, v{OWN+k}, s57, 15
v_lshrrev_b32 v{TMP+1}, 4, v{TMP+1}
v_sub_u32 v{DST+k}, v{DST+k}, v{TMP+1}
v_lshl_add_u32 v{R0+k}, v{SRC+k}, 7, v{DST+k}
v_lshlrev_b32 v{R0+k}, 2, v{R0+k}
v_lshl_add_u32 v{DST+k}, v{OWN+k}, 8, s61
""")
    o(f"""
v_lshrrev_b32 v18, 16, v{EA}
v_lshrrev_b32 v19, 16, v{EA+1}
s_waitcnt lgkmcnt(0)
v_max3_u32 v{TMP}, v{RK}, v{RK+1}, v{RK+2}
v_max_u32 v{TMP}, v{TMP}, v{RK+3}
v_cmp_le_u32 vcc, {CAP}, v{TMP}
""")
    for k in range(4):
        o(f"""
v_mul_u32_u24 v{SRC+k}, 37, v{RK+k}
v_lshrrev_b32 v{SRC+k}, 8, v{SRC+k}
v_add_u32 v{SRC+k}, v{SRC+k}, v{RK+k}
v_lshl_add_u32 v{DST+k}, v{SRC+k}, 3, v{DST+k}
""")
    o("s_cbranch_vccnz F_ovf")
    for k in range(4):
        o(f"ds_write2_b32 v{DST+k}, v{R0+k}, v{EW[k]} offset0:2 offset1:3")
    o("F_ovfback:\ns_mov_b64 exec, -1")

def bin_overflow(o):
    o(f"F_ovf:\ns_mul_i32 s50, s2, {CHUNK*8}\ns_add_u32 s50, s50, {WS_OVF}\nv_mov_b32 v{TMP}, {L_BCNT+1024}")
    for k in range(4):
        o(f"""
v_cmp_gt_u32 vcc, {CAP}, v{RK+k}
s_and_saveexec_b64 s[62:63], vcc
ds_write2_b32 v{DST+k}, v{R0+k}, v{EW[k]} offset0:2 offset1:3
s_andn2_b64 exec, s[62:63], exec
s_cbranch_execz F_no{k}
ds_add_rtn_u32 v{TMP+4}, v{TMP}, v{TMP+3}
v_mov_b32 v{TMP+1}, v{R0+k}
v_and_b32 v{TMP+2}, 0xffff, v{EW[k]}
v_lshl_or_b32 v{TMP+2}, v{OWN+k}, 16, v{TMP+2}
s_waitcnt lgkmcnt(0)
v_lshlrev_b32 v{TMP+4}, 3, v{TMP+4}
buffer_store_dwordx2 {vr(TMP+1,2)}, v{TMP+4}, s[32:35], s50 offen sc1
s_waitcnt vmcnt(0)
F_no{k}:
s_mov_b64 exec, s[62:63]
""")
    o("s_branch F_ovfback")

def bin_copy(o):
    o(f"""
v_lshrrev_b32 v24, 3, v0
v_and_b32 v25, 7, v0
v_lshlrev_b32 v25, 4, v25
v_lshl_add_u32 v26, v24, 8, v25
v_lshl_add_u32 v27, v24, 14, v25
v_add_u32 v26, s61, v26
v_lshl_add_u32 v24, v24, 2, s60
ds_read2st64_b32 v[28:29], v24 offset0:0 offset1:2
ds_read_b128 v[8:11], v26
ds_read_b128 v[12:15], v26 offset:32768
ds_read_b128 v[16:19], v26 offset:128
ds_read_b128 v[20:23], v26 offset:{32768+128}
v_mov_b32 v30, {L_BCNT+1024}
ds_read_b32 v30, v30
v_and_b32 v25, 48, v25
v_cmp_eq_u32 s[{sBM}:{sBM+1}], 0, v25
s_lshl_b32 s49, s2, 8
s_add_u32 s49, s49, {WS_CELL}
s_add_u32 s50, s49, {128*16384}
v_mov_b32 v25, 0x7f000000
v_mov_b32 v31, s100
s_waitcnt lgkmcnt(5)
v_cmp_lt_u32 vcc, 14, v28
v_min_u32 v28, {CAP}, v28
v_cmp_lt_u32 s[62:63], 14, v29
v_min_u32 v29, {CAP}, v29
v_cndmask_b32 v24, v25, v27, vcc
v_cndmask_b32 v25, v25, v27, s[62:63]
s_waitcnt lgkmcnt(4)
v_cndmask_b32 v8, v8, v28, s[{sBM}:{sBM+1}]
v_cndmask_b32 v9, v9, v31, s[{sBM}:{sBM+1}]
buffer_store_dwordx4 v[8:11], v27, s[32:35], s49 offen sc1
s_waitcnt lgkmcnt(3)
v_cndmask_b32 v12, v12, v29, s[{sBM}:{sBM+1}]
v_cndmask_b32 v13, v13, v31, s[{sBM}:{sBM+1}]
buffer_store_dwordx4 v[12:15], v27, s[32:35], s50 offen sc1
s_waitcnt lgkmcnt(2)
v_cndmask_b32 v17, v17, v31, s[{sBM}:{sBM+1}]
buffer_store_dwordx4 v[16:19], v24, s[32:35], s49 offen offset:128 sc1
s_waitcnt lgkmcnt(1)
v_cndmask_b32 v21, v21, v31, s[{sBM}:{sBM+1}]
buffer_store_dwordx4 v[20:23], v25, s[32:35], s50 offen offset:128 sc1
s_cmp_lg_u32 s{sWAVE}, 0
s_cbranch_scc1 F_bc1
s_lshl_b32 s50, s2, 3
s_add_u32 s50, s50, {WS_OVFC}
s_mov_b64 exec, 1
s_waitcnt lgkmcnt(0)
buffer_store_dwordx2 v[30:31], v{VTG}, s[32:35], s50 offen sc1
s_mov_b64 exec, -1
F_bc1:
""")

def gen(o):
    XNT = "" if "nont" in OPT else "nt"
    AA = [A0, A1]
    TT = [T0, T1]
    o(f"""
.globl {KNAME}
.p2align 8
.type {KNAME},@function
{KNAME}:
s_cmp_ge_u32 s2, 256
s_cbranch_scc1 L_end
s_load_dwordx2 s[28:29], s[0:1], 0
s_load_dwordx2 s[44:45], s[0:1], 32
s_load_dwordx2 s[36:37], s[0:1], 24
s_load_dwordx2 s[12:13], s[0:1], 16
s_load_dwordx2 s[52:53], s[0:1], 8
s_load_dwordx2 s[40:41], s[0:1], 40
s_load_dwordx2 s[32:33], s[0:1], 64
s_load_dwordx2 s[96:97], s[0:1], 56
s_load_dwordx2 s[20:21], s[0:1], 48
s_memrealtime s[100:101]
""")
    if STAMP: o("s_memrealtime s[80:81]")
    o(f"""
v_lshrrev_b32 v2, 6, v0
v_and_b32 v1, 63, v0
s_mul_i32 s{sN0}, s2, 625
v_readfirstlane_b32 s{sWAVE}, v2
v_lshrrev_b32 v4, 5, v1
v_and_b32 v6, 31, v1
s_add_u32 s{sCNT}, s{sN0}, 640
s_add_u32 s{sN0}, s{sN0}, 15
s_lshr_b32 s{sN0}, s{sN0}, 4
s_lshl_b32 s50, s{sWAVE}, 1
v_add_u32 v5, s50, v4
v_lshlrev_b32 v2, 4, v0
v_and_b32 v7, 15, v5
v_xor_b32 v7, v7, v6
v_lshlrev_b32 v7, 4, v7
v_lshl_add_u32 v7, v4, 9, v7
s_mov_b32 s30, {N*512}
s_mov_b32 s31, 0x20000
s_mov_b32 s46, {513*512}
s_mov_b32 s47, 0x20000
s_mov_b32 s42, {512*512}
s_mov_b32 s43, 0x20000
s_mov_b32 s38, 640000
s_mov_b32 s39, 0x20000
s_mov_b32 s14, 640000
s_mov_b32 s15, 0x20000
s_mov_b32 s54, 320000
s_mov_b32 s55, 0x20000
s_lshl_b32 s{sSO}, s{sWAVE}, 10
s_lshl_b32 s51, s{sN0}, 9
s_add_u32 s51, s51, s{sSO}
v_and_b32 v{TMP}, 3, v5
v_bfe_u32 v{TMP+1}, v5, 3, 1
v_lshl_or_b32 v{TMP}, v{TMP+1}, 2, v{TMP}
v_lshlrev_b32 v{TMP}, 1, v{TMP}
v_xor_b32 v{TMP}, v{TMP}, v6
v_lshlrev_b32 v{TMP}, 4, v{TMP}
v_lshl_add_u32 v{VWS}, v4, 9, v{TMP}
v_lshlrev_b32 v{LO}, 2, v1
s_sub_u32 s48, s2, 64
v_mov_b32 v{VTG}, 0
s_cmp_ge_u32 s2, 64
s_cbranch_scc1 F_nobl
s_mul_i32 s49, s2, 10000
s_mul_i32 s50, s2, 5000
v_lshlrev_b32 v{TMP}, 3, v0
v_lshlrev_b32 v6, 2, v0
v_add_u32 v6, {L_BCNT}, v6
s_cmp_ge_u32 s{sWAVE}, 5
s_cbranch_scc1 F_nbz
ds_write_b32 v6, v{VTG}
F_nbz:
s_waitcnt lgkmcnt(0)
buffer_load_dwordx4 {vr(DST,4)}, v2, s[36:39], s49 offen {XNT}
buffer_load_dwordx4 {vr(SRC,4)}, v2, s[12:15], s49 offen {XNT}
buffer_load_dwordx2 {vr(EA,2)}, v{TMP}, s[52:55], s50 offen {XNT}
s_barrier
F_nobl:
s_add_u32 m0, s{sSO}, {L_XS}
s_cmp_ge_u32 s{sWAVE}, 4
s_waitcnt lgkmcnt(0)
buffer_load_dwordx4 v7, s[28:31], s51 offen {XNT} lds
s_cbranch_scc1 F_nox2
s_add_u32 m0, s{sSO}, {L_XS + 16384}
s_add_u32 s50, s51, 16384
buffer_load_dwordx4 v7, s[28:31], s50 offen {XNT} lds
F_nox2:
s_sub_u32 s50, s{sWAVE}, 6
s_cmp_ge_u32 s50, 2
s_cbranch_scc1 F_ntc
s_lshr_b32 s49, s2, 3
s_lshl_b32 s49, s49, 13
s_lshl_b32 s50, s50, 12
s_add_u32 s49, s49, s50
v_lshlrev_b32 v5, 6, v1
buffer_load_dword v77, v5, s[44:47], s49 offen
F_ntc:
""")
    ops = []
    def vm(target):
        return len(ops) - 1 - max(i for i, x in enumerate(ops) if x == target)
    def dma(s):
        for m in range(2):
            o(f"""
s_add_u32 m0, s{sSO}, {(s & 3) * 32768 + m*16384}
s_add_u32 s{sM0}, s{sSO}, {m*131072 + s*16384}
buffer_load_dwordx4 v{VWS}, s[44:47], s{sM0} offen lds
""")
        ops.extend([("d", s)] * 2)
    def first_dmas(count):
        dma(0)
        o("s_barrier")
        dma(1)
        if not count:
            del ops[-4:]
    o("s_cmp_lt_u32 s2, 64\ns_cbranch_scc1 F_nl0")
    first_dmas(True)
    o(f"""
s_cmp_ge_u32 s48, 16
s_cbranch_scc1 F_nl0
s_lshl_b32 s49, s48, 14
s_add_u32 m0, s{sSO}, {L_PK}
s_add_u32 s49, s49, s{sSO}
buffer_load_dwordx4 v{VWS}, s[40:43], s49 offen lds
""")
    o(f"""
F_nl0:
s_mov_b32 s50, {512*512}
buffer_load_dword v{W3}, v{LO}, s[44:47], s50 offen
buffer_load_dword v{W3+1}, v{LO}, s[44:47], s50 offen offset:256
s_mov_b32 s34, {WS_END}
s_mov_b32 s35, 0x20000
s_mov_b32 s98, 256
s_mov_b32 s99, 0x20000
s_cmp_lg_u32 s2, 255
s_cbranch_scc1 F_nont
s_cmp_lg_u32 s{sWAVE}, 0
s_cbranch_scc1 F_nont
s_or_b32 s49, s100, 1
v_mov_b32 v4, s49
v_mov_b32 v5, s101
s_mov_b64 exec, 1
buffer_store_dwordx2 v[4:5], v{VTG}, s[96:99], 0 offen sc1
s_mov_b64 exec, -1
F_nont:
s_lshr_b32 s{sCNT}, s{sCNT}, 4
s_sub_u32 s{sCNT}, s{sCNT}, s{sN0}
v_lshlrev_b32 v{VC}, 3, v1
v_lshrrev_b32 v3, 4, v1
v_and_b32 v4, 15, v1
v_xor_b32 v{VXA}, v4, v3
v_lshlrev_b32 v{VXA}, 4, v{VXA}
v_lshl_add_u32 v{VXA}, v4, 9, v{VXA}
v_add_u32 v{VXA}, {L_XS}, v{VXA}
v_bfe_u32 v5, v1, 2, 2
v_and_b32 v6, 3, v1
v_lshl_add_u32 v{VWA}, v3, 3, v5
v_lshlrev_b32 v{VWA}, 9, v{VWA}
v_lshl_add_u32 v{VWA}, v6, 3, v{VWA}
v_and_b32 v6, 1, v3
v_lshl_or_b32 v6, v6, 2, v5
v_xor_b32 v6, s{sWAVE}, v6
v_lshl_add_u32 v{VWA}, v6, 5, v{VWA}
v_add_u32 v{VWB}, 0x10000, v{VWA}
v_add_u32 v{TMP+4}, {L_CNT}, v{LO}
ds_write2st64_b32 v{TMP+4}, v{VTG}, v{VTG} offset0:0 offset1:1
s_mov_b32 s{sSC}, {NEGL2E:#x}
s_mov_b32 s{sSC+1}, {NEGL2E:#x}
v_lshrrev_b32 v5, 1, v3
s_lshl_b32 s{sT1}, s{sWAVE}, 1
v_or_b32 v5, s{sT1}, v5
v_xor_b32 v5, v5, v4
v_lshlrev_b32 v5, 4, v5
v_lshl_add_u32 v{VN}, v4, 9, v5
v_and_b32 v5, 1, v3
v_lshl_add_u32 v{VN}, v5, 3, v{VN}
v_add_u32 v{VN}, {L_PST}, v{VN}
v_lshrrev_b32 v{VB}, 5, v0
v_add_u32 v5, 32, v{VB}
v_cmp_gt_u32 vcc, s{sCNT}, v5
v_lshlrev_b32 v{VB}, 4, v{VB}
v_xor_b32 v{VB}, v{VB}, v2
v_add_u32 v{VB}, {L_PST}, v{VB}
v_add_u32 v{VI}, 0x4000, v2
v_mov_b32 v5, 0x7ffffff0
v_cndmask_b32 v{VI}, v5, v{VI}, vcc
s_mov_b64 s[8:9], s[32:33]
s_mov_b32 s10, {N*512}
s_mov_b32 s11, 0x20000
s_cmp_ge_u32 s2, 64
s_cbranch_scc1 F_nbr
s_movk_i32 s57, 625
v_cmp_gt_u32 s[{sBM}:{sBM+1}], s57, v0
s_mov_b32 s56, 429497
s_mov_b32 s60, {L_BCNT}
s_mov_b32 s61, {L_IMG}
buffer_load_dwordx2 {vr(TAG,2)}, v{VTG}, s[96:99], 0 offen sc1
s_waitcnt vmcnt(4)
""")
    st0 = lambda name: stamp(o, (1, 2, 3, 4, 6)[STEPS.index(name)]) if name in STEPS else None
    st0("edge")
    bin_rank(o)
    o("s_waitcnt lgkmcnt(0)")
    first_dmas(False)
    o("s_waitcnt vmcnt(4)")
    get_tag(o, "b")
    bin_copy(o)
    o("F_nbr:")
    st0("copy")
    ops += ["w3", "w3"]
    def st(name):
        if name in STEPS: stamp(o, (1, 2, 3, 4, 6)[STEPS.index(name)])
    def reads(s):
        l = []
        a = VXA
        if s:
            a = TMP + 6
            o(f"v_xor_b32 v{a}, {64*s}, v{VXA}")
        xf, wf = XFB[s & 1], WFB[s & 1]
        wa = VWA if (s & 3) < 2 else VWB
        for rt in range(3):
            l.append(f"ds_read_b128 {vr(xf+4*rt,4)}, v{a} offset:{rt*8192}")
        for m in range(2):
            off = (s & 1) * 32768 + m * 16384
            l.append(f"ds_read_b64_tr_b16 {vr(wf+4*m,2)}, v{wa} offset:{off}\nds_read_b64_tr_b16 {vr(wf+4*m+2,2)}, v{wa} offset:{off + 2048}")
        return l
    SCHED = {-1: [2], 0: [3, 4], 1: [5], 2: [6], 3: [7]}
    for s in range(-1, 8):
        if s < 7:
            n = vm(("d", s + 1))
            if s <= 0:
                o(f"""
s_cmp_lt_u32 s2, 64
s_cbranch_scc1 F_wb{s+1}
s_waitcnt vmcnt({n})
F_wb{s+1}:
s_waitcnt vmcnt({n+2})
""")
                if s == -1:
                    o("s_cmp_ge_u32 s48, 16\ns_cbranch_scc1 F_wp\ns_waitcnt vmcnt(2)\nF_wp:")
                o("s_waitcnt lgkmcnt(0)\ns_barrier")
            else:
                o(f"s_waitcnt vmcnt({n}) lgkmcnt(0)\ns_barrier")
        else:
            o("s_waitcnt lgkmcnt(0)\ns_barrier")
        st(f"s{s}")
        if s == -1:
            o(f"buffer_load_dwordx2 {vr(TG0,2)}, v{VTG}, s[96:99], 0 offen sc1")
            ops.append("tag")
        rd = reads(s + 1) if s < 7 else []
        mm = []
        if s >= 0:
            for m, acc in enumerate((PA, QA)):
                for rt in range(3):
                    c = "0" if s == 0 else vr(acc+4*rt, 4)
                    mm.append(f"v_mfma_f32_16x16x32_bf16 {vr(acc+4*rt,4)}, {vr(WFB[s&1]+4*m,4)}, {vr(XFB[s&1]+4*rt,4)}, {c}")
        while rd or mm:
            if mm: o(mm.pop(0))
            if rd: o(rd.pop(0))
        for t in SCHED.get(s, []):
            dma(t)
        if s == -1:
            o(f"""
s_cmp_ge_u32 s48, 16
s_cbranch_scc1 F_d0
ds_read_b64_tr_b16 v[4:5], v{VWB} offset:32768
ds_read_b64_tr_b16 v[6:7], v{VWB} offset:{32768+2048}
s_lshl_b32 s50, s{sWAVE}, 13
s_and_b32 s49, s48, 7
s_lshl_b32 s49, s49, 10
s_add_u32 s50, s50, s49
s_lshr_b32 s49, s48, 3
s_lshl_b32 s49, s49, 17
s_add_u32 s50, s50, s49
s_add_u32 s50, s50, {WS_WPACK}
v_lshlrev_b32 v12, 4, v1
s_waitcnt lgkmcnt(0)
buffer_store_dwordx4 v[4:7], v12, s[32:35], s50 offen sc1
F_d0:
""")
        if s == 2:
            assert ops.index("tag") < ops.index(("d", 3))
            o(f"s_cmp_ge_u32 s48, 16\ns_cbranch_scc1 F_d5\ns_cmp_lg_u32 s{sWAVE}, 0\ns_cbranch_scc1 F_d5\nv_mov_b64 {vr(TAG,2)}, {vr(TG0,2)}")
            get_tag(o, "p")
            o(f"s_lshl_b32 s{sT0}, s48, 7\ns_add_u32 s{sT0}, s{sT0}, {WS_FLAG + 256*128}")
            put_flag(o, f"s{sT0}")
            o("F_d5:")
    o(f"s_lshl_b32 s{sT2}, s{sN0}, 9\ns_add_u32 s{sT1}, s{sT2}, 8192\ns_nop 0")
    for rt in range(3):
        a_ = PA + 4*rt
        o(f"""
v_pk_mul_f32 {vr(a_,2)}, {vr(a_,2)}, s[{sSC}:{sSC+1}]
v_pk_mul_f32 {vr(a_+2,2)}, {vr(a_+2,2)}, s[{sSC}:{sSC+1}]
v_cvt_pk_bf16_f32 v{W+2*rt}, v{a_}, v{a_+1}
v_cvt_pk_bf16_f32 v{W+2*rt+1}, v{a_+2}, v{a_+3}
ds_write_b64 v{VN}, {vr(W+2*rt,2)} offset:{rt*8192}
""")
    o(f"""
s_cmp_lt_u32 s{sWAVE}, 8
s_waitcnt lgkmcnt(0)
s_barrier
s_cbranch_scc0 F_nps
ds_read_b128 {vr(W,4)}, v{VB}
ds_read_b128 {vr(W+4,4)}, v{VB} offset:8192
ds_read_b128 {vr(W+8,4)}, v{VB} offset:16384
s_waitcnt lgkmcnt(2)
buffer_store_dwordx4 {vr(W,4)}, v2, s[8:11], s{sT2} offen sc1
s_waitcnt lgkmcnt(1)
buffer_store_dwordx4 {vr(W+4,4)}, v2, s[8:11], s{sT1} offen sc1
s_waitcnt lgkmcnt(0)
buffer_store_dwordx4 {vr(W+8,4)}, v{VI}, s[8:11], s{sT2} offen sc1
F_nps:
s_barrier
""")
    st("pst")
    o(f"""
s_lshl_b32 s{sOFF}, s2, 14
s_add_u32 s{sOFF}, s{sOFF}, {WS_CELL}
buffer_load_dwordx4 {vr(REC,4)}, v2, s[32:35], s{sOFF} offen sc1
v_mov_b64 {vr(TAG,2)}, {vr(TG0,2)}
""")
    get_tag(o, "m")
    o(f"s_cmp_lg_u32 s{sWAVE}, 15\ns_cbranch_scc1 F_npk\ns_mov_b32 s{sT0}, {WS_FLAG + 256*128}")
    poll(o, "k", f"s{sT0}", 16)
    o("F_npk:")
    o(f"s_mov_b32 s{sT2}, 0\ns_waitcnt vmcnt(1)\ns_barrier")
    st("drain")
    o(f"s_cmp_lg_u32 s{sWAVE}, 0\ns_cbranch_scc1 F_nfp\ns_lshl_b32 s{sT0}, s2, 7\ns_add_u32 s{sT0}, s{sT0}, {WS_FLAG}")
    put_flag(o, f"s{sT0}")
    o("F_nfp:")
    wloads(o, 0, W)
    o(f"""
v_mov_b64 {vr(ZR,2)}, 0
v_mov_b64 {vr(ZR+2,2)}, 0
v_add_u32 v{VB}, {L_AGB}, v2
v_add_u32 v{VI}, {L_ET}, v2
ds_write_b128 v{VB}, {vr(ZR,4)}
ds_write_b128 v{VB}, {vr(ZR,4)} offset:4096
ds_write_b128 v{VI}, {vr(ZR,4)}
ds_write_b128 v{VI}, {vr(ZR,4)} offset:16384
ds_write_b128 v{VI}, {vr(ZR,4)} offset:16448
""")
    o(f"""
v_lshlrev_b32 v{TMP}, 16, v{W3}
v_and_b32 v{TMP+1}, 0xffff0000, v{W3}
v_lshlrev_b32 v{TMP+2}, 16, v{W3+1}
v_and_b32 v{TMP+3}, 0xffff0000, v{W3+1}
v_mul_f32 v{TMP}, s{sSC}, v{TMP}
v_mul_f32 v{TMP+1}, s{sSC}, v{TMP+1}
v_mul_f32 v{TMP+2}, s{sSC}, v{TMP+2}
v_mul_f32 v{TMP+3}, s{sSC}, v{TMP+3}
v_cvt_pk_bf16_f32 v6, v{TMP}, v{TMP+1}
v_cvt_pk_bf16_f32 v7, v{TMP+2}, v{TMP+3}
""")
    for k in range(1, R):
        o(f"v_mov_b64 {vr(RING+4*k+2,2)}, v[6:7]")
    o(f"""
v_and_b32 v{TMP}, 3, v1
v_bfe_u32 v{TMP+1}, v1, 2, 2
v_cmp_eq_u32 vcc, v{TMP+1}, v3
v_and_b32 v{TMP+2}, 1, v1
v_lshlrev_b32 v{TMP+2}, 4, v{TMP+2}
v_mov_b32 v{TMP+3}, 0x3f80
v_lshlrev_b32 v{TMP+3}, v{TMP+2}, v{TMP+3}
v_cndmask_b32 v{TMP+3}, 0, v{TMP+3}, vcc
v_xor_b32 v{VEL}, 2, v{TMP}
v_lshlrev_b32 v{VEL}, 2, v{VEL}
v_add_u32 v{VEL}, {L_ET}, v{VEL}
v_mov_b32 v{TMP+2}, 0x30000
v_cndmask_b32 v{VEL}, v{TMP+2}, v{VEL}, vcc
v_cmp_gt_u32 vcc, 2, v{TMP}
s_mov_b32 s{sONE}, 1.0
s_mov_b32 s{sONE+1}, 1.0
v_cndmask_b32 v{A0}, 0, v{TMP+3}, vcc
v_cndmask_b32_e64 v{A0+1}, v{TMP+3}, 0, vcc
v_mov_b64 {vr(A1,2)}, {vr(A0,2)}
""")
    o(f"""
s_mov_b32 s{sBND}, 0x7b800000
s_mov_b32 s{sW1}, 0
s_mov_b32 s{sRND}, 0
s_mov_b64 s[40:41], s[20:21]
s_mov_b32 s42, {N*512}
s_mov_b64 s[36:37], s[32:33]
s_mov_b32 s38, {N*512}
s_mov_b32 s{sLN2}, {NEGLN2:#x}
s_mov_b32 s{sLN2+1}, {NEGLN2:#x}
s_movk_i32 s{sT0}, {RS}
v_and_b32 v{IX}, 15, v1
v_mul_u32_u24 v{IX}, s{sT0}, v{IX}
v_lshl_add_u32 v{IX}, v3, 4, v{IX}
s_lshl_b32 s{sT0}, s{sWAVE}, 6
v_add_u32 v{IX}, s{sT0}, v{IX}
v_bfe_u32 v{RK0}, v0, 2, 2
v_mul_u32_u24 v{RK0}, 7, v{RK0}
v_and_b32 v{TMP}, 3, v0
v_lshl_add_u32 v{RK1}, v{TMP}, 1, v{RK0}
v_cmp_eq_u32 vcc, 0, v{TMP}
v_add_u32 v8, -1, v{RK1}
v_mov_b32 v9, 64
v_cndmask_b32 v8, v8, v9, vcc
""")
    for rt in range(3):
        o(f"""
v_pk_mul_f32 {vr(QA+4*rt,2)}, {vr(QA+4*rt,2)}, s[{sSC}:{sSC+1}]
v_pk_mul_f32 {vr(QA+4*rt+2,2)}, {vr(QA+4*rt+2,2)}, s[{sSC}:{sSC+1}]
ds_write_b128 v{IX}, {vr(QA+4*rt,4)} offset:{L_QS + rt*16*RS}
""")
    st("q")
    o(f"""
s_waitcnt vmcnt(8)
F_cl:
v_mov_b32_dpp v{TMP}, v{REC+1} row_newbcast:0 row_mask:0xf bank_mask:0xf
v_mov_b32_dpp v{TMP+1}, v{REC} row_newbcast:0 row_mask:0xf bank_mask:0xf
v_mov_b32_dpp v{TMP+2}, v{REC+1} quad_perm:[0,0,0,0] row_mask:0xf bank_mask:0xf
v_cmp_eq_u32 vcc, s100, v{TMP}
v_cmp_ne_u32 s[{sM}:{sM+1}], s100, v{TMP+2}
s_add_u32 s{sT2}, s{sT2}, 1
v_cndmask_b32 v{TMP+1}, 0, v{TMP+1}, vcc
v_max_u32 v{TMP+3}, 1, v{TMP+1}
v_cmp_lt_u32 vcc, v{RK0}, v{TMP+3}
s_cmp_ge_u32 s{sT2}, 0x10000
s_cbranch_scc1 F_cd
s_and_b64 exec, vcc, s[{sM}:{sM+1}]
s_cbranch_execz F_cd
s_sleep 1
buffer_load_dwordx4 {vr(REC,4)}, v2, s[32:35], s{sOFF} offen sc1
s_mov_b64 exec, -1
s_waitcnt vmcnt(0)
s_branch F_cl
F_cd:
s_mov_b64 exec, -1
v_cmp_gt_u32 s[{sV0}:{sV0+1}], v{TMP+1}, v8
v_cmp_gt_u32 s[{sV1}:{sV1+1}], v{TMP+1}, v{RK1}
""")
    st("cell")
    sort_rank(o)
    o("s_waitcnt lgkmcnt(0)\ns_barrier")
    sort_scatter(o)
    o(f"""
s_lshl_b32 s{sOC}, s{sWAVE}, 13
s_add_u32 s{sOC}, s{sOC}, {WS_FLAG}
v_lshlrev_b32 v{TMP}, 7, v1
""")
    for ks in range(8):
        a = VXA
        if ks:
            a = TMP + 6
            o(f"v_xor_b32 v{a}, {64*ks}, v{VXA}")
        for rt in range(3):
            o(f"ds_read_b128 {vr(QA+4*rt,4)}, v{a} offset:{rt*8192}")
        o(f"s_waitcnt vmcnt({7-ks})")
        if ks == 7:
            o(f"s_cmp_ge_u32 s{sWAVE}, 4\ns_cbranch_scc1 F_np1\nbuffer_load_dwordx2 {vr(TMP+1,2)}, v{TMP}, s[32:35], s{sOC} offen sc1\nF_np1:")
        for rt in range(3):
            o(f"s_waitcnt lgkmcnt({2-rt})")
            c = "0" if ks == 0 else vr(UA+4*rt, 4)
            o(f"v_mfma_f32_16x16x32_bf16 {vr(UA+4*rt,4)}, {vr(W+4*ks,4)}, {vr(QA+4*rt,4)}, {c}")
    st("u")
    o(f"""
s_cmp_ge_u32 s{sWAVE}, 4
s_cbranch_scc1 F_npp
s_mov_b32 s{sT1}, 0
s_waitcnt vmcnt(0)
F_plp:
v_cmpx_ne_u64 vcc, s[100:101], {vr(TMP+1,2)}
s_add_u32 s{sT1}, s{sT1}, 1
s_nop 3
s_cbranch_execz F_pdp
s_cmp_ge_u32 s{sT1}, 0x10000
s_cbranch_scc1 F_pdp
buffer_load_dwordx2 {vr(TMP+1,2)}, v{TMP}, s[32:35], s{sOC} offen sc1
s_waitcnt vmcnt(0)
s_branch F_plp
F_pdp:
s_mov_b64 exec, -1
""")
    o(f"""
F_npp:
s_mov_b32 s{sT0}, {WS_OVFC}
buffer_load_dwordx2 {vr(VOVF,2)}, v{VC}, s[32:35], s{sT0} offen sc1
s_waitcnt lgkmcnt(0)
s_barrier
L_pr:
""")
    st("b3")
    zero_cnt(o)
    prime(o)
    o(f"""
L_go:
""")
    stamp(o, 5)
    o(f"""
s_mov_b64 vcc, 0
s_mov_b32 s{sK}, {KMAX}
s_add_u32 s{sRND}, s{sRND}, 1
s_cmp_ge_u32 s{sP}, s{sP1}
s_cbranch_scc1 L_loopdone
v_cmp_eq_u32 s[{sM}:{sM+1}], s{sP}, v{VEND}
s_sub_u32 s{sIT}, s{sP1}, s{sP}
s_add_u32 s{sIT}, s{sIT}, {R-1}
s_mul_i32 s{sIT}, s{sIT}, {-(-256 // R)}
s_lshr_b32 s{sIT}, s{sIT}, 8
s_cmp_eq_u32 s{sP}, 0
s_cselect_b32 s{sT2}, 1, 0
s_cmp_lg_u64 s[{sM}:{sM+1}], 0
s_cselect_b32 s{sT2}, 1, s{sT2}
s_xor_b32 s{sHEAD}, s{sT2}, 1
s_call_b64 s[{sRET}:{sRET+1}], L_newnode
s_setprio 3
s_waitcnt vmcnt({2*(R-1)}) lgkmcnt(0)
v_mfma_f32_16x16x32_bf16 {vr(T0,4)}, {vr(A0,4)}, {vr(RING,4)}, {vr(Q,4)}
s_nop 4
L_top:
""")
    for k in range(R):
        B = RING + 4*k
        B1 = RING + 4*((k+1) % R)
        ex, pk = valu_block(TT[k & 1])
        o(f"""
s_waitcnt vmcnt({2*(R-2)}) lgkmcnt(0)
v_add_u32 v{AD}, v{IX}, v{LO}
v_mfma_f32_16x16x32_bf16 {vr(TT[(k+1)&1],4)}, {vr(AA[(k+1)&1],4)}, {vr(B1,4)}, {vr(Q,4)}
{ex}
buffer_load_dword v{B}, v{AD}, s[36:39], 0 offen sc1
buffer_load_dword v{B+1}, v{AD}, s[36:39], 0 offen offset:256 sc1
ds_read_b32 v{IX}, v{VI} offset:{4*(k+R+1)}
ds_read2_b32 {vr(AA[k&1]+2,2)}, v{VE} offset0:{4*(k+2)} offset1:{4*(k+2)+2}
{pk}
s_sub_u32 s{sREM}, s{sREM}, 1
s_cbranch_scc1 L_call{k}
L_next{k}:
""")
    o(f"""
v_add_u32 v{VI}, {4*R}, v{VI}
v_add_u32 v{VE}, {16*R}, v{VE}
s_sub_u32 s{sIT}, s{sIT}, 1
s_cmp_ge_u32 s{sIT}, 4
s_cbranch_scc1 L_top
s_setprio 2
s_cmp_eq_u32 s{sIT}, 3
s_cbranch_scc1 L_top
s_setprio 1
s_cmp_eq_u32 s{sIT}, 2
s_cbranch_scc1 L_top
s_setprio 0
s_branch L_top
""")
    for k in range(R):
        B1 = RING + 4*((k+1) % R)
        o(f"""
L_call{k}:
s_call_b64 s[{sRET}:{sRET+1}], L_flush
s_cbranch_scc0 L_special
s_waitcnt lgkmcnt(0)
v_mfma_f32_16x16x32_bf16 {vr(TT[(k+1)&1],4)}, {vr(AA[(k+1)&1],4)}, {vr(B1,4)}, {vr(Q,4)}
s_nop 3
s_branch L_next{k}
""")
    o(f"""
L_flush:
v_rcp_f32 v{E}, v{D}
v_rcp_f32 v{E+1}, v{D+1}
v_rcp_f32 v{E+2}, v{D+2}
v_rcp_f32 v{E+3}, v{D+3}
s_mov_b32 s{sP}, s{sSEGE}
s_cbranch_vccnz L_nochk
v_pk_fma_f32 {vr(CK,2)}, {vr(NN,2)}, 0, {vr(D,2)}
v_pk_fma_f32 {vr(CK+2,2)}, {vr(NN+2,2)}, 0, {vr(D+2,2)}
v_pk_add_f32 {vr(CK,2)}, {vr(CK,2)}, {vr(CK+2,2)}
v_add_f32 v{CK}, v{CK}, v{CK+1}
v_cmp_nle_f32 s[{sM}:{sM+1}], v{CK}, s{sBND}
s_nop 3
s_cmp_eq_u64 s[{sM}:{sM+1}], 0
s_cbranch_scc1 L_nochk
s_mov_b32 s{sP}, s{sSEGS}
s_setpc_b64 s[{sRET}:{sRET+1}]
L_nochk:
v_pk_fma_f32 {vr(AC,2)}, {vr(NN,2)}, {vr(E,2)}, {vr(AC,2)}
v_pk_fma_f32 {vr(AC+2,2)}, {vr(NN+2,2)}, {vr(E+2,2)}, {vr(AC+2,2)}
s_cmp_lg_u32 s{sW1}, 0
s_cbranch_scc1 L_havew
s_mov_b32 s{sW1}, 1
""")
    wloads(o, 1, W)
    o(f"""
L_havew:
s_cmp_eq_u32 s{sP}, s{sNEND}
s_cbranch_scc1 L_fin
s_cmp_lg_u32 s{sP}, s{sP1}
s_cbranch_scc1 L_reinit
s_cmp_lg_u32 s{sHEAD}, 0
s_cbranch_scc1 L_pub
s_mov_b32 s{sT0}, s{sWAVE}
s_mov_b32 s{sT1}, s{sP1}
L_col:
s_add_u32 s{sT0}, s{sT0}, 1
s_lshl_b32 s{sT2}, s{sT0}, 2
s_add_u32 s{sT2}, s{sT2}, {L_HF}
v_mov_b32 v{CK}, s{sT2}
L_poll:
ds_read_b32 v{CK+1}, v{CK}
s_waitcnt lgkmcnt(0)
v_readfirstlane_b32 s{sT2}, v{CK+1}
s_nop 3
s_cmp_eq_u32 s{sT2}, s{sRND}
s_cbranch_scc1 L_got
s_sleep 1
s_branch L_poll
L_got:
s_lshl_b32 s{sT2}, s{sT0}, 10
s_add_u32 s{sT2}, s{sT2}, {L_HB}
v_add_u32 v{CK}, s{sT2}, v{VC}
ds_read2st64_b64 {vr(E,4)}, v{CK} offset0:0 offset1:1
s_add_u32 s{sT1}, s{sT1}, s{sCH}
s_waitcnt lgkmcnt(0)
v_pk_add_f32 {vr(AC,2)}, {vr(AC,2)}, {vr(E,2)}
v_pk_add_f32 {vr(AC+2,2)}, {vr(AC+2,2)}, {vr(E+2,2)}
s_cmp_lt_u32 s{sT1}, s{sNEND}
s_cbranch_scc1 L_col
s_branch L_wr
L_fin:
s_cmp_lg_u32 s{sHEAD}, 0
s_cbranch_scc1 L_pub
L_wr:
v_pk_mul_f32 {vr(AC,2)}, {vr(AC,2)}, s[{sLN2}:{sLN2+1}]
v_pk_mul_f32 {vr(AC+2,2)}, {vr(AC+2,2)}, s[{sLN2}:{sLN2+1}]
v_cvt_pk_bf16_f32 v{E}, v{AC}, v{AC+1}
v_cvt_pk_bf16_f32 v{E+1}, v{AC+2}, v{AC+3}
ds_write2st64_b32 v{VB}, v{E}, v{E+1} offset0:0 offset1:1
L_more:
s_mov_b32 s{sHEAD}, 0
s_cmp_lg_u32 s{sP}, s{sP1}
s_cbranch_scc1 L_newnode
s_setpc_b64 s[{sRET}:{sRET+1}]
L_pub:
s_lshl_b32 s{sT2}, s{sWAVE}, 10
s_add_u32 s{sT2}, s{sT2}, {L_HB}
v_add_u32 v{CK}, s{sT2}, v{VC}
s_lshl_b32 s{sT2}, s{sWAVE}, 2
s_add_u32 s{sT2}, s{sT2}, {L_HF}
v_mov_b32 v{CK+1}, s{sT2}
v_mov_b32 v{CK+2}, s{sRND}
ds_write2st64_b64 v{CK}, {vr(AC,2)}, {vr(AC+2,2)} offset0:0 offset1:1
s_waitcnt lgkmcnt(0)
ds_write_b32 v{CK+1}, v{CK+2}
s_branch L_more
L_old:
s_cmp_lg_u32 s{sHEAD}, 0
s_cbranch_scc1 L_reinit
ds_read2st64_b32 {vr(E,2)}, v{VB} offset0:0 offset1:1
s_waitcnt lgkmcnt(0)
v_lshlrev_b32 v{AC}, 16, v{E}
v_and_b32 v{AC+1}, 0xffff0000, v{E}
v_lshlrev_b32 v{AC+2}, 16, v{E+1}
v_and_b32 v{AC+3}, 0xffff0000, v{E+1}
v_pk_mul_f32 {vr(AC,2)}, {vr(AC,2)}, s[{sSC}:{sSC+1}]
v_pk_mul_f32 {vr(AC+2,2)}, {vr(AC+2,2)}, s[{sSC}:{sSC+1}]
s_branch L_reinit
L_newnode:
v_cmp_ge_u32 s[{sM}:{sM+1}], s{sP}, v{VEND}
v_mov_b64 {vr(AC,2)}, 0
v_mov_b64 {vr(AC+2,2)}, 0
s_nop 1
s_bcnt1_i32_b64 s{sT0}, s[{sM}:{sM+1}]
s_mul_i32 s{sT1}, s{sT0}, {RS}
v_readlane_b32 s{sNEND}, v{VEND}, s{sT0}
v_add_u32 v{VN}, s{sT1}, v{VC}
ds_read2st64_b64 {vr(Q,4)}, v{VN} offset0:0 offset1:1
s_and_b32 s{sT1}, s{sT0}, 15
s_lshl_b32 s{sT1}, s{sT1}, 4
s_lshl_b32 s{sT0}, s{sT0}, 9
s_or_b32 s{sT0}, s{sT0}, s{sT1}
s_add_u32 s{sT0}, s{sT0}, {L_AGB}
v_xor_b32 v{VB}, s{sT0}, v{LO}
s_cmp_lg_u32 s{sRND}, 1
s_cbranch_scc1 L_old
L_reinit:
v_mov_b64 {vr(NN,2)}, 0
v_mov_b64 {vr(NN+2,2)}, 0
v_mov_b64 {vr(D,2)}, s[{sONE}:{sONE+1}]
v_mov_b64 {vr(D+2,2)}, s[{sONE}:{sONE+1}]
s_mov_b32 s{sSEGS}, s{sP}
s_add_u32 s{sSEGE}, s{sP}, s{sK}
s_min_u32 s{sSEGE}, s{sSEGE}, s{sNEND}
s_min_u32 s{sSEGE}, s{sSEGE}, s{sP1}
s_sub_u32 s{sREM}, s{sSEGE}, s{sP}
s_sub_u32 s{sREM}, s{sREM}, 1
s_cmp_eq_u32 s{sP}, s{sP}
s_setpc_b64 s[{sRET}:{sRET+1}]
L_special:
s_cmp_eq_u32 s{sP}, s{sP1}
s_cbranch_scc1 L_loopdone
s_mov_b64 vcc, -1
s_mov_b32 s{sK}, 1
s_waitcnt vmcnt(0) lgkmcnt(0)
s_call_b64 s[{sRET}:{sRET+1}], L_reinit
L_slow:
s_lshl_b32 s{sT0}, s{sP}, 2
s_add_u32 s{sT0}, s{sT0}, {L_IDX}
v_mov_b32 v{VI}, s{sT0}
s_lshl_b32 s{sT0}, s{sP}, 4
v_add_u32 v{VE}, s{sT0}, v{VEL}
ds_read_b32 v{IX}, v{VI}
ds_read2_b32 {vr(A0+2,2)}, v{VE} offset0:0 offset1:2
s_waitcnt lgkmcnt(0)
v_add_u32 v{AD}, v{IX}, v{LO}
buffer_load_dword v{RING}, v{AD}, s[36:39], 0 offen sc1
buffer_load_dword v{RING+1}, v{AD}, s[36:39], 0 offen offset:256 sc1
s_waitcnt vmcnt(0)
v_mfma_f32_16x16x32_bf16 {vr(T0,4)}, {vr(A0,4)}, {vr(RING,4)}, {vr(Q,4)}
s_nop 7
v_min_f32 v{T0}, 0x42fc0000, v{T0}
v_min_f32 v{T0+1}, 0x42fc0000, v{T0+1}
v_min_f32 v{T0+2}, 0x42fc0000, v{T0+2}
v_min_f32 v{T0+3}, 0x42fc0000, v{T0+3}
{valu_block(T0)[0]}
{valu_block(T0)[1]}
s_call_b64 s[{sRET}:{sRET+1}], L_flush
s_cbranch_scc1 L_slow
L_loopdone:
""")
    if len(STEPS) < 5: stamp(o, 6)
    o(f"""
s_setprio 0
s_cmp_lg_u32 s{sW1}, 0
s_cbranch_scc1 L_ld2
s_mov_b32 s{sW1}, 1
""")
    wloads(o, 1, W)
    o(f"""
L_ld2:
s_cmp_lg_u32 s{sRND}, 1
s_cbranch_scc1 L_rn0
s_mov_b32 s{sOB}, 0
s_mov_b32 s{sT0}, {WS_OVFC}
L_ov:
s_waitcnt vmcnt(0)
v_cmp_ne_u32 vcc, s100, v{VOVF+1}
v_cmp_ne_u32 s[{sOM}:{sOM+1}], 0, v{VOVF}
s_add_u32 s{sOB}, s{sOB}, 1
s_cmp_ge_u32 s{sOB}, 0x10000
s_cbranch_scc1 L_ovd
s_nop 0
s_cbranch_vccz L_ovd
buffer_load_dwordx2 {vr(VOVF,2)}, v{VC}, s[32:35], s{sT0} offen sc1
s_branch L_ov
L_ovd:
s_mov_b32 s{sOB}, 0
L_rn0:
v_and_b32 v{TMP}, 15, v1
v_xor_b32 v{TMP+1}, v{TMP}, v3
v_lshlrev_b32 v{TMP+1}, 4, v{TMP+1}
v_lshl_add_u32 v{TMP+1}, v{TMP}, 9, v{TMP+1}
s_waitcnt vmcnt(0)
s_cmp_eq_u64 s[{sOM}:{sOM+1}], 0
s_cbranch_scc0 L_round
""")
    FACC, FXF = UA, [T0, T1, E]
    def lds_gemm(base, wreg, first, vmw):
        for ks in range(8):
            a = base
            if ks:
                a = TMP + 6
                o(f"v_xor_b32 v{a}, {64*ks}, v{base}")
            for rt in range(3):
                o(f"ds_read_b128 {vr(FXF[rt],4)}, v{a} offset:{rt*8192}")
            if vmw: o(f"s_waitcnt vmcnt({7-ks})")
            for rt in range(3):
                o(f"s_waitcnt lgkmcnt({2-rt})")
                c = "0" if (first and ks == 0) else vr(FACC+4*rt, 4)
                o(f"v_mfma_f32_16x16x32_bf16 {vr(FACC+4*rt,4)}, {vr(wreg+4*ks,4)}, {vr(FXF[rt],4)}, {c}")
    o(f"v_add_u32 v{TMP+1}, {L_AGB}, v{TMP+1}\ns_waitcnt lgkmcnt(0)\ns_barrier")
    lds_gemm(TMP+1, W, False, False)
    o(f"""
v_add_u32 v{TMP+2}, s{sN0}, v{TMP}
v_lshlrev_b32 v{TMP+2}, 9, v{TMP+2}
v_lshl_add_u32 v{TMP+2}, v3, 3, v{TMP+2}
s_lshl_b32 s{sT0}, s{sWAVE}, 5
s_add_u32 s{sT1}, s{sT0}, 8192
s_add_u32 s{sT2}, s{sT0}, 16384
s_sub_u32 s{sCNT}, s{sCNT}, 32
s_nop 1
""")
    T = NN
    for rt in range(3):
        a = FACC + 4*rt
        o(f"""
v_pk_mul_f32 {vr(T,2)}, {vr(a,2)}, s[{sSC}:{sSC+1}]
v_pk_mul_f32 {vr(T+2,2)}, {vr(a+2,2)}, s[{sSC}:{sSC+1}]
v_exp_f32 v{T}, v{T}
v_exp_f32 v{T+1}, v{T+1}
v_exp_f32 v{T+2}, v{T+2}
v_exp_f32 v{T+3}, v{T+3}
v_pk_add_f32 {vr(T,2)}, {vr(T,2)}, s[{sONE}:{sONE+1}]
v_pk_add_f32 {vr(T+2,2)}, {vr(T+2,2)}, s[{sONE}:{sONE+1}]
v_rcp_f32 v{T}, v{T}
v_rcp_f32 v{T+1}, v{T+1}
v_rcp_f32 v{T+2}, v{T+2}
v_rcp_f32 v{T+3}, v{T+3}
v_pk_mul_f32 {vr(a,2)}, {vr(a,2)}, {vr(T,2)}
v_pk_mul_f32 {vr(a+2,2)}, {vr(a+2,2)}, {vr(T+2,2)}
v_cvt_pk_bf16_f32 v{a}, v{a}, v{a+1}
v_cvt_pk_bf16_f32 v{a+1}, v{a+2}, v{a+3}
""")
        if rt == 2:
            o(f"v_cmp_gt_u32 vcc, s{sCNT}, v{TMP}\ns_and_saveexec_b64 s[{sM}:{sM+1}], vcc")
        o(f"buffer_store_dwordx2 {vr(a,2)}, v{TMP+2}, s[40:43], s{[sT0,sT1,sT2][rt]} offen")
    if STAMP:
        o(f"""
s_waitcnt vmcnt(0)
s_memrealtime s[94:95]
s_mov_b64 exec, 1
s_lshl_b32 s26, s2, 4
s_add_u32 s26, s26, s{sWAVE}
s_lshl_b32 s26, s26, 5
s_add_u32 s26, s26, {WS_STAMP + 0x100000}
s_mov_b32 s34, 0x1000000
v_mov_b32 v0, 0
s_waitcnt lgkmcnt(0)
""")
        for i in range(8):
            o(f"v_mov_b32 v{4+i}, s{80+2*i}")
        if "dbgst" in OPT:
            o("v_not_b32 v12, v4\nv_not_b32 v13, v9\nv_not_b32 v14, v5\nv_not_b32 v15, v10")
            for i in range(12):
                o(f"buffer_atomic_umax v{4+i}, v0, s[96:99], 0 offen offset:{8+4*i} sc1")
        else:
            o("buffer_store_dwordx4 v[4:7], v0, s[32:35], s26 offen\nbuffer_store_dwordx4 v[8:11], v0, s[32:35], s26 offen offset:16")
    o(f"""
L_end:
s_endpgm
L_round:
s_waitcnt lgkmcnt(0)
s_barrier
s_ff1_i32_b64 s{sT0}, s[{sOM}:{sOM+1}]
s_mul_i32 s{sT1}, s{sT0}, {CHUNK*8}
v_readlane_b32 s{sOC}, v{VOVF}, s{sT0}
s_lshl_b32 s{sT2}, s{sOB}, 3
s_add_u32 s{sT1}, s{sT1}, s{sT2}
s_add_u32 s{sT1}, s{sT1}, {WS_OVF}
buffer_load_dwordx4 {vr(REC,4)}, v2, s[32:35], s{sT1} offen sc1
v_lshlrev_b32 v{TMP}, 1, v0
v_add_u32 v{TMP}, s{sOB}, v{TMP}
v_add_u32 v{TMP+1}, 1, v{TMP}
v_cmp_gt_u32 s[{sV0}:{sV0+1}], s{sOC}, v{TMP}
v_cmp_gt_u32 s[{sV1}:{sV1+1}], s{sOC}, v{TMP+1}
s_add_u32 s{sOB}, s{sOB}, 2048
s_cmp_lt_u32 s{sOB}, s{sOC}
s_cbranch_scc1 L_rn2
s_bitset0_b64 s[{sOM}:{sOM+1}], s{sT0}
s_mov_b32 s{sOB}, 0
L_rn2:
s_waitcnt vmcnt(0)
v_lshrrev_b32 v{TMP}, 16, v{REC+1}
v_lshrrev_b32 v{TMP+1}, 16, v{REC+3}
v_cmp_eq_u32 s[{sM}:{sM+1}], s2, v{TMP}
s_nop 3
s_and_b64 s[{sV0}:{sV0+1}], s[{sV0}:{sV0+1}], s[{sM}:{sM+1}]
v_cmp_eq_u32 s[{sM}:{sM+1}], s2, v{TMP+1}
s_nop 3
s_and_b64 s[{sV1}:{sV1+1}], s[{sV1}:{sV1+1}], s[{sM}:{sM+1}]
""")
    sort_rank(o)
    o("s_waitcnt lgkmcnt(0)\ns_barrier")
    sort_scatter(o)
    o("s_waitcnt lgkmcnt(0)\ns_barrier")
    o("s_branch L_pr")
    bin_overflow(o)

def main(path):
    o = Asm()
    gen(o)
    hdr = f"""; MPNN edge-MLP + segment sum + node update in one launch (256 co-resident workgroups, one per CU).
; Phase B (after tagged-flag hand-off): per-edge SiLU accumulation over gathered P rows, update GEMM + SiLU.
; @launch grid=(256,1,1) block=(1024,1,1) lds={L_ALLOC}
.amdgcn_target "amdgcn-amd-amdhsa--gfx950"
.text
"""
    desc = f""".section .rodata,"a"
.p2align 6
.amdhsa_kernel {KNAME}
  .amdhsa_next_free_vgpr {NV}
  .amdhsa_next_free_sgpr 102
  .amdhsa_accum_offset {(NV+3)//4*4}
  .amdhsa_group_segment_fixed_size 0
  .amdhsa_kernarg_size 72
  .amdhsa_user_sgpr_count 2
  .amdhsa_user_sgpr_kernarg_segment_ptr 1
  .amdhsa_system_sgpr_workgroup_id_x 1
.end_amdhsa_kernel
"""
    open(path, "w").write(hdr + o.text() + desc)

if __name__ == "__main__":
    if "--stamp" in sys.argv:
        sys.argv.remove("--stamp")
        STAMP = True
    for a in list(sys.argv):
        if a.startswith("--steps="):
            sys.argv.remove(a)
            STEPS = a[8:].split(",")
        if a.startswith("--poll="):
            sys.argv.remove(a)
            STEP_FLAG = int(a[7:])
        if a.startswith("--opt="):
            sys.argv.remove(a)
            OPT |= set(a[6:].split(","))
    main(sys.argv[1] if len(sys.argv) > 1 else "gather_scatter__mpnn_edge_mlp__graph.s")
```

```python
import sys

N = 10000
WS_WPACK = 0x500000
WS_OVFC = 0x560000
WS_OVF = 0x570000
WS_FLAG = 0x6E0000
WS_CELL = 0x700000
WS_END = 0xB00000
WS_STAMP = 0xC00000
CHUNK = 2500
CAP = 28
NEGL2E = 0xBFB8AA3B
NEGLN2 = 0xBF317218
KNAME = "gather_scatter__mpnn_edge_mlp__graph_kernel"
STAMP = False
STEP_FLAG = 14
STEPS = ["s-1", "pst", "drain", "cell"]
OPT = set()

class Asm:
    def __init__(self):
        self.l = []
    def __call__(self, s):
        for line in s.strip("\n").split("\n"):
            line = line.strip()
            if line:
                self.l.append(line if line.endswith(":") else "    " + line)
    def text(self):
        l = self.l
        def sub(a_lab, b_lab, pref):
            a = l.index(a_lab); b = l.index(b_lab)
            return l[:a] + [("    s_nop 0" if any(x.strip().startswith(p) for p in pref) else x) for x in l[a:b]] + l[b:]
        if "gplain" in OPT:
            l = [x.replace(" sc1", "") if "s[16:19], 0 offen" in x else x for x in l]
        if "gnt" in OPT:
            l = [x + " nt" if "s[16:19], 0 offen" in x else x for x in l]
        if "noprio" in OPT:
            l = [x for x in l if "s_setprio" not in x]
        if "noloop_ld" in OPT: l = sub("L_top:", "L_call0:", ["buffer_load"])
        return "\n".join(l) + "\n"

def vr(a, n):
    return f"v[{a}:{a+n-1}]" if n > 1 else f"v{a}"

def srd(o, d, lo, hi, size):
    o(f"s_mov_b32 s{d}, s{lo}\ns_mov_b32 s{d+1}, s{hi}\ns_mov_b32 s{d+2}, {size}\ns_mov_b32 s{d+3}, 0x20000")

def stamp(o, i):
    if STAMP:
        if "clk2" in OPT:
            if i in (1, 2):
                o(f"s_memrealtime s[{80+2*i}:{81+2*i}]\ns_memtime s[{84+2*i}:{85+2*i}]\ns_waitcnt lgkmcnt(0)")
            elif i not in (3, 4):
                o(f"s_memrealtime s[{80+2*i}:{81+2*i}]\ns_waitcnt lgkmcnt(0)")
            return
        o(f"s_memrealtime s[{80+2*i}:{81+2*i}]\ns_waitcnt lgkmcnt(0)")

R = 6
KMAX = 24
RS = 1040
L_QS = 0
L_AGB = (48 * RS + 511) // 512 * 512
L_HB = L_AGB + 48 * 512
L_IDX = L_HB + 16 * 1024
L_ET = L_IDX + 2064 * 4
L_CNT = (L_ET + 2052 * 16 + 255) // 256 * 256
L_HF = L_CNT + 256
L_XS = (L_HF + 256 + 511) // 512 * 512
L_END = L_XS + 48 * 512
L_IMG = 65536
L_BCNT = 131072
L_PST = L_HB
L_PK = 3 * 32768
L_ALLOC = L_END
assert L_BCNT + 1100 <= L_CNT and L_END <= 163840
RING = 4
A0, A1, Q, T0, T1, E, NN, D, AC, UA = 28, 32, 36, 40, 44, 48, 52, 56, 60, 64
VOVF, VB, IX, AD, LO, VI, VE, VN, VC, VEND, VEL = 76, 78, 79, 80, 81, 82, 83, 84, 85, 86, 126
TMP = 87
W = 94
NV = 127
PA, QA, VXA, VWA, VWS, VTG, W3, TG0, ZR = UA, 48, AD, 36, 38, 76, 62, 60, 44
XFB, WFB = [W, W + 20], [W + 12, 40]
VWB = VE
TAG = 92
sWAVE, sN0, sCNT, sHEAD, sIT, sW1, sCH = 3, 4, 5, 6, 7, 26, 27
sP, sP1, sREM, sSEGE, sSEGS, sNEND, sK, sTOT, sRND, sOB, sOC, sOFF = range(48, 60)
sV0, sV1, sOM, sRET, sSO, sM, sONE, sSC = 60, 62, 64, 66, 68, 70, 72, 74
sM0, sLD = 69, 16
sT0, sT1, sT2, sBND = 76, 77, 78, 79
sLN2 = 44
REC, RK0, RK1 = 40, 4, 5
CK = TMP + 1

def valu_block(T):
    ex = "\n".join(f"v_exp_f32 v{E+i}, v{T+i}" for i in range(4))
    pk = f"""
v_pk_fma_f32 {vr(NN,2)}, {vr(NN,2)}, {vr(E,2)}, {vr(NN,2)}
v_pk_fma_f32 {vr(NN+2,2)}, {vr(NN+2,2)}, {vr(E+2,2)}, {vr(NN+2,2)}
v_pk_fma_f32 {vr(NN,2)}, {vr(T,2)}, {vr(D,2)}, {vr(NN,2)}
v_pk_fma_f32 {vr(NN+2,2)}, {vr(T+2,2)}, {vr(D+2,2)}, {vr(NN+2,2)}
v_pk_fma_f32 {vr(D,2)}, {vr(D,2)}, {vr(E,2)}, {vr(D,2)}
v_pk_fma_f32 {vr(D+2,2)}, {vr(D+2,2)}, {vr(E+2,2)}, {vr(D+2,2)}
"""
    return ex, pk

def poll(o, tag, soff, count):
    o(f"""
v_lshlrev_b32 v{TMP}, 7, v1
s_mov_b32 s{sT1}, 0
s_mov_b64 exec, {"-1" if count == 64 else hex((1 << count) - 1)}
F_pl{tag}:
buffer_load_dwordx2 {vr(TMP+1,2)}, v{TMP}, s[32:35], {soff} offen sc1
s_add_u32 s{sT1}, s{sT1}, 1
s_waitcnt vmcnt(0)
v_cmpx_ne_u64 vcc, s[100:101], {vr(TMP+1,2)}
s_nop 4
s_cbranch_execz F_pd{tag}
s_sleep 2
s_cmp_lt_u32 s{sT1}, 0x10000
s_cbranch_scc1 F_pl{tag}
F_pd{tag}:
s_mov_b64 exec, -1
""")

def get_tag(o, tag):
    o(f"""
s_mov_b32 s{sT1}, 0
F_tg{tag}:
v_readfirstlane_b32 s100, v{TAG}
v_readfirstlane_b32 s101, v{TAG+1}
s_add_u32 s{sT1}, s{sT1}, 1
s_cmp_ge_u32 s{sT1}, 0x10000
s_cbranch_scc1 F_th{tag}
s_cmp_lg_u32 s100, 0
s_cbranch_scc1 F_th{tag}
buffer_load_dwordx2 {vr(TAG,2)}, v{VTG}, s[96:99], 0 offen sc1
s_waitcnt vmcnt(0)
s_branch F_tg{tag}
F_th{tag}:
""")

def put_flag(o, soff):
    o(f"""
v_mov_b32 v{TMP+1}, s100
v_mov_b32 v{TMP+2}, s101
s_mov_b64 exec, 1
buffer_store_dwordx2 {vr(TMP+1,2)}, v{VTG}, s[32:35], {soff} offen sc1
s_mov_b64 exec, -1
""")

def sort_rank(o):
    o(f"""
s_mov_b32 s{sT0}, {L_CNT}
v_mov_b32 v{TMP+4}, 0xfc
v_mov_b32 v{TMP+3}, 1
v_and_or_b32 v{TMP}, v{REC}, v{TMP+4}, s{sT0}
v_and_or_b32 v{TMP+1}, v{REC+2}, v{TMP+4}, s{sT0}
s_mov_b64 exec, s[{sV0}:{sV0+1}]
ds_add_rtn_u32 v{RK0}, v{TMP}, v{TMP+3}
s_mov_b64 exec, s[{sV1}:{sV1+1}]
ds_add_rtn_u32 v{RK1}, v{TMP+1}, v{TMP+3}
s_mov_b64 exec, -1
v_add_u32 v{TMP+4}, s{sT0}, v{LO}
""")

def sort_scatter(o):
    o(f"""
ds_read_b32 v{TMP+2}, v{TMP+4}
v_and_b32 v{REC}, 0x7ffe00, v{REC}
v_and_b32 v{REC+2}, 0x7ffe00, v{REC+2}
s_mov_b32 s{sT0}, {L_IDX}
s_mov_b32 s{sT1}, {L_ET}
s_waitcnt lgkmcnt(0)
v_add_u32_dpp v{VEND}, v{TMP+2}, v{TMP+2} row_shr:1 row_mask:0xf bank_mask:0xf bound_ctrl:0
s_nop 1
v_add_u32_dpp v{VEND}, v{VEND}, v{VEND} row_shr:2 row_mask:0xf bank_mask:0xf bound_ctrl:0
s_nop 1
v_add_u32_dpp v{VEND}, v{VEND}, v{VEND} row_shr:4 row_mask:0xf bank_mask:0xf bound_ctrl:0
s_nop 1
v_add_u32_dpp v{VEND}, v{VEND}, v{VEND} row_shr:8 row_mask:0xf bank_mask:0xf bound_ctrl:0
s_nop 1
v_add_u32_dpp v{VEND}, v{VEND}, v{VEND} row_bcast:15 row_mask:0xa bank_mask:0xf
s_nop 1
v_add_u32_dpp v{VEND}, v{VEND}, v{VEND} row_bcast:31 row_mask:0xc bank_mask:0xf
v_sub_u32 v{TMP+3}, v{VEND}, v{TMP+2}
v_readlane_b32 s{sTOT}, v{VEND}, 63
ds_bpermute_b32 v{TMP}, v{TMP}, v{TMP+3}
ds_bpermute_b32 v{TMP+1}, v{TMP+1}, v{TMP+3}
s_nop 1
s_add_u32 s{sCH}, s{sTOT}, 15
s_lshr_b32 s{sCH}, s{sCH}, 4
s_mul_i32 s{sP}, s{sCH}, s{sWAVE}
s_add_u32 s{sP1}, s{sP}, s{sCH}
s_min_u32 s{sP}, s{sP}, s{sTOT}
s_min_u32 s{sP1}, s{sP1}, s{sTOT}
s_waitcnt lgkmcnt(0)
v_add_u32 v{TMP}, v{TMP}, v{RK0}
v_add_u32 v{TMP+1}, v{TMP+1}, v{RK1}
v_lshl_add_u32 v{TMP+2}, v{TMP}, 2, s{sT0}
v_lshl_add_u32 v{TMP+3}, v{TMP+1}, 2, s{sT0}
v_lshl_add_u32 v{TMP}, v{TMP}, 4, s{sT1}
v_lshl_add_u32 v{TMP+1}, v{TMP+1}, 4, s{sT1}
s_mov_b64 exec, s[{sV0}:{sV0+1}]
ds_write_b32 v{TMP+2}, v{REC}
ds_write_b16 v{TMP}, v{REC+1} offset:8
ds_write_b16 v{TMP}, v{REC+1} offset:14
s_mov_b64 exec, s[{sV1}:{sV1+1}]
ds_write_b32 v{TMP+3}, v{REC+2}
ds_write_b16 v{TMP+1}, v{REC+3} offset:8
ds_write_b16 v{TMP+1}, v{REC+3} offset:14
s_mov_b64 exec, -1
""")

def zero_cnt(o):
    o(f"v_mov_b32 v{TMP}, 0\nds_write_b32 v{TMP+4}, v{TMP}")

def prime(o):
    PT = T0
    o(f"""
s_lshl_b32 s{sT0}, s{sP}, 2
s_add_u32 s{sT0}, s{sT0}, {L_IDX}
v_mov_b32 v{VI}, s{sT0}
s_lshl_b32 s{sT0}, s{sP}, 4
v_add_u32 v{VE}, s{sT0}, v{VEL}
""")
    for k in range(0, R, 2):
        o(f"ds_read2_b32 {vr(PT+k,2)}, v{VI} offset0:{k} offset1:{k+1}")
    o(f"""
ds_read_b32 v{IX}, v{VI} offset:{4*R}
ds_read2_b32 {vr(A0+2,2)}, v{VE} offset0:0 offset1:2
ds_read2_b32 {vr(A1+2,2)}, v{VE} offset0:4 offset1:6
s_waitcnt lgkmcnt(0)
""")
    for k in range(R):
        B = RING + 4*k
        o(f"buffer_load_dword v{B}, v{PT+k}, s[16:19], 0 offen sc1")
        o(f"buffer_load_dword v{B+1}, v{PT+k}, s[16:19], 0 offen offset:256 sc1")

def wloads(o, mat, wreg, kss=range(8), sa=sT0, sb=sT1, va=TMP+5, setup=True):
    if not setup:
        for ks in kss:
            o(f"buffer_load_dwordx4 {vr(wreg+4*ks,4)}, v{va}, s[32:35], s{sa if ks < 4 else sb} offen offset:{(ks%4)*1024} sc1")
        return
    o(f"""
s_lshl_b32 s{sT0}, s{sWAVE}, 13
s_add_u32 s{sT0}, s{sT0}, {WS_WPACK + mat*131072}
s_add_u32 s{sT1}, s{sT0}, 4096
v_lshlrev_b32 v{TMP+5}, 4, v1
""")
    for ks in range(8):
        o(f"buffer_load_dwordx4 {vr(wreg+4*ks,4)}, v{TMP+5}, s[32:35], s{sT0 if ks < 4 else sT1} offen offset:{(ks%4)*1024} sc1")

DST, SRC, EA, OWN, RK, R0 = 8, 12, 16, 20, 24, 28
EW = [EA, 18, EA + 1, 19]
sBM = 58
def bin_rank(o):
    o(f"v_mov_b32 v{TMP+3}, 1\ns_mov_b64 exec, s[{sBM}:{sBM+1}]")
    for k in range(4):
        o(f"""
v_mul_u32_u24 v{OWN+k}, s56, v{DST+k}
v_lshrrev_b32 v{OWN+k}, 24, v{OWN+k}
v_lshl_add_u32 v{TMP+4}, v{OWN+k}, 2, s60
ds_add_rtn_u32 v{RK+k}, v{TMP+4}, v{TMP+3}
""")
    for k in range(4):
        o(f"""
v_mad_u32_u24 v{TMP+1}, v{OWN+k}, s57, 15
v_lshrrev_b32 v{TMP+1}, 4, v{TMP+1}
v_sub_u32 v{DST+k}, v{DST+k}, v{TMP+1}
v_lshl_add_u32 v{R0+k}, v{SRC+k}, 7, v{DST+k}
v_lshlrev_b32 v{R0+k}, 2, v{R0+k}
v_lshl_add_u32 v{DST+k}, v{OWN+k}, 8, s61
""")
    o(f"""
v_lshrrev_b32 v18, 16, v{EA}
v_lshrrev_b32 v19, 16, v{EA+1}
s_waitcnt lgkmcnt(0)
v_max3_u32 v{TMP}, v{RK}, v{RK+1}, v{RK+2}
v_max_u32 v{TMP}, v{TMP}, v{RK+3}
v_cmp_le_u32 vcc, {CAP}, v{TMP}
""")
    for k in range(4):
        o(f"""
v_mul_u32_u24 v{SRC+k}, 37, v{RK+k}
v_lshrrev_b32 v{SRC+k}, 8, v{SRC+k}
v_add_u32 v{SRC+k}, v{SRC+k}, v{RK+k}
v_lshl_add_u32 v{DST+k}, v{SRC+k}, 3, v{DST+k}
""")
    o("s_cbranch_vccnz F_ovf")
    for k in range(4):
        o(f"ds_write2_b32 v{DST+k}, v{R0+k}, v{EW[k]} offset0:2 offset1:3")
    o("F_ovfback:\ns_mov_b64 exec, -1")

def bin_overflow(o):
    o(f"F_ovf:\ns_mul_i32 s50, s2, {CHUNK*8}\ns_add_u32 s50, s50, {WS_OVF}\nv_mov_b32 v{TMP}, {L_BCNT+1024}")
    for k in range(4):
        o(f"""
v_cmp_gt_u32 vcc, {CAP}, v{RK+k}
s_and_saveexec_b64 s[62:63], vcc
ds_write2_b32 v{DST+k}, v{R0+k}, v{EW[k]} offset0:2 offset1:3
s_andn2_b64 exec, s[62:63], exec
s_cbranch_execz F_no{k}
ds_add_rtn_u32 v{TMP+4}, v{TMP}, v{TMP+3}
v_mov_b32 v{TMP+1}, v{R0+k}
v_and_b32 v{TMP+2}, 0xffff, v{EW[k]}
v_lshl_or_b32 v{TMP+2}, v{OWN+k}, 16, v{TMP+2}
s_waitcnt lgkmcnt(0)
v_lshlrev_b32 v{TMP+4}, 3, v{TMP+4}
buffer_store_dwordx2 {vr(TMP+1,2)}, v{TMP+4}, s[32:35], s50 offen sc1
s_waitcnt vmcnt(0)
F_no{k}:
s_mov_b64 exec, s[62:63]
""")
    o("s_branch F_ovfback")

def bin_copy(o):
    o(f"""
v_lshrrev_b32 v24, 3, v0
v_and_b32 v25, 7, v0
v_lshlrev_b32 v25, 4, v25
v_lshl_add_u32 v26, v24, 8, v25
v_lshl_add_u32 v27, v24, 14, v25
v_add_u32 v26, s61, v26
v_lshl_add_u32 v24, v24, 2, s60
ds_read2st64_b32 v[28:29], v24 offset0:0 offset1:2
ds_read_b128 v[8:11], v26
ds_read_b128 v[12:15], v26 offset:32768
ds_read_b128 v[16:19], v26 offset:128
ds_read_b128 v[20:23], v26 offset:{32768+128}
v_mov_b32 v30, {L_BCNT+1024}
ds_read_b32 v30, v30
v_and_b32 v25, 48, v25
v_cmp_eq_u32 s[{sBM}:{sBM+1}], 0, v25
s_lshl_b32 s49, s2, 8
s_add_u32 s49, s49, {WS_CELL}
s_add_u32 s50, s49, {128*16384}
v_mov_b32 v25, 0x7f000000
v_mov_b32 v31, s100
s_waitcnt lgkmcnt(5)
v_cmp_lt_u32 vcc, 14, v28
v_min_u32 v28, {CAP}, v28
v_cmp_lt_u32 s[62:63], 14, v29
v_min_u32 v29, {CAP}, v29
v_cndmask_b32 v24, v25, v27, vcc
v_cndmask_b32 v25, v25, v27, s[62:63]
s_waitcnt lgkmcnt(4)
v_cndmask_b32 v8, v8, v28, s[{sBM}:{sBM+1}]
v_cndmask_b32 v9, v9, v31, s[{sBM}:{sBM+1}]
buffer_store_dwordx4 v[8:11], v27, s[32:35], s49 offen sc1
s_waitcnt lgkmcnt(3)
v_cndmask_b32 v12, v12, v29, s[{sBM}:{sBM+1}]
v_cndmask_b32 v13, v13, v31, s[{sBM}:{sBM+1}]
buffer_store_dwordx4 v[12:15], v27, s[32:35], s50 offen sc1
s_waitcnt lgkmcnt(2)
v_cndmask_b32 v17, v17, v31, s[{sBM}:{sBM+1}]
buffer_store_dwordx4 v[16:19], v24, s[32:35], s49 offen offset:128 sc1
s_waitcnt lgkmcnt(1)
v_cndmask_b32 v21, v21, v31, s[{sBM}:{sBM+1}]
buffer_store_dwordx4 v[20:23], v25, s[32:35], s50 offen offset:128 sc1
s_cmp_lg_u32 s{sWAVE}, 0
s_cbranch_scc1 F_bc1
s_lshl_b32 s50, s2, 3
s_add_u32 s50, s50, {WS_OVFC}
s_mov_b64 exec, 1
s_waitcnt lgkmcnt(0)
buffer_store_dwordx2 v[30:31], v{VTG}, s[32:35], s50 offen sc1
s_mov_b64 exec, -1
F_bc1:
""")

def gen(o):
    XNT = "" if "nont" in OPT else "nt"
    AA = [A0, A1]
    TT = [T0, T1]
    o(f"""
.globl {KNAME}
.p2align 8
.type {KNAME},@function
{KNAME}:
s_cmp_ge_u32 s2, 256
s_cbranch_scc1 L_end
s_load_dwordx2 s[28:29], s[0:1], 0
s_load_dwordx2 s[44:45], s[0:1], 32
s_load_dwordx2 s[36:37], s[0:1], 24
s_load_dwordx2 s[12:13], s[0:1], 16
s_load_dwordx2 s[52:53], s[0:1], 8
s_load_dwordx2 s[40:41], s[0:1], 40
s_load_dwordx2 s[32:33], s[0:1], 64
s_load_dwordx2 s[96:97], s[0:1], 56
s_load_dwordx2 s[20:21], s[0:1], 48
s_memrealtime s[100:101]
""")
    if STAMP: o("s_memrealtime s[80:81]")
    o(f"""
v_lshrrev_b32 v2, 6, v0
v_and_b32 v1, 63, v0
s_mul_i32 s{sN0}, s2, 625
v_readfirstlane_b32 s{sWAVE}, v2
v_lshrrev_b32 v4, 5, v1
v_and_b32 v6, 31, v1
s_add_u32 s{sCNT}, s{sN0}, 640
s_add_u32 s{sN0}, s{sN0}, 15
s_lshr_b32 s{sN0}, s{sN0}, 4
s_lshl_b32 s50, s{sWAVE}, 1
v_add_u32 v5, s50, v4
v_lshlrev_b32 v2, 4, v0
v_and_b32 v7, 15, v5
v_xor_b32 v7, v7, v6
v_lshlrev_b32 v7, 4, v7
v_lshl_add_u32 v7, v4, 9, v7
s_mov_b32 s30, {N*512}
s_mov_b32 s31, 0x20000
s_mov_b32 s46, {513*512}
s_mov_b32 s47, 0x20000
s_mov_b32 s42, {512*512}
s_mov_b32 s43, 0x20000
s_mov_b32 s38, 640000
s_mov_b32 s39, 0x20000
s_mov_b32 s14, 640000
s_mov_b32 s15, 0x20000
s_mov_b32 s54, 320000
s_mov_b32 s55, 0x20000
s_lshl_b32 s{sSO}, s{sWAVE}, 10
s_lshl_b32 s51, s{sN0}, 9
s_add_u32 s51, s51, s{sSO}
v_and_b32 v{TMP}, 3, v5
v_bfe_u32 v{TMP+1}, v5, 3, 1
v_lshl_or_b32 v{TMP}, v{TMP+1}, 2, v{TMP}
v_lshlrev_b32 v{TMP}, 1, v{TMP}
v_xor_b32 v{TMP}, v{TMP}, v6
v_lshlrev_b32 v{TMP}, 4, v{TMP}
v_lshl_add_u32 v{VWS}, v4, 9, v{TMP}
v_lshlrev_b32 v{LO}, 2, v1
s_sub_u32 s48, s2, 64
v_mov_b32 v{VTG}, 0
s_mov_b32 s98, 256
s_mov_b32 s99, 0x20000
s_lshl_b32 s49, s2, 4
s_add_u32 s49, s49, s{sWAVE}
s_cmp_ge_u32 s2, 64
s_cbranch_scc1 F_nobl
s_mul_i32 s49, s2, 10000
s_mul_i32 s50, s2, 5000
v_lshlrev_b32 v{TMP}, 3, v0
v_lshlrev_b32 v6, 2, v0
v_add_u32 v6, {L_BCNT}, v6
s_cmp_ge_u32 s{sWAVE}, 5
s_cbranch_scc1 F_nbz
ds_write_b32 v6, v{VTG}
F_nbz:
s_waitcnt lgkmcnt(0)
buffer_load_dwordx4 {vr(DST,4)}, v2, s[36:39], s49 offen {XNT}
buffer_load_dwordx4 {vr(SRC,4)}, v2, s[12:15], s49 offen {XNT}
buffer_load_dwordx2 {vr(EA,2)}, v{TMP}, s[52:55], s50 offen {XNT}
s_barrier
s_branch F_x
F_nobl:
s_waitcnt lgkmcnt(0)
s_cmp_lg_u32 s49, 0xff0
s_cbranch_scc1 F_nont
s_or_b32 s49, s100, 1
v_mov_b32 v4, s49
v_mov_b32 v5, s101
s_mov_b64 exec, 1
buffer_store_dwordx2 v[4:5], v{VTG}, s[96:99], 0 offen sc1
s_mov_b64 exec, -1
F_nont:
s_cmp_ge_u32 s48, 16
s_cbranch_scc1 F_npd
s_lshl_b32 s49, s48, 14
s_add_u32 m0, s{sSO}, {L_PK}
s_add_u32 s49, s49, s{sSO}
buffer_load_dwordx4 v{VWS}, s[40:43], s49 offen lds
F_npd:
""")
    ops = []
    def vm(target):
        return len(ops) - 1 - max(i for i, x in enumerate(ops) if x == target)
    def dma(s, count=True):
        for m in range(2):
            o(f"""
s_add_u32 m0, s{sSO}, {(s & 3) * 32768 + m*16384}
s_add_u32 s{sM0}, s{sSO}, {m*131072 + s*16384}
buffer_load_dwordx4 v{VWS}, s[44:47], s{sM0} offen lds
""")
        if count:
            ops.extend([("d", s)] * 2)
    o(f"""
F_x:
s_add_u32 m0, s{sSO}, {L_XS}
s_cmp_ge_u32 s{sWAVE}, 4
buffer_load_dwordx4 v7, s[28:31], s51 offen {XNT} lds
s_cbranch_scc1 F_nox2
s_add_u32 m0, s{sSO}, {L_XS + 16384}
s_add_u32 s50, s51, 16384
buffer_load_dwordx4 v7, s[28:31], s50 offen {XNT} lds
F_nox2:
s_sub_u32 s50, s{sWAVE}, 6
s_cmp_ge_u32 s50, 2
s_cbranch_scc1 F_ntc
s_lshr_b32 s49, s2, 3
s_lshl_b32 s49, s49, 13
s_lshl_b32 s50, s50, 12
s_add_u32 s49, s49, s50
v_lshlrev_b32 v5, 6, v1
buffer_load_dword v77, v5, s[44:47], s49 offen
F_ntc:
""")
    dma(0)
    o("s_cmp_lt_u32 s2, 64\ns_cbranch_scc1 F_nl0\ns_barrier")
    dma(1)
    o(f"""
F_nl0:
s_mov_b32 s50, {512*512}
buffer_load_dword v{W3}, v{LO}, s[44:47], s50 offen
buffer_load_dword v{W3+1}, v{LO}, s[44:47], s50 offen offset:256
s_mov_b32 s34, {WS_END}
s_mov_b32 s35, 0x20000
s_lshr_b32 s{sCNT}, s{sCNT}, 4
s_sub_u32 s{sCNT}, s{sCNT}, s{sN0}
v_lshlrev_b32 v{VC}, 3, v1
v_lshrrev_b32 v3, 4, v1
v_and_b32 v4, 15, v1
v_xor_b32 v{VXA}, v4, v3
v_lshlrev_b32 v{VXA}, 4, v{VXA}
v_lshl_add_u32 v{VXA}, v4, 9, v{VXA}
v_add_u32 v{VXA}, {L_XS}, v{VXA}
v_bfe_u32 v5, v1, 2, 2
v_and_b32 v6, 3, v1
v_lshl_add_u32 v{VWA}, v3, 3, v5
v_lshlrev_b32 v{VWA}, 9, v{VWA}
v_lshl_add_u32 v{VWA}, v6, 3, v{VWA}
v_and_b32 v6, 1, v3
v_lshl_or_b32 v6, v6, 2, v5
v_xor_b32 v6, s{sWAVE}, v6
v_lshl_add_u32 v{VWA}, v6, 5, v{VWA}
v_add_u32 v{VWB}, 0x10000, v{VWA}
v_add_u32 v{TMP+4}, {L_CNT}, v{LO}
ds_write2st64_b32 v{TMP+4}, v{VTG}, v{VTG} offset0:0 offset1:1
s_mov_b32 s{sSC}, {NEGL2E:#x}
s_mov_b32 s{sSC+1}, {NEGL2E:#x}
s_cmp_ge_u32 s2, 64
s_cbranch_scc1 F_nbr
s_movk_i32 s57, 625
v_cmp_gt_u32 s[{sBM}:{sBM+1}], s57, v0
s_mov_b32 s56, 429497
s_mov_b32 s60, {L_BCNT}
s_mov_b32 s61, {L_IMG}
buffer_load_dwordx2 {vr(TAG,2)}, v{VTG}, s[96:99], 0 offen sc1
s_waitcnt vmcnt(6)
""")
    st0 = lambda name: stamp(o, (1, 2, 3, 4, 6)[STEPS.index(name)]) if name in STEPS else None
    st0("edge")
    bin_rank(o)
    dma(1, False)
    o("s_waitcnt vmcnt(2) lgkmcnt(0)\ns_barrier")
    get_tag(o, "b")
    bin_copy(o)
    o("F_nbr:")
    st0("copy")
    ops += ["w3", "w3"]
    def st(name):
        if name in STEPS: stamp(o, (1, 2, 3, 4, 6)[STEPS.index(name)])
    def reads(s):
        l = []
        a = VXA
        if s:
            a = TMP + 6
            o(f"v_xor_b32 v{a}, {64*s}, v{VXA}")
        xf, wf = XFB[s & 1], WFB[s & 1]
        wa = VWA if (s & 3) < 2 else VWB
        for rt in range(3):
            l.append(f"ds_read_b128 {vr(xf+4*rt,4)}, v{a} offset:{rt*8192}")
        for m in range(2):
            off = (s & 1) * 32768 + m * 16384
            l.append(f"ds_read_b64_tr_b16 {vr(wf+4*m,2)}, v{wa} offset:{off}\nds_read_b64_tr_b16 {vr(wf+4*m+2,2)}, v{wa} offset:{off + 2048}")
        return l
    SCHED = {-1: [2], 0: [3, 4], 1: [5], 2: [6], 3: [7]}
    for s in range(-1, 8):
        if s < 7:
            n = vm(("d", s + 1))
            if s <= 1:
                nb = {-1: 6, 0: 7, 1: 4}[s]
                npk = n + (1 if s >= 0 else 0)
                o(f"""
s_cmp_lt_u32 s2, 64
s_cbranch_scc0 F_wb{s+1}
s_waitcnt vmcnt({nb})
s_branch F_wc{s+1}
F_wb{s+1}:
s_waitcnt vmcnt({npk})
s_cmp_lt_u32 s48, 16
s_cbranch_scc1 F_wc{s+1}
s_waitcnt vmcnt({n})
F_wc{s+1}:
s_waitcnt lgkmcnt(0)
s_barrier
""")
            else:
                o(f"s_waitcnt vmcnt({n}) lgkmcnt(0)\ns_barrier")
        else:
            o("s_waitcnt lgkmcnt(0)\ns_barrier")
        st(f"s{s}")
        if s == -1:
            o(f"buffer_load_dwordx2 {vr(TG0,2)}, v{VTG}, s[96:99], 0 offen sc1")
            ops.append("tag")
        rd = reads(s + 1) if s < 7 else []
        mm = []
        if s >= 0:
            for m, acc in enumerate((PA, QA)):
                for rt in range(3):
                    c = "0" if s == 0 else vr(acc+4*rt, 4)
                    mm.append(f"v_mfma_f32_16x16x32_bf16 {vr(acc+4*rt,4)}, {vr(WFB[s&1]+4*m,4)}, {vr(XFB[s&1]+4*rt,4)}, {c}")
        if s == 7:
            late, mm = mm[3:], mm[:3]
        while rd or mm:
            if mm: o(mm.pop(0))
            if rd: o(rd.pop(0))
        for t in SCHED.get(s, []):
            dma(t)
        if s == -1:
            o(f"""
s_cmp_ge_u32 s48, 16
s_cbranch_scc1 F_d0
ds_read_b64_tr_b16 v[4:5], v{VWB} offset:32768
ds_read_b64_tr_b16 v[6:7], v{VWB} offset:{32768+2048}
s_lshl_b32 s50, s{sWAVE}, 13
s_and_b32 s49, s48, 7
s_lshl_b32 s49, s49, 10
s_add_u32 s50, s50, s49
s_lshr_b32 s49, s48, 3
s_lshl_b32 s49, s49, 17
s_add_u32 s50, s50, s49
s_add_u32 s50, s50, {WS_WPACK}
v_lshlrev_b32 v12, 4, v1
s_waitcnt lgkmcnt(0)
buffer_store_dwordx4 v[4:7], v12, s[32:35], s50 offen sc1
F_d0:
""")
        if s == 0:
            o(f"""
v_and_b32 v{TMP+1}, 15, v1
v_lshrrev_b32 v{TMP}, 1, v3
s_lshl_b32 s{sT1}, s{sWAVE}, 1
v_or_b32 v{TMP}, s{sT1}, v{TMP}
v_xor_b32 v{TMP}, v{TMP}, v{TMP+1}
v_lshlrev_b32 v{TMP}, 4, v{TMP}
v_lshl_add_u32 v{VN}, v{TMP+1}, 9, v{TMP}
v_and_b32 v{TMP}, 1, v3
v_lshl_add_u32 v{VN}, v{TMP}, 3, v{VN}
v_add_u32 v{VN}, {L_PST}, v{VN}
v_lshrrev_b32 v{VB}, 5, v0
v_add_u32 v{TMP}, 32, v{VB}
v_cmp_gt_u32 vcc, s{sCNT}, v{TMP}
v_lshlrev_b32 v{VB}, 4, v{VB}
v_xor_b32 v{VB}, v{VB}, v2
v_add_u32 v{VB}, {L_PST}, v{VB}
v_add_u32 v{VI}, 0x4000, v2
v_mov_b32 v{TMP}, 0x7ffffff0
v_cndmask_b32 v{VI}, v{TMP}, v{VI}, vcc
s_mov_b64 s[8:9], s[32:33]
s_mov_b32 s10, {N*512}
s_mov_b32 s11, 0x20000
""")
        if s == 0 and "direct" in OPT:
            o(f"""
v_lshlrev_b32 v{VN}, 9, v{TMP+1}
v_lshl_add_u32 v{VN}, v3, 3, v{VN}
s_lshl_b32 s{sT1}, s{sWAVE}, 5
v_add_u32 v{VN}, s{sT1}, v{VN}
v_add_u32 v{TMP}, 32, v{TMP+1}
v_cmp_gt_u32 vcc, s{sCNT}, v{TMP}
v_add_u32 v{VI}, 0x4000, v{VN}
v_mov_b32 v{TMP}, 0x7ffffff0
s_nop 0
v_cndmask_b32 v{VI}, v{TMP}, v{VI}, vcc
""")
        if s == 2:
            assert ops.index("tag") < ops.index(("d", 3))
            o(f"s_cmp_ge_u32 s48, 16\ns_cbranch_scc1 F_d5\ns_cmp_lg_u32 s{sWAVE}, 0\ns_cbranch_scc1 F_d5\nv_mov_b64 {vr(TAG,2)}, {vr(TG0,2)}")
            get_tag(o, "p")
            o(f"s_lshl_b32 s{sT0}, s48, 7\ns_add_u32 s{sT0}, s{sT0}, {WS_FLAG + 256*128}")
            put_flag(o, f"s{sT0}")
            o("F_d5:")
    o(f"s_lshl_b32 s{sT2}, s{sN0}, 9\ns_add_u32 s{sT1}, s{sT2}, 8192\ns_nop 3")
    if "direct" in OPT:
        for rt in range(3):
            a_ = PA + 4*rt
            o(f"""
v_pk_mul_f32 {vr(a_,2)}, {vr(a_,2)}, s[{sSC}:{sSC+1}]
v_pk_mul_f32 {vr(a_+2,2)}, {vr(a_+2,2)}, s[{sSC}:{sSC+1}]
v_cvt_pk_bf16_f32 v{W+2*rt}, v{a_}, v{a_+1}
v_cvt_pk_bf16_f32 v{W+2*rt+1}, v{a_+2}, v{a_+3}
buffer_store_dwordx2 {vr(W+2*rt,2)}, v{VN if rt < 2 else VI}, s[8:11], s{sT1 if rt == 1 else sT2} offen sc1
""")
        o("\n".join(late))
        o("s_barrier")
    else:
        for rt in range(3):
            a_ = PA + 4*rt
            o(f"""
v_pk_mul_f32 {vr(a_,2)}, {vr(a_,2)}, s[{sSC}:{sSC+1}]
v_pk_mul_f32 {vr(a_+2,2)}, {vr(a_+2,2)}, s[{sSC}:{sSC+1}]
v_cvt_pk_bf16_f32 v{W+2*rt}, v{a_}, v{a_+1}
v_cvt_pk_bf16_f32 v{W+2*rt+1}, v{a_+2}, v{a_+3}
ds_write_b64 v{VN}, {vr(W+2*rt,2)} offset:{rt*8192}
""")
        o("\n".join(late))
        o(f"""
s_cmp_lt_u32 s{sWAVE}, 8
s_waitcnt lgkmcnt(0)
s_barrier
s_cbranch_scc0 F_nps
ds_read_b128 {vr(W,4)}, v{VB}
ds_read_b128 {vr(W+4,4)}, v{VB} offset:8192
ds_read_b128 {vr(W+8,4)}, v{VB} offset:16384
s_waitcnt lgkmcnt(2)
buffer_store_dwordx4 {vr(W,4)}, v2, s[8:11], s{sT2} offen sc1
s_waitcnt lgkmcnt(1)
buffer_store_dwordx4 {vr(W+4,4)}, v2, s[8:11], s{sT1} offen sc1
s_waitcnt lgkmcnt(0)
buffer_store_dwordx4 {vr(W+8,4)}, v{VI}, s[8:11], s{sT2} offen sc1
F_nps:
s_barrier
""")

    st("pst")
    o(f"""
s_lshl_b32 s{sOFF}, s2, 14
s_add_u32 s{sOFF}, s{sOFF}, {WS_CELL}
buffer_load_dwordx4 {vr(REC,4)}, v2, s[32:35], s{sOFF} offen sc1
v_mov_b64 {vr(TAG,2)}, {vr(TG0,2)}
""")
    get_tag(o, "m")
    o(f"s_cmp_lg_u32 s{sWAVE}, 15\ns_cbranch_scc1 F_npk\ns_mov_b32 s{sT0}, {WS_FLAG + 256*128}")
    poll(o, "k", f"s{sT0}", 16)
    o("F_npk:")
    o(f"s_mov_b32 s{sT2}, 0\ns_waitcnt vmcnt(1)\ns_barrier")
    st("drain")
    o(f"s_cmp_lg_u32 s{sWAVE}, 0\ns_cbranch_scc1 F_nfp\ns_lshl_b32 s{sT0}, s2, 7\ns_add_u32 s{sT0}, s{sT0}, {WS_FLAG}")
    put_flag(o, f"s{sT0}")
    o(f"""
F_nfp:
s_lshl_b32 s12, s{sWAVE}, 13
s_add_u32 s12, s12, {WS_WPACK}
s_add_u32 s13, s12, 4096
v_lshlrev_b32 v{VE}, 4, v1
""")
    wl = lambda kss: wloads(o, 0, W, kss, 12, 13, VE, False)
    wl((0, 1))
    o(f"""
v_mov_b64 {vr(ZR,2)}, 0
v_mov_b64 {vr(ZR+2,2)}, 0
v_add_u32 v{VB}, {L_AGB}, v2
v_add_u32 v{VI}, {L_ET}, v2
ds_write_b128 v{VB}, {vr(ZR,4)}
ds_write_b128 v{VB}, {vr(ZR,4)} offset:4096
v_add_u32 v{VB}, {L_IDX}, v2
ds_write_b128 v{VB}, {vr(ZR,4)}
ds_write_b128 v{VI}, {vr(ZR,4)}
ds_write_b128 v{VI}, {vr(ZR,4)} offset:16384
ds_write_b128 v{VI}, {vr(ZR,4)} offset:16448
""")
    o(f"""
v_lshlrev_b32 v{TMP}, 16, v{W3}
v_and_b32 v{TMP+1}, 0xffff0000, v{W3}
v_lshlrev_b32 v{TMP+2}, 16, v{W3+1}
v_and_b32 v{TMP+3}, 0xffff0000, v{W3+1}
v_mul_f32 v{TMP}, s{sSC}, v{TMP}
v_mul_f32 v{TMP+1}, s{sSC}, v{TMP+1}
v_mul_f32 v{TMP+2}, s{sSC}, v{TMP+2}
v_mul_f32 v{TMP+3}, s{sSC}, v{TMP+3}
v_cvt_pk_bf16_f32 v6, v{TMP}, v{TMP+1}
v_cvt_pk_bf16_f32 v7, v{TMP+2}, v{TMP+3}
""")
    for k in range(1, R):
        o(f"v_mov_b64 {vr(RING+4*k+2,2)}, v[6:7]")
    o(f"""
v_and_b32 v{TMP}, 3, v1
v_bfe_u32 v{TMP+1}, v1, 2, 2
v_cmp_eq_u32 vcc, v{TMP+1}, v3
v_and_b32 v{TMP+2}, 1, v1
v_lshlrev_b32 v{TMP+2}, 4, v{TMP+2}
v_mov_b32 v{TMP+3}, 0x3f80
v_lshlrev_b32 v{TMP+3}, v{TMP+2}, v{TMP+3}
v_cndmask_b32 v{TMP+3}, 0, v{TMP+3}, vcc
v_xor_b32 v{VEL}, 2, v{TMP}
v_lshlrev_b32 v{VEL}, 2, v{VEL}
v_add_u32 v{VEL}, {L_ET}, v{VEL}
v_mov_b32 v{TMP+2}, 0x30000
v_cndmask_b32 v{VEL}, v{TMP+2}, v{VEL}, vcc
v_cmp_gt_u32 vcc, 2, v{TMP}
s_mov_b32 s{sONE}, 1.0
s_mov_b32 s{sONE+1}, 1.0
v_cndmask_b32 v{A0}, 0, v{TMP+3}, vcc
v_cndmask_b32_e64 v{A0+1}, v{TMP+3}, 0, vcc
v_mov_b64 {vr(A1,2)}, {vr(A0,2)}
""")
    o(f"""
s_mov_b32 s{sBND}, 0x7b800000
s_mov_b32 s{sW1}, 0
s_mov_b32 s{sRND}, 0
s_mov_b64 s[40:41], s[20:21]
s_mov_b32 s42, {N*512}
s_mov_b32 s16, s32
s_or_b32 s17, s33, 0x40000
s_mov_b32 s18, {N*512}
s_mov_b32 s19, 0x800000
s_movk_i32 s{sT0}, {RS}
v_and_b32 v{IX}, 15, v1
v_mul_u32_u24 v{IX}, s{sT0}, v{IX}
v_lshl_add_u32 v{IX}, v3, 4, v{IX}
s_lshl_b32 s{sT0}, s{sWAVE}, 6
v_add_u32 v{IX}, s{sT0}, v{IX}
v_bfe_u32 v{RK0}, v0, 2, 2
v_mul_u32_u24 v{RK0}, 7, v{RK0}
v_and_b32 v{TMP}, 3, v0
v_lshl_add_u32 v{RK1}, v{TMP}, 1, v{RK0}
v_cmp_eq_u32 vcc, 0, v{TMP}
v_add_u32 v8, -1, v{RK1}
v_mov_b32 v9, 64
v_cndmask_b32 v8, v8, v9, vcc
""")
    for rt in range(3):
        o(f"""
v_pk_mul_f32 {vr(QA+4*rt,2)}, {vr(QA+4*rt,2)}, s[{sSC}:{sSC+1}]
v_pk_mul_f32 {vr(QA+4*rt+2,2)}, {vr(QA+4*rt+2,2)}, s[{sSC}:{sSC+1}]
ds_write_b128 v{IX}, {vr(QA+4*rt,4)} offset:{L_QS + rt*16*RS}
""")
    wl((2, 3))
    st("q")
    o(f"""
s_waitcnt vmcnt(4)
F_cl:
v_mov_b32_dpp v{TMP}, v{REC+1} row_newbcast:0 row_mask:0xf bank_mask:0xf
v_mov_b32_dpp v{TMP+1}, v{REC} row_newbcast:0 row_mask:0xf bank_mask:0xf
v_mov_b32_dpp v{TMP+2}, v{REC+1} quad_perm:[0,0,0,0] row_mask:0xf bank_mask:0xf
v_cmp_eq_u32 vcc, s100, v{TMP}
v_cmp_ne_u32 s[{sM}:{sM+1}], s100, v{TMP+2}
s_add_u32 s{sT2}, s{sT2}, 1
v_cndmask_b32 v{TMP+1}, 0, v{TMP+1}, vcc
v_max_u32 v{TMP+3}, 1, v{TMP+1}
v_cmp_lt_u32 vcc, v{RK0}, v{TMP+3}
s_cmp_ge_u32 s{sT2}, 0x10000
s_cbranch_scc1 F_cd
s_and_b64 exec, vcc, s[{sM}:{sM+1}]
s_cbranch_execz F_cd
s_sleep 1
buffer_load_dwordx4 {vr(REC,4)}, v2, s[32:35], s{sOFF} offen sc1
s_mov_b64 exec, -1
s_waitcnt vmcnt(0)
s_branch F_cl
F_cd:
s_mov_b64 exec, -1
v_cmp_gt_u32 s[{sV0}:{sV0+1}], v{TMP+1}, v8
v_cmp_gt_u32 s[{sV1}:{sV1+1}], v{TMP+1}, v{RK1}
""")
    st("cell")
    sort_rank(o)
    wl((4, 5))
    o("s_waitcnt lgkmcnt(0)\ns_barrier")
    sort_scatter(o)
    o(f"""
s_lshl_b32 s{sOC}, s{sWAVE}, 13
s_add_u32 s{sOC}, s{sOC}, {WS_FLAG}
v_lshlrev_b32 v{TMP}, 7, v1
""")
    o(f"""
s_cmp_ge_u32 s{sWAVE}, 4
s_cbranch_scc1 F_np1
buffer_load_dwordx2 {vr(TMP+1,2)}, v{TMP}, s[32:35], s{sOC} offen sc1
F_np1:
""")
    st("u")
    o(f"""
s_cmp_ge_u32 s{sWAVE}, 4
s_cbranch_scc1 F_npp
s_mov_b32 s{sT1}, 0
s_waitcnt vmcnt(0)
F_plp:
v_cmpx_ne_u64 vcc, s[100:101], {vr(TMP+1,2)}
s_add_u32 s{sT1}, s{sT1}, 1
s_nop 3
s_cbranch_execz F_pdp
s_cmp_ge_u32 s{sT1}, 0x10000
s_cbranch_scc1 F_pdp
buffer_load_dwordx2 {vr(TMP+1,2)}, v{TMP}, s[32:35], s{sOC} offen sc1
s_waitcnt vmcnt(0)
s_branch F_plp
F_pdp:
s_mov_b64 exec, -1
""")
    o(f"""
F_npp:
""")
    wl((6, 7))
    o(f"""
s_mov_b32 s{sT0}, {WS_OVFC}
buffer_load_dwordx2 {vr(VOVF,2)}, v{VC}, s[32:35], s{sT0} offen sc1
s_waitcnt lgkmcnt(0)
s_barrier
L_pr:
""")
    st("b3")
    zero_cnt(o)
    prime(o)
    o(f"""
s_cmp_lg_u32 s{sRND}, 0
s_cbranch_scc1 L_go
s_call_b64 s[{sRET}:{sRET+1}], L_ugemm
L_go:
""")
    stamp(o, 5)
    o(f"""
s_mov_b64 vcc, 0
s_mov_b32 s{sK}, {KMAX}
s_add_u32 s{sRND}, s{sRND}, 1
s_cmp_ge_u32 s{sP}, s{sP1}
s_cbranch_scc1 L_loopdone
v_cmp_eq_u32 s[{sM}:{sM+1}], s{sP}, v{VEND}
s_sub_u32 s{sIT}, s{sP1}, s{sP}
s_add_u32 s{sIT}, s{sIT}, {R-1}
s_mul_i32 s{sIT}, s{sIT}, 171
s_lshr_b32 s{sIT}, s{sIT}, 10
s_cmp_eq_u32 s{sP}, 0
s_cselect_b32 s{sT2}, 1, 0
s_cmp_lg_u64 s[{sM}:{sM+1}], 0
s_cselect_b32 s{sT2}, 1, s{sT2}
s_xor_b32 s{sHEAD}, s{sT2}, 1
s_call_b64 s[{sRET}:{sRET+1}], L_newnode
s_setprio 3
s_waitcnt vmcnt({2*(R-1)}) lgkmcnt(0)
v_mfma_f32_16x16x32_bf16 {vr(T0,4)}, {vr(A0,4)}, {vr(RING,4)}, {vr(Q,4)}
s_nop 5
L_top:
""")
    for k in range(R):
        B = RING + 4*k
        B1 = RING + 4*((k+1) % R)
        ex, pk = valu_block(TT[k & 1])
        o(f"""
s_waitcnt vmcnt({2*(R-2)}) lgkmcnt(0)
v_mfma_f32_16x16x32_bf16 {vr(TT[(k+1)&1],4)}, {vr(AA[(k+1)&1],4)}, {vr(B1,4)}, {vr(Q,4)}
{ex}
buffer_load_dword v{B}, v{IX}, s[16:19], 0 offen sc1
buffer_load_dword v{B+1}, v{IX}, s[16:19], 0 offen offset:256 sc1
ds_read_b32 v{IX}, v{VI} offset:{4*(k+R+1)}
ds_read2_b32 {vr(AA[k&1]+2,2)}, v{VE} offset0:{4*(k+2)} offset1:{4*(k+2)+2}
{pk}
s_sub_u32 s{sREM}, s{sREM}, 1
s_cbranch_scc1 L_call{k}
L_next{k}:
""")
    o(f"""
v_add_u32 v{VI}, {4*R}, v{VI}
v_add_u32 v{VE}, {16*R}, v{VE}
s_sub_u32 s{sIT}, s{sIT}, 1
s_cmp_ge_u32 s{sIT}, 4
s_cbranch_scc1 L_top
s_setprio 2
s_cmp_eq_u32 s{sIT}, 3
s_cbranch_scc1 L_top
s_setprio 1
s_cmp_eq_u32 s{sIT}, 2
s_cbranch_scc1 L_top
s_setprio 0
s_branch L_top
""")
    for k in range(R):
        B1 = RING + 4*((k+1) % R)
        o(f"""
L_call{k}:
s_call_b64 s[{sRET}:{sRET+1}], L_flush
s_cbranch_scc0 L_special
s_waitcnt lgkmcnt(0)
v_mfma_f32_16x16x32_bf16 {vr(TT[(k+1)&1],4)}, {vr(AA[(k+1)&1],4)}, {vr(B1,4)}, {vr(Q,4)}
s_nop 4
s_branch L_next{k}
""")
    o(f"""
L_flush:
v_rcp_f32 v{E}, v{D}
v_rcp_f32 v{E+1}, v{D+1}
v_rcp_f32 v{E+2}, v{D+2}
v_rcp_f32 v{E+3}, v{D+3}
s_mov_b32 s{sP}, s{sSEGE}
s_cbranch_vccnz L_nochk
v_pk_fma_f32 {vr(CK,2)}, {vr(NN,2)}, 0, {vr(D,2)}
v_pk_fma_f32 {vr(CK+2,2)}, {vr(NN+2,2)}, 0, {vr(D+2,2)}
v_pk_add_f32 {vr(CK,2)}, {vr(CK,2)}, {vr(CK+2,2)}
v_add_f32 v{CK}, v{CK}, v{CK+1}
v_cmp_nle_f32 s[{sM}:{sM+1}], v{CK}, s{sBND}
s_nop 3
s_cmp_eq_u64 s[{sM}:{sM+1}], 0
s_cbranch_scc1 L_nochk
s_mov_b32 s{sP}, s{sSEGS}
s_setpc_b64 s[{sRET}:{sRET+1}]
L_nochk:
v_pk_fma_f32 {vr(AC,2)}, {vr(NN,2)}, {vr(E,2)}, {vr(AC,2)}
v_pk_fma_f32 {vr(AC+2,2)}, {vr(NN+2,2)}, {vr(E+2,2)}, {vr(AC+2,2)}
s_cmp_lg_u32 s{sW1}, 0
s_cbranch_scc1 L_havew
s_mov_b32 s{sW1}, 1
""")
    wloads(o, 1, W)
    o(f"""
L_havew:
s_cmp_eq_u32 s{sP}, s{sNEND}
s_cbranch_scc1 L_fin
s_cmp_lg_u32 s{sP}, s{sP1}
s_cbranch_scc1 L_reinit
s_cmp_lg_u32 s{sHEAD}, 0
s_cbranch_scc1 L_pub
s_mov_b32 s{sT0}, s{sWAVE}
s_mov_b32 s{sT1}, s{sP1}
L_col:
s_add_u32 s{sT0}, s{sT0}, 1
s_lshl_b32 s{sT2}, s{sT0}, 2
s_add_u32 s{sT2}, s{sT2}, {L_HF}
v_mov_b32 v{CK}, s{sT2}
L_poll:
ds_read_b32 v{CK+1}, v{CK}
s_waitcnt lgkmcnt(0)
v_readfirstlane_b32 s{sT2}, v{CK+1}
s_nop 3
s_cmp_eq_u32 s{sT2}, s{sRND}
s_cbranch_scc1 L_got
s_sleep 1
s_branch L_poll
L_got:
s_lshl_b32 s{sT2}, s{sT0}, 10
s_add_u32 s{sT2}, s{sT2}, {L_HB}
v_add_u32 v{CK}, s{sT2}, v{VC}
ds_read2st64_b64 {vr(E,4)}, v{CK} offset0:0 offset1:1
s_add_u32 s{sT1}, s{sT1}, s{sCH}
s_waitcnt lgkmcnt(0)
v_pk_add_f32 {vr(AC,2)}, {vr(AC,2)}, {vr(E,2)}
v_pk_add_f32 {vr(AC+2,2)}, {vr(AC+2,2)}, {vr(E+2,2)}
s_cmp_lt_u32 s{sT1}, s{sNEND}
s_cbranch_scc1 L_col
s_branch L_wr
L_fin:
s_cmp_lg_u32 s{sHEAD}, 0
s_cbranch_scc1 L_pub
L_wr:
v_cvt_pk_bf16_f32 v{E}, v{AC}, v{AC+1}
v_cvt_pk_bf16_f32 v{E+1}, v{AC+2}, v{AC+3}
ds_write2st64_b32 v{VB}, v{E}, v{E+1} offset0:0 offset1:1
L_more:
s_mov_b32 s{sHEAD}, 0
s_cmp_lg_u32 s{sP}, s{sP1}
s_cbranch_scc1 L_newnode
s_setpc_b64 s[{sRET}:{sRET+1}]
L_pub:
s_lshl_b32 s{sT2}, s{sWAVE}, 10
s_add_u32 s{sT2}, s{sT2}, {L_HB}
v_add_u32 v{CK}, s{sT2}, v{VC}
s_lshl_b32 s{sT2}, s{sWAVE}, 2
s_add_u32 s{sT2}, s{sT2}, {L_HF}
v_mov_b32 v{CK+1}, s{sT2}
v_mov_b32 v{CK+2}, s{sRND}
ds_write2st64_b64 v{CK}, {vr(AC,2)}, {vr(AC+2,2)} offset0:0 offset1:1
s_waitcnt lgkmcnt(0)
ds_write_b32 v{CK+1}, v{CK+2}
s_branch L_more
L_old:
s_cmp_lg_u32 s{sHEAD}, 0
s_cbranch_scc1 L_reinit
ds_read2st64_b32 {vr(E,2)}, v{VB} offset0:0 offset1:1
s_waitcnt lgkmcnt(0)
v_lshlrev_b32 v{AC}, 16, v{E}
v_and_b32 v{AC+1}, 0xffff0000, v{E}
v_lshlrev_b32 v{AC+2}, 16, v{E+1}
v_and_b32 v{AC+3}, 0xffff0000, v{E+1}
s_branch L_reinit
L_newnode:
v_cmp_ge_u32 s[{sM}:{sM+1}], s{sP}, v{VEND}
v_mov_b64 {vr(AC,2)}, 0
v_mov_b64 {vr(AC+2,2)}, 0
s_nop 1
s_bcnt1_i32_b64 s{sT0}, s[{sM}:{sM+1}]
s_mul_i32 s{sT1}, s{sT0}, {RS}
v_readlane_b32 s{sNEND}, v{VEND}, s{sT0}
v_add_u32 v{VN}, s{sT1}, v{VC}
ds_read2st64_b64 {vr(Q,4)}, v{VN} offset0:0 offset1:1
s_and_b32 s{sT1}, s{sT0}, 15
s_lshl_b32 s{sT1}, s{sT1}, 4
s_lshl_b32 s{sT0}, s{sT0}, 9
s_or_b32 s{sT0}, s{sT0}, s{sT1}
s_add_u32 s{sT0}, s{sT0}, {L_AGB}
v_xor_b32 v{VB}, s{sT0}, v{LO}
s_cmp_lg_u32 s{sRND}, 1
s_cbranch_scc1 L_old
L_reinit:
v_mov_b64 {vr(NN,2)}, 0
v_mov_b64 {vr(NN+2,2)}, 0
v_mov_b64 {vr(D,2)}, s[{sONE}:{sONE+1}]
v_mov_b64 {vr(D+2,2)}, s[{sONE}:{sONE+1}]
s_mov_b32 s{sSEGS}, s{sP}
s_add_u32 s{sSEGE}, s{sP}, s{sK}
s_min_u32 s{sSEGE}, s{sSEGE}, s{sNEND}
s_min_u32 s{sSEGE}, s{sSEGE}, s{sP1}
s_sub_u32 s{sREM}, s{sSEGE}, s{sP}
s_sub_u32 s{sREM}, s{sREM}, 1
s_cmp_eq_u32 s{sP}, s{sP}
s_setpc_b64 s[{sRET}:{sRET+1}]
L_special:
s_cmp_eq_u32 s{sP}, s{sP1}
s_cbranch_scc1 L_loopdone
s_mov_b64 vcc, -1
s_mov_b32 s{sK}, 1
s_waitcnt vmcnt(0) lgkmcnt(0)
s_call_b64 s[{sRET}:{sRET+1}], L_reinit
L_slow:
s_lshl_b32 s{sT0}, s{sP}, 2
s_add_u32 s{sT0}, s{sT0}, {L_IDX}
v_mov_b32 v{VI}, s{sT0}
s_lshl_b32 s{sT0}, s{sP}, 4
v_add_u32 v{VE}, s{sT0}, v{VEL}
ds_read_b32 v{IX}, v{VI}
ds_read2_b32 {vr(A0+2,2)}, v{VE} offset0:0 offset1:2
s_waitcnt lgkmcnt(0)
buffer_load_dword v{RING}, v{IX}, s[16:19], 0 offen sc1
buffer_load_dword v{RING+1}, v{IX}, s[16:19], 0 offen offset:256 sc1
s_waitcnt vmcnt(0)
v_mfma_f32_16x16x32_bf16 {vr(T0,4)}, {vr(A0,4)}, {vr(RING,4)}, {vr(Q,4)}
s_nop 7
v_min_f32 v{T0}, 0x42fc0000, v{T0}
v_min_f32 v{T0+1}, 0x42fc0000, v{T0+1}
v_min_f32 v{T0+2}, 0x42fc0000, v{T0+2}
v_min_f32 v{T0+3}, 0x42fc0000, v{T0+3}
{valu_block(T0)[0]}
{valu_block(T0)[1]}
s_call_b64 s[{sRET}:{sRET+1}], L_flush
s_cbranch_scc1 L_slow
L_loopdone:
""")
    st("le")
    if len(STEPS) < 5: stamp(o, 6)
    o(f"""
s_setprio 0
s_cmp_lg_u32 s{sW1}, 0
s_cbranch_scc1 L_ld2
s_mov_b32 s{sW1}, 1
""")
    wloads(o, 1, W)
    o(f"""
L_ld2:
s_cmp_lg_u32 s{sRND}, 1
s_cbranch_scc1 L_rn0
s_mov_b32 s{sOB}, 0
s_mov_b32 s{sT0}, {WS_OVFC}
L_ov:
s_waitcnt vmcnt(0)
v_cmp_ne_u32 vcc, s100, v{VOVF+1}
v_cmp_ne_u32 s[{sOM}:{sOM+1}], 0, v{VOVF}
s_add_u32 s{sOB}, s{sOB}, 1
s_cmp_ge_u32 s{sOB}, 0x10000
s_cbranch_scc1 L_ovd
s_nop 0
s_cbranch_vccz L_ovd
buffer_load_dwordx2 {vr(VOVF,2)}, v{VC}, s[32:35], s{sT0} offen sc1
s_branch L_ov
L_ovd:
s_mov_b32 s{sOB}, 0
L_rn0:
v_and_b32 v{TMP}, 15, v1
v_xor_b32 v{TMP+1}, v{TMP}, v3
v_lshlrev_b32 v{TMP+1}, 4, v{TMP+1}
v_lshl_add_u32 v{TMP+1}, v{TMP}, 9, v{TMP+1}
s_waitcnt vmcnt(0)
s_cmp_eq_u64 s[{sOM}:{sOM+1}], 0
s_cbranch_scc0 L_round
""")
    o(f"v_add_u32 v4, {L_AGB}, v{TMP+1}")
    for ks in range(1, 8):
        o(f"v_xor_b32 v{4+ks}, {64*ks}, v4")
    o(f"""
v_add_u32 v{TMP+2}, s{sN0}, v{TMP}
v_lshlrev_b32 v{TMP+2}, 9, v{TMP+2}
v_lshl_add_u32 v{TMP+2}, v3, 3, v{TMP+2}
s_lshl_b32 s{sT0}, s{sWAVE}, 5
s_add_u32 s{sT1}, s{sT0}, 8192
s_add_u32 s{sT2}, s{sT0}, 16384
s_sub_u32 s{sCNT}, s{sCNT}, 32
v_cmp_gt_u32 s[{sM}:{sM+1}], s{sCNT}, v{TMP}
v_mov_b32 v12, s{sSC}
s_waitcnt lgkmcnt(0)
s_barrier
""")
    st("fb")
    FB = [T0, T1, E, NN]
    def rd(i):
        o(f"ds_read_b128 {vr(FB[i % 4],4)}, v{4 + (i & 7)} offset:{(i >> 3)*8192}")
    def silu(rt):
        a, t = UA + 4*rt, D
        l = [f"v_exp_f32 v{t+i}, v{a+i}" for i in range(4)]
        l += [f"v_fma_f32 v{t+i}, v{t+i}, v12, v12" for i in range(4)]
        l += [f"v_rcp_f32 v{t+i}, v{t+i}" for i in range(4)]
        l += [f"v_mul_f32 v{a+i}, v{a+i}, v{t+i}" for i in range(4)]
        l += [f"v_cvt_pk_bf16_f32 v{a}, v{a}, v{a+1}", f"v_cvt_pk_bf16_f32 v{a+1}, v{a+2}, v{a+3}"]
        if rt == 2:
            l.append(f"s_mov_b64 exec, s[{sM}:{sM+1}]")
        l.append(f"buffer_store_dwordx2 {vr(a,2)}, v{TMP+2}, s[40:43], s{[sT0,sT1,sT2][rt]} offen")
        return l
    for i in range(3):
        rd(i)
    pend = []
    for i in range(24):
        rt, ks = i >> 3, i & 7
        if i + 3 < 24:
            rd(i + 3)
        o(f"s_waitcnt lgkmcnt({min(3, 23 - i)})")
        o(f"v_mfma_f32_16x16x32_bf16 {vr(UA+4*rt,4)}, {vr(W+4*ks,4)}, {vr(FB[i % 4],4)}, {vr(UA+4*rt,4)}")
        if ks == 2 and rt > 0:
            pend = silu(rt - 1)
        n = 4 if ks < 7 else len(pend)
        o("\n".join(pend[:n]))
        pend = pend[n:]
    o("s_nop 7")
    st("fg")
    o("\n".join(silu(2)))
    st("fs")
    if STAMP:
        o(f"""
s_waitcnt vmcnt(0)
s_memrealtime s[94:95]
s_mov_b64 exec, 1
s_lshl_b32 s26, s2, 4
s_add_u32 s26, s26, s{sWAVE}
s_lshl_b32 s26, s26, 5
s_add_u32 s26, s26, {WS_STAMP + 0x100000}
s_mov_b32 s34, 0x1000000
v_mov_b32 v0, 0
s_waitcnt lgkmcnt(0)
""")
        for i in range(8):
            o(f"v_mov_b32 v{4+i}, s{80+2*i}")
        if "dbgst" in OPT:
            o("v_not_b32 v12, v4\nv_not_b32 v13, v9\nv_not_b32 v14, v5\nv_not_b32 v15, v10")
            for i in range(12):
                o(f"buffer_atomic_umax v{4+i}, v0, s[96:99], 0 offen offset:{8+4*i} sc1")
        else:
            o("buffer_store_dwordx4 v[4:7], v0, s[32:35], s26 offen\nbuffer_store_dwordx4 v[8:11], v0, s[32:35], s26 offen offset:16")
    o(f"""
L_end:
s_endpgm
L_round:
s_waitcnt lgkmcnt(0)
s_barrier
s_ff1_i32_b64 s{sT0}, s[{sOM}:{sOM+1}]
s_mul_i32 s{sT1}, s{sT0}, {CHUNK*8}
v_readlane_b32 s{sOC}, v{VOVF}, s{sT0}
s_lshl_b32 s{sT2}, s{sOB}, 3
s_add_u32 s{sT1}, s{sT1}, s{sT2}
s_add_u32 s{sT1}, s{sT1}, {WS_OVF}
buffer_load_dwordx4 {vr(REC,4)}, v2, s[32:35], s{sT1} offen sc1
v_lshlrev_b32 v{TMP}, 1, v0
v_add_u32 v{TMP}, s{sOB}, v{TMP}
v_add_u32 v{TMP+1}, 1, v{TMP}
v_cmp_gt_u32 s[{sV0}:{sV0+1}], s{sOC}, v{TMP}
v_cmp_gt_u32 s[{sV1}:{sV1+1}], s{sOC}, v{TMP+1}
s_add_u32 s{sOB}, s{sOB}, 2048
s_cmp_lt_u32 s{sOB}, s{sOC}
s_cbranch_scc1 L_rn2
s_bitset0_b64 s[{sOM}:{sOM+1}], s{sT0}
s_mov_b32 s{sOB}, 0
L_rn2:
s_waitcnt vmcnt(0)
v_lshrrev_b32 v{TMP}, 16, v{REC+1}
v_lshrrev_b32 v{TMP+1}, 16, v{REC+3}
v_cmp_eq_u32 s[{sM}:{sM+1}], s2, v{TMP}
s_nop 3
s_and_b64 s[{sV0}:{sV0+1}], s[{sV0}:{sV0+1}], s[{sM}:{sM+1}]
v_cmp_eq_u32 s[{sM}:{sM+1}], s2, v{TMP+1}
s_nop 3
s_and_b64 s[{sV1}:{sV1+1}], s[{sV1}:{sV1+1}], s[{sM}:{sM+1}]
""")
    sort_rank(o)
    o("s_waitcnt lgkmcnt(0)\ns_barrier")
    sort_scatter(o)
    o("s_waitcnt lgkmcnt(0)\ns_barrier")
    o("s_branch L_pr\nL_ugemm:")
    XB = [QA, QA + 4, QA + 8, W3 - 2]
    seq = [(ks, rt) for ks in range(8) for rt in range(3)]
    def urd(i):
        ks, rt = seq[i]
        if rt == 0 and ks:
            o(f"v_xor_b32 v{TMP+6}, {64*ks}, v{VXA}")
        o(f"ds_read_b128 {vr(XB[i % 4],4)}, v{TMP+6 if ks else VXA} offset:{rt*8192}")
    for i in range(3):
        urd(i)
    for i, (ks, rt) in enumerate(seq):
        if i + 3 < 24:
            urd(i + 3)
        if rt == 0:
            o(f"s_waitcnt vmcnt({7-ks+1+2*R})")
        o(f"s_waitcnt lgkmcnt({min(3, 23 - i)})")
        c = "0" if ks == 0 else vr(UA+4*rt, 4)
        o(f"v_mfma_f32_16x16x32_bf16 {vr(UA+4*rt,4)}, {vr(W+4*ks,4)}, {vr(XB[i % 4],4)}, {c}")
    o("s_nop 5")
    for h in range(6):
        o(f"v_pk_mul_f32 {vr(UA+2*h,2)}, {vr(UA+2*h,2)}, s[{sSC}:{sSC+1}]")
    o(f"s_setpc_b64 s[{sRET}:{sRET+1}]")
    bin_overflow(o)

def main(path):
    o = Asm()
    gen(o)
    hdr = f"""; MPNN edge-MLP + segment sum + node update in one launch (256 co-resident workgroups, one per CU).
; Phase B (after tagged-flag hand-off): per-edge SiLU accumulation over gathered P rows, update GEMM + SiLU.
; @launch grid=(256,1,1) block=(1024,1,1) lds={L_ALLOC}
.amdgcn_target "amdgcn-amd-amdhsa--gfx950"
.text
"""
    desc = f""".section .rodata,"a"
.p2align 6
.amdhsa_kernel {KNAME}
  .amdhsa_next_free_vgpr {NV}
  .amdhsa_next_free_sgpr 102
  .amdhsa_accum_offset {(NV+3)//4*4}
  .amdhsa_group_segment_fixed_size 0
  .amdhsa_kernarg_size 72
  .amdhsa_user_sgpr_count 2
  .amdhsa_user_sgpr_kernarg_segment_ptr 1
  .amdhsa_system_sgpr_workgroup_id_x 1
.end_amdhsa_kernel
"""
    open(path, "w").write(hdr + o.text() + desc)

if __name__ == "__main__":
    if "--stamp" in sys.argv:
        sys.argv.remove("--stamp")
        STAMP = True
    for a in list(sys.argv):
        if a.startswith("--steps="):
            sys.argv.remove(a)
            STEPS = a[8:].split(",")
        if a.startswith("--poll="):
            sys.argv.remove(a)
            STEP_FLAG = int(a[7:])
        if a.startswith("--opt="):
            sys.argv.remove(a)
            OPT |= set(a[6:].split(","))
    main(sys.argv[1] if len(sys.argv) > 1 else "gather_scatter__mpnn_edge_mlp__graph.s")
```

```python
import sys

N = 10000
WS_WPACK = 0x500000
WS_OVFC = 0x560000
WS_OVF = 0x570000
WS_FLAG = 0x6E0000
WS_CELL = 0x700000
WS_END = 0xB00000
WS_STAMP = 0xC00000
CHUNK = 2500
CAP = 28
NEGL2E = 0xBFB8AA3B
NEGLN2 = 0xBF317218
KNAME = "gather_scatter__mpnn_edge_mlp__graph_kernel"
STAMP = False
STEP_FLAG = 14
STEPS = ["s-1", "pst", "drain", "cell"]
OPT = set()

class Asm:
    def __init__(self):
        self.l = []
    def __call__(self, s):
        for line in s.strip("\n").split("\n"):
            line = line.strip()
            if line:
                self.l.append(line if line.endswith(":") else "    " + line)
    def text(self):
        l = self.l
        def sub(a_lab, b_lab, pref):
            a = l.index(a_lab); b = l.index(b_lab)
            return l[:a] + [("    s_nop 0" if any(x.strip().startswith(p) for p in pref) else x) for x in l[a:b]] + l[b:]
        if "gplain" in OPT:
            l = [x.replace(" sc1", "") if "s[16:19], 0 offen" in x else x for x in l]
        if "gnt" in OPT:
            l = [x + " nt" if "s[16:19], 0 offen" in x else x for x in l]
        if "noprio" in OPT:
            l = [x for x in l if "s_setprio" not in x]
        if "noloop_ld" in OPT: l = sub("L_top:", "L_call0:", ["buffer_load"])
        return "\n".join(l) + "\n"

def vr(a, n):
    return f"v[{a}:{a+n-1}]" if n > 1 else f"v{a}"

def srd(o, d, lo, hi, size):
    o(f"s_mov_b32 s{d}, s{lo}\ns_mov_b32 s{d+1}, s{hi}\ns_mov_b32 s{d+2}, {size}\ns_mov_b32 s{d+3}, 0x20000")

def stamp(o, i):
    if STAMP:
        if "clk2" in OPT:
            if i in (1, 2):
                o(f"s_memrealtime s[{80+2*i}:{81+2*i}]\ns_memtime s[{84+2*i}:{85+2*i}]\ns_waitcnt lgkmcnt(0)")
            elif i not in (3, 4):
                o(f"s_memrealtime s[{80+2*i}:{81+2*i}]\ns_waitcnt lgkmcnt(0)")
            return
        o(f"s_memrealtime s[{80+2*i}:{81+2*i}]\ns_waitcnt lgkmcnt(0)")

R = 6
KMAX = 24
RS = 1040
L_QS = 0
L_AGB = (48 * RS + 511) // 512 * 512
L_HB = L_AGB + 48 * 512
L_IDX = L_HB + 16 * 1024
L_ET = L_IDX + 2064 * 4
L_CNT = (L_ET + 2052 * 16 + 255) // 256 * 256
L_HF = L_CNT + 256
L_XS = (L_HF + 256 + 511) // 512 * 512
L_END = L_XS + 48 * 512
L_IMG = 65536
L_BCNT = 131072
L_PST = L_HB
L_PK = 3 * 32768
L_ALLOC = L_END
assert L_BCNT + 1100 <= L_CNT and L_END <= 163840
RING = 4
A0, A1, Q, T0, T1, E, NN, D, AC, UA = 28, 32, 36, 40, 44, 48, 52, 56, 60, 64
VOVF, VB, IX, AD, LO, VI, VE, VN, VC, VEND, VEL = 76, 78, 79, 80, 81, 82, 83, 84, 85, 86, 126
TMP = 87
W = 94
NV = 127
PA, QA, VXA, VWA, VWS, VTG, W3, TG0, ZR = UA, 48, AD, 36, 38, 76, 62, 60, 44
XFB, WFB = [W, W + 20], [W + 12, 40]
VWB = VE
TAG = 92
sWAVE, sN0, sCNT, sHEAD, sIT, sW1, sCH = 3, 4, 5, 6, 7, 26, 27
sP, sP1, sREM, sSEGE, sSEGS, sNEND, sK, sTOT, sRND, sOB, sOC, sOFF = range(48, 60)
sV0, sV1, sOM, sRET, sSO, sM, sONE, sSC = 60, 62, 64, 66, 68, 70, 72, 74
sM0, sLD = 69, 16
sT0, sT1, sT2, sBND = 76, 77, 78, 79
sLN2 = 44
REC, RK0, RK1 = 40, 4, 5
CK = TMP + 1

def valu_block(T):
    ex = "\n".join(f"v_exp_f32 v{E+i}, v{T+i}" for i in range(4))
    pk = f"""
v_pk_fma_f32 {vr(NN,2)}, {vr(NN,2)}, {vr(E,2)}, {vr(NN,2)}
v_pk_fma_f32 {vr(NN+2,2)}, {vr(NN+2,2)}, {vr(E+2,2)}, {vr(NN+2,2)}
v_pk_fma_f32 {vr(NN,2)}, {vr(T,2)}, {vr(D,2)}, {vr(NN,2)}
v_pk_fma_f32 {vr(NN+2,2)}, {vr(T+2,2)}, {vr(D+2,2)}, {vr(NN+2,2)}
v_pk_fma_f32 {vr(D,2)}, {vr(D,2)}, {vr(E,2)}, {vr(D,2)}
v_pk_fma_f32 {vr(D+2,2)}, {vr(D+2,2)}, {vr(E+2,2)}, {vr(D+2,2)}
"""
    return ex, pk

def poll(o, tag, soff, count):
    o(f"""
v_lshlrev_b32 v{TMP}, 7, v1
s_mov_b32 s{sT1}, 0
s_mov_b64 exec, {"-1" if count == 64 else hex((1 << count) - 1)}
F_pl{tag}:
buffer_load_dwordx2 {vr(TMP+1,2)}, v{TMP}, s[32:35], {soff} offen sc1
s_add_u32 s{sT1}, s{sT1}, 1
s_waitcnt vmcnt(0)
v_cmpx_ne_u64 vcc, s[100:101], {vr(TMP+1,2)}
s_nop 4
s_cbranch_execz F_pd{tag}
s_sleep 2
s_cmp_lt_u32 s{sT1}, 0x10000
s_cbranch_scc1 F_pl{tag}
F_pd{tag}:
s_mov_b64 exec, -1
""")

def get_tag(o, tag):
    o(f"""
s_mov_b32 s{sT1}, 0
F_tg{tag}:
v_readfirstlane_b32 s100, v{TAG}
v_readfirstlane_b32 s101, v{TAG+1}
s_add_u32 s{sT1}, s{sT1}, 1
s_cmp_ge_u32 s{sT1}, 0x10000
s_cbranch_scc1 F_th{tag}
s_cmp_lg_u32 s100, 0
s_cbranch_scc1 F_th{tag}
buffer_load_dwordx2 {vr(TAG,2)}, v{VTG}, s[96:99], 0 offen sc1
s_waitcnt vmcnt(0)
s_branch F_tg{tag}
F_th{tag}:
""")

def put_flag(o, soff):
    o(f"""
v_mov_b32 v{TMP+1}, s100
v_mov_b32 v{TMP+2}, s101
s_mov_b64 exec, 1
buffer_store_dwordx2 {vr(TMP+1,2)}, v{VTG}, s[32:35], {soff} offen sc1
s_mov_b64 exec, -1
""")

def sort_rank(o):
    o(f"""
s_mov_b32 s{sT0}, {L_CNT}
v_mov_b32 v{TMP+4}, 0xfc
v_mov_b32 v{TMP+3}, 1
v_and_or_b32 v{TMP}, v{REC}, v{TMP+4}, s{sT0}
v_and_or_b32 v{TMP+1}, v{REC+2}, v{TMP+4}, s{sT0}
s_mov_b64 exec, s[{sV0}:{sV0+1}]
ds_add_rtn_u32 v{RK0}, v{TMP}, v{TMP+3}
s_mov_b64 exec, s[{sV1}:{sV1+1}]
ds_add_rtn_u32 v{RK1}, v{TMP+1}, v{TMP+3}
s_mov_b64 exec, -1
v_add_u32 v{TMP+4}, s{sT0}, v{LO}
""")

def sort_scatter(o):
    o(f"""
ds_read_b32 v{TMP+2}, v{TMP+4}
v_and_b32 v{REC}, 0x7ffe00, v{REC}
v_and_b32 v{REC+2}, 0x7ffe00, v{REC+2}
s_mov_b32 s{sT0}, {L_IDX}
s_mov_b32 s{sT1}, {L_ET}
s_waitcnt lgkmcnt(0)
v_add_u32_dpp v{VEND}, v{TMP+2}, v{TMP+2} row_shr:1 row_mask:0xf bank_mask:0xf bound_ctrl:0
s_nop 1
v_add_u32_dpp v{VEND}, v{VEND}, v{VEND} row_shr:2 row_mask:0xf bank_mask:0xf bound_ctrl:0
s_nop 1
v_add_u32_dpp v{VEND}, v{VEND}, v{VEND} row_shr:4 row_mask:0xf bank_mask:0xf bound_ctrl:0
s_nop 1
v_add_u32_dpp v{VEND}, v{VEND}, v{VEND} row_shr:8 row_mask:0xf bank_mask:0xf bound_ctrl:0
s_nop 1
v_add_u32_dpp v{VEND}, v{VEND}, v{VEND} row_bcast:15 row_mask:0xa bank_mask:0xf
s_nop 1
v_add_u32_dpp v{VEND}, v{VEND}, v{VEND} row_bcast:31 row_mask:0xc bank_mask:0xf
v_sub_u32 v{TMP+3}, v{VEND}, v{TMP+2}
v_readlane_b32 s{sTOT}, v{VEND}, 63
ds_bpermute_b32 v{TMP}, v{TMP}, v{TMP+3}
ds_bpermute_b32 v{TMP+1}, v{TMP+1}, v{TMP+3}
s_nop 1
s_add_u32 s{sCH}, s{sTOT}, 15
s_lshr_b32 s{sCH}, s{sCH}, 4
s_mul_i32 s{sP}, s{sCH}, s{sWAVE}
s_add_u32 s{sP1}, s{sP}, s{sCH}
s_min_u32 s{sP}, s{sP}, s{sTOT}
s_min_u32 s{sP1}, s{sP1}, s{sTOT}
s_waitcnt lgkmcnt(0)
v_add_u32 v{TMP}, v{TMP}, v{RK0}
v_add_u32 v{TMP+1}, v{TMP+1}, v{RK1}
v_lshl_add_u32 v{TMP+2}, v{TMP}, 2, s{sT0}
v_lshl_add_u32 v{TMP+3}, v{TMP+1}, 2, s{sT0}
v_lshl_add_u32 v{TMP}, v{TMP}, 4, s{sT1}
v_lshl_add_u32 v{TMP+1}, v{TMP+1}, 4, s{sT1}
s_mov_b64 exec, s[{sV0}:{sV0+1}]
ds_write_b32 v{TMP+2}, v{REC}
ds_write_b16 v{TMP}, v{REC+1} offset:8
ds_write_b16 v{TMP}, v{REC+1} offset:14
s_mov_b64 exec, s[{sV1}:{sV1+1}]
ds_write_b32 v{TMP+3}, v{REC+2}
ds_write_b16 v{TMP+1}, v{REC+3} offset:8
ds_write_b16 v{TMP+1}, v{REC+3} offset:14
s_mov_b64 exec, -1
""")

def zero_cnt(o):
    o(f"v_mov_b32 v{TMP}, 0\nds_write_b32 v{TMP+4}, v{TMP}")

def prime(o):
    PT = T0
    o(f"""
s_lshl_b32 s{sT0}, s{sP}, 2
s_add_u32 s{sT0}, s{sT0}, {L_IDX}
v_mov_b32 v{VI}, s{sT0}
s_lshl_b32 s{sT0}, s{sP}, 4
v_add_u32 v{VE}, s{sT0}, v{VEL}
""")
    for k in range(0, R, 2):
        o(f"ds_read2_b32 {vr(PT+k,2)}, v{VI} offset0:{k} offset1:{k+1}")
    o(f"""
ds_read_b32 v{IX}, v{VI} offset:{4*R}
ds_read2_b32 {vr(A0+2,2)}, v{VE} offset0:0 offset1:2
ds_read2_b32 {vr(A1+2,2)}, v{VE} offset0:4 offset1:6
s_waitcnt lgkmcnt(0)
""")
    for k in range(R):
        B = RING + 4*k
        o(f"buffer_load_dword v{B}, v{PT+k}, s[16:19], 0 offen sc1")
        o(f"buffer_load_dword v{B+1}, v{PT+k}, s[16:19], 0 offen offset:256 sc1")

def wloads(o, mat, wreg, kss=range(8), sa=sT0, sb=sT1, va=TMP+5, setup=True):
    if not setup:
        for ks in kss:
            o(f"buffer_load_dwordx4 {vr(wreg+4*ks,4)}, v{va}, s[32:35], s{sa if ks < 4 else sb} offen offset:{(ks%4)*1024} sc1")
        return
    o(f"""
s_lshl_b32 s{sT0}, s{sWAVE}, 13
s_add_u32 s{sT0}, s{sT0}, {WS_WPACK + mat*131072}
s_add_u32 s{sT1}, s{sT0}, 4096
v_lshlrev_b32 v{TMP+5}, 4, v1
""")
    for ks in range(8):
        o(f"buffer_load_dwordx4 {vr(wreg+4*ks,4)}, v{TMP+5}, s[32:35], s{sT0 if ks < 4 else sT1} offen offset:{(ks%4)*1024} sc1")

DST, SRC, EA, OWN, RK, R0 = 8, 12, 16, 20, 24, 28
EW = [EA, 18, EA + 1, 19]
sBM = 58
def bin_rank(o):
    o(f"v_mov_b32 v{TMP+3}, 1\ns_mov_b64 exec, s[{sBM}:{sBM+1}]")
    for k in range(4):
        o(f"""
v_mul_u32_u24 v{OWN+k}, s56, v{DST+k}
v_lshrrev_b32 v{OWN+k}, 24, v{OWN+k}
v_lshl_add_u32 v{TMP+4}, v{OWN+k}, 2, s60
ds_add_rtn_u32 v{RK+k}, v{TMP+4}, v{TMP+3}
""")
    for k in range(4):
        o(f"""
v_mad_u32_u24 v{TMP+1}, v{OWN+k}, s57, 15
v_lshrrev_b32 v{TMP+1}, 4, v{TMP+1}
v_sub_u32 v{DST+k}, v{DST+k}, v{TMP+1}
v_lshl_add_u32 v{R0+k}, v{SRC+k}, 7, v{DST+k}
v_lshlrev_b32 v{R0+k}, 2, v{R0+k}
v_lshl_add_u32 v{DST+k}, v{OWN+k}, 8, s61
""")
    o(f"""
v_lshrrev_b32 v18, 16, v{EA}
v_lshrrev_b32 v19, 16, v{EA+1}
s_waitcnt lgkmcnt(0)
v_max3_u32 v{TMP}, v{RK}, v{RK+1}, v{RK+2}
v_max_u32 v{TMP}, v{TMP}, v{RK+3}
v_cmp_le_u32 vcc, {CAP}, v{TMP}
""")
    for k in range(4):
        o(f"""
v_mul_u32_u24 v{SRC+k}, 37, v{RK+k}
v_lshrrev_b32 v{SRC+k}, 8, v{SRC+k}
v_add_u32 v{SRC+k}, v{SRC+k}, v{RK+k}
v_lshl_add_u32 v{DST+k}, v{SRC+k}, 3, v{DST+k}
""")
    o("s_cbranch_vccnz F_ovf")
    for k in range(4):
        o(f"ds_write2_b32 v{DST+k}, v{R0+k}, v{EW[k]} offset0:2 offset1:3")
    o("F_ovfback:\ns_mov_b64 exec, -1")

def bin_overflow(o):
    o(f"F_ovf:\ns_mul_i32 s50, s2, {CHUNK*8}\ns_add_u32 s50, s50, {WS_OVF}\nv_mov_b32 v{TMP}, {L_BCNT+1024}")
    for k in range(4):
        o(f"""
v_cmp_gt_u32 vcc, {CAP}, v{RK+k}
s_and_saveexec_b64 s[62:63], vcc
ds_write2_b32 v{DST+k}, v{R0+k}, v{EW[k]} offset0:2 offset1:3
s_andn2_b64 exec, s[62:63], exec
s_cbranch_execz F_no{k}
ds_add_rtn_u32 v{TMP+4}, v{TMP}, v{TMP+3}
v_mov_b32 v{TMP+1}, v{R0+k}
v_and_b32 v{TMP+2}, 0xffff, v{EW[k]}
v_lshl_or_b32 v{TMP+2}, v{OWN+k}, 16, v{TMP+2}
s_waitcnt lgkmcnt(0)
v_lshlrev_b32 v{TMP+4}, 3, v{TMP+4}
buffer_store_dwordx2 {vr(TMP+1,2)}, v{TMP+4}, s[32:35], s50 offen sc1
s_waitcnt vmcnt(0)
F_no{k}:
s_mov_b64 exec, s[62:63]
""")
    o("s_branch F_ovfback")

def bin_copy(o):
    o(f"""
v_lshrrev_b32 v24, 3, v0
v_and_b32 v25, 7, v0
v_lshlrev_b32 v25, 4, v25
v_lshl_add_u32 v26, v24, 8, v25
v_lshl_add_u32 v27, v24, 14, v25
v_add_u32 v26, s61, v26
v_lshl_add_u32 v24, v24, 2, s60
ds_read2st64_b32 v[28:29], v24 offset0:0 offset1:2
ds_read_b128 v[8:11], v26
ds_read_b128 v[12:15], v26 offset:32768
ds_read_b128 v[16:19], v26 offset:128
ds_read_b128 v[20:23], v26 offset:{32768+128}
v_mov_b32 v30, {L_BCNT+1024}
ds_read_b32 v30, v30
v_and_b32 v25, 48, v25
v_cmp_eq_u32 s[{sBM}:{sBM+1}], 0, v25
s_lshl_b32 s49, s2, 8
s_add_u32 s49, s49, {WS_CELL}
s_add_u32 s50, s49, {128*16384}
v_mov_b32 v25, 0x7f000000
v_mov_b32 v31, s100
s_waitcnt lgkmcnt(5)
v_cmp_lt_u32 vcc, 14, v28
v_min_u32 v28, {CAP}, v28
v_cmp_lt_u32 s[62:63], 14, v29
v_min_u32 v29, {CAP}, v29
v_cndmask_b32 v24, v25, v27, vcc
v_cndmask_b32 v25, v25, v27, s[62:63]
s_waitcnt lgkmcnt(4)
v_cndmask_b32 v8, v8, v28, s[{sBM}:{sBM+1}]
v_cndmask_b32 v9, v9, v31, s[{sBM}:{sBM+1}]
buffer_store_dwordx4 v[8:11], v27, s[32:35], s49 offen sc1
s_waitcnt lgkmcnt(3)
v_cndmask_b32 v12, v12, v29, s[{sBM}:{sBM+1}]
v_cndmask_b32 v13, v13, v31, s[{sBM}:{sBM+1}]
buffer_store_dwordx4 v[12:15], v27, s[32:35], s50 offen sc1
s_waitcnt lgkmcnt(2)
v_cndmask_b32 v17, v17, v31, s[{sBM}:{sBM+1}]
buffer_store_dwordx4 v[16:19], v24, s[32:35], s49 offen offset:128 sc1
s_waitcnt lgkmcnt(1)
v_cndmask_b32 v21, v21, v31, s[{sBM}:{sBM+1}]
buffer_store_dwordx4 v[20:23], v25, s[32:35], s50 offen offset:128 sc1
s_cmp_lg_u32 s{sWAVE}, 0
s_cbranch_scc1 F_bc1
s_lshl_b32 s50, s2, 3
s_add_u32 s50, s50, {WS_OVFC}
s_mov_b64 exec, 1
s_waitcnt lgkmcnt(0)
buffer_store_dwordx2 v[30:31], v{VTG}, s[32:35], s50 offen sc1
s_mov_b64 exec, -1
F_bc1:
""")

def gen(o):
    XNT = "" if "nont" in OPT else "nt"
    AA = [A0, A1]
    TT = [T0, T1]
    o(f"""
.globl {KNAME}
.p2align 8
.type {KNAME},@function
{KNAME}:
s_cmp_ge_u32 s2, 256
s_cbranch_scc1 L_end
s_load_dwordx2 s[28:29], s[0:1], 0
s_load_dwordx2 s[44:45], s[0:1], 32
s_load_dwordx2 s[36:37], s[0:1], 24
s_load_dwordx2 s[12:13], s[0:1], 16
s_load_dwordx2 s[52:53], s[0:1], 8
s_load_dwordx2 s[40:41], s[0:1], 40
s_load_dwordx2 s[32:33], s[0:1], 64
s_load_dwordx2 s[96:97], s[0:1], 56
s_load_dwordx2 s[20:21], s[0:1], 48
s_memrealtime s[100:101]
""")
    if STAMP: o("s_memrealtime s[80:81]")
    o(f"""
v_lshrrev_b32 v2, 6, v0
v_and_b32 v1, 63, v0
s_mul_i32 s{sN0}, s2, 625
v_readfirstlane_b32 s{sWAVE}, v2
v_lshrrev_b32 v4, 5, v1
v_and_b32 v6, 31, v1
s_add_u32 s{sCNT}, s{sN0}, 640
s_add_u32 s{sN0}, s{sN0}, 15
s_lshr_b32 s{sN0}, s{sN0}, 4
s_lshl_b32 s50, s{sWAVE}, 1
v_add_u32 v5, s50, v4
v_lshlrev_b32 v2, 4, v0
v_and_b32 v7, 15, v5
v_xor_b32 v7, v7, v6
v_lshlrev_b32 v7, 4, v7
v_lshl_add_u32 v7, v4, 9, v7
s_mov_b32 s30, {N*512}
s_mov_b32 s31, 0x20000
s_mov_b32 s46, {513*512}
s_mov_b32 s47, 0x20000
s_mov_b32 s42, {512*512}
s_mov_b32 s43, 0x20000
s_mov_b32 s38, 640000
s_mov_b32 s39, 0x20000
s_mov_b32 s14, 640000
s_mov_b32 s15, 0x20000
s_mov_b32 s54, 320000
s_mov_b32 s55, 0x20000
s_lshl_b32 s{sSO}, s{sWAVE}, 10
s_lshl_b32 s51, s{sN0}, 9
s_add_u32 s51, s51, s{sSO}
v_and_b32 v{TMP}, 3, v5
v_bfe_u32 v{TMP+1}, v5, 3, 1
v_lshl_or_b32 v{TMP}, v{TMP+1}, 2, v{TMP}
v_lshlrev_b32 v{TMP}, 1, v{TMP}
v_xor_b32 v{TMP}, v{TMP}, v6
v_lshlrev_b32 v{TMP}, 4, v{TMP}
v_lshl_add_u32 v{VWS}, v4, 9, v{TMP}
v_lshlrev_b32 v{LO}, 2, v1
s_sub_u32 s48, s2, 64
v_mov_b32 v{VTG}, 0
s_mov_b32 s98, 256
s_mov_b32 s99, 0x20000
s_lshl_b32 s49, s2, 4
s_add_u32 s49, s49, s{sWAVE}
s_cmp_ge_u32 s2, 64
s_cbranch_scc1 F_nobl
s_mul_i32 s49, s2, 10000
s_mul_i32 s50, s2, 5000
v_lshlrev_b32 v{TMP}, 3, v0
v_lshlrev_b32 v6, 2, v0
v_add_u32 v6, {L_BCNT}, v6
s_cmp_ge_u32 s{sWAVE}, 5
s_cbranch_scc1 F_nbz
ds_write_b32 v6, v{VTG}
F_nbz:
s_waitcnt lgkmcnt(0)
buffer_load_dwordx4 {vr(DST,4)}, v2, s[36:39], s49 offen {XNT}
buffer_load_dwordx4 {vr(SRC,4)}, v2, s[12:15], s49 offen {XNT}
buffer_load_dwordx2 {vr(EA,2)}, v{TMP}, s[52:55], s50 offen {XNT}
s_barrier
s_branch F_x
F_nobl:
s_waitcnt lgkmcnt(0)
s_cmp_lg_u32 s49, 0xff0
s_cbranch_scc1 F_nont
s_or_b32 s49, s100, 1
v_mov_b32 v4, s49
v_mov_b32 v5, s101
s_mov_b64 exec, 1
buffer_store_dwordx2 v[4:5], v{VTG}, s[96:99], 0 offen sc1
s_mov_b64 exec, -1
F_nont:
s_cmp_ge_u32 s48, 16
s_cbranch_scc1 F_npd
s_lshl_b32 s49, s48, 14
s_add_u32 m0, s{sSO}, {L_PK}
s_add_u32 s49, s49, s{sSO}
buffer_load_dwordx4 v{VWS}, s[40:43], s49 offen lds
F_npd:
""")
    ops = []
    def vm(target):
        return len(ops) - 1 - max(i for i, x in enumerate(ops) if x == target)
    def dma(s, count=True):
        for m in range(2):
            o(f"""
s_add_u32 m0, s{sSO}, {(s & 3) * 32768 + m*16384}
s_add_u32 s{sM0}, s{sSO}, {m*131072 + s*16384}
buffer_load_dwordx4 v{VWS}, s[44:47], s{sM0} offen lds
""")
        if count:
            ops.extend([("d", s)] * 2)
    o(f"""
F_x:
s_add_u32 m0, s{sSO}, {L_XS}
s_cmp_ge_u32 s{sWAVE}, 4
buffer_load_dwordx4 v7, s[28:31], s51 offen {XNT} lds
s_cbranch_scc1 F_nox2
s_add_u32 m0, s{sSO}, {L_XS + 16384}
s_add_u32 s50, s51, 16384
buffer_load_dwordx4 v7, s[28:31], s50 offen {XNT} lds
F_nox2:
s_sub_u32 s50, s{sWAVE}, 6
s_cmp_ge_u32 s50, 2
s_cbranch_scc1 F_ntc
s_lshr_b32 s49, s2, 3
s_lshl_b32 s49, s49, 13
s_lshl_b32 s50, s50, 12
s_add_u32 s49, s49, s50
v_lshlrev_b32 v5, 6, v1
buffer_load_dword v77, v5, s[44:47], s49 offen
F_ntc:
""")
    dma(0)
    o("s_cmp_lt_u32 s2, 64\ns_cbranch_scc1 F_nl0\ns_barrier")
    dma(1)
    o(f"""
F_nl0:
s_mov_b32 s50, {512*512}
buffer_load_dword v{W3}, v{LO}, s[44:47], s50 offen
buffer_load_dword v{W3+1}, v{LO}, s[44:47], s50 offen offset:256
s_mov_b32 s34, {WS_END}
s_mov_b32 s35, 0x20000
s_lshr_b32 s{sCNT}, s{sCNT}, 4
s_sub_u32 s{sCNT}, s{sCNT}, s{sN0}
v_lshlrev_b32 v{VC}, 3, v1
v_lshrrev_b32 v3, 4, v1
v_and_b32 v4, 15, v1
v_xor_b32 v{VXA}, v4, v3
v_lshlrev_b32 v{VXA}, 4, v{VXA}
v_lshl_add_u32 v{VXA}, v4, 9, v{VXA}
v_add_u32 v{VXA}, {L_XS}, v{VXA}
v_bfe_u32 v5, v1, 2, 2
v_and_b32 v6, 3, v1
v_lshl_add_u32 v{VWA}, v3, 3, v5
v_lshlrev_b32 v{VWA}, 9, v{VWA}
v_lshl_add_u32 v{VWA}, v6, 3, v{VWA}
v_and_b32 v6, 1, v3
v_lshl_or_b32 v6, v6, 2, v5
v_xor_b32 v6, s{sWAVE}, v6
v_lshl_add_u32 v{VWA}, v6, 5, v{VWA}
v_add_u32 v{VWB}, 0x10000, v{VWA}
v_add_u32 v{TMP+4}, {L_CNT}, v{LO}
ds_write2st64_b32 v{TMP+4}, v{VTG}, v{VTG} offset0:0 offset1:1
s_mov_b32 s{sSC}, {NEGL2E:#x}
s_mov_b32 s{sSC+1}, {NEGL2E:#x}
s_cmp_ge_u32 s2, 64
s_cbranch_scc1 F_nbr
s_movk_i32 s57, 625
v_cmp_gt_u32 s[{sBM}:{sBM+1}], s57, v0
s_mov_b32 s56, 429497
s_mov_b32 s60, {L_BCNT}
s_mov_b32 s61, {L_IMG}
buffer_load_dwordx2 {vr(TAG,2)}, v{VTG}, s[96:99], 0 offen sc1
s_waitcnt vmcnt(6)
""")
    st0 = lambda name: stamp(o, (1, 2, 3, 4, 6)[STEPS.index(name)]) if name in STEPS else None
    st0("edge")
    bin_rank(o)
    dma(1, False)
    o("s_waitcnt vmcnt(2) lgkmcnt(0)\ns_barrier")
    get_tag(o, "b")
    bin_copy(o)
    o("F_nbr:")
    st0("copy")
    ops += ["w3", "w3"]
    def st(name):
        if name in STEPS: stamp(o, (1, 2, 3, 4, 6)[STEPS.index(name)])
    def reads(s):
        l = []
        a = VXA
        if s:
            a = TMP + 6
            o(f"v_xor_b32 v{a}, {64*s}, v{VXA}")
        xf, wf = XFB[s & 1], WFB[s & 1]
        wa = VWA if (s & 3) < 2 else VWB
        for rt in range(3):
            l.append(f"ds_read_b128 {vr(xf+4*rt,4)}, v{a} offset:{rt*8192}")
        for m in range(2):
            off = (s & 1) * 32768 + m * 16384
            l.append(f"ds_read_b64_tr_b16 {vr(wf+4*m,2)}, v{wa} offset:{off}\nds_read_b64_tr_b16 {vr(wf+4*m+2,2)}, v{wa} offset:{off + 2048}")
        return l
    SCHED = {-1: [2], 0: [3, 4], 1: [5], 2: [6], 3: [7]}
    for s in range(-1, 8):
        if s < 7:
            n = vm(("d", s + 1))
            if s <= 1:
                nb = {-1: 6, 0: 7, 1: 4}[s]
                npk = n + (1 if s >= 0 else 0)
                o(f"""
s_cmp_lt_u32 s2, 64
s_cbranch_scc0 F_wb{s+1}
s_waitcnt vmcnt({nb})
s_branch F_wc{s+1}
F_wb{s+1}:
s_waitcnt vmcnt({npk})
s_cmp_lt_u32 s48, 16
s_cbranch_scc1 F_wc{s+1}
s_waitcnt vmcnt({n})
F_wc{s+1}:
s_waitcnt lgkmcnt(0)
s_barrier
""")
            else:
                o(f"s_waitcnt vmcnt({n}) lgkmcnt(0)\ns_barrier")
        else:
            o("s_waitcnt lgkmcnt(0)\ns_barrier")
        st(f"s{s}")
        if s == -1:
            o(f"buffer_load_dwordx2 {vr(TG0,2)}, v{VTG}, s[96:99], 0 offen sc1")
            ops.append("tag")
        rd = reads(s + 1) if s < 7 else []
        mm = []
        if s >= 0:
            for m, acc in enumerate((PA, QA)):
                for rt in range(3):
                    c = "0" if s == 0 else vr(acc+4*rt, 4)
                    mm.append(f"v_mfma_f32_16x16x32_bf16 {vr(acc+4*rt,4)}, {vr(WFB[s&1]+4*m,4)}, {vr(XFB[s&1]+4*rt,4)}, {c}")
        if s == 7:
            late, mm = mm[3:], mm[:3]
        while rd or mm:
            if mm: o(mm.pop(0))
            if rd: o(rd.pop(0))
        for t in SCHED.get(s, []):
            dma(t)
        if s == -1:
            o(f"""
s_cmp_ge_u32 s48, 16
s_cbranch_scc1 F_d0
ds_read_b64_tr_b16 v[4:5], v{VWB} offset:32768
ds_read_b64_tr_b16 v[6:7], v{VWB} offset:{32768+2048}
s_lshl_b32 s50, s{sWAVE}, 13
s_and_b32 s49, s48, 7
s_lshl_b32 s49, s49, 10
s_add_u32 s50, s50, s49
s_lshr_b32 s49, s48, 3
s_lshl_b32 s49, s49, 17
s_add_u32 s50, s50, s49
s_add_u32 s50, s50, {WS_WPACK}
v_lshlrev_b32 v12, 4, v1
s_waitcnt lgkmcnt(0)
buffer_store_dwordx4 v[4:7], v12, s[32:35], s50 offen sc1
F_d0:
""")
        if s == 0:
            o(f"""
v_and_b32 v{TMP+1}, 15, v1
v_lshrrev_b32 v{TMP}, 1, v3
s_lshl_b32 s{sT1}, s{sWAVE}, 1
v_or_b32 v{TMP}, s{sT1}, v{TMP}
v_xor_b32 v{TMP}, v{TMP}, v{TMP+1}
v_lshlrev_b32 v{TMP}, 4, v{TMP}
v_lshl_add_u32 v{VN}, v{TMP+1}, 9, v{TMP}
v_and_b32 v{TMP}, 1, v3
v_lshl_add_u32 v{VN}, v{TMP}, 3, v{VN}
v_add_u32 v{VN}, {L_PST}, v{VN}
v_lshrrev_b32 v{VB}, 5, v0
v_add_u32 v{TMP}, 32, v{VB}
v_cmp_gt_u32 vcc, s{sCNT}, v{TMP}
v_lshlrev_b32 v{VB}, 4, v{VB}
v_xor_b32 v{VB}, v{VB}, v2
v_add_u32 v{VB}, {L_PST}, v{VB}
v_add_u32 v{VI}, 0x4000, v2
v_mov_b32 v{TMP}, 0x7ffffff0
v_cndmask_b32 v{VI}, v{TMP}, v{VI}, vcc
s_mov_b64 s[8:9], s[32:33]
s_mov_b32 s10, {N*512}
s_mov_b32 s11, 0x20000
""")
        if s == 0 and "direct" in OPT:
            o(f"""
v_lshlrev_b32 v{VN}, 9, v{TMP+1}
v_lshl_add_u32 v{VN}, v3, 3, v{VN}
s_lshl_b32 s{sT1}, s{sWAVE}, 5
v_add_u32 v{VN}, s{sT1}, v{VN}
v_add_u32 v{TMP}, 32, v{TMP+1}
v_cmp_gt_u32 vcc, s{sCNT}, v{TMP}
v_add_u32 v{VI}, 0x4000, v{VN}
v_mov_b32 v{TMP}, 0x7ffffff0
s_nop 0
v_cndmask_b32 v{VI}, v{TMP}, v{VI}, vcc
""")
        if s == 2:
            assert ops.index("tag") < ops.index(("d", 3))
            o(f"s_cmp_ge_u32 s48, 16\ns_cbranch_scc1 F_d5\ns_cmp_lg_u32 s{sWAVE}, 0\ns_cbranch_scc1 F_d5\nv_mov_b64 {vr(TAG,2)}, {vr(TG0,2)}")
            get_tag(o, "p")
            o(f"s_lshl_b32 s{sT0}, s48, 7\ns_add_u32 s{sT0}, s{sT0}, {WS_FLAG + 256*128}")
            put_flag(o, f"s{sT0}")
            o("F_d5:")
    o(f"s_lshl_b32 s{sT2}, s{sN0}, 9\ns_add_u32 s{sT1}, s{sT2}, 8192\ns_nop 3")
    if "direct" in OPT:
        for rt in range(3):
            a_ = PA + 4*rt
            o(f"""
v_pk_mul_f32 {vr(a_,2)}, {vr(a_,2)}, s[{sSC}:{sSC+1}]
v_pk_mul_f32 {vr(a_+2,2)}, {vr(a_+2,2)}, s[{sSC}:{sSC+1}]
v_cvt_pk_bf16_f32 v{W+2*rt}, v{a_}, v{a_+1}
v_cvt_pk_bf16_f32 v{W+2*rt+1}, v{a_+2}, v{a_+3}
buffer_store_dwordx2 {vr(W+2*rt,2)}, v{VN if rt < 2 else VI}, s[8:11], s{sT1 if rt == 1 else sT2} offen sc1
""")
        o("\n".join(late))
        o("s_barrier")
    else:
        for rt in range(3):
            a_ = PA + 4*rt
            o(f"""
v_pk_mul_f32 {vr(a_,2)}, {vr(a_,2)}, s[{sSC}:{sSC+1}]
v_pk_mul_f32 {vr(a_+2,2)}, {vr(a_+2,2)}, s[{sSC}:{sSC+1}]
v_cvt_pk_bf16_f32 v{W+2*rt}, v{a_}, v{a_+1}
v_cvt_pk_bf16_f32 v{W+2*rt+1}, v{a_+2}, v{a_+3}
ds_write_b64 v{VN}, {vr(W+2*rt,2)} offset:{rt*8192}
""")
        o("\n".join(late))
        o(f"""
s_cmp_lt_u32 s{sWAVE}, 8
s_waitcnt lgkmcnt(0)
s_barrier
s_cbranch_scc0 F_nps
ds_read_b128 {vr(W,4)}, v{VB}
ds_read_b128 {vr(W+4,4)}, v{VB} offset:8192
ds_read_b128 {vr(W+8,4)}, v{VB} offset:16384
s_waitcnt lgkmcnt(2)
buffer_store_dwordx4 {vr(W,4)}, v2, s[8:11], s{sT2} offen sc1
s_waitcnt lgkmcnt(1)
buffer_store_dwordx4 {vr(W+4,4)}, v2, s[8:11], s{sT1} offen sc1
s_waitcnt lgkmcnt(0)
buffer_store_dwordx4 {vr(W+8,4)}, v{VI}, s[8:11], s{sT2} offen sc1
F_nps:
s_barrier
""")

    st("pst")
    o(f"""
s_lshl_b32 s{sOFF}, s2, 14
s_add_u32 s{sOFF}, s{sOFF}, {WS_CELL}
buffer_load_dwordx4 {vr(REC,4)}, v2, s[32:35], s{sOFF} offen sc1
v_mov_b64 {vr(TAG,2)}, {vr(TG0,2)}
""")
    get_tag(o, "m")
    o(f"s_cmp_lg_u32 s{sWAVE}, 15\ns_cbranch_scc1 F_npk\ns_mov_b32 s{sT0}, {WS_FLAG + 256*128}")
    poll(o, "k", f"s{sT0}", 16)
    o("F_npk:")
    o(f"s_mov_b32 s{sT2}, 0\ns_waitcnt vmcnt(1)\ns_barrier")
    st("drain")
    o(f"s_cmp_lg_u32 s{sWAVE}, 0\ns_cbranch_scc1 F_nfp\ns_lshl_b32 s{sT0}, s2, 7\ns_add_u32 s{sT0}, s{sT0}, {WS_FLAG}")
    put_flag(o, f"s{sT0}")
    o(f"""
F_nfp:
s_lshl_b32 s12, s{sWAVE}, 13
s_add_u32 s12, s12, {WS_WPACK}
s_add_u32 s13, s12, 4096
v_lshlrev_b32 v{VE}, 4, v1
""")
    wl = lambda kss: wloads(o, 0, W, kss, 12, 13, VE, False)
    wl((0, 1))
    o(f"""
v_mov_b64 {vr(ZR,2)}, 0
v_mov_b64 {vr(ZR+2,2)}, 0
v_add_u32 v{VB}, {L_AGB}, v2
v_add_u32 v{VI}, {L_ET}, v2
ds_write_b128 v{VB}, {vr(ZR,4)}
ds_write_b128 v{VB}, {vr(ZR,4)} offset:4096
v_add_u32 v{VB}, {L_IDX}, v2
ds_write_b128 v{VB}, {vr(ZR,4)}
ds_write_b128 v{VI}, {vr(ZR,4)}
ds_write_b128 v{VI}, {vr(ZR,4)} offset:16384
ds_write_b128 v{VI}, {vr(ZR,4)} offset:16448
""")
    o(f"""
v_lshlrev_b32 v{TMP}, 16, v{W3}
v_and_b32 v{TMP+1}, 0xffff0000, v{W3}
v_lshlrev_b32 v{TMP+2}, 16, v{W3+1}
v_and_b32 v{TMP+3}, 0xffff0000, v{W3+1}
v_mul_f32 v{TMP}, s{sSC}, v{TMP}
v_mul_f32 v{TMP+1}, s{sSC}, v{TMP+1}
v_mul_f32 v{TMP+2}, s{sSC}, v{TMP+2}
v_mul_f32 v{TMP+3}, s{sSC}, v{TMP+3}
v_cvt_pk_bf16_f32 v6, v{TMP}, v{TMP+1}
v_cvt_pk_bf16_f32 v7, v{TMP+2}, v{TMP+3}
""")
    for k in range(1, R):
        o(f"v_mov_b64 {vr(RING+4*k+2,2)}, v[6:7]")
    o(f"""
v_and_b32 v{TMP}, 3, v1
v_bfe_u32 v{TMP+1}, v1, 2, 2
v_cmp_eq_u32 vcc, v{TMP+1}, v3
v_and_b32 v{TMP+2}, 1, v1
v_lshlrev_b32 v{TMP+2}, 4, v{TMP+2}
v_mov_b32 v{TMP+3}, 0x3f80
v_lshlrev_b32 v{TMP+3}, v{TMP+2}, v{TMP+3}
v_cndmask_b32 v{TMP+3}, 0, v{TMP+3}, vcc
v_xor_b32 v{VEL}, 2, v{TMP}
v_lshlrev_b32 v{VEL}, 2, v{VEL}
v_add_u32 v{VEL}, {L_ET}, v{VEL}
v_mov_b32 v{TMP+2}, 0x30000
v_cndmask_b32 v{VEL}, v{TMP+2}, v{VEL}, vcc
v_cmp_gt_u32 vcc, 2, v{TMP}
s_mov_b32 s{sONE}, 1.0
s_mov_b32 s{sONE+1}, 1.0
v_cndmask_b32 v{A0}, 0, v{TMP+3}, vcc
v_cndmask_b32_e64 v{A0+1}, v{TMP+3}, 0, vcc
v_mov_b64 {vr(A1,2)}, {vr(A0,2)}
""")
    o(f"""
s_mov_b32 s{sBND}, 0x7b800000
s_mov_b32 s{sW1}, 0
s_mov_b32 s{sRND}, 0
s_mov_b64 s[40:41], s[20:21]
s_mov_b32 s42, {N*512}
s_mov_b32 s16, s32
s_or_b32 s17, s33, 0x40000
s_mov_b32 s18, {N*512}
s_mov_b32 s19, 0x800000
s_movk_i32 s{sT0}, {RS}
v_and_b32 v{IX}, 15, v1
v_mul_u32_u24 v{IX}, s{sT0}, v{IX}
v_lshl_add_u32 v{IX}, v3, 4, v{IX}
s_lshl_b32 s{sT0}, s{sWAVE}, 6
v_add_u32 v{IX}, s{sT0}, v{IX}
v_bfe_u32 v{RK0}, v0, 2, 2
v_mul_u32_u24 v{RK0}, 7, v{RK0}
v_and_b32 v{TMP}, 3, v0
v_lshl_add_u32 v{RK1}, v{TMP}, 1, v{RK0}
v_cmp_eq_u32 vcc, 0, v{TMP}
v_add_u32 v8, -1, v{RK1}
v_mov_b32 v9, 64
v_cndmask_b32 v8, v8, v9, vcc
""")
    for rt in range(3):
        o(f"""
v_pk_mul_f32 {vr(QA+4*rt,2)}, {vr(QA+4*rt,2)}, s[{sSC}:{sSC+1}]
v_pk_mul_f32 {vr(QA+4*rt+2,2)}, {vr(QA+4*rt+2,2)}, s[{sSC}:{sSC+1}]
ds_write_b128 v{IX}, {vr(QA+4*rt,4)} offset:{L_QS + rt*16*RS}
""")
    wl((2, 3))
    st("q")
    o(f"""
s_waitcnt vmcnt(4)
F_cl:
v_mov_b32_dpp v{TMP}, v{REC+1} row_newbcast:0 row_mask:0xf bank_mask:0xf
v_mov_b32_dpp v{TMP+1}, v{REC} row_newbcast:0 row_mask:0xf bank_mask:0xf
v_mov_b32_dpp v{TMP+2}, v{REC+1} quad_perm:[0,0,0,0] row_mask:0xf bank_mask:0xf
v_cmp_eq_u32 vcc, s100, v{TMP}
v_cmp_ne_u32 s[{sM}:{sM+1}], s100, v{TMP+2}
s_add_u32 s{sT2}, s{sT2}, 1
v_cndmask_b32 v{TMP+1}, 0, v{TMP+1}, vcc
v_max_u32 v{TMP+3}, 1, v{TMP+1}
v_cmp_lt_u32 vcc, v{RK0}, v{TMP+3}
s_cmp_ge_u32 s{sT2}, 0x10000
s_cbranch_scc1 F_cd
s_and_b64 exec, vcc, s[{sM}:{sM+1}]
s_cbranch_execz F_cd
s_sleep 1
buffer_load_dwordx4 {vr(REC,4)}, v2, s[32:35], s{sOFF} offen sc1
s_mov_b64 exec, -1
s_waitcnt vmcnt(0)
s_branch F_cl
F_cd:
s_mov_b64 exec, -1
v_cmp_gt_u32 s[{sV0}:{sV0+1}], v{TMP+1}, v8
v_cmp_gt_u32 s[{sV1}:{sV1+1}], v{TMP+1}, v{RK1}
""")
    st("cell")
    sort_rank(o)
    wl((4, 5))
    o("s_waitcnt lgkmcnt(0)\ns_barrier")
    sort_scatter(o)
    o(f"""
s_lshl_b32 s{sOC}, s{sWAVE}, 13
s_add_u32 s{sOC}, s{sOC}, {WS_FLAG}
v_lshlrev_b32 v{TMP}, 7, v1
""")
    o(f"""
s_cmp_ge_u32 s{sWAVE}, 4
s_cbranch_scc1 F_np1
buffer_load_dwordx2 {vr(TMP+1,2)}, v{TMP}, s[32:35], s{sOC} offen sc1
F_np1:
""")
    st("u")
    o(f"""
s_cmp_ge_u32 s{sWAVE}, 4
s_cbranch_scc1 F_npp
s_mov_b32 s{sT1}, 0
s_waitcnt vmcnt(0)
F_plp:
v_cmpx_ne_u64 vcc, s[100:101], {vr(TMP+1,2)}
s_add_u32 s{sT1}, s{sT1}, 1
s_nop 3
s_cbranch_execz F_pdp
s_cmp_ge_u32 s{sT1}, 0x10000
s_cbranch_scc1 F_pdp
buffer_load_dwordx2 {vr(TMP+1,2)}, v{TMP}, s[32:35], s{sOC} offen sc1
s_waitcnt vmcnt(0)
s_branch F_plp
F_pdp:
s_mov_b64 exec, -1
""")
    o(f"""
F_npp:
""")
    wl((6, 7))
    o(f"""
s_mov_b32 s{sT0}, {WS_OVFC}
buffer_load_dwordx2 {vr(VOVF,2)}, v{VC}, s[32:35], s{sT0} offen sc1
s_waitcnt lgkmcnt(0)
s_barrier
L_pr:
""")
    st("b3")
    zero_cnt(o)
    prime(o)
    o(f"""
s_cmp_lg_u32 s{sRND}, 0
s_cbranch_scc1 L_go
s_call_b64 s[{sRET}:{sRET+1}], L_ugemm
L_go:
""")
    stamp(o, 5)
    o(f"""
s_mov_b64 vcc, 0
s_mov_b32 s{sK}, {KMAX}
s_add_u32 s{sRND}, s{sRND}, 1
s_cmp_ge_u32 s{sP}, s{sP1}
s_cbranch_scc1 L_loopdone
v_cmp_eq_u32 s[{sM}:{sM+1}], s{sP}, v{VEND}
s_sub_u32 s{sIT}, s{sP1}, s{sP}
s_add_u32 s{sIT}, s{sIT}, {R-1}
s_mul_i32 s{sIT}, s{sIT}, 171
s_lshr_b32 s{sIT}, s{sIT}, 10
s_cmp_eq_u32 s{sP}, 0
s_cselect_b32 s{sT2}, 1, 0
s_cmp_lg_u64 s[{sM}:{sM+1}], 0
s_cselect_b32 s{sT2}, 1, s{sT2}
s_xor_b32 s{sHEAD}, s{sT2}, 1
s_call_b64 s[{sRET}:{sRET+1}], L_newnode
s_setprio 3
s_waitcnt vmcnt({2*(R-1)}) lgkmcnt(0)
v_mfma_f32_16x16x32_bf16 {vr(T0,4)}, {vr(A0,4)}, {vr(RING,4)}, {vr(Q,4)}
s_nop 5
L_top:
""")
    for k in range(R):
        B = RING + 4*k
        B1 = RING + 4*((k+1) % R)
        ex, pk = valu_block(TT[k & 1])
        o(f"""
s_waitcnt vmcnt({2*(R-2)}) lgkmcnt(0)
v_mfma_f32_16x16x32_bf16 {vr(TT[(k+1)&1],4)}, {vr(AA[(k+1)&1],4)}, {vr(B1,4)}, {vr(Q,4)}
{ex}
buffer_load_dword v{B}, v{IX}, s[16:19], 0 offen sc1
buffer_load_dword v{B+1}, v{IX}, s[16:19], 0 offen offset:256 sc1
ds_read_b32 v{IX}, v{VI} offset:{4*(k+R+1)}
ds_read2_b32 {vr(AA[k&1]+2,2)}, v{VE} offset0:{4*(k+2)} offset1:{4*(k+2)+2}
{pk}
s_sub_u32 s{sREM}, s{sREM}, 1
s_cbranch_scc1 L_call{k}
L_next{k}:
""")
    o(f"""
v_add_u32 v{VI}, {4*R}, v{VI}
v_add_u32 v{VE}, {16*R}, v{VE}
s_sub_u32 s{sIT}, s{sIT}, 1
s_cmp_ge_u32 s{sIT}, 4
s_cbranch_scc1 L_top
s_setprio 2
s_cmp_eq_u32 s{sIT}, 3
s_cbranch_scc1 L_top
s_setprio 1
s_cmp_eq_u32 s{sIT}, 2
s_cbranch_scc1 L_top
s_setprio 0
s_branch L_top
""")
    for k in range(R):
        B1 = RING + 4*((k+1) % R)
        o(f"""
L_call{k}:
s_call_b64 s[{sRET}:{sRET+1}], L_flush
s_cbranch_scc0 L_special
s_waitcnt lgkmcnt(0)
v_mfma_f32_16x16x32_bf16 {vr(TT[(k+1)&1],4)}, {vr(AA[(k+1)&1],4)}, {vr(B1,4)}, {vr(Q,4)}
s_nop 4
s_branch L_next{k}
""")
    o(f"""
L_flush:
v_rcp_f32 v{E}, v{D}
v_rcp_f32 v{E+1}, v{D+1}
v_rcp_f32 v{E+2}, v{D+2}
v_rcp_f32 v{E+3}, v{D+3}
s_mov_b32 s{sP}, s{sSEGE}
s_cbranch_vccnz L_nochk
v_pk_fma_f32 {vr(CK,2)}, {vr(NN,2)}, 0, {vr(D,2)}
v_pk_fma_f32 {vr(CK+2,2)}, {vr(NN+2,2)}, 0, {vr(D+2,2)}
v_pk_add_f32 {vr(CK,2)}, {vr(CK,2)}, {vr(CK+2,2)}
v_add_f32 v{CK}, v{CK}, v{CK+1}
v_cmp_nle_f32 s[{sM}:{sM+1}], v{CK}, s{sBND}
s_nop 3
s_cmp_eq_u64 s[{sM}:{sM+1}], 0
s_cbranch_scc1 L_nochk
s_mov_b32 s{sP}, s{sSEGS}
s_setpc_b64 s[{sRET}:{sRET+1}]
L_nochk:
v_pk_fma_f32 {vr(AC,2)}, {vr(NN,2)}, {vr(E,2)}, {vr(AC,2)}
v_pk_fma_f32 {vr(AC+2,2)}, {vr(NN+2,2)}, {vr(E+2,2)}, {vr(AC+2,2)}
s_cmp_lg_u32 s{sW1}, 0
s_cbranch_scc1 L_havew
s_mov_b32 s{sW1}, 1
""")
    wloads(o, 1, W)
    o(f"""
L_havew:
s_cmp_eq_u32 s{sP}, s{sNEND}
s_cbranch_scc1 L_fin
s_cmp_lg_u32 s{sP}, s{sP1}
s_cbranch_scc1 L_reinit
s_cmp_lg_u32 s{sHEAD}, 0
s_cbranch_scc1 L_pub
s_mov_b32 s{sT0}, s{sWAVE}
s_mov_b32 s{sT1}, s{sP1}
L_col:
s_add_u32 s{sT0}, s{sT0}, 1
s_lshl_b32 s{sT2}, s{sT0}, 2
s_add_u32 s{sT2}, s{sT2}, {L_HF}
v_mov_b32 v{CK}, s{sT2}
L_poll:
ds_read_b32 v{CK+1}, v{CK}
s_waitcnt lgkmcnt(0)
v_readfirstlane_b32 s{sT2}, v{CK+1}
s_nop 3
s_cmp_eq_u32 s{sT2}, s{sRND}
s_cbranch_scc1 L_got
s_sleep 1
s_branch L_poll
L_got:
s_lshl_b32 s{sT2}, s{sT0}, 10
s_add_u32 s{sT2}, s{sT2}, {L_HB}
v_add_u32 v{CK}, s{sT2}, v{VC}
ds_read2st64_b64 {vr(E,4)}, v{CK} offset0:0 offset1:1
s_add_u32 s{sT1}, s{sT1}, s{sCH}
s_waitcnt lgkmcnt(0)
v_pk_add_f32 {vr(AC,2)}, {vr(AC,2)}, {vr(E,2)}
v_pk_add_f32 {vr(AC+2,2)}, {vr(AC+2,2)}, {vr(E+2,2)}
s_cmp_lt_u32 s{sT1}, s{sNEND}
s_cbranch_scc1 L_col
s_branch L_wr
L_fin:
s_cmp_lg_u32 s{sHEAD}, 0
s_cbranch_scc1 L_pub
L_wr:
v_cvt_pk_bf16_f32 v{E}, v{AC}, v{AC+1}
v_cvt_pk_bf16_f32 v{E+1}, v{AC+2}, v{AC+3}
ds_write2st64_b32 v{VB}, v{E}, v{E+1} offset0:0 offset1:1
L_more:
s_mov_b32 s{sHEAD}, 0
s_cmp_lg_u32 s{sP}, s{sP1}
s_cbranch_scc1 L_newnode
s_setpc_b64 s[{sRET}:{sRET+1}]
L_pub:
s_lshl_b32 s{sT2}, s{sWAVE}, 10
s_add_u32 s{sT2}, s{sT2}, {L_HB}
v_add_u32 v{CK}, s{sT2}, v{VC}
s_lshl_b32 s{sT2}, s{sWAVE}, 2
s_add_u32 s{sT2}, s{sT2}, {L_HF}
v_mov_b32 v{CK+1}, s{sT2}
v_mov_b32 v{CK+2}, s{sRND}
ds_write2st64_b64 v{CK}, {vr(AC,2)}, {vr(AC+2,2)} offset0:0 offset1:1
s_waitcnt lgkmcnt(0)
ds_write_b32 v{CK+1}, v{CK+2}
s_branch L_more
L_old:
s_cmp_lg_u32 s{sHEAD}, 0
s_cbranch_scc1 L_reinit
ds_read2st64_b32 {vr(E,2)}, v{VB} offset0:0 offset1:1
s_waitcnt lgkmcnt(0)
v_lshlrev_b32 v{AC}, 16, v{E}
v_and_b32 v{AC+1}, 0xffff0000, v{E}
v_lshlrev_b32 v{AC+2}, 16, v{E+1}
v_and_b32 v{AC+3}, 0xffff0000, v{E+1}
s_branch L_reinit
L_newnode:
v_cmp_ge_u32 s[{sM}:{sM+1}], s{sP}, v{VEND}
v_mov_b64 {vr(AC,2)}, 0
v_mov_b64 {vr(AC+2,2)}, 0
s_nop 1
s_bcnt1_i32_b64 s{sT0}, s[{sM}:{sM+1}]
s_mul_i32 s{sT1}, s{sT0}, {RS}
v_readlane_b32 s{sNEND}, v{VEND}, s{sT0}
v_add_u32 v{VN}, s{sT1}, v{VC}
ds_read2st64_b64 {vr(Q,4)}, v{VN} offset0:0 offset1:1
s_and_b32 s{sT1}, s{sT0}, 15
s_lshl_b32 s{sT1}, s{sT1}, 4
s_lshl_b32 s{sT0}, s{sT0}, 9
s_or_b32 s{sT0}, s{sT0}, s{sT1}
s_add_u32 s{sT0}, s{sT0}, {L_AGB}
v_xor_b32 v{VB}, s{sT0}, v{LO}
s_cmp_lg_u32 s{sRND}, 1
s_cbranch_scc1 L_old
L_reinit:
v_mov_b64 {vr(NN,2)}, 0
v_mov_b64 {vr(NN+2,2)}, 0
v_mov_b64 {vr(D,2)}, s[{sONE}:{sONE+1}]
v_mov_b64 {vr(D+2,2)}, s[{sONE}:{sONE+1}]
s_mov_b32 s{sSEGS}, s{sP}
s_add_u32 s{sSEGE}, s{sP}, s{sK}
s_min_u32 s{sSEGE}, s{sSEGE}, s{sNEND}
s_min_u32 s{sSEGE}, s{sSEGE}, s{sP1}
s_sub_u32 s{sREM}, s{sSEGE}, s{sP}
s_sub_u32 s{sREM}, s{sREM}, 1
s_cmp_eq_u32 s{sP}, s{sP}
s_setpc_b64 s[{sRET}:{sRET+1}]
L_special:
s_cmp_eq_u32 s{sP}, s{sP1}
s_cbranch_scc1 L_loopdone
s_mov_b64 vcc, -1
s_mov_b32 s{sK}, 1
s_waitcnt vmcnt(0) lgkmcnt(0)
s_call_b64 s[{sRET}:{sRET+1}], L_reinit
L_slow:
s_lshl_b32 s{sT0}, s{sP}, 2
s_add_u32 s{sT0}, s{sT0}, {L_IDX}
v_mov_b32 v{VI}, s{sT0}
s_lshl_b32 s{sT0}, s{sP}, 4
v_add_u32 v{VE}, s{sT0}, v{VEL}
ds_read_b32 v{IX}, v{VI}
ds_read2_b32 {vr(A0+2,2)}, v{VE} offset0:0 offset1:2
s_waitcnt lgkmcnt(0)
buffer_load_dword v{RING}, v{IX}, s[16:19], 0 offen sc1
buffer_load_dword v{RING+1}, v{IX}, s[16:19], 0 offen offset:256 sc1
s_waitcnt vmcnt(0)
v_mfma_f32_16x16x32_bf16 {vr(T0,4)}, {vr(A0,4)}, {vr(RING,4)}, {vr(Q,4)}
s_nop 7
v_min_f32 v{T0}, 0x42fc0000, v{T0}
v_min_f32 v{T0+1}, 0x42fc0000, v{T0+1}
v_min_f32 v{T0+2}, 0x42fc0000, v{T0+2}
v_min_f32 v{T0+3}, 0x42fc0000, v{T0+3}
{valu_block(T0)[0]}
{valu_block(T0)[1]}
s_call_b64 s[{sRET}:{sRET+1}], L_flush
s_cbranch_scc1 L_slow
L_loopdone:
""")
    st("le")
    if len(STEPS) < 5: stamp(o, 6)
    o(f"""
s_setprio 0
s_cmp_lg_u32 s{sW1}, 0
s_cbranch_scc1 L_ld2
s_mov_b32 s{sW1}, 1
""")
    wloads(o, 1, W)
    o(f"""
L_ld2:
s_cmp_lg_u32 s{sRND}, 1
s_cbranch_scc1 L_rn0
s_mov_b32 s{sOB}, 0
s_mov_b32 s{sT0}, {WS_OVFC}
L_ov:
s_waitcnt vmcnt(0)
v_cmp_ne_u32 vcc, s100, v{VOVF+1}
v_cmp_ne_u32 s[{sOM}:{sOM+1}], 0, v{VOVF}
s_add_u32 s{sOB}, s{sOB}, 1
s_cmp_ge_u32 s{sOB}, 0x10000
s_cbranch_scc1 L_ovd
s_nop 0
s_cbranch_vccz L_ovd
buffer_load_dwordx2 {vr(VOVF,2)}, v{VC}, s[32:35], s{sT0} offen sc1
s_branch L_ov
L_ovd:
s_mov_b32 s{sOB}, 0
L_rn0:
v_and_b32 v{TMP}, 15, v1
v_xor_b32 v{TMP+1}, v{TMP}, v3
v_lshlrev_b32 v{TMP+1}, 4, v{TMP+1}
v_lshl_add_u32 v{TMP+1}, v{TMP}, 9, v{TMP+1}
s_waitcnt vmcnt(0)
s_cmp_eq_u64 s[{sOM}:{sOM+1}], 0
s_cbranch_scc0 L_round
""")
    o(f"v_add_u32 v4, {L_AGB}, v{TMP+1}")
    for ks in range(1, 8):
        o(f"v_xor_b32 v{4+ks}, {64*ks}, v4")
    o(f"""
v_add_u32 v{TMP+2}, s{sN0}, v{TMP}
v_lshlrev_b32 v{TMP+2}, 9, v{TMP+2}
v_lshl_add_u32 v{TMP+2}, v3, 3, v{TMP+2}
s_lshl_b32 s{sT0}, s{sWAVE}, 5
s_add_u32 s{sT1}, s{sT0}, 8192
s_add_u32 s{sT2}, s{sT0}, 16384
s_sub_u32 s{sCNT}, s{sCNT}, 32
v_cmp_gt_u32 s[{sM}:{sM+1}], s{sCNT}, v{TMP}
v_mov_b32 v12, s{sSC}
""")
    if "ostage" in OPT:
        o(f"""
v_lshrrev_b32 v13, 1, v3
s_lshl_b32 s{sT1}, s{sWAVE}, 1
v_or_b32 v13, s{sT1}, v13
v_xor_b32 v13, v13, v{TMP}
v_lshlrev_b32 v13, 4, v13
v_lshl_add_u32 v13, v{TMP}, 9, v13
v_and_b32 v14, 1, v3
v_lshl_add_u32 v13, v14, 3, v13
v_lshrrev_b32 v14, 5, v0
v_cmp_gt_u32 vcc, s{sCNT}, v14
v_and_b32 v14, 15, v14
v_lshlrev_b32 v14, 4, v14
v_xor_b32 v14, v14, v2
v_add_u32 v15, 0x4000, v2
v_mov_b32 v16, 0x7ffffff0
s_lshl_b32 s{sT0}, s{sN0}, 9
v_cndmask_b32 v15, v16, v15, vcc
""")
    o("s_waitcnt lgkmcnt(0)\ns_barrier")
    st("fb")
    OSF = "sc1" if "o_sc1" in OPT else "nt" if "o_nt" in OPT else "sc1 nt" if "o_sc1nt" in OPT else ""
    FB = [T0, T1, E, NN]
    def rd(i):
        o(f"ds_read_b128 {vr(FB[i % 4],4)}, v{4 + (i & 7)} offset:{(i >> 3)*8192}")
    def silu(rt):
        a, t = UA + 4*rt, D
        l = [f"v_exp_f32 v{t+i}, v{a+i}" for i in range(4)]
        l += [f"v_fma_f32 v{t+i}, v{t+i}, v12, v12" for i in range(4)]
        l += [f"v_rcp_f32 v{t+i}, v{t+i}" for i in range(4)]
        l += [f"v_mul_f32 v{a+i}, v{a+i}, v{t+i}" for i in range(4)]
        l += [f"v_cvt_pk_bf16_f32 v{a}, v{a}, v{a+1}", f"v_cvt_pk_bf16_f32 v{a+1}, v{a+2}, v{a+3}"]
        if "ostage" in OPT:
            l.append(f"ds_write_b64 v13, {vr(a,2)} offset:{rt*8192}")
            return l
        if rt == 2:
            l.append(f"s_mov_b64 exec, s[{sM}:{sM+1}]")
        l.append(f"buffer_store_dwordx2 {vr(a,2)}, v{TMP+2}, s[40:43], s{[sT0,sT1,sT2][rt]} offen {OSF}")
        return l
    for i in range(3):
        rd(i)
    pend = []
    for i in range(24):
        rt, ks = i >> 3, i & 7
        if i + 3 < 24:
            rd(i + 3)
        o(f"s_waitcnt lgkmcnt({min(3, 23 - i)})")
        o(f"v_mfma_f32_16x16x32_bf16 {vr(UA+4*rt,4)}, {vr(W+4*ks,4)}, {vr(FB[i % 4],4)}, {vr(UA+4*rt,4)}")
        if ks == 2 and rt > 0:
            pend = silu(rt - 1)
        n = 4 if ks < 7 else len(pend)
        o("\n".join(pend[:n]))
        pend = pend[n:]
    o("s_nop 7")
    st("fg")
    o("\n".join(silu(2)))
    if "ostage" in OPT:
        o(f"""
s_waitcnt lgkmcnt(0)
s_barrier
ds_read_b128 v[16:19], v14
ds_read_b128 v[20:23], v14 offset:16384
s_waitcnt lgkmcnt(1)
buffer_store_dwordx4 v[16:19], v2, s[40:43], s{sT0} offen {OSF}
s_cmp_ge_u32 s{sWAVE}, 4
s_cbranch_scc1 L_os
s_waitcnt lgkmcnt(0)
buffer_store_dwordx4 v[20:23], v15, s[40:43], s{sT0} offen {OSF}
L_os:
""")
    st("fs")
    if STAMP:
        o(f"""
s_waitcnt vmcnt(0)
s_memrealtime s[94:95]
s_mov_b64 exec, 1
s_lshl_b32 s26, s2, 4
s_add_u32 s26, s26, s{sWAVE}
s_lshl_b32 s26, s26, 5
s_add_u32 s26, s26, {WS_STAMP + 0x100000}
s_mov_b32 s34, 0x1000000
v_mov_b32 v0, 0
s_waitcnt lgkmcnt(0)
""")
        for i in range(8):
            o(f"v_mov_b32 v{4+i}, s{80+2*i}")
        if "dbgst" in OPT:
            o("v_not_b32 v12, v4\nv_not_b32 v13, v9\nv_not_b32 v14, v5\nv_not_b32 v15, v10")
            for i in range(12):
                o(f"buffer_atomic_umax v{4+i}, v0, s[96:99], 0 offen offset:{8+4*i} sc1")
        else:
            o("buffer_store_dwordx4 v[4:7], v0, s[32:35], s26 offen\nbuffer_store_dwordx4 v[8:11], v0, s[32:35], s26 offen offset:16")
    o(f"""
L_end:
s_endpgm
L_round:
s_waitcnt lgkmcnt(0)
s_barrier
s_ff1_i32_b64 s{sT0}, s[{sOM}:{sOM+1}]
s_mul_i32 s{sT1}, s{sT0}, {CHUNK*8}
v_readlane_b32 s{sOC}, v{VOVF}, s{sT0}
s_lshl_b32 s{sT2}, s{sOB}, 3
s_add_u32 s{sT1}, s{sT1}, s{sT2}
s_add_u32 s{sT1}, s{sT1}, {WS_OVF}
buffer_load_dwordx4 {vr(REC,4)}, v2, s[32:35], s{sT1} offen sc1
v_lshlrev_b32 v{TMP}, 1, v0
v_add_u32 v{TMP}, s{sOB}, v{TMP}
v_add_u32 v{TMP+1}, 1, v{TMP}
v_cmp_gt_u32 s[{sV0}:{sV0+1}], s{sOC}, v{TMP}
v_cmp_gt_u32 s[{sV1}:{sV1+1}], s{sOC}, v{TMP+1}
s_add_u32 s{sOB}, s{sOB}, 2048
s_cmp_lt_u32 s{sOB}, s{sOC}
s_cbranch_scc1 L_rn2
s_bitset0_b64 s[{sOM}:{sOM+1}], s{sT0}
s_mov_b32 s{sOB}, 0
L_rn2:
s_waitcnt vmcnt(0)
v_lshrrev_b32 v{TMP}, 16, v{REC+1}
v_lshrrev_b32 v{TMP+1}, 16, v{REC+3}
v_cmp_eq_u32 s[{sM}:{sM+1}], s2, v{TMP}
s_nop 3
s_and_b64 s[{sV0}:{sV0+1}], s[{sV0}:{sV0+1}], s[{sM}:{sM+1}]
v_cmp_eq_u32 s[{sM}:{sM+1}], s2, v{TMP+1}
s_nop 3
s_and_b64 s[{sV1}:{sV1+1}], s[{sV1}:{sV1+1}], s[{sM}:{sM+1}]
""")
    sort_rank(o)
    o("s_waitcnt lgkmcnt(0)\ns_barrier")
    sort_scatter(o)
    o("s_waitcnt lgkmcnt(0)\ns_barrier")
    o("s_branch L_pr\nL_ugemm:")
    XB = [QA, QA + 4, QA + 8, W3 - 2]
    seq = [(ks, rt) for ks in range(8) for rt in range(3)]
    def urd(i):
        ks, rt = seq[i]
        if rt == 0 and ks:
            o(f"v_xor_b32 v{TMP+6}, {64*ks}, v{VXA}")
        o(f"ds_read_b128 {vr(XB[i % 4],4)}, v{TMP+6 if ks else VXA} offset:{rt*8192}")
    for i in range(3):
        urd(i)
    for i, (ks, rt) in enumerate(seq):
        if i + 3 < 24:
            urd(i + 3)
        if rt == 0:
            o(f"s_waitcnt vmcnt({7-ks+1+2*R})")
        o(f"s_waitcnt lgkmcnt({min(3, 23 - i)})")
        c = "0" if ks == 0 else vr(UA+4*rt, 4)
        o(f"v_mfma_f32_16x16x32_bf16 {vr(UA+4*rt,4)}, {vr(W+4*ks,4)}, {vr(XB[i % 4],4)}, {c}")
    o("s_nop 5")
    for h in range(6):
        o(f"v_pk_mul_f32 {vr(UA+2*h,2)}, {vr(UA+2*h,2)}, s[{sSC}:{sSC+1}]")
    o(f"s_setpc_b64 s[{sRET}:{sRET+1}]")
    bin_overflow(o)

def main(path):
    o = Asm()
    gen(o)
    hdr = f"""; MPNN edge-MLP + segment sum + node update in one launch (256 co-resident workgroups, one per CU).
; Phase B (after tagged-flag hand-off): per-edge SiLU accumulation over gathered P rows, update GEMM + SiLU.
; @launch grid=(256,1,1) block=(1024,1,1) lds={L_ALLOC}
.amdgcn_target "amdgcn-amd-amdhsa--gfx950"
.text
"""
    desc = f""".section .rodata,"a"
.p2align 6
.amdhsa_kernel {KNAME}
  .amdhsa_next_free_vgpr {NV}
  .amdhsa_next_free_sgpr 102
  .amdhsa_accum_offset {(NV+3)//4*4}
  .amdhsa_group_segment_fixed_size 0
  .amdhsa_kernarg_size 72
  .amdhsa_user_sgpr_count 2
  .amdhsa_user_sgpr_kernarg_segment_ptr 1
  .amdhsa_system_sgpr_workgroup_id_x 1
.end_amdhsa_kernel
"""
    open(path, "w").write(hdr + o.text() + desc)

if __name__ == "__main__":
    if "--stamp" in sys.argv:
        sys.argv.remove("--stamp")
        STAMP = True
    for a in list(sys.argv):
        if a.startswith("--steps="):
            sys.argv.remove(a)
            STEPS = a[8:].split(",")
        if a.startswith("--poll="):
            sys.argv.remove(a)
            STEP_FLAG = int(a[7:])
        if a.startswith("--opt="):
            sys.argv.remove(a)
            OPT |= set(a[6:].split(","))
    main(sys.argv[1] if len(sys.argv) > 1 else "gather_scatter__mpnn_edge_mlp__graph.s")
```

```python
import sys

N = 10000
WS_WPACK = 0x500000
WS_OVFC = 0x560000
WS_OVF = 0x570000
WS_FLAG = 0x6E0000
WS_CELL = 0x700000
WS_END = 0xB00000
WS_STAMP = 0xC00000
CHUNK = 2500
CAP = 28
NEGL2E = 0xBFB8AA3B
NEGLN2 = 0xBF317218
KNAME = "gather_scatter__mpnn_edge_mlp__graph_kernel"
STAMP = False
STEP_FLAG = 14
STEPS = ["s-1", "pst", "drain", "cell"]
OPT = {"ostage", "o_sc1"}

class Asm:
    def __init__(self):
        self.l = []
    def __call__(self, s):
        for line in s.strip("\n").split("\n"):
            line = line.strip()
            if line:
                self.l.append(line if line.endswith(":") else "    " + line)
    def text(self):
        l = self.l
        def sub(a_lab, b_lab, pref):
            a = l.index(a_lab); b = l.index(b_lab)
            return l[:a] + [("    s_nop 0" if any(x.strip().startswith(p) for p in pref) else x) for x in l[a:b]] + l[b:]
        if "gplain" in OPT:
            l = [x.replace(" sc1", "") if "s[16:19], 0 offen" in x else x for x in l]
        if "gnt" in OPT:
            l = [x + " nt" if "s[16:19], 0 offen" in x else x for x in l]
        if "noprio" in OPT:
            l = [x for x in l if "s_setprio" not in x]
        if "noloop_ld" in OPT: l = sub("L_top:", "L_call0:", ["buffer_load"])
        return "\n".join(l) + "\n"

def vr(a, n):
    return f"v[{a}:{a+n-1}]" if n > 1 else f"v{a}"

def srd(o, d, lo, hi, size):
    o(f"s_mov_b32 s{d}, s{lo}\ns_mov_b32 s{d+1}, s{hi}\ns_mov_b32 s{d+2}, {size}\ns_mov_b32 s{d+3}, 0x20000")

def stamp(o, i):
    if STAMP:
        if "clk2" in OPT:
            if i in (1, 2):
                o(f"s_memrealtime s[{80+2*i}:{81+2*i}]\ns_memtime s[{84+2*i}:{85+2*i}]\ns_waitcnt lgkmcnt(0)")
            elif i not in (3, 4):
                o(f"s_memrealtime s[{80+2*i}:{81+2*i}]\ns_waitcnt lgkmcnt(0)")
            return
        o(f"s_memrealtime s[{80+2*i}:{81+2*i}]\ns_waitcnt lgkmcnt(0)")

R = 6
KMAX = 24
PRIO = [4, 3, 2]
RS = 1040
L_QS = 0
L_AGB = (48 * RS + 511) // 512 * 512
L_HB = L_AGB + 48 * 512
L_IDX = L_HB + 16 * 1024
L_ET = L_IDX + 2064 * 4
L_CNT = (L_ET + 2052 * 16 + 255) // 256 * 256
L_HF = L_CNT + 256
L_XS = (L_HF + 256 + 511) // 512 * 512
L_END = L_XS + 48 * 512
L_IMG = 65536
L_BCNT = 131072
L_PST = L_HB
L_PK = 3 * 32768
L_ALLOC = L_END
assert L_BCNT + 1100 <= L_CNT and L_END <= 163840
RING = 4
A0, A1, Q, T0, T1, E, NN, D, AC, UA = 28, 32, 36, 40, 44, 48, 52, 56, 60, 64
VOVF, VB, IX, AD, LO, VI, VE, VN, VC, VEND, VEL = 76, 78, 79, 80, 81, 82, 83, 84, 85, 86, 126
TMP = 87
W = 94
NV = 127
PA, QA, VXA, VWA, VWS, VTG, W3, TG0, ZR = UA, 48, AD, 36, 38, 76, 62, 60, 44
XFB, WFB = [W, W + 20], [W + 12, 40]
VWB = VE
TAG = 92
sWAVE, sN0, sCNT, sHEAD, sIT, sW1, sCH = 3, 4, 5, 6, 7, 26, 27
sP, sP1, sREM, sSEGE, sSEGS, sNEND, sK, sTOT, sRND, sOB, sOC, sOFF = range(48, 60)
sV0, sV1, sOM, sRET, sSO, sM, sONE, sSC = 60, 62, 64, 66, 68, 70, 72, 74
sM0, sLD = 69, 16
sT0, sT1, sT2, sBND = 76, 77, 78, 79
sLN2 = 44
REC, RK0, RK1 = 40, 4, 5
CK = TMP + 1

def valu_block(T):
    ex = "\n".join(f"v_exp_f32 v{E+i}, v{T+i}" for i in range(4))
    pk = f"""
v_pk_fma_f32 {vr(NN,2)}, {vr(NN,2)}, {vr(E,2)}, {vr(NN,2)}
v_pk_fma_f32 {vr(NN+2,2)}, {vr(NN+2,2)}, {vr(E+2,2)}, {vr(NN+2,2)}
v_pk_fma_f32 {vr(NN,2)}, {vr(T,2)}, {vr(D,2)}, {vr(NN,2)}
v_pk_fma_f32 {vr(NN+2,2)}, {vr(T+2,2)}, {vr(D+2,2)}, {vr(NN+2,2)}
v_pk_fma_f32 {vr(D,2)}, {vr(D,2)}, {vr(E,2)}, {vr(D,2)}
v_pk_fma_f32 {vr(D+2,2)}, {vr(D+2,2)}, {vr(E+2,2)}, {vr(D+2,2)}
"""
    return ex, pk

def poll(o, tag, soff, count):
    o(f"""
v_lshlrev_b32 v{TMP}, 7, v1
s_mov_b32 s{sT1}, 0
s_mov_b64 exec, {"-1" if count == 64 else hex((1 << count) - 1)}
F_pl{tag}:
buffer_load_dwordx2 {vr(TMP+1,2)}, v{TMP}, s[32:35], {soff} offen sc1
s_add_u32 s{sT1}, s{sT1}, 1
s_waitcnt vmcnt(0)
v_cmpx_ne_u64 vcc, s[100:101], {vr(TMP+1,2)}
s_nop 4
s_cbranch_execz F_pd{tag}
s_sleep 2
s_cmp_lt_u32 s{sT1}, 0x10000
s_cbranch_scc1 F_pl{tag}
F_pd{tag}:
s_mov_b64 exec, -1
""")

def get_tag(o, tag):
    o(f"""
s_mov_b32 s{sT1}, 0
F_tg{tag}:
v_readfirstlane_b32 s100, v{TAG}
v_readfirstlane_b32 s101, v{TAG+1}
s_add_u32 s{sT1}, s{sT1}, 1
s_cmp_ge_u32 s{sT1}, 0x10000
s_cbranch_scc1 F_th{tag}
s_cmp_lg_u32 s100, 0
s_cbranch_scc1 F_th{tag}
buffer_load_dwordx2 {vr(TAG,2)}, v{VTG}, s[96:99], 0 offen sc1
s_waitcnt vmcnt(0)
s_branch F_tg{tag}
F_th{tag}:
""")

def put_flag(o, soff):
    o(f"""
v_mov_b32 v{TMP+1}, s100
v_mov_b32 v{TMP+2}, s101
s_mov_b64 exec, 1
buffer_store_dwordx2 {vr(TMP+1,2)}, v{VTG}, s[32:35], {soff} offen sc1
s_mov_b64 exec, -1
""")

def sort_rank(o):
    o(f"""
s_mov_b32 s{sT0}, {L_CNT}
v_mov_b32 v{TMP+4}, 0xfc
v_mov_b32 v{TMP+3}, 1
v_and_or_b32 v{TMP}, v{REC}, v{TMP+4}, s{sT0}
v_and_or_b32 v{TMP+1}, v{REC+2}, v{TMP+4}, s{sT0}
s_mov_b64 exec, s[{sV0}:{sV0+1}]
ds_add_rtn_u32 v{RK0}, v{TMP}, v{TMP+3}
s_mov_b64 exec, s[{sV1}:{sV1+1}]
ds_add_rtn_u32 v{RK1}, v{TMP+1}, v{TMP+3}
s_mov_b64 exec, -1
v_add_u32 v{TMP+4}, s{sT0}, v{LO}
""")

def sort_scatter(o):
    o(f"""
ds_read_b32 v{TMP+2}, v{TMP+4}
v_and_b32 v{REC}, 0x7ffe00, v{REC}
v_and_b32 v{REC+2}, 0x7ffe00, v{REC+2}
s_mov_b32 s{sT0}, {L_IDX}
s_mov_b32 s{sT1}, {L_ET}
s_waitcnt lgkmcnt(0)
v_add_u32_dpp v{VEND}, v{TMP+2}, v{TMP+2} row_shr:1 row_mask:0xf bank_mask:0xf bound_ctrl:0
s_nop 1
v_add_u32_dpp v{VEND}, v{VEND}, v{VEND} row_shr:2 row_mask:0xf bank_mask:0xf bound_ctrl:0
s_nop 1
v_add_u32_dpp v{VEND}, v{VEND}, v{VEND} row_shr:4 row_mask:0xf bank_mask:0xf bound_ctrl:0
s_nop 1
v_add_u32_dpp v{VEND}, v{VEND}, v{VEND} row_shr:8 row_mask:0xf bank_mask:0xf bound_ctrl:0
s_nop 1
v_add_u32_dpp v{VEND}, v{VEND}, v{VEND} row_bcast:15 row_mask:0xa bank_mask:0xf
s_nop 1
v_add_u32_dpp v{VEND}, v{VEND}, v{VEND} row_bcast:31 row_mask:0xc bank_mask:0xf
v_sub_u32 v{TMP+3}, v{VEND}, v{TMP+2}
v_readlane_b32 s{sTOT}, v{VEND}, 63
ds_bpermute_b32 v{TMP}, v{TMP}, v{TMP+3}
ds_bpermute_b32 v{TMP+1}, v{TMP+1}, v{TMP+3}
s_nop 1
s_add_u32 s{sCH}, s{sTOT}, 15
s_lshr_b32 s{sCH}, s{sCH}, 4
s_mul_i32 s{sP}, s{sCH}, s{sWAVE}
s_add_u32 s{sP1}, s{sP}, s{sCH}
s_min_u32 s{sP}, s{sP}, s{sTOT}
s_min_u32 s{sP1}, s{sP1}, s{sTOT}
s_waitcnt lgkmcnt(0)
v_add_u32 v{TMP}, v{TMP}, v{RK0}
v_add_u32 v{TMP+1}, v{TMP+1}, v{RK1}
v_lshl_add_u32 v{TMP+2}, v{TMP}, 2, s{sT0}
v_lshl_add_u32 v{TMP+3}, v{TMP+1}, 2, s{sT0}
v_lshl_add_u32 v{TMP}, v{TMP}, 4, s{sT1}
v_lshl_add_u32 v{TMP+1}, v{TMP+1}, 4, s{sT1}
s_mov_b64 exec, s[{sV0}:{sV0+1}]
ds_write_b32 v{TMP+2}, v{REC}
ds_write_b16 v{TMP}, v{REC+1} offset:8
ds_write_b16 v{TMP}, v{REC+1} offset:14
s_mov_b64 exec, s[{sV1}:{sV1+1}]
ds_write_b32 v{TMP+3}, v{REC+2}
ds_write_b16 v{TMP+1}, v{REC+3} offset:8
ds_write_b16 v{TMP+1}, v{REC+3} offset:14
s_mov_b64 exec, -1
""")

def zero_cnt(o):
    o(f"v_mov_b32 v{TMP}, 0\nds_write_b32 v{TMP+4}, v{TMP}")

def prime(o):
    PT = T0
    o(f"""
s_lshl_b32 s{sT0}, s{sP}, 2
s_add_u32 s{sT0}, s{sT0}, {L_IDX}
v_mov_b32 v{VI}, s{sT0}
s_lshl_b32 s{sT0}, s{sP}, 4
v_add_u32 v{VE}, s{sT0}, v{VEL}
""")
    for k in range(0, R, 2):
        o(f"ds_read2_b32 {vr(PT+k,2)}, v{VI} offset0:{k} offset1:{k+1}")
    o(f"""
ds_read_b32 v{IX}, v{VI} offset:{4*R}
ds_read2_b32 {vr(A0+2,2)}, v{VE} offset0:0 offset1:2
ds_read2_b32 {vr(A1+2,2)}, v{VE} offset0:4 offset1:6
s_waitcnt lgkmcnt(0)
""")
    for k in range(R):
        B = RING + 4*k
        o(f"buffer_load_dword v{B}, v{PT+k}, s[16:19], 0 offen sc1")
        o(f"buffer_load_dword v{B+1}, v{PT+k}, s[16:19], 0 offen offset:256 sc1")

def wloads(o, mat, wreg, kss=range(8), sa=sT0, sb=sT1, va=TMP+5, setup=True):
    if not setup:
        for ks in kss:
            o(f"buffer_load_dwordx4 {vr(wreg+4*ks,4)}, v{va}, s[32:35], s{sa if ks < 4 else sb} offen offset:{(ks%4)*1024} sc1")
        return
    o(f"""
s_lshl_b32 s{sT0}, s{sWAVE}, 13
s_add_u32 s{sT0}, s{sT0}, {WS_WPACK + mat*131072}
s_add_u32 s{sT1}, s{sT0}, 4096
v_lshlrev_b32 v{TMP+5}, 4, v1
""")
    for ks in range(8):
        o(f"buffer_load_dwordx4 {vr(wreg+4*ks,4)}, v{TMP+5}, s[32:35], s{sT0 if ks < 4 else sT1} offen offset:{(ks%4)*1024} sc1")

DST, SRC, EA, OWN, RK, R0 = 8, 12, 16, 20, 24, 28
EW = [EA, 18, EA + 1, 19]
sBM = 58
def bin_rank(o):
    o(f"v_mov_b32 v{TMP+3}, 1\ns_mov_b64 exec, s[{sBM}:{sBM+1}]")
    for k in range(4):
        o(f"""
v_mul_u32_u24 v{OWN+k}, s56, v{DST+k}
v_lshrrev_b32 v{OWN+k}, 24, v{OWN+k}
v_lshl_add_u32 v{TMP+4}, v{OWN+k}, 2, s60
ds_add_rtn_u32 v{RK+k}, v{TMP+4}, v{TMP+3}
""")
    for k in range(4):
        o(f"""
v_mad_u32_u24 v{TMP+1}, v{OWN+k}, s57, 15
v_lshrrev_b32 v{TMP+1}, 4, v{TMP+1}
v_sub_u32 v{DST+k}, v{DST+k}, v{TMP+1}
v_lshl_add_u32 v{R0+k}, v{SRC+k}, 7, v{DST+k}
v_lshlrev_b32 v{R0+k}, 2, v{R0+k}
v_lshl_add_u32 v{DST+k}, v{OWN+k}, 8, s61
""")
    o(f"""
v_lshrrev_b32 v18, 16, v{EA}
v_lshrrev_b32 v19, 16, v{EA+1}
s_waitcnt lgkmcnt(0)
v_max3_u32 v{TMP}, v{RK}, v{RK+1}, v{RK+2}
v_max_u32 v{TMP}, v{TMP}, v{RK+3}
v_cmp_le_u32 vcc, {CAP}, v{TMP}
""")
    for k in range(4):
        o(f"""
v_mul_u32_u24 v{SRC+k}, 37, v{RK+k}
v_lshrrev_b32 v{SRC+k}, 8, v{SRC+k}
v_add_u32 v{SRC+k}, v{SRC+k}, v{RK+k}
v_lshl_add_u32 v{DST+k}, v{SRC+k}, 3, v{DST+k}
""")
    o("s_cbranch_vccnz F_ovf")
    for k in range(4):
        o(f"ds_write2_b32 v{DST+k}, v{R0+k}, v{EW[k]} offset0:2 offset1:3")
    o("F_ovfback:\ns_mov_b64 exec, -1")

def bin_overflow(o):
    o(f"F_ovf:\ns_mul_i32 s50, s2, {CHUNK*8}\ns_add_u32 s50, s50, {WS_OVF}\nv_mov_b32 v{TMP}, {L_BCNT+1024}")
    for k in range(4):
        o(f"""
v_cmp_gt_u32 vcc, {CAP}, v{RK+k}
s_and_saveexec_b64 s[62:63], vcc
ds_write2_b32 v{DST+k}, v{R0+k}, v{EW[k]} offset0:2 offset1:3
s_andn2_b64 exec, s[62:63], exec
s_cbranch_execz F_no{k}
ds_add_rtn_u32 v{TMP+4}, v{TMP}, v{TMP+3}
v_mov_b32 v{TMP+1}, v{R0+k}
v_and_b32 v{TMP+2}, 0xffff, v{EW[k]}
v_lshl_or_b32 v{TMP+2}, v{OWN+k}, 16, v{TMP+2}
s_waitcnt lgkmcnt(0)
v_lshlrev_b32 v{TMP+4}, 3, v{TMP+4}
buffer_store_dwordx2 {vr(TMP+1,2)}, v{TMP+4}, s[32:35], s50 offen sc1
s_waitcnt vmcnt(0)
F_no{k}:
s_mov_b64 exec, s[62:63]
""")
    o("s_branch F_ovfback")

def bin_copy(o):
    o(f"""
v_lshrrev_b32 v24, 3, v0
v_and_b32 v25, 7, v0
v_lshlrev_b32 v25, 4, v25
v_lshl_add_u32 v26, v24, 8, v25
v_lshl_add_u32 v27, v24, 14, v25
v_add_u32 v26, s61, v26
v_lshl_add_u32 v24, v24, 2, s60
ds_read2st64_b32 v[28:29], v24 offset0:0 offset1:2
ds_read_b128 v[8:11], v26
ds_read_b128 v[12:15], v26 offset:32768
ds_read_b128 v[16:19], v26 offset:128
ds_read_b128 v[20:23], v26 offset:{32768+128}
v_mov_b32 v30, {L_BCNT+1024}
ds_read_b32 v30, v30
v_and_b32 v25, 48, v25
v_cmp_eq_u32 s[{sBM}:{sBM+1}], 0, v25
s_lshl_b32 s49, s2, 8
s_add_u32 s49, s49, {WS_CELL}
s_add_u32 s50, s49, {128*16384}
v_mov_b32 v25, 0x7f000000
v_mov_b32 v31, s100
s_waitcnt lgkmcnt(5)
v_cmp_lt_u32 vcc, 14, v28
v_min_u32 v28, {CAP}, v28
v_cmp_lt_u32 s[62:63], 14, v29
v_min_u32 v29, {CAP}, v29
v_cndmask_b32 v24, v25, v27, vcc
v_cndmask_b32 v25, v25, v27, s[62:63]
s_waitcnt lgkmcnt(4)
v_cndmask_b32 v8, v8, v28, s[{sBM}:{sBM+1}]
v_cndmask_b32 v9, v9, v31, s[{sBM}:{sBM+1}]
buffer_store_dwordx4 v[8:11], v27, s[32:35], s49 offen sc1
s_waitcnt lgkmcnt(3)
v_cndmask_b32 v12, v12, v29, s[{sBM}:{sBM+1}]
v_cndmask_b32 v13, v13, v31, s[{sBM}:{sBM+1}]
buffer_store_dwordx4 v[12:15], v27, s[32:35], s50 offen sc1
s_waitcnt lgkmcnt(2)
v_cndmask_b32 v17, v17, v31, s[{sBM}:{sBM+1}]
buffer_store_dwordx4 v[16:19], v24, s[32:35], s49 offen offset:128 sc1
s_waitcnt lgkmcnt(1)
v_cndmask_b32 v21, v21, v31, s[{sBM}:{sBM+1}]
buffer_store_dwordx4 v[20:23], v25, s[32:35], s50 offen offset:128 sc1
s_cmp_lg_u32 s{sWAVE}, 0
s_cbranch_scc1 F_bc1
s_lshl_b32 s50, s2, 3
s_add_u32 s50, s50, {WS_OVFC}
s_mov_b64 exec, 1
s_waitcnt lgkmcnt(0)
buffer_store_dwordx2 v[30:31], v{VTG}, s[32:35], s50 offen sc1
s_mov_b64 exec, -1
F_bc1:
""")

def gen(o):
    XNT = "" if "nont" in OPT else "nt"
    AA = [A0, A1]
    TT = [T0, T1]
    o(f"""
.globl {KNAME}
.p2align 8
.type {KNAME},@function
{KNAME}:
s_cmp_ge_u32 s2, 256
s_cbranch_scc1 L_end
s_load_dwordx2 s[28:29], s[0:1], 0
s_load_dwordx2 s[44:45], s[0:1], 32
s_load_dwordx2 s[36:37], s[0:1], 24
s_load_dwordx2 s[12:13], s[0:1], 16
s_load_dwordx2 s[52:53], s[0:1], 8
s_load_dwordx2 s[40:41], s[0:1], 40
s_load_dwordx2 s[32:33], s[0:1], 64
s_load_dwordx2 s[96:97], s[0:1], 56
s_load_dwordx2 s[20:21], s[0:1], 48
s_memrealtime s[100:101]
""")
    if STAMP: o("s_memrealtime s[80:81]")
    o(f"""
v_lshrrev_b32 v2, 6, v0
v_and_b32 v1, 63, v0
s_mul_i32 s{sN0}, s2, 625
v_readfirstlane_b32 s{sWAVE}, v2
v_lshrrev_b32 v4, 5, v1
v_and_b32 v6, 31, v1
s_add_u32 s{sCNT}, s{sN0}, 640
s_add_u32 s{sN0}, s{sN0}, 15
s_lshr_b32 s{sN0}, s{sN0}, 4
s_lshl_b32 s50, s{sWAVE}, 1
v_add_u32 v5, s50, v4
v_lshlrev_b32 v2, 4, v0
v_and_b32 v7, 15, v5
v_xor_b32 v7, v7, v6
v_lshlrev_b32 v7, 4, v7
v_lshl_add_u32 v7, v4, 9, v7
s_mov_b32 s30, {N*512}
s_mov_b32 s31, 0x20000
s_mov_b32 s46, {513*512}
s_mov_b32 s47, 0x20000
s_mov_b32 s42, {512*512}
s_mov_b32 s43, 0x20000
s_mov_b32 s38, 640000
s_mov_b32 s39, 0x20000
s_mov_b32 s14, 640000
s_mov_b32 s15, 0x20000
s_mov_b32 s54, 320000
s_mov_b32 s55, 0x20000
s_lshl_b32 s{sSO}, s{sWAVE}, 10
s_lshl_b32 s51, s{sN0}, 9
s_add_u32 s51, s51, s{sSO}
v_and_b32 v{TMP}, 3, v5
v_bfe_u32 v{TMP+1}, v5, 3, 1
v_lshl_or_b32 v{TMP}, v{TMP+1}, 2, v{TMP}
v_lshlrev_b32 v{TMP}, 1, v{TMP}
v_xor_b32 v{TMP}, v{TMP}, v6
v_lshlrev_b32 v{TMP}, 4, v{TMP}
v_lshl_add_u32 v{VWS}, v4, 9, v{TMP}
v_lshlrev_b32 v{LO}, 2, v1
s_sub_u32 s48, s2, 64
v_mov_b32 v{VTG}, 0
s_mov_b32 s98, 256
s_mov_b32 s99, 0x20000
s_lshl_b32 s49, s2, 4
s_add_u32 s49, s49, s{sWAVE}
s_cmp_ge_u32 s2, 64
s_cbranch_scc1 F_nobl
s_mul_i32 s49, s2, 10000
s_mul_i32 s50, s2, 5000
v_lshlrev_b32 v{TMP}, 3, v0
v_lshlrev_b32 v6, 2, v0
v_add_u32 v6, {L_BCNT}, v6
s_cmp_ge_u32 s{sWAVE}, 5
s_cbranch_scc1 F_nbz
ds_write_b32 v6, v{VTG}
F_nbz:
s_waitcnt lgkmcnt(0)
buffer_load_dwordx4 {vr(DST,4)}, v2, s[36:39], s49 offen {XNT}
buffer_load_dwordx4 {vr(SRC,4)}, v2, s[12:15], s49 offen {XNT}
buffer_load_dwordx2 {vr(EA,2)}, v{TMP}, s[52:55], s50 offen {XNT}
s_barrier
s_branch F_x
F_nobl:
s_waitcnt lgkmcnt(0)
s_cmp_lg_u32 s49, 0xff0
s_cbranch_scc1 F_nont
s_or_b32 s49, s100, 1
v_mov_b32 v4, s49
v_mov_b32 v5, s101
s_mov_b64 exec, 1
buffer_store_dwordx2 v[4:5], v{VTG}, s[96:99], 0 offen sc1
s_mov_b64 exec, -1
F_nont:
s_cmp_ge_u32 s48, 16
s_cbranch_scc1 F_npd
s_lshl_b32 s49, s48, 14
s_add_u32 m0, s{sSO}, {L_PK}
s_add_u32 s49, s49, s{sSO}
buffer_load_dwordx4 v{VWS}, s[40:43], s49 offen lds
F_npd:
""")
    ops = []
    def vm(target):
        return len(ops) - 1 - max(i for i, x in enumerate(ops) if x == target)
    def dma(s, count=True):
        for m in range(2):
            o(f"""
s_add_u32 m0, s{sSO}, {(s & 3) * 32768 + m*16384}
s_add_u32 s{sM0}, s{sSO}, {m*131072 + s*16384}
buffer_load_dwordx4 v{VWS}, s[44:47], s{sM0} offen lds
""")
        if count:
            ops.extend([("d", s)] * 2)
    o(f"""
F_x:
s_add_u32 m0, s{sSO}, {L_XS}
s_cmp_ge_u32 s{sWAVE}, 4
buffer_load_dwordx4 v7, s[28:31], s51 offen {XNT} lds
s_cbranch_scc1 F_nox2
s_add_u32 m0, s{sSO}, {L_XS + 16384}
s_add_u32 s50, s51, 16384
buffer_load_dwordx4 v7, s[28:31], s50 offen {XNT} lds
F_nox2:
s_sub_u32 s50, s{sWAVE}, 6
s_cmp_ge_u32 s50, 2
s_cbranch_scc1 F_ntc
s_lshr_b32 s49, s2, 3
s_lshl_b32 s49, s49, 13
s_lshl_b32 s50, s50, 12
s_add_u32 s49, s49, s50
v_lshlrev_b32 v5, 6, v1
buffer_load_dword v77, v5, s[44:47], s49 offen
F_ntc:
""")
    dma(0)
    o("s_cmp_lt_u32 s2, 64\ns_cbranch_scc1 F_nl0\ns_barrier")
    dma(1)
    o(f"""
F_nl0:
s_mov_b32 s50, {512*512}
buffer_load_dword v{W3}, v{LO}, s[44:47], s50 offen
buffer_load_dword v{W3+1}, v{LO}, s[44:47], s50 offen offset:256
s_mov_b32 s34, {WS_END}
s_mov_b32 s35, 0x20000
s_lshr_b32 s{sCNT}, s{sCNT}, 4
s_sub_u32 s{sCNT}, s{sCNT}, s{sN0}
v_lshlrev_b32 v{VC}, 3, v1
v_lshrrev_b32 v3, 4, v1
v_and_b32 v4, 15, v1
v_xor_b32 v{VXA}, v4, v3
v_lshlrev_b32 v{VXA}, 4, v{VXA}
v_lshl_add_u32 v{VXA}, v4, 9, v{VXA}
v_add_u32 v{VXA}, {L_XS}, v{VXA}
v_bfe_u32 v5, v1, 2, 2
v_and_b32 v6, 3, v1
v_lshl_add_u32 v{VWA}, v3, 3, v5
v_lshlrev_b32 v{VWA}, 9, v{VWA}
v_lshl_add_u32 v{VWA}, v6, 3, v{VWA}
v_and_b32 v6, 1, v3
v_lshl_or_b32 v6, v6, 2, v5
v_xor_b32 v6, s{sWAVE}, v6
v_lshl_add_u32 v{VWA}, v6, 5, v{VWA}
v_add_u32 v{VWB}, 0x10000, v{VWA}
v_add_u32 v{TMP+4}, {L_CNT}, v{LO}
ds_write2st64_b32 v{TMP+4}, v{VTG}, v{VTG} offset0:0 offset1:1
s_mov_b32 s{sSC}, {NEGL2E:#x}
s_mov_b32 s{sSC+1}, {NEGL2E:#x}
s_cmp_ge_u32 s2, 64
s_cbranch_scc1 F_nbr
s_movk_i32 s57, 625
v_cmp_gt_u32 s[{sBM}:{sBM+1}], s57, v0
s_mov_b32 s56, 429497
s_mov_b32 s60, {L_BCNT}
s_mov_b32 s61, {L_IMG}
buffer_load_dwordx2 {vr(TAG,2)}, v{VTG}, s[96:99], 0 offen sc1
s_waitcnt vmcnt(6)
""")
    st0 = lambda name: stamp(o, (1, 2, 3, 4, 6)[STEPS.index(name)]) if name in STEPS else None
    st0("edge")
    bin_rank(o)
    dma(1, False)
    o("s_waitcnt vmcnt(2) lgkmcnt(0)\ns_barrier")
    get_tag(o, "b")
    bin_copy(o)
    o("F_nbr:")
    st0("copy")
    ops += ["w3", "w3"]
    def st(name):
        if name in STEPS: stamp(o, (1, 2, 3, 4, 6)[STEPS.index(name)])
    def reads(s):
        l = []
        a = VXA
        if s:
            a = TMP + 6
            o(f"v_xor_b32 v{a}, {64*s}, v{VXA}")
        xf, wf = XFB[s & 1], WFB[s & 1]
        wa = VWA if (s & 3) < 2 else VWB
        for rt in range(3):
            l.append(f"ds_read_b128 {vr(xf+4*rt,4)}, v{a} offset:{rt*8192}")
        for m in range(2):
            off = (s & 1) * 32768 + m * 16384
            l.append(f"ds_read_b64_tr_b16 {vr(wf+4*m,2)}, v{wa} offset:{off}\nds_read_b64_tr_b16 {vr(wf+4*m+2,2)}, v{wa} offset:{off + 2048}")
        return l
    SCHED = {-1: [2], 0: [3, 4], 1: [5], 2: [6], 3: [7]}
    for s in range(-1, 8):
        if s < 7:
            n = vm(("d", s + 1))
            if s <= 1:
                nb = {-1: 6, 0: 7, 1: 4}[s]
                npk = n + (1 if s >= 0 else 0)
                o(f"""
s_cmp_lt_u32 s2, 64
s_cbranch_scc0 F_wb{s+1}
s_waitcnt vmcnt({nb})
s_branch F_wc{s+1}
F_wb{s+1}:
s_waitcnt vmcnt({npk})
s_cmp_lt_u32 s48, 16
s_cbranch_scc1 F_wc{s+1}
s_waitcnt vmcnt({n})
F_wc{s+1}:
s_waitcnt lgkmcnt(0)
s_barrier
""")
            else:
                o(f"s_waitcnt vmcnt({n}) lgkmcnt(0)\ns_barrier")
        else:
            o("s_waitcnt lgkmcnt(0)\ns_barrier")
        st(f"s{s}")
        if s == -1:
            o(f"buffer_load_dwordx2 {vr(TG0,2)}, v{VTG}, s[96:99], 0 offen sc1")
            ops.append("tag")
        rd = reads(s + 1) if s < 7 else []
        mm = []
        if s >= 0:
            for m, acc in enumerate((PA, QA)):
                for rt in range(3):
                    c = "0" if s == 0 else vr(acc+4*rt, 4)
                    mm.append(f"v_mfma_f32_16x16x32_bf16 {vr(acc+4*rt,4)}, {vr(WFB[s&1]+4*m,4)}, {vr(XFB[s&1]+4*rt,4)}, {c}")
        if s == 7:
            late, mm = mm[3:], mm[:3]
        while rd or mm:
            if mm: o(mm.pop(0))
            if rd: o(rd.pop(0))
        for t in SCHED.get(s, []):
            dma(t)
        if s == -1:
            o(f"""
s_cmp_ge_u32 s48, 16
s_cbranch_scc1 F_d0
ds_read_b64_tr_b16 v[4:5], v{VWB} offset:32768
ds_read_b64_tr_b16 v[6:7], v{VWB} offset:{32768+2048}
s_lshl_b32 s50, s{sWAVE}, 13
s_and_b32 s49, s48, 7
s_lshl_b32 s49, s49, 10
s_add_u32 s50, s50, s49
s_lshr_b32 s49, s48, 3
s_lshl_b32 s49, s49, 17
s_add_u32 s50, s50, s49
s_add_u32 s50, s50, {WS_WPACK}
v_lshlrev_b32 v12, 4, v1
s_waitcnt lgkmcnt(0)
buffer_store_dwordx4 v[4:7], v12, s[32:35], s50 offen sc1
F_d0:
""")
        if s == 0:
            o(f"""
v_and_b32 v{TMP+1}, 15, v1
v_lshrrev_b32 v{TMP}, 1, v3
s_lshl_b32 s{sT1}, s{sWAVE}, 1
v_or_b32 v{TMP}, s{sT1}, v{TMP}
v_xor_b32 v{TMP}, v{TMP}, v{TMP+1}
v_lshlrev_b32 v{TMP}, 4, v{TMP}
v_lshl_add_u32 v{VN}, v{TMP+1}, 9, v{TMP}
v_and_b32 v{TMP}, 1, v3
v_lshl_add_u32 v{VN}, v{TMP}, 3, v{VN}
v_add_u32 v{VN}, {L_PST}, v{VN}
v_lshrrev_b32 v{VB}, 5, v0
v_add_u32 v{TMP}, 32, v{VB}
v_cmp_gt_u32 vcc, s{sCNT}, v{TMP}
v_lshlrev_b32 v{VB}, 4, v{VB}
v_xor_b32 v{VB}, v{VB}, v2
v_add_u32 v{VB}, {L_PST}, v{VB}
v_add_u32 v{VI}, 0x4000, v2
v_mov_b32 v{TMP}, 0x7ffffff0
v_cndmask_b32 v{VI}, v{TMP}, v{VI}, vcc
s_mov_b64 s[8:9], s[32:33]
s_mov_b32 s10, {N*512}
s_mov_b32 s11, 0x20000
""")
        if s == 0 and "direct" in OPT:
            o(f"""
v_lshlrev_b32 v{VN}, 9, v{TMP+1}
v_lshl_add_u32 v{VN}, v3, 3, v{VN}
s_lshl_b32 s{sT1}, s{sWAVE}, 5
v_add_u32 v{VN}, s{sT1}, v{VN}
v_add_u32 v{TMP}, 32, v{TMP+1}
v_cmp_gt_u32 vcc, s{sCNT}, v{TMP}
v_add_u32 v{VI}, 0x4000, v{VN}
v_mov_b32 v{TMP}, 0x7ffffff0
s_nop 0
v_cndmask_b32 v{VI}, v{TMP}, v{VI}, vcc
""")
        if s == 2:
            assert ops.index("tag") < ops.index(("d", 3))
            o(f"s_cmp_ge_u32 s48, 16\ns_cbranch_scc1 F_d5\ns_cmp_lg_u32 s{sWAVE}, 0\ns_cbranch_scc1 F_d5\nv_mov_b64 {vr(TAG,2)}, {vr(TG0,2)}")
            get_tag(o, "p")
            o(f"s_lshl_b32 s{sT0}, s48, 7\ns_add_u32 s{sT0}, s{sT0}, {WS_FLAG + 256*128}")
            put_flag(o, f"s{sT0}")
            o("F_d5:")
    o(f"s_lshl_b32 s{sT2}, s{sN0}, 9\ns_add_u32 s{sT1}, s{sT2}, 8192\ns_nop 3")
    if "direct" in OPT:
        for rt in range(3):
            a_ = PA + 4*rt
            o(f"""
v_pk_mul_f32 {vr(a_,2)}, {vr(a_,2)}, s[{sSC}:{sSC+1}]
v_pk_mul_f32 {vr(a_+2,2)}, {vr(a_+2,2)}, s[{sSC}:{sSC+1}]
v_cvt_pk_bf16_f32 v{W+2*rt}, v{a_}, v{a_+1}
v_cvt_pk_bf16_f32 v{W+2*rt+1}, v{a_+2}, v{a_+3}
buffer_store_dwordx2 {vr(W+2*rt,2)}, v{VN if rt < 2 else VI}, s[8:11], s{sT1 if rt == 1 else sT2} offen sc1
""")
        o("\n".join(late))
        o("s_barrier")
    else:
        for rt in range(3):
            a_ = PA + 4*rt
            o(f"""
v_pk_mul_f32 {vr(a_,2)}, {vr(a_,2)}, s[{sSC}:{sSC+1}]
v_pk_mul_f32 {vr(a_+2,2)}, {vr(a_+2,2)}, s[{sSC}:{sSC+1}]
v_cvt_pk_bf16_f32 v{W+2*rt}, v{a_}, v{a_+1}
v_cvt_pk_bf16_f32 v{W+2*rt+1}, v{a_+2}, v{a_+3}
ds_write_b64 v{VN}, {vr(W+2*rt,2)} offset:{rt*8192}
""")
        o("\n".join(late))
        o(f"""
s_cmp_lt_u32 s{sWAVE}, 8
s_waitcnt lgkmcnt(0)
s_barrier
s_cbranch_scc0 F_nps
ds_read_b128 {vr(W,4)}, v{VB}
ds_read_b128 {vr(W+4,4)}, v{VB} offset:8192
ds_read_b128 {vr(W+8,4)}, v{VB} offset:16384
s_waitcnt lgkmcnt(2)
buffer_store_dwordx4 {vr(W,4)}, v2, s[8:11], s{sT2} offen sc1
s_waitcnt lgkmcnt(1)
buffer_store_dwordx4 {vr(W+4,4)}, v2, s[8:11], s{sT1} offen sc1
s_waitcnt lgkmcnt(0)
buffer_store_dwordx4 {vr(W+8,4)}, v{VI}, s[8:11], s{sT2} offen sc1
F_nps:
s_barrier
""")

    st("pst")
    o(f"""
s_lshl_b32 s{sOFF}, s2, 14
s_add_u32 s{sOFF}, s{sOFF}, {WS_CELL}
buffer_load_dwordx4 {vr(REC,4)}, v2, s[32:35], s{sOFF} offen sc1
v_mov_b64 {vr(TAG,2)}, {vr(TG0,2)}
""")
    get_tag(o, "m")
    o(f"s_cmp_lg_u32 s{sWAVE}, 15\ns_cbranch_scc1 F_npk\ns_mov_b32 s{sT0}, {WS_FLAG + 256*128}")
    poll(o, "k", f"s{sT0}", 16)
    o("F_npk:")
    o(f"s_mov_b32 s{sT2}, 0\ns_waitcnt vmcnt(1)\ns_barrier")
    st("drain")
    o(f"s_cmp_lg_u32 s{sWAVE}, 0\ns_cbranch_scc1 F_nfp\ns_lshl_b32 s{sT0}, s2, 7\ns_add_u32 s{sT0}, s{sT0}, {WS_FLAG}")
    put_flag(o, f"s{sT0}")
    o(f"""
F_nfp:
s_lshl_b32 s12, s{sWAVE}, 13
s_add_u32 s12, s12, {WS_WPACK}
s_add_u32 s13, s12, 4096
v_lshlrev_b32 v{VE}, 4, v1
""")
    wl = lambda kss: wloads(o, 0, W, kss, 12, 13, VE, False)
    wl((0, 1))
    o(f"""
v_mov_b64 {vr(ZR,2)}, 0
v_mov_b64 {vr(ZR+2,2)}, 0
v_add_u32 v{VB}, {L_AGB}, v2
v_add_u32 v{VI}, {L_ET}, v2
ds_write_b128 v{VB}, {vr(ZR,4)}
ds_write_b128 v{VB}, {vr(ZR,4)} offset:4096
v_add_u32 v{VB}, {L_IDX}, v2
ds_write_b128 v{VB}, {vr(ZR,4)}
ds_write_b128 v{VI}, {vr(ZR,4)}
ds_write_b128 v{VI}, {vr(ZR,4)} offset:16384
ds_write_b128 v{VI}, {vr(ZR,4)} offset:16448
""")
    o(f"""
v_lshlrev_b32 v{TMP}, 16, v{W3}
v_and_b32 v{TMP+1}, 0xffff0000, v{W3}
v_lshlrev_b32 v{TMP+2}, 16, v{W3+1}
v_and_b32 v{TMP+3}, 0xffff0000, v{W3+1}
v_mul_f32 v{TMP}, s{sSC}, v{TMP}
v_mul_f32 v{TMP+1}, s{sSC}, v{TMP+1}
v_mul_f32 v{TMP+2}, s{sSC}, v{TMP+2}
v_mul_f32 v{TMP+3}, s{sSC}, v{TMP+3}
v_cvt_pk_bf16_f32 v6, v{TMP}, v{TMP+1}
v_cvt_pk_bf16_f32 v7, v{TMP+2}, v{TMP+3}
""")
    for k in range(1, R):
        o(f"v_mov_b64 {vr(RING+4*k+2,2)}, v[6:7]")
    o(f"""
v_and_b32 v{TMP}, 3, v1
v_bfe_u32 v{TMP+1}, v1, 2, 2
v_cmp_eq_u32 vcc, v{TMP+1}, v3
v_and_b32 v{TMP+2}, 1, v1
v_lshlrev_b32 v{TMP+2}, 4, v{TMP+2}
v_mov_b32 v{TMP+3}, 0x3f80
v_lshlrev_b32 v{TMP+3}, v{TMP+2}, v{TMP+3}
v_cndmask_b32 v{TMP+3}, 0, v{TMP+3}, vcc
v_xor_b32 v{VEL}, 2, v{TMP}
v_lshlrev_b32 v{VEL}, 2, v{VEL}
v_add_u32 v{VEL}, {L_ET}, v{VEL}
v_mov_b32 v{TMP+2}, 0x30000
v_cndmask_b32 v{VEL}, v{TMP+2}, v{VEL}, vcc
v_cmp_gt_u32 vcc, 2, v{TMP}
s_mov_b32 s{sONE}, 1.0
s_mov_b32 s{sONE+1}, 1.0
v_cndmask_b32 v{A0}, 0, v{TMP+3}, vcc
v_cndmask_b32_e64 v{A0+1}, v{TMP+3}, 0, vcc
v_mov_b64 {vr(A1,2)}, {vr(A0,2)}
""")
    o(f"""
s_mov_b32 s{sBND}, 0x7b800000
s_mov_b32 s{sW1}, 0
s_mov_b32 s{sRND}, 0
s_mov_b64 s[40:41], s[20:21]
s_mov_b32 s42, {N*512}
s_mov_b32 s16, s32
s_or_b32 s17, s33, 0x40000
s_mov_b32 s18, {N*512}
s_mov_b32 s19, 0x800000
s_movk_i32 s{sT0}, {RS}
v_and_b32 v{IX}, 15, v1
v_mul_u32_u24 v{IX}, s{sT0}, v{IX}
v_lshl_add_u32 v{IX}, v3, 4, v{IX}
s_lshl_b32 s{sT0}, s{sWAVE}, 6
v_add_u32 v{IX}, s{sT0}, v{IX}
v_bfe_u32 v{RK0}, v0, 2, 2
v_mul_u32_u24 v{RK0}, 7, v{RK0}
v_and_b32 v{TMP}, 3, v0
v_lshl_add_u32 v{RK1}, v{TMP}, 1, v{RK0}
v_cmp_eq_u32 vcc, 0, v{TMP}
v_add_u32 v8, -1, v{RK1}
v_mov_b32 v9, 64
v_cndmask_b32 v8, v8, v9, vcc
""")
    for rt in range(3):
        o(f"""
v_pk_mul_f32 {vr(QA+4*rt,2)}, {vr(QA+4*rt,2)}, s[{sSC}:{sSC+1}]
v_pk_mul_f32 {vr(QA+4*rt+2,2)}, {vr(QA+4*rt+2,2)}, s[{sSC}:{sSC+1}]
ds_write_b128 v{IX}, {vr(QA+4*rt,4)} offset:{L_QS + rt*16*RS}
""")
    wl((2, 3))
    st("q")
    o(f"""
s_waitcnt vmcnt(4)
F_cl:
v_mov_b32_dpp v{TMP}, v{REC+1} row_newbcast:0 row_mask:0xf bank_mask:0xf
v_mov_b32_dpp v{TMP+1}, v{REC} row_newbcast:0 row_mask:0xf bank_mask:0xf
v_mov_b32_dpp v{TMP+2}, v{REC+1} quad_perm:[0,0,0,0] row_mask:0xf bank_mask:0xf
v_cmp_eq_u32 vcc, s100, v{TMP}
v_cmp_ne_u32 s[{sM}:{sM+1}], s100, v{TMP+2}
s_add_u32 s{sT2}, s{sT2}, 1
v_cndmask_b32 v{TMP+1}, 0, v{TMP+1}, vcc
v_max_u32 v{TMP+3}, 1, v{TMP+1}
v_cmp_lt_u32 vcc, v{RK0}, v{TMP+3}
s_cmp_ge_u32 s{sT2}, 0x10000
s_cbranch_scc1 F_cd
s_and_b64 exec, vcc, s[{sM}:{sM+1}]
s_cbranch_execz F_cd
s_sleep 1
buffer_load_dwordx4 {vr(REC,4)}, v2, s[32:35], s{sOFF} offen sc1
s_mov_b64 exec, -1
s_waitcnt vmcnt(0)
s_branch F_cl
F_cd:
s_mov_b64 exec, -1
v_cmp_gt_u32 s[{sV0}:{sV0+1}], v{TMP+1}, v8
v_cmp_gt_u32 s[{sV1}:{sV1+1}], v{TMP+1}, v{RK1}
""")
    st("cell")
    sort_rank(o)
    wl((4, 5))
    o("s_waitcnt lgkmcnt(0)\ns_barrier")
    sort_scatter(o)
    o(f"""
s_lshl_b32 s{sOC}, s{sWAVE}, 13
s_add_u32 s{sOC}, s{sOC}, {WS_FLAG}
v_lshlrev_b32 v{TMP}, 7, v1
""")
    o(f"""
s_cmp_ge_u32 s{sWAVE}, 4
s_cbranch_scc1 F_np1
buffer_load_dwordx2 {vr(TMP+1,2)}, v{TMP}, s[32:35], s{sOC} offen sc1
F_np1:
""")
    st("u")
    o(f"""
s_cmp_ge_u32 s{sWAVE}, 4
s_cbranch_scc1 F_npp
s_mov_b32 s{sT1}, 0
s_waitcnt vmcnt(0)
F_plp:
v_cmpx_ne_u64 vcc, s[100:101], {vr(TMP+1,2)}
s_add_u32 s{sT1}, s{sT1}, 1
s_nop 3
s_cbranch_execz F_pdp
s_cmp_ge_u32 s{sT1}, 0x10000
s_cbranch_scc1 F_pdp
buffer_load_dwordx2 {vr(TMP+1,2)}, v{TMP}, s[32:35], s{sOC} offen sc1
s_waitcnt vmcnt(0)
s_branch F_plp
F_pdp:
s_mov_b64 exec, -1
""")
    o(f"""
F_npp:
""")
    wl((6, 7))
    o(f"""
s_mov_b32 s{sT0}, {WS_OVFC}
buffer_load_dwordx2 {vr(VOVF,2)}, v{VC}, s[32:35], s{sT0} offen sc1
s_waitcnt lgkmcnt(0)
s_barrier
L_pr:
""")
    st("b3")
    zero_cnt(o)
    prime(o)
    o(f"""
s_cmp_lg_u32 s{sRND}, 0
s_cbranch_scc1 L_go
s_call_b64 s[{sRET}:{sRET+1}], L_ugemm
L_go:
""")
    st("go")
    stamp(o, 5)
    o(f"""
s_mov_b64 vcc, 0
s_mov_b32 s{sK}, {KMAX}
s_add_u32 s{sRND}, s{sRND}, 1
s_cmp_ge_u32 s{sP}, s{sP1}
s_cbranch_scc1 L_loopdone
v_cmp_eq_u32 s[{sM}:{sM+1}], s{sP}, v{VEND}
s_sub_u32 s{sIT}, s{sP1}, s{sP}
s_add_u32 s{sIT}, s{sIT}, {R-1}
s_mul_i32 s{sIT}, s{sIT}, 171
s_lshr_b32 s{sIT}, s{sIT}, 10
s_cmp_eq_u32 s{sP}, 0
s_cselect_b32 s{sT2}, 1, 0
s_cmp_lg_u64 s[{sM}:{sM+1}], 0
s_cselect_b32 s{sT2}, 1, s{sT2}
s_xor_b32 s{sHEAD}, s{sT2}, 1
s_call_b64 s[{sRET}:{sRET+1}], L_newnode
s_setprio 3
s_waitcnt vmcnt({2*(R-1)}) lgkmcnt(0)
v_mfma_f32_16x16x32_bf16 {vr(T0,4)}, {vr(A0,4)}, {vr(RING,4)}, {vr(Q,4)}
s_nop 5
L_top:
""")
    for k in range(R):
        B = RING + 4*k
        B1 = RING + 4*((k+1) % R)
        ex, pk = valu_block(TT[k & 1])
        o(f"""
s_waitcnt vmcnt({2*(R-2)}) lgkmcnt(0)
v_mfma_f32_16x16x32_bf16 {vr(TT[(k+1)&1],4)}, {vr(AA[(k+1)&1],4)}, {vr(B1,4)}, {vr(Q,4)}
{ex}
buffer_load_dword v{B}, v{IX}, s[16:19], 0 offen sc1
buffer_load_dword v{B+1}, v{IX}, s[16:19], 0 offen offset:256 sc1
ds_read_b32 v{IX}, v{VI} offset:{4*(k+R+1)}
ds_read2_b32 {vr(AA[k&1]+2,2)}, v{VE} offset0:{4*(k+2)} offset1:{4*(k+2)+2}
{pk}
s_sub_u32 s{sREM}, s{sREM}, 1
s_cbranch_scc1 L_call{k}
L_next{k}:
""")
    o(f"""
v_add_u32 v{VI}, {4*R}, v{VI}
v_add_u32 v{VE}, {16*R}, v{VE}
s_sub_u32 s{sIT}, s{sIT}, 1
s_cmp_ge_u32 s{sIT}, {PRIO[0]}
s_cbranch_scc1 L_top
s_setprio 2
s_cmp_ge_u32 s{sIT}, {PRIO[1]}
s_cbranch_scc1 L_top
s_setprio 1
s_cmp_ge_u32 s{sIT}, {PRIO[2]}
s_cbranch_scc1 L_top
s_setprio 0
{"" if "overrun" in OPT else f"v_mov_b32 v{VI}, {L_CNT}"}
s_branch L_top
""")
    for k in range(R):
        B1 = RING + 4*((k+1) % R)
        o(f"""
L_call{k}:
s_call_b64 s[{sRET}:{sRET+1}], L_flush
s_cbranch_scc0 L_special
s_waitcnt lgkmcnt(0)
v_mfma_f32_16x16x32_bf16 {vr(TT[(k+1)&1],4)}, {vr(AA[(k+1)&1],4)}, {vr(B1,4)}, {vr(Q,4)}
s_nop 4
s_branch L_next{k}
""")
    o(f"""
L_flush:
v_rcp_f32 v{E}, v{D}
v_rcp_f32 v{E+1}, v{D+1}
v_rcp_f32 v{E+2}, v{D+2}
v_rcp_f32 v{E+3}, v{D+3}
s_mov_b32 s{sP}, s{sSEGE}
s_cbranch_vccnz L_nochk
v_pk_fma_f32 {vr(CK,2)}, {vr(NN,2)}, 0, {vr(D,2)}
v_pk_fma_f32 {vr(CK+2,2)}, {vr(NN+2,2)}, 0, {vr(D+2,2)}
v_pk_add_f32 {vr(CK,2)}, {vr(CK,2)}, {vr(CK+2,2)}
v_add_f32 v{CK}, v{CK}, v{CK+1}
v_cmp_nle_f32 s[{sM}:{sM+1}], v{CK}, s{sBND}
s_nop 3
s_cmp_eq_u64 s[{sM}:{sM+1}], 0
s_cbranch_scc1 L_nochk
s_mov_b32 s{sP}, s{sSEGS}
s_setpc_b64 s[{sRET}:{sRET+1}]
L_nochk:
v_pk_fma_f32 {vr(AC,2)}, {vr(NN,2)}, {vr(E,2)}, {vr(AC,2)}
v_pk_fma_f32 {vr(AC+2,2)}, {vr(NN+2,2)}, {vr(E+2,2)}, {vr(AC+2,2)}
s_cmp_lg_u32 s{sW1}, 0
s_cbranch_scc1 L_havew
s_mov_b32 s{sW1}, 1
""")
    wloads(o, 1, W)
    o(f"""
L_havew:
s_cmp_eq_u32 s{sP}, s{sNEND}
s_cbranch_scc1 L_fin
s_cmp_lg_u32 s{sP}, s{sP1}
s_cbranch_scc1 L_reinit
s_cmp_lg_u32 s{sHEAD}, 0
s_cbranch_scc1 L_pub
s_mov_b32 s{sT0}, s{sWAVE}
s_mov_b32 s{sT1}, s{sP1}
L_col:
s_add_u32 s{sT0}, s{sT0}, 1
s_lshl_b32 s{sT2}, s{sT0}, 2
s_add_u32 s{sT2}, s{sT2}, {L_HF}
v_mov_b32 v{CK}, s{sT2}
L_poll:
ds_read_b32 v{CK+1}, v{CK}
s_waitcnt lgkmcnt(0)
v_readfirstlane_b32 s{sT2}, v{CK+1}
s_nop 3
s_cmp_eq_u32 s{sT2}, s{sRND}
s_cbranch_scc1 L_got
s_sleep 1
s_branch L_poll
L_got:
s_lshl_b32 s{sT2}, s{sT0}, 10
s_add_u32 s{sT2}, s{sT2}, {L_HB}
v_add_u32 v{CK}, s{sT2}, v{VC}
ds_read2st64_b64 {vr(E,4)}, v{CK} offset0:0 offset1:1
s_add_u32 s{sT1}, s{sT1}, s{sCH}
s_waitcnt lgkmcnt(0)
v_pk_add_f32 {vr(AC,2)}, {vr(AC,2)}, {vr(E,2)}
v_pk_add_f32 {vr(AC+2,2)}, {vr(AC+2,2)}, {vr(E+2,2)}
s_cmp_lt_u32 s{sT1}, s{sNEND}
s_cbranch_scc1 L_col
s_branch L_wr
L_fin:
s_cmp_lg_u32 s{sHEAD}, 0
s_cbranch_scc1 L_pub
L_wr:
v_cvt_pk_bf16_f32 v{E}, v{AC}, v{AC+1}
v_cvt_pk_bf16_f32 v{E+1}, v{AC+2}, v{AC+3}
ds_write2st64_b32 v{VB}, v{E}, v{E+1} offset0:0 offset1:1
L_more:
s_mov_b32 s{sHEAD}, 0
s_cmp_lg_u32 s{sP}, s{sP1}
s_cbranch_scc1 L_newnode
s_setpc_b64 s[{sRET}:{sRET+1}]
L_pub:
s_lshl_b32 s{sT2}, s{sWAVE}, 10
s_add_u32 s{sT2}, s{sT2}, {L_HB}
v_add_u32 v{CK}, s{sT2}, v{VC}
s_lshl_b32 s{sT2}, s{sWAVE}, 2
s_add_u32 s{sT2}, s{sT2}, {L_HF}
v_mov_b32 v{CK+1}, s{sT2}
v_mov_b32 v{CK+2}, s{sRND}
ds_write2st64_b64 v{CK}, {vr(AC,2)}, {vr(AC+2,2)} offset0:0 offset1:1
s_waitcnt lgkmcnt(0)
ds_write_b32 v{CK+1}, v{CK+2}
s_branch L_more
L_old:
s_cmp_lg_u32 s{sHEAD}, 0
s_cbranch_scc1 L_reinit
ds_read2st64_b32 {vr(E,2)}, v{VB} offset0:0 offset1:1
s_waitcnt lgkmcnt(0)
v_lshlrev_b32 v{AC}, 16, v{E}
v_and_b32 v{AC+1}, 0xffff0000, v{E}
v_lshlrev_b32 v{AC+2}, 16, v{E+1}
v_and_b32 v{AC+3}, 0xffff0000, v{E+1}
s_branch L_reinit
L_newnode:
v_cmp_ge_u32 s[{sM}:{sM+1}], s{sP}, v{VEND}
v_mov_b64 {vr(AC,2)}, 0
v_mov_b64 {vr(AC+2,2)}, 0
s_nop 1
s_bcnt1_i32_b64 s{sT0}, s[{sM}:{sM+1}]
s_mul_i32 s{sT1}, s{sT0}, {RS}
v_readlane_b32 s{sNEND}, v{VEND}, s{sT0}
v_add_u32 v{VN}, s{sT1}, v{VC}
ds_read2st64_b64 {vr(Q,4)}, v{VN} offset0:0 offset1:1
s_and_b32 s{sT1}, s{sT0}, 15
s_lshl_b32 s{sT1}, s{sT1}, 4
s_lshl_b32 s{sT0}, s{sT0}, 9
s_or_b32 s{sT0}, s{sT0}, s{sT1}
s_add_u32 s{sT0}, s{sT0}, {L_AGB}
v_xor_b32 v{VB}, s{sT0}, v{LO}
s_cmp_lg_u32 s{sRND}, 1
s_cbranch_scc1 L_old
L_reinit:
v_mov_b64 {vr(NN,2)}, 0
v_mov_b64 {vr(NN+2,2)}, 0
v_mov_b64 {vr(D,2)}, s[{sONE}:{sONE+1}]
v_mov_b64 {vr(D+2,2)}, s[{sONE}:{sONE+1}]
s_mov_b32 s{sSEGS}, s{sP}
s_add_u32 s{sSEGE}, s{sP}, s{sK}
s_min_u32 s{sSEGE}, s{sSEGE}, s{sNEND}
s_min_u32 s{sSEGE}, s{sSEGE}, s{sP1}
s_sub_u32 s{sREM}, s{sSEGE}, s{sP}
s_sub_u32 s{sREM}, s{sREM}, 1
s_cmp_eq_u32 s{sP}, s{sP}
s_setpc_b64 s[{sRET}:{sRET+1}]
L_special:
s_cmp_eq_u32 s{sP}, s{sP1}
s_cbranch_scc1 L_loopdone
s_mov_b64 vcc, -1
s_mov_b32 s{sK}, 1
s_waitcnt vmcnt(0) lgkmcnt(0)
s_call_b64 s[{sRET}:{sRET+1}], L_reinit
L_slow:
s_lshl_b32 s{sT0}, s{sP}, 2
s_add_u32 s{sT0}, s{sT0}, {L_IDX}
v_mov_b32 v{VI}, s{sT0}
s_lshl_b32 s{sT0}, s{sP}, 4
v_add_u32 v{VE}, s{sT0}, v{VEL}
ds_read_b32 v{IX}, v{VI}
ds_read2_b32 {vr(A0+2,2)}, v{VE} offset0:0 offset1:2
s_waitcnt lgkmcnt(0)
buffer_load_dword v{RING}, v{IX}, s[16:19], 0 offen sc1
buffer_load_dword v{RING+1}, v{IX}, s[16:19], 0 offen offset:256 sc1
s_waitcnt vmcnt(0)
v_mfma_f32_16x16x32_bf16 {vr(T0,4)}, {vr(A0,4)}, {vr(RING,4)}, {vr(Q,4)}
s_nop 7
v_min_f32 v{T0}, 0x42fc0000, v{T0}
v_min_f32 v{T0+1}, 0x42fc0000, v{T0+1}
v_min_f32 v{T0+2}, 0x42fc0000, v{T0+2}
v_min_f32 v{T0+3}, 0x42fc0000, v{T0+3}
{valu_block(T0)[0]}
{valu_block(T0)[1]}
s_call_b64 s[{sRET}:{sRET+1}], L_flush
s_cbranch_scc1 L_slow
L_loopdone:
""")
    st("le")
    if len(STEPS) < 5: stamp(o, 6)
    o(f"""
s_setprio 0
s_cmp_lg_u32 s{sW1}, 0
s_cbranch_scc1 L_ld2
s_mov_b32 s{sW1}, 1
""")
    wloads(o, 1, W)
    o(f"""
L_ld2:
s_cmp_lg_u32 s{sRND}, 1
s_cbranch_scc1 L_rn0
s_mov_b32 s{sOB}, 0
s_mov_b32 s{sT0}, {WS_OVFC}
L_ov:
s_waitcnt vmcnt(0)
v_cmp_ne_u32 vcc, s100, v{VOVF+1}
v_cmp_ne_u32 s[{sOM}:{sOM+1}], 0, v{VOVF}
s_add_u32 s{sOB}, s{sOB}, 1
s_cmp_ge_u32 s{sOB}, 0x10000
s_cbranch_scc1 L_ovd
s_nop 0
s_cbranch_vccz L_ovd
buffer_load_dwordx2 {vr(VOVF,2)}, v{VC}, s[32:35], s{sT0} offen sc1
s_branch L_ov
L_ovd:
s_mov_b32 s{sOB}, 0
L_rn0:
v_and_b32 v{TMP}, 15, v1
v_xor_b32 v{TMP+1}, v{TMP}, v3
v_lshlrev_b32 v{TMP+1}, 4, v{TMP+1}
v_lshl_add_u32 v{TMP+1}, v{TMP}, 9, v{TMP+1}
s_waitcnt vmcnt(0)
s_cmp_eq_u64 s[{sOM}:{sOM+1}], 0
s_cbranch_scc0 L_round
""")
    o(f"v_add_u32 v4, {L_AGB}, v{TMP+1}")
    for ks in range(1, 8):
        o(f"v_xor_b32 v{4+ks}, {64*ks}, v4")
    o(f"""
v_add_u32 v{TMP+2}, s{sN0}, v{TMP}
v_lshlrev_b32 v{TMP+2}, 9, v{TMP+2}
v_lshl_add_u32 v{TMP+2}, v3, 3, v{TMP+2}
s_lshl_b32 s{sT0}, s{sWAVE}, 5
s_add_u32 s{sT1}, s{sT0}, 8192
s_add_u32 s{sT2}, s{sT0}, 16384
s_sub_u32 s{sCNT}, s{sCNT}, 32
v_cmp_gt_u32 s[{sM}:{sM+1}], s{sCNT}, v{TMP}
v_mov_b32 v12, s{sSC}
""")
    if "ostage" in OPT:
        o(f"""
v_lshrrev_b32 v13, 1, v3
s_lshl_b32 s{sT1}, s{sWAVE}, 1
v_or_b32 v13, s{sT1}, v13
v_xor_b32 v13, v13, v{TMP}
v_lshlrev_b32 v13, 4, v13
v_lshl_add_u32 v13, v{TMP}, 9, v13
v_and_b32 v14, 1, v3
v_lshl_add_u32 v13, v14, 3, v13
v_lshrrev_b32 v14, 5, v0
v_cmp_gt_u32 vcc, s{sCNT}, v14
v_and_b32 v14, 15, v14
v_lshlrev_b32 v14, 4, v14
v_xor_b32 v14, v14, v2
v_add_u32 v15, 0x4000, v2
v_mov_b32 v16, 0x7ffffff0
s_lshl_b32 s{sT0}, s{sN0}, 9
v_cndmask_b32 v15, v16, v15, vcc
""")
    o("s_waitcnt lgkmcnt(0)\ns_barrier")
    st("fb")
    OSF = "sc1" if "o_sc1" in OPT else "nt" if "o_nt" in OPT else "sc1 nt" if "o_sc1nt" in OPT else ""
    FB = [T0, T1, E, NN]
    def rd(i):
        o(f"ds_read_b128 {vr(FB[i % 4],4)}, v{4 + (i & 7)} offset:{(i >> 3)*8192}")
    def silu(rt):
        a, t = UA + 4*rt, D
        l = [f"v_exp_f32 v{t+i}, v{a+i}" for i in range(4)]
        l += [f"v_fma_f32 v{t+i}, v{t+i}, v12, v12" for i in range(4)]
        l += [f"v_rcp_f32 v{t+i}, v{t+i}" for i in range(4)]
        l += [f"v_mul_f32 v{a+i}, v{a+i}, v{t+i}" for i in range(4)]
        l += [f"v_cvt_pk_bf16_f32 v{a}, v{a}, v{a+1}", f"v_cvt_pk_bf16_f32 v{a+1}, v{a+2}, v{a+3}"]
        if "ostage" in OPT:
            l.append(f"ds_write_b64 v13, {vr(a,2)} offset:{rt*8192}")
            return l
        if rt == 2:
            l.append(f"s_mov_b64 exec, s[{sM}:{sM+1}]")
        l.append(f"buffer_store_dwordx2 {vr(a,2)}, v{TMP+2}, s[40:43], s{[sT0,sT1,sT2][rt]} offen {OSF}")
        return l
    for i in range(3):
        rd(i)
    pend = []
    for i in range(24):
        rt, ks = i >> 3, i & 7
        if i + 3 < 24:
            rd(i + 3)
        o(f"s_waitcnt lgkmcnt({min(3, 23 - i)})")
        o(f"v_mfma_f32_16x16x32_bf16 {vr(UA+4*rt,4)}, {vr(W+4*ks,4)}, {vr(FB[i % 4],4)}, {vr(UA+4*rt,4)}")
        if ks == 2 and rt > 0:
            pend = silu(rt - 1)
        n = 4 if ks < 7 else len(pend)
        o("\n".join(pend[:n]))
        pend = pend[n:]
    o("s_nop 7")
    st("fg")
    o("\n".join(silu(2)))
    if "ostage" in OPT:
        o(f"""
s_waitcnt lgkmcnt(0)
s_barrier
ds_read_b128 v[16:19], v14
ds_read_b128 v[20:23], v14 offset:16384
s_waitcnt lgkmcnt(1)
buffer_store_dwordx4 v[16:19], v2, s[40:43], s{sT0} offen {OSF}
s_cmp_ge_u32 s{sWAVE}, 4
s_cbranch_scc1 L_os
s_waitcnt lgkmcnt(0)
buffer_store_dwordx4 v[20:23], v15, s[40:43], s{sT0} offen {OSF}
L_os:
""")
    st("fs")
    if STAMP:
        o(f"""
s_waitcnt vmcnt(0)
s_memrealtime s[94:95]
s_mov_b64 exec, 1
s_lshl_b32 s26, s2, 4
s_add_u32 s26, s26, s{sWAVE}
s_lshl_b32 s26, s26, 5
s_add_u32 s26, s26, {WS_STAMP + 0x100000}
s_mov_b32 s34, 0x1000000
v_mov_b32 v0, 0
s_waitcnt lgkmcnt(0)
""")
        for i in range(8):
            o(f"v_mov_b32 v{4+i}, s{80+2*i}")
        if "dbgst" in OPT:
            o("v_not_b32 v12, v4\nv_not_b32 v13, v9\nv_not_b32 v14, v5\nv_not_b32 v15, v10")
            for i in range(12):
                o(f"buffer_atomic_umax v{4+i}, v0, s[96:99], 0 offen offset:{8+4*i} sc1")
        else:
            o("buffer_store_dwordx4 v[4:7], v0, s[32:35], s26 offen\nbuffer_store_dwordx4 v[8:11], v0, s[32:35], s26 offen offset:16")
    o(f"""
L_end:
s_endpgm
L_round:
s_waitcnt lgkmcnt(0)
s_barrier
s_ff1_i32_b64 s{sT0}, s[{sOM}:{sOM+1}]
s_mul_i32 s{sT1}, s{sT0}, {CHUNK*8}
v_readlane_b32 s{sOC}, v{VOVF}, s{sT0}
s_lshl_b32 s{sT2}, s{sOB}, 3
s_add_u32 s{sT1}, s{sT1}, s{sT2}
s_add_u32 s{sT1}, s{sT1}, {WS_OVF}
buffer_load_dwordx4 {vr(REC,4)}, v2, s[32:35], s{sT1} offen sc1
v_lshlrev_b32 v{TMP}, 1, v0
v_add_u32 v{TMP}, s{sOB}, v{TMP}
v_add_u32 v{TMP+1}, 1, v{TMP}
v_cmp_gt_u32 s[{sV0}:{sV0+1}], s{sOC}, v{TMP}
v_cmp_gt_u32 s[{sV1}:{sV1+1}], s{sOC}, v{TMP+1}
s_add_u32 s{sOB}, s{sOB}, 2048
s_cmp_lt_u32 s{sOB}, s{sOC}
s_cbranch_scc1 L_rn2
s_bitset0_b64 s[{sOM}:{sOM+1}], s{sT0}
s_mov_b32 s{sOB}, 0
L_rn2:
s_waitcnt vmcnt(0)
v_lshrrev_b32 v{TMP}, 16, v{REC+1}
v_lshrrev_b32 v{TMP+1}, 16, v{REC+3}
v_cmp_eq_u32 s[{sM}:{sM+1}], s2, v{TMP}
s_nop 3
s_and_b64 s[{sV0}:{sV0+1}], s[{sV0}:{sV0+1}], s[{sM}:{sM+1}]
v_cmp_eq_u32 s[{sM}:{sM+1}], s2, v{TMP+1}
s_nop 3
s_and_b64 s[{sV1}:{sV1+1}], s[{sV1}:{sV1+1}], s[{sM}:{sM+1}]
""")
    sort_rank(o)
    o("s_waitcnt lgkmcnt(0)\ns_barrier")
    sort_scatter(o)
    o("s_waitcnt lgkmcnt(0)\ns_barrier")
    o("s_branch L_pr\nL_ugemm:")
    XB = [QA, QA + 4, QA + 8, W3 - 2]
    seq = [(ks, rt) for ks in range(8) for rt in range(3)]
    def urd(i):
        ks, rt = seq[i]
        if rt == 0 and ks:
            o(f"v_xor_b32 v{TMP+6}, {64*ks}, v{VXA}")
        o(f"ds_read_b128 {vr(XB[i % 4],4)}, v{TMP+6 if ks else VXA} offset:{rt*8192}")
    for i in range(3):
        urd(i)
    for i, (ks, rt) in enumerate(seq):
        if i + 3 < 24:
            urd(i + 3)
        if rt == 0:
            o(f"s_waitcnt vmcnt({7-ks+1+2*R})")
        o(f"s_waitcnt lgkmcnt({min(3, 23 - i)})")
        c = "0" if ks == 0 else vr(UA+4*rt, 4)
        o(f"v_mfma_f32_16x16x32_bf16 {vr(UA+4*rt,4)}, {vr(W+4*ks,4)}, {vr(XB[i % 4],4)}, {c}")
    o("s_nop 5")
    for h in range(6):
        o(f"v_pk_mul_f32 {vr(UA+2*h,2)}, {vr(UA+2*h,2)}, s[{sSC}:{sSC+1}]")
    if "w2early" in OPT:
        o(f"s_mov_b32 s{sW1}, 1")
        wloads(o, 1, W)
    o(f"s_setpc_b64 s[{sRET}:{sRET+1}]")
    bin_overflow(o)

def main(path):
    o = Asm()
    gen(o)
    hdr = f"""; MPNN edge-MLP + segment sum + node update in one launch (256 co-resident workgroups, one per CU).
; Phase B (after tagged-flag hand-off): per-edge SiLU accumulation over gathered P rows, update GEMM + SiLU.
; @launch grid=(256,1,1) block=(1024,1,1) lds={L_ALLOC}
.amdgcn_target "amdgcn-amd-amdhsa--gfx950"
.text
"""
    desc = f""".section .rodata,"a"
.p2align 6
.amdhsa_kernel {KNAME}
  .amdhsa_next_free_vgpr {NV}
  .amdhsa_next_free_sgpr 102
  .amdhsa_accum_offset {(NV+3)//4*4}
  .amdhsa_group_segment_fixed_size 0
  .amdhsa_kernarg_size 72
  .amdhsa_user_sgpr_count 2
  .amdhsa_user_sgpr_kernarg_segment_ptr 1
  .amdhsa_system_sgpr_workgroup_id_x 1
.end_amdhsa_kernel
"""
    open(path, "w").write(hdr + o.text() + desc)

if __name__ == "__main__":
    if "--stamp" in sys.argv:
        sys.argv.remove("--stamp")
        STAMP = True
    for a in list(sys.argv):
        if a.startswith("--steps="):
            sys.argv.remove(a)
            STEPS = a[8:].split(",")
        if a.startswith("--poll="):
            sys.argv.remove(a)
            STEP_FLAG = int(a[7:])
        if a.startswith("--prio="):
            sys.argv.remove(a)
            PRIO = [int(x) for x in a[7:].split(",")]
        if a.startswith("--kmax="):
            sys.argv.remove(a)
            KMAX = int(a[7:])
        if a.startswith("--opt="):
            sys.argv.remove(a)
            OPT |= set(a[6:].split(","))
    main(sys.argv[1] if len(sys.argv) > 1 else "gather_scatter__mpnn_edge_mlp__graph.s")
```

```python
import sys

N = 10000
WS_WPACK = 0x500000
WS_OVFC = 0x560000
WS_OVF = 0x570000
WS_FLAG = 0x6E0000
WS_CELL = 0x700000
WS_END = 0xB00000
WS_STAMP = 0xC00000
CHUNK = 2500
CAP = 28
NEGL2E = 0xBFB8AA3B
NEGLN2 = 0xBF317218
KNAME = "gather_scatter__mpnn_edge_mlp__graph_kernel"
STAMP = False
STEP_FLAG = 14
STEPS = ["s-1", "pst", "drain", "cell"]
OPT = {"ostage", "o_sc1"}

class Asm:
    def __init__(self):
        self.l = []
    def __call__(self, s):
        for line in s.strip("\n").split("\n"):
            line = line.strip()
            if line:
                self.l.append(line if line.endswith(":") else "    " + line)
    def text(self):
        l = self.l
        def sub(a_lab, b_lab, pref):
            a = l.index(a_lab); b = l.index(b_lab)
            return l[:a] + [("    s_nop 0" if any(x.strip().startswith(p) for p in pref) else x) for x in l[a:b]] + l[b:]
        if "gplain" in OPT:
            l = [x.replace(" sc1", "") if "s[16:19], 0 offen" in x else x for x in l]
        if "gnt" in OPT:
            l = [x + " nt" if "s[16:19], 0 offen" in x else x for x in l]
        if "noprio" in OPT:
            l = [x for x in l if "s_setprio" not in x]
        if "noloop_ld" in OPT: l = sub("L_top:", "L_call0:", ["buffer_load"])
        return "\n".join(l) + "\n"

def vr(a, n):
    return f"v[{a}:{a+n-1}]" if n > 1 else f"v{a}"

def srd(o, d, lo, hi, size):
    o(f"s_mov_b32 s{d}, s{lo}\ns_mov_b32 s{d+1}, s{hi}\ns_mov_b32 s{d+2}, {size}\ns_mov_b32 s{d+3}, 0x20000")

def stamp(o, i):
    if STAMP:
        if "clk2" in OPT:
            if i in (1, 2):
                o(f"s_memrealtime s[{80+2*i}:{81+2*i}]\ns_memtime s[{84+2*i}:{85+2*i}]\ns_waitcnt lgkmcnt(0)")
            elif i not in (3, 4):
                o(f"s_memrealtime s[{80+2*i}:{81+2*i}]\ns_waitcnt lgkmcnt(0)")
            return
        o(f"s_memrealtime s[{80+2*i}:{81+2*i}]\ns_waitcnt lgkmcnt(0)")

R = 6
KMAX = 24
PRIO = [4, 3, 2]
RS = 1040
L_QS = 0
L_AGB = (48 * RS + 511) // 512 * 512
L_HB = L_AGB + 48 * 512
L_IDX = L_HB + 16 * 1024
L_ET = L_IDX + 2064 * 4
L_CNT = (L_ET + 2052 * 16 + 255) // 256 * 256
L_HF = L_CNT + 256
L_XS = (L_HF + 256 + 511) // 512 * 512
L_END = L_XS + 48 * 512
L_IMG = 65536
L_BCNT = 131072
L_PST = L_HB
L_PK = 3 * 32768
L_ALLOC = L_END
assert L_BCNT + 1100 <= L_CNT and L_END <= 163840
RING = 4
A0, A1, Q, T0, T1, E, NN, D, AC, UA = 28, 32, 36, 40, 44, 48, 52, 56, 60, 64
VOVF, VB, IX, AD, LO, VI, VE, VN, VC, VEND, VEL = 76, 78, 79, 80, 81, 82, 83, 84, 85, 86, 126
TMP = 87
W = 94
NV = 127
PA, QA, VXA, VWA, VWS, VTG, W3, TG0, ZR = UA, 48, AD, 36, 38, 76, 62, 60, 44
XFB, WFB = [W, W + 20], [W + 12, 40]
VWB = VE
TAG = 92
sWAVE, sN0, sCNT, sHEAD, sIT, sW1, sCH = 3, 4, 5, 6, 7, 26, 27
sP, sP1, sREM, sSEGE, sSEGS, sNEND, sK, sTOT, sRND, sOB, sOC, sOFF = range(48, 60)
sV0, sV1, sOM, sRET, sSO, sM, sONE, sSC = 60, 62, 64, 66, 68, 70, 72, 74
sM0, sLD = 69, 16
sT0, sT1, sT2, sBND = 76, 77, 78, 79
sLN2 = 44
REC, RK0, RK1 = 40, 4, 5
CK = TMP + 1

def valu_block(T):
    ex = "\n".join(f"v_exp_f32 v{E+i}, v{T+i}" for i in range(4))
    pk = f"""
v_pk_fma_f32 {vr(NN,2)}, {vr(NN,2)}, {vr(E,2)}, {vr(NN,2)}
v_pk_fma_f32 {vr(NN+2,2)}, {vr(NN+2,2)}, {vr(E+2,2)}, {vr(NN+2,2)}
v_pk_fma_f32 {vr(NN,2)}, {vr(T,2)}, {vr(D,2)}, {vr(NN,2)}
v_pk_fma_f32 {vr(NN+2,2)}, {vr(T+2,2)}, {vr(D+2,2)}, {vr(NN+2,2)}
v_pk_fma_f32 {vr(D,2)}, {vr(D,2)}, {vr(E,2)}, {vr(D,2)}
v_pk_fma_f32 {vr(D+2,2)}, {vr(D+2,2)}, {vr(E+2,2)}, {vr(D+2,2)}
"""
    return ex, pk

def poll(o, tag, soff, count):
    o(f"""
v_lshlrev_b32 v{TMP}, 7, v1
s_mov_b32 s{sT1}, 0
s_mov_b64 exec, {"-1" if count == 64 else hex((1 << count) - 1)}
F_pl{tag}:
buffer_load_dwordx2 {vr(TMP+1,2)}, v{TMP}, s[32:35], {soff} offen sc1
s_add_u32 s{sT1}, s{sT1}, 1
s_waitcnt vmcnt(0)
v_cmpx_ne_u64 vcc, s[100:101], {vr(TMP+1,2)}
s_nop 4
s_cbranch_execz F_pd{tag}
s_sleep 2
s_cmp_lt_u32 s{sT1}, 0x10000
s_cbranch_scc1 F_pl{tag}
F_pd{tag}:
s_mov_b64 exec, -1
""")

def get_tag(o, tag):
    o(f"""
s_mov_b32 s{sT1}, 0
F_tg{tag}:
v_readfirstlane_b32 s100, v{TAG}
v_readfirstlane_b32 s101, v{TAG+1}
s_add_u32 s{sT1}, s{sT1}, 1
s_cmp_ge_u32 s{sT1}, 0x10000
s_cbranch_scc1 F_th{tag}
s_cmp_lg_u32 s100, 0
s_cbranch_scc1 F_th{tag}
buffer_load_dwordx2 {vr(TAG,2)}, v{VTG}, s[96:99], 0 offen sc1
s_waitcnt vmcnt(0)
s_branch F_tg{tag}
F_th{tag}:
""")

def put_flag(o, soff):
    o(f"""
v_mov_b32 v{TMP+1}, s100
v_mov_b32 v{TMP+2}, s101
s_mov_b64 exec, 1
buffer_store_dwordx2 {vr(TMP+1,2)}, v{VTG}, s[32:35], {soff} offen sc1
s_mov_b64 exec, -1
""")

def sort_rank(o):
    o(f"""
s_mov_b32 s{sT0}, {L_CNT}
v_mov_b32 v{TMP+4}, 0xfc
v_mov_b32 v{TMP+3}, 1
v_and_or_b32 v{TMP}, v{REC}, v{TMP+4}, s{sT0}
v_and_or_b32 v{TMP+1}, v{REC+2}, v{TMP+4}, s{sT0}
s_mov_b64 exec, s[{sV0}:{sV0+1}]
ds_add_rtn_u32 v{RK0}, v{TMP}, v{TMP+3}
s_mov_b64 exec, s[{sV1}:{sV1+1}]
ds_add_rtn_u32 v{RK1}, v{TMP+1}, v{TMP+3}
s_mov_b64 exec, -1
v_add_u32 v{TMP+4}, s{sT0}, v{LO}
""")

def sort_scatter(o):
    o(f"""
ds_read_b32 v{TMP+2}, v{TMP+4}
v_and_b32 v{REC}, 0x7ffe00, v{REC}
v_and_b32 v{REC+2}, 0x7ffe00, v{REC+2}
s_mov_b32 s{sT0}, {L_IDX}
s_mov_b32 s{sT1}, {L_ET}
s_waitcnt lgkmcnt(0)
v_add_u32_dpp v{VEND}, v{TMP+2}, v{TMP+2} row_shr:1 row_mask:0xf bank_mask:0xf bound_ctrl:0
s_nop 1
v_add_u32_dpp v{VEND}, v{VEND}, v{VEND} row_shr:2 row_mask:0xf bank_mask:0xf bound_ctrl:0
s_nop 1
v_add_u32_dpp v{VEND}, v{VEND}, v{VEND} row_shr:4 row_mask:0xf bank_mask:0xf bound_ctrl:0
s_nop 1
v_add_u32_dpp v{VEND}, v{VEND}, v{VEND} row_shr:8 row_mask:0xf bank_mask:0xf bound_ctrl:0
s_nop 1
v_add_u32_dpp v{VEND}, v{VEND}, v{VEND} row_bcast:15 row_mask:0xa bank_mask:0xf
s_nop 1
v_add_u32_dpp v{VEND}, v{VEND}, v{VEND} row_bcast:31 row_mask:0xc bank_mask:0xf
v_sub_u32 v{TMP+3}, v{VEND}, v{TMP+2}
v_readlane_b32 s{sTOT}, v{VEND}, 63
ds_bpermute_b32 v{TMP}, v{TMP}, v{TMP+3}
ds_bpermute_b32 v{TMP+1}, v{TMP+1}, v{TMP+3}
s_nop 1
s_add_u32 s{sCH}, s{sTOT}, 15
s_lshr_b32 s{sCH}, s{sCH}, 4
s_mul_i32 s{sP}, s{sCH}, s{sWAVE}
s_add_u32 s{sP1}, s{sP}, s{sCH}
s_min_u32 s{sP}, s{sP}, s{sTOT}
s_min_u32 s{sP1}, s{sP1}, s{sTOT}
s_waitcnt lgkmcnt(0)
v_add_u32 v{TMP}, v{TMP}, v{RK0}
v_add_u32 v{TMP+1}, v{TMP+1}, v{RK1}
v_lshl_add_u32 v{TMP+2}, v{TMP}, 2, s{sT0}
v_lshl_add_u32 v{TMP+3}, v{TMP+1}, 2, s{sT0}
v_lshl_add_u32 v{TMP}, v{TMP}, 4, s{sT1}
v_lshl_add_u32 v{TMP+1}, v{TMP+1}, 4, s{sT1}
s_mov_b64 exec, s[{sV0}:{sV0+1}]
ds_write_b32 v{TMP+2}, v{REC}
ds_write_b16 v{TMP}, v{REC+1} offset:8
ds_write_b16 v{TMP}, v{REC+1} offset:14
s_mov_b64 exec, s[{sV1}:{sV1+1}]
ds_write_b32 v{TMP+3}, v{REC+2}
ds_write_b16 v{TMP+1}, v{REC+3} offset:8
ds_write_b16 v{TMP+1}, v{REC+3} offset:14
s_mov_b64 exec, -1
""")

def zero_cnt(o):
    o(f"v_mov_b32 v{TMP}, 0\nds_write_b32 v{TMP+4}, v{TMP}")

def prime(o):
    PT = T0
    o(f"""
s_lshl_b32 s{sT0}, s{sP}, 2
s_add_u32 s{sT0}, s{sT0}, {L_IDX}
v_mov_b32 v{VI}, s{sT0}
s_lshl_b32 s{sT0}, s{sP}, 4
v_add_u32 v{VE}, s{sT0}, v{VEL}
""")
    for k in range(0, R, 2):
        o(f"ds_read2_b32 {vr(PT+k,2)}, v{VI} offset0:{k} offset1:{k+1}")
    o(f"""
ds_read_b32 v{IX}, v{VI} offset:{4*R}
ds_read2_b32 {vr(A0+2,2)}, v{VE} offset0:0 offset1:2
ds_read2_b32 {vr(A1+2,2)}, v{VE} offset0:4 offset1:6
s_waitcnt lgkmcnt(0)
""")
    for k in range(R):
        B = RING + 4*k
        o(f"buffer_load_dword v{B}, v{PT+k}, s[16:19], 0 offen sc1")
        o(f"buffer_load_dword v{B+1}, v{PT+k}, s[16:19], 0 offen offset:256 sc1")

def wloads(o, mat, wreg, kss=range(8), sa=sT0, sb=sT1, va=TMP+5, setup=True):
    if not setup:
        for ks in kss:
            o(f"buffer_load_dwordx4 {vr(wreg+4*ks,4)}, v{va}, s[32:35], s{sa if ks < 4 else sb} offen offset:{(ks%4)*1024} sc1")
        return
    o(f"""
s_lshl_b32 s{sT0}, s{sWAVE}, 13
s_add_u32 s{sT0}, s{sT0}, {WS_WPACK + mat*131072}
s_add_u32 s{sT1}, s{sT0}, 4096
v_lshlrev_b32 v{TMP+5}, 4, v1
""")
    for ks in range(8):
        o(f"buffer_load_dwordx4 {vr(wreg+4*ks,4)}, v{TMP+5}, s[32:35], s{sT0 if ks < 4 else sT1} offen offset:{(ks%4)*1024} sc1")

DST, SRC, EA, OWN, RK, R0 = 8, 12, 16, 20, 24, 28
EW = [EA, 18, EA + 1, 19]
sBM = 58
def bin_rank(o):
    o(f"v_mov_b32 v{TMP+3}, 1\ns_mov_b64 exec, s[{sBM}:{sBM+1}]")
    for k in range(4):
        o(f"""
v_mul_u32_u24 v{OWN+k}, s56, v{DST+k}
v_lshrrev_b32 v{OWN+k}, 24, v{OWN+k}
v_lshl_add_u32 v{TMP+4}, v{OWN+k}, 2, s60
ds_add_rtn_u32 v{RK+k}, v{TMP+4}, v{TMP+3}
""")
    for k in range(4):
        o(f"""
v_mad_u32_u24 v{TMP+1}, v{OWN+k}, s57, 15
v_lshrrev_b32 v{TMP+1}, 4, v{TMP+1}
v_sub_u32 v{DST+k}, v{DST+k}, v{TMP+1}
v_lshl_add_u32 v{R0+k}, v{SRC+k}, 7, v{DST+k}
v_lshlrev_b32 v{R0+k}, 2, v{R0+k}
v_lshl_add_u32 v{DST+k}, v{OWN+k}, 8, s61
""")
    o(f"""
v_lshrrev_b32 v18, 16, v{EA}
v_lshrrev_b32 v19, 16, v{EA+1}
s_waitcnt lgkmcnt(0)
v_max3_u32 v{TMP}, v{RK}, v{RK+1}, v{RK+2}
v_max_u32 v{TMP}, v{TMP}, v{RK+3}
v_cmp_le_u32 vcc, {CAP}, v{TMP}
""")
    for k in range(4):
        o(f"""
v_mul_u32_u24 v{SRC+k}, 37, v{RK+k}
v_lshrrev_b32 v{SRC+k}, 8, v{SRC+k}
v_add_u32 v{SRC+k}, v{SRC+k}, v{RK+k}
v_lshl_add_u32 v{DST+k}, v{SRC+k}, 3, v{DST+k}
""")
    o("s_cbranch_vccnz F_ovf")
    for k in range(4):
        o(f"ds_write2_b32 v{DST+k}, v{R0+k}, v{EW[k]} offset0:2 offset1:3")
    o("F_ovfback:\ns_mov_b64 exec, -1")

def bin_overflow(o):
    o(f"F_ovf:\ns_mul_i32 s50, s2, {CHUNK*8}\ns_add_u32 s50, s50, {WS_OVF}\nv_mov_b32 v{TMP}, {L_BCNT+1024}")
    for k in range(4):
        o(f"""
v_cmp_gt_u32 vcc, {CAP}, v{RK+k}
s_and_saveexec_b64 s[62:63], vcc
ds_write2_b32 v{DST+k}, v{R0+k}, v{EW[k]} offset0:2 offset1:3
s_andn2_b64 exec, s[62:63], exec
s_cbranch_execz F_no{k}
ds_add_rtn_u32 v{TMP+4}, v{TMP}, v{TMP+3}
v_mov_b32 v{TMP+1}, v{R0+k}
v_and_b32 v{TMP+2}, 0xffff, v{EW[k]}
v_lshl_or_b32 v{TMP+2}, v{OWN+k}, 16, v{TMP+2}
s_waitcnt lgkmcnt(0)
v_lshlrev_b32 v{TMP+4}, 3, v{TMP+4}
buffer_store_dwordx2 {vr(TMP+1,2)}, v{TMP+4}, s[32:35], s50 offen sc1
s_waitcnt vmcnt(0)
F_no{k}:
s_mov_b64 exec, s[62:63]
""")
    o("s_branch F_ovfback")

def bin_copy(o):
    o(f"""
v_lshrrev_b32 v24, 3, v0
v_and_b32 v25, 7, v0
v_lshlrev_b32 v25, 4, v25
v_lshl_add_u32 v26, v24, 8, v25
v_lshl_add_u32 v27, v24, 14, v25
v_add_u32 v26, s61, v26
v_lshl_add_u32 v24, v24, 2, s60
ds_read2st64_b32 v[28:29], v24 offset0:0 offset1:2
ds_read_b128 v[8:11], v26
ds_read_b128 v[12:15], v26 offset:32768
ds_read_b128 v[16:19], v26 offset:128
ds_read_b128 v[20:23], v26 offset:{32768+128}
v_mov_b32 v30, {L_BCNT+1024}
ds_read_b32 v30, v30
v_and_b32 v25, 48, v25
v_cmp_eq_u32 s[{sBM}:{sBM+1}], 0, v25
s_lshl_b32 s49, s2, 8
s_add_u32 s49, s49, {WS_CELL}
s_add_u32 s50, s49, {128*16384}
v_mov_b32 v25, 0x7f000000
v_mov_b32 v31, s100
s_waitcnt lgkmcnt(5)
v_cmp_lt_u32 vcc, 14, v28
v_min_u32 v28, {CAP}, v28
v_cmp_lt_u32 s[62:63], 14, v29
v_min_u32 v29, {CAP}, v29
v_cndmask_b32 v24, v25, v27, vcc
v_cndmask_b32 v25, v25, v27, s[62:63]
s_waitcnt lgkmcnt(4)
v_cndmask_b32 v8, v8, v28, s[{sBM}:{sBM+1}]
v_cndmask_b32 v9, v9, v31, s[{sBM}:{sBM+1}]
buffer_store_dwordx4 v[8:11], v27, s[32:35], s49 offen sc1
s_waitcnt lgkmcnt(3)
v_cndmask_b32 v12, v12, v29, s[{sBM}:{sBM+1}]
v_cndmask_b32 v13, v13, v31, s[{sBM}:{sBM+1}]
buffer_store_dwordx4 v[12:15], v27, s[32:35], s50 offen sc1
s_waitcnt lgkmcnt(2)
v_cndmask_b32 v17, v17, v31, s[{sBM}:{sBM+1}]
buffer_store_dwordx4 v[16:19], v24, s[32:35], s49 offen offset:128 sc1
s_waitcnt lgkmcnt(1)
v_cndmask_b32 v21, v21, v31, s[{sBM}:{sBM+1}]
buffer_store_dwordx4 v[20:23], v25, s[32:35], s50 offen offset:128 sc1
s_cmp_lg_u32 s{sWAVE}, 0
s_cbranch_scc1 F_bc1
s_lshl_b32 s50, s2, 3
s_add_u32 s50, s50, {WS_OVFC}
s_mov_b64 exec, 1
s_waitcnt lgkmcnt(0)
buffer_store_dwordx2 v[30:31], v{VTG}, s[32:35], s50 offen sc1
s_mov_b64 exec, -1
F_bc1:
""")

def gen(o):
    XNT = "" if "nont" in OPT else "nt"
    AA = [A0, A1]
    TT = [T0, T1]
    o(f"""
.globl {KNAME}
.p2align 8
.type {KNAME},@function
{KNAME}:
s_cmp_ge_u32 s2, 256
s_cbranch_scc1 L_end
s_load_dwordx2 s[28:29], s[0:1], 0
s_load_dwordx2 s[44:45], s[0:1], 32
s_load_dwordx2 s[36:37], s[0:1], 24
s_load_dwordx2 s[12:13], s[0:1], 16
s_load_dwordx2 s[52:53], s[0:1], 8
s_load_dwordx2 s[40:41], s[0:1], 40
s_load_dwordx2 s[32:33], s[0:1], 64
s_load_dwordx2 s[96:97], s[0:1], 56
s_load_dwordx2 s[20:21], s[0:1], 48
s_memrealtime s[100:101]
""")
    if STAMP: o("s_memrealtime s[80:81]")
    o(f"""
v_lshrrev_b32 v2, 6, v0
v_and_b32 v1, 63, v0
s_mul_i32 s{sN0}, s2, 625
v_readfirstlane_b32 s{sWAVE}, v2
v_lshrrev_b32 v4, 5, v1
v_and_b32 v6, 31, v1
s_add_u32 s{sCNT}, s{sN0}, 640
s_add_u32 s{sN0}, s{sN0}, 15
s_lshr_b32 s{sN0}, s{sN0}, 4
s_lshl_b32 s50, s{sWAVE}, 1
v_add_u32 v5, s50, v4
v_lshlrev_b32 v2, 4, v0
v_and_b32 v7, 15, v5
v_xor_b32 v7, v7, v6
v_lshlrev_b32 v7, 4, v7
v_lshl_add_u32 v7, v4, 9, v7
s_mov_b32 s30, {N*512}
s_mov_b32 s31, 0x20000
s_mov_b32 s46, {513*512}
s_mov_b32 s47, 0x20000
s_mov_b32 s42, {512*512}
s_mov_b32 s43, 0x20000
s_mov_b32 s38, 640000
s_mov_b32 s39, 0x20000
s_mov_b32 s14, 640000
s_mov_b32 s15, 0x20000
s_mov_b32 s54, 320000
s_mov_b32 s55, 0x20000
s_lshl_b32 s{sSO}, s{sWAVE}, 10
s_lshl_b32 s51, s{sN0}, 9
s_add_u32 s51, s51, s{sSO}
v_and_b32 v{TMP}, 3, v5
v_bfe_u32 v{TMP+1}, v5, 3, 1
v_lshl_or_b32 v{TMP}, v{TMP+1}, 2, v{TMP}
v_lshlrev_b32 v{TMP}, 1, v{TMP}
v_xor_b32 v{TMP}, v{TMP}, v6
v_lshlrev_b32 v{TMP}, 4, v{TMP}
v_lshl_add_u32 v{VWS}, v4, 9, v{TMP}
v_lshlrev_b32 v{LO}, 2, v1
s_sub_u32 s48, s2, 64
v_mov_b32 v{VTG}, 0
s_mov_b32 s98, 256
s_mov_b32 s99, 0x20000
s_lshl_b32 s49, s2, 4
s_add_u32 s49, s49, s{sWAVE}
s_cmp_ge_u32 s2, 64
s_cbranch_scc1 F_nobl
s_mul_i32 s49, s2, 10000
s_mul_i32 s50, s2, 5000
v_lshlrev_b32 v{TMP}, 3, v0
v_lshlrev_b32 v6, 2, v0
v_add_u32 v6, {L_BCNT}, v6
s_cmp_ge_u32 s{sWAVE}, 5
s_cbranch_scc1 F_nbz
ds_write_b32 v6, v{VTG}
F_nbz:
s_waitcnt lgkmcnt(0)
buffer_load_dwordx4 {vr(DST,4)}, v2, s[36:39], s49 offen {XNT}
buffer_load_dwordx4 {vr(SRC,4)}, v2, s[12:15], s49 offen {XNT}
buffer_load_dwordx2 {vr(EA,2)}, v{TMP}, s[52:55], s50 offen {XNT}
s_barrier
s_branch F_x
F_nobl:
s_waitcnt lgkmcnt(0)
s_cmp_lg_u32 s49, 0xff0
s_cbranch_scc1 F_nont
s_or_b32 s49, s100, 1
v_mov_b32 v4, s49
v_mov_b32 v5, s101
s_mov_b64 exec, 1
buffer_store_dwordx2 v[4:5], v{VTG}, s[96:99], 0 offen sc1
s_mov_b64 exec, -1
F_nont:
s_cmp_ge_u32 s48, 16
s_cbranch_scc1 F_npd
s_lshl_b32 s49, s48, 14
s_add_u32 m0, s{sSO}, {L_PK}
s_add_u32 s49, s49, s{sSO}
buffer_load_dwordx4 v{VWS}, s[40:43], s49 offen lds
F_npd:
""")
    ops = []
    def vm(target):
        return len(ops) - 1 - max(i for i, x in enumerate(ops) if x == target)
    def dma(s, count=True):
        for m in range(2):
            o(f"""
s_add_u32 m0, s{sSO}, {(s & 3) * 32768 + m*16384}
s_add_u32 s{sM0}, s{sSO}, {m*131072 + s*16384}
buffer_load_dwordx4 v{VWS}, s[44:47], s{sM0} offen lds
""")
        if count:
            ops.extend([("d", s)] * 2)
    o(f"""
F_x:
s_add_u32 m0, s{sSO}, {L_XS}
s_cmp_ge_u32 s{sWAVE}, 4
buffer_load_dwordx4 v7, s[28:31], s51 offen {XNT} lds
s_cbranch_scc1 F_nox2
s_add_u32 m0, s{sSO}, {L_XS + 16384}
s_add_u32 s50, s51, 16384
buffer_load_dwordx4 v7, s[28:31], s50 offen {XNT} lds
F_nox2:
s_sub_u32 s50, s{sWAVE}, 6
s_cmp_ge_u32 s50, 2
s_cbranch_scc1 F_ntc
s_lshr_b32 s49, s2, 3
s_lshl_b32 s49, s49, 13
s_lshl_b32 s50, s50, 12
s_add_u32 s49, s49, s50
v_lshlrev_b32 v5, 6, v1
buffer_load_dword v77, v5, s[44:47], s49 offen
F_ntc:
""")
    dma(0)
    o("s_cmp_lt_u32 s2, 64\ns_cbranch_scc1 F_nl0\ns_barrier")
    dma(1)
    o(f"""
F_nl0:
s_mov_b32 s50, {512*512}
buffer_load_dword v{W3}, v{LO}, s[44:47], s50 offen
buffer_load_dword v{W3+1}, v{LO}, s[44:47], s50 offen offset:256
s_mov_b32 s34, {WS_END}
s_mov_b32 s35, 0x20000
s_lshr_b32 s{sCNT}, s{sCNT}, 4
s_sub_u32 s{sCNT}, s{sCNT}, s{sN0}
v_lshlrev_b32 v{VC}, 3, v1
v_lshrrev_b32 v3, 4, v1
v_and_b32 v4, 15, v1
v_xor_b32 v{VXA}, v4, v3
v_lshlrev_b32 v{VXA}, 4, v{VXA}
v_lshl_add_u32 v{VXA}, v4, 9, v{VXA}
v_add_u32 v{VXA}, {L_XS}, v{VXA}
v_bfe_u32 v5, v1, 2, 2
v_and_b32 v6, 3, v1
v_lshl_add_u32 v{VWA}, v3, 3, v5
v_lshlrev_b32 v{VWA}, 9, v{VWA}
v_lshl_add_u32 v{VWA}, v6, 3, v{VWA}
v_and_b32 v6, 1, v3
v_lshl_or_b32 v6, v6, 2, v5
v_xor_b32 v6, s{sWAVE}, v6
v_lshl_add_u32 v{VWA}, v6, 5, v{VWA}
v_add_u32 v{VWB}, 0x10000, v{VWA}
v_add_u32 v{TMP+4}, {L_CNT}, v{LO}
ds_write2st64_b32 v{TMP+4}, v{VTG}, v{VTG} offset0:0 offset1:1
s_mov_b32 s{sSC}, {NEGL2E:#x}
s_mov_b32 s{sSC+1}, {NEGL2E:#x}
s_cmp_ge_u32 s2, 64
s_cbranch_scc1 F_nbr
s_movk_i32 s57, 625
v_cmp_gt_u32 s[{sBM}:{sBM+1}], s57, v0
s_mov_b32 s56, 429497
s_mov_b32 s60, {L_BCNT}
s_mov_b32 s61, {L_IMG}
buffer_load_dwordx2 {vr(TAG,2)}, v{VTG}, s[96:99], 0 offen sc1
s_waitcnt vmcnt(6)
""")
    st0 = lambda name: stamp(o, (1, 2, 3, 4, 6)[STEPS.index(name)]) if name in STEPS else None
    st0("edge")
    bin_rank(o)
    dma(1, False)
    o("s_waitcnt vmcnt(2) lgkmcnt(0)\ns_barrier")
    get_tag(o, "b")
    bin_copy(o)
    o("F_nbr:")
    st0("copy")
    ops += ["w3", "w3"]
    def st(name):
        if name in STEPS: stamp(o, (1, 2, 3, 4, 6)[STEPS.index(name)])
    def reads(s):
        l = []
        a = VXA
        if s:
            a = TMP + 6
            o(f"v_xor_b32 v{a}, {64*s}, v{VXA}")
        xf, wf = XFB[s & 1], WFB[s & 1]
        wa = VWA if (s & 3) < 2 else VWB
        for rt in range(3):
            l.append(f"ds_read_b128 {vr(xf+4*rt,4)}, v{a} offset:{rt*8192}")
        for m in range(2):
            off = (s & 1) * 32768 + m * 16384
            l.append(f"ds_read_b64_tr_b16 {vr(wf+4*m,2)}, v{wa} offset:{off}\nds_read_b64_tr_b16 {vr(wf+4*m+2,2)}, v{wa} offset:{off + 2048}")
        return l
    SCHED = {-1: [2], 0: [3, 4], 1: [5], 2: [6], 3: [7]}
    for s in range(-1, 8):
        if s < 7:
            n = vm(("d", s + 1))
            if s <= 1:
                nb = {-1: 6, 0: 7, 1: 4}[s]
                npk = n + (1 if s >= 0 else 0)
                o(f"""
s_cmp_lt_u32 s2, 64
s_cbranch_scc0 F_wb{s+1}
s_waitcnt vmcnt({nb})
s_branch F_wc{s+1}
F_wb{s+1}:
s_waitcnt vmcnt({npk})
s_cmp_lt_u32 s48, 16
s_cbranch_scc1 F_wc{s+1}
s_waitcnt vmcnt({n})
F_wc{s+1}:
s_waitcnt lgkmcnt(0)
s_barrier
""")
            else:
                o(f"s_waitcnt vmcnt({n}) lgkmcnt(0)\ns_barrier")
        else:
            o("s_waitcnt lgkmcnt(0)\ns_barrier")
        st(f"s{s}")
        if s == -1:
            o(f"buffer_load_dwordx2 {vr(TG0,2)}, v{VTG}, s[96:99], 0 offen sc1")
            ops.append("tag")
        rd = reads(s + 1) if s < 7 else []
        mm = []
        if s >= 0:
            for m, acc in enumerate((PA, QA)):
                for rt in range(3):
                    c = "0" if s == 0 else vr(acc+4*rt, 4)
                    mm.append(f"v_mfma_f32_16x16x32_bf16 {vr(acc+4*rt,4)}, {vr(WFB[s&1]+4*m,4)}, {vr(XFB[s&1]+4*rt,4)}, {c}")
        if s == 7:
            late, mm = mm[3:], mm[:3]
        while rd or mm:
            if mm: o(mm.pop(0))
            if rd: o(rd.pop(0))
        for t in SCHED.get(s, []):
            dma(t)
        if s == -1:
            o(f"""
s_cmp_ge_u32 s48, 16
s_cbranch_scc1 F_d0
ds_read_b64_tr_b16 v[4:5], v{VWB} offset:32768
ds_read_b64_tr_b16 v[6:7], v{VWB} offset:{32768+2048}
s_lshl_b32 s50, s{sWAVE}, 13
s_and_b32 s49, s48, 7
s_lshl_b32 s49, s49, 10
s_add_u32 s50, s50, s49
s_lshr_b32 s49, s48, 3
s_lshl_b32 s49, s49, 17
s_add_u32 s50, s50, s49
s_add_u32 s50, s50, {WS_WPACK}
v_lshlrev_b32 v12, 4, v1
s_waitcnt lgkmcnt(0)
buffer_store_dwordx4 v[4:7], v12, s[32:35], s50 offen sc1
F_d0:
""")
        if s == 0:
            o(f"""
v_and_b32 v{TMP+1}, 15, v1
v_lshrrev_b32 v{TMP}, 1, v3
s_lshl_b32 s{sT1}, s{sWAVE}, 1
v_or_b32 v{TMP}, s{sT1}, v{TMP}
v_xor_b32 v{TMP}, v{TMP}, v{TMP+1}
v_lshlrev_b32 v{TMP}, 4, v{TMP}
v_lshl_add_u32 v{VN}, v{TMP+1}, 9, v{TMP}
v_and_b32 v{TMP}, 1, v3
v_lshl_add_u32 v{VN}, v{TMP}, 3, v{VN}
v_add_u32 v{VN}, {L_PST}, v{VN}
v_lshrrev_b32 v{VB}, 5, v0
v_add_u32 v{TMP}, 32, v{VB}
v_cmp_gt_u32 vcc, s{sCNT}, v{TMP}
v_lshlrev_b32 v{VB}, 4, v{VB}
v_xor_b32 v{VB}, v{VB}, v2
v_add_u32 v{VB}, {L_PST}, v{VB}
v_add_u32 v{VI}, 0x4000, v2
v_mov_b32 v{TMP}, 0x7ffffff0
v_cndmask_b32 v{VI}, v{TMP}, v{VI}, vcc
s_mov_b64 s[8:9], s[32:33]
s_mov_b32 s10, {N*512}
s_mov_b32 s11, 0x20000
""")
        if s == 0 and "direct" in OPT:
            o(f"""
v_lshlrev_b32 v{VN}, 9, v{TMP+1}
v_lshl_add_u32 v{VN}, v3, 3, v{VN}
s_lshl_b32 s{sT1}, s{sWAVE}, 5
v_add_u32 v{VN}, s{sT1}, v{VN}
v_add_u32 v{TMP}, 32, v{TMP+1}
v_cmp_gt_u32 vcc, s{sCNT}, v{TMP}
v_add_u32 v{VI}, 0x4000, v{VN}
v_mov_b32 v{TMP}, 0x7ffffff0
s_nop 0
v_cndmask_b32 v{VI}, v{TMP}, v{VI}, vcc
""")
        if s == 2:
            assert ops.index("tag") < ops.index(("d", 3))
            o(f"s_cmp_ge_u32 s48, 16\ns_cbranch_scc1 F_d5\ns_cmp_lg_u32 s{sWAVE}, 0\ns_cbranch_scc1 F_d5\nv_mov_b64 {vr(TAG,2)}, {vr(TG0,2)}")
            get_tag(o, "p")
            o(f"s_lshl_b32 s{sT0}, s48, 7\ns_add_u32 s{sT0}, s{sT0}, {WS_FLAG + 256*128}")
            put_flag(o, f"s{sT0}")
            o("F_d5:")
    o(f"s_lshl_b32 s{sT2}, s{sN0}, 9\ns_add_u32 s{sT1}, s{sT2}, 8192\ns_nop 3")
    if "direct" in OPT:
        for rt in range(3):
            a_ = PA + 4*rt
            o(f"""
v_pk_mul_f32 {vr(a_,2)}, {vr(a_,2)}, s[{sSC}:{sSC+1}]
v_pk_mul_f32 {vr(a_+2,2)}, {vr(a_+2,2)}, s[{sSC}:{sSC+1}]
v_cvt_pk_bf16_f32 v{W+2*rt}, v{a_}, v{a_+1}
v_cvt_pk_bf16_f32 v{W+2*rt+1}, v{a_+2}, v{a_+3}
buffer_store_dwordx2 {vr(W+2*rt,2)}, v{VN if rt < 2 else VI}, s[8:11], s{sT1 if rt == 1 else sT2} offen sc1
""")
        o("\n".join(late))
        o("s_barrier")
    else:
        for rt in range(3):
            a_ = PA + 4*rt
            o(f"""
v_pk_mul_f32 {vr(a_,2)}, {vr(a_,2)}, s[{sSC}:{sSC+1}]
v_pk_mul_f32 {vr(a_+2,2)}, {vr(a_+2,2)}, s[{sSC}:{sSC+1}]
v_cvt_pk_bf16_f32 v{W+2*rt}, v{a_}, v{a_+1}
v_cvt_pk_bf16_f32 v{W+2*rt+1}, v{a_+2}, v{a_+3}
ds_write_b64 v{VN}, {vr(W+2*rt,2)} offset:{rt*8192}
""")
        o("\n".join(late))
        o(f"""
s_cmp_lt_u32 s{sWAVE}, 8
s_waitcnt lgkmcnt(0)
s_barrier
s_cbranch_scc0 F_nps
ds_read_b128 {vr(W,4)}, v{VB}
ds_read_b128 {vr(W+4,4)}, v{VB} offset:8192
ds_read_b128 {vr(W+8,4)}, v{VB} offset:16384
s_waitcnt lgkmcnt(2)
buffer_store_dwordx4 {vr(W,4)}, v2, s[8:11], s{sT2} offen sc1
s_waitcnt lgkmcnt(1)
buffer_store_dwordx4 {vr(W+4,4)}, v2, s[8:11], s{sT1} offen sc1
s_waitcnt lgkmcnt(0)
buffer_store_dwordx4 {vr(W+8,4)}, v{VI}, s[8:11], s{sT2} offen sc1
F_nps:
s_barrier
""")

    st("pst")
    o(f"""
s_lshl_b32 s{sOFF}, s2, 14
s_add_u32 s{sOFF}, s{sOFF}, {WS_CELL}
buffer_load_dwordx4 {vr(REC,4)}, v2, s[32:35], s{sOFF} offen sc1
v_mov_b64 {vr(TAG,2)}, {vr(TG0,2)}
""")
    get_tag(o, "m")
    o(f"s_cmp_lg_u32 s{sWAVE}, 15\ns_cbranch_scc1 F_npk\ns_mov_b32 s{sT0}, {WS_FLAG + 256*128}")
    poll(o, "k", f"s{sT0}", 16)
    o("F_npk:")
    o(f"s_mov_b32 s{sT2}, 0\ns_waitcnt vmcnt(1)\ns_barrier")
    st("drain")
    o(f"s_cmp_lg_u32 s{sWAVE}, 0\ns_cbranch_scc1 F_nfp\ns_lshl_b32 s{sT0}, s2, 7\ns_add_u32 s{sT0}, s{sT0}, {WS_FLAG}")
    put_flag(o, f"s{sT0}")
    o(f"""
F_nfp:
s_lshl_b32 s12, s{sWAVE}, 13
s_add_u32 s12, s12, {WS_WPACK}
s_add_u32 s13, s12, 4096
v_lshlrev_b32 v{VE}, 4, v1
""")
    wl = lambda kss: wloads(o, 0, W, kss, 12, 13, VE, False)
    wl((0, 1))
    o(f"""
v_mov_b64 {vr(ZR,2)}, 0
v_mov_b64 {vr(ZR+2,2)}, 0
v_add_u32 v{VB}, {L_AGB}, v2
v_add_u32 v{VI}, {L_ET}, v2
ds_write_b128 v{VB}, {vr(ZR,4)}
ds_write_b128 v{VB}, {vr(ZR,4)} offset:4096
v_add_u32 v{VB}, {L_IDX}, v2
ds_write_b128 v{VB}, {vr(ZR,4)}
ds_write_b128 v{VI}, {vr(ZR,4)}
ds_write_b128 v{VI}, {vr(ZR,4)} offset:16384
ds_write_b128 v{VI}, {vr(ZR,4)} offset:16448
""")
    o(f"""
v_lshlrev_b32 v{TMP}, 16, v{W3}
v_and_b32 v{TMP+1}, 0xffff0000, v{W3}
v_lshlrev_b32 v{TMP+2}, 16, v{W3+1}
v_and_b32 v{TMP+3}, 0xffff0000, v{W3+1}
v_mul_f32 v{TMP}, s{sSC}, v{TMP}
v_mul_f32 v{TMP+1}, s{sSC}, v{TMP+1}
v_mul_f32 v{TMP+2}, s{sSC}, v{TMP+2}
v_mul_f32 v{TMP+3}, s{sSC}, v{TMP+3}
v_cvt_pk_bf16_f32 v6, v{TMP}, v{TMP+1}
v_cvt_pk_bf16_f32 v7, v{TMP+2}, v{TMP+3}
""")
    for k in range(1, R):
        o(f"v_mov_b64 {vr(RING+4*k+2,2)}, v[6:7]")
    o(f"""
v_and_b32 v{TMP}, 3, v1
v_bfe_u32 v{TMP+1}, v1, 2, 2
v_cmp_eq_u32 vcc, v{TMP+1}, v3
v_and_b32 v{TMP+2}, 1, v1
v_lshlrev_b32 v{TMP+2}, 4, v{TMP+2}
v_mov_b32 v{TMP+3}, 0x3f80
v_lshlrev_b32 v{TMP+3}, v{TMP+2}, v{TMP+3}
v_cndmask_b32 v{TMP+3}, 0, v{TMP+3}, vcc
v_xor_b32 v{VEL}, 2, v{TMP}
v_lshlrev_b32 v{VEL}, 2, v{VEL}
v_add_u32 v{VEL}, {L_ET}, v{VEL}
v_mov_b32 v{TMP+2}, 0x30000
v_cndmask_b32 v{VEL}, v{TMP+2}, v{VEL}, vcc
v_cmp_gt_u32 vcc, 2, v{TMP}
s_mov_b32 s{sONE}, 1.0
s_mov_b32 s{sONE+1}, 1.0
v_cndmask_b32 v{A0}, 0, v{TMP+3}, vcc
v_cndmask_b32_e64 v{A0+1}, v{TMP+3}, 0, vcc
v_mov_b64 {vr(A1,2)}, {vr(A0,2)}
""")
    o(f"""
s_mov_b32 s{sBND}, 0x7b800000
s_mov_b32 s{sW1}, 0
s_mov_b32 s{sRND}, 0
s_mov_b64 s[40:41], s[20:21]
s_mov_b32 s42, {N*512}
s_mov_b32 s16, s32
s_or_b32 s17, s33, 0x40000
s_mov_b32 s18, {N*512}
s_mov_b32 s19, 0x800000
s_movk_i32 s{sT0}, {RS}
v_and_b32 v{IX}, 15, v1
v_mul_u32_u24 v{IX}, s{sT0}, v{IX}
v_lshl_add_u32 v{IX}, v3, 4, v{IX}
s_lshl_b32 s{sT0}, s{sWAVE}, 6
v_add_u32 v{IX}, s{sT0}, v{IX}
v_bfe_u32 v{RK0}, v0, 2, 2
v_mul_u32_u24 v{RK0}, 7, v{RK0}
v_and_b32 v{TMP}, 3, v0
v_lshl_add_u32 v{RK1}, v{TMP}, 1, v{RK0}
v_cmp_eq_u32 vcc, 0, v{TMP}
v_add_u32 v8, -1, v{RK1}
v_mov_b32 v9, 64
v_cndmask_b32 v8, v8, v9, vcc
""")
    for rt in range(3):
        o(f"""
v_pk_mul_f32 {vr(QA+4*rt,2)}, {vr(QA+4*rt,2)}, s[{sSC}:{sSC+1}]
v_pk_mul_f32 {vr(QA+4*rt+2,2)}, {vr(QA+4*rt+2,2)}, s[{sSC}:{sSC+1}]
ds_write_b128 v{IX}, {vr(QA+4*rt,4)} offset:{L_QS + rt*16*RS}
""")
    wl((2, 3))
    st("q")
    o(f"""
s_waitcnt vmcnt(4)
F_cl:
v_mov_b32_dpp v{TMP}, v{REC+1} row_newbcast:0 row_mask:0xf bank_mask:0xf
v_mov_b32_dpp v{TMP+1}, v{REC} row_newbcast:0 row_mask:0xf bank_mask:0xf
v_mov_b32_dpp v{TMP+2}, v{REC+1} quad_perm:[0,0,0,0] row_mask:0xf bank_mask:0xf
v_cmp_eq_u32 vcc, s100, v{TMP}
v_cmp_ne_u32 s[{sM}:{sM+1}], s100, v{TMP+2}
s_add_u32 s{sT2}, s{sT2}, 1
v_cndmask_b32 v{TMP+1}, 0, v{TMP+1}, vcc
v_max_u32 v{TMP+3}, 1, v{TMP+1}
v_cmp_lt_u32 vcc, v{RK0}, v{TMP+3}
s_cmp_ge_u32 s{sT2}, 0x10000
s_cbranch_scc1 F_cd
s_and_b64 exec, vcc, s[{sM}:{sM+1}]
s_cbranch_execz F_cd
s_sleep 1
buffer_load_dwordx4 {vr(REC,4)}, v2, s[32:35], s{sOFF} offen sc1
s_mov_b64 exec, -1
s_waitcnt vmcnt(0)
s_branch F_cl
F_cd:
s_mov_b64 exec, -1
v_cmp_gt_u32 s[{sV0}:{sV0+1}], v{TMP+1}, v8
v_cmp_gt_u32 s[{sV1}:{sV1+1}], v{TMP+1}, v{RK1}
""")
    st("cell")
    sort_rank(o)
    wl((4, 5))
    o("s_waitcnt lgkmcnt(0)\ns_barrier")
    sort_scatter(o)
    o(f"""
s_lshl_b32 s{sOC}, s{sWAVE}, 13
s_add_u32 s{sOC}, s{sOC}, {WS_FLAG}
v_lshlrev_b32 v{TMP}, 7, v1
""")
    o(f"""
s_cmp_ge_u32 s{sWAVE}, 4
s_cbranch_scc1 F_np1
buffer_load_dwordx2 {vr(TMP+1,2)}, v{TMP}, s[32:35], s{sOC} offen sc1
F_np1:
""")
    st("u")
    o(f"""
s_cmp_ge_u32 s{sWAVE}, 4
s_cbranch_scc1 F_npp
s_mov_b32 s{sT1}, 0
s_waitcnt vmcnt(0)
F_plp:
v_cmpx_ne_u64 vcc, s[100:101], {vr(TMP+1,2)}
s_add_u32 s{sT1}, s{sT1}, 1
s_nop 3
s_cbranch_execz F_pdp
s_cmp_ge_u32 s{sT1}, 0x10000
s_cbranch_scc1 F_pdp
buffer_load_dwordx2 {vr(TMP+1,2)}, v{TMP}, s[32:35], s{sOC} offen sc1
s_waitcnt vmcnt(0)
s_branch F_plp
F_pdp:
s_mov_b64 exec, -1
""")
    o(f"""
F_npp:
""")
    wl((6, 7))
    o(f"""
s_mov_b32 s{sT0}, {WS_OVFC}
buffer_load_dwordx2 {vr(VOVF,2)}, v{VC}, s[32:35], s{sT0} offen sc1
s_waitcnt lgkmcnt(0)
s_barrier
L_pr:
""")
    st("b3")
    zero_cnt(o)
    prime(o)
    o(f"""
s_cmp_lg_u32 s{sRND}, 0
s_cbranch_scc1 L_go
s_call_b64 s[{sRET}:{sRET+1}], L_ugemm
L_go:
""")
    st("go")
    stamp(o, 5)
    o(f"""
s_mov_b64 vcc, 0
s_mov_b32 s{sK}, {KMAX}
s_add_u32 s{sRND}, s{sRND}, 1
s_cmp_ge_u32 s{sP}, s{sP1}
s_cbranch_scc1 L_loopdone
v_cmp_eq_u32 s[{sM}:{sM+1}], s{sP}, v{VEND}
s_sub_u32 s{sIT}, s{sP1}, s{sP}
s_add_u32 s{sIT}, s{sIT}, {R-1}
s_mul_i32 s{sIT}, s{sIT}, 171
s_lshr_b32 s{sIT}, s{sIT}, 10
s_cmp_eq_u32 s{sP}, 0
s_cselect_b32 s{sT2}, 1, 0
s_cmp_lg_u64 s[{sM}:{sM+1}], 0
s_cselect_b32 s{sT2}, 1, s{sT2}
s_xor_b32 s{sHEAD}, s{sT2}, 1
s_call_b64 s[{sRET}:{sRET+1}], L_newnode
s_setprio 3
s_waitcnt vmcnt({2*(R-1)}) lgkmcnt(0)
v_mfma_f32_16x16x32_bf16 {vr(T0,4)}, {vr(A0,4)}, {vr(RING,4)}, {vr(Q,4)}
s_nop 5
L_top:
""")
    for k in range(R):
        B = RING + 4*k
        B1 = RING + 4*((k+1) % R)
        ex, pk = valu_block(TT[k & 1])
        o(f"""
s_waitcnt vmcnt({2*(R-2)}) lgkmcnt(0)
v_mfma_f32_16x16x32_bf16 {vr(TT[(k+1)&1],4)}, {vr(AA[(k+1)&1],4)}, {vr(B1,4)}, {vr(Q,4)}
{ex}
buffer_load_dword v{B}, v{IX}, s[16:19], 0 offen sc1
buffer_load_dword v{B+1}, v{IX}, s[16:19], 0 offen offset:256 sc1
ds_read_b32 v{IX}, v{VI} offset:{4*(k+R+1)}
ds_read2_b32 {vr(AA[k&1]+2,2)}, v{VE} offset0:{4*(k+2)} offset1:{4*(k+2)+2}
{pk}
s_sub_u32 s{sREM}, s{sREM}, 1
s_cbranch_scc1 L_call{k}
L_next{k}:
""")
    o(f"""
v_add_u32 v{VI}, {4*R}, v{VI}
v_add_u32 v{VE}, {16*R}, v{VE}
s_sub_u32 s{sIT}, s{sIT}, 1
s_cmp_ge_u32 s{sIT}, {PRIO[0]}
s_cbranch_scc1 L_top
s_setprio 2
s_cmp_ge_u32 s{sIT}, {PRIO[1]}
s_cbranch_scc1 L_top
s_setprio 1
s_cmp_ge_u32 s{sIT}, {PRIO[2]}
s_cbranch_scc1 L_top
s_setprio 0
{"" if "overrun" in OPT else f"v_mov_b32 v{VI}, {L_CNT}"}
s_branch L_top
""")
    for k in range(R):
        B1 = RING + 4*((k+1) % R)
        o(f"""
L_call{k}:
s_call_b64 s[{sRET}:{sRET+1}], L_flush
s_cbranch_scc0 L_special
s_waitcnt lgkmcnt(0)
v_mfma_f32_16x16x32_bf16 {vr(TT[(k+1)&1],4)}, {vr(AA[(k+1)&1],4)}, {vr(B1,4)}, {vr(Q,4)}
s_nop 4
s_branch L_next{k}
""")
    o(f"""
L_flush:
v_rcp_f32 v{E}, v{D}
v_rcp_f32 v{E+1}, v{D+1}
v_rcp_f32 v{E+2}, v{D+2}
v_rcp_f32 v{E+3}, v{D+3}
s_mov_b32 s{sP}, s{sSEGE}
s_cbranch_vccnz L_nochk
v_pk_fma_f32 {vr(CK,2)}, {vr(NN,2)}, 0, {vr(D,2)}
v_pk_fma_f32 {vr(CK+2,2)}, {vr(NN+2,2)}, 0, {vr(D+2,2)}
v_pk_add_f32 {vr(CK,2)}, {vr(CK,2)}, {vr(CK+2,2)}
v_add_f32 v{CK}, v{CK}, v{CK+1}
v_cmp_nle_f32 s[{sM}:{sM+1}], v{CK}, s{sBND}
s_nop 3
s_cmp_eq_u64 s[{sM}:{sM+1}], 0
s_cbranch_scc1 L_nochk
s_mov_b32 s{sP}, s{sSEGS}
s_setpc_b64 s[{sRET}:{sRET+1}]
L_nochk:
v_pk_fma_f32 {vr(AC,2)}, {vr(NN,2)}, {vr(E,2)}, {vr(AC,2)}
v_pk_fma_f32 {vr(AC+2,2)}, {vr(NN+2,2)}, {vr(E+2,2)}, {vr(AC+2,2)}
s_cmp_lg_u32 s{sW1}, 0
s_cbranch_scc1 L_havew
s_mov_b32 s{sW1}, 1
""")
    wloads(o, 1, W)
    o(f"""
L_havew:
s_cmp_eq_u32 s{sP}, s{sNEND}
s_cbranch_scc1 L_fin
s_cmp_lg_u32 s{sP}, s{sP1}
s_cbranch_scc1 L_reinit
s_cmp_lg_u32 s{sHEAD}, 0
s_cbranch_scc1 L_pub
s_mov_b32 s{sT0}, s{sWAVE}
s_mov_b32 s{sT1}, s{sP1}
L_col:
s_add_u32 s{sT0}, s{sT0}, 1
s_lshl_b32 s{sT2}, s{sT0}, 2
s_add_u32 s{sT2}, s{sT2}, {L_HF}
v_mov_b32 v{CK}, s{sT2}
L_poll:
ds_read_b32 v{CK+1}, v{CK}
s_waitcnt lgkmcnt(0)
v_readfirstlane_b32 s{sT2}, v{CK+1}
s_nop 3
s_cmp_eq_u32 s{sT2}, s{sRND}
s_cbranch_scc1 L_got
s_sleep 1
s_branch L_poll
L_got:
s_lshl_b32 s{sT2}, s{sT0}, 10
s_add_u32 s{sT2}, s{sT2}, {L_HB}
v_add_u32 v{CK}, s{sT2}, v{VC}
ds_read2st64_b64 {vr(E,4)}, v{CK} offset0:0 offset1:1
s_add_u32 s{sT1}, s{sT1}, s{sCH}
s_waitcnt lgkmcnt(0)
v_pk_add_f32 {vr(AC,2)}, {vr(AC,2)}, {vr(E,2)}
v_pk_add_f32 {vr(AC+2,2)}, {vr(AC+2,2)}, {vr(E+2,2)}
s_cmp_lt_u32 s{sT1}, s{sNEND}
s_cbranch_scc1 L_col
s_branch L_wr
L_fin:
s_cmp_lg_u32 s{sHEAD}, 0
s_cbranch_scc1 L_pub
L_wr:
v_cvt_pk_bf16_f32 v{E}, v{AC}, v{AC+1}
v_cvt_pk_bf16_f32 v{E+1}, v{AC+2}, v{AC+3}
ds_write2st64_b32 v{VB}, v{E}, v{E+1} offset0:0 offset1:1
L_more:
s_mov_b32 s{sHEAD}, 0
s_cmp_lg_u32 s{sP}, s{sP1}
s_cbranch_scc1 L_newnode
s_setpc_b64 s[{sRET}:{sRET+1}]
L_pub:
s_lshl_b32 s{sT2}, s{sWAVE}, 10
s_add_u32 s{sT2}, s{sT2}, {L_HB}
v_add_u32 v{CK}, s{sT2}, v{VC}
s_lshl_b32 s{sT2}, s{sWAVE}, 2
s_add_u32 s{sT2}, s{sT2}, {L_HF}
v_mov_b32 v{CK+1}, s{sT2}
v_mov_b32 v{CK+2}, s{sRND}
ds_write2st64_b64 v{CK}, {vr(AC,2)}, {vr(AC+2,2)} offset0:0 offset1:1
s_waitcnt lgkmcnt(0)
ds_write_b32 v{CK+1}, v{CK+2}
s_branch L_more
L_old:
s_cmp_lg_u32 s{sHEAD}, 0
s_cbranch_scc1 L_reinit
ds_read2st64_b32 {vr(E,2)}, v{VB} offset0:0 offset1:1
s_waitcnt lgkmcnt(0)
v_lshlrev_b32 v{AC}, 16, v{E}
v_and_b32 v{AC+1}, 0xffff0000, v{E}
v_lshlrev_b32 v{AC+2}, 16, v{E+1}
v_and_b32 v{AC+3}, 0xffff0000, v{E+1}
s_branch L_reinit
L_newnode:
v_cmp_ge_u32 s[{sM}:{sM+1}], s{sP}, v{VEND}
v_mov_b64 {vr(AC,2)}, 0
v_mov_b64 {vr(AC+2,2)}, 0
s_nop 1
s_bcnt1_i32_b64 s{sT0}, s[{sM}:{sM+1}]
s_mul_i32 s{sT1}, s{sT0}, {RS}
v_readlane_b32 s{sNEND}, v{VEND}, s{sT0}
v_add_u32 v{VN}, s{sT1}, v{VC}
ds_read2st64_b64 {vr(Q,4)}, v{VN} offset0:0 offset1:1
s_and_b32 s{sT1}, s{sT0}, 15
s_lshl_b32 s{sT1}, s{sT1}, 4
s_lshl_b32 s{sT0}, s{sT0}, 9
s_or_b32 s{sT0}, s{sT0}, s{sT1}
s_add_u32 s{sT0}, s{sT0}, {L_AGB}
v_xor_b32 v{VB}, s{sT0}, v{LO}
s_cmp_lg_u32 s{sRND}, 1
s_cbranch_scc1 L_old
L_reinit:
v_mov_b64 {vr(NN,2)}, 0
v_mov_b64 {vr(NN+2,2)}, 0
v_mov_b64 {vr(D,2)}, s[{sONE}:{sONE+1}]
v_mov_b64 {vr(D+2,2)}, s[{sONE}:{sONE+1}]
s_mov_b32 s{sSEGS}, s{sP}
s_add_u32 s{sSEGE}, s{sP}, s{sK}
s_min_u32 s{sSEGE}, s{sSEGE}, s{sNEND}
s_min_u32 s{sSEGE}, s{sSEGE}, s{sP1}
s_sub_u32 s{sREM}, s{sSEGE}, s{sP}
s_sub_u32 s{sREM}, s{sREM}, 1
s_cmp_eq_u32 s{sP}, s{sP}
s_setpc_b64 s[{sRET}:{sRET+1}]
L_special:
s_cmp_eq_u32 s{sP}, s{sP1}
s_cbranch_scc1 L_loopdone
s_mov_b64 vcc, -1
s_mov_b32 s{sK}, 1
s_waitcnt vmcnt(0) lgkmcnt(0)
s_call_b64 s[{sRET}:{sRET+1}], L_reinit
L_slow:
s_lshl_b32 s{sT0}, s{sP}, 2
s_add_u32 s{sT0}, s{sT0}, {L_IDX}
v_mov_b32 v{VI}, s{sT0}
s_lshl_b32 s{sT0}, s{sP}, 4
v_add_u32 v{VE}, s{sT0}, v{VEL}
ds_read_b32 v{IX}, v{VI}
ds_read2_b32 {vr(A0+2,2)}, v{VE} offset0:0 offset1:2
s_waitcnt lgkmcnt(0)
buffer_load_dword v{RING}, v{IX}, s[16:19], 0 offen sc1
buffer_load_dword v{RING+1}, v{IX}, s[16:19], 0 offen offset:256 sc1
s_waitcnt vmcnt(0)
v_mfma_f32_16x16x32_bf16 {vr(T0,4)}, {vr(A0,4)}, {vr(RING,4)}, {vr(Q,4)}
s_nop 7
v_min_f32 v{T0}, 0x42fc0000, v{T0}
v_min_f32 v{T0+1}, 0x42fc0000, v{T0+1}
v_min_f32 v{T0+2}, 0x42fc0000, v{T0+2}
v_min_f32 v{T0+3}, 0x42fc0000, v{T0+3}
{valu_block(T0)[0]}
{valu_block(T0)[1]}
s_call_b64 s[{sRET}:{sRET+1}], L_flush
s_cbranch_scc1 L_slow
L_loopdone:
""")
    st("le")
    if len(STEPS) < 5: stamp(o, 6)
    o(f"""
s_setprio 0
s_cmp_lg_u32 s{sW1}, 0
s_cbranch_scc1 L_ld2
s_mov_b32 s{sW1}, 1
""")
    wloads(o, 1, W)
    o(f"""
L_ld2:
s_cmp_lg_u32 s{sRND}, 1
s_cbranch_scc1 L_rn0
s_mov_b32 s{sOB}, 0
s_mov_b32 s{sT0}, {WS_OVFC}
L_ov:
s_waitcnt vmcnt(0)
v_cmp_ne_u32 vcc, s100, v{VOVF+1}
v_cmp_ne_u32 s[{sOM}:{sOM+1}], 0, v{VOVF}
s_add_u32 s{sOB}, s{sOB}, 1
s_cmp_ge_u32 s{sOB}, 0x10000
s_cbranch_scc1 L_ovd
s_nop 0
s_cbranch_vccz L_ovd
buffer_load_dwordx2 {vr(VOVF,2)}, v{VC}, s[32:35], s{sT0} offen sc1
s_branch L_ov
L_ovd:
s_mov_b32 s{sOB}, 0
L_rn0:
v_and_b32 v{TMP}, 15, v1
v_xor_b32 v{TMP+1}, v{TMP}, v3
v_lshlrev_b32 v{TMP+1}, 4, v{TMP+1}
v_lshl_add_u32 v{TMP+1}, v{TMP}, 9, v{TMP+1}
s_waitcnt vmcnt(0)
s_cmp_eq_u64 s[{sOM}:{sOM+1}], 0
s_cbranch_scc0 L_round
""")
    o(f"v_add_u32 v4, {L_AGB}, v{TMP+1}")
    for ks in range(1, 8):
        o(f"v_xor_b32 v{4+ks}, {64*ks}, v4")
    o(f"""
v_add_u32 v{TMP+2}, s{sN0}, v{TMP}
v_lshlrev_b32 v{TMP+2}, 9, v{TMP+2}
v_lshl_add_u32 v{TMP+2}, v3, 3, v{TMP+2}
s_lshl_b32 s{sT0}, s{sWAVE}, 5
s_add_u32 s{sT1}, s{sT0}, 8192
s_add_u32 s{sT2}, s{sT0}, 16384
s_sub_u32 s{sCNT}, s{sCNT}, 32
v_cmp_gt_u32 s[{sM}:{sM+1}], s{sCNT}, v{TMP}
v_mov_b32 v12, s{sSC}
""")
    if "ostage" in OPT:
        o(f"""
v_lshrrev_b32 v13, 1, v3
s_lshl_b32 s{sT1}, s{sWAVE}, 1
v_or_b32 v13, s{sT1}, v13
v_xor_b32 v13, v13, v{TMP}
v_lshlrev_b32 v13, 4, v13
v_lshl_add_u32 v13, v{TMP}, 9, v13
v_and_b32 v14, 1, v3
v_lshl_add_u32 v13, v14, 3, v13
v_lshrrev_b32 v14, 5, v0
v_cmp_gt_u32 vcc, s{sCNT}, v14
v_and_b32 v14, 15, v14
v_lshlrev_b32 v14, 4, v14
v_xor_b32 v14, v14, v2
v_add_u32 v15, 0x4000, v2
v_mov_b32 v16, 0x7ffffff0
s_lshl_b32 s{sT0}, s{sN0}, 9
v_cndmask_b32 v15, v16, v15, vcc
""")
    o("s_waitcnt lgkmcnt(0)\ns_barrier")
    st("fb")
    OSF = "sc1" if "o_sc1" in OPT else "nt" if "o_nt" in OPT else "sc1 nt" if "o_sc1nt" in OPT else ""
    FB = [T0, T1, E, NN]
    def rd(i):
        o(f"ds_read_b128 {vr(FB[i % 4],4)}, v{4 + (i & 7)} offset:{(i >> 3)*8192}")
    def silu(rt):
        a, t = UA + 4*rt, D
        l = [f"v_exp_f32 v{t+i}, v{a+i}" for i in range(4)]
        l += [f"v_fma_f32 v{t+i}, v{t+i}, v12, v12" for i in range(4)]
        l += [f"v_rcp_f32 v{t+i}, v{t+i}" for i in range(4)]
        l += [f"v_mul_f32 v{a+i}, v{a+i}, v{t+i}" for i in range(4)]
        l += [f"v_cvt_pk_bf16_f32 v{a}, v{a}, v{a+1}", f"v_cvt_pk_bf16_f32 v{a+1}, v{a+2}, v{a+3}"]
        if "ostage" in OPT:
            l.append(f"ds_write_b64 v13, {vr(a,2)} offset:{rt*8192}")
            return l
        if rt == 2:
            l.append(f"s_mov_b64 exec, s[{sM}:{sM+1}]")
        l.append(f"buffer_store_dwordx2 {vr(a,2)}, v{TMP+2}, s[40:43], s{[sT0,sT1,sT2][rt]} offen {OSF}")
        return l
    for i in range(3):
        rd(i)
    pend = []
    for i in range(24):
        rt, ks = i >> 3, i & 7
        if i + 3 < 24:
            rd(i + 3)
        o(f"s_waitcnt lgkmcnt({min(3, 23 - i)})")
        o(f"v_mfma_f32_16x16x32_bf16 {vr(UA+4*rt,4)}, {vr(W+4*ks,4)}, {vr(FB[i % 4],4)}, {vr(UA+4*rt,4)}")
        if ks == 2 and rt > 0:
            pend = silu(rt - 1)
        n = 4 if ks < 7 else len(pend)
        o("\n".join(pend[:n]))
        pend = pend[n:]
    o("s_nop 7")
    st("fg")
    o("\n".join(silu(2)))
    if "ostage" in OPT:
        o(f"""
s_waitcnt lgkmcnt(0)
s_barrier
ds_read_b128 v[16:19], v14
ds_read_b128 v[20:23], v14 offset:16384
s_waitcnt lgkmcnt(1)
buffer_store_dwordx4 v[16:19], v2, s[40:43], s{sT0} offen {OSF}
s_cmp_ge_u32 s{sWAVE}, 4
s_cbranch_scc1 L_os
s_waitcnt lgkmcnt(0)
buffer_store_dwordx4 v[20:23], v15, s[40:43], s{sT0} offen {OSF}
L_os:
""")
    st("fs")
    if STAMP:
        o(f"""
s_waitcnt vmcnt(0)
s_memrealtime s[94:95]
s_mov_b64 exec, 1
s_lshl_b32 s26, s2, 4
s_add_u32 s26, s26, s{sWAVE}
s_lshl_b32 s26, s26, 5
s_add_u32 s26, s26, {WS_STAMP + 0x100000}
s_mov_b32 s34, 0x1000000
v_mov_b32 v0, 0
s_waitcnt lgkmcnt(0)
""")
        xd = next((x for x in OPT if x.startswith("xdel")), None)
        if xd:
            k = int(xd[4:])
            sel = "s_cmp_lt_u32 s2, 64\ns_cselect_b32 s26, 0, s26" if "xrest" in OPT else ""
            o(f"""
s_sub_u32 s26, s{80+2*k}, s80
{sel}
s_mul_i32 s26, s26, 10
s_add_u32 s26, s26, s94
X_spin:
s_memrealtime s[92:93]
s_waitcnt lgkmcnt(0)
s_sub_u32 s27, s92, s26
s_cmp_lt_i32 s27, 0
s_cbranch_scc1 X_spin
s_endpgm
""")
        for i in range(8):
            o(f"v_mov_b32 v{4+i}, s{80+2*i}")
        if "dbgst" in OPT:
            o("v_not_b32 v12, v4\nv_not_b32 v13, v9\nv_not_b32 v14, v5\nv_not_b32 v15, v10")
            for i in range(12):
                o(f"buffer_atomic_umax v{4+i}, v0, s[96:99], 0 offen offset:{8+4*i} sc1")
        else:
            o("buffer_store_dwordx4 v[4:7], v0, s[32:35], s26 offen\nbuffer_store_dwordx4 v[8:11], v0, s[32:35], s26 offen offset:16")
    o(f"""
L_end:
s_endpgm
L_round:
s_waitcnt lgkmcnt(0)
s_barrier
s_ff1_i32_b64 s{sT0}, s[{sOM}:{sOM+1}]
s_mul_i32 s{sT1}, s{sT0}, {CHUNK*8}
v_readlane_b32 s{sOC}, v{VOVF}, s{sT0}
s_lshl_b32 s{sT2}, s{sOB}, 3
s_add_u32 s{sT1}, s{sT1}, s{sT2}
s_add_u32 s{sT1}, s{sT1}, {WS_OVF}
buffer_load_dwordx4 {vr(REC,4)}, v2, s[32:35], s{sT1} offen sc1
v_lshlrev_b32 v{TMP}, 1, v0
v_add_u32 v{TMP}, s{sOB}, v{TMP}
v_add_u32 v{TMP+1}, 1, v{TMP}
v_cmp_gt_u32 s[{sV0}:{sV0+1}], s{sOC}, v{TMP}
v_cmp_gt_u32 s[{sV1}:{sV1+1}], s{sOC}, v{TMP+1}
s_add_u32 s{sOB}, s{sOB}, 2048
s_cmp_lt_u32 s{sOB}, s{sOC}
s_cbranch_scc1 L_rn2
s_bitset0_b64 s[{sOM}:{sOM+1}], s{sT0}
s_mov_b32 s{sOB}, 0
L_rn2:
s_waitcnt vmcnt(0)
v_lshrrev_b32 v{TMP}, 16, v{REC+1}
v_lshrrev_b32 v{TMP+1}, 16, v{REC+3}
v_cmp_eq_u32 s[{sM}:{sM+1}], s2, v{TMP}
s_nop 3
s_and_b64 s[{sV0}:{sV0+1}], s[{sV0}:{sV0+1}], s[{sM}:{sM+1}]
v_cmp_eq_u32 s[{sM}:{sM+1}], s2, v{TMP+1}
s_nop 3
s_and_b64 s[{sV1}:{sV1+1}], s[{sV1}:{sV1+1}], s[{sM}:{sM+1}]
""")
    sort_rank(o)
    o("s_waitcnt lgkmcnt(0)\ns_barrier")
    sort_scatter(o)
    o("s_waitcnt lgkmcnt(0)\ns_barrier")
    o("s_branch L_pr\nL_ugemm:")
    XB = [QA, QA + 4, QA + 8, W3 - 2]
    seq = [(ks, rt) for ks in range(8) for rt in range(3)]
    def urd(i):
        ks, rt = seq[i]
        if rt == 0 and ks:
            o(f"v_xor_b32 v{TMP+6}, {64*ks}, v{VXA}")
        o(f"ds_read_b128 {vr(XB[i % 4],4)}, v{TMP+6 if ks else VXA} offset:{rt*8192}")
    for i in range(3):
        urd(i)
    for i, (ks, rt) in enumerate(seq):
        if i + 3 < 24:
            urd(i + 3)
        if rt == 0:
            o(f"s_waitcnt vmcnt({7-ks+1+2*R})")
        o(f"s_waitcnt lgkmcnt({min(3, 23 - i)})")
        c = "0" if ks == 0 else vr(UA+4*rt, 4)
        o(f"v_mfma_f32_16x16x32_bf16 {vr(UA+4*rt,4)}, {vr(W+4*ks,4)}, {vr(XB[i % 4],4)}, {c}")
    o("s_nop 5")
    for h in range(6):
        o(f"v_pk_mul_f32 {vr(UA+2*h,2)}, {vr(UA+2*h,2)}, s[{sSC}:{sSC+1}]")
    if "w2early" in OPT:
        o(f"s_mov_b32 s{sW1}, 1")
        wloads(o, 1, W)
    o(f"s_setpc_b64 s[{sRET}:{sRET+1}]")
    bin_overflow(o)

def main(path):
    o = Asm()
    gen(o)
    hdr = f"""; MPNN edge-MLP + segment sum + node update in one launch (256 co-resident workgroups, one per CU).
; Phase B (after tagged-flag hand-off): per-edge SiLU accumulation over gathered P rows, update GEMM + SiLU.
; @launch grid=(256,1,1) block=(1024,1,1) lds={L_ALLOC}
.amdgcn_target "amdgcn-amd-amdhsa--gfx950"
.text
"""
    desc = f""".section .rodata,"a"
.p2align 6
.amdhsa_kernel {KNAME}
  .amdhsa_next_free_vgpr {NV}
  .amdhsa_next_free_sgpr 102
  .amdhsa_accum_offset {(NV+3)//4*4}
  .amdhsa_group_segment_fixed_size 0
  .amdhsa_kernarg_size 72
  .amdhsa_user_sgpr_count 2
  .amdhsa_user_sgpr_kernarg_segment_ptr 1
  .amdhsa_system_sgpr_workgroup_id_x 1
.end_amdhsa_kernel
"""
    open(path, "w").write(hdr + o.text() + desc)

if __name__ == "__main__":
    if "--stamp" in sys.argv:
        sys.argv.remove("--stamp")
        STAMP = True
    for a in list(sys.argv):
        if a.startswith("--steps="):
            sys.argv.remove(a)
            STEPS = a[8:].split(",")
        if a.startswith("--poll="):
            sys.argv.remove(a)
            STEP_FLAG = int(a[7:])
        if a.startswith("--prio="):
            sys.argv.remove(a)
            PRIO = [int(x) for x in a[7:].split(",")]
        if a.startswith("--kmax="):
            sys.argv.remove(a)
            KMAX = int(a[7:])
        if a.startswith("--opt="):
            sys.argv.remove(a)
            OPT |= set(a[6:].split(","))
    main(sys.argv[1] if len(sys.argv) > 1 else "gather_scatter__mpnn_edge_mlp__graph.s")
```

```python
import sys

N = 10000
WS_WPACK = 0x500000
WS_OVFC = 0x560000
WS_OVF = 0x570000
WS_FLAG = 0x6E0000
WS_CELL = 0x700000
WS_END = 0xB00000
WS_STAMP = 0xC00000
CHUNK = 2500
CAP = 28
NEGL2E = 0xBFB8AA3B
NEGLN2 = 0xBF317218
KNAME = "gather_scatter__mpnn_edge_mlp__graph_kernel"
STAMP = False
WSOFF = 0
STEP_FLAG = 14
STEPS = ["s-1", "pst", "drain", "cell"]
OPT = {"ostage", "o_sc1"}

class Asm:
    def __init__(self):
        self.l = []
    def __call__(self, s):
        for line in s.strip("\n").split("\n"):
            line = line.strip()
            if line:
                self.l.append(line if line.endswith(":") else "    " + line)
    def text(self):
        l = self.l
        def sub(a_lab, b_lab, pref):
            a = l.index(a_lab); b = l.index(b_lab)
            return l[:a] + [("    s_nop 0" if any(x.strip().startswith(p) for p in pref) else x) for x in l[a:b]] + l[b:]
        if "gplain" in OPT:
            l = [x.replace(" sc1", "") if "s[16:19], 0 offen" in x else x for x in l]
        if "gnt" in OPT:
            l = [x + " nt" if "s[16:19], 0 offen" in x else x for x in l]
        if "noprio" in OPT:
            l = [x for x in l if "s_setprio" not in x]
        if "noloop_ld" in OPT: l = sub("L_top:", "L_call0:", ["buffer_load"])
        return "\n".join(l) + "\n"

def vr(a, n):
    return f"v[{a}:{a+n-1}]" if n > 1 else f"v{a}"

def srd(o, d, lo, hi, size):
    o(f"s_mov_b32 s{d}, s{lo}\ns_mov_b32 s{d+1}, s{hi}\ns_mov_b32 s{d+2}, {size}\ns_mov_b32 s{d+3}, 0x20000")

def stamp(o, i):
    if STAMP:
        if "clk2" in OPT:
            if i in (1, 2):
                o(f"s_memrealtime s[{80+2*i}:{81+2*i}]\ns_memtime s[{84+2*i}:{85+2*i}]\ns_waitcnt lgkmcnt(0)")
            elif i not in (3, 4):
                o(f"s_memrealtime s[{80+2*i}:{81+2*i}]\ns_waitcnt lgkmcnt(0)")
            return
        o(f"s_memrealtime s[{80+2*i}:{81+2*i}]\ns_waitcnt lgkmcnt(0)")

R = 6
KMAX = 24
PRIO = [4, 3, 2]
RS = 1040
L_QS = 0
L_AGB = (48 * RS + 511) // 512 * 512
L_HB = L_AGB + 48 * 512
L_IDX = L_HB + 16 * 1024
L_ET = L_IDX + 2064 * 4
L_CNT = (L_ET + 2052 * 16 + 255) // 256 * 256
L_HF = L_CNT + 256
L_XS = (L_HF + 256 + 511) // 512 * 512
L_END = L_XS + 48 * 512
L_IMG = 65536
L_BCNT = 131072
L_PST = L_HB
L_PK = 3 * 32768
L_ALLOC = L_END
assert L_BCNT + 1100 <= L_CNT and L_END <= 163840
RING = 4
A0, A1, Q, T0, T1, E, NN, D, AC, UA = 28, 32, 36, 40, 44, 48, 52, 56, 60, 64
VOVF, VB, IX, AD, LO, VI, VE, VN, VC, VEND, VEL = 76, 78, 79, 80, 81, 82, 83, 84, 85, 86, 126
TMP = 87
W = 94
NV = 127
PA, QA, VXA, VWA, VWS, VTG, W3, TG0, ZR = UA, 48, AD, 36, 38, 76, 62, 60, 44
XFB, WFB = [W, W + 20], [W + 12, 40]
VWB = VE
TAG = 92
sWAVE, sN0, sCNT, sHEAD, sIT, sW1, sCH = 3, 4, 5, 6, 7, 26, 27
sP, sP1, sREM, sSEGE, sSEGS, sNEND, sK, sTOT, sRND, sOB, sOC, sOFF = range(48, 60)
sV0, sV1, sOM, sRET, sSO, sM, sONE, sSC = 60, 62, 64, 66, 68, 70, 72, 74
sM0, sLD = 69, 16
sT0, sT1, sT2, sBND = 76, 77, 78, 79
sLN2 = 44
REC, RK0, RK1 = 40, 4, 5
CK = TMP + 1

def valu_block(T):
    ex = "\n".join(f"v_exp_f32 v{E+i}, v{T+i}" for i in range(4))
    pk = f"""
v_pk_fma_f32 {vr(NN,2)}, {vr(NN,2)}, {vr(E,2)}, {vr(NN,2)}
v_pk_fma_f32 {vr(NN+2,2)}, {vr(NN+2,2)}, {vr(E+2,2)}, {vr(NN+2,2)}
v_pk_fma_f32 {vr(NN,2)}, {vr(T,2)}, {vr(D,2)}, {vr(NN,2)}
v_pk_fma_f32 {vr(NN+2,2)}, {vr(T+2,2)}, {vr(D+2,2)}, {vr(NN+2,2)}
v_pk_fma_f32 {vr(D,2)}, {vr(D,2)}, {vr(E,2)}, {vr(D,2)}
v_pk_fma_f32 {vr(D+2,2)}, {vr(D+2,2)}, {vr(E+2,2)}, {vr(D+2,2)}
"""
    return ex, pk

def poll(o, tag, soff, count):
    o(f"""
v_lshlrev_b32 v{TMP}, 7, v1
s_mov_b32 s{sT1}, 0
s_mov_b64 exec, {"-1" if count == 64 else hex((1 << count) - 1)}
F_pl{tag}:
buffer_load_dwordx2 {vr(TMP+1,2)}, v{TMP}, s[32:35], {soff} offen sc1
s_add_u32 s{sT1}, s{sT1}, 1
s_waitcnt vmcnt(0)
v_cmpx_ne_u64 vcc, s[100:101], {vr(TMP+1,2)}
s_nop 4
s_cbranch_execz F_pd{tag}
s_sleep 2
s_cmp_lt_u32 s{sT1}, 0x10000
s_cbranch_scc1 F_pl{tag}
F_pd{tag}:
s_mov_b64 exec, -1
""")

def get_tag(o, tag):
    o(f"""
s_mov_b32 s{sT1}, 0
F_tg{tag}:
v_readfirstlane_b32 s100, v{TAG}
v_readfirstlane_b32 s101, v{TAG+1}
s_add_u32 s{sT1}, s{sT1}, 1
s_cmp_ge_u32 s{sT1}, 0x10000
s_cbranch_scc1 F_th{tag}
s_cmp_lg_u32 s100, 0
s_cbranch_scc1 F_th{tag}
buffer_load_dwordx2 {vr(TAG,2)}, v{VTG}, s[96:99], 0 offen sc1
s_waitcnt vmcnt(0)
s_branch F_tg{tag}
F_th{tag}:
""")

def put_flag(o, soff):
    o(f"""
v_mov_b32 v{TMP+1}, s100
v_mov_b32 v{TMP+2}, s101
s_mov_b64 exec, 1
buffer_store_dwordx2 {vr(TMP+1,2)}, v{VTG}, s[32:35], {soff} offen sc1
s_mov_b64 exec, -1
""")

def sort_rank(o):
    o(f"""
s_mov_b32 s{sT0}, {L_CNT}
v_mov_b32 v{TMP+4}, 0xfc
v_mov_b32 v{TMP+3}, 1
v_and_or_b32 v{TMP}, v{REC}, v{TMP+4}, s{sT0}
v_and_or_b32 v{TMP+1}, v{REC+2}, v{TMP+4}, s{sT0}
s_mov_b64 exec, s[{sV0}:{sV0+1}]
ds_add_rtn_u32 v{RK0}, v{TMP}, v{TMP+3}
s_mov_b64 exec, s[{sV1}:{sV1+1}]
ds_add_rtn_u32 v{RK1}, v{TMP+1}, v{TMP+3}
s_mov_b64 exec, -1
v_add_u32 v{TMP+4}, s{sT0}, v{LO}
""")

def sort_scatter(o):
    o(f"""
ds_read_b32 v{TMP+2}, v{TMP+4}
v_and_b32 v{REC}, 0x7ffe00, v{REC}
v_and_b32 v{REC+2}, 0x7ffe00, v{REC+2}
s_mov_b32 s{sT0}, {L_IDX}
s_mov_b32 s{sT1}, {L_ET}
s_waitcnt lgkmcnt(0)
v_add_u32_dpp v{VEND}, v{TMP+2}, v{TMP+2} row_shr:1 row_mask:0xf bank_mask:0xf bound_ctrl:0
s_nop 1
v_add_u32_dpp v{VEND}, v{VEND}, v{VEND} row_shr:2 row_mask:0xf bank_mask:0xf bound_ctrl:0
s_nop 1
v_add_u32_dpp v{VEND}, v{VEND}, v{VEND} row_shr:4 row_mask:0xf bank_mask:0xf bound_ctrl:0
s_nop 1
v_add_u32_dpp v{VEND}, v{VEND}, v{VEND} row_shr:8 row_mask:0xf bank_mask:0xf bound_ctrl:0
s_nop 1
v_add_u32_dpp v{VEND}, v{VEND}, v{VEND} row_bcast:15 row_mask:0xa bank_mask:0xf
s_nop 1
v_add_u32_dpp v{VEND}, v{VEND}, v{VEND} row_bcast:31 row_mask:0xc bank_mask:0xf
v_sub_u32 v{TMP+3}, v{VEND}, v{TMP+2}
v_readlane_b32 s{sTOT}, v{VEND}, 63
ds_bpermute_b32 v{TMP}, v{TMP}, v{TMP+3}
ds_bpermute_b32 v{TMP+1}, v{TMP+1}, v{TMP+3}
s_nop 1
s_add_u32 s{sCH}, s{sTOT}, 15
s_lshr_b32 s{sCH}, s{sCH}, 4
s_mul_i32 s{sP}, s{sCH}, s{sWAVE}
s_add_u32 s{sP1}, s{sP}, s{sCH}
s_min_u32 s{sP}, s{sP}, s{sTOT}
s_min_u32 s{sP1}, s{sP1}, s{sTOT}
s_waitcnt lgkmcnt(0)
v_add_u32 v{TMP}, v{TMP}, v{RK0}
v_add_u32 v{TMP+1}, v{TMP+1}, v{RK1}
v_lshl_add_u32 v{TMP+2}, v{TMP}, 2, s{sT0}
v_lshl_add_u32 v{TMP+3}, v{TMP+1}, 2, s{sT0}
v_lshl_add_u32 v{TMP}, v{TMP}, 4, s{sT1}
v_lshl_add_u32 v{TMP+1}, v{TMP+1}, 4, s{sT1}
s_mov_b64 exec, s[{sV0}:{sV0+1}]
ds_write_b32 v{TMP+2}, v{REC}
ds_write_b16 v{TMP}, v{REC+1} offset:8
ds_write_b16 v{TMP}, v{REC+1} offset:14
s_mov_b64 exec, s[{sV1}:{sV1+1}]
ds_write_b32 v{TMP+3}, v{REC+2}
ds_write_b16 v{TMP+1}, v{REC+3} offset:8
ds_write_b16 v{TMP+1}, v{REC+3} offset:14
s_mov_b64 exec, -1
""")

def zero_cnt(o):
    o(f"v_mov_b32 v{TMP}, 0\nds_write_b32 v{TMP+4}, v{TMP}")

def prime(o):
    PT = T0
    o(f"""
s_lshl_b32 s{sT0}, s{sP}, 2
s_add_u32 s{sT0}, s{sT0}, {L_IDX}
v_mov_b32 v{VI}, s{sT0}
s_lshl_b32 s{sT0}, s{sP}, 4
v_add_u32 v{VE}, s{sT0}, v{VEL}
""")
    for k in range(0, R, 2):
        o(f"ds_read2_b32 {vr(PT+k,2)}, v{VI} offset0:{k} offset1:{k+1}")
    o(f"""
ds_read_b32 v{IX}, v{VI} offset:{4*R}
ds_read2_b32 {vr(A0+2,2)}, v{VE} offset0:0 offset1:2
ds_read2_b32 {vr(A1+2,2)}, v{VE} offset0:4 offset1:6
s_waitcnt lgkmcnt(0)
""")
    for k in range(R):
        B = RING + 4*k
        o(f"buffer_load_dword v{B}, v{PT+k}, s[16:19], 0 offen sc1")
        o(f"buffer_load_dword v{B+1}, v{PT+k}, s[16:19], 0 offen offset:256 sc1")

def wloads(o, mat, wreg, kss=range(8), sa=sT0, sb=sT1, va=TMP+5, setup=True):
    if not setup:
        for ks in kss:
            o(f"buffer_load_dwordx4 {vr(wreg+4*ks,4)}, v{va}, s[32:35], s{sa if ks < 4 else sb} offen offset:{(ks%4)*1024} sc1")
        return
    o(f"""
s_lshl_b32 s{sT0}, s{sWAVE}, 13
s_add_u32 s{sT0}, s{sT0}, {WS_WPACK + mat*131072}
s_add_u32 s{sT1}, s{sT0}, 4096
v_lshlrev_b32 v{TMP+5}, 4, v1
""")
    for ks in range(8):
        o(f"buffer_load_dwordx4 {vr(wreg+4*ks,4)}, v{TMP+5}, s[32:35], s{sT0 if ks < 4 else sT1} offen offset:{(ks%4)*1024} sc1")

DST, SRC, EA, OWN, RK, R0 = 8, 12, 16, 20, 24, 28
EW = [EA, 18, EA + 1, 19]
sBM = 58
def bin_rank(o):
    o(f"v_mov_b32 v{TMP+3}, 1\ns_mov_b64 exec, s[{sBM}:{sBM+1}]")
    for k in range(4):
        o(f"""
v_mul_u32_u24 v{OWN+k}, s56, v{DST+k}
v_lshrrev_b32 v{OWN+k}, 24, v{OWN+k}
v_lshl_add_u32 v{TMP+4}, v{OWN+k}, 2, s60
ds_add_rtn_u32 v{RK+k}, v{TMP+4}, v{TMP+3}
""")
    for k in range(4):
        o(f"""
v_mad_u32_u24 v{TMP+1}, v{OWN+k}, s57, 15
v_lshrrev_b32 v{TMP+1}, 4, v{TMP+1}
v_sub_u32 v{DST+k}, v{DST+k}, v{TMP+1}
v_lshl_add_u32 v{R0+k}, v{SRC+k}, 7, v{DST+k}
v_lshlrev_b32 v{R0+k}, 2, v{R0+k}
v_lshl_add_u32 v{DST+k}, v{OWN+k}, 8, s61
""")
    o(f"""
v_lshrrev_b32 v18, 16, v{EA}
v_lshrrev_b32 v19, 16, v{EA+1}
s_waitcnt lgkmcnt(0)
v_max3_u32 v{TMP}, v{RK}, v{RK+1}, v{RK+2}
v_max_u32 v{TMP}, v{TMP}, v{RK+3}
v_cmp_le_u32 vcc, {CAP}, v{TMP}
""")
    for k in range(4):
        o(f"""
v_mul_u32_u24 v{SRC+k}, 37, v{RK+k}
v_lshrrev_b32 v{SRC+k}, 8, v{SRC+k}
v_add_u32 v{SRC+k}, v{SRC+k}, v{RK+k}
v_lshl_add_u32 v{DST+k}, v{SRC+k}, 3, v{DST+k}
""")
    o("s_cbranch_vccnz F_ovf")
    for k in range(4):
        o(f"ds_write2_b32 v{DST+k}, v{R0+k}, v{EW[k]} offset0:2 offset1:3")
    o("F_ovfback:\ns_mov_b64 exec, -1")

def bin_overflow(o):
    o(f"F_ovf:\ns_mul_i32 s50, s2, {CHUNK*8}\ns_add_u32 s50, s50, {WS_OVF}\nv_mov_b32 v{TMP}, {L_BCNT+1024}")
    for k in range(4):
        o(f"""
v_cmp_gt_u32 vcc, {CAP}, v{RK+k}
s_and_saveexec_b64 s[62:63], vcc
ds_write2_b32 v{DST+k}, v{R0+k}, v{EW[k]} offset0:2 offset1:3
s_andn2_b64 exec, s[62:63], exec
s_cbranch_execz F_no{k}
ds_add_rtn_u32 v{TMP+4}, v{TMP}, v{TMP+3}
v_mov_b32 v{TMP+1}, v{R0+k}
v_and_b32 v{TMP+2}, 0xffff, v{EW[k]}
v_lshl_or_b32 v{TMP+2}, v{OWN+k}, 16, v{TMP+2}
s_waitcnt lgkmcnt(0)
v_lshlrev_b32 v{TMP+4}, 3, v{TMP+4}
buffer_store_dwordx2 {vr(TMP+1,2)}, v{TMP+4}, s[32:35], s50 offen sc1
s_waitcnt vmcnt(0)
F_no{k}:
s_mov_b64 exec, s[62:63]
""")
    o("s_branch F_ovfback")

def bin_copy(o):
    o(f"""
v_lshrrev_b32 v24, 3, v0
v_and_b32 v25, 7, v0
v_lshlrev_b32 v25, 4, v25
v_lshl_add_u32 v26, v24, 8, v25
v_lshl_add_u32 v27, v24, 14, v25
v_add_u32 v26, s61, v26
v_lshl_add_u32 v24, v24, 2, s60
ds_read2st64_b32 v[28:29], v24 offset0:0 offset1:2
ds_read_b128 v[8:11], v26
ds_read_b128 v[12:15], v26 offset:32768
ds_read_b128 v[16:19], v26 offset:128
ds_read_b128 v[20:23], v26 offset:{32768+128}
v_mov_b32 v30, {L_BCNT+1024}
ds_read_b32 v30, v30
v_and_b32 v25, 48, v25
v_cmp_eq_u32 s[{sBM}:{sBM+1}], 0, v25
s_lshl_b32 s49, s2, 8
s_add_u32 s49, s49, {WS_CELL}
s_add_u32 s50, s49, {128*16384}
v_mov_b32 v25, 0x7f000000
v_mov_b32 v31, s100
s_waitcnt lgkmcnt(5)
v_cmp_lt_u32 vcc, 14, v28
v_min_u32 v28, {CAP}, v28
v_cmp_lt_u32 s[62:63], 14, v29
v_min_u32 v29, {CAP}, v29
v_cndmask_b32 v24, v25, v27, vcc
v_cndmask_b32 v25, v25, v27, s[62:63]
s_waitcnt lgkmcnt(4)
v_cndmask_b32 v8, v8, v28, s[{sBM}:{sBM+1}]
v_cndmask_b32 v9, v9, v31, s[{sBM}:{sBM+1}]
buffer_store_dwordx4 v[8:11], v27, s[32:35], s49 offen sc1
s_waitcnt lgkmcnt(3)
v_cndmask_b32 v12, v12, v29, s[{sBM}:{sBM+1}]
v_cndmask_b32 v13, v13, v31, s[{sBM}:{sBM+1}]
buffer_store_dwordx4 v[12:15], v27, s[32:35], s50 offen sc1
s_waitcnt lgkmcnt(2)
v_cndmask_b32 v17, v17, v31, s[{sBM}:{sBM+1}]
buffer_store_dwordx4 v[16:19], v24, s[32:35], s49 offen offset:128 sc1
s_waitcnt lgkmcnt(1)
v_cndmask_b32 v21, v21, v31, s[{sBM}:{sBM+1}]
buffer_store_dwordx4 v[20:23], v25, s[32:35], s50 offen offset:128 sc1
s_cmp_lg_u32 s{sWAVE}, 0
s_cbranch_scc1 F_bc1
s_lshl_b32 s50, s2, 3
s_add_u32 s50, s50, {WS_OVFC}
s_mov_b64 exec, 1
s_waitcnt lgkmcnt(0)
buffer_store_dwordx2 v[30:31], v{VTG}, s[32:35], s50 offen sc1
s_mov_b64 exec, -1
F_bc1:
""")

def gen(o):
    XNT = "" if "nont" in OPT else "nt"
    AA = [A0, A1]
    TT = [T0, T1]
    o(f"""
.globl {KNAME}
.p2align 8
.type {KNAME},@function
{KNAME}:
s_cmp_ge_u32 s2, 256
s_cbranch_scc1 L_end
s_load_dwordx2 s[28:29], s[0:1], 0
s_load_dwordx2 s[44:45], s[0:1], 32
s_load_dwordx2 s[36:37], s[0:1], 24
s_load_dwordx2 s[12:13], s[0:1], 16
s_load_dwordx2 s[52:53], s[0:1], 8
s_load_dwordx2 s[40:41], s[0:1], 40
s_load_dwordx2 s[32:33], s[0:1], 64
s_load_dwordx2 s[96:97], s[0:1], 56
s_load_dwordx2 s[20:21], s[0:1], 48
s_memrealtime s[100:101]
""")
    if STAMP: o("s_memrealtime s[80:81]")
    o(f"""
v_lshrrev_b32 v2, 6, v0
v_and_b32 v1, 63, v0
s_mul_i32 s{sN0}, s2, 625
v_readfirstlane_b32 s{sWAVE}, v2
v_lshrrev_b32 v4, 5, v1
v_and_b32 v6, 31, v1
s_add_u32 s{sCNT}, s{sN0}, 640
s_add_u32 s{sN0}, s{sN0}, 15
s_lshr_b32 s{sN0}, s{sN0}, 4
s_lshl_b32 s50, s{sWAVE}, 1
v_add_u32 v5, s50, v4
v_lshlrev_b32 v2, 4, v0
v_and_b32 v7, 15, v5
v_xor_b32 v7, v7, v6
v_lshlrev_b32 v7, 4, v7
v_lshl_add_u32 v7, v4, 9, v7
s_mov_b32 s30, {N*512}
s_mov_b32 s31, 0x20000
s_mov_b32 s46, {513*512}
s_mov_b32 s47, 0x20000
s_mov_b32 s42, {512*512}
s_mov_b32 s43, 0x20000
s_mov_b32 s38, 640000
s_mov_b32 s39, 0x20000
s_mov_b32 s14, 640000
s_mov_b32 s15, 0x20000
s_mov_b32 s54, 320000
s_mov_b32 s55, 0x20000
s_lshl_b32 s{sSO}, s{sWAVE}, 10
s_lshl_b32 s51, s{sN0}, 9
s_add_u32 s51, s51, s{sSO}
v_and_b32 v{TMP}, 3, v5
v_bfe_u32 v{TMP+1}, v5, 3, 1
v_lshl_or_b32 v{TMP}, v{TMP+1}, 2, v{TMP}
v_lshlrev_b32 v{TMP}, 1, v{TMP}
v_xor_b32 v{TMP}, v{TMP}, v6
v_lshlrev_b32 v{TMP}, 4, v{TMP}
v_lshl_add_u32 v{VWS}, v4, 9, v{TMP}
v_lshlrev_b32 v{LO}, 2, v1
s_sub_u32 s48, s2, 64
v_mov_b32 v{VTG}, 0
s_mov_b32 s98, 256
s_mov_b32 s99, 0x20000
s_lshl_b32 s49, s2, 4
s_add_u32 s49, s49, s{sWAVE}
s_cmp_ge_u32 s2, 64
s_cbranch_scc1 F_nobl
s_mul_i32 s49, s2, 10000
s_mul_i32 s50, s2, 5000
v_lshlrev_b32 v{TMP}, 3, v0
v_lshlrev_b32 v6, 2, v0
v_add_u32 v6, {L_BCNT}, v6
s_cmp_ge_u32 s{sWAVE}, 5
s_cbranch_scc1 F_nbz
ds_write_b32 v6, v{VTG}
F_nbz:
s_waitcnt lgkmcnt(0)
buffer_load_dwordx4 {vr(DST,4)}, v2, s[36:39], s49 offen {XNT}
buffer_load_dwordx4 {vr(SRC,4)}, v2, s[12:15], s49 offen {XNT}
buffer_load_dwordx2 {vr(EA,2)}, v{TMP}, s[52:55], s50 offen {XNT}
s_barrier
s_branch F_x
F_nobl:
s_waitcnt lgkmcnt(0)
s_cmp_lg_u32 s49, 0xff0
s_cbranch_scc1 F_nont
s_or_b32 s49, s100, 1
v_mov_b32 v4, s49
v_mov_b32 v5, s101
s_mov_b64 exec, 1
buffer_store_dwordx2 v[4:5], v{VTG}, s[96:99], 0 offen sc1
s_mov_b64 exec, -1
F_nont:
s_cmp_ge_u32 s48, 16
s_cbranch_scc1 F_npd
s_lshl_b32 s49, s48, 14
s_add_u32 m0, s{sSO}, {L_PK}
s_add_u32 s49, s49, s{sSO}
buffer_load_dwordx4 v{VWS}, s[40:43], s49 offen lds
F_npd:
""")
    ops = []
    def vm(target):
        return len(ops) - 1 - max(i for i, x in enumerate(ops) if x == target)
    def dma(s, count=True):
        for m in range(2):
            o(f"""
s_add_u32 m0, s{sSO}, {(s & 3) * 32768 + m*16384}
s_add_u32 s{sM0}, s{sSO}, {m*131072 + s*16384}
buffer_load_dwordx4 v{VWS}, s[44:47], s{sM0} offen lds
""")
        if count:
            ops.extend([("d", s)] * 2)
    o(f"""
F_x:
s_add_u32 m0, s{sSO}, {L_XS}
s_cmp_ge_u32 s{sWAVE}, 4
buffer_load_dwordx4 v7, s[28:31], s51 offen {XNT} lds
s_cbranch_scc1 F_nox2
s_add_u32 m0, s{sSO}, {L_XS + 16384}
s_add_u32 s50, s51, 16384
buffer_load_dwordx4 v7, s[28:31], s50 offen {XNT} lds
F_nox2:
s_sub_u32 s50, s{sWAVE}, 6
s_cmp_ge_u32 s50, 2
s_cbranch_scc1 F_ntc
s_lshr_b32 s49, s2, 3
s_lshl_b32 s49, s49, 13
s_lshl_b32 s50, s50, 12
s_add_u32 s49, s49, s50
v_lshlrev_b32 v5, 6, v1
buffer_load_dword v77, v5, s[44:47], s49 offen
F_ntc:
""")
    dma(0)
    o("s_cmp_lt_u32 s2, 64\ns_cbranch_scc1 F_nl0\ns_barrier")
    dma(1)
    o(f"""
F_nl0:
s_mov_b32 s50, {512*512}
buffer_load_dword v{W3}, v{LO}, s[44:47], s50 offen
buffer_load_dword v{W3+1}, v{LO}, s[44:47], s50 offen offset:256
s_mov_b32 s34, {WS_END}
s_mov_b32 s35, 0x20000
s_add_u32 s32, s32, {WSOFF << 20}
s_addc_u32 s33, s33, 0
s_lshr_b32 s{sCNT}, s{sCNT}, 4
s_sub_u32 s{sCNT}, s{sCNT}, s{sN0}
v_lshlrev_b32 v{VC}, 3, v1
v_lshrrev_b32 v3, 4, v1
v_and_b32 v4, 15, v1
v_xor_b32 v{VXA}, v4, v3
v_lshlrev_b32 v{VXA}, 4, v{VXA}
v_lshl_add_u32 v{VXA}, v4, 9, v{VXA}
v_add_u32 v{VXA}, {L_XS}, v{VXA}
v_bfe_u32 v5, v1, 2, 2
v_and_b32 v6, 3, v1
v_lshl_add_u32 v{VWA}, v3, 3, v5
v_lshlrev_b32 v{VWA}, 9, v{VWA}
v_lshl_add_u32 v{VWA}, v6, 3, v{VWA}
v_and_b32 v6, 1, v3
v_lshl_or_b32 v6, v6, 2, v5
v_xor_b32 v6, s{sWAVE}, v6
v_lshl_add_u32 v{VWA}, v6, 5, v{VWA}
v_add_u32 v{VWB}, 0x10000, v{VWA}
v_add_u32 v{TMP+4}, {L_CNT}, v{LO}
ds_write2st64_b32 v{TMP+4}, v{VTG}, v{VTG} offset0:0 offset1:1
s_mov_b32 s{sSC}, {NEGL2E:#x}
s_mov_b32 s{sSC+1}, {NEGL2E:#x}
s_cmp_ge_u32 s2, 64
s_cbranch_scc1 F_nbr
s_movk_i32 s57, 625
v_cmp_gt_u32 s[{sBM}:{sBM+1}], s57, v0
s_mov_b32 s56, 429497
s_mov_b32 s60, {L_BCNT}
s_mov_b32 s61, {L_IMG}
buffer_load_dwordx2 {vr(TAG,2)}, v{VTG}, s[96:99], 0 offen sc1
s_waitcnt vmcnt(6)
""")
    st0 = lambda name: stamp(o, (1, 2, 3, 4, 6)[STEPS.index(name)]) if name in STEPS else None
    st0("edge")
    bin_rank(o)
    dma(1, False)
    o("s_waitcnt vmcnt(2) lgkmcnt(0)\ns_barrier")
    get_tag(o, "b")
    bin_copy(o)
    o("F_nbr:")
    st0("copy")
    ops += ["w3", "w3"]
    def st(name):
        if name in STEPS: stamp(o, (1, 2, 3, 4, 6)[STEPS.index(name)])
    def reads(s):
        l = []
        a = VXA
        if s:
            a = TMP + 6
            o(f"v_xor_b32 v{a}, {64*s}, v{VXA}")
        xf, wf = XFB[s & 1], WFB[s & 1]
        wa = VWA if (s & 3) < 2 else VWB
        for rt in range(3):
            l.append(f"ds_read_b128 {vr(xf+4*rt,4)}, v{a} offset:{rt*8192}")
        for m in range(2):
            off = (s & 1) * 32768 + m * 16384
            l.append(f"ds_read_b64_tr_b16 {vr(wf+4*m,2)}, v{wa} offset:{off}\nds_read_b64_tr_b16 {vr(wf+4*m+2,2)}, v{wa} offset:{off + 2048}")
        return l
    SCHED = {-1: [2], 0: [3, 4], 1: [5], 2: [6], 3: [7]}
    for s in range(-1, 8):
        if s < 7:
            n = vm(("d", s + 1))
            if s <= 1:
                nb = {-1: 6, 0: 7, 1: 4}[s]
                npk = n + (1 if s >= 0 else 0)
                o(f"""
s_cmp_lt_u32 s2, 64
s_cbranch_scc0 F_wb{s+1}
s_waitcnt vmcnt({nb})
s_branch F_wc{s+1}
F_wb{s+1}:
s_waitcnt vmcnt({npk})
s_cmp_lt_u32 s48, 16
s_cbranch_scc1 F_wc{s+1}
s_waitcnt vmcnt({n})
F_wc{s+1}:
s_waitcnt lgkmcnt(0)
s_barrier
""")
            else:
                o(f"s_waitcnt vmcnt({n}) lgkmcnt(0)\ns_barrier")
        else:
            o("s_waitcnt lgkmcnt(0)\ns_barrier")
        st(f"s{s}")
        if s == -1:
            o(f"buffer_load_dwordx2 {vr(TG0,2)}, v{VTG}, s[96:99], 0 offen sc1")
            ops.append("tag")
        rd = reads(s + 1) if s < 7 else []
        mm = []
        if s >= 0:
            for m, acc in enumerate((PA, QA)):
                for rt in range(3):
                    c = "0" if s == 0 else vr(acc+4*rt, 4)
                    mm.append(f"v_mfma_f32_16x16x32_bf16 {vr(acc+4*rt,4)}, {vr(WFB[s&1]+4*m,4)}, {vr(XFB[s&1]+4*rt,4)}, {c}")
        if s == 7:
            late, mm = mm[3:], mm[:3]
        while rd or mm:
            if mm: o(mm.pop(0))
            if rd: o(rd.pop(0))
        for t in SCHED.get(s, []):
            dma(t)
        if s == -1:
            o(f"""
s_cmp_ge_u32 s48, 16
s_cbranch_scc1 F_d0
ds_read_b64_tr_b16 v[4:5], v{VWB} offset:32768
ds_read_b64_tr_b16 v[6:7], v{VWB} offset:{32768+2048}
s_lshl_b32 s50, s{sWAVE}, 13
s_and_b32 s49, s48, 7
s_lshl_b32 s49, s49, 10
s_add_u32 s50, s50, s49
s_lshr_b32 s49, s48, 3
s_lshl_b32 s49, s49, 17
s_add_u32 s50, s50, s49
s_add_u32 s50, s50, {WS_WPACK}
v_lshlrev_b32 v12, 4, v1
s_waitcnt lgkmcnt(0)
buffer_store_dwordx4 v[4:7], v12, s[32:35], s50 offen sc1
F_d0:
""")
        if s == 0:
            o(f"""
v_and_b32 v{TMP+1}, 15, v1
v_lshrrev_b32 v{TMP}, 1, v3
s_lshl_b32 s{sT1}, s{sWAVE}, 1
v_or_b32 v{TMP}, s{sT1}, v{TMP}
v_xor_b32 v{TMP}, v{TMP}, v{TMP+1}
v_lshlrev_b32 v{TMP}, 4, v{TMP}
v_lshl_add_u32 v{VN}, v{TMP+1}, 9, v{TMP}
v_and_b32 v{TMP}, 1, v3
v_lshl_add_u32 v{VN}, v{TMP}, 3, v{VN}
v_add_u32 v{VN}, {L_PST}, v{VN}
v_lshrrev_b32 v{VB}, 5, v0
v_add_u32 v{TMP}, 32, v{VB}
v_cmp_gt_u32 vcc, s{sCNT}, v{TMP}
v_lshlrev_b32 v{VB}, 4, v{VB}
v_xor_b32 v{VB}, v{VB}, v2
v_add_u32 v{VB}, {L_PST}, v{VB}
v_add_u32 v{VI}, 0x4000, v2
v_mov_b32 v{TMP}, 0x7ffffff0
v_cndmask_b32 v{VI}, v{TMP}, v{VI}, vcc
s_mov_b64 s[8:9], s[32:33]
s_mov_b32 s10, {N*512}
s_mov_b32 s11, 0x20000
""")
        if s == 0 and "direct" in OPT:
            o(f"""
v_lshlrev_b32 v{VN}, 9, v{TMP+1}
v_lshl_add_u32 v{VN}, v3, 3, v{VN}
s_lshl_b32 s{sT1}, s{sWAVE}, 5
v_add_u32 v{VN}, s{sT1}, v{VN}
v_add_u32 v{TMP}, 32, v{TMP+1}
v_cmp_gt_u32 vcc, s{sCNT}, v{TMP}
v_add_u32 v{VI}, 0x4000, v{VN}
v_mov_b32 v{TMP}, 0x7ffffff0
s_nop 0
v_cndmask_b32 v{VI}, v{TMP}, v{VI}, vcc
""")
        if s == 2:
            assert ops.index("tag") < ops.index(("d", 3))
            o(f"s_cmp_ge_u32 s48, 16\ns_cbranch_scc1 F_d5\ns_cmp_lg_u32 s{sWAVE}, 0\ns_cbranch_scc1 F_d5\nv_mov_b64 {vr(TAG,2)}, {vr(TG0,2)}")
            get_tag(o, "p")
            o(f"s_lshl_b32 s{sT0}, s48, 7\ns_add_u32 s{sT0}, s{sT0}, {WS_FLAG + 256*128}")
            put_flag(o, f"s{sT0}")
            o("F_d5:")
    o(f"s_lshl_b32 s{sT2}, s{sN0}, 9\ns_add_u32 s{sT1}, s{sT2}, 8192\ns_nop 3")
    if "direct" in OPT:
        for rt in range(3):
            a_ = PA + 4*rt
            o(f"""
v_pk_mul_f32 {vr(a_,2)}, {vr(a_,2)}, s[{sSC}:{sSC+1}]
v_pk_mul_f32 {vr(a_+2,2)}, {vr(a_+2,2)}, s[{sSC}:{sSC+1}]
v_cvt_pk_bf16_f32 v{W+2*rt}, v{a_}, v{a_+1}
v_cvt_pk_bf16_f32 v{W+2*rt+1}, v{a_+2}, v{a_+3}
buffer_store_dwordx2 {vr(W+2*rt,2)}, v{VN if rt < 2 else VI}, s[8:11], s{sT1 if rt == 1 else sT2} offen sc1
""")
        o("\n".join(late))
        o("s_barrier")
    else:
        for rt in range(3):
            a_ = PA + 4*rt
            o(f"""
v_pk_mul_f32 {vr(a_,2)}, {vr(a_,2)}, s[{sSC}:{sSC+1}]
v_pk_mul_f32 {vr(a_+2,2)}, {vr(a_+2,2)}, s[{sSC}:{sSC+1}]
v_cvt_pk_bf16_f32 v{W+2*rt}, v{a_}, v{a_+1}
v_cvt_pk_bf16_f32 v{W+2*rt+1}, v{a_+2}, v{a_+3}
ds_write_b64 v{VN}, {vr(W+2*rt,2)} offset:{rt*8192}
""")
        o("\n".join(late))
        o(f"""
s_cmp_lt_u32 s{sWAVE}, 8
s_waitcnt lgkmcnt(0)
s_barrier
s_cbranch_scc0 F_nps
ds_read_b128 {vr(W,4)}, v{VB}
ds_read_b128 {vr(W+4,4)}, v{VB} offset:8192
ds_read_b128 {vr(W+8,4)}, v{VB} offset:16384
s_waitcnt lgkmcnt(2)
buffer_store_dwordx4 {vr(W,4)}, v2, s[8:11], s{sT2} offen sc1
s_waitcnt lgkmcnt(1)
buffer_store_dwordx4 {vr(W+4,4)}, v2, s[8:11], s{sT1} offen sc1
s_waitcnt lgkmcnt(0)
buffer_store_dwordx4 {vr(W+8,4)}, v{VI}, s[8:11], s{sT2} offen sc1
F_nps:
s_barrier
""")

    st("pst")
    o(f"""
s_lshl_b32 s{sOFF}, s2, 14
s_add_u32 s{sOFF}, s{sOFF}, {WS_CELL}
buffer_load_dwordx4 {vr(REC,4)}, v2, s[32:35], s{sOFF} offen sc1
v_mov_b64 {vr(TAG,2)}, {vr(TG0,2)}
""")
    get_tag(o, "m")
    o(f"s_cmp_lg_u32 s{sWAVE}, 15\ns_cbranch_scc1 F_npk\ns_mov_b32 s{sT0}, {WS_FLAG + 256*128}")
    poll(o, "k", f"s{sT0}", 16)
    o("F_npk:")
    o(f"s_mov_b32 s{sT2}, 0\ns_waitcnt vmcnt(1)\ns_barrier")
    st("drain")
    o(f"s_cmp_lg_u32 s{sWAVE}, 0\ns_cbranch_scc1 F_nfp\ns_lshl_b32 s{sT0}, s2, 7\ns_add_u32 s{sT0}, s{sT0}, {WS_FLAG}")
    put_flag(o, f"s{sT0}")
    o(f"""
F_nfp:
s_lshl_b32 s12, s{sWAVE}, 13
s_add_u32 s12, s12, {WS_WPACK}
s_add_u32 s13, s12, 4096
v_lshlrev_b32 v{VE}, 4, v1
""")
    wl = lambda kss: wloads(o, 0, W, kss, 12, 13, VE, False)
    wl((0, 1))
    o(f"""
v_mov_b64 {vr(ZR,2)}, 0
v_mov_b64 {vr(ZR+2,2)}, 0
v_add_u32 v{VB}, {L_AGB}, v2
v_add_u32 v{VI}, {L_ET}, v2
ds_write_b128 v{VB}, {vr(ZR,4)}
ds_write_b128 v{VB}, {vr(ZR,4)} offset:4096
v_add_u32 v{VB}, {L_IDX}, v2
ds_write_b128 v{VB}, {vr(ZR,4)}
ds_write_b128 v{VI}, {vr(ZR,4)}
ds_write_b128 v{VI}, {vr(ZR,4)} offset:16384
ds_write_b128 v{VI}, {vr(ZR,4)} offset:16448
""")
    o(f"""
v_lshlrev_b32 v{TMP}, 16, v{W3}
v_and_b32 v{TMP+1}, 0xffff0000, v{W3}
v_lshlrev_b32 v{TMP+2}, 16, v{W3+1}
v_and_b32 v{TMP+3}, 0xffff0000, v{W3+1}
v_mul_f32 v{TMP}, s{sSC}, v{TMP}
v_mul_f32 v{TMP+1}, s{sSC}, v{TMP+1}
v_mul_f32 v{TMP+2}, s{sSC}, v{TMP+2}
v_mul_f32 v{TMP+3}, s{sSC}, v{TMP+3}
v_cvt_pk_bf16_f32 v6, v{TMP}, v{TMP+1}
v_cvt_pk_bf16_f32 v7, v{TMP+2}, v{TMP+3}
""")
    for k in range(1, R):
        o(f"v_mov_b64 {vr(RING+4*k+2,2)}, v[6:7]")
    o(f"""
v_and_b32 v{TMP}, 3, v1
v_bfe_u32 v{TMP+1}, v1, 2, 2
v_cmp_eq_u32 vcc, v{TMP+1}, v3
v_and_b32 v{TMP+2}, 1, v1
v_lshlrev_b32 v{TMP+2}, 4, v{TMP+2}
v_mov_b32 v{TMP+3}, 0x3f80
v_lshlrev_b32 v{TMP+3}, v{TMP+2}, v{TMP+3}
v_cndmask_b32 v{TMP+3}, 0, v{TMP+3}, vcc
v_xor_b32 v{VEL}, 2, v{TMP}
v_lshlrev_b32 v{VEL}, 2, v{VEL}
v_add_u32 v{VEL}, {L_ET}, v{VEL}
v_mov_b32 v{TMP+2}, 0x30000
v_cndmask_b32 v{VEL}, v{TMP+2}, v{VEL}, vcc
v_cmp_gt_u32 vcc, 2, v{TMP}
s_mov_b32 s{sONE}, 1.0
s_mov_b32 s{sONE+1}, 1.0
v_cndmask_b32 v{A0}, 0, v{TMP+3}, vcc
v_cndmask_b32_e64 v{A0+1}, v{TMP+3}, 0, vcc
v_mov_b64 {vr(A1,2)}, {vr(A0,2)}
""")
    o(f"""
s_mov_b32 s{sBND}, 0x7b800000
s_mov_b32 s{sW1}, 0
s_mov_b32 s{sRND}, 0
s_mov_b64 s[40:41], s[20:21]
s_mov_b32 s42, {N*512}
s_mov_b32 s16, s32
s_or_b32 s17, s33, 0x40000
s_mov_b32 s18, {N*512}
s_mov_b32 s19, 0x800000
s_movk_i32 s{sT0}, {RS}
v_and_b32 v{IX}, 15, v1
v_mul_u32_u24 v{IX}, s{sT0}, v{IX}
v_lshl_add_u32 v{IX}, v3, 4, v{IX}
s_lshl_b32 s{sT0}, s{sWAVE}, 6
v_add_u32 v{IX}, s{sT0}, v{IX}
v_bfe_u32 v{RK0}, v0, 2, 2
v_mul_u32_u24 v{RK0}, 7, v{RK0}
v_and_b32 v{TMP}, 3, v0
v_lshl_add_u32 v{RK1}, v{TMP}, 1, v{RK0}
v_cmp_eq_u32 vcc, 0, v{TMP}
v_add_u32 v8, -1, v{RK1}
v_mov_b32 v9, 64
v_cndmask_b32 v8, v8, v9, vcc
""")
    for rt in range(3):
        o(f"""
v_pk_mul_f32 {vr(QA+4*rt,2)}, {vr(QA+4*rt,2)}, s[{sSC}:{sSC+1}]
v_pk_mul_f32 {vr(QA+4*rt+2,2)}, {vr(QA+4*rt+2,2)}, s[{sSC}:{sSC+1}]
ds_write_b128 v{IX}, {vr(QA+4*rt,4)} offset:{L_QS + rt*16*RS}
""")
    wl((2, 3))
    st("q")
    o(f"""
s_waitcnt vmcnt(4)
F_cl:
v_mov_b32_dpp v{TMP}, v{REC+1} row_newbcast:0 row_mask:0xf bank_mask:0xf
v_mov_b32_dpp v{TMP+1}, v{REC} row_newbcast:0 row_mask:0xf bank_mask:0xf
v_mov_b32_dpp v{TMP+2}, v{REC+1} quad_perm:[0,0,0,0] row_mask:0xf bank_mask:0xf
v_cmp_eq_u32 vcc, s100, v{TMP}
v_cmp_ne_u32 s[{sM}:{sM+1}], s100, v{TMP+2}
s_add_u32 s{sT2}, s{sT2}, 1
v_cndmask_b32 v{TMP+1}, 0, v{TMP+1}, vcc
v_max_u32 v{TMP+3}, 1, v{TMP+1}
v_cmp_lt_u32 vcc, v{RK0}, v{TMP+3}
s_cmp_ge_u32 s{sT2}, 0x10000
s_cbranch_scc1 F_cd
s_and_b64 exec, vcc, s[{sM}:{sM+1}]
s_cbranch_execz F_cd
s_sleep 1
buffer_load_dwordx4 {vr(REC,4)}, v2, s[32:35], s{sOFF} offen sc1
s_mov_b64 exec, -1
s_waitcnt vmcnt(0)
s_branch F_cl
F_cd:
s_mov_b64 exec, -1
v_cmp_gt_u32 s[{sV0}:{sV0+1}], v{TMP+1}, v8
v_cmp_gt_u32 s[{sV1}:{sV1+1}], v{TMP+1}, v{RK1}
""")
    st("cell")
    sort_rank(o)
    wl((4, 5))
    o("s_waitcnt lgkmcnt(0)\ns_barrier")
    sort_scatter(o)
    o(f"""
s_lshl_b32 s{sOC}, s{sWAVE}, 13
s_add_u32 s{sOC}, s{sOC}, {WS_FLAG}
v_lshlrev_b32 v{TMP}, 7, v1
""")
    o(f"""
s_cmp_ge_u32 s{sWAVE}, 4
s_cbranch_scc1 F_np1
buffer_load_dwordx2 {vr(TMP+1,2)}, v{TMP}, s[32:35], s{sOC} offen sc1
F_np1:
""")
    st("u")
    o(f"""
s_cmp_ge_u32 s{sWAVE}, 4
s_cbranch_scc1 F_npp
s_mov_b32 s{sT1}, 0
s_waitcnt vmcnt(0)
F_plp:
v_cmpx_ne_u64 vcc, s[100:101], {vr(TMP+1,2)}
s_add_u32 s{sT1}, s{sT1}, 1
s_nop 3
s_cbranch_execz F_pdp
s_cmp_ge_u32 s{sT1}, 0x10000
s_cbranch_scc1 F_pdp
buffer_load_dwordx2 {vr(TMP+1,2)}, v{TMP}, s[32:35], s{sOC} offen sc1
s_waitcnt vmcnt(0)
s_branch F_plp
F_pdp:
s_mov_b64 exec, -1
""")
    o(f"""
F_npp:
""")
    wl((6, 7))
    o(f"""
s_mov_b32 s{sT0}, {WS_OVFC}
buffer_load_dwordx2 {vr(VOVF,2)}, v{VC}, s[32:35], s{sT0} offen sc1
s_waitcnt lgkmcnt(0)
s_barrier
L_pr:
""")
    st("b3")
    zero_cnt(o)
    prime(o)
    o(f"""
s_cmp_lg_u32 s{sRND}, 0
s_cbranch_scc1 L_go
s_call_b64 s[{sRET}:{sRET+1}], L_ugemm
L_go:
""")
    st("go")
    stamp(o, 5)
    o(f"""
s_mov_b64 vcc, 0
s_mov_b32 s{sK}, {KMAX}
s_add_u32 s{sRND}, s{sRND}, 1
s_cmp_ge_u32 s{sP}, s{sP1}
s_cbranch_scc1 L_loopdone
v_cmp_eq_u32 s[{sM}:{sM+1}], s{sP}, v{VEND}
s_sub_u32 s{sIT}, s{sP1}, s{sP}
s_add_u32 s{sIT}, s{sIT}, {R-1}
s_mul_i32 s{sIT}, s{sIT}, 171
s_lshr_b32 s{sIT}, s{sIT}, 10
s_cmp_eq_u32 s{sP}, 0
s_cselect_b32 s{sT2}, 1, 0
s_cmp_lg_u64 s[{sM}:{sM+1}], 0
s_cselect_b32 s{sT2}, 1, s{sT2}
s_xor_b32 s{sHEAD}, s{sT2}, 1
s_call_b64 s[{sRET}:{sRET+1}], L_newnode
s_setprio 3
s_waitcnt vmcnt({2*(R-1)}) lgkmcnt(0)
v_mfma_f32_16x16x32_bf16 {vr(T0,4)}, {vr(A0,4)}, {vr(RING,4)}, {vr(Q,4)}
s_nop 5
L_top:
""")
    for k in range(R):
        B = RING + 4*k
        B1 = RING + 4*((k+1) % R)
        ex, pk = valu_block(TT[k & 1])
        o(f"""
s_waitcnt vmcnt({2*(R-2)}) lgkmcnt(0)
v_mfma_f32_16x16x32_bf16 {vr(TT[(k+1)&1],4)}, {vr(AA[(k+1)&1],4)}, {vr(B1,4)}, {vr(Q,4)}
{ex}
buffer_load_dword v{B}, v{IX}, s[16:19], 0 offen sc1
buffer_load_dword v{B+1}, v{IX}, s[16:19], 0 offen offset:256 sc1
ds_read_b32 v{IX}, v{VI} offset:{4*(k+R+1)}
ds_read2_b32 {vr(AA[k&1]+2,2)}, v{VE} offset0:{4*(k+2)} offset1:{4*(k+2)+2}
{pk}
s_sub_u32 s{sREM}, s{sREM}, 1
s_cbranch_scc1 L_call{k}
L_next{k}:
""")
    o(f"""
v_add_u32 v{VI}, {4*R}, v{VI}
v_add_u32 v{VE}, {16*R}, v{VE}
s_sub_u32 s{sIT}, s{sIT}, 1
s_cmp_ge_u32 s{sIT}, {PRIO[0]}
s_cbranch_scc1 L_top
s_setprio 2
s_cmp_ge_u32 s{sIT}, {PRIO[1]}
s_cbranch_scc1 L_top
s_setprio 1
s_cmp_ge_u32 s{sIT}, {PRIO[2]}
s_cbranch_scc1 L_top
s_setprio 0
{"" if "overrun" in OPT else f"v_mov_b32 v{VI}, {L_CNT}"}
s_branch L_top
""")
    for k in range(R):
        B1 = RING + 4*((k+1) % R)
        o(f"""
L_call{k}:
s_call_b64 s[{sRET}:{sRET+1}], L_flush
s_cbranch_scc0 L_special
s_waitcnt lgkmcnt(0)
v_mfma_f32_16x16x32_bf16 {vr(TT[(k+1)&1],4)}, {vr(AA[(k+1)&1],4)}, {vr(B1,4)}, {vr(Q,4)}
s_nop 4
s_branch L_next{k}
""")
    o(f"""
L_flush:
v_rcp_f32 v{E}, v{D}
v_rcp_f32 v{E+1}, v{D+1}
v_rcp_f32 v{E+2}, v{D+2}
v_rcp_f32 v{E+3}, v{D+3}
s_mov_b32 s{sP}, s{sSEGE}
s_cbranch_vccnz L_nochk
v_pk_fma_f32 {vr(CK,2)}, {vr(NN,2)}, 0, {vr(D,2)}
v_pk_fma_f32 {vr(CK+2,2)}, {vr(NN+2,2)}, 0, {vr(D+2,2)}
v_pk_add_f32 {vr(CK,2)}, {vr(CK,2)}, {vr(CK+2,2)}
v_add_f32 v{CK}, v{CK}, v{CK+1}
v_cmp_nle_f32 s[{sM}:{sM+1}], v{CK}, s{sBND}
s_nop 3
s_cmp_eq_u64 s[{sM}:{sM+1}], 0
s_cbranch_scc1 L_nochk
s_mov_b32 s{sP}, s{sSEGS}
s_setpc_b64 s[{sRET}:{sRET+1}]
L_nochk:
v_pk_fma_f32 {vr(AC,2)}, {vr(NN,2)}, {vr(E,2)}, {vr(AC,2)}
v_pk_fma_f32 {vr(AC+2,2)}, {vr(NN+2,2)}, {vr(E+2,2)}, {vr(AC+2,2)}
s_cmp_lg_u32 s{sW1}, 0
s_cbranch_scc1 L_havew
s_mov_b32 s{sW1}, 1
""")
    wloads(o, 1, W)
    o(f"""
L_havew:
s_cmp_eq_u32 s{sP}, s{sNEND}
s_cbranch_scc1 L_fin
s_cmp_lg_u32 s{sP}, s{sP1}
s_cbranch_scc1 L_reinit
s_cmp_lg_u32 s{sHEAD}, 0
s_cbranch_scc1 L_pub
s_mov_b32 s{sT0}, s{sWAVE}
s_mov_b32 s{sT1}, s{sP1}
L_col:
s_add_u32 s{sT0}, s{sT0}, 1
s_lshl_b32 s{sT2}, s{sT0}, 2
s_add_u32 s{sT2}, s{sT2}, {L_HF}
v_mov_b32 v{CK}, s{sT2}
L_poll:
ds_read_b32 v{CK+1}, v{CK}
s_waitcnt lgkmcnt(0)
v_readfirstlane_b32 s{sT2}, v{CK+1}
s_nop 3
s_cmp_eq_u32 s{sT2}, s{sRND}
s_cbranch_scc1 L_got
s_sleep 1
s_branch L_poll
L_got:
s_lshl_b32 s{sT2}, s{sT0}, 10
s_add_u32 s{sT2}, s{sT2}, {L_HB}
v_add_u32 v{CK}, s{sT2}, v{VC}
ds_read2st64_b64 {vr(E,4)}, v{CK} offset0:0 offset1:1
s_add_u32 s{sT1}, s{sT1}, s{sCH}
s_waitcnt lgkmcnt(0)
v_pk_add_f32 {vr(AC,2)}, {vr(AC,2)}, {vr(E,2)}
v_pk_add_f32 {vr(AC+2,2)}, {vr(AC+2,2)}, {vr(E+2,2)}
s_cmp_lt_u32 s{sT1}, s{sNEND}
s_cbranch_scc1 L_col
s_branch L_wr
L_fin:
s_cmp_lg_u32 s{sHEAD}, 0
s_cbranch_scc1 L_pub
L_wr:
v_cvt_pk_bf16_f32 v{E}, v{AC}, v{AC+1}
v_cvt_pk_bf16_f32 v{E+1}, v{AC+2}, v{AC+3}
ds_write2st64_b32 v{VB}, v{E}, v{E+1} offset0:0 offset1:1
L_more:
s_mov_b32 s{sHEAD}, 0
s_cmp_lg_u32 s{sP}, s{sP1}
s_cbranch_scc1 L_newnode
s_setpc_b64 s[{sRET}:{sRET+1}]
L_pub:
s_lshl_b32 s{sT2}, s{sWAVE}, 10
s_add_u32 s{sT2}, s{sT2}, {L_HB}
v_add_u32 v{CK}, s{sT2}, v{VC}
s_lshl_b32 s{sT2}, s{sWAVE}, 2
s_add_u32 s{sT2}, s{sT2}, {L_HF}
v_mov_b32 v{CK+1}, s{sT2}
v_mov_b32 v{CK+2}, s{sRND}
ds_write2st64_b64 v{CK}, {vr(AC,2)}, {vr(AC+2,2)} offset0:0 offset1:1
s_waitcnt lgkmcnt(0)
ds_write_b32 v{CK+1}, v{CK+2}
s_branch L_more
L_old:
s_cmp_lg_u32 s{sHEAD}, 0
s_cbranch_scc1 L_reinit
ds_read2st64_b32 {vr(E,2)}, v{VB} offset0:0 offset1:1
s_waitcnt lgkmcnt(0)
v_lshlrev_b32 v{AC}, 16, v{E}
v_and_b32 v{AC+1}, 0xffff0000, v{E}
v_lshlrev_b32 v{AC+2}, 16, v{E+1}
v_and_b32 v{AC+3}, 0xffff0000, v{E+1}
s_branch L_reinit
L_newnode:
v_cmp_ge_u32 s[{sM}:{sM+1}], s{sP}, v{VEND}
v_mov_b64 {vr(AC,2)}, 0
v_mov_b64 {vr(AC+2,2)}, 0
s_nop 1
s_bcnt1_i32_b64 s{sT0}, s[{sM}:{sM+1}]
s_mul_i32 s{sT1}, s{sT0}, {RS}
v_readlane_b32 s{sNEND}, v{VEND}, s{sT0}
v_add_u32 v{VN}, s{sT1}, v{VC}
ds_read2st64_b64 {vr(Q,4)}, v{VN} offset0:0 offset1:1
s_and_b32 s{sT1}, s{sT0}, 15
s_lshl_b32 s{sT1}, s{sT1}, 4
s_lshl_b32 s{sT0}, s{sT0}, 9
s_or_b32 s{sT0}, s{sT0}, s{sT1}
s_add_u32 s{sT0}, s{sT0}, {L_AGB}
v_xor_b32 v{VB}, s{sT0}, v{LO}
s_cmp_lg_u32 s{sRND}, 1
s_cbranch_scc1 L_old
L_reinit:
v_mov_b64 {vr(NN,2)}, 0
v_mov_b64 {vr(NN+2,2)}, 0
v_mov_b64 {vr(D,2)}, s[{sONE}:{sONE+1}]
v_mov_b64 {vr(D+2,2)}, s[{sONE}:{sONE+1}]
s_mov_b32 s{sSEGS}, s{sP}
s_add_u32 s{sSEGE}, s{sP}, s{sK}
s_min_u32 s{sSEGE}, s{sSEGE}, s{sNEND}
s_min_u32 s{sSEGE}, s{sSEGE}, s{sP1}
s_sub_u32 s{sREM}, s{sSEGE}, s{sP}
s_sub_u32 s{sREM}, s{sREM}, 1
s_cmp_eq_u32 s{sP}, s{sP}
s_setpc_b64 s[{sRET}:{sRET+1}]
L_special:
s_cmp_eq_u32 s{sP}, s{sP1}
s_cbranch_scc1 L_loopdone
s_mov_b64 vcc, -1
s_mov_b32 s{sK}, 1
s_waitcnt vmcnt(0) lgkmcnt(0)
s_call_b64 s[{sRET}:{sRET+1}], L_reinit
L_slow:
s_lshl_b32 s{sT0}, s{sP}, 2
s_add_u32 s{sT0}, s{sT0}, {L_IDX}
v_mov_b32 v{VI}, s{sT0}
s_lshl_b32 s{sT0}, s{sP}, 4
v_add_u32 v{VE}, s{sT0}, v{VEL}
ds_read_b32 v{IX}, v{VI}
ds_read2_b32 {vr(A0+2,2)}, v{VE} offset0:0 offset1:2
s_waitcnt lgkmcnt(0)
buffer_load_dword v{RING}, v{IX}, s[16:19], 0 offen sc1
buffer_load_dword v{RING+1}, v{IX}, s[16:19], 0 offen offset:256 sc1
s_waitcnt vmcnt(0)
v_mfma_f32_16x16x32_bf16 {vr(T0,4)}, {vr(A0,4)}, {vr(RING,4)}, {vr(Q,4)}
s_nop 7
v_min_f32 v{T0}, 0x42fc0000, v{T0}
v_min_f32 v{T0+1}, 0x42fc0000, v{T0+1}
v_min_f32 v{T0+2}, 0x42fc0000, v{T0+2}
v_min_f32 v{T0+3}, 0x42fc0000, v{T0+3}
{valu_block(T0)[0]}
{valu_block(T0)[1]}
s_call_b64 s[{sRET}:{sRET+1}], L_flush
s_cbranch_scc1 L_slow
L_loopdone:
""")
    st("le")
    if len(STEPS) < 5: stamp(o, 6)
    o(f"""
s_setprio 0
s_cmp_lg_u32 s{sW1}, 0
s_cbranch_scc1 L_ld2
s_mov_b32 s{sW1}, 1
""")
    wloads(o, 1, W)
    o(f"""
L_ld2:
s_cmp_lg_u32 s{sRND}, 1
s_cbranch_scc1 L_rn0
s_mov_b32 s{sOB}, 0
s_mov_b32 s{sT0}, {WS_OVFC}
L_ov:
s_waitcnt vmcnt(0)
v_cmp_ne_u32 vcc, s100, v{VOVF+1}
v_cmp_ne_u32 s[{sOM}:{sOM+1}], 0, v{VOVF}
s_add_u32 s{sOB}, s{sOB}, 1
s_cmp_ge_u32 s{sOB}, 0x10000
s_cbranch_scc1 L_ovd
s_nop 0
s_cbranch_vccz L_ovd
buffer_load_dwordx2 {vr(VOVF,2)}, v{VC}, s[32:35], s{sT0} offen sc1
s_branch L_ov
L_ovd:
s_mov_b32 s{sOB}, 0
L_rn0:
v_and_b32 v{TMP}, 15, v1
v_xor_b32 v{TMP+1}, v{TMP}, v3
v_lshlrev_b32 v{TMP+1}, 4, v{TMP+1}
v_lshl_add_u32 v{TMP+1}, v{TMP}, 9, v{TMP+1}
s_waitcnt vmcnt(0)
s_cmp_eq_u64 s[{sOM}:{sOM+1}], 0
s_cbranch_scc0 L_round
""")
    o(f"v_add_u32 v4, {L_AGB}, v{TMP+1}")
    for ks in range(1, 8):
        o(f"v_xor_b32 v{4+ks}, {64*ks}, v4")
    o(f"""
v_add_u32 v{TMP+2}, s{sN0}, v{TMP}
v_lshlrev_b32 v{TMP+2}, 9, v{TMP+2}
v_lshl_add_u32 v{TMP+2}, v3, 3, v{TMP+2}
s_lshl_b32 s{sT0}, s{sWAVE}, 5
s_add_u32 s{sT1}, s{sT0}, 8192
s_add_u32 s{sT2}, s{sT0}, 16384
s_sub_u32 s{sCNT}, s{sCNT}, 32
v_cmp_gt_u32 s[{sM}:{sM+1}], s{sCNT}, v{TMP}
v_mov_b32 v12, s{sSC}
""")
    if "ostage" in OPT:
        o(f"""
v_lshrrev_b32 v13, 1, v3
s_lshl_b32 s{sT1}, s{sWAVE}, 1
v_or_b32 v13, s{sT1}, v13
v_xor_b32 v13, v13, v{TMP}
v_lshlrev_b32 v13, 4, v13
v_lshl_add_u32 v13, v{TMP}, 9, v13
v_and_b32 v14, 1, v3
v_lshl_add_u32 v13, v14, 3, v13
v_lshrrev_b32 v14, 5, v0
v_cmp_gt_u32 vcc, s{sCNT}, v14
v_and_b32 v14, 15, v14
v_lshlrev_b32 v14, 4, v14
v_xor_b32 v14, v14, v2
v_add_u32 v15, 0x4000, v2
v_mov_b32 v16, 0x7ffffff0
s_lshl_b32 s{sT0}, s{sN0}, 9
v_cndmask_b32 v15, v16, v15, vcc
""")
    o("s_waitcnt lgkmcnt(0)\ns_barrier")
    st("fb")
    OSF = "sc1" if "o_sc1" in OPT else "nt" if "o_nt" in OPT else "sc1 nt" if "o_sc1nt" in OPT else ""
    FB = [T0, T1, E, NN]
    def rd(i):
        o(f"ds_read_b128 {vr(FB[i % 4],4)}, v{4 + (i & 7)} offset:{(i >> 3)*8192}")
    def silu(rt):
        a, t = UA + 4*rt, D
        l = [f"v_exp_f32 v{t+i}, v{a+i}" for i in range(4)]
        l += [f"v_fma_f32 v{t+i}, v{t+i}, v12, v12" for i in range(4)]
        l += [f"v_rcp_f32 v{t+i}, v{t+i}" for i in range(4)]
        l += [f"v_mul_f32 v{a+i}, v{a+i}, v{t+i}" for i in range(4)]
        l += [f"v_cvt_pk_bf16_f32 v{a}, v{a}, v{a+1}", f"v_cvt_pk_bf16_f32 v{a+1}, v{a+2}, v{a+3}"]
        if "ostage" in OPT:
            l.append(f"ds_write_b64 v13, {vr(a,2)} offset:{rt*8192}")
            return l
        if rt == 2:
            l.append(f"s_mov_b64 exec, s[{sM}:{sM+1}]")
        l.append(f"buffer_store_dwordx2 {vr(a,2)}, v{TMP+2}, s[40:43], s{[sT0,sT1,sT2][rt]} offen {OSF}")
        return l
    for i in range(3):
        rd(i)
    pend = []
    for i in range(24):
        rt, ks = i >> 3, i & 7
        if i + 3 < 24:
            rd(i + 3)
        o(f"s_waitcnt lgkmcnt({min(3, 23 - i)})")
        o(f"v_mfma_f32_16x16x32_bf16 {vr(UA+4*rt,4)}, {vr(W+4*ks,4)}, {vr(FB[i % 4],4)}, {vr(UA+4*rt,4)}")
        if ks == 2 and rt > 0:
            pend = silu(rt - 1)
        n = 4 if ks < 7 else len(pend)
        o("\n".join(pend[:n]))
        pend = pend[n:]
    o("s_nop 7")
    st("fg")
    o("\n".join(silu(2)))
    if "ostage" in OPT:
        o(f"""
s_waitcnt lgkmcnt(0)
s_barrier
ds_read_b128 v[16:19], v14
ds_read_b128 v[20:23], v14 offset:16384
s_waitcnt lgkmcnt(1)
buffer_store_dwordx4 v[16:19], v2, s[40:43], s{sT0} offen {OSF}
s_cmp_ge_u32 s{sWAVE}, 4
s_cbranch_scc1 L_os
s_waitcnt lgkmcnt(0)
buffer_store_dwordx4 v[20:23], v15, s[40:43], s{sT0} offen {OSF}
L_os:
""")
    st("fs")
    if STAMP:
        o(f"""
s_waitcnt vmcnt(0)
s_memrealtime s[94:95]
s_mov_b64 exec, 1
s_lshl_b32 s26, s2, 4
s_add_u32 s26, s26, s{sWAVE}
s_lshl_b32 s26, s26, 5
s_add_u32 s26, s26, {WS_STAMP + 0x100000}
s_mov_b32 s34, 0x1000000
v_mov_b32 v0, 0
s_waitcnt lgkmcnt(0)
""")
        xd = next((x for x in OPT if x.startswith("xdel")), None)
        if xd:
            k = int(xd[4:])
            sel = "s_cmp_lt_u32 s2, 64\ns_cselect_b32 s26, 0, s26" if "xrest" in OPT else ""
            o(f"""
s_sub_u32 s26, s{80+2*k}, s80
{sel}
s_mul_i32 s26, s26, 10
s_add_u32 s26, s26, s94
X_spin:
s_memrealtime s[92:93]
s_waitcnt lgkmcnt(0)
s_sub_u32 s27, s92, s26
s_cmp_lt_i32 s27, 0
s_cbranch_scc1 X_spin
s_endpgm
""")
        for i in range(8):
            o(f"v_mov_b32 v{4+i}, s{80+2*i}")
        if "dbgst" in OPT:
            o("v_not_b32 v12, v4\nv_not_b32 v13, v9\nv_not_b32 v14, v5\nv_not_b32 v15, v10")
            for i in range(12):
                o(f"buffer_atomic_umax v{4+i}, v0, s[96:99], 0 offen offset:{8+4*i} sc1")
        else:
            o("buffer_store_dwordx4 v[4:7], v0, s[32:35], s26 offen\nbuffer_store_dwordx4 v[8:11], v0, s[32:35], s26 offen offset:16")
    o(f"""
L_end:
s_endpgm
L_round:
s_waitcnt lgkmcnt(0)
s_barrier
s_ff1_i32_b64 s{sT0}, s[{sOM}:{sOM+1}]
s_mul_i32 s{sT1}, s{sT0}, {CHUNK*8}
v_readlane_b32 s{sOC}, v{VOVF}, s{sT0}
s_lshl_b32 s{sT2}, s{sOB}, 3
s_add_u32 s{sT1}, s{sT1}, s{sT2}
s_add_u32 s{sT1}, s{sT1}, {WS_OVF}
buffer_load_dwordx4 {vr(REC,4)}, v2, s[32:35], s{sT1} offen sc1
v_lshlrev_b32 v{TMP}, 1, v0
v_add_u32 v{TMP}, s{sOB}, v{TMP}
v_add_u32 v{TMP+1}, 1, v{TMP}
v_cmp_gt_u32 s[{sV0}:{sV0+1}], s{sOC}, v{TMP}
v_cmp_gt_u32 s[{sV1}:{sV1+1}], s{sOC}, v{TMP+1}
s_add_u32 s{sOB}, s{sOB}, 2048
s_cmp_lt_u32 s{sOB}, s{sOC}
s_cbranch_scc1 L_rn2
s_bitset0_b64 s[{sOM}:{sOM+1}], s{sT0}
s_mov_b32 s{sOB}, 0
L_rn2:
s_waitcnt vmcnt(0)
v_lshrrev_b32 v{TMP}, 16, v{REC+1}
v_lshrrev_b32 v{TMP+1}, 16, v{REC+3}
v_cmp_eq_u32 s[{sM}:{sM+1}], s2, v{TMP}
s_nop 3
s_and_b64 s[{sV0}:{sV0+1}], s[{sV0}:{sV0+1}], s[{sM}:{sM+1}]
v_cmp_eq_u32 s[{sM}:{sM+1}], s2, v{TMP+1}
s_nop 3
s_and_b64 s[{sV1}:{sV1+1}], s[{sV1}:{sV1+1}], s[{sM}:{sM+1}]
""")
    sort_rank(o)
    o("s_waitcnt lgkmcnt(0)\ns_barrier")
    sort_scatter(o)
    o("s_waitcnt lgkmcnt(0)\ns_barrier")
    o("s_branch L_pr\nL_ugemm:")
    XB = [QA, QA + 4, QA + 8, W3 - 2]
    seq = [(ks, rt) for ks in range(8) for rt in range(3)]
    def urd(i):
        ks, rt = seq[i]
        if rt == 0 and ks:
            o(f"v_xor_b32 v{TMP+6}, {64*ks}, v{VXA}")
        o(f"ds_read_b128 {vr(XB[i % 4],4)}, v{TMP+6 if ks else VXA} offset:{rt*8192}")
    for i in range(3):
        urd(i)
    for i, (ks, rt) in enumerate(seq):
        if i + 3 < 24:
            urd(i + 3)
        if rt == 0:
            o(f"s_waitcnt vmcnt({7-ks+1+2*R})")
        o(f"s_waitcnt lgkmcnt({min(3, 23 - i)})")
        c = "0" if ks == 0 else vr(UA+4*rt, 4)
        o(f"v_mfma_f32_16x16x32_bf16 {vr(UA+4*rt,4)}, {vr(W+4*ks,4)}, {vr(XB[i % 4],4)}, {c}")
    o("s_nop 5")
    for h in range(6):
        o(f"v_pk_mul_f32 {vr(UA+2*h,2)}, {vr(UA+2*h,2)}, s[{sSC}:{sSC+1}]")
    if "w2early" in OPT:
        o(f"s_mov_b32 s{sW1}, 1")
        wloads(o, 1, W)
    o(f"s_setpc_b64 s[{sRET}:{sRET+1}]")
    bin_overflow(o)

def main(path):
    o = Asm()
    gen(o)
    hdr = f"""; MPNN edge-MLP + segment sum + node update in one launch (256 co-resident workgroups, one per CU).
; Phase B (after tagged-flag hand-off): per-edge SiLU accumulation over gathered P rows, update GEMM + SiLU.
; @launch grid=(256,1,1) block=(1024,1,1) lds={L_ALLOC}
.amdgcn_target "amdgcn-amd-amdhsa--gfx950"
.text
"""
    desc = f""".section .rodata,"a"
.p2align 6
.amdhsa_kernel {KNAME}
  .amdhsa_next_free_vgpr {NV}
  .amdhsa_next_free_sgpr 102
  .amdhsa_accum_offset {(NV+3)//4*4}
  .amdhsa_group_segment_fixed_size 0
  .amdhsa_kernarg_size 72
  .amdhsa_user_sgpr_count 2
  .amdhsa_user_sgpr_kernarg_segment_ptr 1
  .amdhsa_system_sgpr_workgroup_id_x 1
.end_amdhsa_kernel
"""
    open(path, "w").write(hdr + o.text() + desc)

if __name__ == "__main__":
    if "--stamp" in sys.argv:
        sys.argv.remove("--stamp")
        STAMP = True
    for a in list(sys.argv):
        if a.startswith("--steps="):
            sys.argv.remove(a)
            STEPS = a[8:].split(",")
        if a.startswith("--poll="):
            sys.argv.remove(a)
            STEP_FLAG = int(a[7:])
        if a.startswith("--prio="):
            sys.argv.remove(a)
            PRIO = [int(x) for x in a[7:].split(",")]
        if a.startswith("--kmax="):
            sys.argv.remove(a)
            KMAX = int(a[7:])
        if a.startswith("--wsoff="):
            sys.argv.remove(a)
            WSOFF = int(a[8:])
        if a.startswith("--opt="):
            sys.argv.remove(a)
            OPT |= set(a[6:].split(","))
    main(sys.argv[1] if len(sys.argv) > 1 else "gather_scatter__mpnn_edge_mlp__graph.s")
```

```python
import sys

N = 10000
WS_WPACK = 0x500000
WS_OVFC = 0x560000
WS_OVF = 0x570000
WS_FLAG = 0x6E0000
WS_CELL = 0x700000
WS_END = 0xB00000
WS_STAMP = 0xC00000
CHUNK = 2500
CAP = 28
NEGL2E = 0xBFB8AA3B
NEGLN2 = 0xBF317218
KNAME = "gather_scatter__mpnn_edge_mlp__graph_kernel"
STAMP = False
STEP_FLAG = 14
STEPS = ["s-1", "pst", "drain", "cell"]
OPT = {"ostage", "o_sc1", "nont"}

class Asm:
    def __init__(self):
        self.l = []
    def __call__(self, s):
        for line in s.strip("\n").split("\n"):
            line = line.strip()
            if line:
                self.l.append(line if line.endswith(":") else "    " + line)
    def text(self):
        l = self.l
        def sub(a_lab, b_lab, pref):
            a = l.index(a_lab); b = l.index(b_lab)
            return l[:a] + [("    s_nop 0" if any(x.strip().startswith(p) for p in pref) else x) for x in l[a:b]] + l[b:]
        if "gplain" in OPT:
            l = [x.replace(" sc1", "") if "s[16:19], 0 offen" in x else x for x in l]
        if "gnt" in OPT:
            l = [x + " nt" if "s[16:19], 0 offen" in x else x for x in l]
        if "noprio" in OPT:
            l = [x for x in l if "s_setprio" not in x]
        if "noloop_ld" in OPT: l = sub("L_top:", "L_call0:", ["buffer_load"])
        return "\n".join(l) + "\n"

def vr(a, n):
    return f"v[{a}:{a+n-1}]" if n > 1 else f"v{a}"

def srd(o, d, lo, hi, size):
    o(f"s_mov_b32 s{d}, s{lo}\ns_mov_b32 s{d+1}, s{hi}\ns_mov_b32 s{d+2}, {size}\ns_mov_b32 s{d+3}, 0x20000")

def stamp(o, i):
    if STAMP:
        if "clk2" in OPT:
            if i in (1, 2):
                o(f"s_memrealtime s[{80+2*i}:{81+2*i}]\ns_memtime s[{84+2*i}:{85+2*i}]\ns_waitcnt lgkmcnt(0)")
            elif i not in (3, 4):
                o(f"s_memrealtime s[{80+2*i}:{81+2*i}]\ns_waitcnt lgkmcnt(0)")
            return
        o(f"s_memrealtime s[{80+2*i}:{81+2*i}]\ns_waitcnt lgkmcnt(0)")

R = 6
KMAX = 24
PRIO = [4, 3, 2]
RS = 1040
L_QS = 0
L_AGB = (48 * RS + 511) // 512 * 512
L_HB = L_AGB + 48 * 512
L_IDX = L_HB + 16 * 1024
L_ET = L_IDX + 2064 * 4
L_CNT = (L_ET + 2052 * 16 + 255) // 256 * 256
L_HF = L_CNT + 256
L_XS = (L_HF + 256 + 511) // 512 * 512
L_END = L_XS + 48 * 512
L_IMG = 65536
L_BCNT = 131072
L_PST = L_HB
L_PK = 3 * 32768
L_ALLOC = L_END
assert L_BCNT + 1100 <= L_CNT and L_END <= 163840
RING = 4
A0, A1, Q, T0, T1, E, NN, D, AC, UA = 28, 32, 36, 40, 44, 48, 52, 56, 60, 64
VOVF, VB, IX, AD, LO, VI, VE, VN, VC, VEND, VEL = 76, 78, 79, 80, 81, 82, 83, 84, 85, 86, 126
TMP = 87
W = 94
NV = 127
PA, QA, VXA, VWA, VWS, VTG, W3, TG0, ZR = UA, 48, AD, 36, 38, 76, 62, 60, 44
XFB, WFB = [W, W + 20], [W + 12, 40]
VWB = VE
CK0, CK1, CK2 = 34, 35, 37
TAG = 92
sWAVE, sN0, sCNT, sHEAD, sIT, sW1, sCH = 3, 4, 5, 6, 7, 26, 27
sP, sP1, sREM, sSEGE, sSEGS, sNEND, sK, sTOT, sRND, sOB, sOC, sOFF = range(48, 60)
sV0, sV1, sOM, sRET, sSO, sM, sONE, sSC = 60, 62, 64, 66, 68, 70, 72, 74
sM0, sLD = 69, 16
sT0, sT1, sT2, sBND = 76, 77, 78, 79
sLN2 = 44
REC, RK0, RK1 = 40, 4, 5
CK = TMP + 1

def valu_block(T):
    ex = "\n".join(f"v_exp_f32 v{E+i}, v{T+i}" for i in range(4))
    pk = f"""
v_pk_fma_f32 {vr(NN,2)}, {vr(NN,2)}, {vr(E,2)}, {vr(NN,2)}
v_pk_fma_f32 {vr(NN+2,2)}, {vr(NN+2,2)}, {vr(E+2,2)}, {vr(NN+2,2)}
v_pk_fma_f32 {vr(NN,2)}, {vr(T,2)}, {vr(D,2)}, {vr(NN,2)}
v_pk_fma_f32 {vr(NN+2,2)}, {vr(T+2,2)}, {vr(D+2,2)}, {vr(NN+2,2)}
v_pk_fma_f32 {vr(D,2)}, {vr(D,2)}, {vr(E,2)}, {vr(D,2)}
v_pk_fma_f32 {vr(D+2,2)}, {vr(D+2,2)}, {vr(E+2,2)}, {vr(D+2,2)}
"""
    return ex, pk

def poll(o, tag, soff, count):
    o(f"""
v_lshlrev_b32 v{TMP}, 7, v1
s_mov_b32 s{sT1}, 0
s_mov_b64 exec, {"-1" if count == 64 else hex((1 << count) - 1)}
F_pl{tag}:
buffer_load_dwordx2 {vr(TMP+1,2)}, v{TMP}, s[32:35], {soff} offen sc1
s_add_u32 s{sT1}, s{sT1}, 1
s_waitcnt vmcnt(0)
v_cmpx_ne_u64 vcc, s[100:101], {vr(TMP+1,2)}
s_nop 4
s_cbranch_execz F_pd{tag}
s_sleep 2
s_cmp_lt_u32 s{sT1}, 0x10000
s_cbranch_scc1 F_pl{tag}
F_pd{tag}:
s_mov_b64 exec, -1
""")

def get_tag(o, tag):
    o(f"""
s_mov_b32 s{sT1}, 0
F_tg{tag}:
v_readfirstlane_b32 s100, v{TAG}
v_readfirstlane_b32 s101, v{TAG+1}
s_add_u32 s{sT1}, s{sT1}, 1
s_cmp_ge_u32 s{sT1}, 0x10000
s_cbranch_scc1 F_th{tag}
s_cmp_lg_u32 s100, 0
s_cbranch_scc1 F_th{tag}
buffer_load_dwordx2 {vr(TAG,2)}, v{VTG}, s[96:99], 0 offen sc1
s_waitcnt vmcnt(0)
s_branch F_tg{tag}
F_th{tag}:
""")

def put_flag(o, soff):
    o(f"""
v_mov_b32 v{TMP+1}, s100
v_mov_b32 v{TMP+2}, s101
s_mov_b64 exec, 1
buffer_store_dwordx2 {vr(TMP+1,2)}, v{VTG}, s[32:35], {soff} offen sc1
s_mov_b64 exec, -1
""")

def sort_rank(o):
    o(f"""
s_lshl_b32 s{sT0}, s{sN0}, 2
s_sub_u32 s{sT0}, {L_CNT}, s{sT0}
v_and_b32 v{TMP}, 0x3fff, v{REC}
v_and_b32 v{TMP+1}, 0x3fff, v{REC+2}
v_mov_b32 v{TMP+3}, 1
v_lshl_add_u32 v{TMP}, v{TMP}, 2, s{sT0}
v_lshl_add_u32 v{TMP+1}, v{TMP+1}, 2, s{sT0}
s_mov_b64 exec, s[{sV0}:{sV0+1}]
ds_add_rtn_u32 v{RK0}, v{TMP}, v{TMP+3}
s_mov_b64 exec, s[{sV1}:{sV1+1}]
ds_add_rtn_u32 v{RK1}, v{TMP+1}, v{TMP+3}
s_mov_b64 exec, -1
v_add_u32 v{TMP+4}, {L_CNT}, v{LO}
v_lshrrev_b32 v{REC}, 5, v{REC}
v_lshrrev_b32 v{REC+2}, 5, v{REC+2}
""")

def sort_scatter(o):
    o(f"""
ds_read_b32 v{TMP+2}, v{TMP+4}
v_and_b32 v{REC}, 0x7ffe00, v{REC}
v_and_b32 v{REC+2}, 0x7ffe00, v{REC+2}
s_mov_b32 s{sT0}, {L_IDX}
s_mov_b32 s{sT1}, {L_ET}
s_waitcnt lgkmcnt(0)
v_add_u32_dpp v{VEND}, v{TMP+2}, v{TMP+2} row_shr:1 row_mask:0xf bank_mask:0xf bound_ctrl:0
s_nop 1
v_add_u32_dpp v{VEND}, v{VEND}, v{VEND} row_shr:2 row_mask:0xf bank_mask:0xf bound_ctrl:0
s_nop 1
v_add_u32_dpp v{VEND}, v{VEND}, v{VEND} row_shr:4 row_mask:0xf bank_mask:0xf bound_ctrl:0
s_nop 1
v_add_u32_dpp v{VEND}, v{VEND}, v{VEND} row_shr:8 row_mask:0xf bank_mask:0xf bound_ctrl:0
s_nop 1
v_add_u32_dpp v{VEND}, v{VEND}, v{VEND} row_bcast:15 row_mask:0xa bank_mask:0xf
s_nop 1
v_add_u32_dpp v{VEND}, v{VEND}, v{VEND} row_bcast:31 row_mask:0xc bank_mask:0xf
v_sub_u32 v{TMP+3}, v{VEND}, v{TMP+2}
v_readlane_b32 s{sTOT}, v{VEND}, 63
ds_bpermute_b32 v{TMP}, v{TMP}, v{TMP+3}
ds_bpermute_b32 v{TMP+1}, v{TMP+1}, v{TMP+3}
s_nop 1
s_add_u32 s{sCH}, s{sTOT}, 15
s_lshr_b32 s{sCH}, s{sCH}, 4
s_mul_i32 s{sP}, s{sCH}, s{sWAVE}
s_add_u32 s{sP1}, s{sP}, s{sCH}
s_min_u32 s{sP}, s{sP}, s{sTOT}
s_min_u32 s{sP1}, s{sP1}, s{sTOT}
s_waitcnt lgkmcnt(0)
v_add_u32 v{TMP}, v{TMP}, v{RK0}
v_add_u32 v{TMP+1}, v{TMP+1}, v{RK1}
v_lshl_add_u32 v{TMP+2}, v{TMP}, 2, s{sT0}
v_lshl_add_u32 v{TMP+3}, v{TMP+1}, 2, s{sT0}
v_lshl_add_u32 v{TMP}, v{TMP}, 4, s{sT1}
v_lshl_add_u32 v{TMP+1}, v{TMP+1}, 4, s{sT1}
s_mov_b64 exec, s[{sV0}:{sV0+1}]
ds_write_b32 v{TMP+2}, v{REC}
ds_write_b16 v{TMP}, v{REC+1} offset:8
ds_write_b16 v{TMP}, v{REC+1} offset:14
s_mov_b64 exec, s[{sV1}:{sV1+1}]
ds_write_b32 v{TMP+3}, v{REC+2}
ds_write_b16 v{TMP+1}, v{REC+3} offset:8
ds_write_b16 v{TMP+1}, v{REC+3} offset:14
s_mov_b64 exec, -1
""")

def zero_cnt(o):
    o(f"v_mov_b32 v{TMP}, 0\nds_write_b32 v{TMP+4}, v{TMP}")

def prime(o):
    PT = T0
    o(f"""
s_lshl_b32 s{sT0}, s{sP}, 2
s_add_u32 s{sT0}, s{sT0}, {L_IDX}
v_mov_b32 v{VI}, s{sT0}
s_lshl_b32 s{sT0}, s{sP}, 4
v_add_u32 v{VE}, s{sT0}, v{VEL}
""")
    for k in range(0, R, 2):
        o(f"ds_read2_b32 {vr(PT+k,2)}, v{VI} offset0:{k} offset1:{k+1}")
    o(f"""
ds_read_b32 v{IX}, v{VI} offset:{4*R}
ds_read2_b32 {vr(A0+2,2)}, v{VE} offset0:0 offset1:2
ds_read2_b32 {vr(A1+2,2)}, v{VE} offset0:4 offset1:6
s_waitcnt lgkmcnt(0)
""")
    for k in range(R):
        B = RING + 4*k
        o(f"buffer_load_dword v{B}, v{PT+k}, s[16:19], 0 offen sc1")
        o(f"buffer_load_dword v{B+1}, v{PT+k}, s[16:19], 0 offen offset:256 sc1")

def wloads(o, mat, wreg, kss=range(8), sa=sT0, sb=sT1, va=TMP+5, setup=True):
    if not setup:
        for ks in kss:
            o(f"buffer_load_dwordx4 {vr(wreg+4*ks,4)}, v{va}, s[32:35], s{sa if ks < 4 else sb} offen offset:{(ks%4)*1024} sc1")
        return
    o(f"""
s_lshl_b32 s{sT0}, s{sWAVE}, 13
s_add_u32 s{sT0}, s{sT0}, {WS_WPACK + mat*131072}
s_add_u32 s{sT1}, s{sT0}, 4096
v_lshlrev_b32 v{TMP+5}, 4, v1
""")
    for ks in range(8):
        o(f"buffer_load_dwordx4 {vr(wreg+4*ks,4)}, v{TMP+5}, s[32:35], s{sT0 if ks < 4 else sT1} offen offset:{(ks%4)*1024} sc1")

DST, SRC, EA, OWN, RK, R0 = 8, 12, 16, 20, 24, 28
EW = [EA, 18, EA + 1, 19]
sBM = 58
def bin_rank(o):
    o(f"v_mov_b32 v{TMP+3}, 1\ns_mov_b64 exec, s[{sBM}:{sBM+1}]")
    for k in range(4):
        o(f"""
v_mul_u32_u24 v{OWN+k}, s56, v{DST+k}
v_lshrrev_b32 v{OWN+k}, 24, v{OWN+k}
v_lshl_add_u32 v{TMP+4}, v{OWN+k}, 2, s60
ds_add_rtn_u32 v{RK+k}, v{TMP+4}, v{TMP+3}
""")
    for k in range(4):
        o(f"""
v_lshl_or_b32 v{R0+k}, v{SRC+k}, 14, v{DST+k}
v_lshl_add_u32 v{DST+k}, v{OWN+k}, 8, s61
""")
    o(f"""
v_lshrrev_b32 v18, 16, v{EA}
v_lshrrev_b32 v19, 16, v{EA+1}
s_waitcnt lgkmcnt(0)
v_max3_u32 v{TMP}, v{RK}, v{RK+1}, v{RK+2}
v_max_u32 v{TMP}, v{TMP}, v{RK+3}
v_cmp_le_u32 vcc, {CAP}, v{TMP}
""")
    for k in range(4):
        o(f"""
v_mul_u32_u24 v{SRC+k}, 37, v{RK+k}
v_lshrrev_b32 v{SRC+k}, 8, v{SRC+k}
v_add_u32 v{SRC+k}, v{SRC+k}, v{RK+k}
v_lshl_add_u32 v{DST+k}, v{SRC+k}, 3, v{DST+k}
""")
    o("s_cbranch_vccnz F_ovf")
    for k in range(4):
        o(f"ds_write2_b32 v{DST+k}, v{R0+k}, v{EW[k]} offset0:2 offset1:3")
    o("F_ovfback:\ns_mov_b64 exec, -1")

def bin_overflow(o):
    o(f"F_ovf:\ns_mul_i32 s50, s2, {CHUNK*8}\ns_add_u32 s50, s50, {WS_OVF}\nv_mov_b32 v{TMP}, {L_BCNT+1024}")
    for k in range(4):
        o(f"""
v_cmp_gt_u32 vcc, {CAP}, v{RK+k}
s_and_saveexec_b64 s[62:63], vcc
ds_write2_b32 v{DST+k}, v{R0+k}, v{EW[k]} offset0:2 offset1:3
s_andn2_b64 exec, s[62:63], exec
s_cbranch_execz F_no{k}
ds_add_rtn_u32 v{TMP+4}, v{TMP}, v{TMP+3}
v_mov_b32 v{TMP+1}, v{R0+k}
v_and_b32 v{TMP+2}, 0xffff, v{EW[k]}
v_lshl_or_b32 v{TMP+2}, v{OWN+k}, 16, v{TMP+2}
s_waitcnt lgkmcnt(0)
v_lshlrev_b32 v{TMP+4}, 3, v{TMP+4}
buffer_store_dwordx2 {vr(TMP+1,2)}, v{TMP+4}, s[32:35], s50 offen sc1
s_waitcnt vmcnt(0)
F_no{k}:
s_mov_b64 exec, s[62:63]
""")
    o("s_branch F_ovfback")

def bin_copy(o):
    o(f"""
v_lshrrev_b32 v24, 3, v0
v_and_b32 v25, 7, v0
v_lshlrev_b32 v25, 4, v25
v_lshl_add_u32 v26, v24, 8, v25
v_lshl_add_u32 v27, v24, 14, v25
v_add_u32 v26, s61, v26
v_lshl_add_u32 v24, v24, 2, s60
ds_read2st64_b32 v[28:29], v24 offset0:0 offset1:2
ds_read_b128 v[8:11], v26
ds_read_b128 v[12:15], v26 offset:32768
ds_read_b128 v[16:19], v26 offset:128
ds_read_b128 v[20:23], v26 offset:{32768+128}
v_mov_b32 v30, {L_BCNT+1024}
ds_read_b32 v30, v30
v_and_b32 v25, 48, v25
v_cmp_eq_u32 s[{sBM}:{sBM+1}], 0, v25
s_lshl_b32 s49, s2, 8
s_add_u32 s49, s49, {WS_CELL}
s_add_u32 s50, s49, {128*16384}
v_mov_b32 v25, 0x7f000000
v_mov_b32 v31, s100
s_waitcnt lgkmcnt(5)
v_cmp_lt_u32 vcc, 14, v28
v_min_u32 v28, {CAP}, v28
v_cmp_lt_u32 s[62:63], 14, v29
v_min_u32 v29, {CAP}, v29
v_cndmask_b32 v24, v25, v27, vcc
v_cndmask_b32 v25, v25, v27, s[62:63]
s_waitcnt lgkmcnt(4)
v_cndmask_b32 v8, v8, v28, s[{sBM}:{sBM+1}]
v_cndmask_b32 v9, v9, v31, s[{sBM}:{sBM+1}]
buffer_store_dwordx4 v[8:11], v27, s[32:35], s49 offen sc1
s_waitcnt lgkmcnt(3)
v_cndmask_b32 v12, v12, v29, s[{sBM}:{sBM+1}]
v_cndmask_b32 v13, v13, v31, s[{sBM}:{sBM+1}]
buffer_store_dwordx4 v[12:15], v27, s[32:35], s50 offen sc1
s_waitcnt lgkmcnt(2)
v_cndmask_b32 v17, v17, v31, s[{sBM}:{sBM+1}]
buffer_store_dwordx4 v[16:19], v24, s[32:35], s49 offen offset:128 sc1
s_waitcnt lgkmcnt(1)
v_cndmask_b32 v21, v21, v31, s[{sBM}:{sBM+1}]
buffer_store_dwordx4 v[20:23], v25, s[32:35], s50 offen offset:128 sc1
s_cmp_lg_u32 s{sWAVE}, 0
s_cbranch_scc1 F_bc1
s_lshl_b32 s50, s2, 3
s_add_u32 s50, s50, {WS_OVFC}
s_mov_b64 exec, 1
s_waitcnt lgkmcnt(0)
buffer_store_dwordx2 v[30:31], v{VTG}, s[32:35], s50 offen sc1
s_mov_b64 exec, -1
F_bc1:
""")

def gen(o):
    XNT = "" if "nont" in OPT else "nt"
    AA = [A0, A1]
    TT = [T0, T1]
    o(f"""
.globl {KNAME}
.p2align 8
.type {KNAME},@function
{KNAME}:
s_cmp_ge_u32 s2, 256
s_cbranch_scc1 L_end
s_load_dwordx2 s[28:29], s[0:1], 0
s_load_dwordx2 s[44:45], s[0:1], 32
s_load_dwordx2 s[36:37], s[0:1], 24
s_load_dwordx2 s[12:13], s[0:1], 16
s_load_dwordx2 s[52:53], s[0:1], 8
s_load_dwordx2 s[40:41], s[0:1], 40
s_load_dwordx2 s[32:33], s[0:1], 64
s_load_dwordx2 s[96:97], s[0:1], 56
s_load_dwordx2 s[20:21], s[0:1], 48
s_memrealtime s[100:101]
""")
    if STAMP: o("s_memrealtime s[80:81]")
    ops = []
    def vm(target):
        return len(ops) - 1 - max(i for i, x in enumerate(ops) if x == target)
    def dma(s, count=True):
        for m in range(2):
            o(f"""
s_add_u32 m0, s{sSO}, {(s & 3) * 32768 + m*16384}
s_add_u32 s{sM0}, s{sSO}, {m*131072 + s*16384}
buffer_load_dwordx4 v{VWS}, s[44:47], s{sM0} offen lds
""")
        if count:
            ops.extend([("d", s)] * 2)
    o(f"""
v_lshrrev_b32 v2, 6, v0
v_and_b32 v1, 63, v0
s_mul_i32 s{sN0}, s2, 625
v_readfirstlane_b32 s{sWAVE}, v2
v_lshrrev_b32 v4, 5, v1
v_and_b32 v6, 31, v1
s_add_u32 s{sCNT}, s{sN0}, 640
s_add_u32 s{sN0}, s{sN0}, 15
s_lshr_b32 s{sN0}, s{sN0}, 4
s_lshl_b32 s50, s{sWAVE}, 1
v_add_u32 v5, s50, v4
v_lshlrev_b32 v2, 4, v0
v_and_b32 v7, 15, v5
v_xor_b32 v7, v7, v6
v_lshlrev_b32 v7, 4, v7
v_lshl_add_u32 v7, v4, 9, v7
v_mov_b32 v{VEND}, v7
v_lshlrev_b32 v{LO}, 2, v1
v_mov_b32 v{VTG}, 0
s_mov_b32 s30, {N*512}
s_mov_b32 s31, 0x20000
s_mov_b32 s46, {513*512}
s_mov_b32 s47, 0x20000
s_mov_b32 s38, 640000
s_mov_b32 s39, 0x20000
s_mov_b32 s14, 640000
s_mov_b32 s15, 0x20000
s_mov_b32 s54, 320000
s_mov_b32 s55, 0x20000
s_mov_b32 s98, 256
s_mov_b32 s99, 0x20000
s_lshl_b32 s{sSO}, s{sWAVE}, 10
s_lshl_b32 s51, s{sN0}, 9
s_add_u32 s51, s51, s{sSO}
s_add_u32 m0, s{sSO}, {L_XS}
s_cmp_ge_u32 s2, 64
s_cbranch_scc1 F_nobl
s_mul_i32 s49, s2, 10000
s_mul_i32 s50, s2, 5000
v_lshlrev_b32 v{TMP}, 3, v0
s_cmp_ge_u32 s{sWAVE}, 10
s_waitcnt lgkmcnt(0)
s_cbranch_scc1 F_nel
buffer_load_dwordx4 {vr(DST,4)}, v2, s[36:39], s49 offen {XNT}
buffer_load_dwordx4 {vr(SRC,4)}, v2, s[12:15], s49 offen {XNT}
buffer_load_dwordx2 {vr(EA,2)}, v{TMP}, s[52:55], s50 offen {XNT}
s_branch F_ne2
F_nel:
s_sub_u32 s50, s{sWAVE}, 10
s_cmp_ge_u32 s50, 2
s_cbranch_scc1 F_ne2
s_lshr_b32 s49, s2, 3
s_lshl_b32 s49, s49, 13
s_lshl_b32 s50, s50, 12
s_add_u32 s49, s49, s50
v_lshlrev_b32 v{TMP}, 6, v1
buffer_load_dword v77, v{TMP}, s[44:47], s49 offen
F_ne2:
v_lshlrev_b32 v{TMP}, 2, v0
v_add_u32 v{TMP}, {L_BCNT}, v{TMP}
s_cmp_ge_u32 s{sWAVE}, 5
s_cbranch_scc1 F_nbz
ds_write_b32 v{TMP}, v{VTG}
F_nbz:
s_branch F_nx
F_nobl:
""")
    if "ipf" in OPT:
        o(f"""
s_cmp_lt_u32 s2, 240
s_cbranch_scc1 F_nipf
s_sub_u32 s50, s{sWAVE}, 8
s_cmp_ge_u32 s50, 2
s_cbranch_scc1 F_nipf
s_getpc_b64 s[22:23]
s_lshl_b32 s50, s50, 12
v_lshlrev_b32 v{TMP}, 6, v1
v_add_u32 v{TMP}, s50, v{TMP}
global_load_dword v77, v{TMP}, s[22:23]
F_nipf:
""")
    o(f"""
s_cmp_ge_u32 s{sWAVE}, 4
s_waitcnt lgkmcnt(0)
buffer_load_dwordx4 v7, s[28:31], s51 offen {XNT} lds
s_cbranch_scc1 F_nox2
s_add_u32 m0, s{sSO}, {L_XS + 16384}
s_add_u32 s50, s51, 16384
buffer_load_dwordx4 v7, s[28:31], s50 offen {XNT} lds
s_lshl_b32 s49, s2, 4
s_add_u32 s49, s49, s{sWAVE}
s_cmp_lg_u32 s49, 0xff0
s_cbranch_scc1 F_nox2
s_or_b32 s49, s100, 1
v_mov_b32 v{TMP+1}, s49
v_mov_b32 v{TMP+2}, s101
s_mov_b64 exec, 1
buffer_store_dwordx2 {vr(TMP+1,2)}, v{VTG}, s[96:99], 0 offen sc1
s_mov_b64 exec, -1
F_nox2:
s_sub_u32 s50, s{sWAVE}, 6
s_cmp_ge_u32 s50, 2
s_cbranch_scc1 F_ntc
s_lshr_b32 s49, s2, 3
s_lshl_b32 s49, s49, 13
s_lshl_b32 s50, s50, 12
s_add_u32 s49, s49, s50
v_lshlrev_b32 v7, 6, v1
buffer_load_dword v77, v7, s[44:47], s49 offen
F_ntc:
s_mov_b32 s50, {512*512}
buffer_load_dword v{W3}, v{LO}, s[44:47], s50 offen
buffer_load_dword v{W3+1}, v{LO}, s[44:47], s50 offen offset:256
F_nx:
v_and_b32 v{TMP}, 3, v5
v_bfe_u32 v{TMP+1}, v5, 3, 1
v_lshl_or_b32 v{TMP}, v{TMP+1}, 2, v{TMP}
v_lshlrev_b32 v{TMP}, 1, v{TMP}
v_xor_b32 v{TMP}, v{TMP}, v6
v_lshlrev_b32 v{TMP}, 4, v{TMP}
v_lshl_add_u32 v{VWS}, v4, 9, v{TMP}
s_mov_b32 s42, {512*512}
s_mov_b32 s43, 0x20000
s_mov_b32 s34, {WS_END}
s_mov_b32 s35, 0x20000
s_sub_u32 s48, s2, 64
""")
    if "early0" in OPT:
        o("s_cmp_lt_u32 s2, 64\ns_cbranch_scc1 F_ne0")
        dma(0)
        o("F_ne0:")
    o(f"""
s_lshr_b32 s{sCNT}, s{sCNT}, 4
s_sub_u32 s{sCNT}, s{sCNT}, s{sN0}
v_lshlrev_b32 v{VC}, 3, v1
v_lshrrev_b32 v3, 4, v1
v_and_b32 v4, 15, v1
v_xor_b32 v{VXA}, v4, v3
v_lshlrev_b32 v{VXA}, 4, v{VXA}
v_lshl_add_u32 v{VXA}, v4, 9, v{VXA}
v_add_u32 v{VXA}, {L_XS}, v{VXA}
v_bfe_u32 v5, v1, 2, 2
v_and_b32 v6, 3, v1
v_lshl_add_u32 v{VWA}, v3, 3, v5
v_lshlrev_b32 v{VWA}, 9, v{VWA}
v_lshl_add_u32 v{VWA}, v6, 3, v{VWA}
v_and_b32 v7, 1, v3
v_lshl_or_b32 v{TMP}, v7, 2, v5
v_xor_b32 v{TMP}, s{sWAVE}, v{TMP}
v_lshl_add_u32 v{VWA}, v{TMP}, 5, v{VWA}
v_add_u32 v{VWB}, 0x10000, v{VWA}
v_add_u32 v{TMP+4}, {L_CNT}, v{LO}
ds_write2st64_b32 v{TMP+4}, v{VTG}, v{VTG} offset0:0 offset1:1
s_cmp_ge_u32 s48, 16
s_cbranch_scc1 F_npd
s_lshl_b32 s49, s48, 14
s_add_u32 m0, s{sSO}, {L_PK}
s_add_u32 s49, s49, s{sSO}
buffer_load_dwordx4 v{VWS}, s[40:43], s49 offen lds
F_npd:
s_mov_b32 s{sSC}, {NEGL2E:#x}
s_mov_b32 s{sSC+1}, {NEGL2E:#x}
v_lshrrev_b32 v{TMP}, 1, v3
s_lshl_b32 s{sT1}, s{sWAVE}, 1
v_or_b32 v{TMP}, s{sT1}, v{TMP}
v_xor_b32 v{TMP}, v{TMP}, v4
v_lshlrev_b32 v{TMP}, 4, v{TMP}
v_lshl_add_u32 v{VN}, v4, 9, v{TMP}
v_lshl_add_u32 v{VN}, v7, 3, v{VN}
v_add_u32 v{VN}, {L_PST}, v{VN}
v_lshrrev_b32 v{VB}, 5, v0
v_add_u32 v{TMP}, 32, v{VB}
v_cmp_gt_u32 vcc, s{sCNT}, v{TMP}
v_lshlrev_b32 v{VB}, 4, v{VB}
v_xor_b32 v{VB}, v{VB}, v2
v_add_u32 v{VB}, {L_PST}, v{VB}
v_add_u32 v{VI}, 0x4000, v2
v_mov_b32 v{TMP}, 0x7ffffff0
v_cndmask_b32 v{VI}, v{TMP}, v{VI}, vcc
s_cmp_lt_u32 s2, 64
s_cbranch_scc1 F_nd0
""")
    if "early0" in OPT:
        o("s_barrier")
        dma(1)
    else:
        dma(0)
    o(f"""
F_nd0:
v_cmp_eq_u32 vcc, v5, v3
v_and_b32 v{TMP+2}, 1, v1
v_lshlrev_b32 v{TMP+2}, 4, v{TMP+2}
v_mov_b32 v{TMP+3}, 0x3f80
v_lshlrev_b32 v{TMP+3}, v{TMP+2}, v{TMP+3}
v_cndmask_b32 v{TMP+3}, 0, v{TMP+3}, vcc
v_xor_b32 v{VEL}, 2, v6
v_lshlrev_b32 v{VEL}, 2, v{VEL}
v_add_u32 v{VEL}, {L_ET}, v{VEL}
v_mov_b32 v{TMP+2}, 0x30000
v_cndmask_b32 v{VEL}, v{TMP+2}, v{VEL}, vcc
v_cmp_gt_u32 vcc, 2, v6
v_mul_u32_u24 v{CK0}, 7, v5
v_lshl_add_u32 v{CK1}, v6, 1, v{CK0}
v_cndmask_b32 v{A1}, 0, v{TMP+3}, vcc
v_cndmask_b32_e64 v{A1+1}, v{TMP+3}, 0, vcc
v_cmp_eq_u32 vcc, 0, v6
v_add_u32 v{CK2}, -1, v{CK1}
v_mov_b32 v{TMP}, 64
s_movk_i32 s{sT0}, {RS}
v_cndmask_b32 v{CK2}, v{CK2}, v{TMP}, vcc
v_mul_u32_u24 v{IX}, s{sT0}, v4
v_lshl_add_u32 v{IX}, v3, 4, v{IX}
s_lshl_b32 s{sT0}, s{sWAVE}, 6
v_add_u32 v{IX}, s{sT0}, v{IX}
s_mov_b64 s[8:9], s[32:33]
s_mov_b32 s10, {N*512}
s_mov_b32 s11, 0x20000
s_mov_b32 s16, s32
s_or_b32 s17, s33, 0x40000
s_mov_b32 s18, {N*512}
s_mov_b32 s19, 0x800000
s_mov_b32 s{sONE}, 1.0
s_mov_b32 s{sONE+1}, 1.0
s_mov_b32 s{sBND}, 0x7b800000
s_mov_b32 s{sW1}, 0
s_cmp_lt_u32 s2, 64
s_cbranch_scc1 F_bin
""")
    if "early0" not in OPT:
        o("s_barrier")
        dma(1)
    o(f"""
s_branch F_nbr
F_bin:
s_movk_i32 s57, 625
v_cmp_gt_u32 s[{sBM}:{sBM+1}], s57, v0
s_mov_b32 s56, 429497
s_mov_b32 s60, {L_BCNT}
s_mov_b32 s61, {L_IMG}
""")
    if "pre" in STEPS: stamp(o, (1, 2, 3, 4, 6)[STEPS.index("pre")])
    o(f"""
s_waitcnt vmcnt(0) lgkmcnt(0)
s_barrier
buffer_load_dwordx2 {vr(TAG,2)}, v{VTG}, s[96:99], 0 offen sc1
s_add_u32 m0, s{sSO}, {L_XS}
s_cmp_ge_u32 s{sWAVE}, 4
buffer_load_dwordx4 v{VEND}, s[28:31], s51 offen {XNT} lds
s_cbranch_scc1 F_nox2b
s_add_u32 m0, s{sSO}, {L_XS + 16384}
s_add_u32 s50, s51, 16384
buffer_load_dwordx4 v{VEND}, s[28:31], s50 offen {XNT} lds
F_nox2b:
s_mov_b32 s50, {512*512}
buffer_load_dword v{W3}, v{LO}, s[44:47], s50 offen
buffer_load_dword v{W3+1}, v{LO}, s[44:47], s50 offen offset:256
""")
    st0 = lambda name: stamp(o, (1, 2, 3, 4, 6)[STEPS.index(name)]) if name in STEPS else None
    st0("edge")
    bin_rank(o)
    st0("rank")
    dma(0, False)
    o("s_waitcnt lgkmcnt(0)\ns_barrier")
    dma(1, False)
    o("s_waitcnt vmcnt(7)")
    get_tag(o, "b")
    bin_copy(o)
    o("F_nbr:")
    st0("copy")
    def st(name):
        if name in STEPS: stamp(o, (1, 2, 3, 4, 6)[STEPS.index(name)])
    def reads(s):
        l = []
        a = VXA
        if s:
            a = TMP + 6
            o(f"v_xor_b32 v{a}, {64*s}, v{VXA}")
        xf, wf = XFB[s & 1], WFB[s & 1]
        wa = VWA if (s & 3) < 2 else VWB
        for rt in range(3):
            l.append(f"ds_read_b128 {vr(xf+4*rt,4)}, v{a} offset:{rt*8192}")
        for m in range(2):
            off = (s & 1) * 32768 + m * 16384
            l.append(f"ds_read_b64_tr_b16 {vr(wf+4*m,2)}, v{wa} offset:{off}\nds_read_b64_tr_b16 {vr(wf+4*m+2,2)}, v{wa} offset:{off + 2048}")
        return l
    SCHED = {-1: [2], 0: [3, 4], 1: [5], 2: [6], 3: [7]}
    for s in range(-1, 8):
        if s < 7:
            n = vm(("d", s + 1))
            if s <= 1:
                nb = {-1: 6, 0: 7, 1: 4}[s]
                npk = n + (1 if s >= 0 else 0)
                o(f"""
s_cmp_lt_u32 s2, 64
s_cbranch_scc0 F_wb{s+1}
s_waitcnt vmcnt({nb})
s_branch F_wc{s+1}
F_wb{s+1}:
s_waitcnt vmcnt({npk})
s_cmp_lt_u32 s48, 16
s_cbranch_scc1 F_wc{s+1}
s_waitcnt vmcnt({n})
F_wc{s+1}:
s_waitcnt lgkmcnt(0)
s_barrier
""")
            else:
                o(f"s_waitcnt vmcnt({n}) lgkmcnt(0)\ns_barrier")
        else:
            o("s_waitcnt lgkmcnt(0)\ns_barrier")
        st(f"s{s}")
        if s == -1:
            o(f"buffer_load_dwordx2 {vr(TG0,2)}, v{VTG}, s[96:99], 0 offen sc1")
            ops.append("tag")
        rd = reads(s + 1) if s < 7 else []
        mm = []
        if s >= 0:
            for m, acc in enumerate((PA, QA)):
                for rt in range(3):
                    c = "0" if s == 0 else vr(acc+4*rt, 4)
                    mm.append(f"v_mfma_f32_16x16x32_bf16 {vr(acc+4*rt,4)}, {vr(WFB[s&1]+4*m,4)}, {vr(XFB[s&1]+4*rt,4)}, {c}")
        if s == 7:
            late, mm = mm[3:], mm[:3]
        while rd or mm:
            if mm: o(mm.pop(0))
            if rd: o(rd.pop(0))
        for t in SCHED.get(s, []):
            dma(t)
        if s == -1:
            o(f"""
s_cmp_ge_u32 s48, 16
s_cbranch_scc1 F_d0
ds_read_b64_tr_b16 v[4:5], v{VWB} offset:32768
ds_read_b64_tr_b16 v[6:7], v{VWB} offset:{32768+2048}
s_lshl_b32 s50, s{sWAVE}, 13
s_and_b32 s49, s48, 7
s_lshl_b32 s49, s49, 10
s_add_u32 s50, s50, s49
s_lshr_b32 s49, s48, 3
s_lshl_b32 s49, s49, 17
s_add_u32 s50, s50, s49
s_add_u32 s50, s50, {WS_WPACK}
v_lshlrev_b32 v12, 4, v1
s_waitcnt lgkmcnt(0)
buffer_store_dwordx4 v[4:7], v12, s[32:35], s50 offen sc1
F_d0:
""")
        if s == 0 and "direct" in OPT:
            o(f"""
v_lshlrev_b32 v{VN}, 9, v{TMP+1}
v_lshl_add_u32 v{VN}, v3, 3, v{VN}
s_lshl_b32 s{sT1}, s{sWAVE}, 5
v_add_u32 v{VN}, s{sT1}, v{VN}
v_add_u32 v{TMP}, 32, v{TMP+1}
v_cmp_gt_u32 vcc, s{sCNT}, v{TMP}
v_add_u32 v{VI}, 0x4000, v{VN}
v_mov_b32 v{TMP}, 0x7ffffff0
s_nop 0
v_cndmask_b32 v{VI}, v{TMP}, v{VI}, vcc
""")
        if s == 2:
            assert ops.index("tag") < ops.index(("d", 3))
            o(f"s_cmp_ge_u32 s48, 16\ns_cbranch_scc1 F_d5\ns_cmp_lg_u32 s{sWAVE}, 0\ns_cbranch_scc1 F_d5\nv_mov_b64 {vr(TAG,2)}, {vr(TG0,2)}")
            get_tag(o, "p")
            o(f"s_lshl_b32 s{sT0}, s48, 7\ns_add_u32 s{sT0}, s{sT0}, {WS_FLAG + 256*128}")
            put_flag(o, f"s{sT0}")
            o("F_d5:")
    o(f"s_lshl_b32 s{sT2}, s{sN0}, 9\ns_add_u32 s{sT1}, s{sT2}, 8192\ns_nop 3")
    if "direct" in OPT:
        for rt in range(3):
            a_ = PA + 4*rt
            o(f"""
v_pk_mul_f32 {vr(a_,2)}, {vr(a_,2)}, s[{sSC}:{sSC+1}]
v_pk_mul_f32 {vr(a_+2,2)}, {vr(a_+2,2)}, s[{sSC}:{sSC+1}]
v_cvt_pk_bf16_f32 v{W+2*rt}, v{a_}, v{a_+1}
v_cvt_pk_bf16_f32 v{W+2*rt+1}, v{a_+2}, v{a_+3}
buffer_store_dwordx2 {vr(W+2*rt,2)}, v{VN if rt < 2 else VI}, s[8:11], s{sT1 if rt == 1 else sT2} offen sc1
""")
        o("\n".join(late))
        o("s_barrier")
    else:
        for rt in range(3):
            a_ = PA + 4*rt
            o(f"""
v_pk_mul_f32 {vr(a_,2)}, {vr(a_,2)}, s[{sSC}:{sSC+1}]
v_pk_mul_f32 {vr(a_+2,2)}, {vr(a_+2,2)}, s[{sSC}:{sSC+1}]
v_cvt_pk_bf16_f32 v{W+2*rt}, v{a_}, v{a_+1}
v_cvt_pk_bf16_f32 v{W+2*rt+1}, v{a_+2}, v{a_+3}
ds_write_b64 v{VN}, {vr(W+2*rt,2)} offset:{rt*8192}
""")
        o("\n".join(late))
        o(f"""
s_cmp_lt_u32 s{sWAVE}, 8
s_waitcnt lgkmcnt(0)
s_barrier
s_cbranch_scc0 F_nps
ds_read_b128 {vr(W,4)}, v{VB}
ds_read_b128 {vr(W+4,4)}, v{VB} offset:8192
ds_read_b128 {vr(W+8,4)}, v{VB} offset:16384
s_waitcnt lgkmcnt(2)
buffer_store_dwordx4 {vr(W,4)}, v2, s[8:11], s{sT2} offen sc1
s_waitcnt lgkmcnt(1)
buffer_store_dwordx4 {vr(W+4,4)}, v2, s[8:11], s{sT1} offen sc1
s_waitcnt lgkmcnt(0)
buffer_store_dwordx4 {vr(W+8,4)}, v{VI}, s[8:11], s{sT2} offen sc1
F_nps:
s_barrier
""")

    st("pst")
    o(f"""
s_lshl_b32 s{sOFF}, s2, 14
s_add_u32 s{sOFF}, s{sOFF}, {WS_CELL}
buffer_load_dwordx4 {vr(REC,4)}, v2, s[32:35], s{sOFF} offen sc1
v_mov_b64 {vr(TAG,2)}, {vr(TG0,2)}
""")
    get_tag(o, "m")
    o(f"s_cmp_lg_u32 s{sWAVE}, 15\ns_cbranch_scc1 F_npk\ns_mov_b32 s{sT0}, {WS_FLAG + 256*128}")
    poll(o, "k", f"s{sT0}", 16)
    o("F_npk:")
    o(f"s_mov_b32 s{sT2}, 0\ns_waitcnt vmcnt(1)\ns_barrier")
    st("drain")
    o(f"s_cmp_lg_u32 s{sWAVE}, 0\ns_cbranch_scc1 F_nfp\ns_lshl_b32 s{sT0}, s2, 7\ns_add_u32 s{sT0}, s{sT0}, {WS_FLAG}")
    put_flag(o, f"s{sT0}")
    o(f"""
F_nfp:
s_lshl_b32 s12, s{sWAVE}, 13
s_add_u32 s12, s12, {WS_WPACK}
s_add_u32 s13, s12, 4096
v_lshlrev_b32 v{VE}, 4, v1
""")
    wl = lambda kss: wloads(o, 0, W, kss, 12, 13, VE, False)
    wl((0, 1))
    o(f"""
v_mov_b64 {vr(ZR,2)}, 0
v_mov_b64 {vr(ZR+2,2)}, 0
v_add_u32 v{VB}, {L_AGB}, v2
v_add_u32 v{VI}, {L_ET}, v2
ds_write_b128 v{VB}, {vr(ZR,4)}
ds_write_b128 v{VB}, {vr(ZR,4)} offset:4096
v_add_u32 v{VB}, {L_IDX}, v2
ds_write_b128 v{VB}, {vr(ZR,4)}
ds_write_b128 v{VI}, {vr(ZR,4)}
ds_write_b128 v{VI}, {vr(ZR,4)} offset:16384
ds_write_b128 v{VI}, {vr(ZR,4)} offset:16448
""")
    o(f"""
v_lshlrev_b32 v{TMP}, 16, v{W3}
v_and_b32 v{TMP+1}, 0xffff0000, v{W3}
v_lshlrev_b32 v{TMP+2}, 16, v{W3+1}
v_and_b32 v{TMP+3}, 0xffff0000, v{W3+1}
v_mul_f32 v{TMP}, s{sSC}, v{TMP}
v_mul_f32 v{TMP+1}, s{sSC}, v{TMP+1}
v_mul_f32 v{TMP+2}, s{sSC}, v{TMP+2}
v_mul_f32 v{TMP+3}, s{sSC}, v{TMP+3}
v_cvt_pk_bf16_f32 v6, v{TMP}, v{TMP+1}
v_cvt_pk_bf16_f32 v7, v{TMP+2}, v{TMP+3}
""")
    for k in range(1, R):
        o(f"v_mov_b64 {vr(RING+4*k+2,2)}, v[6:7]")
    o(f"""
v_mov_b64 {vr(A0,2)}, {vr(A1,2)}
s_mov_b32 s{sRND}, 0
s_mov_b64 s[40:41], s[20:21]
s_mov_b32 s42, {N*512}
""")
    for rt in range(3):
        o(f"""
v_pk_mul_f32 {vr(QA+4*rt,2)}, {vr(QA+4*rt,2)}, s[{sSC}:{sSC+1}]
v_pk_mul_f32 {vr(QA+4*rt+2,2)}, {vr(QA+4*rt+2,2)}, s[{sSC}:{sSC+1}]
ds_write_b128 v{IX}, {vr(QA+4*rt,4)} offset:{L_QS + rt*16*RS}
""")
    wl((2, 3))
    st("q")
    o(f"""
s_waitcnt vmcnt(4)
F_cl:
v_mov_b32_dpp v{TMP}, v{REC+1} row_newbcast:0 row_mask:0xf bank_mask:0xf
v_mov_b32_dpp v{TMP+1}, v{REC} row_newbcast:0 row_mask:0xf bank_mask:0xf
v_mov_b32_dpp v{TMP+2}, v{REC+1} quad_perm:[0,0,0,0] row_mask:0xf bank_mask:0xf
v_cmp_eq_u32 vcc, s100, v{TMP}
v_cmp_ne_u32 s[{sM}:{sM+1}], s100, v{TMP+2}
s_add_u32 s{sT2}, s{sT2}, 1
v_cndmask_b32 v{TMP+1}, 0, v{TMP+1}, vcc
v_max_u32 v{TMP+3}, 1, v{TMP+1}
v_cmp_lt_u32 vcc, v{CK0}, v{TMP+3}
s_cmp_ge_u32 s{sT2}, 0x10000
s_cbranch_scc1 F_cd
s_and_b64 exec, vcc, s[{sM}:{sM+1}]
s_cbranch_execz F_cd
s_sleep 1
buffer_load_dwordx4 {vr(REC,4)}, v2, s[32:35], s{sOFF} offen sc1
s_mov_b64 exec, -1
s_waitcnt vmcnt(0)
s_branch F_cl
F_cd:
s_mov_b64 exec, -1
v_cmp_gt_u32 s[{sV0}:{sV0+1}], v{TMP+1}, v{CK2}
v_cmp_gt_u32 s[{sV1}:{sV1+1}], v{TMP+1}, v{CK1}
""")
    st("cell")
    sort_rank(o)
    wl((4, 5))
    o("s_waitcnt lgkmcnt(0)\ns_barrier")
    sort_scatter(o)
    o(f"""
s_lshl_b32 s{sOC}, s{sWAVE}, 13
s_add_u32 s{sOC}, s{sOC}, {WS_FLAG}
v_lshlrev_b32 v{TMP}, 7, v1
""")
    o(f"""
s_cmp_ge_u32 s{sWAVE}, 4
s_cbranch_scc1 F_np1
buffer_load_dwordx2 {vr(TMP+1,2)}, v{TMP}, s[32:35], s{sOC} offen sc1
F_np1:
""")
    st("u")
    o(f"""
s_cmp_ge_u32 s{sWAVE}, 4
s_cbranch_scc1 F_npp
s_mov_b32 s{sT1}, 0
s_waitcnt vmcnt(0)
F_plp:
v_cmpx_ne_u64 vcc, s[100:101], {vr(TMP+1,2)}
s_add_u32 s{sT1}, s{sT1}, 1
s_nop 3
s_cbranch_execz F_pdp
s_cmp_ge_u32 s{sT1}, 0x10000
s_cbranch_scc1 F_pdp
{next((f"s_sleep {x[3:]}" for x in OPT if x.startswith("psl")), "")}
buffer_load_dwordx2 {vr(TMP+1,2)}, v{TMP}, s[32:35], s{sOC} offen sc1
s_waitcnt vmcnt(0)
s_branch F_plp
F_pdp:
s_mov_b64 exec, -1
""")
    o(f"""
F_npp:
""")
    wl((6, 7))
    o(f"""
s_mov_b32 s{sT0}, {WS_OVFC}
buffer_load_dwordx2 {vr(VOVF,2)}, v{VC}, s[32:35], s{sT0} offen sc1
s_waitcnt lgkmcnt(0)
s_barrier
L_pr:
""")
    st("b3")
    zero_cnt(o)
    prime(o)
    o(f"""
s_cmp_lg_u32 s{sRND}, 0
s_cbranch_scc1 L_go
s_call_b64 s[{sRET}:{sRET+1}], L_ugemm
L_go:
""")
    st("go")
    stamp(o, 5)
    o(f"""
s_mov_b64 vcc, 0
s_mov_b32 s{sK}, {KMAX}
s_add_u32 s{sRND}, s{sRND}, 1
s_cmp_ge_u32 s{sP}, s{sP1}
s_cbranch_scc1 L_loopdone
v_cmp_eq_u32 s[{sM}:{sM+1}], s{sP}, v{VEND}
s_sub_u32 s{sIT}, s{sP1}, s{sP}
s_add_u32 s{sIT}, s{sIT}, {R-1}
s_mul_i32 s{sIT}, s{sIT}, 171
s_lshr_b32 s{sIT}, s{sIT}, 10
s_cmp_eq_u32 s{sP}, 0
s_cselect_b32 s{sT2}, 1, 0
s_cmp_lg_u64 s[{sM}:{sM+1}], 0
s_cselect_b32 s{sT2}, 1, s{sT2}
s_xor_b32 s{sHEAD}, s{sT2}, 1
s_call_b64 s[{sRET}:{sRET+1}], L_newnode
s_setprio 3
s_waitcnt vmcnt({2*(R-1)}) lgkmcnt(0)
v_mfma_f32_16x16x32_bf16 {vr(T0,4)}, {vr(A0,4)}, {vr(RING,4)}, {vr(Q,4)}
s_nop 5
L_top:
""")
    for k in range(R):
        B = RING + 4*k
        B1 = RING + 4*((k+1) % R)
        ex, pk = valu_block(TT[k & 1])
        o(f"""
s_waitcnt vmcnt({2*(R-2)}) lgkmcnt(0)
v_mfma_f32_16x16x32_bf16 {vr(TT[(k+1)&1],4)}, {vr(AA[(k+1)&1],4)}, {vr(B1,4)}, {vr(Q,4)}
{ex}
buffer_load_dword v{B}, v{IX}, s[16:19], 0 offen sc1
buffer_load_dword v{B+1}, v{IX}, s[16:19], 0 offen offset:256 sc1
ds_read_b32 v{IX}, v{VI} offset:{4*(k+R+1)}
ds_read2_b32 {vr(AA[k&1]+2,2)}, v{VE} offset0:{4*(k+2)} offset1:{4*(k+2)+2}
{pk}
s_sub_u32 s{sREM}, s{sREM}, 1
s_cbranch_scc1 L_call{k}
L_next{k}:
""")
    o(f"""
v_add_u32 v{VI}, {4*R}, v{VI}
v_add_u32 v{VE}, {16*R}, v{VE}
s_sub_u32 s{sIT}, s{sIT}, 1
s_cmp_ge_u32 s{sIT}, {PRIO[0]}
s_cbranch_scc1 L_top
s_setprio 2
s_cmp_ge_u32 s{sIT}, {PRIO[1]}
s_cbranch_scc1 L_top
s_setprio 1
s_cmp_ge_u32 s{sIT}, {PRIO[2]}
s_cbranch_scc1 L_top
s_setprio 0
{"" if "overrun" in OPT else f"v_mov_b32 v{VI}, {L_CNT}"}
s_branch L_top
""")
    for k in range(R):
        B1 = RING + 4*((k+1) % R)
        o(f"""
L_call{k}:
s_call_b64 s[{sRET}:{sRET+1}], L_flush
s_cbranch_scc0 L_special
s_waitcnt lgkmcnt(0)
v_mfma_f32_16x16x32_bf16 {vr(TT[(k+1)&1],4)}, {vr(AA[(k+1)&1],4)}, {vr(B1,4)}, {vr(Q,4)}
s_nop 4
s_branch L_next{k}
""")
    o(f"""
L_flush:
v_rcp_f32 v{E}, v{D}
v_rcp_f32 v{E+1}, v{D+1}
v_rcp_f32 v{E+2}, v{D+2}
v_rcp_f32 v{E+3}, v{D+3}
s_mov_b32 s{sP}, s{sSEGE}
s_cbranch_vccnz L_nochk
v_pk_fma_f32 {vr(CK,2)}, {vr(NN,2)}, 0, {vr(D,2)}
v_pk_fma_f32 {vr(CK+2,2)}, {vr(NN+2,2)}, 0, {vr(D+2,2)}
v_pk_add_f32 {vr(CK,2)}, {vr(CK,2)}, {vr(CK+2,2)}
v_add_f32 v{CK}, v{CK}, v{CK+1}
v_cmp_nle_f32 s[{sM}:{sM+1}], v{CK}, s{sBND}
s_nop 3
s_cmp_eq_u64 s[{sM}:{sM+1}], 0
s_cbranch_scc1 L_nochk
s_mov_b32 s{sP}, s{sSEGS}
s_setpc_b64 s[{sRET}:{sRET+1}]
L_nochk:
v_pk_fma_f32 {vr(AC,2)}, {vr(NN,2)}, {vr(E,2)}, {vr(AC,2)}
v_pk_fma_f32 {vr(AC+2,2)}, {vr(NN+2,2)}, {vr(E+2,2)}, {vr(AC+2,2)}
s_cmp_lg_u32 s{sW1}, 0
s_cbranch_scc1 L_havew
s_mov_b32 s{sW1}, 1
""")
    wloads(o, 1, W)
    o(f"""
L_havew:
s_cmp_eq_u32 s{sP}, s{sNEND}
s_cbranch_scc1 L_fin
s_cmp_lg_u32 s{sP}, s{sP1}
s_cbranch_scc1 L_reinit
s_cmp_lg_u32 s{sHEAD}, 0
s_cbranch_scc1 L_pub
s_mov_b32 s{sT0}, s{sWAVE}
s_mov_b32 s{sT1}, s{sP1}
L_col:
s_add_u32 s{sT0}, s{sT0}, 1
s_lshl_b32 s{sT2}, s{sT0}, 2
s_add_u32 s{sT2}, s{sT2}, {L_HF}
v_mov_b32 v{CK}, s{sT2}
L_poll:
ds_read_b32 v{CK+1}, v{CK}
s_waitcnt lgkmcnt(0)
v_readfirstlane_b32 s{sT2}, v{CK+1}
s_nop 3
s_cmp_eq_u32 s{sT2}, s{sRND}
s_cbranch_scc1 L_got
s_sleep 1
s_branch L_poll
L_got:
s_lshl_b32 s{sT2}, s{sT0}, 10
s_add_u32 s{sT2}, s{sT2}, {L_HB}
v_add_u32 v{CK}, s{sT2}, v{VC}
ds_read2st64_b64 {vr(E,4)}, v{CK} offset0:0 offset1:1
s_add_u32 s{sT1}, s{sT1}, s{sCH}
s_waitcnt lgkmcnt(0)
v_pk_add_f32 {vr(AC,2)}, {vr(AC,2)}, {vr(E,2)}
v_pk_add_f32 {vr(AC+2,2)}, {vr(AC+2,2)}, {vr(E+2,2)}
s_cmp_lt_u32 s{sT1}, s{sNEND}
s_cbranch_scc1 L_col
s_branch L_wr
L_fin:
s_cmp_lg_u32 s{sHEAD}, 0
s_cbranch_scc1 L_pub
L_wr:
v_cvt_pk_bf16_f32 v{E}, v{AC}, v{AC+1}
v_cvt_pk_bf16_f32 v{E+1}, v{AC+2}, v{AC+3}
ds_write2st64_b32 v{VB}, v{E}, v{E+1} offset0:0 offset1:1
L_more:
s_mov_b32 s{sHEAD}, 0
s_cmp_lg_u32 s{sP}, s{sP1}
s_cbranch_scc1 L_newnode
s_setpc_b64 s[{sRET}:{sRET+1}]
L_pub:
s_lshl_b32 s{sT2}, s{sWAVE}, 10
s_add_u32 s{sT2}, s{sT2}, {L_HB}
v_add_u32 v{CK}, s{sT2}, v{VC}
s_lshl_b32 s{sT2}, s{sWAVE}, 2
s_add_u32 s{sT2}, s{sT2}, {L_HF}
v_mov_b32 v{CK+1}, s{sT2}
v_mov_b32 v{CK+2}, s{sRND}
ds_write2st64_b64 v{CK}, {vr(AC,2)}, {vr(AC+2,2)} offset0:0 offset1:1
s_waitcnt lgkmcnt(0)
ds_write_b32 v{CK+1}, v{CK+2}
s_branch L_more
L_old:
s_cmp_lg_u32 s{sHEAD}, 0
s_cbranch_scc1 L_reinit
ds_read2st64_b32 {vr(E,2)}, v{VB} offset0:0 offset1:1
s_waitcnt lgkmcnt(0)
v_lshlrev_b32 v{AC}, 16, v{E}
v_and_b32 v{AC+1}, 0xffff0000, v{E}
v_lshlrev_b32 v{AC+2}, 16, v{E+1}
v_and_b32 v{AC+3}, 0xffff0000, v{E+1}
s_branch L_reinit
L_newnode:
v_cmp_ge_u32 s[{sM}:{sM+1}], s{sP}, v{VEND}
v_mov_b64 {vr(AC,2)}, 0
v_mov_b64 {vr(AC+2,2)}, 0
s_nop 1
s_bcnt1_i32_b64 s{sT0}, s[{sM}:{sM+1}]
s_mul_i32 s{sT1}, s{sT0}, {RS}
v_readlane_b32 s{sNEND}, v{VEND}, s{sT0}
v_add_u32 v{VN}, s{sT1}, v{VC}
ds_read2st64_b64 {vr(Q,4)}, v{VN} offset0:0 offset1:1
s_and_b32 s{sT1}, s{sT0}, 15
s_lshl_b32 s{sT1}, s{sT1}, 4
s_lshl_b32 s{sT0}, s{sT0}, 9
s_or_b32 s{sT0}, s{sT0}, s{sT1}
s_add_u32 s{sT0}, s{sT0}, {L_AGB}
v_xor_b32 v{VB}, s{sT0}, v{LO}
s_cmp_lg_u32 s{sRND}, 1
s_cbranch_scc1 L_old
L_reinit:
v_mov_b64 {vr(NN,2)}, 0
v_mov_b64 {vr(NN+2,2)}, 0
v_mov_b64 {vr(D,2)}, s[{sONE}:{sONE+1}]
v_mov_b64 {vr(D+2,2)}, s[{sONE}:{sONE+1}]
s_mov_b32 s{sSEGS}, s{sP}
s_add_u32 s{sSEGE}, s{sP}, s{sK}
s_min_u32 s{sSEGE}, s{sSEGE}, s{sNEND}
s_min_u32 s{sSEGE}, s{sSEGE}, s{sP1}
s_sub_u32 s{sREM}, s{sSEGE}, s{sP}
s_sub_u32 s{sREM}, s{sREM}, 1
s_cmp_eq_u32 s{sP}, s{sP}
s_setpc_b64 s[{sRET}:{sRET+1}]
L_special:
s_cmp_eq_u32 s{sP}, s{sP1}
s_cbranch_scc1 L_loopdone
s_mov_b64 vcc, -1
s_mov_b32 s{sK}, 1
s_waitcnt vmcnt(0) lgkmcnt(0)
s_call_b64 s[{sRET}:{sRET+1}], L_reinit
L_slow:
s_lshl_b32 s{sT0}, s{sP}, 2
s_add_u32 s{sT0}, s{sT0}, {L_IDX}
v_mov_b32 v{VI}, s{sT0}
s_lshl_b32 s{sT0}, s{sP}, 4
v_add_u32 v{VE}, s{sT0}, v{VEL}
ds_read_b32 v{IX}, v{VI}
ds_read2_b32 {vr(A0+2,2)}, v{VE} offset0:0 offset1:2
s_waitcnt lgkmcnt(0)
buffer_load_dword v{RING}, v{IX}, s[16:19], 0 offen sc1
buffer_load_dword v{RING+1}, v{IX}, s[16:19], 0 offen offset:256 sc1
s_waitcnt vmcnt(0)
v_mfma_f32_16x16x32_bf16 {vr(T0,4)}, {vr(A0,4)}, {vr(RING,4)}, {vr(Q,4)}
s_nop 7
v_min_f32 v{T0}, 0x42fc0000, v{T0}
v_min_f32 v{T0+1}, 0x42fc0000, v{T0+1}
v_min_f32 v{T0+2}, 0x42fc0000, v{T0+2}
v_min_f32 v{T0+3}, 0x42fc0000, v{T0+3}
{valu_block(T0)[0]}
{valu_block(T0)[1]}
s_call_b64 s[{sRET}:{sRET+1}], L_flush
s_cbranch_scc1 L_slow
L_loopdone:
""")
    st("le")
    if len(STEPS) < 5: stamp(o, 6)
    o(f"""
s_setprio 0
s_cmp_lg_u32 s{sW1}, 0
s_cbranch_scc1 L_ld2
s_mov_b32 s{sW1}, 1
""")
    wloads(o, 1, W)
    o(f"""
L_ld2:
s_cmp_lg_u32 s{sRND}, 1
s_cbranch_scc1 L_rn0
s_mov_b32 s{sOB}, 0
s_mov_b32 s{sT0}, {WS_OVFC}
L_ov:
s_waitcnt vmcnt(0)
v_cmp_ne_u32 vcc, s100, v{VOVF+1}
v_cmp_ne_u32 s[{sOM}:{sOM+1}], 0, v{VOVF}
s_add_u32 s{sOB}, s{sOB}, 1
s_cmp_ge_u32 s{sOB}, 0x10000
s_cbranch_scc1 L_ovd
s_nop 0
s_cbranch_vccz L_ovd
buffer_load_dwordx2 {vr(VOVF,2)}, v{VC}, s[32:35], s{sT0} offen sc1
s_branch L_ov
L_ovd:
s_mov_b32 s{sOB}, 0
L_rn0:
v_and_b32 v{TMP}, 15, v1
v_xor_b32 v{TMP+1}, v{TMP}, v3
v_lshlrev_b32 v{TMP+1}, 4, v{TMP+1}
v_lshl_add_u32 v{TMP+1}, v{TMP}, 9, v{TMP+1}
s_waitcnt vmcnt(0)
s_cmp_eq_u64 s[{sOM}:{sOM+1}], 0
s_cbranch_scc0 L_round
""")
    o(f"v_add_u32 v4, {L_AGB}, v{TMP+1}")
    for ks in range(1, 8):
        o(f"v_xor_b32 v{4+ks}, {64*ks}, v4")
    o(f"""
v_add_u32 v{TMP+2}, s{sN0}, v{TMP}
v_lshlrev_b32 v{TMP+2}, 9, v{TMP+2}
v_lshl_add_u32 v{TMP+2}, v3, 3, v{TMP+2}
s_lshl_b32 s{sT0}, s{sWAVE}, 5
s_add_u32 s{sT1}, s{sT0}, 8192
s_add_u32 s{sT2}, s{sT0}, 16384
s_sub_u32 s{sCNT}, s{sCNT}, 32
v_cmp_gt_u32 s[{sM}:{sM+1}], s{sCNT}, v{TMP}
v_mov_b32 v12, s{sSC}
""")
    if "ostage" in OPT:
        o(f"""
v_lshrrev_b32 v13, 1, v3
s_lshl_b32 s{sT1}, s{sWAVE}, 1
v_or_b32 v13, s{sT1}, v13
v_xor_b32 v13, v13, v{TMP}
v_lshlrev_b32 v13, 4, v13
v_lshl_add_u32 v13, v{TMP}, 9, v13
v_and_b32 v14, 1, v3
v_lshl_add_u32 v13, v14, 3, v13
v_lshrrev_b32 v14, 5, v0
v_cmp_gt_u32 vcc, s{sCNT}, v14
v_and_b32 v14, 15, v14
v_lshlrev_b32 v14, 4, v14
v_xor_b32 v14, v14, v2
v_add_u32 v15, 0x4000, v2
v_mov_b32 v16, 0x7ffffff0
s_lshl_b32 s{sT0}, s{sN0}, 9
v_cndmask_b32 v15, v16, v15, vcc
""")
    o("s_waitcnt lgkmcnt(0)\ns_barrier")
    st("fb")
    OSF = "sc1" if "o_sc1" in OPT else "nt" if "o_nt" in OPT else "sc1 nt" if "o_sc1nt" in OPT else ""
    FB = [T0, T1, E, NN]
    def rd(i):
        o(f"ds_read_b128 {vr(FB[i % 4],4)}, v{4 + (i & 7)} offset:{(i >> 3)*8192}")
    def silu(rt):
        a, t = UA + 4*rt, D
        l = [f"v_exp_f32 v{t+i}, v{a+i}" for i in range(4)]
        l += [f"v_fma_f32 v{t+i}, v{t+i}, v12, v12" for i in range(4)]
        l += [f"v_rcp_f32 v{t+i}, v{t+i}" for i in range(4)]
        l += [f"v_mul_f32 v{a+i}, v{a+i}, v{t+i}" for i in range(4)]
        l += [f"v_cvt_pk_bf16_f32 v{a}, v{a}, v{a+1}", f"v_cvt_pk_bf16_f32 v{a+1}, v{a+2}, v{a+3}"]
        if "ostage" in OPT:
            l.append(f"ds_write_b64 v13, {vr(a,2)} offset:{rt*8192}")
            return l
        if rt == 2:
            l.append(f"s_mov_b64 exec, s[{sM}:{sM+1}]")
        l.append(f"buffer_store_dwordx2 {vr(a,2)}, v{TMP+2}, s[40:43], s{[sT0,sT1,sT2][rt]} offen {OSF}")
        return l
    for i in range(3):
        rd(i)
    pend = []
    for i in range(24):
        rt, ks = i >> 3, i & 7
        if i + 3 < 24:
            rd(i + 3)
        o(f"s_waitcnt lgkmcnt({min(3, 23 - i)})")
        o(f"v_mfma_f32_16x16x32_bf16 {vr(UA+4*rt,4)}, {vr(W+4*ks,4)}, {vr(FB[i % 4],4)}, {vr(UA+4*rt,4)}")
        if ks == 2 and rt > 0:
            pend = silu(rt - 1)
        n = 4 if ks < 7 else len(pend)
        o("\n".join(pend[:n]))
        pend = pend[n:]
    o("s_nop 7")
    st("fg")
    o("\n".join(silu(2)))
    if "ostage" in OPT:
        o(f"""
s_waitcnt lgkmcnt(0)
s_barrier
ds_read_b128 v[16:19], v14
ds_read_b128 v[20:23], v14 offset:16384
s_waitcnt lgkmcnt(1)
buffer_store_dwordx4 v[16:19], v2, s[40:43], s{sT0} offen {OSF}
s_cmp_ge_u32 s{sWAVE}, 4
s_cbranch_scc1 L_os
s_waitcnt lgkmcnt(0)
buffer_store_dwordx4 v[20:23], v15, s[40:43], s{sT0} offen {OSF}
L_os:
""")
    st("fs")
    if STAMP:
        o(f"""
s_waitcnt vmcnt(0)
s_memrealtime s[94:95]
s_mov_b64 exec, 1
s_lshl_b32 s26, s2, 4
s_add_u32 s26, s26, s{sWAVE}
s_lshl_b32 s26, s26, 5
s_add_u32 s26, s26, {WS_STAMP + 0x100000}
s_mov_b32 s34, 0x1000000
v_mov_b32 v0, 0
s_waitcnt lgkmcnt(0)
""")
        xd = next((x for x in OPT if x.startswith("xdel")), None)
        if xd:
            k = int(xd[4:])
            sel = "s_cmp_lt_u32 s2, 64\ns_cselect_b32 s26, 0, s26" if "xrest" in OPT else "s_cmp_ge_u32 s2, 64\ns_cselect_b32 s26, 0, s26" if "xbin" in OPT else ""
            o(f"""
s_sub_u32 s26, s{80+2*k}, s80
{sel}
s_mul_i32 s26, s26, 10
s_add_u32 s26, s26, s94
X_spin:
s_memrealtime s[92:93]
s_waitcnt lgkmcnt(0)
s_sub_u32 s27, s92, s26
s_cmp_lt_i32 s27, 0
s_cbranch_scc1 X_spin
s_endpgm
""")
        for i in range(8):
            o(f"v_mov_b32 v{4+i}, s{80+2*i}")
        if "dbgst" in OPT:
            o("v_not_b32 v12, v4\nv_not_b32 v13, v9\nv_not_b32 v14, v5\nv_not_b32 v15, v10")
            for i in range(12):
                o(f"buffer_atomic_umax v{4+i}, v0, s[96:99], 0 offen offset:{8+4*i} sc1")
        else:
            o("buffer_store_dwordx4 v[4:7], v0, s[32:35], s26 offen\nbuffer_store_dwordx4 v[8:11], v0, s[32:35], s26 offen offset:16")
    o(f"""
L_end:
s_endpgm
L_round:
s_waitcnt lgkmcnt(0)
s_barrier
s_ff1_i32_b64 s{sT0}, s[{sOM}:{sOM+1}]
s_mul_i32 s{sT1}, s{sT0}, {CHUNK*8}
v_readlane_b32 s{sOC}, v{VOVF}, s{sT0}
s_lshl_b32 s{sT2}, s{sOB}, 3
s_add_u32 s{sT1}, s{sT1}, s{sT2}
s_add_u32 s{sT1}, s{sT1}, {WS_OVF}
buffer_load_dwordx4 {vr(REC,4)}, v2, s[32:35], s{sT1} offen sc1
v_lshlrev_b32 v{TMP}, 1, v0
v_add_u32 v{TMP}, s{sOB}, v{TMP}
v_add_u32 v{TMP+1}, 1, v{TMP}
v_cmp_gt_u32 s[{sV0}:{sV0+1}], s{sOC}, v{TMP}
v_cmp_gt_u32 s[{sV1}:{sV1+1}], s{sOC}, v{TMP+1}
s_add_u32 s{sOB}, s{sOB}, 2048
s_cmp_lt_u32 s{sOB}, s{sOC}
s_cbranch_scc1 L_rn2
s_bitset0_b64 s[{sOM}:{sOM+1}], s{sT0}
s_mov_b32 s{sOB}, 0
L_rn2:
s_waitcnt vmcnt(0)
v_lshrrev_b32 v{TMP}, 16, v{REC+1}
v_lshrrev_b32 v{TMP+1}, 16, v{REC+3}
v_cmp_eq_u32 s[{sM}:{sM+1}], s2, v{TMP}
s_nop 3
s_and_b64 s[{sV0}:{sV0+1}], s[{sV0}:{sV0+1}], s[{sM}:{sM+1}]
v_cmp_eq_u32 s[{sM}:{sM+1}], s2, v{TMP+1}
s_nop 3
s_and_b64 s[{sV1}:{sV1+1}], s[{sV1}:{sV1+1}], s[{sM}:{sM+1}]
""")
    sort_rank(o)
    o("s_waitcnt lgkmcnt(0)\ns_barrier")
    sort_scatter(o)
    o("s_waitcnt lgkmcnt(0)\ns_barrier")
    o("s_branch L_pr\nL_ugemm:")
    XB = [QA, QA + 4, QA + 8, W3 - 2]
    seq = [(ks, rt) for ks in range(8) for rt in range(3)]
    def urd(i):
        ks, rt = seq[i]
        if rt == 0 and ks:
            o(f"v_xor_b32 v{TMP+6}, {64*ks}, v{VXA}")
        o(f"ds_read_b128 {vr(XB[i % 4],4)}, v{TMP+6 if ks else VXA} offset:{rt*8192}")
    for i in range(3):
        urd(i)
    for i, (ks, rt) in enumerate(seq):
        if i + 3 < 24:
            urd(i + 3)
        if rt == 0:
            o(f"s_waitcnt vmcnt({7-ks+1+2*R})")
        o(f"s_waitcnt lgkmcnt({min(3, 23 - i)})")
        c = "0" if ks == 0 else vr(UA+4*rt, 4)
        o(f"v_mfma_f32_16x16x32_bf16 {vr(UA+4*rt,4)}, {vr(W+4*ks,4)}, {vr(XB[i % 4],4)}, {c}")
    o("s_nop 5")
    for h in range(6):
        o(f"v_pk_mul_f32 {vr(UA+2*h,2)}, {vr(UA+2*h,2)}, s[{sSC}:{sSC+1}]")
    if "w2early" in OPT:
        o(f"s_mov_b32 s{sW1}, 1")
        wloads(o, 1, W)
    o(f"s_setpc_b64 s[{sRET}:{sRET+1}]")
    bin_overflow(o)

def main(path):
    o = Asm()
    gen(o)
    hdr = f"""; MPNN edge-MLP + segment sum + node update in one launch (256 co-resident workgroups, one per CU).
; Phase B (after tagged-flag hand-off): per-edge SiLU accumulation over gathered P rows, update GEMM + SiLU.
; @launch grid=(256,1,1) block=(1024,1,1) lds={L_ALLOC}
.amdgcn_target "amdgcn-amd-amdhsa--gfx950"
.text
"""
    desc = f""".section .rodata,"a"
.p2align 6
.amdhsa_kernel {KNAME}
  .amdhsa_next_free_vgpr {NV}
  .amdhsa_next_free_sgpr 102
  .amdhsa_accum_offset {(NV+3)//4*4}
  .amdhsa_group_segment_fixed_size 0
  .amdhsa_kernarg_size 72
  .amdhsa_user_sgpr_count 2
  .amdhsa_user_sgpr_kernarg_segment_ptr 1
  .amdhsa_system_sgpr_workgroup_id_x 1
.end_amdhsa_kernel
"""
    open(path, "w").write(hdr + o.text() + desc)

if __name__ == "__main__":
    if "--stamp" in sys.argv:
        sys.argv.remove("--stamp")
        STAMP = True
    for a in list(sys.argv):
        if a.startswith("--steps="):
            sys.argv.remove(a)
            STEPS = a[8:].split(",")
        if a.startswith("--poll="):
            sys.argv.remove(a)
            STEP_FLAG = int(a[7:])
        if a.startswith("--prio="):
            sys.argv.remove(a)
            PRIO = [int(x) for x in a[7:].split(",")]
        if a.startswith("--kmax="):
            sys.argv.remove(a)
            KMAX = int(a[7:])
        if a.startswith("--opt="):
            sys.argv.remove(a)
            OPT |= set(a[6:].split(","))
    main(sys.argv[1] if len(sys.argv) > 1 else "gather_scatter__mpnn_edge_mlp__graph.s")
```

```python
import sys

N = 10000
WS_WPACK = 0x500000
WS_OVFC = 0x560000
WS_OVF = 0x570000
WS_FLAG = 0x6E0000
WS_CELL = 0x700000
WS_END = 0xB00000
WS_STAMP = 0xC00000
CHUNK = 2500
CAP = 28
NEGL2E = 0xBFB8AA3B
NEGLN2 = 0xBF317218
KNAME = "gather_scatter__mpnn_edge_mlp__graph_kernel"
STAMP = False
STEP_FLAG = 14
STEPS = ["s-1", "pst", "drain", "cell"]
OPT = {"ostage", "o_sc1", "nont"}

class Asm:
    def __init__(self):
        self.l = []
    def __call__(self, s):
        for line in s.strip("\n").split("\n"):
            line = line.strip()
            if line:
                self.l.append(line if line.endswith(":") else "    " + line)
    def text(self):
        l = self.l
        def sub(a_lab, b_lab, pref):
            a = l.index(a_lab); b = l.index(b_lab)
            return l[:a] + [("    s_nop 0" if any(x.strip().startswith(p) for p in pref) else x) for x in l[a:b]] + l[b:]
        if "gplain" in OPT:
            l = [x.replace(" sc1", "") if "s[16:19], 0 offen" in x else x for x in l]
        if "gnt" in OPT:
            l = [x + " nt" if "s[16:19], 0 offen" in x else x for x in l]
        if "noprio" in OPT:
            l = [x for x in l if "s_setprio" not in x]
        if "noloop_ld" in OPT: l = sub("L_top:", "L_call0:", ["buffer_load"])
        return "\n".join(l) + "\n"

def vr(a, n):
    return f"v[{a}:{a+n-1}]" if n > 1 else f"v{a}"

def srd(o, d, lo, hi, size):
    o(f"s_mov_b32 s{d}, s{lo}\ns_mov_b32 s{d+1}, s{hi}\ns_mov_b32 s{d+2}, {size}\ns_mov_b32 s{d+3}, 0x20000")

def stamp(o, i):
    if STAMP:
        if "clk2" in OPT:
            if i in (1, 2):
                o(f"s_memrealtime s[{80+2*i}:{81+2*i}]\ns_memtime s[{84+2*i}:{85+2*i}]\ns_waitcnt lgkmcnt(0)")
            elif i not in (3, 4):
                o(f"s_memrealtime s[{80+2*i}:{81+2*i}]\ns_waitcnt lgkmcnt(0)")
            return
        o(f"s_memrealtime s[{80+2*i}:{81+2*i}]\ns_waitcnt lgkmcnt(0)")

R = 6
KMAX = 24
PRIO = [4, 3, 2]
RS = 1040
L_QS = 0
L_AGB = (48 * RS + 511) // 512 * 512
L_HB = L_AGB + 48 * 512
L_IDX = L_HB + 16 * 1024
L_ET = L_IDX + 2064 * 4
L_CNT = (L_ET + 2052 * 16 + 255) // 256 * 256
L_HF = L_CNT + 256
L_XS = (L_HF + 256 + 511) // 512 * 512
L_END = L_XS + 48 * 512
L_IMG = 65536
L_BCNT = 131072
L_PST = L_HB
L_PK = 3 * 32768
L_ALLOC = L_END
assert L_BCNT + 1100 <= L_CNT and L_END <= 163840
RING = 4
A0, A1, Q, T0, T1, E, NN, D, AC, UA = 28, 32, 36, 40, 44, 48, 52, 56, 60, 64
VOVF, VB, IX, AD, LO, VI, VE, VN, VC, VEND, VEL = 76, 78, 79, 80, 81, 82, 83, 84, 85, 86, 126
TMP = 87
W = 94
NV = 127
PA, QA, VXA, VWA, VWS, VTG, W3, TG0, ZR = UA, 48, AD, 36, 38, 76, 62, 60, 44
XFB, WFB = [W, W + 20], [W + 12, 40]
VWB = VE
CK0, CK1, CK2 = 34, 35, 37
TAG = 92
sWAVE, sN0, sCNT, sHEAD, sIT, sW1, sCH = 3, 4, 5, 6, 7, 26, 27
sP, sP1, sREM, sSEGE, sSEGS, sNEND, sK, sTOT, sRND, sOB, sOC, sOFF = range(48, 60)
sV0, sV1, sOM, sRET, sSO, sM, sONE, sSC = 60, 62, 64, 66, 68, 70, 72, 74
sM0, sLD = 69, 16
sT0, sT1, sT2, sBND = 76, 77, 78, 79
sLN2 = 44
REC, RK0, RK1 = 40, 4, 5
CK = TMP + 1

def valu_block(T):
    ex = "\n".join(f"v_exp_f32 v{E+i}, v{T+i}" for i in range(4))
    pk = f"""
v_pk_fma_f32 {vr(NN,2)}, {vr(NN,2)}, {vr(E,2)}, {vr(NN,2)}
v_pk_fma_f32 {vr(NN+2,2)}, {vr(NN+2,2)}, {vr(E+2,2)}, {vr(NN+2,2)}
v_pk_fma_f32 {vr(NN,2)}, {vr(T,2)}, {vr(D,2)}, {vr(NN,2)}
v_pk_fma_f32 {vr(NN+2,2)}, {vr(T+2,2)}, {vr(D+2,2)}, {vr(NN+2,2)}
v_pk_fma_f32 {vr(D,2)}, {vr(D,2)}, {vr(E,2)}, {vr(D,2)}
v_pk_fma_f32 {vr(D+2,2)}, {vr(D+2,2)}, {vr(E+2,2)}, {vr(D+2,2)}
"""
    return ex, pk

def poll(o, tag, soff, count):
    o(f"""
v_lshlrev_b32 v{TMP}, 7, v1
s_mov_b32 s{sT1}, 0
s_mov_b64 exec, {"-1" if count == 64 else hex((1 << count) - 1)}
F_pl{tag}:
buffer_load_dwordx2 {vr(TMP+1,2)}, v{TMP}, s[32:35], {soff} offen sc1
s_add_u32 s{sT1}, s{sT1}, 1
s_waitcnt vmcnt(0)
v_cmpx_ne_u64 vcc, s[100:101], {vr(TMP+1,2)}
s_nop 4
s_cbranch_execz F_pd{tag}
s_sleep 2
s_cmp_lt_u32 s{sT1}, 0x10000
s_cbranch_scc1 F_pl{tag}
F_pd{tag}:
s_mov_b64 exec, -1
""")

def get_tag(o, tag):
    o(f"""
s_mov_b32 s{sT1}, 0
F_tg{tag}:
v_readfirstlane_b32 s100, v{TAG}
v_readfirstlane_b32 s101, v{TAG+1}
s_add_u32 s{sT1}, s{sT1}, 1
s_cmp_ge_u32 s{sT1}, 0x10000
s_cbranch_scc1 F_th{tag}
s_cmp_lg_u32 s100, 0
s_cbranch_scc1 F_th{tag}
buffer_load_dwordx2 {vr(TAG,2)}, v{VTG}, s[96:99], 0 offen sc1
s_waitcnt vmcnt(0)
s_branch F_tg{tag}
F_th{tag}:
""")

def put_flag(o, soff):
    o(f"""
v_mov_b32 v{TMP+1}, s100
v_mov_b32 v{TMP+2}, s101
s_mov_b64 exec, 1
buffer_store_dwordx2 {vr(TMP+1,2)}, v{VTG}, s[32:35], {soff} offen sc1
s_mov_b64 exec, -1
""")

def sort_rank(o):
    o(f"""
s_lshl_b32 s{sT0}, s{sN0}, 2
s_sub_u32 s{sT0}, {L_CNT}, s{sT0}
v_and_b32 v{TMP}, 0x3fff, v{REC}
v_and_b32 v{TMP+1}, 0x3fff, v{REC+2}
v_mov_b32 v{TMP+3}, 1
v_lshl_add_u32 v{TMP}, v{TMP}, 2, s{sT0}
v_lshl_add_u32 v{TMP+1}, v{TMP+1}, 2, s{sT0}
s_mov_b64 exec, s[{sV0}:{sV0+1}]
ds_add_rtn_u32 v{RK0}, v{TMP}, v{TMP+3}
s_mov_b64 exec, s[{sV1}:{sV1+1}]
ds_add_rtn_u32 v{RK1}, v{TMP+1}, v{TMP+3}
s_mov_b64 exec, -1
v_add_u32 v{TMP+4}, {L_CNT}, v{LO}
v_lshrrev_b32 v{REC}, 5, v{REC}
v_lshrrev_b32 v{REC+2}, 5, v{REC+2}
""")

def sort_scatter(o):
    o(f"""
ds_read_b32 v{TMP+2}, v{TMP+4}
v_and_b32 v{REC}, 0x7ffe00, v{REC}
v_and_b32 v{REC+2}, 0x7ffe00, v{REC+2}
s_mov_b32 s{sT0}, {L_IDX}
s_mov_b32 s{sT1}, {L_ET}
s_waitcnt lgkmcnt(0)
v_add_u32_dpp v{VEND}, v{TMP+2}, v{TMP+2} row_shr:1 row_mask:0xf bank_mask:0xf bound_ctrl:0
s_nop 1
v_add_u32_dpp v{VEND}, v{VEND}, v{VEND} row_shr:2 row_mask:0xf bank_mask:0xf bound_ctrl:0
s_nop 1
v_add_u32_dpp v{VEND}, v{VEND}, v{VEND} row_shr:4 row_mask:0xf bank_mask:0xf bound_ctrl:0
s_nop 1
v_add_u32_dpp v{VEND}, v{VEND}, v{VEND} row_shr:8 row_mask:0xf bank_mask:0xf bound_ctrl:0
s_nop 1
v_add_u32_dpp v{VEND}, v{VEND}, v{VEND} row_bcast:15 row_mask:0xa bank_mask:0xf
s_nop 1
v_add_u32_dpp v{VEND}, v{VEND}, v{VEND} row_bcast:31 row_mask:0xc bank_mask:0xf
v_sub_u32 v{TMP+3}, v{VEND}, v{TMP+2}
v_readlane_b32 s{sTOT}, v{VEND}, 63
ds_bpermute_b32 v{TMP}, v{TMP}, v{TMP+3}
ds_bpermute_b32 v{TMP+1}, v{TMP+1}, v{TMP+3}
s_nop 1
s_add_u32 s{sCH}, s{sTOT}, 15
s_lshr_b32 s{sCH}, s{sCH}, 4
s_mul_i32 s{sP}, s{sCH}, s{sWAVE}
s_add_u32 s{sP1}, s{sP}, s{sCH}
s_min_u32 s{sP}, s{sP}, s{sTOT}
s_min_u32 s{sP1}, s{sP1}, s{sTOT}
s_waitcnt lgkmcnt(0)
v_add_u32 v{TMP}, v{TMP}, v{RK0}
v_add_u32 v{TMP+1}, v{TMP+1}, v{RK1}
v_lshl_add_u32 v{TMP+2}, v{TMP}, 2, s{sT0}
v_lshl_add_u32 v{TMP+3}, v{TMP+1}, 2, s{sT0}
v_lshl_add_u32 v{TMP}, v{TMP}, 4, s{sT1}
v_lshl_add_u32 v{TMP+1}, v{TMP+1}, 4, s{sT1}
s_mov_b64 exec, s[{sV0}:{sV0+1}]
ds_write_b32 v{TMP+2}, v{REC}
ds_write_b16 v{TMP}, v{REC+1} offset:8
ds_write_b16 v{TMP}, v{REC+1} offset:14
s_mov_b64 exec, s[{sV1}:{sV1+1}]
ds_write_b32 v{TMP+3}, v{REC+2}
ds_write_b16 v{TMP+1}, v{REC+3} offset:8
ds_write_b16 v{TMP+1}, v{REC+3} offset:14
s_mov_b64 exec, -1
""")

def zero_cnt(o):
    o(f"v_mov_b32 v{TMP}, 0\nds_write_b32 v{TMP+4}, v{TMP}")

def prime(o):
    PT = T0
    o(f"""
s_lshl_b32 s{sT0}, s{sP}, 2
s_add_u32 s{sT0}, s{sT0}, {L_IDX}
v_mov_b32 v{VI}, s{sT0}
s_lshl_b32 s{sT0}, s{sP}, 4
v_add_u32 v{VE}, s{sT0}, v{VEL}
""")
    for k in range(0, R, 2):
        o(f"ds_read2_b32 {vr(PT+k,2)}, v{VI} offset0:{k} offset1:{k+1}")
    o(f"""
ds_read_b32 v{IX}, v{VI} offset:{4*R}
ds_read2_b32 {vr(A0+2,2)}, v{VE} offset0:0 offset1:2
ds_read2_b32 {vr(A1+2,2)}, v{VE} offset0:4 offset1:6
s_waitcnt lgkmcnt(0)
""")
    for k in range(R):
        B = RING + 4*k
        o(f"buffer_load_dword v{B}, v{PT+k}, s[16:19], 0 offen sc1")
        o(f"buffer_load_dword v{B+1}, v{PT+k}, s[16:19], 0 offen offset:256 sc1")

def wloads(o, mat, wreg, kss=range(8), sa=sT0, sb=sT1, va=TMP+5, setup=True):
    if not setup:
        for ks in kss:
            o(f"buffer_load_dwordx4 {vr(wreg+4*ks,4)}, v{va}, s[32:35], s{sa if ks < 4 else sb} offen offset:{(ks%4)*1024} sc1")
        return
    o(f"""
s_lshl_b32 s{sT0}, s{sWAVE}, 13
s_add_u32 s{sT0}, s{sT0}, {WS_WPACK + mat*131072}
s_add_u32 s{sT1}, s{sT0}, 4096
v_lshlrev_b32 v{TMP+5}, 4, v1
""")
    for ks in range(8):
        o(f"buffer_load_dwordx4 {vr(wreg+4*ks,4)}, v{TMP+5}, s[32:35], s{sT0 if ks < 4 else sT1} offen offset:{(ks%4)*1024} sc1")

DST, SRC, EA, OWN, RK, R0 = 8, 12, 16, 20, 24, 28
EW = [EA, 18, EA + 1, 19]
sBM = 58
def bin_rank(o):
    o(f"v_mov_b32 v{TMP+3}, 1\ns_movk_i32 s57, 256\ns_mov_b64 exec, s[{sBM}:{sBM+1}]")
    for k in range(4):
        o(f"""
v_mul_u32_u24 v{OWN+k}, s56, v{DST+k}
v_lshrrev_b32 v{OWN+k}, 24, v{OWN+k}
v_lshl_add_u32 v{TMP+4}, v{OWN+k}, 2, s60
ds_add_rtn_u32 v{RK+k}, v{TMP+4}, v{TMP+3}
""")
    for k in range(4):
        o(f"""
v_lshl_or_b32 v{R0+k}, v{SRC+k}, 14, v{DST+k}
v_and_b32 v{TMP+1}, 7, v{OWN+k}
v_lshl_add_u32 v{DST+k}, v{OWN+k}, 8, s61
v_lshl_or_b32 v{DST+k}, v{TMP+1}, 4, v{DST+k}
""")
    o(f"""
v_lshrrev_b32 v18, 16, v{EA}
v_lshrrev_b32 v19, 16, v{EA+1}
s_waitcnt lgkmcnt(0)
v_max3_u32 v{TMP}, v{RK}, v{RK+1}, v{RK+2}
v_max_u32 v{TMP}, v{TMP}, v{RK+3}
v_cmp_le_u32 vcc, {CAP}, v{TMP}
""")
    for k in range(4):
        o(f"""
v_mad_u32_u24 v{SRC+k}, v{RK+k}, 37, s57
v_lshrrev_b32 v{SRC+k}, 8, v{SRC+k}
v_add_lshl_u32 v{SRC+k}, v{SRC+k}, v{RK+k}, 3
v_xor_b32 v{DST+k}, v{SRC+k}, v{DST+k}
""")
    o("s_cbranch_vccnz F_ovf")
    for k in range(4):
        o(f"ds_write2_b32 v{DST+k}, v{R0+k}, v{EW[k]} offset0:0 offset1:1")
    o("F_ovfback:\ns_mov_b64 exec, -1")

def bin_overflow(o):
    o(f"F_ovf:\ns_mul_i32 s50, s2, {CHUNK*8}\ns_add_u32 s50, s50, {WS_OVF}\nv_mov_b32 v{TMP}, {L_BCNT+1024}")
    for k in range(4):
        o(f"""
v_cmp_gt_u32 vcc, {CAP}, v{RK+k}
s_and_saveexec_b64 s[62:63], vcc
ds_write2_b32 v{DST+k}, v{R0+k}, v{EW[k]} offset0:0 offset1:1
s_andn2_b64 exec, s[62:63], exec
s_cbranch_execz F_no{k}
ds_add_rtn_u32 v{TMP+4}, v{TMP}, v{TMP+3}
v_mov_b32 v{TMP+1}, v{R0+k}
v_and_b32 v{TMP+2}, 0xffff, v{EW[k]}
v_lshl_or_b32 v{TMP+2}, v{OWN+k}, 16, v{TMP+2}
s_waitcnt lgkmcnt(0)
v_lshlrev_b32 v{TMP+4}, 3, v{TMP+4}
buffer_store_dwordx2 {vr(TMP+1,2)}, v{TMP+4}, s[32:35], s50 offen sc1
s_waitcnt vmcnt(0)
F_no{k}:
s_mov_b64 exec, s[62:63]
""")
    o("s_branch F_ovfback")

def bin_copy(o):
    o(f"""
v_mov_b32 v31, s100
s_waitcnt lgkmcnt(5)
v_cmp_lt_u32 vcc, 14, v28
v_min_u32 v28, {CAP}, v28
v_cmp_lt_u32 s[62:63], 14, v29
v_min_u32 v29, {CAP}, v29
v_cndmask_b32 v24, v43, v41, vcc
v_cndmask_b32 v25, v43, v41, s[62:63]
s_waitcnt lgkmcnt(4)
v_cndmask_b32 v8, v8, v28, s[22:23]
v_cndmask_b32 v9, v9, v31, s[22:23]
buffer_store_dwordx4 v[8:11], v41, s[32:35], s24 offen sc1
s_waitcnt lgkmcnt(3)
v_cndmask_b32 v12, v12, v29, s[22:23]
v_cndmask_b32 v13, v13, v31, s[22:23]
buffer_store_dwordx4 v[12:15], v41, s[32:35], s25 offen sc1
s_waitcnt lgkmcnt(2)
v_cndmask_b32 v17, v17, v31, s[22:23]
buffer_store_dwordx4 v[16:19], v24, s[32:35], s24 offen offset:128 sc1
s_waitcnt lgkmcnt(1)
v_cndmask_b32 v21, v21, v31, s[22:23]
buffer_store_dwordx4 v[20:23], v25, s[32:35], s25 offen offset:128 sc1
s_cmp_lg_u32 s{sWAVE}, 0
s_cbranch_scc1 F_bc1
s_lshl_b32 s50, s2, 3
s_add_u32 s50, s50, {WS_OVFC}
s_mov_b64 exec, 1
s_waitcnt lgkmcnt(0)
buffer_store_dwordx2 v[30:31], v{VTG}, s[32:35], s50 offen sc1
s_mov_b64 exec, -1
F_bc1:
""")

def gen(o):
    XNT = "" if "nont" in OPT else "nt"
    AA = [A0, A1]
    TT = [T0, T1]
    o(f"""
.globl {KNAME}
.p2align 8
.type {KNAME},@function
{KNAME}:
s_cmp_ge_u32 s2, 256
s_cbranch_scc1 L_end
s_load_dwordx2 s[28:29], s[0:1], 0
s_load_dwordx2 s[44:45], s[0:1], 32
s_load_dwordx2 s[36:37], s[0:1], 24
s_load_dwordx2 s[12:13], s[0:1], 16
s_load_dwordx2 s[52:53], s[0:1], 8
s_load_dwordx2 s[40:41], s[0:1], 40
s_load_dwordx2 s[32:33], s[0:1], 64
s_load_dwordx2 s[96:97], s[0:1], 56
s_load_dwordx2 s[20:21], s[0:1], 48
s_memrealtime s[100:101]
""")
    if STAMP: o("s_memrealtime s[80:81]")
    ops = []
    def vm(target):
        return len(ops) - 1 - max(i for i, x in enumerate(ops) if x == target)
    def dma(s, count=True):
        for m in range(2):
            o(f"""
s_add_u32 m0, s{sSO}, {(s & 3) * 32768 + m*16384}
s_add_u32 s{sM0}, s{sSO}, {m*131072 + s*16384}
buffer_load_dwordx4 v{VWS}, s[44:47], s{sM0} offen lds
""")
        if count:
            ops.extend([("d", s)] * 2)
    o(f"""
v_lshrrev_b32 v2, 6, v0
v_and_b32 v1, 63, v0
s_mul_i32 s{sN0}, s2, 625
v_readfirstlane_b32 s{sWAVE}, v2
v_lshrrev_b32 v4, 5, v1
v_and_b32 v6, 31, v1
s_add_u32 s{sCNT}, s{sN0}, 640
s_add_u32 s{sN0}, s{sN0}, 15
s_lshr_b32 s{sN0}, s{sN0}, 4
s_lshl_b32 s50, s{sWAVE}, 1
v_add_u32 v5, s50, v4
v_lshlrev_b32 v2, 4, v0
v_and_b32 v7, 15, v5
v_xor_b32 v7, v7, v6
v_lshlrev_b32 v7, 4, v7
v_lshl_add_u32 v7, v4, 9, v7
v_lshlrev_b32 v{LO}, 2, v1
v_mov_b32 v{VTG}, 0
s_mov_b32 s30, {N*512}
s_mov_b32 s31, 0x20000
s_mov_b32 s46, {513*512}
s_mov_b32 s47, 0x20000
s_mov_b32 s38, 640000
s_mov_b32 s39, 0x20000
s_mov_b32 s14, 640000
s_mov_b32 s15, 0x20000
s_mov_b32 s54, 320000
s_mov_b32 s55, 0x20000
s_mov_b32 s98, 256
s_mov_b32 s99, 0x20000
s_lshl_b32 s{sSO}, s{sWAVE}, 10
s_lshl_b32 s51, s{sN0}, 9
s_add_u32 s51, s51, s{sSO}
s_add_u32 m0, s{sSO}, {L_XS}
s_cmp_ge_u32 s2, 64
s_cbranch_scc1 F_nobl
s_mul_i32 s49, s2, 10000
s_mul_i32 s50, s2, 5000
v_lshlrev_b32 v{TMP}, 3, v0
s_cmp_ge_u32 s{sWAVE}, 10
s_waitcnt lgkmcnt(0)
s_cbranch_scc1 F_nel
buffer_load_dwordx4 {vr(DST,4)}, v2, s[36:39], s49 offen {XNT}
buffer_load_dwordx4 {vr(SRC,4)}, v2, s[12:15], s49 offen {XNT}
buffer_load_dwordx2 {vr(EA,2)}, v{TMP}, s[52:55], s50 offen {XNT}
s_branch F_ne2
F_nel:
s_sub_u32 s50, s{sWAVE}, 10
s_cmp_ge_u32 s50, 2
s_cbranch_scc1 F_ne2
s_lshr_b32 s49, s2, 3
s_lshl_b32 s49, s49, 13
s_lshl_b32 s50, s50, 12
s_add_u32 s49, s49, s50
v_lshlrev_b32 v{TMP}, 6, v1
buffer_load_dword v77, v{TMP}, s[44:47], s49 offen
F_ne2:
v_lshlrev_b32 v{TMP}, 2, v0
v_add_u32 v{TMP}, {L_BCNT}, v{TMP}
s_cmp_ge_u32 s{sWAVE}, 5
s_cbranch_scc1 F_nbz
ds_write_b32 v{TMP}, v{VTG}
F_nbz:
s_waitcnt lgkmcnt(0)
s_barrier
s_add_u32 m0, s{sSO}, {L_XS}
s_cmp_ge_u32 s{sWAVE}, 4
buffer_load_dwordx4 v7, s[28:31], s51 offen {XNT} lds
s_cbranch_scc1 F_nox2b
s_add_u32 m0, s{sSO}, {L_XS + 16384}
s_add_u32 s50, s51, 16384
buffer_load_dwordx4 v7, s[28:31], s50 offen {XNT} lds
F_nox2b:
s_branch F_nx
F_nobl:
""")
    if "ipf" in OPT:
        o(f"""
s_cmp_lt_u32 s2, 240
s_cbranch_scc1 F_nipf
s_sub_u32 s50, s{sWAVE}, 8
s_cmp_ge_u32 s50, 2
s_cbranch_scc1 F_nipf
s_getpc_b64 s[22:23]
s_lshl_b32 s50, s50, 12
v_lshlrev_b32 v{TMP}, 6, v1
v_add_u32 v{TMP}, s50, v{TMP}
global_load_dword v77, v{TMP}, s[22:23]
F_nipf:
""")
    o(f"""
s_cmp_ge_u32 s{sWAVE}, 4
s_waitcnt lgkmcnt(0)
buffer_load_dwordx4 v7, s[28:31], s51 offen {XNT} lds
s_cbranch_scc1 F_nox2
s_add_u32 m0, s{sSO}, {L_XS + 16384}
s_add_u32 s50, s51, 16384
buffer_load_dwordx4 v7, s[28:31], s50 offen {XNT} lds
s_lshl_b32 s49, s2, 4
s_add_u32 s49, s49, s{sWAVE}
s_cmp_lg_u32 s49, 0xff0
s_cbranch_scc1 F_nox2
s_or_b32 s49, s100, 1
v_mov_b32 v{TMP+1}, s49
v_mov_b32 v{TMP+2}, s101
s_mov_b64 exec, 1
buffer_store_dwordx2 {vr(TMP+1,2)}, v{VTG}, s[96:99], 0 offen sc1
s_mov_b64 exec, -1
F_nox2:
s_sub_u32 s50, s{sWAVE}, 6
s_cmp_ge_u32 s50, 2
s_cbranch_scc1 F_ntc
s_lshr_b32 s49, s2, 3
s_lshl_b32 s49, s49, 13
s_lshl_b32 s50, s50, 12
s_add_u32 s49, s49, s50
v_lshlrev_b32 v7, 6, v1
buffer_load_dword v77, v7, s[44:47], s49 offen
F_ntc:
s_mov_b32 s50, {512*512}
buffer_load_dword v{W3}, v{LO}, s[44:47], s50 offen
buffer_load_dword v{W3+1}, v{LO}, s[44:47], s50 offen offset:256
F_nx:
v_and_b32 v{TMP}, 3, v5
v_bfe_u32 v{TMP+1}, v5, 3, 1
v_lshl_or_b32 v{TMP}, v{TMP+1}, 2, v{TMP}
v_lshlrev_b32 v{TMP}, 1, v{TMP}
v_xor_b32 v{TMP}, v{TMP}, v6
v_lshlrev_b32 v{TMP}, 4, v{TMP}
v_lshl_add_u32 v{VWS}, v4, 9, v{TMP}
s_mov_b32 s42, {512*512}
s_mov_b32 s43, 0x20000
s_mov_b32 s34, {WS_END}
s_mov_b32 s35, 0x20000
s_sub_u32 s48, s2, 64
""")
    if "early0" in OPT:
        o("s_cmp_lt_u32 s2, 64\ns_cbranch_scc1 F_ne0")
        dma(0)
        o("F_ne0:")
    o(f"""
s_lshr_b32 s{sCNT}, s{sCNT}, 4
s_sub_u32 s{sCNT}, s{sCNT}, s{sN0}
v_lshlrev_b32 v{VC}, 3, v1
v_lshrrev_b32 v3, 4, v1
v_and_b32 v4, 15, v1
v_xor_b32 v{VXA}, v4, v3
v_lshlrev_b32 v{VXA}, 4, v{VXA}
v_lshl_add_u32 v{VXA}, v4, 9, v{VXA}
v_add_u32 v{VXA}, {L_XS}, v{VXA}
v_bfe_u32 v5, v1, 2, 2
v_and_b32 v6, 3, v1
v_lshl_add_u32 v{VWA}, v3, 3, v5
v_lshlrev_b32 v{VWA}, 9, v{VWA}
v_lshl_add_u32 v{VWA}, v6, 3, v{VWA}
v_and_b32 v7, 1, v3
v_lshl_or_b32 v{TMP}, v7, 2, v5
v_xor_b32 v{TMP}, s{sWAVE}, v{TMP}
v_lshl_add_u32 v{VWA}, v{TMP}, 5, v{VWA}
v_add_u32 v{VWB}, 0x10000, v{VWA}
v_add_u32 v{TMP+4}, {L_CNT}, v{LO}
ds_write2st64_b32 v{TMP+4}, v{VTG}, v{VTG} offset0:0 offset1:1
s_cmp_ge_u32 s48, 16
s_cbranch_scc1 F_npd
s_lshl_b32 s49, s48, 14
s_add_u32 m0, s{sSO}, {L_PK}
s_add_u32 s49, s49, s{sSO}
buffer_load_dwordx4 v{VWS}, s[40:43], s49 offen lds
F_npd:
s_mov_b32 s{sSC}, {NEGL2E:#x}
s_mov_b32 s{sSC+1}, {NEGL2E:#x}
v_lshrrev_b32 v{TMP}, 1, v3
s_lshl_b32 s{sT1}, s{sWAVE}, 1
v_or_b32 v{TMP}, s{sT1}, v{TMP}
v_xor_b32 v{TMP}, v{TMP}, v4
v_lshlrev_b32 v{TMP}, 4, v{TMP}
v_lshl_add_u32 v{VN}, v4, 9, v{TMP}
v_lshl_add_u32 v{VN}, v7, 3, v{VN}
v_add_u32 v{VN}, {L_PST}, v{VN}
v_lshrrev_b32 v{VB}, 5, v0
v_add_u32 v{TMP}, 32, v{VB}
v_cmp_gt_u32 vcc, s{sCNT}, v{TMP}
v_lshlrev_b32 v{VB}, 4, v{VB}
v_xor_b32 v{VB}, v{VB}, v2
v_add_u32 v{VB}, {L_PST}, v{VB}
v_add_u32 v{VI}, 0x4000, v2
v_mov_b32 v{TMP}, 0x7ffffff0
v_cndmask_b32 v{VI}, v{TMP}, v{VI}, vcc
s_cmp_lt_u32 s2, 64
s_cbranch_scc1 F_nd0
""")
    if "early0" in OPT:
        o("s_barrier")
        dma(1)
    else:
        dma(0)
    o(f"""
F_nd0:
v_cmp_eq_u32 vcc, v5, v3
v_and_b32 v{TMP+2}, 1, v1
v_lshlrev_b32 v{TMP+2}, 4, v{TMP+2}
v_mov_b32 v{TMP+3}, 0x3f80
v_lshlrev_b32 v{TMP+3}, v{TMP+2}, v{TMP+3}
v_cndmask_b32 v{TMP+3}, 0, v{TMP+3}, vcc
v_xor_b32 v{VEL}, 2, v6
v_lshlrev_b32 v{VEL}, 2, v{VEL}
v_add_u32 v{VEL}, {L_ET}, v{VEL}
v_mov_b32 v{TMP+2}, 0x30000
v_cndmask_b32 v{VEL}, v{TMP+2}, v{VEL}, vcc
v_cmp_gt_u32 vcc, 2, v6
v_mul_u32_u24 v{CK0}, 7, v5
v_lshl_add_u32 v{CK1}, v6, 1, v{CK0}
v_cndmask_b32 v{A1}, 0, v{TMP+3}, vcc
v_cndmask_b32_e64 v{A1+1}, v{TMP+3}, 0, vcc
v_cmp_eq_u32 vcc, 0, v6
v_add_u32 v{CK2}, -1, v{CK1}
v_mov_b32 v{TMP}, 64
s_movk_i32 s{sT0}, {RS}
v_cndmask_b32 v{CK2}, v{CK2}, v{TMP}, vcc
v_mul_u32_u24 v{IX}, s{sT0}, v4
v_lshl_add_u32 v{IX}, v3, 4, v{IX}
s_lshl_b32 s{sT0}, s{sWAVE}, 6
v_add_u32 v{IX}, s{sT0}, v{IX}
s_mov_b64 s[8:9], s[32:33]
s_mov_b32 s10, {N*512}
s_mov_b32 s11, 0x20000
s_mov_b32 s16, s32
s_or_b32 s17, s33, 0x40000
s_mov_b32 s18, {N*512}
s_mov_b32 s19, 0x800000
s_mov_b32 s{sONE}, 1.0
s_mov_b32 s{sONE+1}, 1.0
s_mov_b32 s{sBND}, 0x7b800000
s_mov_b32 s{sW1}, 0
s_cmp_lt_u32 s2, 64
s_cbranch_scc1 F_bin
""")
    if "early0" not in OPT:
        o("s_barrier")
        dma(1)
    o(f"""
s_branch F_nbr
F_bin:
s_movk_i32 s57, 625
v_cmp_gt_u32 s[{sBM}:{sBM+1}], s57, v0
s_mov_b32 s56, 429497
s_mov_b32 s60, {L_BCNT}
s_mov_b32 s61, {L_IMG}
v_lshrrev_b32 v42, 3, v0
v_and_b32 v43, 7, v0
v_lshlrev_b32 v43, 4, v43
v_lshl_add_u32 v41, v42, 14, v43
v_and_b32 v40, 7, v42
v_lshlrev_b32 v40, 4, v40
v_xor_b32 v40, v40, v43
v_lshl_add_u32 v40, v42, 8, v40
v_add_u32 v40, s61, v40
v_lshl_add_u32 v42, v42, 2, s60
v_and_b32 v43, 48, v43
v_cmp_eq_u32 s[22:23], 0, v43
v_mov_b32 v43, 0x7f000000
v_mov_b32 v44, {L_BCNT+1024}
s_lshl_b32 s24, s2, 8
s_add_u32 s24, s24, {WS_CELL}
s_add_u32 s25, s24, {128*16384}
""")
    if "pre" in STEPS: stamp(o, (1, 2, 3, 4, 6)[STEPS.index("pre")])
    o(f"""
s_cmp_lt_u32 s{sWAVE}, 4
s_waitcnt vmcnt(2)
s_cbranch_scc1 F_be
s_waitcnt vmcnt(1)
F_be:
buffer_load_dwordx2 {vr(TAG,2)}, v{VTG}, s[96:99], 0 offen sc1
s_mov_b32 s50, {512*512}
buffer_load_dword v{W3}, v{LO}, s[44:47], s50 offen
buffer_load_dword v{W3+1}, v{LO}, s[44:47], s50 offen offset:256
""")
    st0 = lambda name: stamp(o, (1, 2, 3, 4, 6)[STEPS.index(name)]) if name in STEPS else None
    st0("edge")
    bin_rank(o)
    st0("rank")
    dma(0, False)
    o(f"""
s_waitcnt lgkmcnt(0)
s_barrier
ds_read2st64_b32 v[28:29], v42 offset0:0 offset1:2
ds_read_b128 v[8:11], v40
ds_read_b128 v[12:15], v40 offset:32768
ds_read_b128 v[16:19], v40 offset:128
ds_read_b128 v[20:23], v40 offset:{32768+128}
ds_read_b32 v30, v44
""")
    dma(1, False)
    o("s_waitcnt vmcnt(6)")
    get_tag(o, "b")
    bin_copy(o)
    o("F_nbr:")
    st0("copy")
    def st(name):
        if name in STEPS: stamp(o, (1, 2, 3, 4, 6)[STEPS.index(name)])
    def reads(s):
        l = []
        a = VXA
        if s:
            a = TMP + 6
            o(f"v_xor_b32 v{a}, {64*s}, v{VXA}")
        xf, wf = XFB[s & 1], WFB[s & 1]
        wa = VWA if (s & 3) < 2 else VWB
        for rt in range(3):
            l.append(f"ds_read_b128 {vr(xf+4*rt,4)}, v{a} offset:{rt*8192}")
        for m in range(2):
            off = (s & 1) * 32768 + m * 16384
            l.append(f"ds_read_b64_tr_b16 {vr(wf+4*m,2)}, v{wa} offset:{off}\nds_read_b64_tr_b16 {vr(wf+4*m+2,2)}, v{wa} offset:{off + 2048}")
        return l
    SCHED = {-1: [2], 0: [3, 4], 1: [5], 2: [6], 3: [7]}
    for s in range(-1, 8):
        if s < 7:
            n = vm(("d", s + 1))
            if s <= 1:
                nb = {-1: 6, 0: 7, 1: 4}[s]
                npk = n + (1 if s >= 0 else 0)
                o(f"""
s_cmp_lt_u32 s2, 64
s_cbranch_scc0 F_wb{s+1}
s_waitcnt vmcnt({nb})
s_branch F_wc{s+1}
F_wb{s+1}:
s_waitcnt vmcnt({npk})
s_cmp_lt_u32 s48, 16
s_cbranch_scc1 F_wc{s+1}
s_waitcnt vmcnt({n})
F_wc{s+1}:
s_waitcnt lgkmcnt(0)
s_barrier
""")
            else:
                o(f"s_waitcnt vmcnt({n}) lgkmcnt(0)\ns_barrier")
        else:
            o("s_waitcnt lgkmcnt(0)\ns_barrier")
        st(f"s{s}")
        if s == -1:
            o(f"buffer_load_dwordx2 {vr(TG0,2)}, v{VTG}, s[96:99], 0 offen sc1")
            ops.append("tag")
        rd = reads(s + 1) if s < 7 else []
        mm = []
        if s >= 0:
            for m, acc in enumerate((PA, QA)):
                for rt in range(3):
                    c = "0" if s == 0 else vr(acc+4*rt, 4)
                    mm.append(f"v_mfma_f32_16x16x32_bf16 {vr(acc+4*rt,4)}, {vr(WFB[s&1]+4*m,4)}, {vr(XFB[s&1]+4*rt,4)}, {c}")
        if s == 7:
            late, mm = mm[3:], mm[:3]
        while rd or mm:
            if mm: o(mm.pop(0))
            if rd: o(rd.pop(0))
        for t in SCHED.get(s, []):
            dma(t)
        if s == -1:
            o(f"""
s_cmp_ge_u32 s48, 16
s_cbranch_scc1 F_d0
ds_read_b64_tr_b16 v[4:5], v{VWB} offset:32768
ds_read_b64_tr_b16 v[6:7], v{VWB} offset:{32768+2048}
s_lshl_b32 s50, s{sWAVE}, 13
s_and_b32 s49, s48, 7
s_lshl_b32 s49, s49, 10
s_add_u32 s50, s50, s49
s_lshr_b32 s49, s48, 3
s_lshl_b32 s49, s49, 17
s_add_u32 s50, s50, s49
s_add_u32 s50, s50, {WS_WPACK}
v_lshlrev_b32 v12, 4, v1
s_waitcnt lgkmcnt(0)
buffer_store_dwordx4 v[4:7], v12, s[32:35], s50 offen sc1
F_d0:
""")
        if s == 0 and "direct" in OPT:
            o(f"""
v_lshlrev_b32 v{VN}, 9, v{TMP+1}
v_lshl_add_u32 v{VN}, v3, 3, v{VN}
s_lshl_b32 s{sT1}, s{sWAVE}, 5
v_add_u32 v{VN}, s{sT1}, v{VN}
v_add_u32 v{TMP}, 32, v{TMP+1}
v_cmp_gt_u32 vcc, s{sCNT}, v{TMP}
v_add_u32 v{VI}, 0x4000, v{VN}
v_mov_b32 v{TMP}, 0x7ffffff0
s_nop 0
v_cndmask_b32 v{VI}, v{TMP}, v{VI}, vcc
""")
        if s == 2:
            assert ops.index("tag") < ops.index(("d", 3))
            o(f"s_cmp_ge_u32 s48, 16\ns_cbranch_scc1 F_d5\ns_cmp_lg_u32 s{sWAVE}, 0\ns_cbranch_scc1 F_d5\nv_mov_b64 {vr(TAG,2)}, {vr(TG0,2)}")
            get_tag(o, "p")
            o(f"s_lshl_b32 s{sT0}, s48, 7\ns_add_u32 s{sT0}, s{sT0}, {WS_FLAG + 256*128}")
            put_flag(o, f"s{sT0}")
            o("F_d5:")
    o(f"s_lshl_b32 s{sT2}, s{sN0}, 9\ns_add_u32 s{sT1}, s{sT2}, 8192\ns_nop 3")
    if "direct" in OPT:
        for rt in range(3):
            a_ = PA + 4*rt
            o(f"""
v_pk_mul_f32 {vr(a_,2)}, {vr(a_,2)}, s[{sSC}:{sSC+1}]
v_pk_mul_f32 {vr(a_+2,2)}, {vr(a_+2,2)}, s[{sSC}:{sSC+1}]
v_cvt_pk_bf16_f32 v{W+2*rt}, v{a_}, v{a_+1}
v_cvt_pk_bf16_f32 v{W+2*rt+1}, v{a_+2}, v{a_+3}
buffer_store_dwordx2 {vr(W+2*rt,2)}, v{VN if rt < 2 else VI}, s[8:11], s{sT1 if rt == 1 else sT2} offen sc1
""")
        o("\n".join(late))
        o("s_barrier")
    else:
        for rt in range(3):
            a_ = PA + 4*rt
            o(f"""
v_pk_mul_f32 {vr(a_,2)}, {vr(a_,2)}, s[{sSC}:{sSC+1}]
v_pk_mul_f32 {vr(a_+2,2)}, {vr(a_+2,2)}, s[{sSC}:{sSC+1}]
v_cvt_pk_bf16_f32 v{W+2*rt}, v{a_}, v{a_+1}
v_cvt_pk_bf16_f32 v{W+2*rt+1}, v{a_+2}, v{a_+3}
ds_write_b64 v{VN}, {vr(W+2*rt,2)} offset:{rt*8192}
""")
        o("\n".join(late))
        o(f"""
s_cmp_lt_u32 s{sWAVE}, 8
s_waitcnt lgkmcnt(0)
s_barrier
s_cbranch_scc0 F_nps
ds_read_b128 {vr(W,4)}, v{VB}
ds_read_b128 {vr(W+4,4)}, v{VB} offset:8192
ds_read_b128 {vr(W+8,4)}, v{VB} offset:16384
s_waitcnt lgkmcnt(2)
buffer_store_dwordx4 {vr(W,4)}, v2, s[8:11], s{sT2} offen sc1
s_waitcnt lgkmcnt(1)
buffer_store_dwordx4 {vr(W+4,4)}, v2, s[8:11], s{sT1} offen sc1
s_waitcnt lgkmcnt(0)
buffer_store_dwordx4 {vr(W+8,4)}, v{VI}, s[8:11], s{sT2} offen sc1
F_nps:
s_barrier
""")

    st("pst")
    o(f"""
s_lshl_b32 s{sOFF}, s2, 14
s_add_u32 s{sOFF}, s{sOFF}, {WS_CELL}
buffer_load_dwordx4 {vr(REC,4)}, v2, s[32:35], s{sOFF} offen sc1
v_mov_b64 {vr(TAG,2)}, {vr(TG0,2)}
""")
    get_tag(o, "m")
    o(f"s_cmp_lg_u32 s{sWAVE}, 15\ns_cbranch_scc1 F_npk\ns_mov_b32 s{sT0}, {WS_FLAG + 256*128}")
    poll(o, "k", f"s{sT0}", 16)
    o("F_npk:")
    o(f"s_mov_b32 s{sT2}, 0\ns_waitcnt vmcnt(1)\ns_barrier")
    st("drain")
    o(f"s_cmp_lg_u32 s{sWAVE}, 0\ns_cbranch_scc1 F_nfp\ns_lshl_b32 s{sT0}, s2, 7\ns_add_u32 s{sT0}, s{sT0}, {WS_FLAG}")
    put_flag(o, f"s{sT0}")
    o(f"""
F_nfp:
s_lshl_b32 s12, s{sWAVE}, 13
s_add_u32 s12, s12, {WS_WPACK}
s_add_u32 s13, s12, 4096
v_lshlrev_b32 v{VE}, 4, v1
""")
    wl = lambda kss: wloads(o, 0, W, kss, 12, 13, VE, False)
    wl((0, 1))
    o(f"""
v_mov_b64 {vr(ZR,2)}, 0
v_mov_b64 {vr(ZR+2,2)}, 0
v_add_u32 v{VB}, {L_AGB}, v2
v_add_u32 v{VI}, {L_ET}, v2
ds_write_b128 v{VB}, {vr(ZR,4)}
ds_write_b128 v{VB}, {vr(ZR,4)} offset:4096
v_add_u32 v{VB}, {L_IDX}, v2
ds_write_b128 v{VB}, {vr(ZR,4)}
ds_write_b128 v{VI}, {vr(ZR,4)}
ds_write_b128 v{VI}, {vr(ZR,4)} offset:16384
ds_write_b128 v{VI}, {vr(ZR,4)} offset:16448
""")
    o(f"""
v_lshlrev_b32 v{TMP}, 16, v{W3}
v_and_b32 v{TMP+1}, 0xffff0000, v{W3}
v_lshlrev_b32 v{TMP+2}, 16, v{W3+1}
v_and_b32 v{TMP+3}, 0xffff0000, v{W3+1}
v_mul_f32 v{TMP}, s{sSC}, v{TMP}
v_mul_f32 v{TMP+1}, s{sSC}, v{TMP+1}
v_mul_f32 v{TMP+2}, s{sSC}, v{TMP+2}
v_mul_f32 v{TMP+3}, s{sSC}, v{TMP+3}
v_cvt_pk_bf16_f32 v6, v{TMP}, v{TMP+1}
v_cvt_pk_bf16_f32 v7, v{TMP+2}, v{TMP+3}
""")
    for k in range(1, R):
        o(f"v_mov_b64 {vr(RING+4*k+2,2)}, v[6:7]")
    o(f"""
v_mov_b64 {vr(A0,2)}, {vr(A1,2)}
s_mov_b32 s{sRND}, 0
s_mov_b64 s[40:41], s[20:21]
s_mov_b32 s42, {N*512}
""")
    for rt in range(3):
        o(f"""
v_pk_mul_f32 {vr(QA+4*rt,2)}, {vr(QA+4*rt,2)}, s[{sSC}:{sSC+1}]
v_pk_mul_f32 {vr(QA+4*rt+2,2)}, {vr(QA+4*rt+2,2)}, s[{sSC}:{sSC+1}]
ds_write_b128 v{IX}, {vr(QA+4*rt,4)} offset:{L_QS + rt*16*RS}
""")
    wl((2, 3))
    st("q")
    o(f"""
s_waitcnt vmcnt(4)
F_cl:
v_mov_b32_dpp v{TMP}, v{REC+1} row_newbcast:0 row_mask:0xf bank_mask:0xf
v_mov_b32_dpp v{TMP+1}, v{REC} row_newbcast:0 row_mask:0xf bank_mask:0xf
v_mov_b32_dpp v{TMP+2}, v{REC+1} quad_perm:[0,0,0,0] row_mask:0xf bank_mask:0xf
v_cmp_eq_u32 vcc, s100, v{TMP}
v_cmp_ne_u32 s[{sM}:{sM+1}], s100, v{TMP+2}
s_add_u32 s{sT2}, s{sT2}, 1
v_cndmask_b32 v{TMP+1}, 0, v{TMP+1}, vcc
v_max_u32 v{TMP+3}, 1, v{TMP+1}
v_cmp_lt_u32 vcc, v{CK0}, v{TMP+3}
s_cmp_ge_u32 s{sT2}, 0x10000
s_cbranch_scc1 F_cd
s_and_b64 exec, vcc, s[{sM}:{sM+1}]
s_cbranch_execz F_cd
s_sleep 1
buffer_load_dwordx4 {vr(REC,4)}, v2, s[32:35], s{sOFF} offen sc1
s_mov_b64 exec, -1
s_waitcnt vmcnt(0)
s_branch F_cl
F_cd:
s_mov_b64 exec, -1
v_cmp_gt_u32 s[{sV0}:{sV0+1}], v{TMP+1}, v{CK2}
v_cmp_gt_u32 s[{sV1}:{sV1+1}], v{TMP+1}, v{CK1}
""")
    st("cell")
    sort_rank(o)
    wl((4, 5))
    o("s_waitcnt lgkmcnt(0)\ns_barrier")
    sort_scatter(o)
    o(f"""
s_lshl_b32 s{sOC}, s{sWAVE}, 13
s_add_u32 s{sOC}, s{sOC}, {WS_FLAG}
v_lshlrev_b32 v{TMP}, 7, v1
""")
    o(f"""
s_cmp_ge_u32 s{sWAVE}, 4
s_cbranch_scc1 F_np1
buffer_load_dwordx2 {vr(TMP+1,2)}, v{TMP}, s[32:35], s{sOC} offen sc1
F_np1:
""")
    st("u")
    o(f"""
s_cmp_ge_u32 s{sWAVE}, 4
s_cbranch_scc1 F_npp
s_mov_b32 s{sT1}, 0
s_waitcnt vmcnt(0)
F_plp:
v_cmpx_ne_u64 vcc, s[100:101], {vr(TMP+1,2)}
s_add_u32 s{sT1}, s{sT1}, 1
s_nop 3
s_cbranch_execz F_pdp
s_cmp_ge_u32 s{sT1}, 0x10000
s_cbranch_scc1 F_pdp
{next((f"s_sleep {x[3:]}" for x in OPT if x.startswith("psl")), "")}
buffer_load_dwordx2 {vr(TMP+1,2)}, v{TMP}, s[32:35], s{sOC} offen sc1
s_waitcnt vmcnt(0)
s_branch F_plp
F_pdp:
s_mov_b64 exec, -1
""")
    o(f"""
F_npp:
""")
    wl((6, 7))
    o(f"""
s_mov_b32 s{sT0}, {WS_OVFC}
buffer_load_dwordx2 {vr(VOVF,2)}, v{VC}, s[32:35], s{sT0} offen sc1
s_waitcnt lgkmcnt(0)
s_barrier
L_pr:
""")
    st("b3")
    zero_cnt(o)
    prime(o)
    o(f"""
s_cmp_lg_u32 s{sRND}, 0
s_cbranch_scc1 L_go
s_call_b64 s[{sRET}:{sRET+1}], L_ugemm
L_go:
""")
    st("go")
    stamp(o, 5)
    o(f"""
s_mov_b64 vcc, 0
s_mov_b32 s{sK}, {KMAX}
s_add_u32 s{sRND}, s{sRND}, 1
s_cmp_ge_u32 s{sP}, s{sP1}
s_cbranch_scc1 L_loopdone
v_cmp_eq_u32 s[{sM}:{sM+1}], s{sP}, v{VEND}
s_sub_u32 s{sIT}, s{sP1}, s{sP}
s_add_u32 s{sIT}, s{sIT}, {R-1}
s_mul_i32 s{sIT}, s{sIT}, 171
s_lshr_b32 s{sIT}, s{sIT}, 10
s_cmp_eq_u32 s{sP}, 0
s_cselect_b32 s{sT2}, 1, 0
s_cmp_lg_u64 s[{sM}:{sM+1}], 0
s_cselect_b32 s{sT2}, 1, s{sT2}
s_xor_b32 s{sHEAD}, s{sT2}, 1
s_call_b64 s[{sRET}:{sRET+1}], L_newnode
s_setprio 3
s_waitcnt vmcnt({2*(R-1)}) lgkmcnt(0)
v_mfma_f32_16x16x32_bf16 {vr(T0,4)}, {vr(A0,4)}, {vr(RING,4)}, {vr(Q,4)}
s_nop 5
L_top:
""")
    for k in range(R):
        B = RING + 4*k
        B1 = RING + 4*((k+1) % R)
        ex, pk = valu_block(TT[k & 1])
        o(f"""
s_waitcnt vmcnt({2*(R-2)}) lgkmcnt(0)
v_mfma_f32_16x16x32_bf16 {vr(TT[(k+1)&1],4)}, {vr(AA[(k+1)&1],4)}, {vr(B1,4)}, {vr(Q,4)}
{ex}
buffer_load_dword v{B}, v{IX}, s[16:19], 0 offen sc1
buffer_load_dword v{B+1}, v{IX}, s[16:19], 0 offen offset:256 sc1
ds_read_b32 v{IX}, v{VI} offset:{4*(k+R+1)}
ds_read2_b32 {vr(AA[k&1]+2,2)}, v{VE} offset0:{4*(k+2)} offset1:{4*(k+2)+2}
{pk}
s_sub_u32 s{sREM}, s{sREM}, 1
s_cbranch_scc1 L_call{k}
L_next{k}:
""")
    o(f"""
v_add_u32 v{VI}, {4*R}, v{VI}
v_add_u32 v{VE}, {16*R}, v{VE}
s_sub_u32 s{sIT}, s{sIT}, 1
s_cmp_ge_u32 s{sIT}, {PRIO[0]}
s_cbranch_scc1 L_top
s_setprio 2
s_cmp_ge_u32 s{sIT}, {PRIO[1]}
s_cbranch_scc1 L_top
s_setprio 1
s_cmp_ge_u32 s{sIT}, {PRIO[2]}
s_cbranch_scc1 L_top
s_setprio 0
{"" if "overrun" in OPT else f"v_mov_b32 v{VI}, {L_CNT}"}
s_branch L_top
""")
    for k in range(R):
        B1 = RING + 4*((k+1) % R)
        o(f"""
L_call{k}:
s_call_b64 s[{sRET}:{sRET+1}], L_flush
s_cbranch_scc0 L_special
s_waitcnt lgkmcnt(0)
v_mfma_f32_16x16x32_bf16 {vr(TT[(k+1)&1],4)}, {vr(AA[(k+1)&1],4)}, {vr(B1,4)}, {vr(Q,4)}
s_nop 4
s_branch L_next{k}
""")
    o(f"""
L_flush:
v_rcp_f32 v{E}, v{D}
v_rcp_f32 v{E+1}, v{D+1}
v_rcp_f32 v{E+2}, v{D+2}
v_rcp_f32 v{E+3}, v{D+3}
s_mov_b32 s{sP}, s{sSEGE}
s_cbranch_vccnz L_nochk
v_pk_fma_f32 {vr(CK,2)}, {vr(NN,2)}, 0, {vr(D,2)}
v_pk_fma_f32 {vr(CK+2,2)}, {vr(NN+2,2)}, 0, {vr(D+2,2)}
v_pk_add_f32 {vr(CK,2)}, {vr(CK,2)}, {vr(CK+2,2)}
v_add_f32 v{CK}, v{CK}, v{CK+1}
v_cmp_nle_f32 s[{sM}:{sM+1}], v{CK}, s{sBND}
s_nop 3
s_cmp_eq_u64 s[{sM}:{sM+1}], 0
s_cbranch_scc1 L_nochk
s_mov_b32 s{sP}, s{sSEGS}
s_setpc_b64 s[{sRET}:{sRET+1}]
L_nochk:
v_pk_fma_f32 {vr(AC,2)}, {vr(NN,2)}, {vr(E,2)}, {vr(AC,2)}
v_pk_fma_f32 {vr(AC+2,2)}, {vr(NN+2,2)}, {vr(E+2,2)}, {vr(AC+2,2)}
s_cmp_lg_u32 s{sW1}, 0
s_cbranch_scc1 L_havew
s_mov_b32 s{sW1}, 1
""")
    wloads(o, 1, W)
    o(f"""
L_havew:
s_cmp_eq_u32 s{sP}, s{sNEND}
s_cbranch_scc1 L_fin
s_cmp_lg_u32 s{sP}, s{sP1}
s_cbranch_scc1 L_reinit
s_cmp_lg_u32 s{sHEAD}, 0
s_cbranch_scc1 L_pub
s_mov_b32 s{sT0}, s{sWAVE}
s_mov_b32 s{sT1}, s{sP1}
L_col:
s_add_u32 s{sT0}, s{sT0}, 1
s_lshl_b32 s{sT2}, s{sT0}, 2
s_add_u32 s{sT2}, s{sT2}, {L_HF}
v_mov_b32 v{CK}, s{sT2}
L_poll:
ds_read_b32 v{CK+1}, v{CK}
s_waitcnt lgkmcnt(0)
v_readfirstlane_b32 s{sT2}, v{CK+1}
s_nop 3
s_cmp_eq_u32 s{sT2}, s{sRND}
s_cbranch_scc1 L_got
s_sleep 1
s_branch L_poll
L_got:
s_lshl_b32 s{sT2}, s{sT0}, 10
s_add_u32 s{sT2}, s{sT2}, {L_HB}
v_add_u32 v{CK}, s{sT2}, v{VC}
ds_read2st64_b64 {vr(E,4)}, v{CK} offset0:0 offset1:1
s_add_u32 s{sT1}, s{sT1}, s{sCH}
s_waitcnt lgkmcnt(0)
v_pk_add_f32 {vr(AC,2)}, {vr(AC,2)}, {vr(E,2)}
v_pk_add_f32 {vr(AC+2,2)}, {vr(AC+2,2)}, {vr(E+2,2)}
s_cmp_lt_u32 s{sT1}, s{sNEND}
s_cbranch_scc1 L_col
s_branch L_wr
L_fin:
s_cmp_lg_u32 s{sHEAD}, 0
s_cbranch_scc1 L_pub
L_wr:
v_cvt_pk_bf16_f32 v{E}, v{AC}, v{AC+1}
v_cvt_pk_bf16_f32 v{E+1}, v{AC+2}, v{AC+3}
ds_write2st64_b32 v{VB}, v{E}, v{E+1} offset0:0 offset1:1
L_more:
s_mov_b32 s{sHEAD}, 0
s_cmp_lg_u32 s{sP}, s{sP1}
s_cbranch_scc1 L_newnode
s_setpc_b64 s[{sRET}:{sRET+1}]
L_pub:
s_lshl_b32 s{sT2}, s{sWAVE}, 10
s_add_u32 s{sT2}, s{sT2}, {L_HB}
v_add_u32 v{CK}, s{sT2}, v{VC}
s_lshl_b32 s{sT2}, s{sWAVE}, 2
s_add_u32 s{sT2}, s{sT2}, {L_HF}
v_mov_b32 v{CK+1}, s{sT2}
v_mov_b32 v{CK+2}, s{sRND}
ds_write2st64_b64 v{CK}, {vr(AC,2)}, {vr(AC+2,2)} offset0:0 offset1:1
s_waitcnt lgkmcnt(0)
ds_write_b32 v{CK+1}, v{CK+2}
s_branch L_more
L_old:
s_cmp_lg_u32 s{sHEAD}, 0
s_cbranch_scc1 L_reinit
ds_read2st64_b32 {vr(E,2)}, v{VB} offset0:0 offset1:1
s_waitcnt lgkmcnt(0)
v_lshlrev_b32 v{AC}, 16, v{E}
v_and_b32 v{AC+1}, 0xffff0000, v{E}
v_lshlrev_b32 v{AC+2}, 16, v{E+1}
v_and_b32 v{AC+3}, 0xffff0000, v{E+1}
s_branch L_reinit
L_newnode:
v_cmp_ge_u32 s[{sM}:{sM+1}], s{sP}, v{VEND}
v_mov_b64 {vr(AC,2)}, 0
v_mov_b64 {vr(AC+2,2)}, 0
s_nop 1
s_bcnt1_i32_b64 s{sT0}, s[{sM}:{sM+1}]
s_mul_i32 s{sT1}, s{sT0}, {RS}
v_readlane_b32 s{sNEND}, v{VEND}, s{sT0}
v_add_u32 v{VN}, s{sT1}, v{VC}
ds_read2st64_b64 {vr(Q,4)}, v{VN} offset0:0 offset1:1
s_and_b32 s{sT1}, s{sT0}, 15
s_lshl_b32 s{sT1}, s{sT1}, 4
s_lshl_b32 s{sT0}, s{sT0}, 9
s_or_b32 s{sT0}, s{sT0}, s{sT1}
s_add_u32 s{sT0}, s{sT0}, {L_AGB}
v_xor_b32 v{VB}, s{sT0}, v{LO}
s_cmp_lg_u32 s{sRND}, 1
s_cbranch_scc1 L_old
L_reinit:
v_mov_b64 {vr(NN,2)}, 0
v_mov_b64 {vr(NN+2,2)}, 0
v_mov_b64 {vr(D,2)}, s[{sONE}:{sONE+1}]
v_mov_b64 {vr(D+2,2)}, s[{sONE}:{sONE+1}]
s_mov_b32 s{sSEGS}, s{sP}
s_add_u32 s{sSEGE}, s{sP}, s{sK}
s_min_u32 s{sSEGE}, s{sSEGE}, s{sNEND}
s_min_u32 s{sSEGE}, s{sSEGE}, s{sP1}
s_sub_u32 s{sREM}, s{sSEGE}, s{sP}
s_sub_u32 s{sREM}, s{sREM}, 1
s_cmp_eq_u32 s{sP}, s{sP}
s_setpc_b64 s[{sRET}:{sRET+1}]
L_special:
s_cmp_eq_u32 s{sP}, s{sP1}
s_cbranch_scc1 L_loopdone
s_mov_b64 vcc, -1
s_mov_b32 s{sK}, 1
s_waitcnt vmcnt(0) lgkmcnt(0)
s_call_b64 s[{sRET}:{sRET+1}], L_reinit
L_slow:
s_lshl_b32 s{sT0}, s{sP}, 2
s_add_u32 s{sT0}, s{sT0}, {L_IDX}
v_mov_b32 v{VI}, s{sT0}
s_lshl_b32 s{sT0}, s{sP}, 4
v_add_u32 v{VE}, s{sT0}, v{VEL}
ds_read_b32 v{IX}, v{VI}
ds_read2_b32 {vr(A0+2,2)}, v{VE} offset0:0 offset1:2
s_waitcnt lgkmcnt(0)
buffer_load_dword v{RING}, v{IX}, s[16:19], 0 offen sc1
buffer_load_dword v{RING+1}, v{IX}, s[16:19], 0 offen offset:256 sc1
s_waitcnt vmcnt(0)
v_mfma_f32_16x16x32_bf16 {vr(T0,4)}, {vr(A0,4)}, {vr(RING,4)}, {vr(Q,4)}
s_nop 7
v_min_f32 v{T0}, 0x42fc0000, v{T0}
v_min_f32 v{T0+1}, 0x42fc0000, v{T0+1}
v_min_f32 v{T0+2}, 0x42fc0000, v{T0+2}
v_min_f32 v{T0+3}, 0x42fc0000, v{T0+3}
{valu_block(T0)[0]}
{valu_block(T0)[1]}
s_call_b64 s[{sRET}:{sRET+1}], L_flush
s_cbranch_scc1 L_slow
L_loopdone:
""")
    st("le")
    if len(STEPS) < 5: stamp(o, 6)
    o(f"""
s_setprio 0
s_cmp_lg_u32 s{sW1}, 0
s_cbranch_scc1 L_ld2
s_mov_b32 s{sW1}, 1
""")
    wloads(o, 1, W)
    o(f"""
L_ld2:
s_cmp_lg_u32 s{sRND}, 1
s_cbranch_scc1 L_rn0
s_mov_b32 s{sOB}, 0
s_mov_b32 s{sT0}, {WS_OVFC}
L_ov:
s_waitcnt vmcnt(0)
v_cmp_ne_u32 vcc, s100, v{VOVF+1}
v_cmp_ne_u32 s[{sOM}:{sOM+1}], 0, v{VOVF}
s_add_u32 s{sOB}, s{sOB}, 1
s_cmp_ge_u32 s{sOB}, 0x10000
s_cbranch_scc1 L_ovd
s_nop 0
s_cbranch_vccz L_ovd
buffer_load_dwordx2 {vr(VOVF,2)}, v{VC}, s[32:35], s{sT0} offen sc1
s_branch L_ov
L_ovd:
s_mov_b32 s{sOB}, 0
L_rn0:
v_and_b32 v{TMP}, 15, v1
v_xor_b32 v{TMP+1}, v{TMP}, v3
v_lshlrev_b32 v{TMP+1}, 4, v{TMP+1}
v_lshl_add_u32 v{TMP+1}, v{TMP}, 9, v{TMP+1}
s_waitcnt vmcnt(0)
s_cmp_eq_u64 s[{sOM}:{sOM+1}], 0
s_cbranch_scc0 L_round
""")
    o(f"v_add_u32 v4, {L_AGB}, v{TMP+1}")
    for ks in range(1, 8):
        o(f"v_xor_b32 v{4+ks}, {64*ks}, v4")
    o(f"""
v_add_u32 v{TMP+2}, s{sN0}, v{TMP}
v_lshlrev_b32 v{TMP+2}, 9, v{TMP+2}
v_lshl_add_u32 v{TMP+2}, v3, 3, v{TMP+2}
s_lshl_b32 s{sT0}, s{sWAVE}, 5
s_add_u32 s{sT1}, s{sT0}, 8192
s_add_u32 s{sT2}, s{sT0}, 16384
s_sub_u32 s{sCNT}, s{sCNT}, 32
v_cmp_gt_u32 s[{sM}:{sM+1}], s{sCNT}, v{TMP}
v_mov_b32 v12, s{sSC}
""")
    if "ostage" in OPT:
        o(f"""
v_lshrrev_b32 v13, 1, v3
s_lshl_b32 s{sT1}, s{sWAVE}, 1
v_or_b32 v13, s{sT1}, v13
v_xor_b32 v13, v13, v{TMP}
v_lshlrev_b32 v13, 4, v13
v_lshl_add_u32 v13, v{TMP}, 9, v13
v_and_b32 v14, 1, v3
v_lshl_add_u32 v13, v14, 3, v13
v_lshrrev_b32 v14, 5, v0
v_cmp_gt_u32 vcc, s{sCNT}, v14
v_and_b32 v14, 15, v14
v_lshlrev_b32 v14, 4, v14
v_xor_b32 v14, v14, v2
v_add_u32 v15, 0x4000, v2
v_mov_b32 v16, 0x7ffffff0
s_lshl_b32 s{sT0}, s{sN0}, 9
v_cndmask_b32 v15, v16, v15, vcc
""")
    o("s_waitcnt lgkmcnt(0)\ns_barrier")
    st("fb")
    OSF = "sc1" if "o_sc1" in OPT else "nt" if "o_nt" in OPT else "sc1 nt" if "o_sc1nt" in OPT else ""
    FB = [T0, T1, E, NN]
    def rd(i):
        o(f"ds_read_b128 {vr(FB[i % 4],4)}, v{4 + (i & 7)} offset:{(i >> 3)*8192}")
    def silu(rt):
        a, t = UA + 4*rt, D
        l = [f"v_exp_f32 v{t+i}, v{a+i}" for i in range(4)]
        l += [f"v_fma_f32 v{t+i}, v{t+i}, v12, v12" for i in range(4)]
        l += [f"v_rcp_f32 v{t+i}, v{t+i}" for i in range(4)]
        l += [f"v_mul_f32 v{a+i}, v{a+i}, v{t+i}" for i in range(4)]
        l += [f"v_cvt_pk_bf16_f32 v{a}, v{a}, v{a+1}", f"v_cvt_pk_bf16_f32 v{a+1}, v{a+2}, v{a+3}"]
        if "ostage" in OPT:
            l.append(f"ds_write_b64 v13, {vr(a,2)} offset:{rt*8192}")
            return l
        if rt == 2:
            l.append(f"s_mov_b64 exec, s[{sM}:{sM+1}]")
        l.append(f"buffer_store_dwordx2 {vr(a,2)}, v{TMP+2}, s[40:43], s{[sT0,sT1,sT2][rt]} offen {OSF}")
        return l
    for i in range(3):
        rd(i)
    pend = []
    for i in range(24):
        rt, ks = i >> 3, i & 7
        if i + 3 < 24:
            rd(i + 3)
        o(f"s_waitcnt lgkmcnt({min(3, 23 - i)})")
        o(f"v_mfma_f32_16x16x32_bf16 {vr(UA+4*rt,4)}, {vr(W+4*ks,4)}, {vr(FB[i % 4],4)}, {vr(UA+4*rt,4)}")
        if ks == 2 and rt > 0:
            pend = silu(rt - 1)
        n = 4 if ks < 7 else len(pend)
        o("\n".join(pend[:n]))
        pend = pend[n:]
    o("s_nop 7")
    st("fg")
    o("\n".join(silu(2)))
    if "ostage" in OPT:
        o(f"""
s_waitcnt lgkmcnt(0)
s_barrier
ds_read_b128 v[16:19], v14
ds_read_b128 v[20:23], v14 offset:16384
s_waitcnt lgkmcnt(1)
buffer_store_dwordx4 v[16:19], v2, s[40:43], s{sT0} offen {OSF}
s_cmp_ge_u32 s{sWAVE}, 4
s_cbranch_scc1 L_os
s_waitcnt lgkmcnt(0)
buffer_store_dwordx4 v[20:23], v15, s[40:43], s{sT0} offen {OSF}
L_os:
""")
    st("fs")
    if STAMP:
        o(f"""
s_waitcnt vmcnt(0)
s_memrealtime s[94:95]
s_mov_b64 exec, 1
s_lshl_b32 s26, s2, 4
s_add_u32 s26, s26, s{sWAVE}
s_lshl_b32 s26, s26, 5
s_add_u32 s26, s26, {WS_STAMP + 0x100000}
s_mov_b32 s34, 0x1000000
v_mov_b32 v0, 0
s_waitcnt lgkmcnt(0)
""")
        xd = next((x for x in OPT if x.startswith("xdel")), None)
        if xd:
            k = int(xd[4:])
            sel = "s_cmp_lt_u32 s2, 64\ns_cselect_b32 s26, 0, s26" if "xrest" in OPT else ""
            o(f"""
s_sub_u32 s26, s{80+2*k}, s80
{sel}
s_mul_i32 s26, s26, 10
s_add_u32 s26, s26, s94
X_spin:
s_memrealtime s[92:93]
s_waitcnt lgkmcnt(0)
s_sub_u32 s27, s92, s26
s_cmp_lt_i32 s27, 0
s_cbranch_scc1 X_spin
s_endpgm
""")
        for i in range(8):
            o(f"v_mov_b32 v{4+i}, s{80+2*i}")
        if "dbgst" in OPT:
            o("v_not_b32 v12, v4\nv_not_b32 v13, v9\nv_not_b32 v14, v5\nv_not_b32 v15, v10")
            for i in range(12):
                o(f"buffer_atomic_umax v{4+i}, v0, s[96:99], 0 offen offset:{8+4*i} sc1")
        else:
            o("buffer_store_dwordx4 v[4:7], v0, s[32:35], s26 offen\nbuffer_store_dwordx4 v[8:11], v0, s[32:35], s26 offen offset:16")
    o(f"""
L_end:
s_endpgm
L_round:
s_waitcnt lgkmcnt(0)
s_barrier
s_ff1_i32_b64 s{sT0}, s[{sOM}:{sOM+1}]
s_mul_i32 s{sT1}, s{sT0}, {CHUNK*8}
v_readlane_b32 s{sOC}, v{VOVF}, s{sT0}
s_lshl_b32 s{sT2}, s{sOB}, 3
s_add_u32 s{sT1}, s{sT1}, s{sT2}
s_add_u32 s{sT1}, s{sT1}, {WS_OVF}
buffer_load_dwordx4 {vr(REC,4)}, v2, s[32:35], s{sT1} offen sc1
v_lshlrev_b32 v{TMP}, 1, v0
v_add_u32 v{TMP}, s{sOB}, v{TMP}
v_add_u32 v{TMP+1}, 1, v{TMP}
v_cmp_gt_u32 s[{sV0}:{sV0+1}], s{sOC}, v{TMP}
v_cmp_gt_u32 s[{sV1}:{sV1+1}], s{sOC}, v{TMP+1}
s_add_u32 s{sOB}, s{sOB}, 2048
s_cmp_lt_u32 s{sOB}, s{sOC}
s_cbranch_scc1 L_rn2
s_bitset0_b64 s[{sOM}:{sOM+1}], s{sT0}
s_mov_b32 s{sOB}, 0
L_rn2:
s_waitcnt vmcnt(0)
v_lshrrev_b32 v{TMP}, 16, v{REC+1}
v_lshrrev_b32 v{TMP+1}, 16, v{REC+3}
v_cmp_eq_u32 s[{sM}:{sM+1}], s2, v{TMP}
s_nop 3
s_and_b64 s[{sV0}:{sV0+1}], s[{sV0}:{sV0+1}], s[{sM}:{sM+1}]
v_cmp_eq_u32 s[{sM}:{sM+1}], s2, v{TMP+1}
s_nop 3
s_and_b64 s[{sV1}:{sV1+1}], s[{sV1}:{sV1+1}], s[{sM}:{sM+1}]
""")
    sort_rank(o)
    o("s_waitcnt lgkmcnt(0)\ns_barrier")
    sort_scatter(o)
    o("s_waitcnt lgkmcnt(0)\ns_barrier")
    o("s_branch L_pr\nL_ugemm:")
    XB = [QA, QA + 4, QA + 8, W3 - 2]
    seq = [(ks, rt) for ks in range(8) for rt in range(3)]
    def urd(i):
        ks, rt = seq[i]
        if rt == 0 and ks:
            o(f"v_xor_b32 v{TMP+6}, {64*ks}, v{VXA}")
        o(f"ds_read_b128 {vr(XB[i % 4],4)}, v{TMP+6 if ks else VXA} offset:{rt*8192}")
    for i in range(3):
        urd(i)
    for i, (ks, rt) in enumerate(seq):
        if i + 3 < 24:
            urd(i + 3)
        if rt == 0:
            o(f"s_waitcnt vmcnt({7-ks+1+2*R})")
        o(f"s_waitcnt lgkmcnt({min(3, 23 - i)})")
        c = "0" if ks == 0 else vr(UA+4*rt, 4)
        o(f"v_mfma_f32_16x16x32_bf16 {vr(UA+4*rt,4)}, {vr(W+4*ks,4)}, {vr(XB[i % 4],4)}, {c}")
    o("s_nop 5")
    for h in range(6):
        o(f"v_pk_mul_f32 {vr(UA+2*h,2)}, {vr(UA+2*h,2)}, s[{sSC}:{sSC+1}]")
    if "w2early" in OPT:
        o(f"s_mov_b32 s{sW1}, 1")
        wloads(o, 1, W)
    o(f"s_setpc_b64 s[{sRET}:{sRET+1}]")
    bin_overflow(o)

def main(path):
    o = Asm()
    gen(o)
    hdr = f"""; MPNN edge-MLP + segment sum + node update in one launch (256 co-resident workgroups, one per CU).
; Phase B (after tagged-flag hand-off): per-edge SiLU accumulation over gathered P rows, update GEMM + SiLU.
; @launch grid=(256,1,1) block=(1024,1,1) lds={L_ALLOC}
.amdgcn_target "amdgcn-amd-amdhsa--gfx950"
.text
"""
    desc = f""".section .rodata,"a"
.p2align 6
.amdhsa_kernel {KNAME}
  .amdhsa_next_free_vgpr {NV}
  .amdhsa_next_free_sgpr 102
  .amdhsa_accum_offset {(NV+3)//4*4}
  .amdhsa_group_segment_fixed_size 0
  .amdhsa_kernarg_size 72
  .amdhsa_user_sgpr_count 2
  .amdhsa_user_sgpr_kernarg_segment_ptr 1
  .amdhsa_system_sgpr_workgroup_id_x 1
.end_amdhsa_kernel
"""
    open(path, "w").write(hdr + o.text() + desc)

if __name__ == "__main__":
    if "--stamp" in sys.argv:
        sys.argv.remove("--stamp")
        STAMP = True
    for a in list(sys.argv):
        if a.startswith("--steps="):
            sys.argv.remove(a)
            STEPS = a[8:].split(",")
        if a.startswith("--poll="):
            sys.argv.remove(a)
            STEP_FLAG = int(a[7:])
        if a.startswith("--prio="):
            sys.argv.remove(a)
            PRIO = [int(x) for x in a[7:].split(",")]
        if a.startswith("--kmax="):
            sys.argv.remove(a)
            KMAX = int(a[7:])
        if a.startswith("--opt="):
            sys.argv.remove(a)
            OPT |= set(a[6:].split(","))
    main(sys.argv[1] if len(sys.argv) > 1 else "gather_scatter__mpnn_edge_mlp__graph.s")
```

```python
import sys

N = 10000
WS_WPACK = 0x500000
WS_OVFC = 0x560000
WS_OVF = 0x570000
WS_FLAG = 0x6E0000
WS_CELL = 0x700000
WS_END = 0xB00000
WS_STAMP = 0xC00000
CHUNK = 2500
CAP = 28
NEGL2E = 0xBFB8AA3B
NEGLN2 = 0xBF317218
KNAME = "gather_scatter__mpnn_edge_mlp__graph_kernel"
STAMP = False
STEP_FLAG = 14
STEPS = ["s-1", "pst", "drain", "cell"]
OPT = {"ostage", "o_sc1", "nont"}

class Asm:
    def __init__(self):
        self.l = []
    def __call__(self, s):
        for line in s.strip("\n").split("\n"):
            line = line.strip()
            if line:
                self.l.append(line if line.endswith(":") else "    " + line)
    def text(self):
        l = self.l
        def sub(a_lab, b_lab, pref):
            a = l.index(a_lab); b = l.index(b_lab)
            return l[:a] + [("    s_nop 0" if any(x.strip().startswith(p) for p in pref) else x) for x in l[a:b]] + l[b:]
        if "gplain" in OPT:
            l = [x.replace(" sc1", "") if "s[16:19], 0 offen" in x else x for x in l]
        if "gnt" in OPT:
            l = [x + " nt" if "s[16:19], 0 offen" in x else x for x in l]
        if "noprio" in OPT:
            l = [x for x in l if "s_setprio" not in x]
        if "noloop_ld" in OPT: l = sub("L_top:", "L_call0:", ["buffer_load"])
        return "\n".join(l) + "\n"

def vr(a, n):
    return f"v[{a}:{a+n-1}]" if n > 1 else f"v{a}"

def srd(o, d, lo, hi, size):
    o(f"s_mov_b32 s{d}, s{lo}\ns_mov_b32 s{d+1}, s{hi}\ns_mov_b32 s{d+2}, {size}\ns_mov_b32 s{d+3}, 0x20000")

def stamp(o, i):
    if STAMP:
        if "clk2" in OPT:
            if i in (1, 2):
                o(f"s_memrealtime s[{80+2*i}:{81+2*i}]\ns_memtime s[{84+2*i}:{85+2*i}]\ns_waitcnt lgkmcnt(0)")
            elif i not in (3, 4):
                o(f"s_memrealtime s[{80+2*i}:{81+2*i}]\ns_waitcnt lgkmcnt(0)")
            return
        o(f"s_memrealtime s[{80+2*i}:{81+2*i}]\ns_waitcnt lgkmcnt(0)")

R = 6
KMAX = 24
PRIO = [4, 3, 2]
RS = 1040
L_QS = 0
L_AGB = (48 * RS + 511) // 512 * 512
L_HB = L_AGB + 48 * 512
L_IDX = L_HB + 16 * 1024
L_ET = L_IDX + 2064 * 4
L_CNT = (L_ET + 2052 * 16 + 255) // 256 * 256
L_HF = L_CNT + 256
L_XS = (L_HF + 256 + 511) // 512 * 512
L_END = L_XS + 48 * 512
L_IMG = 65536
L_BCNT = 131072
L_PST = L_HB
L_PK = 3 * 32768
L_ALLOC = L_END
assert L_BCNT + 1100 <= L_CNT and L_END <= 163840
RING = 4
A0, A1, Q, T0, T1, E, NN, D, AC, UA = 28, 32, 36, 40, 44, 48, 52, 56, 60, 64
VOVF, VB, IX, AD, LO, VI, VE, VN, VC, VEND, VEL = 76, 78, 79, 80, 81, 82, 83, 84, 85, 86, 126
TMP = 87
W = 94
NV = 127
PA, QA, VXA, VWA, VWS, VTG, W3, TG0, ZR = UA, 48, AD, 36, 38, 76, 62, 60, 44
XFB, WFB = [W, W + 20], [W + 12, 40]
VWB = VE
CK0, CK1, CK2 = 34, 35, 37
TAG = 92
sWAVE, sN0, sCNT, sHEAD, sIT, sW1, sCH = 3, 4, 5, 6, 7, 26, 27
sP, sP1, sREM, sSEGE, sSEGS, sNEND, sK, sTOT, sRND, sOB, sOC, sOFF = range(48, 60)
sV0, sV1, sOM, sRET, sSO, sM, sONE, sSC = 60, 62, 64, 66, 68, 70, 72, 74
sM0, sBORN = 69, 65
sT0, sT1, sT2, sBND = 76, 77, 78, 79
sLN2 = 44
REC, RK0, RK1 = 40, 4, 5
CK = TMP + 1

def valu_block(T):
    ex = "\n".join(f"v_exp_f32 v{E+i}, v{T+i}" for i in range(4))
    pk = f"""
v_pk_fma_f32 {vr(NN,2)}, {vr(NN,2)}, {vr(E,2)}, {vr(NN,2)}
v_pk_fma_f32 {vr(NN+2,2)}, {vr(NN+2,2)}, {vr(E+2,2)}, {vr(NN+2,2)}
v_pk_fma_f32 {vr(NN,2)}, {vr(T,2)}, {vr(D,2)}, {vr(NN,2)}
v_pk_fma_f32 {vr(NN+2,2)}, {vr(T+2,2)}, {vr(D+2,2)}, {vr(NN+2,2)}
v_pk_fma_f32 {vr(D,2)}, {vr(D,2)}, {vr(E,2)}, {vr(D,2)}
v_pk_fma_f32 {vr(D+2,2)}, {vr(D+2,2)}, {vr(E+2,2)}, {vr(D+2,2)}
"""
    return ex, pk

def poll(o, tag, soff, count):
    o(f"""
v_lshlrev_b32 v{TMP}, 7, v1
s_mov_b32 s{sT1}, 0
s_mov_b64 exec, {"-1" if count == 64 else hex((1 << count) - 1)}
F_pl{tag}:
buffer_load_dwordx2 {vr(TMP+1,2)}, v{TMP}, s[32:35], {soff} offen sc1
s_add_u32 s{sT1}, s{sT1}, 1
s_waitcnt vmcnt(0)
v_cmpx_ne_u64 vcc, s[100:101], {vr(TMP+1,2)}
s_nop 4
s_cbranch_execz F_pd{tag}
s_sleep 2
s_cmp_lt_u32 s{sT1}, 0x10000
s_cbranch_scc1 F_pl{tag}
F_pd{tag}:
s_mov_b64 exec, -1
""")

def get_tag(o, tag):
    o(f"""
s_mov_b32 s{sT1}, 0
F_tg{tag}:
v_readfirstlane_b32 s100, v{TAG}
v_readfirstlane_b32 s101, v{TAG+1}
s_add_u32 s{sT1}, s{sT1}, 1
s_cmp_ge_u32 s{sT1}, 0x10000
s_cbranch_scc1 F_th{tag}
s_cmp_lt_u32 s{sT1}, 0x100
s_cselect_b32 s{sT0}, s{sBORN}, s100
s_sub_u32 s{sT0}, s100, s{sT0}
s_cmp_lg_u32 s100, 0
s_cselect_b32 s{sT0}, s{sT0}, -1
s_cmp_ge_i32 s{sT0}, 0
s_cbranch_scc1 F_th{tag}
buffer_load_dwordx2 {vr(TAG,2)}, v{VTG}, s[96:99], 0 offen sc1
s_waitcnt vmcnt(0)
s_branch F_tg{tag}
F_th{tag}:
""")

def put_flag(o, soff):
    o(f"""
v_mov_b32 v{TMP+1}, s100
v_mov_b32 v{TMP+2}, s101
s_mov_b64 exec, 1
buffer_store_dwordx2 {vr(TMP+1,2)}, v{VTG}, s[32:35], {soff} offen sc1
s_mov_b64 exec, -1
""")

def sort_rank(o):
    o(f"""
s_lshl_b32 s{sT0}, s{sN0}, 2
s_sub_u32 s{sT0}, {L_CNT}, s{sT0}
v_and_b32 v{TMP}, 0x3fff, v{REC}
v_and_b32 v{TMP+1}, 0x3fff, v{REC+2}
v_mov_b32 v{TMP+3}, 1
v_lshl_add_u32 v{TMP}, v{TMP}, 2, s{sT0}
v_lshl_add_u32 v{TMP+1}, v{TMP+1}, 2, s{sT0}
s_mov_b64 exec, s[{sV0}:{sV0+1}]
ds_add_rtn_u32 v{RK0}, v{TMP}, v{TMP+3}
s_mov_b64 exec, s[{sV1}:{sV1+1}]
ds_add_rtn_u32 v{RK1}, v{TMP+1}, v{TMP+3}
s_mov_b64 exec, -1
v_add_u32 v{TMP+4}, {L_CNT}, v{LO}
v_lshrrev_b32 v{REC}, 5, v{REC}
v_lshrrev_b32 v{REC+2}, 5, v{REC+2}
""")

def sort_scatter(o):
    o(f"""
ds_read_b32 v{TMP+2}, v{TMP+4}
v_and_b32 v{REC}, 0x7ffe00, v{REC}
v_and_b32 v{REC+2}, 0x7ffe00, v{REC+2}
s_mov_b32 s{sT0}, {L_IDX}
s_mov_b32 s{sT1}, {L_ET}
s_waitcnt lgkmcnt(0)
v_add_u32_dpp v{VEND}, v{TMP+2}, v{TMP+2} row_shr:1 row_mask:0xf bank_mask:0xf bound_ctrl:0
s_nop 1
v_add_u32_dpp v{VEND}, v{VEND}, v{VEND} row_shr:2 row_mask:0xf bank_mask:0xf bound_ctrl:0
s_nop 1
v_add_u32_dpp v{VEND}, v{VEND}, v{VEND} row_shr:4 row_mask:0xf bank_mask:0xf bound_ctrl:0
s_nop 1
v_add_u32_dpp v{VEND}, v{VEND}, v{VEND} row_shr:8 row_mask:0xf bank_mask:0xf bound_ctrl:0
s_nop 1
v_add_u32_dpp v{VEND}, v{VEND}, v{VEND} row_bcast:15 row_mask:0xa bank_mask:0xf
s_nop 1
v_add_u32_dpp v{VEND}, v{VEND}, v{VEND} row_bcast:31 row_mask:0xc bank_mask:0xf
v_sub_u32 v{TMP+3}, v{VEND}, v{TMP+2}
v_readlane_b32 s{sTOT}, v{VEND}, 63
ds_bpermute_b32 v{TMP}, v{TMP}, v{TMP+3}
ds_bpermute_b32 v{TMP+1}, v{TMP+1}, v{TMP+3}
s_nop 1
s_add_u32 s{sCH}, s{sTOT}, 15
s_lshr_b32 s{sCH}, s{sCH}, 4
s_mul_i32 s{sP}, s{sCH}, s{sWAVE}
s_add_u32 s{sP1}, s{sP}, s{sCH}
s_min_u32 s{sP}, s{sP}, s{sTOT}
s_min_u32 s{sP1}, s{sP1}, s{sTOT}
s_waitcnt lgkmcnt(0)
v_add_u32 v{TMP}, v{TMP}, v{RK0}
v_add_u32 v{TMP+1}, v{TMP+1}, v{RK1}
v_lshl_add_u32 v{TMP+2}, v{TMP}, 2, s{sT0}
v_lshl_add_u32 v{TMP+3}, v{TMP+1}, 2, s{sT0}
v_lshl_add_u32 v{TMP}, v{TMP}, 4, s{sT1}
v_lshl_add_u32 v{TMP+1}, v{TMP+1}, 4, s{sT1}
s_mov_b64 exec, s[{sV0}:{sV0+1}]
ds_write_b32 v{TMP+2}, v{REC}
ds_write_b16 v{TMP}, v{REC+1} offset:8
ds_write_b16 v{TMP}, v{REC+1} offset:14
s_mov_b64 exec, s[{sV1}:{sV1+1}]
ds_write_b32 v{TMP+3}, v{REC+2}
ds_write_b16 v{TMP+1}, v{REC+3} offset:8
ds_write_b16 v{TMP+1}, v{REC+3} offset:14
s_mov_b64 exec, -1
""")

def zero_cnt(o):
    o(f"v_mov_b32 v{TMP}, 0\nds_write_b32 v{TMP+4}, v{TMP}")

def prime(o):
    PT = T0
    o(f"""
s_lshl_b32 s{sT0}, s{sP}, 2
s_add_u32 s{sT0}, s{sT0}, {L_IDX}
v_mov_b32 v{VI}, s{sT0}
s_lshl_b32 s{sT0}, s{sP}, 4
v_add_u32 v{VE}, s{sT0}, v{VEL}
""")
    for k in range(0, R, 2):
        o(f"ds_read2_b32 {vr(PT+k,2)}, v{VI} offset0:{k} offset1:{k+1}")
    o(f"""
ds_read_b32 v{IX}, v{VI} offset:{4*R}
ds_read2_b32 {vr(A0+2,2)}, v{VE} offset0:0 offset1:2
ds_read2_b32 {vr(A1+2,2)}, v{VE} offset0:4 offset1:6
s_waitcnt lgkmcnt(0)
""")
    for k in range(R):
        B = RING + 4*k
        o(f"buffer_load_dword v{B}, v{PT+k}, s[16:19], 0 offen sc1")
        o(f"buffer_load_dword v{B+1}, v{PT+k}, s[16:19], 0 offen offset:256 sc1")

def wloads(o, mat, wreg, kss=range(8), sa=sT0, sb=sT1, va=TMP+5, setup=True):
    if not setup:
        for ks in kss:
            o(f"buffer_load_dwordx4 {vr(wreg+4*ks,4)}, v{va}, s[32:35], s{sa if ks < 4 else sb} offen offset:{(ks%4)*1024} sc1")
        return
    o(f"""
s_lshl_b32 s{sT0}, s{sWAVE}, 13
s_add_u32 s{sT0}, s{sT0}, {WS_WPACK + mat*131072}
s_add_u32 s{sT1}, s{sT0}, 4096
v_lshlrev_b32 v{TMP+5}, 4, v1
""")
    for ks in range(8):
        o(f"buffer_load_dwordx4 {vr(wreg+4*ks,4)}, v{TMP+5}, s[32:35], s{sT0 if ks < 4 else sT1} offen offset:{(ks%4)*1024} sc1")

DST, SRC, EA, OWN, RK, R0 = 8, 12, 16, 20, 24, 28
EW = [EA, 18, EA + 1, 19]
sBM = 58
def bin_rank(o):
    o(f"v_mov_b32 v{TMP+3}, 1\ns_movk_i32 s57, 256\ns_mov_b64 exec, s[{sBM}:{sBM+1}]")
    for k in range(4):
        o(f"""
v_mul_u32_u24 v{OWN+k}, s56, v{DST+k}
v_lshrrev_b32 v{OWN+k}, 24, v{OWN+k}
v_lshl_add_u32 v{TMP+4}, v{OWN+k}, 2, s60
ds_add_rtn_u32 v{RK+k}, v{TMP+4}, v{TMP+3}
""")
    for k in range(4):
        o(f"""
v_lshl_or_b32 v{R0+k}, v{SRC+k}, 14, v{DST+k}
v_and_b32 v{TMP+1}, 7, v{OWN+k}
v_lshl_add_u32 v{DST+k}, v{OWN+k}, 8, s61
v_lshl_or_b32 v{DST+k}, v{TMP+1}, 4, v{DST+k}
""")
    o(f"""
v_lshrrev_b32 v18, 16, v{EA}
v_lshrrev_b32 v19, 16, v{EA+1}
s_waitcnt lgkmcnt(0)
v_max3_u32 v{TMP}, v{RK}, v{RK+1}, v{RK+2}
v_max_u32 v{TMP}, v{TMP}, v{RK+3}
v_cmp_le_u32 vcc, {CAP}, v{TMP}
""")
    for k in range(4):
        o(f"""
v_mad_u32_u24 v{SRC+k}, v{RK+k}, 37, s57
v_lshrrev_b32 v{SRC+k}, 8, v{SRC+k}
v_add_lshl_u32 v{SRC+k}, v{SRC+k}, v{RK+k}, 3
v_xor_b32 v{DST+k}, v{SRC+k}, v{DST+k}
""")
    o("s_cbranch_vccnz F_ovf")
    for k in range(4):
        o(f"ds_write2_b32 v{DST+k}, v{R0+k}, v{EW[k]} offset0:0 offset1:1")
    o("F_ovfback:\ns_mov_b64 exec, -1")

def bin_overflow(o):
    o(f"F_ovf:\ns_mul_i32 s50, s2, {CHUNK*8}\ns_add_u32 s50, s50, {WS_OVF}\nv_mov_b32 v{TMP}, {L_BCNT+1024}")
    for k in range(4):
        o(f"""
v_cmp_gt_u32 vcc, {CAP}, v{RK+k}
s_and_saveexec_b64 s[62:63], vcc
ds_write2_b32 v{DST+k}, v{R0+k}, v{EW[k]} offset0:0 offset1:1
s_andn2_b64 exec, s[62:63], exec
s_cbranch_execz F_no{k}
ds_add_rtn_u32 v{TMP+4}, v{TMP}, v{TMP+3}
v_mov_b32 v{TMP+1}, v{R0+k}
v_and_b32 v{TMP+2}, 0xffff, v{EW[k]}
v_lshl_or_b32 v{TMP+2}, v{OWN+k}, 16, v{TMP+2}
s_waitcnt lgkmcnt(0)
v_lshlrev_b32 v{TMP+4}, 3, v{TMP+4}
buffer_store_dwordx2 {vr(TMP+1,2)}, v{TMP+4}, s[32:35], s50 offen sc1
s_waitcnt vmcnt(0)
F_no{k}:
s_mov_b64 exec, s[62:63]
""")
    o("s_branch F_ovfback")

def bin_copy(o):
    o(f"""
v_mov_b32 v31, s100
s_waitcnt lgkmcnt(5)
v_cmp_lt_u32 vcc, 14, v28
v_min_u32 v28, {CAP}, v28
v_cmp_lt_u32 s[62:63], 14, v29
v_min_u32 v29, {CAP}, v29
v_cndmask_b32 v24, v43, v41, vcc
v_cndmask_b32 v25, v43, v41, s[62:63]
s_waitcnt lgkmcnt(4)
v_cndmask_b32 v8, v8, v28, s[22:23]
v_cndmask_b32 v9, v9, v31, s[22:23]
buffer_store_dwordx4 v[8:11], v41, s[32:35], s24 offen sc1
s_waitcnt lgkmcnt(3)
v_cndmask_b32 v12, v12, v29, s[22:23]
v_cndmask_b32 v13, v13, v31, s[22:23]
buffer_store_dwordx4 v[12:15], v41, s[32:35], s25 offen sc1
s_waitcnt lgkmcnt(2)
v_cndmask_b32 v17, v17, v31, s[22:23]
buffer_store_dwordx4 v[16:19], v24, s[32:35], s24 offen offset:128 sc1
s_waitcnt lgkmcnt(1)
v_cndmask_b32 v21, v21, v31, s[22:23]
buffer_store_dwordx4 v[20:23], v25, s[32:35], s25 offen offset:128 sc1
s_cmp_lg_u32 s{sWAVE}, 0
s_cbranch_scc1 F_bc1
s_lshl_b32 s50, s2, 3
s_add_u32 s50, s50, {WS_OVFC}
s_mov_b64 exec, 1
s_waitcnt lgkmcnt(0)
buffer_store_dwordx2 v[30:31], v{VTG}, s[32:35], s50 offen sc1
s_mov_b64 exec, -1
F_bc1:
""")

def gen(o):
    XNT = "" if "nont" in OPT else "nt"
    AA = [A0, A1]
    TT = [T0, T1]
    o(f"""
.globl {KNAME}
.p2align 8
.type {KNAME},@function
{KNAME}:
s_cmp_ge_u32 s2, 256
s_cbranch_scc1 L_end
s_load_dwordx2 s[28:29], s[0:1], 0
s_load_dwordx2 s[44:45], s[0:1], 32
s_load_dwordx2 s[36:37], s[0:1], 24
s_load_dwordx2 s[12:13], s[0:1], 16
s_load_dwordx2 s[52:53], s[0:1], 8
s_load_dwordx2 s[40:41], s[0:1], 40
s_load_dwordx2 s[32:33], s[0:1], 64
s_load_dwordx2 s[96:97], s[0:1], 56
s_load_dwordx2 s[20:21], s[0:1], 48
s_memrealtime s[100:101]
""")
    if STAMP: o("s_memrealtime s[80:81]")
    ops = []
    def vm(target):
        return len(ops) - 1 - max(i for i, x in enumerate(ops) if x == target)
    def dma(s, count=True):
        for m in range(2):
            o(f"""
s_add_u32 m0, s{sSO}, {(s & 3) * 32768 + m*16384}
s_add_u32 s{sM0}, s{sSO}, {m*131072 + s*16384}
buffer_load_dwordx4 v{VWS}, s[44:47], s{sM0} offen lds
""")
        if count:
            ops.extend([("d", s)] * 2)
    o(f"""
v_lshrrev_b32 v2, 6, v0
v_and_b32 v1, 63, v0
s_mul_i32 s{sN0}, s2, 625
v_readfirstlane_b32 s{sWAVE}, v2
v_lshrrev_b32 v4, 5, v1
v_and_b32 v6, 31, v1
s_add_u32 s{sCNT}, s{sN0}, 640
s_add_u32 s{sN0}, s{sN0}, 15
s_lshr_b32 s{sN0}, s{sN0}, 4
s_lshl_b32 s50, s{sWAVE}, 1
v_add_u32 v5, s50, v4
v_lshlrev_b32 v2, 4, v0
v_and_b32 v7, 15, v5
v_xor_b32 v7, v7, v6
v_lshlrev_b32 v7, 4, v7
v_lshl_add_u32 v7, v4, 9, v7
v_lshlrev_b32 v{LO}, 2, v1
v_mov_b32 v{VTG}, 0
s_mov_b32 s30, {N*512}
s_mov_b32 s31, 0x20000
s_mov_b32 s46, {513*512}
s_mov_b32 s47, 0x20000
s_mov_b32 s38, 640000
s_mov_b32 s39, 0x20000
s_mov_b32 s14, 640000
s_mov_b32 s15, 0x20000
s_mov_b32 s54, 320000
s_mov_b32 s55, 0x20000
s_mov_b32 s98, 256
s_mov_b32 s99, 0x20000
s_lshl_b32 s{sSO}, s{sWAVE}, 10
s_lshl_b32 s51, s{sN0}, 9
s_add_u32 s51, s51, s{sSO}
s_add_u32 m0, s{sSO}, {L_XS}
s_cmp_ge_u32 s2, 64
s_cbranch_scc1 F_nobl
s_mul_i32 s49, s2, 10000
s_mul_i32 s50, s2, 5000
v_lshlrev_b32 v{TMP}, 3, v0
s_cmp_ge_u32 s{sWAVE}, 10
s_waitcnt lgkmcnt(0)
s_cbranch_scc1 F_nel
buffer_load_dwordx4 {vr(DST,4)}, v2, s[36:39], s49 offen {XNT}
buffer_load_dwordx4 {vr(SRC,4)}, v2, s[12:15], s49 offen {XNT}
buffer_load_dwordx2 {vr(EA,2)}, v{TMP}, s[52:55], s50 offen {XNT}
s_branch F_ne2
F_nel:
s_sub_u32 s50, s{sWAVE}, 10
s_cmp_ge_u32 s50, 2
s_cbranch_scc1 F_ne2
s_lshr_b32 s49, s2, 3
s_lshl_b32 s49, s49, 13
s_lshl_b32 s50, s50, 12
s_add_u32 s49, s49, s50
v_lshlrev_b32 v{TMP}, 6, v1
buffer_load_dword v77, v{TMP}, s[44:47], s49 offen
F_ne2:
v_lshlrev_b32 v{TMP}, 2, v0
v_add_u32 v{TMP}, {L_BCNT}, v{TMP}
s_cmp_ge_u32 s{sWAVE}, 5
s_cbranch_scc1 F_nbz
ds_write_b32 v{TMP}, v{VTG}
F_nbz:
s_waitcnt lgkmcnt(0)
s_barrier
s_add_u32 m0, s{sSO}, {L_XS}
s_cmp_ge_u32 s{sWAVE}, 4
buffer_load_dwordx4 v7, s[28:31], s51 offen {XNT} lds
s_cbranch_scc1 F_nox2b
s_add_u32 m0, s{sSO}, {L_XS + 16384}
s_add_u32 s50, s51, 16384
buffer_load_dwordx4 v7, s[28:31], s50 offen {XNT} lds
F_nox2b:
s_branch F_nx
F_nobl:
""")
    if "ipf" in OPT:
        o(f"""
s_cmp_lt_u32 s2, 240
s_cbranch_scc1 F_nipf
s_sub_u32 s50, s{sWAVE}, 8
s_cmp_ge_u32 s50, 2
s_cbranch_scc1 F_nipf
s_getpc_b64 s[22:23]
s_lshl_b32 s50, s50, 12
v_lshlrev_b32 v{TMP}, 6, v1
v_add_u32 v{TMP}, s50, v{TMP}
global_load_dword v77, v{TMP}, s[22:23]
F_nipf:
""")
    o(f"""
s_cmp_ge_u32 s{sWAVE}, 4
s_waitcnt lgkmcnt(0)
buffer_load_dwordx4 v7, s[28:31], s51 offen {XNT} lds
s_cbranch_scc1 F_nox2
s_add_u32 m0, s{sSO}, {L_XS + 16384}
s_add_u32 s50, s51, 16384
buffer_load_dwordx4 v7, s[28:31], s50 offen {XNT} lds
s_lshl_b32 s49, s2, 4
s_add_u32 s49, s49, s{sWAVE}
s_cmp_lg_u32 s49, 0xff0
s_cbranch_scc1 F_nox2
s_or_b32 s49, s100, 1
v_mov_b32 v{TMP+1}, s49
v_mov_b32 v{TMP+2}, s101
s_mov_b64 exec, 1
buffer_store_dwordx2 {vr(TMP+1,2)}, v{VTG}, s[96:99], 0 offen sc1
s_mov_b64 exec, -1
F_nox2:
s_sub_u32 s50, s{sWAVE}, 6
s_cmp_ge_u32 s50, 2
s_cbranch_scc1 F_ntc
s_lshr_b32 s49, s2, 3
s_lshl_b32 s49, s49, 13
s_lshl_b32 s50, s50, 12
s_add_u32 s49, s49, s50
v_lshlrev_b32 v7, 6, v1
buffer_load_dword v77, v7, s[44:47], s49 offen
F_ntc:
s_mov_b32 s50, {512*512}
buffer_load_dword v{W3}, v{LO}, s[44:47], s50 offen
buffer_load_dword v{W3+1}, v{LO}, s[44:47], s50 offen offset:256
F_nx:
v_and_b32 v{TMP}, 3, v5
v_bfe_u32 v{TMP+1}, v5, 3, 1
v_lshl_or_b32 v{TMP}, v{TMP+1}, 2, v{TMP}
v_lshlrev_b32 v{TMP}, 1, v{TMP}
v_xor_b32 v{TMP}, v{TMP}, v6
v_lshlrev_b32 v{TMP}, 4, v{TMP}
v_lshl_add_u32 v{VWS}, v4, 9, v{TMP}
s_mov_b32 s42, {512*512}
s_mov_b32 s43, 0x20000
s_mov_b32 s34, {WS_END}
s_mov_b32 s35, 0x20000
s_sub_u32 s{sBORN}, s100, 1500
s_sub_u32 s48, s2, 64
""")
    if "early0" in OPT:
        o("s_cmp_lt_u32 s2, 64\ns_cbranch_scc1 F_ne0")
        dma(0)
        o("F_ne0:")
    o(f"""
s_lshr_b32 s{sCNT}, s{sCNT}, 4
s_sub_u32 s{sCNT}, s{sCNT}, s{sN0}
v_lshlrev_b32 v{VC}, 3, v1
v_lshrrev_b32 v3, 4, v1
v_and_b32 v4, 15, v1
v_xor_b32 v{VXA}, v4, v3
v_lshlrev_b32 v{VXA}, 4, v{VXA}
v_lshl_add_u32 v{VXA}, v4, 9, v{VXA}
v_add_u32 v{VXA}, {L_XS}, v{VXA}
v_bfe_u32 v5, v1, 2, 2
v_and_b32 v6, 3, v1
v_lshl_add_u32 v{VWA}, v3, 3, v5
v_lshlrev_b32 v{VWA}, 9, v{VWA}
v_lshl_add_u32 v{VWA}, v6, 3, v{VWA}
v_and_b32 v7, 1, v3
v_lshl_or_b32 v{TMP}, v7, 2, v5
v_xor_b32 v{TMP}, s{sWAVE}, v{TMP}
v_lshl_add_u32 v{VWA}, v{TMP}, 5, v{VWA}
v_add_u32 v{VWB}, 0x10000, v{VWA}
v_add_u32 v{TMP+4}, {L_CNT}, v{LO}
ds_write2st64_b32 v{TMP+4}, v{VTG}, v{VTG} offset0:0 offset1:1
s_cmp_ge_u32 s48, 16
s_cbranch_scc1 F_npd
s_lshl_b32 s49, s48, 14
s_add_u32 m0, s{sSO}, {L_PK}
s_add_u32 s49, s49, s{sSO}
buffer_load_dwordx4 v{VWS}, s[40:43], s49 offen lds
F_npd:
s_mov_b32 s{sSC}, {NEGL2E:#x}
s_mov_b32 s{sSC+1}, {NEGL2E:#x}
v_lshrrev_b32 v{TMP}, 1, v3
s_lshl_b32 s{sT1}, s{sWAVE}, 1
v_or_b32 v{TMP}, s{sT1}, v{TMP}
v_xor_b32 v{TMP}, v{TMP}, v4
v_lshlrev_b32 v{TMP}, 4, v{TMP}
v_lshl_add_u32 v{VN}, v4, 9, v{TMP}
v_lshl_add_u32 v{VN}, v7, 3, v{VN}
v_add_u32 v{VN}, {L_PST}, v{VN}
v_lshrrev_b32 v{VB}, 5, v0
v_add_u32 v{TMP}, 32, v{VB}
v_cmp_gt_u32 vcc, s{sCNT}, v{TMP}
v_lshlrev_b32 v{VB}, 4, v{VB}
v_xor_b32 v{VB}, v{VB}, v2
v_add_u32 v{VB}, {L_PST}, v{VB}
v_add_u32 v{VI}, 0x4000, v2
v_mov_b32 v{TMP}, 0x7ffffff0
v_cndmask_b32 v{VI}, v{TMP}, v{VI}, vcc
s_cmp_lt_u32 s2, 64
s_cbranch_scc1 F_nd0
""")
    if "early0" in OPT:
        o("s_barrier")
        dma(1)
    else:
        dma(0)
    o(f"""
F_nd0:
v_cmp_eq_u32 vcc, v5, v3
v_and_b32 v{TMP+2}, 1, v1
v_lshlrev_b32 v{TMP+2}, 4, v{TMP+2}
v_mov_b32 v{TMP+3}, 0x3f80
v_lshlrev_b32 v{TMP+3}, v{TMP+2}, v{TMP+3}
v_cndmask_b32 v{TMP+3}, 0, v{TMP+3}, vcc
v_xor_b32 v{VEL}, 2, v6
v_lshlrev_b32 v{VEL}, 2, v{VEL}
v_add_u32 v{VEL}, {L_ET}, v{VEL}
v_mov_b32 v{TMP+2}, 0x30000
v_cndmask_b32 v{VEL}, v{TMP+2}, v{VEL}, vcc
v_cmp_gt_u32 vcc, 2, v6
v_mul_u32_u24 v{CK0}, 7, v5
v_lshl_add_u32 v{CK1}, v6, 1, v{CK0}
v_cndmask_b32 v{A1}, 0, v{TMP+3}, vcc
v_cndmask_b32_e64 v{A1+1}, v{TMP+3}, 0, vcc
v_cmp_eq_u32 vcc, 0, v6
v_add_u32 v{CK2}, -1, v{CK1}
v_mov_b32 v{TMP}, 64
s_movk_i32 s{sT0}, {RS}
v_cndmask_b32 v{CK2}, v{CK2}, v{TMP}, vcc
v_mul_u32_u24 v{IX}, s{sT0}, v4
v_lshl_add_u32 v{IX}, v3, 4, v{IX}
s_lshl_b32 s{sT0}, s{sWAVE}, 6
v_add_u32 v{IX}, s{sT0}, v{IX}
s_mov_b64 s[8:9], s[32:33]
s_mov_b32 s10, {N*512}
s_mov_b32 s11, 0x20000
s_mov_b32 s16, s32
s_or_b32 s17, s33, 0x40000
s_mov_b32 s18, {N*512}
s_mov_b32 s19, 0x800000
s_mov_b32 s{sONE}, 1.0
s_mov_b32 s{sONE+1}, 1.0
s_mov_b32 s{sBND}, 0x7b800000
s_mov_b32 s{sW1}, 0
s_cmp_lt_u32 s2, 64
s_cbranch_scc1 F_bin
""")
    if "early0" not in OPT:
        o("s_barrier")
        dma(1)
    o(f"""
s_branch F_nbr
F_bin:
s_movk_i32 s57, 625
v_cmp_gt_u32 s[{sBM}:{sBM+1}], s57, v0
s_mov_b32 s56, 429497
s_mov_b32 s60, {L_BCNT}
s_mov_b32 s61, {L_IMG}
v_lshrrev_b32 v42, 3, v0
v_and_b32 v43, 7, v0
v_lshlrev_b32 v43, 4, v43
v_lshl_add_u32 v41, v42, 14, v43
v_and_b32 v40, 7, v42
v_lshlrev_b32 v40, 4, v40
v_xor_b32 v40, v40, v43
v_lshl_add_u32 v40, v42, 8, v40
v_add_u32 v40, s61, v40
v_lshl_add_u32 v42, v42, 2, s60
v_and_b32 v43, 48, v43
v_cmp_eq_u32 s[22:23], 0, v43
v_mov_b32 v43, 0x7f000000
v_mov_b32 v44, {L_BCNT+1024}
s_lshl_b32 s24, s2, 8
s_add_u32 s24, s24, {WS_CELL}
s_add_u32 s25, s24, {128*16384}
""")
    if "pre" in STEPS: stamp(o, (1, 2, 3, 4, 6)[STEPS.index("pre")])
    o(f"""
s_cmp_lt_u32 s{sWAVE}, 4
s_waitcnt vmcnt(2)
s_cbranch_scc1 F_be
s_waitcnt vmcnt(1)
F_be:
buffer_load_dwordx2 {vr(TAG,2)}, v{VTG}, s[96:99], 0 offen sc1
s_mov_b32 s50, {512*512}
buffer_load_dword v{W3}, v{LO}, s[44:47], s50 offen
buffer_load_dword v{W3+1}, v{LO}, s[44:47], s50 offen offset:256
""")
    st0 = lambda name: stamp(o, (1, 2, 3, 4, 6)[STEPS.index(name)]) if name in STEPS else None
    st0("edge")
    bin_rank(o)
    st0("rank")
    dma(0, False)
    o(f"""
s_waitcnt lgkmcnt(0)
s_barrier
ds_read2st64_b32 v[28:29], v42 offset0:0 offset1:2
ds_read_b128 v[8:11], v40
ds_read_b128 v[12:15], v40 offset:32768
ds_read_b128 v[16:19], v40 offset:128
ds_read_b128 v[20:23], v40 offset:{32768+128}
ds_read_b32 v30, v44
""")
    dma(1, False)
    o("s_waitcnt vmcnt(6)")
    get_tag(o, "b")
    bin_copy(o)
    o("F_nbr:")
    st0("copy")
    def st(name):
        if name in STEPS: stamp(o, (1, 2, 3, 4, 6)[STEPS.index(name)])
    def reads(s):
        l = []
        a = VXA
        if s:
            a = TMP + 6
            o(f"v_xor_b32 v{a}, {64*s}, v{VXA}")
        xf, wf = XFB[s & 1], WFB[s & 1]
        wa = VWA if (s & 3) < 2 else VWB
        for rt in range(3):
            l.append(f"ds_read_b128 {vr(xf+4*rt,4)}, v{a} offset:{rt*8192}")
        for m in range(2):
            off = (s & 1) * 32768 + m * 16384
            l.append(f"ds_read_b64_tr_b16 {vr(wf+4*m,2)}, v{wa} offset:{off}\nds_read_b64_tr_b16 {vr(wf+4*m+2,2)}, v{wa} offset:{off + 2048}")
        return l
    SCHED = {-1: [2], 0: [3, 4], 1: [5], 2: [6], 3: [7]}
    for s in range(-1, 8):
        if s < 7:
            n = vm(("d", s + 1))
            if s <= 1:
                nb = {-1: 6, 0: 7, 1: 4}[s]
                npk = n + (1 if s >= 0 else 0)
                o(f"""
s_cmp_lt_u32 s2, 64
s_cbranch_scc0 F_wb{s+1}
s_waitcnt vmcnt({nb})
s_branch F_wc{s+1}
F_wb{s+1}:
s_waitcnt vmcnt({npk})
s_cmp_lt_u32 s48, 16
s_cbranch_scc1 F_wc{s+1}
s_waitcnt vmcnt({n})
F_wc{s+1}:
s_waitcnt lgkmcnt(0)
s_barrier
""")
            else:
                o(f"s_waitcnt vmcnt({n}) lgkmcnt(0)\ns_barrier")
        else:
            o("s_waitcnt lgkmcnt(0)\ns_barrier")
        st(f"s{s}")
        if s == -1:
            o(f"buffer_load_dwordx2 {vr(TG0,2)}, v{VTG}, s[96:99], 0 offen sc1")
            ops.append("tag")
        rd = reads(s + 1) if s < 7 else []
        mm = []
        if s >= 0:
            for m, acc in enumerate((PA, QA)):
                for rt in range(3):
                    c = "0" if s == 0 else vr(acc+4*rt, 4)
                    mm.append(f"v_mfma_f32_16x16x32_bf16 {vr(acc+4*rt,4)}, {vr(WFB[s&1]+4*m,4)}, {vr(XFB[s&1]+4*rt,4)}, {c}")
        if s == 7:
            late, mm = mm[3:], mm[:3]
        while rd or mm:
            if mm: o(mm.pop(0))
            if rd: o(rd.pop(0))
        for t in SCHED.get(s, []):
            dma(t)
        if s == -1:
            o(f"""
s_cmp_ge_u32 s48, 16
s_cbranch_scc1 F_d0
ds_read_b64_tr_b16 v[4:5], v{VWB} offset:32768
ds_read_b64_tr_b16 v[6:7], v{VWB} offset:{32768+2048}
s_lshl_b32 s50, s{sWAVE}, 13
s_and_b32 s49, s48, 7
s_lshl_b32 s49, s49, 10
s_add_u32 s50, s50, s49
s_lshr_b32 s49, s48, 3
s_lshl_b32 s49, s49, 17
s_add_u32 s50, s50, s49
s_add_u32 s50, s50, {WS_WPACK}
v_lshlrev_b32 v12, 4, v1
s_waitcnt lgkmcnt(0)
buffer_store_dwordx4 v[4:7], v12, s[32:35], s50 offen sc1
F_d0:
""")
        if s == 0 and "direct" in OPT:
            o(f"""
v_lshlrev_b32 v{VN}, 9, v{TMP+1}
v_lshl_add_u32 v{VN}, v3, 3, v{VN}
s_lshl_b32 s{sT1}, s{sWAVE}, 5
v_add_u32 v{VN}, s{sT1}, v{VN}
v_add_u32 v{TMP}, 32, v{TMP+1}
v_cmp_gt_u32 vcc, s{sCNT}, v{TMP}
v_add_u32 v{VI}, 0x4000, v{VN}
v_mov_b32 v{TMP}, 0x7ffffff0
s_nop 0
v_cndmask_b32 v{VI}, v{TMP}, v{VI}, vcc
""")
        if s == 2:
            assert ops.index("tag") < ops.index(("d", 3))
            o(f"s_cmp_ge_u32 s48, 16\ns_cbranch_scc1 F_d5\ns_cmp_lg_u32 s{sWAVE}, 0\ns_cbranch_scc1 F_d5\nv_mov_b64 {vr(TAG,2)}, {vr(TG0,2)}")
            get_tag(o, "p")
            o(f"s_lshl_b32 s{sT0}, s48, 7\ns_add_u32 s{sT0}, s{sT0}, {WS_FLAG + 256*128}")
            put_flag(o, f"s{sT0}")
            o("F_d5:")
    o(f"s_lshl_b32 s{sT2}, s{sN0}, 9\ns_add_u32 s{sT1}, s{sT2}, 8192\ns_nop 3")
    if "direct" in OPT:
        for rt in range(3):
            a_ = PA + 4*rt
            o(f"""
v_pk_mul_f32 {vr(a_,2)}, {vr(a_,2)}, s[{sSC}:{sSC+1}]
v_pk_mul_f32 {vr(a_+2,2)}, {vr(a_+2,2)}, s[{sSC}:{sSC+1}]
v_cvt_pk_bf16_f32 v{W+2*rt}, v{a_}, v{a_+1}
v_cvt_pk_bf16_f32 v{W+2*rt+1}, v{a_+2}, v{a_+3}
buffer_store_dwordx2 {vr(W+2*rt,2)}, v{VN if rt < 2 else VI}, s[8:11], s{sT1 if rt == 1 else sT2} offen sc1
""")
        o("\n".join(late))
        o("s_barrier")
    else:
        for rt in range(3):
            a_ = PA + 4*rt
            o(f"""
v_pk_mul_f32 {vr(a_,2)}, {vr(a_,2)}, s[{sSC}:{sSC+1}]
v_pk_mul_f32 {vr(a_+2,2)}, {vr(a_+2,2)}, s[{sSC}:{sSC+1}]
v_cvt_pk_bf16_f32 v{W+2*rt}, v{a_}, v{a_+1}
v_cvt_pk_bf16_f32 v{W+2*rt+1}, v{a_+2}, v{a_+3}
ds_write_b64 v{VN}, {vr(W+2*rt,2)} offset:{rt*8192}
""")
        o("\n".join(late))
        o(f"""
s_cmp_lt_u32 s{sWAVE}, 8
s_waitcnt lgkmcnt(0)
s_barrier
s_cbranch_scc0 F_nps
ds_read_b128 {vr(W,4)}, v{VB}
ds_read_b128 {vr(W+4,4)}, v{VB} offset:8192
ds_read_b128 {vr(W+8,4)}, v{VB} offset:16384
s_waitcnt lgkmcnt(2)
buffer_store_dwordx4 {vr(W,4)}, v2, s[8:11], s{sT2} offen sc1
s_waitcnt lgkmcnt(1)
buffer_store_dwordx4 {vr(W+4,4)}, v2, s[8:11], s{sT1} offen sc1
s_waitcnt lgkmcnt(0)
buffer_store_dwordx4 {vr(W+8,4)}, v{VI}, s[8:11], s{sT2} offen sc1
F_nps:
s_barrier
""")

    st("pst")
    o(f"""
s_lshl_b32 s{sOFF}, s2, 14
s_add_u32 s{sOFF}, s{sOFF}, {WS_CELL}
buffer_load_dwordx4 {vr(REC,4)}, v2, s[32:35], s{sOFF} offen sc1
v_mov_b64 {vr(TAG,2)}, {vr(TG0,2)}
""")
    get_tag(o, "m")
    o(f"s_cmp_lg_u32 s{sWAVE}, 15\ns_cbranch_scc1 F_npk\ns_mov_b32 s{sT0}, {WS_FLAG + 256*128}")
    poll(o, "k", f"s{sT0}", 16)
    o("F_npk:")
    o(f"s_mov_b32 s{sT2}, 0\ns_waitcnt vmcnt(1)\ns_barrier")
    st("drain")
    o(f"s_cmp_lg_u32 s{sWAVE}, 0\ns_cbranch_scc1 F_nfp\ns_lshl_b32 s{sT0}, s2, 7\ns_add_u32 s{sT0}, s{sT0}, {WS_FLAG}")
    put_flag(o, f"s{sT0}")
    o(f"""
F_nfp:
s_lshl_b32 s12, s{sWAVE}, 13
s_add_u32 s12, s12, {WS_WPACK}
s_add_u32 s13, s12, 4096
v_lshlrev_b32 v{VE}, 4, v1
""")
    wl = lambda kss: wloads(o, 0, W, kss, 12, 13, VE, False)
    wl((0, 1))
    o(f"""
v_mov_b64 {vr(ZR,2)}, 0
v_mov_b64 {vr(ZR+2,2)}, 0
v_add_u32 v{VB}, {L_AGB}, v2
v_add_u32 v{VI}, {L_ET}, v2
ds_write_b128 v{VB}, {vr(ZR,4)}
ds_write_b128 v{VB}, {vr(ZR,4)} offset:4096
v_add_u32 v{VB}, {L_IDX}, v2
ds_write_b128 v{VB}, {vr(ZR,4)}
ds_write_b128 v{VI}, {vr(ZR,4)}
ds_write_b128 v{VI}, {vr(ZR,4)} offset:16384
ds_write_b128 v{VI}, {vr(ZR,4)} offset:16448
""")
    o(f"""
v_lshlrev_b32 v{TMP}, 16, v{W3}
v_and_b32 v{TMP+1}, 0xffff0000, v{W3}
v_lshlrev_b32 v{TMP+2}, 16, v{W3+1}
v_and_b32 v{TMP+3}, 0xffff0000, v{W3+1}
v_mul_f32 v{TMP}, s{sSC}, v{TMP}
v_mul_f32 v{TMP+1}, s{sSC}, v{TMP+1}
v_mul_f32 v{TMP+2}, s{sSC}, v{TMP+2}
v_mul_f32 v{TMP+3}, s{sSC}, v{TMP+3}
v_cvt_pk_bf16_f32 v6, v{TMP}, v{TMP+1}
v_cvt_pk_bf16_f32 v7, v{TMP+2}, v{TMP+3}
""")
    for k in range(1, R):
        o(f"v_mov_b64 {vr(RING+4*k+2,2)}, v[6:7]")
    o(f"""
v_mov_b64 {vr(A0,2)}, {vr(A1,2)}
s_mov_b32 s{sRND}, 0
s_mov_b64 s[40:41], s[20:21]
s_mov_b32 s42, {N*512}
""")
    for rt in range(3):
        o(f"""
v_pk_mul_f32 {vr(QA+4*rt,2)}, {vr(QA+4*rt,2)}, s[{sSC}:{sSC+1}]
v_pk_mul_f32 {vr(QA+4*rt+2,2)}, {vr(QA+4*rt+2,2)}, s[{sSC}:{sSC+1}]
ds_write_b128 v{IX}, {vr(QA+4*rt,4)} offset:{L_QS + rt*16*RS}
""")
    wl((2, 3))
    st("q")
    o(f"""
s_waitcnt vmcnt(4)
F_cl:
v_mov_b32_dpp v{TMP}, v{REC+1} row_newbcast:0 row_mask:0xf bank_mask:0xf
v_mov_b32_dpp v{TMP+1}, v{REC} row_newbcast:0 row_mask:0xf bank_mask:0xf
v_mov_b32_dpp v{TMP+2}, v{REC+1} quad_perm:[0,0,0,0] row_mask:0xf bank_mask:0xf
v_cmp_eq_u32 vcc, s100, v{TMP}
v_cmp_ne_u32 s[{sM}:{sM+1}], s100, v{TMP+2}
s_add_u32 s{sT2}, s{sT2}, 1
v_cndmask_b32 v{TMP+1}, 0, v{TMP+1}, vcc
v_max_u32 v{TMP+3}, 1, v{TMP+1}
v_cmp_lt_u32 vcc, v{CK0}, v{TMP+3}
s_cmp_ge_u32 s{sT2}, 0x10000
s_cbranch_scc1 F_cd
s_and_b64 exec, vcc, s[{sM}:{sM+1}]
s_cbranch_execz F_cd
s_sleep 1
buffer_load_dwordx4 {vr(REC,4)}, v2, s[32:35], s{sOFF} offen sc1
s_mov_b64 exec, -1
s_waitcnt vmcnt(0)
s_branch F_cl
F_cd:
s_mov_b64 exec, -1
v_cmp_gt_u32 s[{sV0}:{sV0+1}], v{TMP+1}, v{CK2}
v_cmp_gt_u32 s[{sV1}:{sV1+1}], v{TMP+1}, v{CK1}
""")
    st("cell")
    sort_rank(o)
    wl((4, 5))
    o("s_waitcnt lgkmcnt(0)\ns_barrier")
    sort_scatter(o)
    o(f"""
s_lshl_b32 s{sOC}, s{sWAVE}, 13
s_add_u32 s{sOC}, s{sOC}, {WS_FLAG}
v_lshlrev_b32 v{TMP}, 7, v1
""")
    o(f"""
s_cmp_ge_u32 s{sWAVE}, 4
s_cbranch_scc1 F_np1
buffer_load_dwordx2 {vr(TMP+1,2)}, v{TMP}, s[32:35], s{sOC} offen sc1
F_np1:
""")
    st("u")
    o(f"""
s_cmp_ge_u32 s{sWAVE}, 4
s_cbranch_scc1 F_npp
s_mov_b32 s{sT1}, 0
s_waitcnt vmcnt(0)
F_plp:
v_cmpx_ne_u64 vcc, s[100:101], {vr(TMP+1,2)}
s_add_u32 s{sT1}, s{sT1}, 1
s_nop 3
s_cbranch_execz F_pdp
s_cmp_ge_u32 s{sT1}, 0x10000
s_cbranch_scc1 F_pdp
{next((f"s_sleep {x[3:]}" for x in OPT if x.startswith("psl")), "")}
buffer_load_dwordx2 {vr(TMP+1,2)}, v{TMP}, s[32:35], s{sOC} offen sc1
s_waitcnt vmcnt(0)
s_branch F_plp
F_pdp:
s_mov_b64 exec, -1
""")
    o(f"""
F_npp:
""")
    wl((6, 7))
    o(f"""
s_mov_b32 s{sT0}, {WS_OVFC}
buffer_load_dwordx2 {vr(VOVF,2)}, v{VC}, s[32:35], s{sT0} offen sc1
s_waitcnt lgkmcnt(0)
s_barrier
L_pr:
""")
    st("b3")
    zero_cnt(o)
    prime(o)
    o(f"""
s_cmp_lg_u32 s{sRND}, 0
s_cbranch_scc1 L_go
s_call_b64 s[{sRET}:{sRET+1}], L_ugemm
L_go:
""")
    st("go")
    stamp(o, 5)
    o(f"""
s_mov_b64 vcc, 0
s_mov_b32 s{sK}, {KMAX}
s_add_u32 s{sRND}, s{sRND}, 1
s_cmp_ge_u32 s{sP}, s{sP1}
s_cbranch_scc1 L_loopdone
v_cmp_eq_u32 s[{sM}:{sM+1}], s{sP}, v{VEND}
s_sub_u32 s{sIT}, s{sP1}, s{sP}
s_add_u32 s{sIT}, s{sIT}, {R-1}
s_mul_i32 s{sIT}, s{sIT}, 171
s_lshr_b32 s{sIT}, s{sIT}, 10
s_cmp_eq_u32 s{sP}, 0
s_cselect_b32 s{sT2}, 1, 0
s_cmp_lg_u64 s[{sM}:{sM+1}], 0
s_cselect_b32 s{sT2}, 1, s{sT2}
s_xor_b32 s{sHEAD}, s{sT2}, 1
s_call_b64 s[{sRET}:{sRET+1}], L_newnode
s_setprio 3
s_waitcnt vmcnt({2*(R-1)}) lgkmcnt(0)
v_mfma_f32_16x16x32_bf16 {vr(T0,4)}, {vr(A0,4)}, {vr(RING,4)}, {vr(Q,4)}
s_nop 5
L_top:
""")
    for k in range(R):
        B = RING + 4*k
        B1 = RING + 4*((k+1) % R)
        ex, pk = valu_block(TT[k & 1])
        o(f"""
s_waitcnt vmcnt({2*(R-2)}) lgkmcnt(0)
v_mfma_f32_16x16x32_bf16 {vr(TT[(k+1)&1],4)}, {vr(AA[(k+1)&1],4)}, {vr(B1,4)}, {vr(Q,4)}
{ex}
buffer_load_dword v{B}, v{IX}, s[16:19], 0 offen sc1
buffer_load_dword v{B+1}, v{IX}, s[16:19], 0 offen offset:256 sc1
ds_read_b32 v{IX}, v{VI} offset:{4*(k+R+1)}
ds_read2_b32 {vr(AA[k&1]+2,2)}, v{VE} offset0:{4*(k+2)} offset1:{4*(k+2)+2}
{pk}
s_sub_u32 s{sREM}, s{sREM}, 1
s_cbranch_scc1 L_call{k}
L_next{k}:
""")
    o(f"""
v_add_u32 v{VI}, {4*R}, v{VI}
v_add_u32 v{VE}, {16*R}, v{VE}
s_sub_u32 s{sIT}, s{sIT}, 1
s_cmp_ge_u32 s{sIT}, {PRIO[0]}
s_cbranch_scc1 L_top
s_setprio 2
s_cmp_ge_u32 s{sIT}, {PRIO[1]}
s_cbranch_scc1 L_top
s_setprio 1
s_cmp_ge_u32 s{sIT}, {PRIO[2]}
s_cbranch_scc1 L_top
s_setprio 0
{"" if "overrun" in OPT else f"v_mov_b32 v{VI}, {L_CNT}"}
s_branch L_top
""")
    for k in range(R):
        B1 = RING + 4*((k+1) % R)
        o(f"""
L_call{k}:
s_call_b64 s[{sRET}:{sRET+1}], L_flush
s_cbranch_scc0 L_special
s_waitcnt lgkmcnt(0)
v_mfma_f32_16x16x32_bf16 {vr(TT[(k+1)&1],4)}, {vr(AA[(k+1)&1],4)}, {vr(B1,4)}, {vr(Q,4)}
s_nop 4
s_branch L_next{k}
""")
    o(f"""
L_flush:
v_rcp_f32 v{E}, v{D}
v_rcp_f32 v{E+1}, v{D+1}
v_rcp_f32 v{E+2}, v{D+2}
v_rcp_f32 v{E+3}, v{D+3}
s_mov_b32 s{sP}, s{sSEGE}
s_cbranch_vccnz L_nochk
v_pk_fma_f32 {vr(CK,2)}, {vr(NN,2)}, 0, {vr(D,2)}
v_pk_fma_f32 {vr(CK+2,2)}, {vr(NN+2,2)}, 0, {vr(D+2,2)}
v_pk_add_f32 {vr(CK,2)}, {vr(CK,2)}, {vr(CK+2,2)}
v_add_f32 v{CK}, v{CK}, v{CK+1}
v_cmp_nle_f32 s[{sM}:{sM+1}], v{CK}, s{sBND}
s_nop 3
s_cmp_eq_u64 s[{sM}:{sM+1}], 0
s_cbranch_scc1 L_nochk
s_mov_b32 s{sP}, s{sSEGS}
s_setpc_b64 s[{sRET}:{sRET+1}]
L_nochk:
v_pk_fma_f32 {vr(AC,2)}, {vr(NN,2)}, {vr(E,2)}, {vr(AC,2)}
v_pk_fma_f32 {vr(AC+2,2)}, {vr(NN+2,2)}, {vr(E+2,2)}, {vr(AC+2,2)}
s_cmp_lg_u32 s{sW1}, 0
s_cbranch_scc1 L_havew
s_mov_b32 s{sW1}, 1
""")
    wloads(o, 1, W)
    o(f"""
L_havew:
s_cmp_eq_u32 s{sP}, s{sNEND}
s_cbranch_scc1 L_fin
s_cmp_lg_u32 s{sP}, s{sP1}
s_cbranch_scc1 L_reinit
s_cmp_lg_u32 s{sHEAD}, 0
s_cbranch_scc1 L_pub
s_mov_b32 s{sT0}, s{sWAVE}
s_mov_b32 s{sT1}, s{sP1}
L_col:
s_add_u32 s{sT0}, s{sT0}, 1
s_lshl_b32 s{sT2}, s{sT0}, 2
s_add_u32 s{sT2}, s{sT2}, {L_HF}
v_mov_b32 v{CK}, s{sT2}
L_poll:
ds_read_b32 v{CK+1}, v{CK}
s_waitcnt lgkmcnt(0)
v_readfirstlane_b32 s{sT2}, v{CK+1}
s_nop 3
s_cmp_eq_u32 s{sT2}, s{sRND}
s_cbranch_scc1 L_got
s_sleep 1
s_branch L_poll
L_got:
s_lshl_b32 s{sT2}, s{sT0}, 10
s_add_u32 s{sT2}, s{sT2}, {L_HB}
v_add_u32 v{CK}, s{sT2}, v{VC}
ds_read2st64_b64 {vr(E,4)}, v{CK} offset0:0 offset1:1
s_add_u32 s{sT1}, s{sT1}, s{sCH}
s_waitcnt lgkmcnt(0)
v_pk_add_f32 {vr(AC,2)}, {vr(AC,2)}, {vr(E,2)}
v_pk_add_f32 {vr(AC+2,2)}, {vr(AC+2,2)}, {vr(E+2,2)}
s_cmp_lt_u32 s{sT1}, s{sNEND}
s_cbranch_scc1 L_col
s_branch L_wr
L_fin:
s_cmp_lg_u32 s{sHEAD}, 0
s_cbranch_scc1 L_pub
L_wr:
v_cvt_pk_bf16_f32 v{E}, v{AC}, v{AC+1}
v_cvt_pk_bf16_f32 v{E+1}, v{AC+2}, v{AC+3}
ds_write2st64_b32 v{VB}, v{E}, v{E+1} offset0:0 offset1:1
L_more:
s_mov_b32 s{sHEAD}, 0
s_cmp_lg_u32 s{sP}, s{sP1}
s_cbranch_scc1 L_newnode
s_setpc_b64 s[{sRET}:{sRET+1}]
L_pub:
s_lshl_b32 s{sT2}, s{sWAVE}, 10
s_add_u32 s{sT2}, s{sT2}, {L_HB}
v_add_u32 v{CK}, s{sT2}, v{VC}
s_lshl_b32 s{sT2}, s{sWAVE}, 2
s_add_u32 s{sT2}, s{sT2}, {L_HF}
v_mov_b32 v{CK+1}, s{sT2}
v_mov_b32 v{CK+2}, s{sRND}
ds_write2st64_b64 v{CK}, {vr(AC,2)}, {vr(AC+2,2)} offset0:0 offset1:1
s_waitcnt lgkmcnt(0)
ds_write_b32 v{CK+1}, v{CK+2}
s_branch L_more
L_old:
s_cmp_lg_u32 s{sHEAD}, 0
s_cbranch_scc1 L_reinit
ds_read2st64_b32 {vr(E,2)}, v{VB} offset0:0 offset1:1
s_waitcnt lgkmcnt(0)
v_lshlrev_b32 v{AC}, 16, v{E}
v_and_b32 v{AC+1}, 0xffff0000, v{E}
v_lshlrev_b32 v{AC+2}, 16, v{E+1}
v_and_b32 v{AC+3}, 0xffff0000, v{E+1}
s_branch L_reinit
L_newnode:
v_cmp_ge_u32 s[{sM}:{sM+1}], s{sP}, v{VEND}
v_mov_b64 {vr(AC,2)}, 0
v_mov_b64 {vr(AC+2,2)}, 0
s_nop 1
s_bcnt1_i32_b64 s{sT0}, s[{sM}:{sM+1}]
s_mul_i32 s{sT1}, s{sT0}, {RS}
v_readlane_b32 s{sNEND}, v{VEND}, s{sT0}
v_add_u32 v{VN}, s{sT1}, v{VC}
ds_read2st64_b64 {vr(Q,4)}, v{VN} offset0:0 offset1:1
s_and_b32 s{sT1}, s{sT0}, 15
s_lshl_b32 s{sT1}, s{sT1}, 4
s_lshl_b32 s{sT0}, s{sT0}, 9
s_or_b32 s{sT0}, s{sT0}, s{sT1}
s_add_u32 s{sT0}, s{sT0}, {L_AGB}
v_xor_b32 v{VB}, s{sT0}, v{LO}
s_cmp_lg_u32 s{sRND}, 1
s_cbranch_scc1 L_old
L_reinit:
v_mov_b64 {vr(NN,2)}, 0
v_mov_b64 {vr(NN+2,2)}, 0
v_mov_b64 {vr(D,2)}, s[{sONE}:{sONE+1}]
v_mov_b64 {vr(D+2,2)}, s[{sONE}:{sONE+1}]
s_mov_b32 s{sSEGS}, s{sP}
s_add_u32 s{sSEGE}, s{sP}, s{sK}
s_min_u32 s{sSEGE}, s{sSEGE}, s{sNEND}
s_min_u32 s{sSEGE}, s{sSEGE}, s{sP1}
s_sub_u32 s{sREM}, s{sSEGE}, s{sP}
s_sub_u32 s{sREM}, s{sREM}, 1
s_cmp_eq_u32 s{sP}, s{sP}
s_setpc_b64 s[{sRET}:{sRET+1}]
L_special:
s_cmp_eq_u32 s{sP}, s{sP1}
s_cbranch_scc1 L_loopdone
s_mov_b64 vcc, -1
s_mov_b32 s{sK}, 1
s_waitcnt vmcnt(0) lgkmcnt(0)
s_call_b64 s[{sRET}:{sRET+1}], L_reinit
L_slow:
s_lshl_b32 s{sT0}, s{sP}, 2
s_add_u32 s{sT0}, s{sT0}, {L_IDX}
v_mov_b32 v{VI}, s{sT0}
s_lshl_b32 s{sT0}, s{sP}, 4
v_add_u32 v{VE}, s{sT0}, v{VEL}
ds_read_b32 v{IX}, v{VI}
ds_read2_b32 {vr(A0+2,2)}, v{VE} offset0:0 offset1:2
s_waitcnt lgkmcnt(0)
buffer_load_dword v{RING}, v{IX}, s[16:19], 0 offen sc1
buffer_load_dword v{RING+1}, v{IX}, s[16:19], 0 offen offset:256 sc1
s_waitcnt vmcnt(0)
v_mfma_f32_16x16x32_bf16 {vr(T0,4)}, {vr(A0,4)}, {vr(RING,4)}, {vr(Q,4)}
s_nop 7
v_min_f32 v{T0}, 0x42fc0000, v{T0}
v_min_f32 v{T0+1}, 0x42fc0000, v{T0+1}
v_min_f32 v{T0+2}, 0x42fc0000, v{T0+2}
v_min_f32 v{T0+3}, 0x42fc0000, v{T0+3}
{valu_block(T0)[0]}
{valu_block(T0)[1]}
s_call_b64 s[{sRET}:{sRET+1}], L_flush
s_cbranch_scc1 L_slow
L_loopdone:
""")
    st("le")
    if len(STEPS) < 5: stamp(o, 6)
    o(f"""
s_setprio 0
s_cmp_lg_u32 s{sW1}, 0
s_cbranch_scc1 L_ld2
s_mov_b32 s{sW1}, 1
""")
    wloads(o, 1, W)
    o(f"""
L_ld2:
s_cmp_lg_u32 s{sRND}, 1
s_cbranch_scc1 L_rn0
s_mov_b32 s{sOB}, 0
s_mov_b32 s{sT0}, {WS_OVFC}
L_ov:
s_waitcnt vmcnt(0)
v_cmp_ne_u32 vcc, s100, v{VOVF+1}
v_cmp_ne_u32 s[{sOM}:{sOM+1}], 0, v{VOVF}
s_add_u32 s{sOB}, s{sOB}, 1
s_cmp_ge_u32 s{sOB}, 0x10000
s_cbranch_scc1 L_ovd
s_nop 0
s_cbranch_vccz L_ovd
buffer_load_dwordx2 {vr(VOVF,2)}, v{VC}, s[32:35], s{sT0} offen sc1
s_branch L_ov
L_ovd:
s_mov_b32 s{sOB}, 0
L_rn0:
v_and_b32 v{TMP}, 15, v1
v_xor_b32 v{TMP+1}, v{TMP}, v3
v_lshlrev_b32 v{TMP+1}, 4, v{TMP+1}
v_lshl_add_u32 v{TMP+1}, v{TMP}, 9, v{TMP+1}
s_waitcnt vmcnt(0)
s_cmp_eq_u64 s[{sOM}:{sOM+1}], 0
s_cbranch_scc0 L_round
""")
    o(f"v_add_u32 v4, {L_AGB}, v{TMP+1}")
    for ks in range(1, 8):
        o(f"v_xor_b32 v{4+ks}, {64*ks}, v4")
    o(f"""
v_add_u32 v{TMP+2}, s{sN0}, v{TMP}
v_lshlrev_b32 v{TMP+2}, 9, v{TMP+2}
v_lshl_add_u32 v{TMP+2}, v3, 3, v{TMP+2}
s_lshl_b32 s{sT0}, s{sWAVE}, 5
s_add_u32 s{sT1}, s{sT0}, 8192
s_add_u32 s{sT2}, s{sT0}, 16384
s_sub_u32 s{sCNT}, s{sCNT}, 32
v_cmp_gt_u32 s[{sM}:{sM+1}], s{sCNT}, v{TMP}
v_mov_b32 v12, s{sSC}
""")
    if "ostage" in OPT:
        o(f"""
v_lshrrev_b32 v13, 1, v3
s_lshl_b32 s{sT1}, s{sWAVE}, 1
v_or_b32 v13, s{sT1}, v13
v_xor_b32 v13, v13, v{TMP}
v_lshlrev_b32 v13, 4, v13
v_lshl_add_u32 v13, v{TMP}, 9, v13
v_and_b32 v14, 1, v3
v_lshl_add_u32 v13, v14, 3, v13
v_lshrrev_b32 v14, 5, v0
v_cmp_gt_u32 vcc, s{sCNT}, v14
v_and_b32 v14, 15, v14
v_lshlrev_b32 v14, 4, v14
v_xor_b32 v14, v14, v2
v_add_u32 v15, 0x4000, v2
v_mov_b32 v16, 0x7ffffff0
s_lshl_b32 s{sT0}, s{sN0}, 9
v_cndmask_b32 v15, v16, v15, vcc
""")
    o("s_waitcnt lgkmcnt(0)\ns_barrier")
    st("fb")
    OSF = "sc1" if "o_sc1" in OPT else "nt" if "o_nt" in OPT else "sc1 nt" if "o_sc1nt" in OPT else ""
    FB = [T0, T1, E, NN]
    def rd(i):
        o(f"ds_read_b128 {vr(FB[i % 4],4)}, v{4 + (i & 7)} offset:{(i >> 3)*8192}")
    def silu(rt):
        a, t = UA + 4*rt, D
        l = [f"v_exp_f32 v{t+i}, v{a+i}" for i in range(4)]
        l += [f"v_fma_f32 v{t+i}, v{t+i}, v12, v12" for i in range(4)]
        l += [f"v_rcp_f32 v{t+i}, v{t+i}" for i in range(4)]
        l += [f"v_mul_f32 v{a+i}, v{a+i}, v{t+i}" for i in range(4)]
        l += [f"v_cvt_pk_bf16_f32 v{a}, v{a}, v{a+1}", f"v_cvt_pk_bf16_f32 v{a+1}, v{a+2}, v{a+3}"]
        if "ostage" in OPT:
            l.append(f"ds_write_b64 v13, {vr(a,2)} offset:{rt*8192}")
            return l
        if rt == 2:
            l.append(f"s_mov_b64 exec, s[{sM}:{sM+1}]")
        l.append(f"buffer_store_dwordx2 {vr(a,2)}, v{TMP+2}, s[40:43], s{[sT0,sT1,sT2][rt]} offen {OSF}")
        return l
    for i in range(3):
        rd(i)
    pend = []
    for i in range(24):
        rt, ks = i >> 3, i & 7
        if i + 3 < 24:
            rd(i + 3)
        o(f"s_waitcnt lgkmcnt({min(3, 23 - i)})")
        o(f"v_mfma_f32_16x16x32_bf16 {vr(UA+4*rt,4)}, {vr(W+4*ks,4)}, {vr(FB[i % 4],4)}, {vr(UA+4*rt,4)}")
        if ks == 2 and rt > 0:
            pend = silu(rt - 1)
        n = 4 if ks < 7 else len(pend)
        o("\n".join(pend[:n]))
        pend = pend[n:]
    o("s_nop 7")
    st("fg")
    o("\n".join(silu(2)))
    if "ostage" in OPT:
        o(f"""
s_waitcnt lgkmcnt(0)
s_barrier
ds_read_b128 v[16:19], v14
ds_read_b128 v[20:23], v14 offset:16384
s_waitcnt lgkmcnt(1)
buffer_store_dwordx4 v[16:19], v2, s[40:43], s{sT0} offen {OSF}
s_cmp_ge_u32 s{sWAVE}, 4
s_cbranch_scc1 L_os
s_waitcnt lgkmcnt(0)
buffer_store_dwordx4 v[20:23], v15, s[40:43], s{sT0} offen {OSF}
L_os:
""")
    st("fs")
    if STAMP:
        o(f"""
s_waitcnt vmcnt(0)
s_memrealtime s[94:95]
s_mov_b64 exec, 1
s_lshl_b32 s26, s2, 4
s_add_u32 s26, s26, s{sWAVE}
s_lshl_b32 s26, s26, 5
s_add_u32 s26, s26, {WS_STAMP + 0x100000}
s_mov_b32 s34, 0x1000000
v_mov_b32 v0, 0
s_waitcnt lgkmcnt(0)
""")
        xd = next((x for x in OPT if x.startswith("xdel")), None)
        if xd:
            k = int(xd[4:])
            sel = "s_cmp_lt_u32 s2, 64\ns_cselect_b32 s26, 0, s26" if "xrest" in OPT else ""
            o(f"""
s_sub_u32 s26, s{80+2*k}, s80
{sel}
s_mul_i32 s26, s26, 10
s_add_u32 s26, s26, s94
X_spin:
s_memrealtime s[92:93]
s_waitcnt lgkmcnt(0)
s_sub_u32 s27, s92, s26
s_cmp_lt_i32 s27, 0
s_cbranch_scc1 X_spin
s_endpgm
""")
        for i in range(8):
            o(f"v_mov_b32 v{4+i}, s{80+2*i}")
        if "dbgst" in OPT:
            o("v_not_b32 v12, v4\nv_not_b32 v13, v9\nv_not_b32 v14, v5\nv_not_b32 v15, v10")
            for i in range(12):
                o(f"buffer_atomic_umax v{4+i}, v0, s[96:99], 0 offen offset:{8+4*i} sc1")
        else:
            o("buffer_store_dwordx4 v[4:7], v0, s[32:35], s26 offen\nbuffer_store_dwordx4 v[8:11], v0, s[32:35], s26 offen offset:16")
    o(f"""
L_end:
s_endpgm
L_round:
s_waitcnt lgkmcnt(0)
s_barrier
s_ff1_i32_b64 s{sT0}, s[{sOM}:{sOM+1}]
s_mul_i32 s{sT1}, s{sT0}, {CHUNK*8}
v_readlane_b32 s{sOC}, v{VOVF}, s{sT0}
s_lshl_b32 s{sT2}, s{sOB}, 3
s_add_u32 s{sT1}, s{sT1}, s{sT2}
s_add_u32 s{sT1}, s{sT1}, {WS_OVF}
buffer_load_dwordx4 {vr(REC,4)}, v2, s[32:35], s{sT1} offen sc1
v_lshlrev_b32 v{TMP}, 1, v0
v_add_u32 v{TMP}, s{sOB}, v{TMP}
v_add_u32 v{TMP+1}, 1, v{TMP}
v_cmp_gt_u32 s[{sV0}:{sV0+1}], s{sOC}, v{TMP}
v_cmp_gt_u32 s[{sV1}:{sV1+1}], s{sOC}, v{TMP+1}
s_add_u32 s{sOB}, s{sOB}, 2048
s_cmp_lt_u32 s{sOB}, s{sOC}
s_cbranch_scc1 L_rn2
s_bitset0_b64 s[{sOM}:{sOM+1}], s{sT0}
s_mov_b32 s{sOB}, 0
L_rn2:
s_waitcnt vmcnt(0)
v_lshrrev_b32 v{TMP}, 16, v{REC+1}
v_lshrrev_b32 v{TMP+1}, 16, v{REC+3}
v_cmp_eq_u32 s[{sM}:{sM+1}], s2, v{TMP}
s_nop 3
s_and_b64 s[{sV0}:{sV0+1}], s[{sV0}:{sV0+1}], s[{sM}:{sM+1}]
v_cmp_eq_u32 s[{sM}:{sM+1}], s2, v{TMP+1}
s_nop 3
s_and_b64 s[{sV1}:{sV1+1}], s[{sV1}:{sV1+1}], s[{sM}:{sM+1}]
""")
    sort_rank(o)
    o("s_waitcnt lgkmcnt(0)\ns_barrier")
    sort_scatter(o)
    o("s_waitcnt lgkmcnt(0)\ns_barrier")
    o("s_branch L_pr\nL_ugemm:")
    XB = [QA, QA + 4, QA + 8, W3 - 2]
    seq = [(ks, rt) for ks in range(8) for rt in range(3)]
    def urd(i):
        ks, rt = seq[i]
        if rt == 0 and ks:
            o(f"v_xor_b32 v{TMP+6}, {64*ks}, v{VXA}")
        o(f"ds_read_b128 {vr(XB[i % 4],4)}, v{TMP+6 if ks else VXA} offset:{rt*8192}")
    for i in range(3):
        urd(i)
    for i, (ks, rt) in enumerate(seq):
        if i + 3 < 24:
            urd(i + 3)
        if rt == 0:
            o(f"s_waitcnt vmcnt({7-ks+1+2*R})")
        o(f"s_waitcnt lgkmcnt({min(3, 23 - i)})")
        c = "0" if ks == 0 else vr(UA+4*rt, 4)
        o(f"v_mfma_f32_16x16x32_bf16 {vr(UA+4*rt,4)}, {vr(W+4*ks,4)}, {vr(XB[i % 4],4)}, {c}")
    o("s_nop 5")
    for h in range(6):
        o(f"v_pk_mul_f32 {vr(UA+2*h,2)}, {vr(UA+2*h,2)}, s[{sSC}:{sSC+1}]")
    if "w2early" in OPT:
        o(f"s_mov_b32 s{sW1}, 1")
        wloads(o, 1, W)
    o(f"s_setpc_b64 s[{sRET}:{sRET+1}]")
    bin_overflow(o)

def main(path):
    o = Asm()
    gen(o)
    hdr = f"""; MPNN edge-MLP + segment sum + node update in one launch (256 co-resident workgroups, one per CU).
; Phase B (after tagged-flag hand-off): per-edge SiLU accumulation over gathered P rows, update GEMM + SiLU.
; @launch grid=(256,1,1) block=(1024,1,1) lds={L_ALLOC}
.amdgcn_target "amdgcn-amd-amdhsa--gfx950"
.text
"""
    desc = f""".section .rodata,"a"
.p2align 6
.amdhsa_kernel {KNAME}
  .amdhsa_next_free_vgpr {NV}
  .amdhsa_next_free_sgpr 102
  .amdhsa_accum_offset {(NV+3)//4*4}
  .amdhsa_group_segment_fixed_size 0
  .amdhsa_kernarg_size 72
  .amdhsa_user_sgpr_count 2
  .amdhsa_user_sgpr_kernarg_segment_ptr 1
  .amdhsa_system_sgpr_workgroup_id_x 1
.end_amdhsa_kernel
"""
    open(path, "w").write(hdr + o.text() + desc)

if __name__ == "__main__":
    if "--stamp" in sys.argv:
        sys.argv.remove("--stamp")
        STAMP = True
    for a in list(sys.argv):
        if a.startswith("--steps="):
            sys.argv.remove(a)
            STEPS = a[8:].split(",")
        if a.startswith("--poll="):
            sys.argv.remove(a)
            STEP_FLAG = int(a[7:])
        if a.startswith("--prio="):
            sys.argv.remove(a)
            PRIO = [int(x) for x in a[7:].split(",")]
        if a.startswith("--kmax="):
            sys.argv.remove(a)
            KMAX = int(a[7:])
        if a.startswith("--opt="):
            sys.argv.remove(a)
            OPT |= set(a[6:].split(","))
    main(sys.argv[1] if len(sys.argv) > 1 else "gather_scatter__mpnn_edge_mlp__graph.s")
```

```python
import sys

N = 10000
WS_WPACK = 0x500000
WS_OVFC = 0x560000
WS_OVF = 0x570000
WS_FLAG = 0x6E0000
WS_CELL = 0x700000
WS_END = 0xB00000
WS_STAMP = 0xC00000
CHUNK = 2500
CAP = 28
NEGL2E = 0xBFB8AA3B
NEGLN2 = 0xBF317218
KNAME = "gather_scatter__mpnn_edge_mlp__graph_kernel"
STAMP = False
STEP_FLAG = 14
STEPS = ["s-1", "pst", "drain", "cell"]
OPT = {"ostage", "o_sc1", "nont"}

class Asm:
    def __init__(self):
        self.l = []
    def __call__(self, s):
        for line in s.strip("\n").split("\n"):
            line = line.strip()
            if line:
                self.l.append(line if line.endswith(":") else "    " + line)
    def text(self):
        l = self.l
        def sub(a_lab, b_lab, pref):
            a = l.index(a_lab); b = l.index(b_lab)
            return l[:a] + [("    s_nop 0" if any(x.strip().startswith(p) for p in pref) else x) for x in l[a:b]] + l[b:]
        if "gplain" in OPT:
            l = [x.replace(" sc1", "") if "s[16:19], 0 offen" in x else x for x in l]
        if "gnt" in OPT:
            l = [x + " nt" if "s[16:19], 0 offen" in x else x for x in l]
        if "noprio" in OPT:
            l = [x for x in l if "s_setprio" not in x]
        if "noloop_ld" in OPT: l = sub("L_top:", "L_call0:", ["buffer_load"])
        return "\n".join(l) + "\n"

def vr(a, n):
    return f"v[{a}:{a+n-1}]" if n > 1 else f"v{a}"

def srd(o, d, lo, hi, size):
    o(f"s_mov_b32 s{d}, s{lo}\ns_mov_b32 s{d+1}, s{hi}\ns_mov_b32 s{d+2}, {size}\ns_mov_b32 s{d+3}, 0x20000")

def stamp(o, i):
    if STAMP:
        if "clk2" in OPT:
            if i in (1, 2):
                o(f"s_memrealtime s[{80+2*i}:{81+2*i}]\ns_memtime s[{84+2*i}:{85+2*i}]\ns_waitcnt lgkmcnt(0)")
            elif i not in (3, 4):
                o(f"s_memrealtime s[{80+2*i}:{81+2*i}]\ns_waitcnt lgkmcnt(0)")
            return
        o(f"s_memrealtime s[{80+2*i}:{81+2*i}]\ns_waitcnt lgkmcnt(0)")

R = 6
KMAX = 24
PRIO = [4, 3, 2]
RS = 1040
L_QS = 0
L_AGB = (48 * RS + 511) // 512 * 512
L_HB = L_AGB + 48 * 512
L_IDX = L_HB + 16 * 1024
L_ET = L_IDX + 2064 * 4
L_CNT = (L_ET + 2052 * 16 + 255) // 256 * 256
L_HF = L_CNT + 256
L_XS = (L_HF + 256 + 511) // 512 * 512
L_END = L_XS + 48 * 512
L_IMG = 65536
L_BCNT = 131072
L_PST = 0
L_PK = 65536
L_ALLOC = L_END
assert L_BCNT + 1100 <= L_CNT and L_END <= 163840
RING = 4
A0, A1, Q, T0, T1, E, NN, D, AC, UA = 28, 32, 36, 40, 44, 48, 52, 56, 60, 64
VOVF, VB, IX, AD, LO, VI, VE, VN, VC, VEND, VEL = 76, 78, 79, 80, 81, 82, 83, 84, 85, 86, 126
TMP = 87
W = 94
NV = 127
PA, QA, VXA, VWA, VWS, VTG, W3, TG0, ZR = UA, 48, AD, 36, 38, 76, 62, 60, 44
XFB, WFB = [W, W + 16], [W + 12, W + 28]
VWB = VE
CK0, CK1, CK2 = 34, 35, 37
TAG = 92
sWAVE, sN0, sCNT, sHEAD, sIT, sW1, sCH = 3, 4, 5, 6, 7, 26, 27
sP, sP1, sREM, sSEGE, sSEGS, sNEND, sK, sTOT, sRND, sOB, sOC, sOFF = range(48, 60)
sV0, sV1, sOM, sRET, sSO, sM, sONE, sSC = 60, 62, 64, 66, 68, 70, 72, 74
sM0, sBORN = 69, 65
sT0, sT1, sT2, sBND = 76, 77, 78, 79
sLN2 = 44
REC, RK0, RK1 = 40, 4, 5
CK = TMP + 1

def valu_block(T):
    ex = "\n".join(f"v_exp_f32 v{E+i}, v{T+i}" for i in range(4))
    pk = f"""
v_pk_fma_f32 {vr(NN,2)}, {vr(NN,2)}, {vr(E,2)}, {vr(NN,2)}
v_pk_fma_f32 {vr(NN+2,2)}, {vr(NN+2,2)}, {vr(E+2,2)}, {vr(NN+2,2)}
v_pk_fma_f32 {vr(NN,2)}, {vr(T,2)}, {vr(D,2)}, {vr(NN,2)}
v_pk_fma_f32 {vr(NN+2,2)}, {vr(T+2,2)}, {vr(D+2,2)}, {vr(NN+2,2)}
v_pk_fma_f32 {vr(D,2)}, {vr(D,2)}, {vr(E,2)}, {vr(D,2)}
v_pk_fma_f32 {vr(D+2,2)}, {vr(D+2,2)}, {vr(E+2,2)}, {vr(D+2,2)}
"""
    return ex, pk

def poll(o, tag, soff, count):
    o(f"""
v_lshlrev_b32 v{TMP}, 7, v1
s_mov_b32 s{sT1}, 0
s_mov_b64 exec, {"-1" if count == 64 else hex((1 << count) - 1)}
F_pl{tag}:
buffer_load_dwordx2 {vr(TMP+1,2)}, v{TMP}, s[32:35], {soff} offen sc1
s_add_u32 s{sT1}, s{sT1}, 1
s_waitcnt vmcnt(0)
v_cmpx_ne_u64 vcc, s[100:101], {vr(TMP+1,2)}
s_nop 4
s_cbranch_execz F_pd{tag}
s_sleep 2
s_cmp_lt_u32 s{sT1}, 0x10000
s_cbranch_scc1 F_pl{tag}
F_pd{tag}:
s_mov_b64 exec, -1
""")

def get_tag(o, tag):
    o(f"""
s_mov_b32 s{sT1}, 0
F_tg{tag}:
v_readfirstlane_b32 s100, v{TAG}
v_readfirstlane_b32 s101, v{TAG+1}
s_add_u32 s{sT1}, s{sT1}, 1
s_cmp_ge_u32 s{sT1}, 0x10000
s_cbranch_scc1 F_th{tag}
s_cmp_lt_u32 s{sT1}, 0x100
s_cselect_b32 s{sT0}, s{sBORN}, s100
s_sub_u32 s{sT0}, s100, s{sT0}
s_cmp_lg_u32 s100, 0
s_cselect_b32 s{sT0}, s{sT0}, -1
s_cmp_ge_i32 s{sT0}, 0
s_cbranch_scc1 F_th{tag}
buffer_load_dwordx2 {vr(TAG,2)}, v{VTG}, s[96:99], 0 offen sc1
s_waitcnt vmcnt(0)
s_branch F_tg{tag}
F_th{tag}:
""")

def put_flag(o, soff):
    o(f"""
v_mov_b32 v{TMP+1}, s100
v_mov_b32 v{TMP+2}, s101
s_mov_b64 exec, 1
buffer_store_dwordx2 {vr(TMP+1,2)}, v{VTG}, s[32:35], {soff} offen sc1
s_mov_b64 exec, -1
""")

def sort_rank(o):
    o(f"""
s_lshl_b32 s{sT0}, s{sN0}, 2
s_sub_u32 s{sT0}, {L_CNT}, s{sT0}
v_and_b32 v{TMP}, 0x3fff, v{REC}
v_and_b32 v{TMP+1}, 0x3fff, v{REC+2}
v_mov_b32 v{TMP+3}, 1
v_lshl_add_u32 v{TMP}, v{TMP}, 2, s{sT0}
v_lshl_add_u32 v{TMP+1}, v{TMP+1}, 2, s{sT0}
s_mov_b64 exec, s[{sV0}:{sV0+1}]
ds_add_rtn_u32 v{RK0}, v{TMP}, v{TMP+3}
s_mov_b64 exec, s[{sV1}:{sV1+1}]
ds_add_rtn_u32 v{RK1}, v{TMP+1}, v{TMP+3}
s_mov_b64 exec, -1
v_add_u32 v{TMP+4}, {L_CNT}, v{LO}
v_lshrrev_b32 v{REC}, 5, v{REC}
v_lshrrev_b32 v{REC+2}, 5, v{REC+2}
""")

def sort_scatter(o):
    o(f"""
ds_read_b32 v{TMP+2}, v{TMP+4}
v_and_b32 v{REC}, 0x7ffe00, v{REC}
v_and_b32 v{REC+2}, 0x7ffe00, v{REC+2}
s_mov_b32 s{sT0}, {L_IDX}
s_mov_b32 s{sT1}, {L_ET}
s_waitcnt lgkmcnt(0)
v_add_u32_dpp v{VEND}, v{TMP+2}, v{TMP+2} row_shr:1 row_mask:0xf bank_mask:0xf bound_ctrl:0
s_nop 1
v_add_u32_dpp v{VEND}, v{VEND}, v{VEND} row_shr:2 row_mask:0xf bank_mask:0xf bound_ctrl:0
s_nop 1
v_add_u32_dpp v{VEND}, v{VEND}, v{VEND} row_shr:4 row_mask:0xf bank_mask:0xf bound_ctrl:0
s_nop 1
v_add_u32_dpp v{VEND}, v{VEND}, v{VEND} row_shr:8 row_mask:0xf bank_mask:0xf bound_ctrl:0
s_nop 1
v_add_u32_dpp v{VEND}, v{VEND}, v{VEND} row_bcast:15 row_mask:0xa bank_mask:0xf
s_nop 1
v_add_u32_dpp v{VEND}, v{VEND}, v{VEND} row_bcast:31 row_mask:0xc bank_mask:0xf
v_sub_u32 v{TMP+3}, v{VEND}, v{TMP+2}
v_readlane_b32 s{sTOT}, v{VEND}, 63
ds_bpermute_b32 v{TMP}, v{TMP}, v{TMP+3}
ds_bpermute_b32 v{TMP+1}, v{TMP+1}, v{TMP+3}
s_nop 1
s_add_u32 s{sCH}, s{sTOT}, 15
s_lshr_b32 s{sCH}, s{sCH}, 4
s_mul_i32 s{sP}, s{sCH}, s{sWAVE}
s_add_u32 s{sP1}, s{sP}, s{sCH}
s_min_u32 s{sP}, s{sP}, s{sTOT}
s_min_u32 s{sP1}, s{sP1}, s{sTOT}
s_waitcnt lgkmcnt(0)
v_add_u32 v{TMP}, v{TMP}, v{RK0}
v_add_u32 v{TMP+1}, v{TMP+1}, v{RK1}
v_lshl_add_u32 v{TMP+2}, v{TMP}, 2, s{sT0}
v_lshl_add_u32 v{TMP+3}, v{TMP+1}, 2, s{sT0}
v_lshl_add_u32 v{TMP}, v{TMP}, 4, s{sT1}
v_lshl_add_u32 v{TMP+1}, v{TMP+1}, 4, s{sT1}
s_mov_b64 exec, s[{sV0}:{sV0+1}]
ds_write_b32 v{TMP+2}, v{REC}
ds_write_b16 v{TMP}, v{REC+1} offset:8
ds_write_b16 v{TMP}, v{REC+1} offset:14
s_mov_b64 exec, s[{sV1}:{sV1+1}]
ds_write_b32 v{TMP+3}, v{REC+2}
ds_write_b16 v{TMP+1}, v{REC+3} offset:8
ds_write_b16 v{TMP+1}, v{REC+3} offset:14
s_mov_b64 exec, -1
""")

def zero_cnt(o):
    o(f"v_mov_b32 v{TMP}, 0\nds_write_b32 v{TMP+4}, v{TMP}")

def prime(o):
    PT = T0
    o(f"""
s_lshl_b32 s{sT0}, s{sP}, 2
s_add_u32 s{sT0}, s{sT0}, {L_IDX}
v_mov_b32 v{VI}, s{sT0}
s_lshl_b32 s{sT0}, s{sP}, 4
v_add_u32 v{VE}, s{sT0}, v{VEL}
""")
    for k in range(0, R, 2):
        o(f"ds_read2_b32 {vr(PT+k,2)}, v{VI} offset0:{k} offset1:{k+1}")
    o(f"""
ds_read_b32 v{IX}, v{VI} offset:{4*R}
ds_read2_b32 {vr(A0+2,2)}, v{VE} offset0:0 offset1:2
ds_read2_b32 {vr(A1+2,2)}, v{VE} offset0:4 offset1:6
s_waitcnt lgkmcnt(0)
""")
    for k in range(R):
        B = RING + 4*k
        o(f"buffer_load_dword v{B}, v{PT+k}, s[16:19], 0 offen sc1")
        o(f"buffer_load_dword v{B+1}, v{PT+k}, s[16:19], 0 offen offset:256 sc1")

def wloads(o, mat, wreg, kss=range(8), sa=sT0, sb=sT1, va=TMP+5, setup=True):
    if not setup:
        for ks in kss:
            o(f"buffer_load_dwordx4 {vr(wreg+4*ks,4)}, v{va}, s[32:35], s{sa if ks < 4 else sb} offen offset:{(ks%4)*1024} sc1")
        return
    o(f"""
s_lshl_b32 s{sT0}, s{sWAVE}, 13
s_add_u32 s{sT0}, s{sT0}, {WS_WPACK + mat*131072}
s_add_u32 s{sT1}, s{sT0}, 4096
v_lshlrev_b32 v{TMP+5}, 4, v1
""")
    for ks in range(8):
        o(f"buffer_load_dwordx4 {vr(wreg+4*ks,4)}, v{TMP+5}, s[32:35], s{sT0 if ks < 4 else sT1} offen offset:{(ks%4)*1024} sc1")

DST, SRC, EA, OWN, RK, R0 = 8, 12, 16, 20, 24, 28
EW = [EA, 18, EA + 1, 19]
sBM = 58
def bin_rank(o):
    o(f"v_mov_b32 v{TMP+3}, 1\ns_movk_i32 s57, 256\ns_mov_b64 exec, s[{sBM}:{sBM+1}]")
    for k in range(4):
        o(f"""
v_mul_u32_u24 v{OWN+k}, s56, v{DST+k}
v_lshrrev_b32 v{OWN+k}, 24, v{OWN+k}
v_lshl_add_u32 v{TMP+4}, v{OWN+k}, 2, s60
ds_add_rtn_u32 v{RK+k}, v{TMP+4}, v{TMP+3}
""")
    for k in range(4):
        o(f"""
v_lshl_or_b32 v{R0+k}, v{SRC+k}, 14, v{DST+k}
v_and_b32 v{TMP+1}, 7, v{OWN+k}
v_lshl_add_u32 v{DST+k}, v{OWN+k}, 8, s61
v_lshl_or_b32 v{DST+k}, v{TMP+1}, 4, v{DST+k}
""")
    o(f"""
v_lshrrev_b32 v18, 16, v{EA}
v_lshrrev_b32 v19, 16, v{EA+1}
s_waitcnt lgkmcnt(0)
v_max3_u32 v{TMP}, v{RK}, v{RK+1}, v{RK+2}
v_max_u32 v{TMP}, v{TMP}, v{RK+3}
v_cmp_le_u32 vcc, {CAP}, v{TMP}
""")
    for k in range(4):
        o(f"""
v_mad_u32_u24 v{SRC+k}, v{RK+k}, 37, s57
v_lshrrev_b32 v{SRC+k}, 8, v{SRC+k}
v_add_lshl_u32 v{SRC+k}, v{SRC+k}, v{RK+k}, 3
v_xor_b32 v{DST+k}, v{SRC+k}, v{DST+k}
""")
    o("s_cbranch_vccnz F_ovf")
    for k in range(4):
        o(f"ds_write2_b32 v{DST+k}, v{R0+k}, v{EW[k]} offset0:0 offset1:1")
    o("F_ovfback:\ns_mov_b64 exec, -1")

def bin_overflow(o):
    o(f"F_ovf:\ns_mul_i32 s50, s2, {CHUNK*8}\ns_add_u32 s50, s50, {WS_OVF}\nv_mov_b32 v{TMP}, {L_BCNT+1024}")
    for k in range(4):
        o(f"""
v_cmp_gt_u32 vcc, {CAP}, v{RK+k}
s_and_saveexec_b64 s[62:63], vcc
ds_write2_b32 v{DST+k}, v{R0+k}, v{EW[k]} offset0:0 offset1:1
s_andn2_b64 exec, s[62:63], exec
s_cbranch_execz F_no{k}
ds_add_rtn_u32 v{TMP+4}, v{TMP}, v{TMP+3}
v_mov_b32 v{TMP+1}, v{R0+k}
v_and_b32 v{TMP+2}, 0xffff, v{EW[k]}
v_lshl_or_b32 v{TMP+2}, v{OWN+k}, 16, v{TMP+2}
s_waitcnt lgkmcnt(0)
v_lshlrev_b32 v{TMP+4}, 3, v{TMP+4}
buffer_store_dwordx2 {vr(TMP+1,2)}, v{TMP+4}, s[32:35], s50 offen sc1
s_waitcnt vmcnt(0)
F_no{k}:
s_mov_b64 exec, s[62:63]
""")
    o("s_branch F_ovfback")

def bin_copy(o):
    o(f"""
v_mov_b32 v31, s100
s_waitcnt lgkmcnt(5)
v_cmp_lt_u32 vcc, 14, v28
v_min_u32 v28, {CAP}, v28
v_cmp_lt_u32 s[62:63], 14, v29
v_min_u32 v29, {CAP}, v29
v_cndmask_b32 v24, v43, v41, vcc
v_cndmask_b32 v25, v43, v41, s[62:63]
s_waitcnt lgkmcnt(4)
v_cndmask_b32 v8, v8, v28, s[22:23]
v_cndmask_b32 v9, v9, v31, s[22:23]
buffer_store_dwordx4 v[8:11], v41, s[32:35], s24 offen sc1
s_waitcnt lgkmcnt(3)
v_cndmask_b32 v12, v12, v29, s[22:23]
v_cndmask_b32 v13, v13, v31, s[22:23]
buffer_store_dwordx4 v[12:15], v41, s[32:35], s25 offen sc1
s_waitcnt lgkmcnt(2)
v_cndmask_b32 v17, v17, v31, s[22:23]
buffer_store_dwordx4 v[16:19], v24, s[32:35], s24 offen offset:128 sc1
s_waitcnt lgkmcnt(1)
v_cndmask_b32 v21, v21, v31, s[22:23]
buffer_store_dwordx4 v[20:23], v25, s[32:35], s25 offen offset:128 sc1
s_cmp_lg_u32 s{sWAVE}, 0
s_cbranch_scc1 F_bc1
s_lshl_b32 s50, s2, 3
s_add_u32 s50, s50, {WS_OVFC}
s_mov_b64 exec, 1
s_waitcnt lgkmcnt(0)
buffer_store_dwordx2 v[30:31], v{VTG}, s[32:35], s50 offen sc1
s_mov_b64 exec, -1
F_bc1:
""")

def gen(o):
    XNT = "" if "nont" in OPT else "nt"
    AA = [A0, A1]
    TT = [T0, T1]
    o(f"""
.globl {KNAME}
.p2align 8
.type {KNAME},@function
{KNAME}:
s_cmp_ge_u32 s2, 256
s_cbranch_scc1 L_end
s_load_dwordx2 s[28:29], s[0:1], 0
s_load_dwordx2 s[44:45], s[0:1], 32
s_load_dwordx2 s[36:37], s[0:1], 24
s_load_dwordx2 s[12:13], s[0:1], 16
s_load_dwordx2 s[52:53], s[0:1], 8
s_load_dwordx2 s[40:41], s[0:1], 40
s_load_dwordx2 s[32:33], s[0:1], 64
s_load_dwordx2 s[96:97], s[0:1], 56
s_load_dwordx2 s[20:21], s[0:1], 48
s_memrealtime s[100:101]
""")
    if STAMP: o("s_memrealtime s[80:81]")
    ops = []
    def vm(target):
        return len(ops) - 1 - max(i for i, x in enumerate(ops) if x == target)
    LOC2 = [65536, 81920, 98304, 114688, 32768, 49152, 0, 16384]
    def d1(s, count=True):
        o(f"""
s_add_u32 m0, s{sSO}, {(s & 3) * 16384}
s_add_u32 s{sM0}, s{sSO}, {s*16384}
buffer_load_dwordx4 v{VWS}, s[44:47], s{sM0} offen lds
""")
        if count: ops.append(("d", s))
    def d2(s):
        o(f"""
s_add_u32 m0, s{sSO}, {LOC2[s]}
s_add_u32 s{sM0}, s{sSO}, {131072 + s*16384}
buffer_load_dwordx4 v{VWS}, s[44:47], s{sM0} offen lds
""")
        ops.append(("e", s))
    def dma(p, count=True):
        d1(2*p, count)
        d1(2*p + 1, count)
    o(f"""
v_lshrrev_b32 v2, 6, v0
v_and_b32 v1, 63, v0
s_mul_i32 s{sN0}, s2, 625
v_readfirstlane_b32 s{sWAVE}, v2
v_lshrrev_b32 v4, 5, v1
v_and_b32 v6, 31, v1
s_add_u32 s{sCNT}, s{sN0}, 640
s_add_u32 s{sN0}, s{sN0}, 15
s_lshr_b32 s{sN0}, s{sN0}, 4
s_lshl_b32 s50, s{sWAVE}, 1
v_add_u32 v5, s50, v4
v_lshlrev_b32 v2, 4, v0
v_and_b32 v7, 15, v5
v_xor_b32 v7, v7, v6
v_lshlrev_b32 v7, 4, v7
v_lshl_add_u32 v7, v4, 9, v7
v_lshlrev_b32 v{LO}, 2, v1
v_mov_b32 v{VTG}, 0
s_mov_b32 s30, {N*512}
s_mov_b32 s31, 0x20000
s_mov_b32 s46, {513*512}
s_mov_b32 s47, 0x20000
s_mov_b32 s38, 640000
s_mov_b32 s39, 0x20000
s_mov_b32 s14, 640000
s_mov_b32 s15, 0x20000
s_mov_b32 s54, 320000
s_mov_b32 s55, 0x20000
s_mov_b32 s98, 256
s_mov_b32 s99, 0x20000
s_lshl_b32 s{sSO}, s{sWAVE}, 10
s_lshl_b32 s51, s{sN0}, 9
s_add_u32 s51, s51, s{sSO}
s_add_u32 m0, s{sSO}, {L_XS}
s_cmp_ge_u32 s2, 64
s_cbranch_scc1 F_nobl
s_mul_i32 s49, s2, 10000
s_mul_i32 s50, s2, 5000
v_lshlrev_b32 v{TMP}, 3, v0
s_cmp_ge_u32 s{sWAVE}, 10
s_waitcnt lgkmcnt(0)
s_cbranch_scc1 F_nel
buffer_load_dwordx4 {vr(DST,4)}, v2, s[36:39], s49 offen {XNT}
buffer_load_dwordx4 {vr(SRC,4)}, v2, s[12:15], s49 offen {XNT}
buffer_load_dwordx2 {vr(EA,2)}, v{TMP}, s[52:55], s50 offen {XNT}
s_branch F_ne2
F_nel:
s_sub_u32 s50, s{sWAVE}, 10
s_cmp_ge_u32 s50, 2
s_cbranch_scc1 F_ne2
s_lshr_b32 s49, s2, 3
s_lshl_b32 s49, s49, 13
s_lshl_b32 s50, s50, 12
s_add_u32 s49, s49, s50
v_lshlrev_b32 v{TMP}, 6, v1
buffer_load_dword v77, v{TMP}, s[44:47], s49 offen
F_ne2:
v_lshlrev_b32 v{TMP}, 2, v0
v_add_u32 v{TMP}, {L_BCNT}, v{TMP}
s_cmp_ge_u32 s{sWAVE}, 5
s_cbranch_scc1 F_nbz
ds_write_b32 v{TMP}, v{VTG}
F_nbz:
s_waitcnt lgkmcnt(0)
s_barrier
s_add_u32 m0, s{sSO}, {L_XS}
s_cmp_ge_u32 s{sWAVE}, 4
buffer_load_dwordx4 v7, s[28:31], s51 offen {XNT} lds
s_cbranch_scc1 F_nox2b
s_add_u32 m0, s{sSO}, {L_XS + 16384}
s_add_u32 s50, s51, 16384
buffer_load_dwordx4 v7, s[28:31], s50 offen {XNT} lds
F_nox2b:
s_branch F_nx
F_nobl:
""")
    if "ipf" in OPT:
        o(f"""
s_cmp_lt_u32 s2, 240
s_cbranch_scc1 F_nipf
s_sub_u32 s50, s{sWAVE}, 8
s_cmp_ge_u32 s50, 2
s_cbranch_scc1 F_nipf
s_getpc_b64 s[22:23]
s_lshl_b32 s50, s50, 12
v_lshlrev_b32 v{TMP}, 6, v1
v_add_u32 v{TMP}, s50, v{TMP}
global_load_dword v77, v{TMP}, s[22:23]
F_nipf:
""")
    o(f"""
s_cmp_ge_u32 s{sWAVE}, 4
s_waitcnt lgkmcnt(0)
buffer_load_dwordx4 v7, s[28:31], s51 offen {XNT} lds
s_cbranch_scc1 F_nox2
s_add_u32 m0, s{sSO}, {L_XS + 16384}
s_add_u32 s50, s51, 16384
buffer_load_dwordx4 v7, s[28:31], s50 offen {XNT} lds
s_lshl_b32 s49, s2, 4
s_add_u32 s49, s49, s{sWAVE}
s_cmp_lg_u32 s49, 0xff0
s_cbranch_scc1 F_nox2
s_or_b32 s49, s100, 1
v_mov_b32 v{TMP+1}, s49
v_mov_b32 v{TMP+2}, s101
s_mov_b64 exec, 1
buffer_store_dwordx2 {vr(TMP+1,2)}, v{VTG}, s[96:99], 0 offen sc1
s_mov_b64 exec, -1
F_nox2:
s_sub_u32 s50, s{sWAVE}, 6
s_cmp_ge_u32 s50, 2
s_cbranch_scc1 F_ntc
s_lshr_b32 s49, s2, 3
s_lshl_b32 s49, s49, 13
s_lshl_b32 s50, s50, 12
s_add_u32 s49, s49, s50
v_lshlrev_b32 v7, 6, v1
buffer_load_dword v77, v7, s[44:47], s49 offen
F_ntc:
s_mov_b32 s50, {512*512}
buffer_load_dword v{W3}, v{LO}, s[44:47], s50 offen
buffer_load_dword v{W3+1}, v{LO}, s[44:47], s50 offen offset:256
F_nx:
v_and_b32 v{TMP}, 3, v5
v_bfe_u32 v{TMP+1}, v5, 3, 1
v_lshl_or_b32 v{TMP}, v{TMP+1}, 2, v{TMP}
v_lshlrev_b32 v{TMP}, 1, v{TMP}
v_xor_b32 v{TMP}, v{TMP}, v6
v_lshlrev_b32 v{TMP}, 4, v{TMP}
v_lshl_add_u32 v{VWS}, v4, 9, v{TMP}
s_mov_b32 s42, {512*512}
s_mov_b32 s43, 0x20000
s_mov_b32 s34, {WS_END}
s_mov_b32 s35, 0x20000
s_sub_u32 s{sBORN}, s100, 1500
s_sub_u32 s48, s2, 64
""")
    if "early0" in OPT:
        o("s_cmp_lt_u32 s2, 64\ns_cbranch_scc1 F_ne0")
        dma(0)
        o("F_ne0:")
    o(f"""
s_lshr_b32 s{sCNT}, s{sCNT}, 4
s_sub_u32 s{sCNT}, s{sCNT}, s{sN0}
v_lshlrev_b32 v{VC}, 3, v1
v_lshrrev_b32 v3, 4, v1
v_and_b32 v4, 15, v1
v_xor_b32 v{VXA}, v4, v3
v_lshlrev_b32 v{VXA}, 4, v{VXA}
v_lshl_add_u32 v{VXA}, v4, 9, v{VXA}
v_add_u32 v{VXA}, {L_XS}, v{VXA}
v_bfe_u32 v5, v1, 2, 2
v_and_b32 v6, 3, v1
v_lshl_add_u32 v{VWA}, v3, 3, v5
v_lshlrev_b32 v{VWA}, 9, v{VWA}
v_lshl_add_u32 v{VWA}, v6, 3, v{VWA}
v_and_b32 v7, 1, v3
v_lshl_or_b32 v{TMP}, v7, 2, v5
v_xor_b32 v{TMP}, s{sWAVE}, v{TMP}
v_lshl_add_u32 v{VWA}, v{TMP}, 5, v{VWA}
v_add_u32 v{VWB}, 0x10000, v{VWA}
v_add_u32 v{TMP+4}, {L_CNT}, v{LO}
ds_write2st64_b32 v{TMP+4}, v{VTG}, v{VTG} offset0:0 offset1:1
s_cmp_ge_u32 s48, 16
s_cbranch_scc1 F_npd
s_lshl_b32 s49, s48, 14
s_add_u32 m0, s{sSO}, {L_PK}
s_add_u32 s49, s49, s{sSO}
buffer_load_dwordx4 v{VWS}, s[40:43], s49 offen lds
F_npd:
s_mov_b32 s{sSC}, {NEGL2E:#x}
s_mov_b32 s{sSC+1}, {NEGL2E:#x}
v_lshrrev_b32 v{TMP}, 1, v3
s_lshl_b32 s{sT1}, s{sWAVE}, 1
v_or_b32 v{TMP}, s{sT1}, v{TMP}
v_xor_b32 v{TMP}, v{TMP}, v4
v_lshlrev_b32 v{TMP}, 4, v{TMP}
v_lshl_add_u32 v{VN}, v4, 9, v{TMP}
v_lshl_add_u32 v{VN}, v7, 3, v{VN}
v_add_u32 v{VN}, {L_PST}, v{VN}
v_lshrrev_b32 v{VB}, 5, v0
v_add_u32 v{TMP}, 32, v{VB}
v_cmp_gt_u32 vcc, s{sCNT}, v{TMP}
v_lshlrev_b32 v{VB}, 4, v{VB}
v_xor_b32 v{VB}, v{VB}, v2
v_add_u32 v{VB}, {L_PST}, v{VB}
v_add_u32 v{VI}, 0x4000, v2
v_mov_b32 v{TMP}, 0x7ffffff0
v_cndmask_b32 v{VI}, v{TMP}, v{VI}, vcc
s_cmp_lt_u32 s2, 64
s_cbranch_scc1 F_nd0
""")
    if "early0" in OPT:
        o("s_barrier")
        dma(1)
    else:
        dma(0)
    o(f"""
F_nd0:
v_cmp_eq_u32 vcc, v5, v3
v_and_b32 v{TMP+2}, 1, v1
v_lshlrev_b32 v{TMP+2}, 4, v{TMP+2}
v_mov_b32 v{TMP+3}, 0x3f80
v_lshlrev_b32 v{TMP+3}, v{TMP+2}, v{TMP+3}
v_cndmask_b32 v{TMP+3}, 0, v{TMP+3}, vcc
v_xor_b32 v{VEL}, 2, v6
v_lshlrev_b32 v{VEL}, 2, v{VEL}
v_add_u32 v{VEL}, {L_ET}, v{VEL}
v_mov_b32 v{TMP+2}, 0x30000
v_cndmask_b32 v{VEL}, v{TMP+2}, v{VEL}, vcc
v_cmp_gt_u32 vcc, 2, v6
v_mul_u32_u24 v{CK0}, 7, v5
v_lshl_add_u32 v{CK1}, v6, 1, v{CK0}
v_cndmask_b32 v{A1}, 0, v{TMP+3}, vcc
v_cndmask_b32_e64 v{A1+1}, v{TMP+3}, 0, vcc
v_cmp_eq_u32 vcc, 0, v6
v_add_u32 v{CK2}, -1, v{CK1}
v_mov_b32 v{TMP}, 64
s_movk_i32 s{sT0}, {RS}
v_cndmask_b32 v{CK2}, v{CK2}, v{TMP}, vcc
v_mul_u32_u24 v{IX}, s{sT0}, v4
v_lshl_add_u32 v{IX}, v3, 4, v{IX}
s_lshl_b32 s{sT0}, s{sWAVE}, 6
v_add_u32 v{IX}, s{sT0}, v{IX}
s_mov_b64 s[8:9], s[32:33]
s_mov_b32 s10, {N*512}
s_mov_b32 s11, 0x20000
s_mov_b32 s16, s32
s_or_b32 s17, s33, 0x40000
s_mov_b32 s18, {N*512}
s_mov_b32 s19, 0x800000
s_mov_b32 s{sONE}, 1.0
s_mov_b32 s{sONE+1}, 1.0
s_mov_b32 s{sBND}, 0x7b800000
s_mov_b32 s{sW1}, 0
s_cmp_lt_u32 s2, 64
s_cbranch_scc1 F_bin
""")
    if "early0" not in OPT:
        o("s_barrier")
        dma(1)
    o(f"""
s_branch F_nbr
F_bin:
s_movk_i32 s57, 625
v_cmp_gt_u32 s[{sBM}:{sBM+1}], s57, v0
s_mov_b32 s56, 429497
s_mov_b32 s60, {L_BCNT}
s_mov_b32 s61, {L_IMG}
v_lshrrev_b32 v42, 3, v0
v_and_b32 v43, 7, v0
v_lshlrev_b32 v43, 4, v43
v_lshl_add_u32 v41, v42, 14, v43
v_and_b32 v40, 7, v42
v_lshlrev_b32 v40, 4, v40
v_xor_b32 v40, v40, v43
v_lshl_add_u32 v40, v42, 8, v40
v_add_u32 v40, s61, v40
v_lshl_add_u32 v42, v42, 2, s60
v_and_b32 v43, 48, v43
v_cmp_eq_u32 s[22:23], 0, v43
v_mov_b32 v43, 0x7f000000
v_mov_b32 v44, {L_BCNT+1024}
s_lshl_b32 s24, s2, 8
s_add_u32 s24, s24, {WS_CELL}
s_add_u32 s25, s24, {128*16384}
""")
    if "pre" in STEPS: stamp(o, (1, 2, 3, 4, 6)[STEPS.index("pre")])
    o(f"""
s_cmp_lt_u32 s{sWAVE}, 4
s_waitcnt vmcnt(2)
s_cbranch_scc1 F_be
s_waitcnt vmcnt(1)
F_be:
buffer_load_dwordx2 {vr(TAG,2)}, v{VTG}, s[96:99], 0 offen sc1
s_mov_b32 s50, {512*512}
buffer_load_dword v{W3}, v{LO}, s[44:47], s50 offen
buffer_load_dword v{W3+1}, v{LO}, s[44:47], s50 offen offset:256
""")
    st0 = lambda name: stamp(o, (1, 2, 3, 4, 6)[STEPS.index(name)]) if name in STEPS else None
    st0("edge")
    bin_rank(o)
    st0("rank")
    dma(0, False)
    o(f"""
s_waitcnt lgkmcnt(0)
s_barrier
ds_read2st64_b32 v[28:29], v42 offset0:0 offset1:2
ds_read_b128 v[8:11], v40
ds_read_b128 v[12:15], v40 offset:32768
ds_read_b128 v[16:19], v40 offset:128
ds_read_b128 v[20:23], v40 offset:{32768+128}
ds_read_b32 v30, v44
""")
    dma(1, False)
    o("s_waitcnt vmcnt(6)")
    get_tag(o, "b")
    bin_copy(o)
    o("F_nbr:")
    st0("copy")
    def st(name):
        if name in STEPS: stamp(o, (1, 2, 3, 4, 6)[STEPS.index(name)])
    def reads(ks, loc, xf, wf):
        a = VXA
        if ks:
            a = TMP + 6
            o(f"v_xor_b32 v{a}, {64*ks}, v{VXA}")
        wa, off = (VWA, loc) if loc < 65536 else (VWB, loc - 65536)
        l = [f"ds_read_b64_tr_b16 {vr(wf,2)}, v{wa} offset:{off}\nds_read_b64_tr_b16 {vr(wf+2,2)}, v{wa} offset:{off + 2048}"]
        l += [f"ds_read_b128 {vr(xf+4*rt,4)}, v{a} offset:{rt*8192}" for rt in range(3)]
        return l
    def mfmas(acc, first, xf, wf):
        return [f"v_mfma_f32_16x16x32_bf16 {vr(acc+4*rt,4)}, {vr(wf,4)}, {vr(xf+4*rt,4)}, {'0' if first else vr(acc+4*rt,4)}" for rt in range(3)]
    def weave(mm, rd):
        while rd or mm:
            if mm: o(mm.pop(0))
            if rd: o(rd.pop(0))
    for s in range(-1, 8):
        if s < 7:
            n = vm(("d", s + 1))
            if s <= 2:
                o(f"""
s_cmp_lt_u32 s2, 64
s_cbranch_scc1 F_wc{s+1}
s_waitcnt vmcnt({n + (1 if s >= 0 else 0)})
s_cmp_lt_u32 s48, 16
s_cbranch_scc1 F_wc{s+1}
s_waitcnt vmcnt({n})
F_wc{s+1}:
s_waitcnt vmcnt({n + 4}) lgkmcnt(0)
s_barrier
""")
            else:
                o(f"s_waitcnt vmcnt({n}) lgkmcnt(0)\ns_barrier")
        else:
            o("s_waitcnt lgkmcnt(0)\ns_barrier")
        st(f"s{s}")
        if s == -1:
            o(f"buffer_load_dwordx2 {vr(TG0,2)}, v{VTG}, s[96:99], 0 offen sc1")
            ops.append("tag")
        rd = reads(s + 1, ((s + 1) & 3) * 16384, XFB[(s+1) & 1], WFB[(s+1) & 1]) if s < 7 else []
        weave(mfmas(PA, s == 0, XFB[s & 1], WFB[s & 1]) if s >= 0 else [], rd)
        if 0 <= s <= 3: d1(s + 4)
        if s >= 4: d2(s - 4)
        if s == -1:
            o(f"""
s_cmp_ge_u32 s48, 16
s_cbranch_scc1 F_d0
ds_read_b64_tr_b16 v[4:5], v{VWB}
ds_read_b64_tr_b16 v[6:7], v{VWB} offset:2048
s_lshl_b32 s50, s{sWAVE}, 13
s_and_b32 s49, s48, 7
s_lshl_b32 s49, s49, 10
s_add_u32 s50, s50, s49
s_lshr_b32 s49, s48, 3
s_lshl_b32 s49, s49, 17
s_add_u32 s50, s50, s49
s_add_u32 s50, s50, {WS_WPACK}
v_lshlrev_b32 v12, 4, v1
s_waitcnt lgkmcnt(0)
buffer_store_dwordx4 v[4:7], v12, s[32:35], s50 offen sc1
F_d0:
""")
        if s == 3:
            assert ops.index("tag") < ops.index(("d", 4))
            o(f"s_cmp_ge_u32 s48, 16\ns_cbranch_scc1 F_d5\ns_cmp_lg_u32 s{sWAVE}, 0\ns_cbranch_scc1 F_d5\nv_mov_b64 {vr(TAG,2)}, {vr(TG0,2)}")
            get_tag(o, "p")
            o(f"s_lshl_b32 s{sT0}, s48, 7\ns_add_u32 s{sT0}, s{sT0}, {WS_FLAG + 256*128}")
            put_flag(o, f"s{sT0}")
            o("F_d5:")
    o(f"s_lshl_b32 s{sT2}, s{sN0}, 9\ns_add_u32 s{sK}, s{sT2}, 8192\ns_nop 0")
    for rt in range(3):
        a_ = PA + 4*rt
        o(f"""
v_pk_mul_f32 {vr(a_,2)}, {vr(a_,2)}, s[{sSC}:{sSC+1}]
v_pk_mul_f32 {vr(a_+2,2)}, {vr(a_+2,2)}, s[{sSC}:{sSC+1}]
v_cvt_pk_bf16_f32 v{40+2*rt}, v{a_}, v{a_+1}
v_cvt_pk_bf16_f32 v{40+2*rt+1}, v{a_+2}, v{a_+3}
ds_write_b64 v{VN}, {vr(40+2*rt,2)} offset:{rt*8192}
""")
    o(f"""
s_lshl_b32 s{sOFF}, s2, 14
s_add_u32 s{sOFF}, s{sOFF}, {WS_CELL}
s_cmp_lt_u32 s{sWAVE}, 8
s_waitcnt lgkmcnt(0)
s_barrier
s_cbranch_scc0 F_nps
ds_read_b128 {vr(PA,4)}, v{VB}
ds_read_b128 {vr(PA+4,4)}, v{VB} offset:8192
ds_read_b128 {vr(PA+8,4)}, v{VB} offset:16384
s_waitcnt lgkmcnt(2)
buffer_store_dwordx4 {vr(PA,4)}, v2, s[8:11], s{sT2} offen sc1
s_waitcnt lgkmcnt(1)
buffer_store_dwordx4 {vr(PA+4,4)}, v2, s[8:11], s{sK} offen sc1
s_waitcnt lgkmcnt(0)
buffer_store_dwordx4 {vr(PA+8,4)}, v{VI}, s[8:11], s{sT2} offen sc1
buffer_load_dwordx4 {vr(REC,4)}, v2, s[32:35], s{sOFF} offen sc1
s_waitcnt vmcnt(4)
s_branch F_ps2
F_nps:
s_mov_b32 s{sOC}, {WS_FLAG + 256*128}
v_lshlrev_b32 v16, 7, v1
v_min_u32 v16, {15*128}, v16
s_waitcnt vmcnt(0)
s_cmp_lg_u32 s{sWAVE}, 15
s_cbranch_scc1 F_npk0
buffer_load_dwordx2 v[24:25], v16, s[32:35], s{sOC} offen sc1
F_npk0:
buffer_load_dwordx4 {vr(REC,4)}, v2, s[32:35], s{sOFF} offen sc1
F_ps2:
s_barrier
""")
    st("pst")
    rd = reads(0, LOC2[0], XFB[0], WFB[0])
    o("\n".join(rd))
    o(f"v_mov_b64 {vr(TAG,2)}, {vr(TG0,2)}")
    get_tag(o, "m")
    for s in range(4):
        o("s_waitcnt lgkmcnt(0)")
        rd = reads(s + 1, LOC2[s + 1], XFB[(s+1) & 1], WFB[(s+1) & 1]) if s < 3 else []
        weave(mfmas(QA, s == 0, XFB[s & 1], WFB[s & 1]), rd)
    for t in range(4, 8):
        d2(t)
    o(f"""
v_mov_b64 {vr(ZR,2)}, 0
v_mov_b64 {vr(ZR+2,2)}, 0
v_add_u32 v{VB}, {L_IDX}, v2
v_add_u32 v{VI}, {L_ET}, v2
s_lshl_b32 s12, s{sWAVE}, 13
s_add_u32 s12, s12, {WS_WPACK}
s_add_u32 s13, s12, 4096
v_lshlrev_b32 v{VEND}, 4, v1
s_mov_b32 s{sT2}, 0
s_waitcnt vmcnt(5)
s_cmp_lg_u32 s{sWAVE}, 15
s_cbranch_scc1 F_npk
s_mov_b32 s{sT1}, 0
F_plk:
v_cmp_ne_u64 vcc, s[100:101], v[24:25]
s_add_u32 s{sT1}, s{sT1}, 1
s_cmp_ge_u32 s{sT1}, 0x10000
s_cbranch_scc1 F_npk
s_nop 1
s_cbranch_vccz F_npk
buffer_load_dwordx2 v[24:25], v16, s[32:35], s{sOC} offen sc1
s_waitcnt vmcnt(0)
s_branch F_plk
F_npk:
s_barrier
""")
    st("drain")
    o(f"s_cmp_lg_u32 s{sWAVE}, 0\ns_cbranch_scc1 F_nfp\ns_lshl_b32 s{sT0}, s2, 7\ns_add_u32 s{sT0}, s{sT0}, {WS_FLAG}")
    put_flag(o, f"s{sT0}")
    o("F_nfp:")
    WA = 26
    o(f"v_mov_b32 v{WA}, v{VEND}")
    wl = lambda kss: wloads(o, 0, W, kss, 12, 13, WA, False)
    wl((0, 1))
    o(f"""
ds_write_b128 v{VB}, {vr(ZR,4)}
ds_write_b128 v{VI}, {vr(ZR,4)}
ds_write_b128 v{VI}, {vr(ZR,4)} offset:16384
ds_write_b128 v{VI}, {vr(ZR,4)} offset:16448
s_mov_b32 s{sRND}, 0
s_mov_b64 s[40:41], s[20:21]
s_mov_b32 s42, {N*512}
s_waitcnt vmcnt(6)
F_cl:
v_mov_b32_dpp v{TMP}, v{REC+1} row_newbcast:0 row_mask:0xf bank_mask:0xf
v_mov_b32_dpp v{TMP+1}, v{REC} row_newbcast:0 row_mask:0xf bank_mask:0xf
v_mov_b32_dpp v{TMP+2}, v{REC+1} quad_perm:[0,0,0,0] row_mask:0xf bank_mask:0xf
v_cmp_eq_u32 vcc, s100, v{TMP}
v_cmp_ne_u32 s[{sM}:{sM+1}], s100, v{TMP+2}
s_add_u32 s{sT2}, s{sT2}, 1
v_cndmask_b32 v{TMP+1}, 0, v{TMP+1}, vcc
v_max_u32 v{TMP+3}, 1, v{TMP+1}
v_cmp_lt_u32 vcc, v{CK0}, v{TMP+3}
s_cmp_ge_u32 s{sT2}, 0x10000
s_cbranch_scc1 F_cd
s_and_b64 exec, vcc, s[{sM}:{sM+1}]
s_cbranch_execz F_cd
s_sleep 1
buffer_load_dwordx4 {vr(REC,4)}, v2, s[32:35], s{sOFF} offen sc1
s_mov_b64 exec, -1
s_waitcnt vmcnt(0)
s_branch F_cl
F_cd:
s_mov_b64 exec, -1
v_cmp_gt_u32 s[{sV0}:{sV0+1}], v{TMP+1}, v{CK2}
v_cmp_gt_u32 s[{sV1}:{sV1+1}], v{TMP+1}, v{CK1}
""")
    st("cell")
    sort_rank(o)
    wl((2, 3, 4))
    o("s_waitcnt vmcnt(5) lgkmcnt(0)\ns_barrier")
    st("y")
    XQ, WQ = [8, UA], [20, 28]
    o("\n".join(reads(4, LOC2[4], XQ[0], WQ[0])))
    sort_scatter(o)
    for s in range(4, 8):
        o("s_waitcnt lgkmcnt(0)")
        rd = reads(s + 1, LOC2[s + 1], XQ[(s+1) & 1], WQ[(s+1) & 1]) if s < 7 else []
        weave(mfmas(QA, False, XQ[s & 1], WQ[s & 1]), rd)
    o(f"""
v_mov_b32 v{VE}, v{WA}
v_lshlrev_b32 v{TMP}, 16, v{W3}
v_and_b32 v{TMP+1}, 0xffff0000, v{W3}
v_lshlrev_b32 v{TMP+2}, 16, v{W3+1}
v_and_b32 v{TMP+3}, 0xffff0000, v{W3+1}
v_mul_f32 v{TMP}, s{sSC}, v{TMP}
v_mul_f32 v{TMP+1}, s{sSC}, v{TMP+1}
v_mul_f32 v{TMP+2}, s{sSC}, v{TMP+2}
v_mul_f32 v{TMP+3}, s{sSC}, v{TMP+3}
v_cvt_pk_bf16_f32 v6, v{TMP}, v{TMP+1}
v_cvt_pk_bf16_f32 v7, v{TMP+2}, v{TMP+3}
v_add_u32 v{VB}, {L_AGB}, v2
v_mov_b64 {vr(A0,2)}, {vr(A1,2)}
""")
    for k in range(1, R):
        o(f"v_mov_b64 {vr(RING+4*k+2,2)}, v[6:7]")
    for h in range(6):
        o(f"v_pk_mul_f32 {vr(QA+2*h,2)}, {vr(QA+2*h,2)}, s[{sSC}:{sSC+1}]")
    o(f"""
s_lshl_b32 s{sOC}, s{sWAVE}, 13
s_add_u32 s{sOC}, s{sOC}, {WS_FLAG}
v_lshlrev_b32 v{TMP}, 7, v1
s_cmp_ge_u32 s{sWAVE}, 4
s_cbranch_scc1 F_np1
buffer_load_dwordx2 {vr(TMP+1,2)}, v{TMP}, s[32:35], s{sOC} offen sc1
F_np1:
s_barrier
""")
    st("x")
    for rt in range(3):
        o(f"ds_write_b128 v{IX}, {vr(QA+4*rt,4)} offset:{L_QS + rt*16*RS}")
    o(f"ds_write_b128 v{VB}, {vr(ZR,4)}\nds_write_b128 v{VB}, {vr(ZR,4)} offset:4096")
    st("u")
    o(f"""
s_cmp_ge_u32 s{sWAVE}, 4
s_cbranch_scc1 F_npp
s_mov_b32 s{sT1}, 0
s_waitcnt vmcnt(0)
F_plp:
v_cmpx_ne_u64 vcc, s[100:101], {vr(TMP+1,2)}
s_add_u32 s{sT1}, s{sT1}, 1
s_nop 3
s_cbranch_execz F_pdp
s_cmp_ge_u32 s{sT1}, 0x10000
s_cbranch_scc1 F_pdp
{next((f"s_sleep {x[3:]}" for x in OPT if x.startswith("psl")), "")}
buffer_load_dwordx2 {vr(TMP+1,2)}, v{TMP}, s[32:35], s{sOC} offen sc1
s_waitcnt vmcnt(0)
s_branch F_plp
F_pdp:
s_mov_b64 exec, -1
""")
    o(f"""
F_npp:
""")
    wloads(o, 0, W, (5, 6, 7), 12, 13, VE, False)
    o(f"""
s_mov_b32 s{sT0}, {WS_OVFC}
buffer_load_dwordx2 {vr(VOVF,2)}, v{VC}, s[32:35], s{sT0} offen sc1
s_waitcnt lgkmcnt(0)
s_barrier
L_pr:
""")
    st("b3")
    zero_cnt(o)
    prime(o)
    o(f"""
s_cmp_lg_u32 s{sRND}, 0
s_cbranch_scc1 L_go
s_call_b64 s[{sRET}:{sRET+1}], L_ugemm
L_go:
""")
    st("go")
    stamp(o, 5)
    o(f"""
s_mov_b64 vcc, 0
s_mov_b32 s{sK}, {KMAX}
s_add_u32 s{sRND}, s{sRND}, 1
s_cmp_ge_u32 s{sP}, s{sP1}
s_cbranch_scc1 L_loopdone
v_cmp_eq_u32 s[{sM}:{sM+1}], s{sP}, v{VEND}
s_sub_u32 s{sIT}, s{sP1}, s{sP}
s_add_u32 s{sIT}, s{sIT}, {R-1}
s_mul_i32 s{sIT}, s{sIT}, 171
s_lshr_b32 s{sIT}, s{sIT}, 10
s_cmp_eq_u32 s{sP}, 0
s_cselect_b32 s{sT2}, 1, 0
s_cmp_lg_u64 s[{sM}:{sM+1}], 0
s_cselect_b32 s{sT2}, 1, s{sT2}
s_xor_b32 s{sHEAD}, s{sT2}, 1
s_call_b64 s[{sRET}:{sRET+1}], L_newnode
s_setprio 3
s_waitcnt vmcnt({2*(R-1)}) lgkmcnt(0)
v_mfma_f32_16x16x32_bf16 {vr(T0,4)}, {vr(A0,4)}, {vr(RING,4)}, {vr(Q,4)}
s_nop 5
L_top:
""")
    for k in range(R):
        B = RING + 4*k
        B1 = RING + 4*((k+1) % R)
        ex, pk = valu_block(TT[k & 1])
        o(f"""
s_waitcnt vmcnt({2*(R-2)}) lgkmcnt(0)
v_mfma_f32_16x16x32_bf16 {vr(TT[(k+1)&1],4)}, {vr(AA[(k+1)&1],4)}, {vr(B1,4)}, {vr(Q,4)}
{ex}
buffer_load_dword v{B}, v{IX}, s[16:19], 0 offen sc1
buffer_load_dword v{B+1}, v{IX}, s[16:19], 0 offen offset:256 sc1
ds_read_b32 v{IX}, v{VI} offset:{4*(k+R+1)}
ds_read2_b32 {vr(AA[k&1]+2,2)}, v{VE} offset0:{4*(k+2)} offset1:{4*(k+2)+2}
{pk}
s_sub_u32 s{sREM}, s{sREM}, 1
s_cbranch_scc1 L_call{k}
L_next{k}:
""")
    o(f"""
v_add_u32 v{VI}, {4*R}, v{VI}
v_add_u32 v{VE}, {16*R}, v{VE}
s_sub_u32 s{sIT}, s{sIT}, 1
s_cmp_ge_u32 s{sIT}, {PRIO[0]}
s_cbranch_scc1 L_top
s_setprio 2
s_cmp_ge_u32 s{sIT}, {PRIO[1]}
s_cbranch_scc1 L_top
s_setprio 1
s_cmp_ge_u32 s{sIT}, {PRIO[2]}
s_cbranch_scc1 L_top
s_setprio 0
{"" if "overrun" in OPT else f"v_mov_b32 v{VI}, {L_CNT}"}
s_branch L_top
""")
    for k in range(R):
        B1 = RING + 4*((k+1) % R)
        o(f"""
L_call{k}:
s_call_b64 s[{sRET}:{sRET+1}], L_flush
s_cbranch_scc0 L_special
s_waitcnt lgkmcnt(0)
v_mfma_f32_16x16x32_bf16 {vr(TT[(k+1)&1],4)}, {vr(AA[(k+1)&1],4)}, {vr(B1,4)}, {vr(Q,4)}
s_nop 4
s_branch L_next{k}
""")
    o(f"""
L_flush:
v_rcp_f32 v{E}, v{D}
v_rcp_f32 v{E+1}, v{D+1}
v_rcp_f32 v{E+2}, v{D+2}
v_rcp_f32 v{E+3}, v{D+3}
s_mov_b32 s{sP}, s{sSEGE}
s_cbranch_vccnz L_nochk
v_pk_fma_f32 {vr(CK,2)}, {vr(NN,2)}, 0, {vr(D,2)}
v_pk_fma_f32 {vr(CK+2,2)}, {vr(NN+2,2)}, 0, {vr(D+2,2)}
v_pk_add_f32 {vr(CK,2)}, {vr(CK,2)}, {vr(CK+2,2)}
v_add_f32 v{CK}, v{CK}, v{CK+1}
v_cmp_nle_f32 s[{sM}:{sM+1}], v{CK}, s{sBND}
s_nop 3
s_cmp_eq_u64 s[{sM}:{sM+1}], 0
s_cbranch_scc1 L_nochk
s_mov_b32 s{sP}, s{sSEGS}
s_setpc_b64 s[{sRET}:{sRET+1}]
L_nochk:
v_pk_fma_f32 {vr(AC,2)}, {vr(NN,2)}, {vr(E,2)}, {vr(AC,2)}
v_pk_fma_f32 {vr(AC+2,2)}, {vr(NN+2,2)}, {vr(E+2,2)}, {vr(AC+2,2)}
s_cmp_lg_u32 s{sW1}, 0
s_cbranch_scc1 L_havew
s_mov_b32 s{sW1}, 1
""")
    wloads(o, 1, W)
    o(f"""
L_havew:
s_cmp_eq_u32 s{sP}, s{sNEND}
s_cbranch_scc1 L_fin
s_cmp_lg_u32 s{sP}, s{sP1}
s_cbranch_scc1 L_reinit
s_cmp_lg_u32 s{sHEAD}, 0
s_cbranch_scc1 L_pub
s_mov_b32 s{sT0}, s{sWAVE}
s_mov_b32 s{sT1}, s{sP1}
L_col:
s_add_u32 s{sT0}, s{sT0}, 1
s_lshl_b32 s{sT2}, s{sT0}, 2
s_add_u32 s{sT2}, s{sT2}, {L_HF}
v_mov_b32 v{CK}, s{sT2}
L_poll:
ds_read_b32 v{CK+1}, v{CK}
s_waitcnt lgkmcnt(0)
v_readfirstlane_b32 s{sT2}, v{CK+1}
s_nop 3
s_cmp_eq_u32 s{sT2}, s{sRND}
s_cbranch_scc1 L_got
s_sleep 1
s_branch L_poll
L_got:
s_lshl_b32 s{sT2}, s{sT0}, 10
s_add_u32 s{sT2}, s{sT2}, {L_HB}
v_add_u32 v{CK}, s{sT2}, v{VC}
ds_read2st64_b64 {vr(E,4)}, v{CK} offset0:0 offset1:1
s_add_u32 s{sT1}, s{sT1}, s{sCH}
s_waitcnt lgkmcnt(0)
v_pk_add_f32 {vr(AC,2)}, {vr(AC,2)}, {vr(E,2)}
v_pk_add_f32 {vr(AC+2,2)}, {vr(AC+2,2)}, {vr(E+2,2)}
s_cmp_lt_u32 s{sT1}, s{sNEND}
s_cbranch_scc1 L_col
s_branch L_wr
L_fin:
s_cmp_lg_u32 s{sHEAD}, 0
s_cbranch_scc1 L_pub
L_wr:
v_cvt_pk_bf16_f32 v{E}, v{AC}, v{AC+1}
v_cvt_pk_bf16_f32 v{E+1}, v{AC+2}, v{AC+3}
ds_write2st64_b32 v{VB}, v{E}, v{E+1} offset0:0 offset1:1
L_more:
s_mov_b32 s{sHEAD}, 0
s_cmp_lg_u32 s{sP}, s{sP1}
s_cbranch_scc1 L_newnode
s_setpc_b64 s[{sRET}:{sRET+1}]
L_pub:
s_lshl_b32 s{sT2}, s{sWAVE}, 10
s_add_u32 s{sT2}, s{sT2}, {L_HB}
v_add_u32 v{CK}, s{sT2}, v{VC}
s_lshl_b32 s{sT2}, s{sWAVE}, 2
s_add_u32 s{sT2}, s{sT2}, {L_HF}
v_mov_b32 v{CK+1}, s{sT2}
v_mov_b32 v{CK+2}, s{sRND}
ds_write2st64_b64 v{CK}, {vr(AC,2)}, {vr(AC+2,2)} offset0:0 offset1:1
s_waitcnt lgkmcnt(0)
ds_write_b32 v{CK+1}, v{CK+2}
s_branch L_more
L_old:
s_cmp_lg_u32 s{sHEAD}, 0
s_cbranch_scc1 L_reinit
ds_read2st64_b32 {vr(E,2)}, v{VB} offset0:0 offset1:1
s_waitcnt lgkmcnt(0)
v_lshlrev_b32 v{AC}, 16, v{E}
v_and_b32 v{AC+1}, 0xffff0000, v{E}
v_lshlrev_b32 v{AC+2}, 16, v{E+1}
v_and_b32 v{AC+3}, 0xffff0000, v{E+1}
s_branch L_reinit
L_newnode:
v_cmp_ge_u32 s[{sM}:{sM+1}], s{sP}, v{VEND}
v_mov_b64 {vr(AC,2)}, 0
v_mov_b64 {vr(AC+2,2)}, 0
s_nop 1
s_bcnt1_i32_b64 s{sT0}, s[{sM}:{sM+1}]
s_mul_i32 s{sT1}, s{sT0}, {RS}
v_readlane_b32 s{sNEND}, v{VEND}, s{sT0}
v_add_u32 v{VN}, s{sT1}, v{VC}
ds_read2st64_b64 {vr(Q,4)}, v{VN} offset0:0 offset1:1
s_and_b32 s{sT1}, s{sT0}, 15
s_lshl_b32 s{sT1}, s{sT1}, 4
s_lshl_b32 s{sT0}, s{sT0}, 9
s_or_b32 s{sT0}, s{sT0}, s{sT1}
s_add_u32 s{sT0}, s{sT0}, {L_AGB}
v_xor_b32 v{VB}, s{sT0}, v{LO}
s_cmp_lg_u32 s{sRND}, 1
s_cbranch_scc1 L_old
L_reinit:
v_mov_b64 {vr(NN,2)}, 0
v_mov_b64 {vr(NN+2,2)}, 0
v_mov_b64 {vr(D,2)}, s[{sONE}:{sONE+1}]
v_mov_b64 {vr(D+2,2)}, s[{sONE}:{sONE+1}]
s_mov_b32 s{sSEGS}, s{sP}
s_add_u32 s{sSEGE}, s{sP}, s{sK}
s_min_u32 s{sSEGE}, s{sSEGE}, s{sNEND}
s_min_u32 s{sSEGE}, s{sSEGE}, s{sP1}
s_sub_u32 s{sREM}, s{sSEGE}, s{sP}
s_sub_u32 s{sREM}, s{sREM}, 1
s_cmp_eq_u32 s{sP}, s{sP}
s_setpc_b64 s[{sRET}:{sRET+1}]
L_special:
s_cmp_eq_u32 s{sP}, s{sP1}
s_cbranch_scc1 L_loopdone
s_mov_b64 vcc, -1
s_mov_b32 s{sK}, 1
s_waitcnt vmcnt(0) lgkmcnt(0)
s_call_b64 s[{sRET}:{sRET+1}], L_reinit
L_slow:
s_lshl_b32 s{sT0}, s{sP}, 2
s_add_u32 s{sT0}, s{sT0}, {L_IDX}
v_mov_b32 v{VI}, s{sT0}
s_lshl_b32 s{sT0}, s{sP}, 4
v_add_u32 v{VE}, s{sT0}, v{VEL}
ds_read_b32 v{IX}, v{VI}
ds_read2_b32 {vr(A0+2,2)}, v{VE} offset0:0 offset1:2
s_waitcnt lgkmcnt(0)
buffer_load_dword v{RING}, v{IX}, s[16:19], 0 offen sc1
buffer_load_dword v{RING+1}, v{IX}, s[16:19], 0 offen offset:256 sc1
s_waitcnt vmcnt(0)
v_mfma_f32_16x16x32_bf16 {vr(T0,4)}, {vr(A0,4)}, {vr(RING,4)}, {vr(Q,4)}
s_nop 7
v_min_f32 v{T0}, 0x42fc0000, v{T0}
v_min_f32 v{T0+1}, 0x42fc0000, v{T0+1}
v_min_f32 v{T0+2}, 0x42fc0000, v{T0+2}
v_min_f32 v{T0+3}, 0x42fc0000, v{T0+3}
{valu_block(T0)[0]}
{valu_block(T0)[1]}
s_call_b64 s[{sRET}:{sRET+1}], L_flush
s_cbranch_scc1 L_slow
L_loopdone:
""")
    st("le")
    if len(STEPS) < 5: stamp(o, 6)
    o(f"""
s_setprio 0
s_cmp_lg_u32 s{sW1}, 0
s_cbranch_scc1 L_ld2
s_mov_b32 s{sW1}, 1
""")
    wloads(o, 1, W)
    o(f"""
L_ld2:
s_cmp_lg_u32 s{sRND}, 1
s_cbranch_scc1 L_rn0
s_mov_b32 s{sOB}, 0
s_mov_b32 s{sT0}, {WS_OVFC}
L_ov:
s_waitcnt vmcnt(0)
v_cmp_ne_u32 vcc, s100, v{VOVF+1}
v_cmp_ne_u32 s[{sOM}:{sOM+1}], 0, v{VOVF}
s_add_u32 s{sOB}, s{sOB}, 1
s_cmp_ge_u32 s{sOB}, 0x10000
s_cbranch_scc1 L_ovd
s_nop 0
s_cbranch_vccz L_ovd
buffer_load_dwordx2 {vr(VOVF,2)}, v{VC}, s[32:35], s{sT0} offen sc1
s_branch L_ov
L_ovd:
s_mov_b32 s{sOB}, 0
L_rn0:
v_and_b32 v{TMP}, 15, v1
v_xor_b32 v{TMP+1}, v{TMP}, v3
v_lshlrev_b32 v{TMP+1}, 4, v{TMP+1}
v_lshl_add_u32 v{TMP+1}, v{TMP}, 9, v{TMP+1}
s_waitcnt vmcnt(0)
s_cmp_eq_u64 s[{sOM}:{sOM+1}], 0
s_cbranch_scc0 L_round
""")
    o(f"v_add_u32 v4, {L_AGB}, v{TMP+1}")
    for ks in range(1, 8):
        o(f"v_xor_b32 v{4+ks}, {64*ks}, v4")
    o(f"""
v_add_u32 v{TMP+2}, s{sN0}, v{TMP}
v_lshlrev_b32 v{TMP+2}, 9, v{TMP+2}
v_lshl_add_u32 v{TMP+2}, v3, 3, v{TMP+2}
s_lshl_b32 s{sT0}, s{sWAVE}, 5
s_add_u32 s{sT1}, s{sT0}, 8192
s_add_u32 s{sT2}, s{sT0}, 16384
s_sub_u32 s{sCNT}, s{sCNT}, 32
v_cmp_gt_u32 s[{sM}:{sM+1}], s{sCNT}, v{TMP}
v_mov_b32 v12, s{sSC}
""")
    if "ostage" in OPT:
        o(f"""
v_lshrrev_b32 v13, 1, v3
s_lshl_b32 s{sT1}, s{sWAVE}, 1
v_or_b32 v13, s{sT1}, v13
v_xor_b32 v13, v13, v{TMP}
v_lshlrev_b32 v13, 4, v13
v_lshl_add_u32 v13, v{TMP}, 9, v13
v_and_b32 v14, 1, v3
v_lshl_add_u32 v13, v14, 3, v13
v_lshrrev_b32 v14, 5, v0
v_cmp_gt_u32 vcc, s{sCNT}, v14
v_and_b32 v14, 15, v14
v_lshlrev_b32 v14, 4, v14
v_xor_b32 v14, v14, v2
v_add_u32 v15, 0x4000, v2
v_mov_b32 v16, 0x7ffffff0
s_lshl_b32 s{sT0}, s{sN0}, 9
v_cndmask_b32 v15, v16, v15, vcc
""")
    o("s_waitcnt lgkmcnt(0)\ns_barrier")
    st("fb")
    OSF = "sc1" if "o_sc1" in OPT else "nt" if "o_nt" in OPT else "sc1 nt" if "o_sc1nt" in OPT else ""
    FB = [T0, T1, E, NN]
    def rd(i):
        o(f"ds_read_b128 {vr(FB[i % 4],4)}, v{4 + (i & 7)} offset:{(i >> 3)*8192}")
    def silu(rt):
        a, t = UA + 4*rt, D
        l = [f"v_exp_f32 v{t+i}, v{a+i}" for i in range(4)]
        l += [f"v_fma_f32 v{t+i}, v{t+i}, v12, v12" for i in range(4)]
        l += [f"v_rcp_f32 v{t+i}, v{t+i}" for i in range(4)]
        l += [f"v_mul_f32 v{a+i}, v{a+i}, v{t+i}" for i in range(4)]
        l += [f"v_cvt_pk_bf16_f32 v{a}, v{a}, v{a+1}", f"v_cvt_pk_bf16_f32 v{a+1}, v{a+2}, v{a+3}"]
        if "ostage" in OPT:
            l.append(f"ds_write_b64 v13, {vr(a,2)} offset:{rt*8192}")
            return l
        if rt == 2:
            l.append(f"s_mov_b64 exec, s[{sM}:{sM+1}]")
        l.append(f"buffer_store_dwordx2 {vr(a,2)}, v{TMP+2}, s[40:43], s{[sT0,sT1,sT2][rt]} offen {OSF}")
        return l
    for i in range(3):
        rd(i)
    pend = []
    for i in range(24):
        rt, ks = i >> 3, i & 7
        if i + 3 < 24:
            rd(i + 3)
        o(f"s_waitcnt lgkmcnt({min(3, 23 - i)})")
        o(f"v_mfma_f32_16x16x32_bf16 {vr(UA+4*rt,4)}, {vr(W+4*ks,4)}, {vr(FB[i % 4],4)}, {vr(UA+4*rt,4)}")
        if ks == 2 and rt > 0:
            pend = silu(rt - 1)
        n = 4 if ks < 7 else len(pend)
        o("\n".join(pend[:n]))
        pend = pend[n:]
    o("s_nop 7")
    st("fg")
    o("\n".join(silu(2)))
    if "ostage" in OPT:
        o(f"""
s_waitcnt lgkmcnt(0)
s_barrier
ds_read_b128 v[16:19], v14
ds_read_b128 v[20:23], v14 offset:16384
s_waitcnt lgkmcnt(1)
buffer_store_dwordx4 v[16:19], v2, s[40:43], s{sT0} offen {OSF}
s_cmp_ge_u32 s{sWAVE}, 4
s_cbranch_scc1 L_os
s_waitcnt lgkmcnt(0)
buffer_store_dwordx4 v[20:23], v15, s[40:43], s{sT0} offen {OSF}
L_os:
""")
    st("fs")
    if STAMP:
        o(f"""
s_waitcnt vmcnt(0)
s_memrealtime s[94:95]
s_mov_b64 exec, 1
s_lshl_b32 s26, s2, 4
s_add_u32 s26, s26, s{sWAVE}
s_lshl_b32 s26, s26, 5
s_add_u32 s26, s26, {WS_STAMP + 0x100000}
s_mov_b32 s34, 0x1000000
v_mov_b32 v0, 0
s_waitcnt lgkmcnt(0)
""")
        xd = next((x for x in OPT if x.startswith("xdel")), None)
        if xd:
            k = int(xd[4:])
            sel = "s_cmp_lt_u32 s2, 64\ns_cselect_b32 s26, 0, s26" if "xrest" in OPT else ""
            o(f"""
s_sub_u32 s26, s{80+2*k}, s80
{sel}
s_mul_i32 s26, s26, 10
s_add_u32 s26, s26, s94
X_spin:
s_memrealtime s[92:93]
s_waitcnt lgkmcnt(0)
s_sub_u32 s27, s92, s26
s_cmp_lt_i32 s27, 0
s_cbranch_scc1 X_spin
s_endpgm
""")
        for i in range(8):
            o(f"v_mov_b32 v{4+i}, s{80+2*i}")
        if "dbgst" in OPT:
            o("v_not_b32 v12, v4\nv_not_b32 v13, v9\nv_not_b32 v14, v5\nv_not_b32 v15, v10")
            for i in range(12):
                o(f"buffer_atomic_umax v{4+i}, v0, s[96:99], 0 offen offset:{8+4*i} sc1")
        else:
            o("buffer_store_dwordx4 v[4:7], v0, s[32:35], s26 offen\nbuffer_store_dwordx4 v[8:11], v0, s[32:35], s26 offen offset:16")
    o(f"""
L_end:
s_endpgm
L_round:
s_waitcnt lgkmcnt(0)
s_barrier
s_ff1_i32_b64 s{sT0}, s[{sOM}:{sOM+1}]
s_mul_i32 s{sT1}, s{sT0}, {CHUNK*8}
v_readlane_b32 s{sOC}, v{VOVF}, s{sT0}
s_lshl_b32 s{sT2}, s{sOB}, 3
s_add_u32 s{sT1}, s{sT1}, s{sT2}
s_add_u32 s{sT1}, s{sT1}, {WS_OVF}
buffer_load_dwordx4 {vr(REC,4)}, v2, s[32:35], s{sT1} offen sc1
v_lshlrev_b32 v{TMP}, 1, v0
v_add_u32 v{TMP}, s{sOB}, v{TMP}
v_add_u32 v{TMP+1}, 1, v{TMP}
v_cmp_gt_u32 s[{sV0}:{sV0+1}], s{sOC}, v{TMP}
v_cmp_gt_u32 s[{sV1}:{sV1+1}], s{sOC}, v{TMP+1}
s_add_u32 s{sOB}, s{sOB}, 2048
s_cmp_lt_u32 s{sOB}, s{sOC}
s_cbranch_scc1 L_rn2
s_bitset0_b64 s[{sOM}:{sOM+1}], s{sT0}
s_mov_b32 s{sOB}, 0
L_rn2:
s_waitcnt vmcnt(0)
v_lshrrev_b32 v{TMP}, 16, v{REC+1}
v_lshrrev_b32 v{TMP+1}, 16, v{REC+3}
v_cmp_eq_u32 s[{sM}:{sM+1}], s2, v{TMP}
s_nop 3
s_and_b64 s[{sV0}:{sV0+1}], s[{sV0}:{sV0+1}], s[{sM}:{sM+1}]
v_cmp_eq_u32 s[{sM}:{sM+1}], s2, v{TMP+1}
s_nop 3
s_and_b64 s[{sV1}:{sV1+1}], s[{sV1}:{sV1+1}], s[{sM}:{sM+1}]
""")
    sort_rank(o)
    o("s_waitcnt lgkmcnt(0)\ns_barrier")
    sort_scatter(o)
    o("s_waitcnt lgkmcnt(0)\ns_barrier")
    o("s_branch L_pr\nL_ugemm:")
    XB = [QA, QA + 4, QA + 8, W3 - 2]
    seq = [(ks, rt) for ks in range(8) for rt in range(3)]
    def urd(i):
        ks, rt = seq[i]
        if rt == 0 and ks:
            o(f"v_xor_b32 v{TMP+6}, {64*ks}, v{VXA}")
        o(f"ds_read_b128 {vr(XB[i % 4],4)}, v{TMP+6 if ks else VXA} offset:{rt*8192}")
    for i in range(3):
        urd(i)
    for i, (ks, rt) in enumerate(seq):
        if i + 3 < 24:
            urd(i + 3)
        if rt == 0:
            o(f"s_waitcnt vmcnt({7-ks+1+2*R})")
        o(f"s_waitcnt lgkmcnt({min(3, 23 - i)})")
        c = "0" if ks == 0 else vr(UA+4*rt, 4)
        o(f"v_mfma_f32_16x16x32_bf16 {vr(UA+4*rt,4)}, {vr(W+4*ks,4)}, {vr(XB[i % 4],4)}, {c}")
    o("s_nop 5")
    for h in range(6):
        o(f"v_pk_mul_f32 {vr(UA+2*h,2)}, {vr(UA+2*h,2)}, s[{sSC}:{sSC+1}]")
    if "w2early" in OPT:
        o(f"s_mov_b32 s{sW1}, 1")
        wloads(o, 1, W)
    o(f"s_setpc_b64 s[{sRET}:{sRET+1}]")
    bin_overflow(o)

def main(path):
    o = Asm()
    gen(o)
    hdr = f"""; MPNN edge-MLP + segment sum + node update in one launch (256 co-resident workgroups, one per CU).
; m_in@w_msg is split as P[src] + Q[dst] + e*w3 with P = x@W1, Q = x@W2 (all pre-scaled by -log2e).
;          Hand-offs use write-through stores plus a per-launch tag (published through d_debug).
; @launch grid=(256,1,1) block=(1024,1,1) lds={L_ALLOC}
.amdgcn_target "amdgcn-amd-amdhsa--gfx950"
.text
"""
    desc = f""".section .rodata,"a"
.p2align 6
.amdhsa_kernel {KNAME}
  .amdhsa_next_free_vgpr {NV}
  .amdhsa_next_free_sgpr 102
  .amdhsa_accum_offset {(NV+3)//4*4}
  .amdhsa_group_segment_fixed_size 0
  .amdhsa_kernarg_size 72
  .amdhsa_user_sgpr_count 2
  .amdhsa_user_sgpr_kernarg_segment_ptr 1
  .amdhsa_system_sgpr_workgroup_id_x 1
.end_amdhsa_kernel
"""
    open(path, "w").write(hdr + o.text() + desc)

if __name__ == "__main__":
    if "--stamp" in sys.argv:
        sys.argv.remove("--stamp")
        STAMP = True
    for a in list(sys.argv):
        if a.startswith("--steps="):
            sys.argv.remove(a)
            STEPS = a[8:].split(",")
        if a.startswith("--poll="):
            sys.argv.remove(a)
            STEP_FLAG = int(a[7:])
        if a.startswith("--prio="):
            sys.argv.remove(a)
            PRIO = [int(x) for x in a[7:].split(",")]
        if a.startswith("--kmax="):
            sys.argv.remove(a)
            KMAX = int(a[7:])
        if a.startswith("--opt="):
            sys.argv.remove(a)
            OPT |= set(a[6:].split(","))
    main(sys.argv[1] if len(sys.argv) > 1 else "gather_scatter__mpnn_edge_mlp__graph.s")
```

```python
import sys

N = 10000
WS_WPACK = 0x500000
WS_OVFC = 0x560000
WS_OVF = 0x570000
WS_FLAG = 0x6E0000
WS_CELL = 0x700000
WS_END = 0xB00000
WS_STAMP = 0xC00000
CHUNK = 2500
CAP = 28
NEGL2E = 0xBFB8AA3B
NEGLN2 = 0xBF317218
KNAME = "gather_scatter__mpnn_edge_mlp__graph_kernel"
STAMP = False
STEP_FLAG = 14
STEPS = ["s-1", "pst", "drain", "cell"]
OPT = {"ostage", "o_sc1", "nont"}

class Asm:
    def __init__(self):
        self.l = []
    def __call__(self, s):
        for line in s.strip("\n").split("\n"):
            line = line.strip()
            if line:
                self.l.append(line if line.endswith(":") else "    " + line)
    def text(self):
        l = self.l
        def sub(a_lab, b_lab, pref):
            a = l.index(a_lab); b = l.index(b_lab)
            return l[:a] + [("    s_nop 0" if any(x.strip().startswith(p) for p in pref) else x) for x in l[a:b]] + l[b:]
        if "gplain" in OPT:
            l = [x.replace(" sc1", "") if "s[16:19], 0 offen" in x else x for x in l]
        if "gnt" in OPT:
            l = [x + " nt" if "s[16:19], 0 offen" in x else x for x in l]
        if "noprio" in OPT:
            l = [x for x in l if "s_setprio" not in x]
        if "noloop_ld" in OPT: l = sub("L_top:", "L_call0:", ["buffer_load"])
        return "\n".join(l) + "\n"

def vr(a, n):
    return f"v[{a}:{a+n-1}]" if n > 1 else f"v{a}"

def srd(o, d, lo, hi, size):
    o(f"s_mov_b32 s{d}, s{lo}\ns_mov_b32 s{d+1}, s{hi}\ns_mov_b32 s{d+2}, {size}\ns_mov_b32 s{d+3}, 0x20000")

def stamp(o, i):
    if STAMP:
        if "clk2" in OPT:
            if i in (1, 2):
                o(f"s_memrealtime s[{80+2*i}:{81+2*i}]\ns_memtime s[{84+2*i}:{85+2*i}]\ns_waitcnt lgkmcnt(0)")
            elif i not in (3, 4):
                o(f"s_memrealtime s[{80+2*i}:{81+2*i}]\ns_waitcnt lgkmcnt(0)")
            return
        o(f"s_memrealtime s[{80+2*i}:{81+2*i}]\ns_waitcnt lgkmcnt(0)")

R = 6
KMAX = 24
BT = 36
def tile_consts():
    from math import gcd
    rest = N - 64 * BT
    g = gcd(rest, 192); p, q = rest // g, 192 // g
    n0 = lambda t: BT * t if t <= 64 else 64 * BT + -(-(t - 64) * p // q)
    own = [t for t in range(256) for _ in range(n0(t + 1) - n0(t))]
    M1 = -(-(1 << 23) // BT)
    M2 = -(-(1 << 24) * q // p); C2 = (64 << 24) - 64 * BT * M2
    assert 0 <= C2 and 9999 * M2 + C2 < 1 << 32 and 9999 * M1 < 1 << 32
    assert all(min(d * M1 >> 23, (d * M2 + C2) >> 24) == own[d] for d in range(N))
    for sh in range(14, 24):
        MQ = -(-(1 << sh) // q)
        if (192 * p + q) * MQ < 1 << 32 and all(((j * p + q - 1) * MQ >> sh) == -(-j * p // q) for j in range(193)):
            return p, q, M1, M2, C2, MQ, sh, max(n0(t + 1) - n0(t) for t in range(256))
    raise ValueError
PRIO = [4, 3, 2]
RS = 1040
L_QS = 0
L_AGB = (48 * RS + 511) // 512 * 512
L_HB = L_AGB + 48 * 512
L_IDX = L_HB + 16 * 1024
L_ET = L_IDX + 2064 * 4
L_CNT = (L_ET + 2052 * 16 + 255) // 256 * 256
L_HF = L_CNT + 256
L_XS = (L_HF + 256 + 511) // 512 * 512
L_END = L_XS + 48 * 512
L_IMG = 65536
L_BCNT = 131072
L_PST = 0
L_PK = 65536
L_ALLOC = L_END
assert L_BCNT + 1100 <= L_CNT and L_END <= 163840
RING = 4
A0, A1, Q, T0, T1, E, NN, D, AC, UA = 28, 32, 36, 40, 44, 48, 52, 56, 60, 64
VOVF, VB, IX, AD, LO, VI, VE, VN, VC, VEND, VEL = 76, 78, 79, 80, 81, 82, 83, 84, 85, 86, 126
TMP = 87
W = 94
NV = 127
PA, QA, VXA, VWA, VWS, VTG, W3, TG0, ZR = UA, 48, AD, 36, 38, 76, 62, 60, 44
XFB, WFB = [W, W + 16], [W + 12, W + 28]
VWB = VE
CK0, CK1, CK2 = 34, 35, 37
TAG = 92
sWAVE, sN0, sCNT, sHEAD, sIT, sW1, sCH = 3, 4, 5, 6, 7, 26, 27
sP, sP1, sREM, sSEGE, sSEGS, sNEND, sK, sTOT, sRND, sOB, sOC, sOFF = range(48, 60)
sV0, sV1, sOM, sRET, sSO, sM, sONE, sSC = 60, 62, 64, 66, 68, 70, 72, 74
sM0, sBORN = 69, 65
sT0, sT1, sT2, sBND = 76, 77, 78, 79
sLN2 = 44
REC, RK0, RK1 = 40, 4, 5
CK = TMP + 1

def valu_block(T):
    ex = "\n".join(f"v_exp_f32 v{E+i}, v{T+i}" for i in range(4))
    pk = f"""
v_pk_fma_f32 {vr(NN,2)}, {vr(NN,2)}, {vr(E,2)}, {vr(NN,2)}
v_pk_fma_f32 {vr(NN+2,2)}, {vr(NN+2,2)}, {vr(E+2,2)}, {vr(NN+2,2)}
v_pk_fma_f32 {vr(NN,2)}, {vr(T,2)}, {vr(D,2)}, {vr(NN,2)}
v_pk_fma_f32 {vr(NN+2,2)}, {vr(T+2,2)}, {vr(D+2,2)}, {vr(NN+2,2)}
v_pk_fma_f32 {vr(D,2)}, {vr(D,2)}, {vr(E,2)}, {vr(D,2)}
v_pk_fma_f32 {vr(D+2,2)}, {vr(D+2,2)}, {vr(E+2,2)}, {vr(D+2,2)}
"""
    return ex, pk

def poll(o, tag, soff, count):
    o(f"""
v_lshlrev_b32 v{TMP}, 7, v1
s_mov_b32 s{sT1}, 0
s_mov_b64 exec, {"-1" if count == 64 else hex((1 << count) - 1)}
F_pl{tag}:
buffer_load_dwordx2 {vr(TMP+1,2)}, v{TMP}, s[32:35], {soff} offen sc1
s_add_u32 s{sT1}, s{sT1}, 1
s_waitcnt vmcnt(0)
v_cmpx_ne_u64 vcc, s[100:101], {vr(TMP+1,2)}
s_nop 4
s_cbranch_execz F_pd{tag}
s_sleep 2
s_cmp_lt_u32 s{sT1}, 0x10000
s_cbranch_scc1 F_pl{tag}
F_pd{tag}:
s_mov_b64 exec, -1
""")

def get_tag(o, tag):
    o(f"""
s_mov_b32 s{sT1}, 0
F_tg{tag}:
v_readfirstlane_b32 s100, v{TAG}
v_readfirstlane_b32 s101, v{TAG+1}
s_add_u32 s{sT1}, s{sT1}, 1
s_cmp_ge_u32 s{sT1}, 0x10000
s_cbranch_scc1 F_th{tag}
s_cmp_lt_u32 s{sT1}, 0x100
s_cselect_b32 s{sT0}, s{sBORN}, s100
s_sub_u32 s{sT0}, s100, s{sT0}
s_cmp_lg_u32 s100, 0
s_cselect_b32 s{sT0}, s{sT0}, -1
s_cmp_ge_i32 s{sT0}, 0
s_cbranch_scc1 F_th{tag}
buffer_load_dwordx2 {vr(TAG,2)}, v{VTG}, s[96:99], 0 offen sc1
s_waitcnt vmcnt(0)
s_branch F_tg{tag}
F_th{tag}:
""")

def put_flag(o, soff):
    o(f"""
v_mov_b32 v{TMP+1}, s100
v_mov_b32 v{TMP+2}, s101
s_mov_b64 exec, 1
buffer_store_dwordx2 {vr(TMP+1,2)}, v{VTG}, s[32:35], {soff} offen sc1
s_mov_b64 exec, -1
""")

def sort_rank(o):
    o(f"""
s_lshl_b32 s{sT0}, s{sN0}, 2
s_sub_u32 s{sT0}, {L_CNT}, s{sT0}
v_and_b32 v{TMP}, 0x3fff, v{REC}
v_and_b32 v{TMP+1}, 0x3fff, v{REC+2}
v_mov_b32 v{TMP+3}, 1
v_lshl_add_u32 v{TMP}, v{TMP}, 2, s{sT0}
v_lshl_add_u32 v{TMP+1}, v{TMP+1}, 2, s{sT0}
s_mov_b64 exec, s[{sV0}:{sV0+1}]
ds_add_rtn_u32 v{RK0}, v{TMP}, v{TMP+3}
s_mov_b64 exec, s[{sV1}:{sV1+1}]
ds_add_rtn_u32 v{RK1}, v{TMP+1}, v{TMP+3}
s_mov_b64 exec, -1
v_add_u32 v{TMP+4}, {L_CNT}, v{LO}
v_lshrrev_b32 v{REC}, 5, v{REC}
v_lshrrev_b32 v{REC+2}, 5, v{REC+2}
""")

def sort_scatter(o):
    o(f"""
ds_read_b32 v{TMP+2}, v{TMP+4}
v_and_b32 v{REC}, 0x7ffe00, v{REC}
v_and_b32 v{REC+2}, 0x7ffe00, v{REC+2}
s_mov_b32 s{sT0}, {L_IDX}
s_mov_b32 s{sT1}, {L_ET}
s_waitcnt lgkmcnt(0)
v_add_u32_dpp v{VEND}, v{TMP+2}, v{TMP+2} row_shr:1 row_mask:0xf bank_mask:0xf bound_ctrl:0
s_nop 1
v_add_u32_dpp v{VEND}, v{VEND}, v{VEND} row_shr:2 row_mask:0xf bank_mask:0xf bound_ctrl:0
s_nop 1
v_add_u32_dpp v{VEND}, v{VEND}, v{VEND} row_shr:4 row_mask:0xf bank_mask:0xf bound_ctrl:0
s_nop 1
v_add_u32_dpp v{VEND}, v{VEND}, v{VEND} row_shr:8 row_mask:0xf bank_mask:0xf bound_ctrl:0
s_nop 1
v_add_u32_dpp v{VEND}, v{VEND}, v{VEND} row_bcast:15 row_mask:0xa bank_mask:0xf
s_nop 1
v_add_u32_dpp v{VEND}, v{VEND}, v{VEND} row_bcast:31 row_mask:0xc bank_mask:0xf
v_sub_u32 v{TMP+3}, v{VEND}, v{TMP+2}
v_readlane_b32 s{sTOT}, v{VEND}, 63
ds_bpermute_b32 v{TMP}, v{TMP}, v{TMP+3}
ds_bpermute_b32 v{TMP+1}, v{TMP+1}, v{TMP+3}
s_nop 1
s_add_u32 s{sCH}, s{sTOT}, 15
s_lshr_b32 s{sCH}, s{sCH}, 4
s_mul_i32 s{sP}, s{sCH}, s{sWAVE}
s_add_u32 s{sP1}, s{sP}, s{sCH}
s_min_u32 s{sP}, s{sP}, s{sTOT}
s_min_u32 s{sP1}, s{sP1}, s{sTOT}
s_waitcnt lgkmcnt(0)
v_add_u32 v{TMP}, v{TMP}, v{RK0}
v_add_u32 v{TMP+1}, v{TMP+1}, v{RK1}
v_lshl_add_u32 v{TMP+2}, v{TMP}, 2, s{sT0}
v_lshl_add_u32 v{TMP+3}, v{TMP+1}, 2, s{sT0}
v_lshl_add_u32 v{TMP}, v{TMP}, 4, s{sT1}
v_lshl_add_u32 v{TMP+1}, v{TMP+1}, 4, s{sT1}
s_mov_b64 exec, s[{sV0}:{sV0+1}]
ds_write_b32 v{TMP+2}, v{REC}
ds_write_b16 v{TMP}, v{REC+1} offset:8
ds_write_b16 v{TMP}, v{REC+1} offset:14
s_mov_b64 exec, s[{sV1}:{sV1+1}]
ds_write_b32 v{TMP+3}, v{REC+2}
ds_write_b16 v{TMP+1}, v{REC+3} offset:8
ds_write_b16 v{TMP+1}, v{REC+3} offset:14
s_mov_b64 exec, -1
""")

def zero_cnt(o):
    o(f"v_mov_b32 v{TMP}, 0\nds_write_b32 v{TMP+4}, v{TMP}")

def prime(o):
    PT = T0
    o(f"""
s_lshl_b32 s{sT0}, s{sP}, 2
s_add_u32 s{sT0}, s{sT0}, {L_IDX}
v_mov_b32 v{VI}, s{sT0}
s_lshl_b32 s{sT0}, s{sP}, 4
v_add_u32 v{VE}, s{sT0}, v{VEL}
""")
    for k in range(0, R, 2):
        o(f"ds_read2_b32 {vr(PT+k,2)}, v{VI} offset0:{k} offset1:{k+1}")
    o(f"""
ds_read_b32 v{IX}, v{VI} offset:{4*R}
ds_read2_b32 {vr(A0+2,2)}, v{VE} offset0:0 offset1:2
ds_read2_b32 {vr(A1+2,2)}, v{VE} offset0:4 offset1:6
s_waitcnt lgkmcnt(0)
""")
    for k in range(R):
        B = RING + 4*k
        o(f"buffer_load_dword v{B}, v{PT+k}, s[16:19], 0 offen sc1")
        o(f"buffer_load_dword v{B+1}, v{PT+k}, s[16:19], 0 offen offset:256 sc1")

def wloads(o, mat, wreg, kss=range(8), sa=sT0, sb=sT1, va=TMP+5, setup=True):
    if not setup:
        for ks in kss:
            o(f"buffer_load_dwordx4 {vr(wreg+4*ks,4)}, v{va}, s[32:35], s{sa if ks < 4 else sb} offen offset:{(ks%4)*1024} sc1")
        return
    o(f"""
s_lshl_b32 s{sT0}, s{sWAVE}, 13
s_add_u32 s{sT0}, s{sT0}, {WS_WPACK + mat*131072}
s_add_u32 s{sT1}, s{sT0}, 4096
v_lshlrev_b32 v{TMP+5}, 4, v1
""")
    for ks in range(8):
        o(f"buffer_load_dwordx4 {vr(wreg+4*ks,4)}, v{TMP+5}, s[32:35], s{sT0 if ks < 4 else sT1} offen offset:{(ks%4)*1024} sc1")

DST, SRC, EA, OWN, RK, R0 = 8, 12, 16, 20, 24, 28
EW = [EA, 18, EA + 1, 19]
sBM = 58
def bin_rank(o):
    o(f"v_mov_b32 v{TMP+3}, 1\ns_movk_i32 s57, 256\ns_mov_b64 exec, s[{sBM}:{sBM+1}]")
    for k in range(4):
        o(f"""
v_mad_u32_u24 v{OWN+k}, v{DST+k}, s56, v45
v_mul_u32_u24 v{TMP+4}, s62, v{DST+k}
v_lshrrev_b32 v{OWN+k}, 24, v{OWN+k}
v_lshrrev_b32 v{TMP+4}, 23, v{TMP+4}
v_min_u32 v{OWN+k}, v{OWN+k}, v{TMP+4}
v_lshl_add_u32 v{TMP+4}, v{OWN+k}, 2, s60
ds_add_rtn_u32 v{RK+k}, v{TMP+4}, v{TMP+3}
""")
    for k in range(4):
        o(f"""
v_lshl_or_b32 v{R0+k}, v{SRC+k}, 14, v{DST+k}
v_and_b32 v{TMP+1}, 7, v{OWN+k}
v_lshl_add_u32 v{DST+k}, v{OWN+k}, 8, s61
v_lshl_or_b32 v{DST+k}, v{TMP+1}, 4, v{DST+k}
""")
    o(f"""
v_lshrrev_b32 v18, 16, v{EA}
v_lshrrev_b32 v19, 16, v{EA+1}
s_waitcnt lgkmcnt(0)
v_max3_u32 v{TMP}, v{RK}, v{RK+1}, v{RK+2}
v_max_u32 v{TMP}, v{TMP}, v{RK+3}
v_cmp_le_u32 vcc, {CAP}, v{TMP}
""")
    for k in range(4):
        o(f"""
v_mad_u32_u24 v{SRC+k}, v{RK+k}, 37, s57
v_lshrrev_b32 v{SRC+k}, 8, v{SRC+k}
v_add_lshl_u32 v{SRC+k}, v{SRC+k}, v{RK+k}, 3
v_xor_b32 v{DST+k}, v{SRC+k}, v{DST+k}
""")
    o("s_cbranch_vccnz F_ovf")
    for k in range(4):
        o(f"ds_write2_b32 v{DST+k}, v{R0+k}, v{EW[k]} offset0:0 offset1:1")
    o("F_ovfback:\ns_mov_b64 exec, -1")

def bin_overflow(o):
    o(f"F_ovf:\ns_mul_i32 s50, s2, {CHUNK*8}\ns_add_u32 s50, s50, {WS_OVF}\nv_mov_b32 v{TMP}, {L_BCNT+1024}")
    for k in range(4):
        o(f"""
v_cmp_gt_u32 vcc, {CAP}, v{RK+k}
s_and_saveexec_b64 s[62:63], vcc
ds_write2_b32 v{DST+k}, v{R0+k}, v{EW[k]} offset0:0 offset1:1
s_andn2_b64 exec, s[62:63], exec
s_cbranch_execz F_no{k}
ds_add_rtn_u32 v{TMP+4}, v{TMP}, v{TMP+3}
v_mov_b32 v{TMP+1}, v{R0+k}
v_and_b32 v{TMP+2}, 0xffff, v{EW[k]}
v_lshl_or_b32 v{TMP+2}, v{OWN+k}, 16, v{TMP+2}
s_waitcnt lgkmcnt(0)
v_lshlrev_b32 v{TMP+4}, 3, v{TMP+4}
buffer_store_dwordx2 {vr(TMP+1,2)}, v{TMP+4}, s[32:35], s50 offen sc1
s_waitcnt vmcnt(0)
F_no{k}:
s_mov_b64 exec, s[62:63]
""")
    o("s_branch F_ovfback")

def bin_copy(o):
    o(f"""
v_mov_b32 v31, s100
s_waitcnt lgkmcnt(5)
v_cmp_lt_u32 vcc, 14, v28
v_min_u32 v28, {CAP}, v28
v_cmp_lt_u32 s[62:63], 14, v29
v_min_u32 v29, {CAP}, v29
v_cndmask_b32 v24, v43, v41, vcc
v_cndmask_b32 v25, v43, v41, s[62:63]
s_waitcnt lgkmcnt(4)
v_cndmask_b32 v8, v8, v28, s[22:23]
v_cndmask_b32 v9, v9, v31, s[22:23]
buffer_store_dwordx4 v[8:11], v41, s[32:35], s24 offen sc1
s_waitcnt lgkmcnt(3)
v_cndmask_b32 v12, v12, v29, s[22:23]
v_cndmask_b32 v13, v13, v31, s[22:23]
buffer_store_dwordx4 v[12:15], v41, s[32:35], s25 offen sc1
s_waitcnt lgkmcnt(2)
v_cndmask_b32 v17, v17, v31, s[22:23]
buffer_store_dwordx4 v[16:19], v24, s[32:35], s24 offen offset:128 sc1
s_waitcnt lgkmcnt(1)
v_cndmask_b32 v21, v21, v31, s[22:23]
buffer_store_dwordx4 v[20:23], v25, s[32:35], s25 offen offset:128 sc1
s_cmp_lg_u32 s{sWAVE}, 0
s_cbranch_scc1 F_bc1
s_lshl_b32 s50, s2, 3
s_add_u32 s50, s50, {WS_OVFC}
s_mov_b64 exec, 1
s_waitcnt lgkmcnt(0)
buffer_store_dwordx2 v[30:31], v{VTG}, s[32:35], s50 offen sc1
s_mov_b64 exec, -1
F_bc1:
""")

def gen(o):
    global TP, TQ, M1, M2, C2
    TP, TQ, M1, M2, C2, MQ, SH, MAXROWS = tile_consts()
    X2W = (MAXROWS - 32 + 1) // 2
    XNT = "" if "nont" in OPT else "nt"
    AA = [A0, A1]
    TT = [T0, T1]
    o(f"""
.globl {KNAME}
.p2align 8
.type {KNAME},@function
{KNAME}:
s_cmp_ge_u32 s2, 256
s_cbranch_scc1 L_end
s_load_dwordx2 s[28:29], s[0:1], 0
s_load_dwordx2 s[44:45], s[0:1], 32
s_load_dwordx2 s[36:37], s[0:1], 24
s_load_dwordx2 s[12:13], s[0:1], 16
s_load_dwordx2 s[52:53], s[0:1], 8
s_load_dwordx2 s[40:41], s[0:1], 40
s_load_dwordx2 s[32:33], s[0:1], 64
s_load_dwordx2 s[96:97], s[0:1], 56
s_load_dwordx2 s[20:21], s[0:1], 48
s_memrealtime s[100:101]
""")
    if STAMP: o("s_memrealtime s[80:81]")
    ops = []
    def vm(target):
        return len(ops) - 1 - max(i for i, x in enumerate(ops) if x == target)
    LOC2 = [65536, 81920, 98304, 114688, 32768, 49152, 0, 16384]
    def d1(s, count=True):
        o(f"""
s_add_u32 m0, s{sSO}, {(s & 3) * 16384}
s_add_u32 s{sM0}, s{sSO}, {s*16384}
buffer_load_dwordx4 v{VWS}, s[44:47], s{sM0} offen lds
""")
        if count: ops.append(("d", s))
    def d2(s):
        o(f"""
s_add_u32 m0, s{sSO}, {LOC2[s]}
s_add_u32 s{sM0}, s{sSO}, {131072 + s*16384}
buffer_load_dwordx4 v{VWS}, s[44:47], s{sM0} offen lds
""")
        ops.append(("e", s))
    def dma(p, count=True):
        d1(2*p, count)
        d1(2*p + 1, count)
    o(f"""
v_lshrrev_b32 v2, 6, v0
v_and_b32 v1, 63, v0
s_mul_i32 s{sN0}, s2, {TP}
v_readfirstlane_b32 s{sWAVE}, v2
v_lshrrev_b32 v4, 5, v1
v_and_b32 v6, 31, v1
s_sub_u32 s{sN0}, s{sN0}, {64*TP - (TQ - 1)}
s_add_u32 s{sCNT}, s{sN0}, {TP}
s_mul_i32 s{sN0}, s{sN0}, {MQ}
s_mul_i32 s{sCNT}, s{sCNT}, {MQ}
s_lshr_b32 s{sN0}, s{sN0}, {SH}
s_lshr_b32 s{sCNT}, s{sCNT}, {SH}
s_sub_u32 s{sCNT}, s{sCNT}, s{sN0}
s_add_u32 s{sN0}, s{sN0}, {64*BT}
s_mul_i32 s50, s2, {BT}
s_cmp_lt_u32 s2, 64
s_cselect_b32 s{sN0}, s50, s{sN0}
s_cselect_b32 s{sCNT}, {BT}, s{sCNT}
s_lshl_b32 s50, s{sWAVE}, 1
v_add_u32 v5, s50, v4
v_lshlrev_b32 v2, 4, v0
v_and_b32 v7, 15, v5
v_xor_b32 v7, v7, v6
v_lshlrev_b32 v7, 4, v7
v_lshl_add_u32 v7, v4, 9, v7
v_lshlrev_b32 v{LO}, 2, v1
v_mov_b32 v{VTG}, 0
s_mov_b32 s30, {N*512}
s_mov_b32 s31, 0x20000
s_mov_b32 s46, {513*512}
s_mov_b32 s47, 0x20000
s_mov_b32 s38, 640000
s_mov_b32 s39, 0x20000
s_mov_b32 s14, 640000
s_mov_b32 s15, 0x20000
s_mov_b32 s54, 320000
s_mov_b32 s55, 0x20000
s_mov_b32 s98, 256
s_mov_b32 s99, 0x20000
s_lshl_b32 s{sSO}, s{sWAVE}, 10
s_lshl_b32 s51, s{sN0}, 9
s_add_u32 s51, s51, s{sSO}
s_add_u32 m0, s{sSO}, {L_XS}
s_cmp_ge_u32 s2, 64
s_cbranch_scc1 F_nobl
s_mul_i32 s49, s2, 10000
s_mul_i32 s50, s2, 5000
v_lshlrev_b32 v{TMP}, 3, v0
s_cmp_ge_u32 s{sWAVE}, 10
s_waitcnt lgkmcnt(0)
s_cbranch_scc1 F_nel
buffer_load_dwordx4 {vr(DST,4)}, v2, s[36:39], s49 offen {XNT}
buffer_load_dwordx4 {vr(SRC,4)}, v2, s[12:15], s49 offen {XNT}
buffer_load_dwordx2 {vr(EA,2)}, v{TMP}, s[52:55], s50 offen {XNT}
s_branch F_ne2
F_nel:
s_sub_u32 s50, s{sWAVE}, 10
s_cmp_ge_u32 s50, 2
s_cbranch_scc1 F_ne2
s_lshr_b32 s49, s2, 3
s_lshl_b32 s49, s49, 13
s_lshl_b32 s50, s50, 12
s_add_u32 s49, s49, s50
v_lshlrev_b32 v{TMP}, 6, v1
buffer_load_dword v77, v{TMP}, s[44:47], s49 offen
F_ne2:
v_lshlrev_b32 v{TMP}, 2, v0
v_add_u32 v{TMP}, {L_BCNT}, v{TMP}
s_cmp_ge_u32 s{sWAVE}, 5
s_cbranch_scc1 F_nbz
ds_write_b32 v{TMP}, v{VTG}
F_nbz:
s_waitcnt lgkmcnt(0)
s_barrier
s_add_u32 m0, s{sSO}, {L_XS}
s_cmp_ge_u32 s{sWAVE}, 4
buffer_load_dwordx4 v7, s[28:31], s51 offen {XNT} lds
s_cbranch_scc1 F_nox2b
s_add_u32 m0, s{sSO}, {L_XS + 16384}
s_add_u32 s50, s51, 16384
buffer_load_dwordx4 v7, s[28:31], s50 offen {XNT} lds
F_nox2b:
s_branch F_nx
F_nobl:
""")
    if "ipf" in OPT:
        o(f"""
s_cmp_lt_u32 s2, 240
s_cbranch_scc1 F_nipf
s_sub_u32 s50, s{sWAVE}, 8
s_cmp_ge_u32 s50, 2
s_cbranch_scc1 F_nipf
s_getpc_b64 s[22:23]
s_lshl_b32 s50, s50, 12
v_lshlrev_b32 v{TMP}, 6, v1
v_add_u32 v{TMP}, s50, v{TMP}
global_load_dword v77, v{TMP}, s[22:23]
F_nipf:
""")
    o(f"""
s_cmp_ge_u32 s{sWAVE}, {X2W}
s_waitcnt lgkmcnt(0)
buffer_load_dwordx4 v7, s[28:31], s51 offen {XNT} lds
s_cbranch_scc1 F_nox2
s_add_u32 m0, s{sSO}, {L_XS + 16384}
s_add_u32 s50, s51, 16384
buffer_load_dwordx4 v7, s[28:31], s50 offen {XNT} lds
s_lshl_b32 s49, s2, 4
s_add_u32 s49, s49, s{sWAVE}
s_cmp_lg_u32 s49, 0xff0
s_cbranch_scc1 F_nox2
s_or_b32 s49, s100, 1
v_mov_b32 v{TMP+1}, s49
v_mov_b32 v{TMP+2}, s101
s_mov_b64 exec, 1
buffer_store_dwordx2 {vr(TMP+1,2)}, v{VTG}, s[96:99], 0 offen sc1
s_mov_b64 exec, -1
F_nox2:
s_sub_u32 s50, s{sWAVE}, 6
s_cmp_ge_u32 s50, 2
s_cbranch_scc1 F_ntc
s_lshr_b32 s49, s2, 3
s_lshl_b32 s49, s49, 13
s_lshl_b32 s50, s50, 12
s_add_u32 s49, s49, s50
v_lshlrev_b32 v7, 6, v1
buffer_load_dword v77, v7, s[44:47], s49 offen
F_ntc:
s_mov_b32 s50, {512*512}
buffer_load_dword v{W3}, v{LO}, s[44:47], s50 offen
buffer_load_dword v{W3+1}, v{LO}, s[44:47], s50 offen offset:256
F_nx:
v_and_b32 v{TMP}, 3, v5
v_bfe_u32 v{TMP+1}, v5, 3, 1
v_lshl_or_b32 v{TMP}, v{TMP+1}, 2, v{TMP}
v_lshlrev_b32 v{TMP}, 1, v{TMP}
v_xor_b32 v{TMP}, v{TMP}, v6
v_lshlrev_b32 v{TMP}, 4, v{TMP}
v_lshl_add_u32 v{VWS}, v4, 9, v{TMP}
s_mov_b32 s42, {512*512}
s_mov_b32 s43, 0x20000
s_mov_b32 s34, {WS_END}
s_mov_b32 s35, 0x20000
s_sub_u32 s{sBORN}, s100, 1500
s_sub_u32 s48, s2, 64
""")
    if "early0" in OPT:
        o("s_cmp_lt_u32 s2, 64\ns_cbranch_scc1 F_ne0")
        dma(0)
        o("F_ne0:")
    o(f"""
v_lshlrev_b32 v{VC}, 3, v1
v_lshrrev_b32 v3, 4, v1
v_and_b32 v4, 15, v1
v_xor_b32 v{VXA}, v4, v3
v_lshlrev_b32 v{VXA}, 4, v{VXA}
v_lshl_add_u32 v{VXA}, v4, 9, v{VXA}
v_add_u32 v{VXA}, {L_XS}, v{VXA}
v_bfe_u32 v5, v1, 2, 2
v_and_b32 v6, 3, v1
v_lshl_add_u32 v{VWA}, v3, 3, v5
v_lshlrev_b32 v{VWA}, 9, v{VWA}
v_lshl_add_u32 v{VWA}, v6, 3, v{VWA}
v_and_b32 v7, 1, v3
v_lshl_or_b32 v{TMP}, v7, 2, v5
v_xor_b32 v{TMP}, s{sWAVE}, v{TMP}
v_lshl_add_u32 v{VWA}, v{TMP}, 5, v{VWA}
v_add_u32 v{VWB}, 0x10000, v{VWA}
v_add_u32 v{TMP+4}, {L_CNT}, v{LO}
ds_write2st64_b32 v{TMP+4}, v{VTG}, v{VTG} offset0:0 offset1:1
s_cmp_ge_u32 s48, 16
s_cbranch_scc1 F_npd
s_lshl_b32 s49, s48, 14
s_add_u32 m0, s{sSO}, {L_PK}
s_add_u32 s49, s49, s{sSO}
buffer_load_dwordx4 v{VWS}, s[40:43], s49 offen lds
F_npd:
s_mov_b32 s{sSC}, {NEGL2E:#x}
s_mov_b32 s{sSC+1}, {NEGL2E:#x}
v_lshrrev_b32 v{TMP}, 1, v3
s_lshl_b32 s{sT1}, s{sWAVE}, 1
v_or_b32 v{TMP}, s{sT1}, v{TMP}
v_xor_b32 v{TMP}, v{TMP}, v4
v_lshlrev_b32 v{TMP}, 4, v{TMP}
v_lshl_add_u32 v{VN}, v4, 9, v{TMP}
v_lshl_add_u32 v{VN}, v7, 3, v{VN}
v_add_u32 v{VN}, {L_PST}, v{VN}
v_lshrrev_b32 v{VB}, 5, v0
v_add_u32 v{TMP}, 32, v{VB}
v_cmp_gt_u32 vcc, s{sCNT}, v{TMP}
v_lshlrev_b32 v{VB}, 4, v{VB}
v_xor_b32 v{VB}, v{VB}, v2
v_add_u32 v{VB}, {L_PST}, v{VB}
v_add_u32 v{VI}, 0x4000, v2
v_mov_b32 v{TMP}, 0x7ffffff0
v_cndmask_b32 v{VI}, v{TMP}, v{VI}, vcc
s_cmp_lt_u32 s2, 64
s_cbranch_scc1 F_nd0
""")
    if "early0" in OPT:
        o("s_barrier")
        dma(1)
    else:
        dma(0)
    o(f"""
F_nd0:
v_cmp_eq_u32 vcc, v5, v3
v_and_b32 v{TMP+2}, 1, v1
v_lshlrev_b32 v{TMP+2}, 4, v{TMP+2}
v_mov_b32 v{TMP+3}, 0x3f80
v_lshlrev_b32 v{TMP+3}, v{TMP+2}, v{TMP+3}
v_cndmask_b32 v{TMP+3}, 0, v{TMP+3}, vcc
v_xor_b32 v{VEL}, 2, v6
v_lshlrev_b32 v{VEL}, 2, v{VEL}
v_add_u32 v{VEL}, {L_ET}, v{VEL}
v_mov_b32 v{TMP+2}, 0x30000
v_cndmask_b32 v{VEL}, v{TMP+2}, v{VEL}, vcc
v_cmp_gt_u32 vcc, 2, v6
v_mul_u32_u24 v{CK0}, 7, v5
v_lshl_add_u32 v{CK1}, v6, 1, v{CK0}
v_cndmask_b32 v{A1}, 0, v{TMP+3}, vcc
v_cndmask_b32_e64 v{A1+1}, v{TMP+3}, 0, vcc
v_cmp_eq_u32 vcc, 0, v6
v_add_u32 v{CK2}, -1, v{CK1}
v_mov_b32 v{TMP}, 64
s_movk_i32 s{sT0}, {RS}
v_cndmask_b32 v{CK2}, v{CK2}, v{TMP}, vcc
v_mul_u32_u24 v{IX}, s{sT0}, v4
v_lshl_add_u32 v{IX}, v3, 4, v{IX}
s_lshl_b32 s{sT0}, s{sWAVE}, 6
v_add_u32 v{IX}, s{sT0}, v{IX}
s_mov_b64 s[8:9], s[32:33]
s_mov_b32 s10, {N*512}
s_mov_b32 s11, 0x20000
s_mov_b32 s16, s32
s_or_b32 s17, s33, 0x40000
s_mov_b32 s18, {N*512}
s_mov_b32 s19, 0x800000
s_mov_b32 s{sONE}, 1.0
s_mov_b32 s{sONE+1}, 1.0
s_mov_b32 s{sBND}, 0x7b800000
s_mov_b32 s{sW1}, 0
s_cmp_lt_u32 s2, 64
s_cbranch_scc1 F_bin
""")
    if "early0" not in OPT:
        o("s_barrier")
        dma(1)
    o(f"""
s_branch F_nbr
F_bin:
s_movk_i32 s57, 625
v_cmp_gt_u32 s[{sBM}:{sBM+1}], s57, v0
s_mov_b32 s56, {M2}
s_mov_b32 s62, {M1}
v_mov_b32 v45, {C2}
s_mov_b32 s60, {L_BCNT}
s_mov_b32 s61, {L_IMG}
v_lshrrev_b32 v42, 3, v0
v_and_b32 v43, 7, v0
v_lshlrev_b32 v43, 4, v43
v_lshl_add_u32 v41, v42, 14, v43
v_and_b32 v40, 7, v42
v_lshlrev_b32 v40, 4, v40
v_xor_b32 v40, v40, v43
v_lshl_add_u32 v40, v42, 8, v40
v_add_u32 v40, s61, v40
v_lshl_add_u32 v42, v42, 2, s60
v_and_b32 v43, 48, v43
v_cmp_eq_u32 s[22:23], 0, v43
v_mov_b32 v43, 0x7f000000
v_mov_b32 v44, {L_BCNT+1024}
s_lshl_b32 s24, s2, 8
s_add_u32 s24, s24, {WS_CELL}
s_add_u32 s25, s24, {128*16384}
""")
    if "pre" in STEPS: stamp(o, (1, 2, 3, 4, 6)[STEPS.index("pre")])
    o(f"""
s_cmp_lt_u32 s{sWAVE}, 4
s_waitcnt vmcnt(2)
s_cbranch_scc1 F_be
s_waitcnt vmcnt(1)
F_be:
buffer_load_dwordx2 {vr(TAG,2)}, v{VTG}, s[96:99], 0 offen sc1
s_mov_b32 s50, {512*512}
buffer_load_dword v{W3}, v{LO}, s[44:47], s50 offen
buffer_load_dword v{W3+1}, v{LO}, s[44:47], s50 offen offset:256
""")
    st0 = lambda name: stamp(o, (1, 2, 3, 4, 6)[STEPS.index(name)]) if name in STEPS else None
    st0("edge")
    bin_rank(o)
    st0("rank")
    dma(0, False)
    o(f"""
s_waitcnt lgkmcnt(0)
s_barrier
ds_read2st64_b32 v[28:29], v42 offset0:0 offset1:2
ds_read_b128 v[8:11], v40
ds_read_b128 v[12:15], v40 offset:32768
ds_read_b128 v[16:19], v40 offset:128
ds_read_b128 v[20:23], v40 offset:{32768+128}
ds_read_b32 v30, v44
""")
    dma(1, False)
    o("s_waitcnt vmcnt(6)")
    get_tag(o, "b")
    bin_copy(o)
    o("F_nbr:")
    st0("copy")
    def st(name):
        if name in STEPS: stamp(o, (1, 2, 3, 4, 6)[STEPS.index(name)])
    def reads(ks, loc, xf, wf):
        a = VXA
        if ks:
            a = TMP + 6
            o(f"v_xor_b32 v{a}, {64*ks}, v{VXA}")
        wa, off = (VWA, loc) if loc < 65536 else (VWB, loc - 65536)
        l = [f"ds_read_b64_tr_b16 {vr(wf,2)}, v{wa} offset:{off}\nds_read_b64_tr_b16 {vr(wf+2,2)}, v{wa} offset:{off + 2048}"]
        l += [f"ds_read_b128 {vr(xf+4*rt,4)}, v{a} offset:{rt*8192}" for rt in range(3)]
        return l
    def mfmas(acc, first, xf, wf):
        return [f"v_mfma_f32_16x16x32_bf16 {vr(acc+4*rt,4)}, {vr(wf,4)}, {vr(xf+4*rt,4)}, {'0' if first else vr(acc+4*rt,4)}" for rt in range(3)]
    def weave(mm, rd):
        while rd or mm:
            if mm: o(mm.pop(0))
            if rd: o(rd.pop(0))
    for s in range(-1, 8):
        if s < 7:
            n = vm(("d", s + 1))
            if s <= 2:
                o(f"""
s_cmp_lt_u32 s2, 64
s_cbranch_scc1 F_wc{s+1}
s_waitcnt vmcnt({n + (1 if s >= 0 else 0)})
s_cmp_lt_u32 s48, 16
s_cbranch_scc1 F_wc{s+1}
s_waitcnt vmcnt({n})
F_wc{s+1}:
s_waitcnt vmcnt({n + 4}) lgkmcnt(0)
s_barrier
""")
            else:
                o(f"s_waitcnt vmcnt({n}) lgkmcnt(0)\ns_barrier")
        else:
            o("s_waitcnt lgkmcnt(0)\ns_barrier")
        st(f"s{s}")
        if s == -1:
            o(f"buffer_load_dwordx2 {vr(TG0,2)}, v{VTG}, s[96:99], 0 offen sc1")
            ops.append("tag")
        rd = reads(s + 1, ((s + 1) & 3) * 16384, XFB[(s+1) & 1], WFB[(s+1) & 1]) if s < 7 else []
        weave(mfmas(PA, s == 0, XFB[s & 1], WFB[s & 1]) if s >= 0 else [], rd)
        if 0 <= s <= 3: d1(s + 4)
        if s >= 4: d2(s - 4)
        if s == -1:
            o(f"""
s_cmp_ge_u32 s48, 16
s_cbranch_scc1 F_d0
ds_read_b64_tr_b16 v[4:5], v{VWB}
ds_read_b64_tr_b16 v[6:7], v{VWB} offset:2048
s_lshl_b32 s50, s{sWAVE}, 13
s_and_b32 s49, s48, 7
s_lshl_b32 s49, s49, 10
s_add_u32 s50, s50, s49
s_lshr_b32 s49, s48, 3
s_lshl_b32 s49, s49, 17
s_add_u32 s50, s50, s49
s_add_u32 s50, s50, {WS_WPACK}
v_lshlrev_b32 v12, 4, v1
s_waitcnt lgkmcnt(0)
buffer_store_dwordx4 v[4:7], v12, s[32:35], s50 offen sc1
F_d0:
""")
        if s == 3:
            assert ops.index("tag") < ops.index(("d", 4))
            o(f"s_cmp_ge_u32 s48, 16\ns_cbranch_scc1 F_d5\ns_cmp_lg_u32 s{sWAVE}, 0\ns_cbranch_scc1 F_d5\nv_mov_b64 {vr(TAG,2)}, {vr(TG0,2)}")
            get_tag(o, "p")
            o(f"s_lshl_b32 s{sT0}, s48, 7\ns_add_u32 s{sT0}, s{sT0}, {WS_FLAG + 256*128}")
            put_flag(o, f"s{sT0}")
            o("F_d5:")
    o(f"s_lshl_b32 s{sT2}, s{sN0}, 9\ns_add_u32 s{sK}, s{sT2}, 8192\ns_nop 0")
    for rt in range(3):
        a_ = PA + 4*rt
        o(f"""
v_pk_mul_f32 {vr(a_,2)}, {vr(a_,2)}, s[{sSC}:{sSC+1}]
v_pk_mul_f32 {vr(a_+2,2)}, {vr(a_+2,2)}, s[{sSC}:{sSC+1}]
v_cvt_pk_bf16_f32 v{40+2*rt}, v{a_}, v{a_+1}
v_cvt_pk_bf16_f32 v{40+2*rt+1}, v{a_+2}, v{a_+3}
ds_write_b64 v{VN}, {vr(40+2*rt,2)} offset:{rt*8192}
""")
    o(f"""
s_lshl_b32 s{sOFF}, s2, 14
s_add_u32 s{sOFF}, s{sOFF}, {WS_CELL}
s_mov_b32 s{sOC}, {WS_FLAG + 256*128}
v_lshlrev_b32 v16, 7, v1
v_min_u32 v16, {15*128}, v16
s_cmp_lt_u32 s{sWAVE}, 8
s_waitcnt lgkmcnt(0)
s_barrier
s_cbranch_scc0 F_nps
ds_read_b128 {vr(PA,4)}, v{VB}
ds_read_b128 {vr(PA+4,4)}, v{VB} offset:8192
ds_read_b128 {vr(PA+8,4)}, v{VB} offset:16384
s_waitcnt lgkmcnt(2)
buffer_store_dwordx4 {vr(PA,4)}, v2, s[8:11], s{sT2} offen sc1
s_waitcnt lgkmcnt(1)
buffer_store_dwordx4 {vr(PA+4,4)}, v2, s[8:11], s{sK} offen sc1
s_waitcnt lgkmcnt(0)
buffer_store_dwordx4 {vr(PA+8,4)}, v{VI}, s[8:11], s{sT2} offen sc1
buffer_load_dwordx4 {vr(REC,4)}, v2, s[32:35], s{sOFF} offen sc1
s_waitcnt vmcnt(4)
s_branch F_ps2
F_nps:
s_waitcnt vmcnt(0)
s_cmp_lg_u32 s{sWAVE}, 15
s_cbranch_scc1 F_npk0
buffer_load_dwordx2 v[24:25], v16, s[32:35], s{sOC} offen sc1
F_npk0:
buffer_load_dwordx4 {vr(REC,4)}, v2, s[32:35], s{sOFF} offen sc1
F_ps2:
s_barrier
""")
    st("pst")
    rd = reads(0, LOC2[0], XFB[0], WFB[0])
    o("\n".join(rd))
    o(f"v_mov_b64 {vr(TAG,2)}, {vr(TG0,2)}")
    get_tag(o, "m")
    for s in range(4):
        o("s_waitcnt lgkmcnt(0)")
        rd = reads(s + 1, LOC2[s + 1], XFB[(s+1) & 1], WFB[(s+1) & 1]) if s < 3 else []
        weave(mfmas(QA, s == 0, XFB[s & 1], WFB[s & 1]), rd)
    for t in range(4, 8):
        d2(t)
    o(f"""
v_mov_b64 {vr(ZR,2)}, 0
v_mov_b64 {vr(ZR+2,2)}, 0
v_add_u32 v{VB}, {L_IDX}, v2
v_add_u32 v{VI}, {L_ET}, v2
s_lshl_b32 s12, s{sWAVE}, 13
s_add_u32 s12, s12, {WS_WPACK}
s_add_u32 s13, s12, 4096
v_lshlrev_b32 v{VEND}, 4, v1
s_mov_b32 s{sT2}, 0
s_waitcnt vmcnt(5)
s_cmp_lg_u32 s{sWAVE}, 15
s_cbranch_scc1 F_npk
s_mov_b32 s{sT1}, 0
F_plk:
v_cmp_ne_u64 vcc, s[100:101], v[24:25]
s_add_u32 s{sT1}, s{sT1}, 1
s_cmp_ge_u32 s{sT1}, 0x10000
s_cbranch_scc1 F_npk
s_nop 1
s_cbranch_vccz F_npk
buffer_load_dwordx2 v[24:25], v16, s[32:35], s{sOC} offen sc1
s_waitcnt vmcnt(0)
s_branch F_plk
F_npk:
s_barrier
""")
    st("drain")
    o(f"s_cmp_lg_u32 s{sWAVE}, 0\ns_cbranch_scc1 F_nfp\ns_lshl_b32 s{sT0}, s2, 7\ns_add_u32 s{sT0}, s{sT0}, {WS_FLAG}")
    put_flag(o, f"s{sT0}")
    o("F_nfp:")
    WA = 26
    o(f"v_mov_b32 v{WA}, v{VEND}")
    wl = lambda kss: wloads(o, 0, W, kss, 12, 13, WA, False)
    wl((0, 1))
    o(f"""
ds_write_b128 v{VB}, {vr(ZR,4)}
ds_write_b128 v{VI}, {vr(ZR,4)}
ds_write_b128 v{VI}, {vr(ZR,4)} offset:16384
ds_write_b128 v{VI}, {vr(ZR,4)} offset:16448
s_mov_b32 s{sRND}, 0
s_mov_b64 s[40:41], s[20:21]
s_mov_b32 s42, {N*512}
s_waitcnt vmcnt(6)
F_cl:
v_mov_b32_dpp v{TMP}, v{REC+1} row_newbcast:0 row_mask:0xf bank_mask:0xf
v_mov_b32_dpp v{TMP+1}, v{REC} row_newbcast:0 row_mask:0xf bank_mask:0xf
v_mov_b32_dpp v{TMP+2}, v{REC+1} quad_perm:[0,0,0,0] row_mask:0xf bank_mask:0xf
v_cmp_eq_u32 vcc, s100, v{TMP}
v_cmp_ne_u32 s[{sM}:{sM+1}], s100, v{TMP+2}
s_add_u32 s{sT2}, s{sT2}, 1
v_cndmask_b32 v{TMP+1}, 0, v{TMP+1}, vcc
v_max_u32 v{TMP+3}, 1, v{TMP+1}
v_cmp_lt_u32 vcc, v{CK0}, v{TMP+3}
s_cmp_ge_u32 s{sT2}, 0x10000
s_cbranch_scc1 F_cd
s_and_b64 exec, vcc, s[{sM}:{sM+1}]
s_cbranch_execz F_cd
s_sleep 1
buffer_load_dwordx4 {vr(REC,4)}, v2, s[32:35], s{sOFF} offen sc1
s_mov_b64 exec, -1
s_waitcnt vmcnt(0)
s_branch F_cl
F_cd:
s_mov_b64 exec, -1
v_cmp_gt_u32 s[{sV0}:{sV0+1}], v{TMP+1}, v{CK2}
v_cmp_gt_u32 s[{sV1}:{sV1+1}], v{TMP+1}, v{CK1}
""")
    st("cell")
    sort_rank(o)
    wl((2, 3, 4))
    o("s_waitcnt vmcnt(5) lgkmcnt(0)\ns_barrier")
    st("y")
    XQ, WQ = [8, UA], [20, 28]
    o("\n".join(reads(4, LOC2[4], XQ[0], WQ[0])))
    sort_scatter(o)
    for s in range(4, 8):
        o("s_waitcnt lgkmcnt(0)")
        rd = reads(s + 1, LOC2[s + 1], XQ[(s+1) & 1], WQ[(s+1) & 1]) if s < 7 else []
        weave(mfmas(QA, False, XQ[s & 1], WQ[s & 1]), rd)
    o(f"""
v_mov_b32 v{VE}, v{WA}
v_lshlrev_b32 v{TMP}, 16, v{W3}
v_and_b32 v{TMP+1}, 0xffff0000, v{W3}
v_lshlrev_b32 v{TMP+2}, 16, v{W3+1}
v_and_b32 v{TMP+3}, 0xffff0000, v{W3+1}
v_mul_f32 v{TMP}, s{sSC}, v{TMP}
v_mul_f32 v{TMP+1}, s{sSC}, v{TMP+1}
v_mul_f32 v{TMP+2}, s{sSC}, v{TMP+2}
v_mul_f32 v{TMP+3}, s{sSC}, v{TMP+3}
v_cvt_pk_bf16_f32 v6, v{TMP}, v{TMP+1}
v_cvt_pk_bf16_f32 v7, v{TMP+2}, v{TMP+3}
v_add_u32 v{VB}, {L_AGB}, v2
v_mov_b64 {vr(A0,2)}, {vr(A1,2)}
""")
    for k in range(1, R):
        o(f"v_mov_b64 {vr(RING+4*k+2,2)}, v[6:7]")
    for h in range(6):
        o(f"v_pk_mul_f32 {vr(QA+2*h,2)}, {vr(QA+2*h,2)}, s[{sSC}:{sSC+1}]")
    o(f"""
s_lshl_b32 s{sOC}, s{sWAVE}, 13
s_add_u32 s{sOC}, s{sOC}, {WS_FLAG}
v_lshlrev_b32 v{TMP}, 7, v1
s_cmp_ge_u32 s{sWAVE}, 4
s_cbranch_scc1 F_np1
buffer_load_dwordx2 {vr(TMP+1,2)}, v{TMP}, s[32:35], s{sOC} offen sc1
F_np1:
s_barrier
""")
    st("x")
    for rt in range(3):
        o(f"ds_write_b128 v{IX}, {vr(QA+4*rt,4)} offset:{L_QS + rt*16*RS}")
    o(f"ds_write_b128 v{VB}, {vr(ZR,4)}\nds_write_b128 v{VB}, {vr(ZR,4)} offset:8192")
    st("u")
    o(f"""
s_cmp_ge_u32 s{sWAVE}, 4
s_cbranch_scc1 F_npp
s_mov_b32 s{sT1}, 0
s_waitcnt vmcnt(0)
F_plp:
v_cmpx_ne_u64 vcc, s[100:101], {vr(TMP+1,2)}
s_add_u32 s{sT1}, s{sT1}, 1
s_nop 3
s_cbranch_execz F_pdp
s_cmp_ge_u32 s{sT1}, 0x10000
s_cbranch_scc1 F_pdp
{next((f"s_sleep {x[3:]}" for x in OPT if x.startswith("psl")), "")}
buffer_load_dwordx2 {vr(TMP+1,2)}, v{TMP}, s[32:35], s{sOC} offen sc1
s_waitcnt vmcnt(0)
s_branch F_plp
F_pdp:
s_mov_b64 exec, -1
""")
    o(f"""
F_npp:
""")
    wloads(o, 0, W, (5, 6, 7), 12, 13, VE, False)
    o(f"""
s_mov_b32 s{sT0}, {WS_OVFC}
buffer_load_dwordx2 {vr(VOVF,2)}, v{VC}, s[32:35], s{sT0} offen sc1
s_waitcnt lgkmcnt(0)
s_barrier
L_pr:
""")
    st("b3")
    zero_cnt(o)
    prime(o)
    o(f"""
s_cmp_lg_u32 s{sRND}, 0
s_cbranch_scc1 L_go
s_call_b64 s[{sRET}:{sRET+1}], L_ugemm
L_go:
""")
    st("go")
    stamp(o, 5)
    o(f"""
s_mov_b64 vcc, 0
s_mov_b32 s{sK}, {KMAX}
s_add_u32 s{sRND}, s{sRND}, 1
s_cmp_ge_u32 s{sP}, s{sP1}
s_cbranch_scc1 L_loopdone
v_cmp_eq_u32 s[{sM}:{sM+1}], s{sP}, v{VEND}
s_sub_u32 s{sIT}, s{sP1}, s{sP}
s_add_u32 s{sIT}, s{sIT}, {R-1}
s_mul_i32 s{sIT}, s{sIT}, 171
s_lshr_b32 s{sIT}, s{sIT}, 10
s_cmp_eq_u32 s{sP}, 0
s_cselect_b32 s{sT2}, 1, 0
s_cmp_lg_u64 s[{sM}:{sM+1}], 0
s_cselect_b32 s{sT2}, 1, s{sT2}
s_xor_b32 s{sHEAD}, s{sT2}, 1
s_call_b64 s[{sRET}:{sRET+1}], L_newnode
s_setprio 3
s_waitcnt vmcnt({2*(R-1)}) lgkmcnt(0)
v_mfma_f32_16x16x32_bf16 {vr(T0,4)}, {vr(A0,4)}, {vr(RING,4)}, {vr(Q,4)}
s_nop 5
L_top:
""")
    for k in range(R):
        B = RING + 4*k
        B1 = RING + 4*((k+1) % R)
        ex, pk = valu_block(TT[k & 1])
        o(f"""
s_waitcnt vmcnt({2*(R-2)}) lgkmcnt(0)
v_mfma_f32_16x16x32_bf16 {vr(TT[(k+1)&1],4)}, {vr(AA[(k+1)&1],4)}, {vr(B1,4)}, {vr(Q,4)}
{ex}
buffer_load_dword v{B}, v{IX}, s[16:19], 0 offen sc1
buffer_load_dword v{B+1}, v{IX}, s[16:19], 0 offen offset:256 sc1
ds_read_b32 v{IX}, v{VI} offset:{4*(k+R+1)}
ds_read2_b32 {vr(AA[k&1]+2,2)}, v{VE} offset0:{4*(k+2)} offset1:{4*(k+2)+2}
{pk}
s_sub_u32 s{sREM}, s{sREM}, 1
s_cbranch_scc1 L_call{k}
L_next{k}:
""")
    o(f"""
v_add_u32 v{VI}, {4*R}, v{VI}
v_add_u32 v{VE}, {16*R}, v{VE}
s_sub_u32 s{sIT}, s{sIT}, 1
s_cmp_ge_u32 s{sIT}, {PRIO[0]}
s_cbranch_scc1 L_top
s_setprio 2
s_cmp_ge_u32 s{sIT}, {PRIO[1]}
s_cbranch_scc1 L_top
s_setprio 1
s_cmp_ge_u32 s{sIT}, {PRIO[2]}
s_cbranch_scc1 L_top
s_setprio 0
{"" if "overrun" in OPT else f"v_mov_b32 v{VI}, {L_CNT}"}
s_branch L_top
""")
    for k in range(R):
        B1 = RING + 4*((k+1) % R)
        o(f"""
L_call{k}:
s_call_b64 s[{sRET}:{sRET+1}], L_flush
s_cbranch_scc0 L_special
s_waitcnt lgkmcnt(0)
v_mfma_f32_16x16x32_bf16 {vr(TT[(k+1)&1],4)}, {vr(AA[(k+1)&1],4)}, {vr(B1,4)}, {vr(Q,4)}
s_nop 4
s_branch L_next{k}
""")
    o(f"""
L_flush:
v_rcp_f32 v{E}, v{D}
v_rcp_f32 v{E+1}, v{D+1}
v_rcp_f32 v{E+2}, v{D+2}
v_rcp_f32 v{E+3}, v{D+3}
s_mov_b32 s{sP}, s{sSEGE}
s_cbranch_vccnz L_nochk
v_pk_fma_f32 {vr(CK,2)}, {vr(NN,2)}, 0, {vr(D,2)}
v_pk_fma_f32 {vr(CK+2,2)}, {vr(NN+2,2)}, 0, {vr(D+2,2)}
v_pk_add_f32 {vr(CK,2)}, {vr(CK,2)}, {vr(CK+2,2)}
v_add_f32 v{CK}, v{CK}, v{CK+1}
v_cmp_nle_f32 s[{sM}:{sM+1}], v{CK}, s{sBND}
s_nop 3
s_cmp_eq_u64 s[{sM}:{sM+1}], 0
s_cbranch_scc1 L_nochk
s_mov_b32 s{sP}, s{sSEGS}
s_setpc_b64 s[{sRET}:{sRET+1}]
L_nochk:
v_pk_fma_f32 {vr(AC,2)}, {vr(NN,2)}, {vr(E,2)}, {vr(AC,2)}
v_pk_fma_f32 {vr(AC+2,2)}, {vr(NN+2,2)}, {vr(E+2,2)}, {vr(AC+2,2)}
s_cmp_lg_u32 s{sW1}, 0
s_cbranch_scc1 L_havew
s_mov_b32 s{sW1}, 1
""")
    wloads(o, 1, W)
    o(f"""
L_havew:
s_cmp_eq_u32 s{sP}, s{sNEND}
s_cbranch_scc1 L_fin
s_cmp_lg_u32 s{sP}, s{sP1}
s_cbranch_scc1 L_reinit
s_cmp_lg_u32 s{sHEAD}, 0
s_cbranch_scc1 L_pub
s_mov_b32 s{sT0}, s{sWAVE}
s_mov_b32 s{sT1}, s{sP1}
L_col:
s_add_u32 s{sT0}, s{sT0}, 1
s_lshl_b32 s{sT2}, s{sT0}, 2
s_add_u32 s{sT2}, s{sT2}, {L_HF}
v_mov_b32 v{CK}, s{sT2}
L_poll:
ds_read_b32 v{CK+1}, v{CK}
s_waitcnt lgkmcnt(0)
v_readfirstlane_b32 s{sT2}, v{CK+1}
s_nop 3
s_cmp_eq_u32 s{sT2}, s{sRND}
s_cbranch_scc1 L_got
s_sleep 1
s_branch L_poll
L_got:
s_lshl_b32 s{sT2}, s{sT0}, 10
s_add_u32 s{sT2}, s{sT2}, {L_HB}
v_add_u32 v{CK}, s{sT2}, v{VC}
ds_read2st64_b64 {vr(E,4)}, v{CK} offset0:0 offset1:1
s_add_u32 s{sT1}, s{sT1}, s{sCH}
s_waitcnt lgkmcnt(0)
v_pk_add_f32 {vr(AC,2)}, {vr(AC,2)}, {vr(E,2)}
v_pk_add_f32 {vr(AC+2,2)}, {vr(AC+2,2)}, {vr(E+2,2)}
s_cmp_lt_u32 s{sT1}, s{sNEND}
s_cbranch_scc1 L_col
s_branch L_wr
L_fin:
s_cmp_lg_u32 s{sHEAD}, 0
s_cbranch_scc1 L_pub
L_wr:
v_cvt_pk_bf16_f32 v{E}, v{AC}, v{AC+1}
v_cvt_pk_bf16_f32 v{E+1}, v{AC+2}, v{AC+3}
ds_write2st64_b32 v{VB}, v{E}, v{E+1} offset0:0 offset1:1
L_more:
s_mov_b32 s{sHEAD}, 0
s_cmp_lg_u32 s{sP}, s{sP1}
s_cbranch_scc1 L_newnode
s_setpc_b64 s[{sRET}:{sRET+1}]
L_pub:
s_lshl_b32 s{sT2}, s{sWAVE}, 10
s_add_u32 s{sT2}, s{sT2}, {L_HB}
v_add_u32 v{CK}, s{sT2}, v{VC}
s_lshl_b32 s{sT2}, s{sWAVE}, 2
s_add_u32 s{sT2}, s{sT2}, {L_HF}
v_mov_b32 v{CK+1}, s{sT2}
v_mov_b32 v{CK+2}, s{sRND}
ds_write2st64_b64 v{CK}, {vr(AC,2)}, {vr(AC+2,2)} offset0:0 offset1:1
s_waitcnt lgkmcnt(0)
ds_write_b32 v{CK+1}, v{CK+2}
s_branch L_more
L_old:
s_cmp_lg_u32 s{sHEAD}, 0
s_cbranch_scc1 L_reinit
ds_read2st64_b32 {vr(E,2)}, v{VB} offset0:0 offset1:1
s_waitcnt lgkmcnt(0)
v_lshlrev_b32 v{AC}, 16, v{E}
v_and_b32 v{AC+1}, 0xffff0000, v{E}
v_lshlrev_b32 v{AC+2}, 16, v{E+1}
v_and_b32 v{AC+3}, 0xffff0000, v{E+1}
s_branch L_reinit
L_newnode:
v_cmp_ge_u32 s[{sM}:{sM+1}], s{sP}, v{VEND}
v_mov_b64 {vr(AC,2)}, 0
v_mov_b64 {vr(AC+2,2)}, 0
s_nop 1
s_bcnt1_i32_b64 s{sT0}, s[{sM}:{sM+1}]
s_mul_i32 s{sT1}, s{sT0}, {RS}
v_readlane_b32 s{sNEND}, v{VEND}, s{sT0}
v_add_u32 v{VN}, s{sT1}, v{VC}
ds_read2st64_b64 {vr(Q,4)}, v{VN} offset0:0 offset1:1
s_and_b32 s{sT1}, s{sT0}, 15
s_lshl_b32 s{sT1}, s{sT1}, 4
s_lshl_b32 s{sT0}, s{sT0}, 9
s_or_b32 s{sT0}, s{sT0}, s{sT1}
s_add_u32 s{sT0}, s{sT0}, {L_AGB}
v_xor_b32 v{VB}, s{sT0}, v{LO}
s_cmp_lg_u32 s{sRND}, 1
s_cbranch_scc1 L_old
L_reinit:
v_mov_b64 {vr(NN,2)}, 0
v_mov_b64 {vr(NN+2,2)}, 0
v_mov_b64 {vr(D,2)}, s[{sONE}:{sONE+1}]
v_mov_b64 {vr(D+2,2)}, s[{sONE}:{sONE+1}]
s_mov_b32 s{sSEGS}, s{sP}
s_add_u32 s{sSEGE}, s{sP}, s{sK}
s_min_u32 s{sSEGE}, s{sSEGE}, s{sNEND}
s_min_u32 s{sSEGE}, s{sSEGE}, s{sP1}
s_sub_u32 s{sREM}, s{sSEGE}, s{sP}
s_sub_u32 s{sREM}, s{sREM}, 1
s_cmp_eq_u32 s{sP}, s{sP}
s_setpc_b64 s[{sRET}:{sRET+1}]
L_special:
s_cmp_eq_u32 s{sP}, s{sP1}
s_cbranch_scc1 L_loopdone
s_mov_b64 vcc, -1
s_mov_b32 s{sK}, 1
s_waitcnt vmcnt(0) lgkmcnt(0)
s_call_b64 s[{sRET}:{sRET+1}], L_reinit
L_slow:
s_lshl_b32 s{sT0}, s{sP}, 2
s_add_u32 s{sT0}, s{sT0}, {L_IDX}
v_mov_b32 v{VI}, s{sT0}
s_lshl_b32 s{sT0}, s{sP}, 4
v_add_u32 v{VE}, s{sT0}, v{VEL}
ds_read_b32 v{IX}, v{VI}
ds_read2_b32 {vr(A0+2,2)}, v{VE} offset0:0 offset1:2
s_waitcnt lgkmcnt(0)
buffer_load_dword v{RING}, v{IX}, s[16:19], 0 offen sc1
buffer_load_dword v{RING+1}, v{IX}, s[16:19], 0 offen offset:256 sc1
s_waitcnt vmcnt(0)
v_mfma_f32_16x16x32_bf16 {vr(T0,4)}, {vr(A0,4)}, {vr(RING,4)}, {vr(Q,4)}
s_nop 7
v_min_f32 v{T0}, 0x42fc0000, v{T0}
v_min_f32 v{T0+1}, 0x42fc0000, v{T0+1}
v_min_f32 v{T0+2}, 0x42fc0000, v{T0+2}
v_min_f32 v{T0+3}, 0x42fc0000, v{T0+3}
{valu_block(T0)[0]}
{valu_block(T0)[1]}
s_call_b64 s[{sRET}:{sRET+1}], L_flush
s_cbranch_scc1 L_slow
L_loopdone:
""")
    st("le")
    if len(STEPS) < 5: stamp(o, 6)
    o(f"""
s_setprio 0
s_cmp_lg_u32 s{sW1}, 0
s_cbranch_scc1 L_ld2
s_mov_b32 s{sW1}, 1
""")
    wloads(o, 1, W)
    o(f"""
L_ld2:
s_cmp_lg_u32 s{sRND}, 1
s_cbranch_scc1 L_rn0
s_mov_b32 s{sOB}, 0
s_mov_b32 s{sT0}, {WS_OVFC}
L_ov:
s_waitcnt vmcnt(0)
v_cmp_ne_u32 vcc, s100, v{VOVF+1}
v_cmp_ne_u32 s[{sOM}:{sOM+1}], 0, v{VOVF}
s_add_u32 s{sOB}, s{sOB}, 1
s_cmp_ge_u32 s{sOB}, 0x10000
s_cbranch_scc1 L_ovd
s_nop 0
s_cbranch_vccz L_ovd
buffer_load_dwordx2 {vr(VOVF,2)}, v{VC}, s[32:35], s{sT0} offen sc1
s_branch L_ov
L_ovd:
s_mov_b32 s{sOB}, 0
L_rn0:
v_and_b32 v{TMP}, 15, v1
v_xor_b32 v{TMP+1}, v{TMP}, v3
v_lshlrev_b32 v{TMP+1}, 4, v{TMP+1}
v_lshl_add_u32 v{TMP+1}, v{TMP}, 9, v{TMP+1}
s_waitcnt vmcnt(0)
s_cmp_eq_u64 s[{sOM}:{sOM+1}], 0
s_cbranch_scc0 L_round
""")
    o(f"v_add_u32 v4, {L_AGB}, v{TMP+1}")
    for ks in range(1, 8):
        o(f"v_xor_b32 v{4+ks}, {64*ks}, v4")
    o(f"""
v_add_u32 v{TMP+2}, s{sN0}, v{TMP}
v_lshlrev_b32 v{TMP+2}, 9, v{TMP+2}
v_lshl_add_u32 v{TMP+2}, v3, 3, v{TMP+2}
s_lshl_b32 s{sT0}, s{sWAVE}, 5
s_add_u32 s{sT1}, s{sT0}, 8192
s_add_u32 s{sT2}, s{sT0}, 16384
s_sub_u32 s{sCNT}, s{sCNT}, 32
v_cmp_gt_u32 s[{sM}:{sM+1}], s{sCNT}, v{TMP}
v_mov_b32 v12, s{sSC}
""")
    if "ostage" in OPT:
        o(f"""
v_lshrrev_b32 v13, 1, v3
s_lshl_b32 s{sT1}, s{sWAVE}, 1
v_or_b32 v13, s{sT1}, v13
v_xor_b32 v13, v13, v{TMP}
v_lshlrev_b32 v13, 4, v13
v_lshl_add_u32 v13, v{TMP}, 9, v13
v_and_b32 v14, 1, v3
v_lshl_add_u32 v13, v14, 3, v13
v_lshrrev_b32 v14, 5, v0
v_cmp_gt_u32 vcc, s{sCNT}, v14
v_and_b32 v14, 15, v14
v_lshlrev_b32 v14, 4, v14
v_xor_b32 v14, v14, v2
v_add_u32 v15, 0x4000, v2
v_mov_b32 v16, 0x7ffffff0
s_lshl_b32 s{sT0}, s{sN0}, 9
v_cndmask_b32 v15, v16, v15, vcc
""")
    o("s_waitcnt lgkmcnt(0)\ns_barrier")
    st("fb")
    OSF = "sc1" if "o_sc1" in OPT else "nt" if "o_nt" in OPT else "sc1 nt" if "o_sc1nt" in OPT else ""
    FB = [T0, T1, E, NN]
    def rd(i):
        o(f"ds_read_b128 {vr(FB[i % 4],4)}, v{4 + (i & 7)} offset:{(i >> 3)*8192}")
    def silu(rt):
        a, t = UA + 4*rt, D
        l = [f"v_exp_f32 v{t+i}, v{a+i}" for i in range(4)]
        l += [f"v_fma_f32 v{t+i}, v{t+i}, v12, v12" for i in range(4)]
        l += [f"v_rcp_f32 v{t+i}, v{t+i}" for i in range(4)]
        l += [f"v_mul_f32 v{a+i}, v{a+i}, v{t+i}" for i in range(4)]
        l += [f"v_cvt_pk_bf16_f32 v{a}, v{a}, v{a+1}", f"v_cvt_pk_bf16_f32 v{a+1}, v{a+2}, v{a+3}"]
        if "ostage" in OPT:
            l.append(f"ds_write_b64 v13, {vr(a,2)} offset:{rt*8192}")
            return l
        if rt == 2:
            l.append(f"s_mov_b64 exec, s[{sM}:{sM+1}]")
        l.append(f"buffer_store_dwordx2 {vr(a,2)}, v{TMP+2}, s[40:43], s{[sT0,sT1,sT2][rt]} offen {OSF}")
        return l
    for i in range(3):
        rd(i)
    pend = []
    for i in range(24):
        rt, ks = i >> 3, i & 7
        if i + 3 < 24:
            rd(i + 3)
        o(f"s_waitcnt lgkmcnt({min(3, 23 - i)})")
        o(f"v_mfma_f32_16x16x32_bf16 {vr(UA+4*rt,4)}, {vr(W+4*ks,4)}, {vr(FB[i % 4],4)}, {vr(UA+4*rt,4)}")
        if ks == 2 and rt > 0:
            pend = silu(rt - 1)
        n = 4 if ks < 7 else len(pend)
        o("\n".join(pend[:n]))
        pend = pend[n:]
    o("s_nop 7")
    st("fg")
    o("\n".join(silu(2)))
    if "ostage" in OPT:
        o(f"""
s_waitcnt lgkmcnt(0)
s_barrier
ds_read_b128 v[16:19], v14
ds_read_b128 v[20:23], v14 offset:16384
s_waitcnt lgkmcnt(1)
buffer_store_dwordx4 v[16:19], v2, s[40:43], s{sT0} offen {OSF}
s_cmp_ge_u32 s{sWAVE}, {X2W}
s_cbranch_scc1 L_os
s_waitcnt lgkmcnt(0)
buffer_store_dwordx4 v[20:23], v15, s[40:43], s{sT0} offen {OSF}
L_os:
""")
    st("fs")
    if STAMP:
        o(f"""
s_waitcnt vmcnt(0)
s_memrealtime s[94:95]
s_mov_b64 exec, 1
s_lshl_b32 s26, s2, 4
s_add_u32 s26, s26, s{sWAVE}
s_lshl_b32 s26, s26, 5
s_add_u32 s26, s26, {WS_STAMP + 0x100000}
s_mov_b32 s34, 0x1000000
v_mov_b32 v0, 0
s_waitcnt lgkmcnt(0)
""")
        xd = next((x for x in OPT if x.startswith("xdel")), None)
        if xd:
            k = int(xd[4:])
            sel = "s_cmp_lt_u32 s2, 64\ns_cselect_b32 s26, 0, s26" if "xrest" in OPT else ""
            o(f"""
s_sub_u32 s26, s{80+2*k}, s80
{sel}
s_mul_i32 s26, s26, 10
s_add_u32 s26, s26, s94
X_spin:
s_memrealtime s[92:93]
s_waitcnt lgkmcnt(0)
s_sub_u32 s27, s92, s26
s_cmp_lt_i32 s27, 0
s_cbranch_scc1 X_spin
s_endpgm
""")
        for i in range(8):
            o(f"v_mov_b32 v{4+i}, s{80+2*i}")
        if "dbgst" in OPT:
            o("v_not_b32 v12, v4\nv_not_b32 v13, v9\nv_not_b32 v14, v5\nv_not_b32 v15, v10")
            for i in range(12):
                o(f"buffer_atomic_umax v{4+i}, v0, s[96:99], 0 offen offset:{8+4*i} sc1")
        else:
            o("buffer_store_dwordx4 v[4:7], v0, s[32:35], s26 offen\nbuffer_store_dwordx4 v[8:11], v0, s[32:35], s26 offen offset:16")
    o(f"""
L_end:
s_endpgm
L_round:
s_waitcnt lgkmcnt(0)
s_barrier
s_ff1_i32_b64 s{sT0}, s[{sOM}:{sOM+1}]
s_mul_i32 s{sT1}, s{sT0}, {CHUNK*8}
v_readlane_b32 s{sOC}, v{VOVF}, s{sT0}
s_lshl_b32 s{sT2}, s{sOB}, 3
s_add_u32 s{sT1}, s{sT1}, s{sT2}
s_add_u32 s{sT1}, s{sT1}, {WS_OVF}
buffer_load_dwordx4 {vr(REC,4)}, v2, s[32:35], s{sT1} offen sc1
v_lshlrev_b32 v{TMP}, 1, v0
v_add_u32 v{TMP}, s{sOB}, v{TMP}
v_add_u32 v{TMP+1}, 1, v{TMP}
v_cmp_gt_u32 s[{sV0}:{sV0+1}], s{sOC}, v{TMP}
v_cmp_gt_u32 s[{sV1}:{sV1+1}], s{sOC}, v{TMP+1}
s_add_u32 s{sOB}, s{sOB}, 2048
s_cmp_lt_u32 s{sOB}, s{sOC}
s_cbranch_scc1 L_rn2
s_bitset0_b64 s[{sOM}:{sOM+1}], s{sT0}
s_mov_b32 s{sOB}, 0
L_rn2:
s_waitcnt vmcnt(0)
v_lshrrev_b32 v{TMP}, 16, v{REC+1}
v_lshrrev_b32 v{TMP+1}, 16, v{REC+3}
v_cmp_eq_u32 s[{sM}:{sM+1}], s2, v{TMP}
s_nop 3
s_and_b64 s[{sV0}:{sV0+1}], s[{sV0}:{sV0+1}], s[{sM}:{sM+1}]
v_cmp_eq_u32 s[{sM}:{sM+1}], s2, v{TMP+1}
s_nop 3
s_and_b64 s[{sV1}:{sV1+1}], s[{sV1}:{sV1+1}], s[{sM}:{sM+1}]
""")
    sort_rank(o)
    o("s_waitcnt lgkmcnt(0)\ns_barrier")
    sort_scatter(o)
    o("s_waitcnt lgkmcnt(0)\ns_barrier")
    o("s_branch L_pr\nL_ugemm:")
    XB = [QA, QA + 4, QA + 8, W3 - 2]
    seq = [(ks, rt) for ks in range(8) for rt in range(3)]
    def urd(i):
        ks, rt = seq[i]
        if rt == 0 and ks:
            o(f"v_xor_b32 v{TMP+6}, {64*ks}, v{VXA}")
        o(f"ds_read_b128 {vr(XB[i % 4],4)}, v{TMP+6 if ks else VXA} offset:{rt*8192}")
    for i in range(3):
        urd(i)
    for i, (ks, rt) in enumerate(seq):
        if i + 3 < 24:
            urd(i + 3)
        if rt == 0:
            o(f"s_waitcnt vmcnt({7-ks+1+2*R})")
        o(f"s_waitcnt lgkmcnt({min(3, 23 - i)})")
        c = "0" if ks == 0 else vr(UA+4*rt, 4)
        o(f"v_mfma_f32_16x16x32_bf16 {vr(UA+4*rt,4)}, {vr(W+4*ks,4)}, {vr(XB[i % 4],4)}, {c}")
    o("s_nop 5")
    for h in range(6):
        o(f"v_pk_mul_f32 {vr(UA+2*h,2)}, {vr(UA+2*h,2)}, s[{sSC}:{sSC+1}]")
    if "w2early" in OPT:
        o(f"s_mov_b32 s{sW1}, 1")
        wloads(o, 1, W)
    o(f"s_setpc_b64 s[{sRET}:{sRET+1}]")
    bin_overflow(o)

def main(path):
    o = Asm()
    gen(o)
    hdr = f"""; MPNN edge-MLP + segment sum + node update in one launch (256 co-resident workgroups, one per CU).
; m_in@w_msg is split as P[src] + Q[dst] + e*w3 with P = x@W1, Q = x@W2 (all pre-scaled by -log2e).
;          Hand-offs use write-through stores plus a per-launch tag (published through d_debug).
; @launch grid=(256,1,1) block=(1024,1,1) lds={L_ALLOC}
.amdgcn_target "amdgcn-amd-amdhsa--gfx950"
.text
"""
    desc = f""".section .rodata,"a"
.p2align 6
.amdhsa_kernel {KNAME}
  .amdhsa_next_free_vgpr {NV}
  .amdhsa_next_free_sgpr 102
  .amdhsa_accum_offset {(NV+3)//4*4}
  .amdhsa_group_segment_fixed_size 0
  .amdhsa_kernarg_size 72
  .amdhsa_user_sgpr_count 2
  .amdhsa_user_sgpr_kernarg_segment_ptr 1
  .amdhsa_system_sgpr_workgroup_id_x 1
.end_amdhsa_kernel
"""
    open(path, "w").write(hdr + o.text() + desc)

if __name__ == "__main__":
    if "--stamp" in sys.argv:
        sys.argv.remove("--stamp")
        STAMP = True
    for a in list(sys.argv):
        if a.startswith("--steps="):
            sys.argv.remove(a)
            STEPS = a[8:].split(",")
        if a.startswith("--poll="):
            sys.argv.remove(a)
            STEP_FLAG = int(a[7:])
        if a.startswith("--prio="):
            sys.argv.remove(a)
            PRIO = [int(x) for x in a[7:].split(",")]
        if a.startswith("--kmax="):
            sys.argv.remove(a)
            KMAX = int(a[7:])
        if a.startswith("--bt="):
            sys.argv.remove(a)
            BT = int(a[5:])
        if a.startswith("--opt="):
            sys.argv.remove(a)
            OPT |= set(a[6:].split(","))
    main(sys.argv[1] if len(sys.argv) > 1 else "gather_scatter__mpnn_edge_mlp__graph.s")
```

```python
import sys

N = 10000
WS_WPACK = 0x500000
WS_OVFC = 0x560000
WS_OVF = 0x570000
WS_FLAG = 0x6E0000
WS_CELL = 0x700000
WS_END = 0xB00000
WS_STAMP = 0xC00000
CHUNK = 2500
CAP = 28
NEGL2E = 0xBFB8AA3B
NEGLN2 = 0xBF317218
KNAME = "gather_scatter__mpnn_edge_mlp__graph_kernel"
STAMP = False
STEP_FLAG = 14
STEPS = ["s-1", "pst", "drain", "cell"]
OPT = {"ostage", "o_sc1", "nont"}

class Asm:
    def __init__(self):
        self.l = []
    def __call__(self, s):
        for line in s.strip("\n").split("\n"):
            line = line.strip()
            if line:
                self.l.append(line if line.endswith(":") else "    " + line)
    def text(self):
        l = self.l
        def sub(a_lab, b_lab, pref):
            a = l.index(a_lab); b = l.index(b_lab)
            return l[:a] + [("    s_nop 0" if any(x.strip().startswith(p) for p in pref) else x) for x in l[a:b]] + l[b:]
        if "gplain" in OPT:
            l = [x.replace(" sc1", "") if "s[16:19], 0 offen" in x else x for x in l]
        if "gnt" in OPT:
            l = [x + " nt" if "s[16:19], 0 offen" in x else x for x in l]
        if "noprio" in OPT:
            l = [x for x in l if "s_setprio" not in x]
        if "noloop_ld" in OPT: l = sub("L_top:", "L_call0:", ["buffer_load"])
        return "\n".join(l) + "\n"

def vr(a, n):
    return f"v[{a}:{a+n-1}]" if n > 1 else f"v{a}"

def srd(o, d, lo, hi, size):
    o(f"s_mov_b32 s{d}, s{lo}\ns_mov_b32 s{d+1}, s{hi}\ns_mov_b32 s{d+2}, {size}\ns_mov_b32 s{d+3}, 0x20000")

def stamp(o, i):
    if STAMP:
        if "clk2" in OPT:
            if i in (1, 2):
                o(f"s_memrealtime s[{80+2*i}:{81+2*i}]\ns_memtime s[{84+2*i}:{85+2*i}]\ns_waitcnt lgkmcnt(0)")
            elif i not in (3, 4):
                o(f"s_memrealtime s[{80+2*i}:{81+2*i}]\ns_waitcnt lgkmcnt(0)")
            return
        o(f"s_memrealtime s[{80+2*i}:{81+2*i}]\ns_waitcnt lgkmcnt(0)")

R = 6
KMAX = 24
BT = 36
UNR = 1
def tile_consts():
    from math import gcd
    rest = N - 64 * BT
    g = gcd(rest, 192); p, q = rest // g, 192 // g
    n0 = lambda t: BT * t if t <= 64 else 64 * BT + -(-(t - 64) * p // q)
    own = [t for t in range(256) for _ in range(n0(t + 1) - n0(t))]
    M1 = -(-(1 << 23) // BT)
    M2 = -(-(1 << 24) * q // p); C2 = (64 << 24) - 64 * BT * M2
    assert 0 <= C2 and 9999 * M2 + C2 < 1 << 32 and 9999 * M1 < 1 << 32
    assert all(min(d * M1 >> 23, (d * M2 + C2) >> 24) == own[d] for d in range(N))
    for sh in range(14, 24):
        MQ = -(-(1 << sh) // q)
        if (192 * p + q) * MQ < 1 << 32 and all(((j * p + q - 1) * MQ >> sh) == -(-j * p // q) for j in range(193)):
            return p, q, M1, M2, C2, MQ, sh, max(n0(t + 1) - n0(t) for t in range(256))
    raise ValueError
PRIO = [4, 3, 2]
RS = 1040
L_QS = 0
L_AGB = (48 * RS + 511) // 512 * 512
L_HB = L_AGB + 48 * 512
L_IDX = L_HB + 16 * 1024
L_ET = L_IDX + 2064 * 4
L_CNT = (L_ET + 2052 * 16 + 255) // 256 * 256
L_HF = L_CNT + 256
L_XS = (L_HF + 256 + 511) // 512 * 512
L_END = L_XS + 48 * 512
L_IMG = 65536
L_BCNT = 131072
L_PST = 0
L_PK = 65536
L_ALLOC = L_END
assert L_BCNT + 1100 <= L_CNT and L_END <= 163840
RING = 4
A0, A1, Q, T0, T1, E, NN, D, AC, UA = 28, 32, 36, 40, 44, 48, 52, 56, 60, 64
VOVF, VB, IX, AD, LO, VI, VE, VN, VC, VEND, VEL = 76, 78, 79, 80, 81, 82, 83, 84, 85, 86, 126
TMP = 87
W = 94
NV = 127
PA, QA, VXA, VWA, VWS, VTG, W3, TG0, ZR = UA, 48, AD, 36, 38, 76, 62, 60, 44
XFB, WFB = [W, W + 16], [W + 12, W + 28]
VWB = VE
CK0, CK1, CK2 = 34, 35, 37
TAG = 92
sWAVE, sN0, sCNT, sHEAD, sIT, sW1, sCH = 3, 4, 5, 6, 7, 26, 27
sP, sP1, sREM, sSEGE, sSEGS, sNEND, sK, sTOT, sRND, sOB, sOC, sOFF = range(48, 60)
sV0, sV1, sOM, sRET, sSO, sM, sONE, sSC = 60, 62, 64, 66, 68, 70, 72, 74
sM0, sBORN = 69, 65
sT0, sT1, sT2, sBND = 76, 77, 78, 79
sLN2 = 44
REC, RK0, RK1 = 40, 4, 5
CK = TMP + 1

def valu_block(T):
    ex = "\n".join(f"v_exp_f32 v{E+i}, v{T+i}" for i in range(4))
    pk = f"""
v_pk_fma_f32 {vr(NN,2)}, {vr(NN,2)}, {vr(E,2)}, {vr(NN,2)}
v_pk_fma_f32 {vr(NN+2,2)}, {vr(NN+2,2)}, {vr(E+2,2)}, {vr(NN+2,2)}
v_pk_fma_f32 {vr(NN,2)}, {vr(T,2)}, {vr(D,2)}, {vr(NN,2)}
v_pk_fma_f32 {vr(NN+2,2)}, {vr(T+2,2)}, {vr(D+2,2)}, {vr(NN+2,2)}
v_pk_fma_f32 {vr(D,2)}, {vr(D,2)}, {vr(E,2)}, {vr(D,2)}
v_pk_fma_f32 {vr(D+2,2)}, {vr(D+2,2)}, {vr(E+2,2)}, {vr(D+2,2)}
"""
    return ex, pk

def poll(o, tag, soff, count):
    o(f"""
v_lshlrev_b32 v{TMP}, 7, v1
s_mov_b32 s{sT1}, 0
s_mov_b64 exec, {"-1" if count == 64 else hex((1 << count) - 1)}
F_pl{tag}:
buffer_load_dwordx2 {vr(TMP+1,2)}, v{TMP}, s[32:35], {soff} offen sc1
s_add_u32 s{sT1}, s{sT1}, 1
s_waitcnt vmcnt(0)
v_cmpx_ne_u64 vcc, s[100:101], {vr(TMP+1,2)}
s_nop 4
s_cbranch_execz F_pd{tag}
s_sleep 2
s_cmp_lt_u32 s{sT1}, 0x10000
s_cbranch_scc1 F_pl{tag}
F_pd{tag}:
s_mov_b64 exec, -1
""")

def get_tag(o, tag):
    o(f"""
s_mov_b32 s{sT1}, 0
F_tg{tag}:
v_readfirstlane_b32 s100, v{TAG}
v_readfirstlane_b32 s101, v{TAG+1}
s_add_u32 s{sT1}, s{sT1}, 1
s_cmp_ge_u32 s{sT1}, 0x10000
s_cbranch_scc1 F_th{tag}
s_cmp_lt_u32 s{sT1}, 0x100
s_cselect_b32 s{sT0}, s{sBORN}, s100
s_sub_u32 s{sT0}, s100, s{sT0}
s_cmp_lg_u32 s100, 0
s_cselect_b32 s{sT0}, s{sT0}, -1
s_cmp_ge_i32 s{sT0}, 0
s_cbranch_scc1 F_th{tag}
buffer_load_dwordx2 {vr(TAG,2)}, v{VTG}, s[96:99], 0 offen sc1
s_waitcnt vmcnt(0)
s_branch F_tg{tag}
F_th{tag}:
""")

def put_flag(o, soff):
    o(f"""
v_mov_b32 v{TMP+1}, s100
v_mov_b32 v{TMP+2}, s101
s_mov_b64 exec, 1
buffer_store_dwordx2 {vr(TMP+1,2)}, v{VTG}, s[32:35], {soff} offen sc1
s_mov_b64 exec, -1
""")

def sort_rank(o):
    o(f"""
s_lshl_b32 s{sT0}, s{sN0}, 2
s_sub_u32 s{sT0}, {L_CNT}, s{sT0}
v_and_b32 v{TMP}, 0x3fff, v{REC}
v_and_b32 v{TMP+1}, 0x3fff, v{REC+2}
v_mov_b32 v{TMP+3}, 1
v_lshl_add_u32 v{TMP}, v{TMP}, 2, s{sT0}
v_lshl_add_u32 v{TMP+1}, v{TMP+1}, 2, s{sT0}
s_mov_b64 exec, s[{sV0}:{sV0+1}]
ds_add_rtn_u32 v{RK0}, v{TMP}, v{TMP+3}
s_mov_b64 exec, s[{sV1}:{sV1+1}]
ds_add_rtn_u32 v{RK1}, v{TMP+1}, v{TMP+3}
s_mov_b64 exec, -1
v_add_u32 v{TMP+4}, {L_CNT}, v{LO}
v_lshrrev_b32 v{REC}, 5, v{REC}
v_lshrrev_b32 v{REC+2}, 5, v{REC+2}
""")

def sort_scatter(o):
    o(f"""
ds_read_b32 v{TMP+2}, v{TMP+4}
v_and_b32 v{REC}, 0x7ffe00, v{REC}
v_and_b32 v{REC+2}, 0x7ffe00, v{REC+2}
s_mov_b32 s{sT0}, {L_IDX}
s_mov_b32 s{sT1}, {L_ET}
s_waitcnt lgkmcnt(0)
v_add_u32_dpp v{VEND}, v{TMP+2}, v{TMP+2} row_shr:1 row_mask:0xf bank_mask:0xf bound_ctrl:0
s_nop 1
v_add_u32_dpp v{VEND}, v{VEND}, v{VEND} row_shr:2 row_mask:0xf bank_mask:0xf bound_ctrl:0
s_nop 1
v_add_u32_dpp v{VEND}, v{VEND}, v{VEND} row_shr:4 row_mask:0xf bank_mask:0xf bound_ctrl:0
s_nop 1
v_add_u32_dpp v{VEND}, v{VEND}, v{VEND} row_shr:8 row_mask:0xf bank_mask:0xf bound_ctrl:0
s_nop 1
v_add_u32_dpp v{VEND}, v{VEND}, v{VEND} row_bcast:15 row_mask:0xa bank_mask:0xf
s_nop 1
v_add_u32_dpp v{VEND}, v{VEND}, v{VEND} row_bcast:31 row_mask:0xc bank_mask:0xf
v_sub_u32 v{TMP+3}, v{VEND}, v{TMP+2}
v_readlane_b32 s{sTOT}, v{VEND}, 63
ds_bpermute_b32 v{TMP}, v{TMP}, v{TMP+3}
ds_bpermute_b32 v{TMP+1}, v{TMP+1}, v{TMP+3}
s_nop 1
s_add_u32 s{sCH}, s{sTOT}, 15
s_lshr_b32 s{sCH}, s{sCH}, 4
s_mul_i32 s{sP}, s{sCH}, s{sWAVE}
s_add_u32 s{sP1}, s{sP}, s{sCH}
s_min_u32 s{sP}, s{sP}, s{sTOT}
s_min_u32 s{sP1}, s{sP1}, s{sTOT}
s_waitcnt lgkmcnt(0)
v_add_u32 v{TMP}, v{TMP}, v{RK0}
v_add_u32 v{TMP+1}, v{TMP+1}, v{RK1}
v_lshl_add_u32 v{TMP+2}, v{TMP}, 2, s{sT0}
v_lshl_add_u32 v{TMP+3}, v{TMP+1}, 2, s{sT0}
v_lshl_add_u32 v{TMP}, v{TMP}, 4, s{sT1}
v_lshl_add_u32 v{TMP+1}, v{TMP+1}, 4, s{sT1}
s_mov_b64 exec, s[{sV0}:{sV0+1}]
ds_write_b32 v{TMP+2}, v{REC}
ds_write_b16 v{TMP}, v{REC+1} offset:8
ds_write_b16 v{TMP}, v{REC+1} offset:14
s_mov_b64 exec, s[{sV1}:{sV1+1}]
ds_write_b32 v{TMP+3}, v{REC+2}
ds_write_b16 v{TMP+1}, v{REC+3} offset:8
ds_write_b16 v{TMP+1}, v{REC+3} offset:14
s_mov_b64 exec, -1
""")

def zero_cnt(o):
    o(f"v_mov_b32 v{TMP}, 0\nds_write_b32 v{TMP+4}, v{TMP}")

def prime(o):
    PT = T0
    o(f"""
s_lshl_b32 s{sT0}, s{sP}, 2
s_add_u32 s{sT0}, s{sT0}, {L_IDX}
v_mov_b32 v{VI}, s{sT0}
s_lshl_b32 s{sT0}, s{sP}, 4
v_add_u32 v{VE}, s{sT0}, v{VEL}
""")
    for k in range(0, R, 2):
        o(f"ds_read2_b32 {vr(PT+k,2)}, v{VI} offset0:{k} offset1:{k+1}")
    o(f"""
ds_read_b32 v{IX}, v{VI} offset:{4*R}
ds_read2_b32 {vr(A0+2,2)}, v{VE} offset0:0 offset1:2
ds_read2_b32 {vr(A1+2,2)}, v{VE} offset0:4 offset1:6
s_waitcnt lgkmcnt(0)
""")
    for k in range(R):
        B = RING + 4*k
        o(f"buffer_load_dword v{B}, v{PT+k}, s[16:19], 0 offen sc1")
        o(f"buffer_load_dword v{B+1}, v{PT+k}, s[16:19], 0 offen offset:256 sc1")

def wloads(o, mat, wreg, kss=range(8), sa=sT0, sb=sT1, va=TMP+5, setup=True):
    if not setup:
        for ks in kss:
            o(f"buffer_load_dwordx4 {vr(wreg+4*ks,4)}, v{va}, s[32:35], s{sa if ks < 4 else sb} offen offset:{(ks%4)*1024} sc1")
        return
    o(f"""
s_lshl_b32 s{sT0}, s{sWAVE}, 13
s_add_u32 s{sT0}, s{sT0}, {WS_WPACK + mat*131072}
s_add_u32 s{sT1}, s{sT0}, 4096
v_lshlrev_b32 v{TMP+5}, 4, v1
""")
    for ks in range(8):
        o(f"buffer_load_dwordx4 {vr(wreg+4*ks,4)}, v{TMP+5}, s[32:35], s{sT0 if ks < 4 else sT1} offen offset:{(ks%4)*1024} sc1")

DST, SRC, EA, OWN, RK, R0 = 8, 12, 16, 20, 24, 28
EW = [EA, 18, EA + 1, 19]
sBM = 58
def bin_rank(o):
    o(f"v_mov_b32 v{TMP+3}, 1\ns_movk_i32 s57, 256\ns_mov_b64 exec, s[{sBM}:{sBM+1}]")
    for k in range(4):
        o(f"""
v_mad_u32_u24 v{OWN+k}, v{DST+k}, s56, v45
v_mul_u32_u24 v{TMP+4}, s62, v{DST+k}
v_lshrrev_b32 v{OWN+k}, 24, v{OWN+k}
v_lshrrev_b32 v{TMP+4}, 23, v{TMP+4}
v_min_u32 v{OWN+k}, v{OWN+k}, v{TMP+4}
v_lshl_add_u32 v{TMP+4}, v{OWN+k}, 2, s60
ds_add_rtn_u32 v{RK+k}, v{TMP+4}, v{TMP+3}
""")
    for k in range(4):
        o(f"""
v_lshl_or_b32 v{R0+k}, v{SRC+k}, 14, v{DST+k}
v_and_b32 v{TMP+1}, 7, v{OWN+k}
v_lshl_add_u32 v{DST+k}, v{OWN+k}, 8, s61
v_lshl_or_b32 v{DST+k}, v{TMP+1}, 4, v{DST+k}
""")
    o(f"""
v_lshrrev_b32 v18, 16, v{EA}
v_lshrrev_b32 v19, 16, v{EA+1}
s_waitcnt lgkmcnt(0)
v_max3_u32 v{TMP}, v{RK}, v{RK+1}, v{RK+2}
v_max_u32 v{TMP}, v{TMP}, v{RK+3}
v_cmp_le_u32 vcc, {CAP}, v{TMP}
""")
    for k in range(4):
        o(f"""
v_mad_u32_u24 v{SRC+k}, v{RK+k}, 37, s57
v_lshrrev_b32 v{SRC+k}, 8, v{SRC+k}
v_add_lshl_u32 v{SRC+k}, v{SRC+k}, v{RK+k}, 3
v_xor_b32 v{DST+k}, v{SRC+k}, v{DST+k}
""")
    o("s_cbranch_vccnz F_ovf")
    for k in range(4):
        o(f"ds_write2_b32 v{DST+k}, v{R0+k}, v{EW[k]} offset0:0 offset1:1")
    o("F_ovfback:\ns_mov_b64 exec, -1")

def bin_overflow(o):
    o(f"F_ovf:\ns_mul_i32 s50, s2, {CHUNK*8}\ns_add_u32 s50, s50, {WS_OVF}\nv_mov_b32 v{TMP}, {L_BCNT+1024}")
    for k in range(4):
        o(f"""
v_cmp_gt_u32 vcc, {CAP}, v{RK+k}
s_and_saveexec_b64 s[62:63], vcc
ds_write2_b32 v{DST+k}, v{R0+k}, v{EW[k]} offset0:0 offset1:1
s_andn2_b64 exec, s[62:63], exec
s_cbranch_execz F_no{k}
ds_add_rtn_u32 v{TMP+4}, v{TMP}, v{TMP+3}
v_mov_b32 v{TMP+1}, v{R0+k}
v_and_b32 v{TMP+2}, 0xffff, v{EW[k]}
v_lshl_or_b32 v{TMP+2}, v{OWN+k}, 16, v{TMP+2}
s_waitcnt lgkmcnt(0)
v_lshlrev_b32 v{TMP+4}, 3, v{TMP+4}
buffer_store_dwordx2 {vr(TMP+1,2)}, v{TMP+4}, s[32:35], s50 offen sc1
s_waitcnt vmcnt(0)
F_no{k}:
s_mov_b64 exec, s[62:63]
""")
    o("s_branch F_ovfback")

def bin_copy(o):
    o(f"""
v_mov_b32 v31, s100
s_waitcnt lgkmcnt(5)
v_cmp_lt_u32 vcc, 14, v28
v_min_u32 v28, {CAP}, v28
v_cmp_lt_u32 s[62:63], 14, v29
v_min_u32 v29, {CAP}, v29
v_cndmask_b32 v24, v43, v41, vcc
v_cndmask_b32 v25, v43, v41, s[62:63]
s_waitcnt lgkmcnt(4)
v_cndmask_b32 v8, v8, v28, s[22:23]
v_cndmask_b32 v9, v9, v31, s[22:23]
buffer_store_dwordx4 v[8:11], v41, s[32:35], s24 offen sc1
s_waitcnt lgkmcnt(3)
v_cndmask_b32 v12, v12, v29, s[22:23]
v_cndmask_b32 v13, v13, v31, s[22:23]
buffer_store_dwordx4 v[12:15], v41, s[32:35], s25 offen sc1
s_waitcnt lgkmcnt(2)
v_cndmask_b32 v17, v17, v31, s[22:23]
buffer_store_dwordx4 v[16:19], v24, s[32:35], s24 offen offset:128 sc1
s_waitcnt lgkmcnt(1)
v_cndmask_b32 v21, v21, v31, s[22:23]
buffer_store_dwordx4 v[20:23], v25, s[32:35], s25 offen offset:128 sc1
s_cmp_lg_u32 s{sWAVE}, 0
s_cbranch_scc1 F_bc1
s_lshl_b32 s50, s2, 3
s_add_u32 s50, s50, {WS_OVFC}
s_mov_b64 exec, 1
s_waitcnt lgkmcnt(0)
buffer_store_dwordx2 v[30:31], v{VTG}, s[32:35], s50 offen sc1
s_mov_b64 exec, -1
F_bc1:
""")

def gen(o):
    global TP, TQ, M1, M2, C2
    TP, TQ, M1, M2, C2, MQ, SH, MAXROWS = tile_consts()
    X2W = (MAXROWS - 32 + 1) // 2
    XNT = "" if "nont" in OPT else "nt"
    AA = [A0, A1]
    TT = [T0, T1]
    o(f"""
.globl {KNAME}
.p2align 8
.type {KNAME},@function
{KNAME}:
s_cmp_ge_u32 s2, 256
s_cbranch_scc1 L_end
s_load_dwordx2 s[28:29], s[0:1], 0
s_load_dwordx2 s[44:45], s[0:1], 32
s_load_dwordx2 s[36:37], s[0:1], 24
s_load_dwordx2 s[12:13], s[0:1], 16
s_load_dwordx2 s[52:53], s[0:1], 8
s_load_dwordx2 s[40:41], s[0:1], 40
s_load_dwordx2 s[32:33], s[0:1], 64
s_load_dwordx2 s[96:97], s[0:1], 56
s_load_dwordx2 s[20:21], s[0:1], 48
s_memrealtime s[100:101]
""")
    if STAMP: o("s_memrealtime s[80:81]")
    ops = []
    def vm(target):
        return len(ops) - 1 - max(i for i, x in enumerate(ops) if x == target)
    LOC2 = [65536, 81920, 98304, 114688, 32768, 49152, 0, 16384]
    def d1(s, count=True):
        o(f"""
s_add_u32 m0, s{sSO}, {(s & 3) * 16384}
s_add_u32 s{sM0}, s{sSO}, {s*16384}
buffer_load_dwordx4 v{VWS}, s[44:47], s{sM0} offen lds
""")
        if count: ops.append(("d", s))
    def d2(s):
        o(f"""
s_add_u32 m0, s{sSO}, {LOC2[s]}
s_add_u32 s{sM0}, s{sSO}, {131072 + s*16384}
buffer_load_dwordx4 v{VWS}, s[44:47], s{sM0} offen lds
""")
        ops.append(("e", s))
    def dma(p, count=True):
        d1(2*p, count)
        d1(2*p + 1, count)
    o(f"""
v_lshrrev_b32 v2, 6, v0
v_and_b32 v1, 63, v0
s_mul_i32 s{sN0}, s2, {TP}
v_readfirstlane_b32 s{sWAVE}, v2
v_lshrrev_b32 v4, 5, v1
v_and_b32 v6, 31, v1
s_sub_u32 s{sN0}, s{sN0}, {64*TP - (TQ - 1)}
s_add_u32 s{sCNT}, s{sN0}, {TP}
s_mul_i32 s{sN0}, s{sN0}, {MQ}
s_mul_i32 s{sCNT}, s{sCNT}, {MQ}
s_lshr_b32 s{sN0}, s{sN0}, {SH}
s_lshr_b32 s{sCNT}, s{sCNT}, {SH}
s_sub_u32 s{sCNT}, s{sCNT}, s{sN0}
s_add_u32 s{sN0}, s{sN0}, {64*BT}
s_mul_i32 s50, s2, {BT}
s_cmp_lt_u32 s2, 64
s_cselect_b32 s{sN0}, s50, s{sN0}
s_cselect_b32 s{sCNT}, {BT}, s{sCNT}
s_lshl_b32 s50, s{sWAVE}, 1
v_add_u32 v5, s50, v4
v_lshlrev_b32 v2, 4, v0
v_and_b32 v7, 15, v5
v_xor_b32 v7, v7, v6
v_lshlrev_b32 v7, 4, v7
v_lshl_add_u32 v7, v4, 9, v7
v_lshlrev_b32 v{LO}, 2, v1
v_mov_b32 v{VTG}, 0
s_mov_b32 s30, {N*512}
s_mov_b32 s31, 0x20000
s_mov_b32 s46, {513*512}
s_mov_b32 s47, 0x20000
s_mov_b32 s38, 640000
s_mov_b32 s39, 0x20000
s_mov_b32 s14, 640000
s_mov_b32 s15, 0x20000
s_mov_b32 s54, 320000
s_mov_b32 s55, 0x20000
s_mov_b32 s98, 256
s_mov_b32 s99, 0x20000
s_lshl_b32 s{sSO}, s{sWAVE}, 10
s_lshl_b32 s51, s{sN0}, 9
s_add_u32 s51, s51, s{sSO}
s_add_u32 m0, s{sSO}, {L_XS}
s_cmp_ge_u32 s2, 64
s_cbranch_scc1 F_nobl
s_mul_i32 s49, s2, 10000
s_mul_i32 s50, s2, 5000
v_lshlrev_b32 v{TMP}, 3, v0
s_cmp_ge_u32 s{sWAVE}, 10
s_waitcnt lgkmcnt(0)
s_cbranch_scc1 F_nel
buffer_load_dwordx4 {vr(DST,4)}, v2, s[36:39], s49 offen {XNT}
buffer_load_dwordx4 {vr(SRC,4)}, v2, s[12:15], s49 offen {XNT}
buffer_load_dwordx2 {vr(EA,2)}, v{TMP}, s[52:55], s50 offen {XNT}
s_branch F_ne2
F_nel:
s_sub_u32 s50, s{sWAVE}, 10
s_cmp_ge_u32 s50, 2
s_cbranch_scc1 F_ne2
s_lshr_b32 s49, s2, 3
s_lshl_b32 s49, s49, 13
s_lshl_b32 s50, s50, 12
s_add_u32 s49, s49, s50
v_lshlrev_b32 v{TMP}, 6, v1
buffer_load_dword v77, v{TMP}, s[44:47], s49 offen
F_ne2:
v_lshlrev_b32 v{TMP}, 2, v0
v_add_u32 v{TMP}, {L_BCNT}, v{TMP}
s_cmp_ge_u32 s{sWAVE}, 5
s_cbranch_scc1 F_nbz
ds_write_b32 v{TMP}, v{VTG}
F_nbz:
s_waitcnt lgkmcnt(0)
s_barrier
s_add_u32 m0, s{sSO}, {L_XS}
s_cmp_ge_u32 s{sWAVE}, 4
buffer_load_dwordx4 v7, s[28:31], s51 offen {XNT} lds
s_cbranch_scc1 F_nox2b
s_add_u32 m0, s{sSO}, {L_XS + 16384}
s_add_u32 s50, s51, 16384
buffer_load_dwordx4 v7, s[28:31], s50 offen {XNT} lds
F_nox2b:
s_branch F_nx
F_nobl:
""")
    if "ipf" in OPT:
        o(f"""
s_cmp_lt_u32 s2, 240
s_cbranch_scc1 F_nipf
s_sub_u32 s50, s{sWAVE}, 8
s_cmp_ge_u32 s50, 2
s_cbranch_scc1 F_nipf
s_getpc_b64 s[22:23]
s_lshl_b32 s50, s50, 12
v_lshlrev_b32 v{TMP}, 6, v1
v_add_u32 v{TMP}, s50, v{TMP}
global_load_dword v77, v{TMP}, s[22:23]
F_nipf:
""")
    o(f"""
s_cmp_ge_u32 s{sWAVE}, {X2W}
s_waitcnt lgkmcnt(0)
buffer_load_dwordx4 v7, s[28:31], s51 offen {XNT} lds
s_cbranch_scc1 F_nox2
s_add_u32 m0, s{sSO}, {L_XS + 16384}
s_add_u32 s50, s51, 16384
buffer_load_dwordx4 v7, s[28:31], s50 offen {XNT} lds
s_lshl_b32 s49, s2, 4
s_add_u32 s49, s49, s{sWAVE}
s_cmp_lg_u32 s49, 0xff0
s_cbranch_scc1 F_nox2
s_or_b32 s49, s100, 1
v_mov_b32 v{TMP+1}, s49
v_mov_b32 v{TMP+2}, s101
s_mov_b64 exec, 1
buffer_store_dwordx2 {vr(TMP+1,2)}, v{VTG}, s[96:99], 0 offen sc1
s_mov_b64 exec, -1
F_nox2:
s_sub_u32 s50, s{sWAVE}, 6
s_cmp_ge_u32 s50, 2
s_cbranch_scc1 F_ntc
s_lshr_b32 s49, s2, 3
s_lshl_b32 s49, s49, 13
s_lshl_b32 s50, s50, 12
s_add_u32 s49, s49, s50
v_lshlrev_b32 v7, 6, v1
buffer_load_dword v77, v7, s[44:47], s49 offen
F_ntc:
s_mov_b32 s50, {512*512}
buffer_load_dword v{W3}, v{LO}, s[44:47], s50 offen
buffer_load_dword v{W3+1}, v{LO}, s[44:47], s50 offen offset:256
F_nx:
v_and_b32 v{TMP}, 3, v5
v_bfe_u32 v{TMP+1}, v5, 3, 1
v_lshl_or_b32 v{TMP}, v{TMP+1}, 2, v{TMP}
v_lshlrev_b32 v{TMP}, 1, v{TMP}
v_xor_b32 v{TMP}, v{TMP}, v6
v_lshlrev_b32 v{TMP}, 4, v{TMP}
v_lshl_add_u32 v{VWS}, v4, 9, v{TMP}
s_mov_b32 s42, {512*512}
s_mov_b32 s43, 0x20000
s_mov_b32 s34, {WS_END}
s_mov_b32 s35, 0x20000
s_sub_u32 s{sBORN}, s100, 1500
s_sub_u32 s48, s2, 64
""")
    if "early0" in OPT:
        o("s_cmp_lt_u32 s2, 64\ns_cbranch_scc1 F_ne0")
        dma(0)
        o("F_ne0:")
    o(f"""
v_lshlrev_b32 v{VC}, 3, v1
v_lshrrev_b32 v3, 4, v1
v_and_b32 v4, 15, v1
v_xor_b32 v{VXA}, v4, v3
v_lshlrev_b32 v{VXA}, 4, v{VXA}
v_lshl_add_u32 v{VXA}, v4, 9, v{VXA}
v_add_u32 v{VXA}, {L_XS}, v{VXA}
v_bfe_u32 v5, v1, 2, 2
v_and_b32 v6, 3, v1
v_lshl_add_u32 v{VWA}, v3, 3, v5
v_lshlrev_b32 v{VWA}, 9, v{VWA}
v_lshl_add_u32 v{VWA}, v6, 3, v{VWA}
v_and_b32 v7, 1, v3
v_lshl_or_b32 v{TMP}, v7, 2, v5
v_xor_b32 v{TMP}, s{sWAVE}, v{TMP}
v_lshl_add_u32 v{VWA}, v{TMP}, 5, v{VWA}
v_add_u32 v{VWB}, 0x10000, v{VWA}
v_add_u32 v{TMP+4}, {L_CNT}, v{LO}
ds_write2st64_b32 v{TMP+4}, v{VTG}, v{VTG} offset0:0 offset1:1
s_cmp_ge_u32 s48, 16
s_cbranch_scc1 F_npd
s_lshl_b32 s49, s48, 14
s_add_u32 m0, s{sSO}, {L_PK}
s_add_u32 s49, s49, s{sSO}
buffer_load_dwordx4 v{VWS}, s[40:43], s49 offen lds
F_npd:
s_mov_b32 s{sSC}, {NEGL2E:#x}
s_mov_b32 s{sSC+1}, {NEGL2E:#x}
v_lshrrev_b32 v{TMP}, 1, v3
s_lshl_b32 s{sT1}, s{sWAVE}, 1
v_or_b32 v{TMP}, s{sT1}, v{TMP}
v_xor_b32 v{TMP}, v{TMP}, v4
v_lshlrev_b32 v{TMP}, 4, v{TMP}
v_lshl_add_u32 v{VN}, v4, 9, v{TMP}
v_lshl_add_u32 v{VN}, v7, 3, v{VN}
v_add_u32 v{VN}, {L_PST}, v{VN}
v_lshrrev_b32 v{VB}, 5, v0
v_add_u32 v{TMP}, 32, v{VB}
v_cmp_gt_u32 vcc, s{sCNT}, v{TMP}
v_lshlrev_b32 v{VB}, 4, v{VB}
v_xor_b32 v{VB}, v{VB}, v2
v_add_u32 v{VB}, {L_PST}, v{VB}
v_add_u32 v{VI}, 0x4000, v2
v_mov_b32 v{TMP}, 0x7ffffff0
v_cndmask_b32 v{VI}, v{TMP}, v{VI}, vcc
s_cmp_lt_u32 s2, 64
s_cbranch_scc1 F_nd0
""")
    if "early0" in OPT:
        o("s_barrier")
        dma(1)
    else:
        dma(0)
    o(f"""
F_nd0:
v_cmp_eq_u32 vcc, v5, v3
v_and_b32 v{TMP+2}, 1, v1
v_lshlrev_b32 v{TMP+2}, 4, v{TMP+2}
v_mov_b32 v{TMP+3}, 0x3f80
v_lshlrev_b32 v{TMP+3}, v{TMP+2}, v{TMP+3}
v_cndmask_b32 v{TMP+3}, 0, v{TMP+3}, vcc
v_xor_b32 v{VEL}, 2, v6
v_lshlrev_b32 v{VEL}, 2, v{VEL}
v_add_u32 v{VEL}, {L_ET}, v{VEL}
v_mov_b32 v{TMP+2}, 0x30000
v_cndmask_b32 v{VEL}, v{TMP+2}, v{VEL}, vcc
v_cmp_gt_u32 vcc, 2, v6
v_mul_u32_u24 v{CK0}, 7, v5
v_lshl_add_u32 v{CK1}, v6, 1, v{CK0}
v_cndmask_b32 v{A1}, 0, v{TMP+3}, vcc
v_cndmask_b32_e64 v{A1+1}, v{TMP+3}, 0, vcc
v_cmp_eq_u32 vcc, 0, v6
v_add_u32 v{CK2}, -1, v{CK1}
v_mov_b32 v{TMP}, 64
s_movk_i32 s{sT0}, {RS}
v_cndmask_b32 v{CK2}, v{CK2}, v{TMP}, vcc
v_mul_u32_u24 v{IX}, s{sT0}, v4
v_lshl_add_u32 v{IX}, v3, 4, v{IX}
s_lshl_b32 s{sT0}, s{sWAVE}, 6
v_add_u32 v{IX}, s{sT0}, v{IX}
s_mov_b64 s[8:9], s[32:33]
s_mov_b32 s10, {N*512}
s_mov_b32 s11, 0x20000
s_mov_b32 s16, s32
s_or_b32 s17, s33, 0x40000
s_mov_b32 s18, {N*512}
s_mov_b32 s19, 0x800000
s_mov_b32 s{sONE}, 1.0
s_mov_b32 s{sONE+1}, 1.0
s_mov_b32 s{sBND}, 0x7b800000
s_mov_b32 s{sW1}, 0
s_cmp_lt_u32 s2, 64
s_cbranch_scc1 F_bin
""")
    if "early0" not in OPT:
        o("s_barrier")
        dma(1)
    o(f"""
s_branch F_nbr
F_bin:
s_movk_i32 s57, 625
v_cmp_gt_u32 s[{sBM}:{sBM+1}], s57, v0
s_mov_b32 s56, {M2}
s_mov_b32 s62, {M1}
v_mov_b32 v45, {C2}
s_mov_b32 s60, {L_BCNT}
s_mov_b32 s61, {L_IMG}
v_lshrrev_b32 v42, 3, v0
v_and_b32 v43, 7, v0
v_lshlrev_b32 v43, 4, v43
v_lshl_add_u32 v41, v42, 14, v43
v_and_b32 v40, 7, v42
v_lshlrev_b32 v40, 4, v40
v_xor_b32 v40, v40, v43
v_lshl_add_u32 v40, v42, 8, v40
v_add_u32 v40, s61, v40
v_lshl_add_u32 v42, v42, 2, s60
v_and_b32 v43, 48, v43
v_cmp_eq_u32 s[22:23], 0, v43
v_mov_b32 v43, 0x7f000000
v_mov_b32 v44, {L_BCNT+1024}
s_lshl_b32 s24, s2, 8
s_add_u32 s24, s24, {WS_CELL}
s_add_u32 s25, s24, {128*16384}
""")
    if "pre" in STEPS: stamp(o, (1, 2, 3, 4, 6)[STEPS.index("pre")])
    o(f"""
s_cmp_lt_u32 s{sWAVE}, 4
s_waitcnt vmcnt(2)
s_cbranch_scc1 F_be
s_waitcnt vmcnt(1)
F_be:
buffer_load_dwordx2 {vr(TAG,2)}, v{VTG}, s[96:99], 0 offen sc1
s_mov_b32 s50, {512*512}
buffer_load_dword v{W3}, v{LO}, s[44:47], s50 offen
buffer_load_dword v{W3+1}, v{LO}, s[44:47], s50 offen offset:256
""")
    st0 = lambda name: stamp(o, (1, 2, 3, 4, 6)[STEPS.index(name)]) if name in STEPS else None
    st0("edge")
    bin_rank(o)
    st0("rank")
    dma(0, False)
    o(f"""
s_waitcnt lgkmcnt(0)
s_barrier
ds_read2st64_b32 v[28:29], v42 offset0:0 offset1:2
ds_read_b128 v[8:11], v40
ds_read_b128 v[12:15], v40 offset:32768
ds_read_b128 v[16:19], v40 offset:128
ds_read_b128 v[20:23], v40 offset:{32768+128}
ds_read_b32 v30, v44
""")
    dma(1, False)
    o("s_waitcnt vmcnt(6)")
    get_tag(o, "b")
    bin_copy(o)
    o("F_nbr:")
    st0("copy")
    def st(name):
        if name in STEPS: stamp(o, (1, 2, 3, 4, 6)[STEPS.index(name)])
    def reads(ks, loc, xf, wf):
        a = VXA
        if ks:
            a = TMP + 6
            o(f"v_xor_b32 v{a}, {64*ks}, v{VXA}")
        wa, off = (VWA, loc) if loc < 65536 else (VWB, loc - 65536)
        l = [f"ds_read_b64_tr_b16 {vr(wf,2)}, v{wa} offset:{off}\nds_read_b64_tr_b16 {vr(wf+2,2)}, v{wa} offset:{off + 2048}"]
        l += [f"ds_read_b128 {vr(xf+4*rt,4)}, v{a} offset:{rt*8192}" for rt in range(3)]
        return l
    def mfmas(acc, first, xf, wf):
        return [f"v_mfma_f32_16x16x32_bf16 {vr(acc+4*rt,4)}, {vr(wf,4)}, {vr(xf+4*rt,4)}, {'0' if first else vr(acc+4*rt,4)}" for rt in range(3)]
    def weave(mm, rd):
        while rd or mm:
            if mm: o(mm.pop(0))
            if rd: o(rd.pop(0))
    for s in range(-1, 8):
        if s < 7:
            n = vm(("d", s + 1))
            if s <= 2:
                o(f"""
s_cmp_lt_u32 s2, 64
s_cbranch_scc1 F_wc{s+1}
s_waitcnt vmcnt({n + (1 if s >= 0 else 0)})
s_cmp_lt_u32 s48, 16
s_cbranch_scc1 F_wc{s+1}
s_waitcnt vmcnt({n})
F_wc{s+1}:
s_waitcnt vmcnt({n + 4}) lgkmcnt(0)
s_barrier
""")
            else:
                o(f"s_waitcnt vmcnt({n}) lgkmcnt(0)\ns_barrier")
        else:
            o("s_waitcnt lgkmcnt(0)\ns_barrier")
        st(f"s{s}")
        if s == -1:
            o(f"buffer_load_dwordx2 {vr(TG0,2)}, v{VTG}, s[96:99], 0 offen sc1")
            ops.append("tag")
        rd = reads(s + 1, ((s + 1) & 3) * 16384, XFB[(s+1) & 1], WFB[(s+1) & 1]) if s < 7 else []
        weave(mfmas(PA, s == 0, XFB[s & 1], WFB[s & 1]) if s >= 0 else [], rd)
        if 0 <= s <= 3: d1(s + 4)
        if s >= 4: d2(s - 4)
        if s == -1:
            o(f"""
s_cmp_ge_u32 s48, 16
s_cbranch_scc1 F_d0
ds_read_b64_tr_b16 v[4:5], v{VWB}
ds_read_b64_tr_b16 v[6:7], v{VWB} offset:2048
s_lshl_b32 s50, s{sWAVE}, 13
s_and_b32 s49, s48, 7
s_lshl_b32 s49, s49, 10
s_add_u32 s50, s50, s49
s_lshr_b32 s49, s48, 3
s_lshl_b32 s49, s49, 17
s_add_u32 s50, s50, s49
s_add_u32 s50, s50, {WS_WPACK}
v_lshlrev_b32 v12, 4, v1
s_waitcnt lgkmcnt(0)
buffer_store_dwordx4 v[4:7], v12, s[32:35], s50 offen sc1
F_d0:
""")
        if s == 3:
            assert ops.index("tag") < ops.index(("d", 4))
            o(f"s_cmp_ge_u32 s48, 16\ns_cbranch_scc1 F_d5\ns_cmp_lg_u32 s{sWAVE}, 0\ns_cbranch_scc1 F_d5\nv_mov_b64 {vr(TAG,2)}, {vr(TG0,2)}")
            get_tag(o, "p")
            o(f"s_lshl_b32 s{sT0}, s48, 7\ns_add_u32 s{sT0}, s{sT0}, {WS_FLAG + 256*128}")
            put_flag(o, f"s{sT0}")
            o("F_d5:")
    o(f"s_lshl_b32 s{sT2}, s{sN0}, 9\ns_add_u32 s{sK}, s{sT2}, 8192\ns_nop 0")
    for rt in range(3):
        a_ = PA + 4*rt
        o(f"""
v_pk_mul_f32 {vr(a_,2)}, {vr(a_,2)}, s[{sSC}:{sSC+1}]
v_pk_mul_f32 {vr(a_+2,2)}, {vr(a_+2,2)}, s[{sSC}:{sSC+1}]
v_cvt_pk_bf16_f32 v{40+2*rt}, v{a_}, v{a_+1}
v_cvt_pk_bf16_f32 v{40+2*rt+1}, v{a_+2}, v{a_+3}
ds_write_b64 v{VN}, {vr(40+2*rt,2)} offset:{rt*8192}
""")
    o(f"""
s_lshl_b32 s{sOFF}, s2, 14
s_add_u32 s{sOFF}, s{sOFF}, {WS_CELL}
s_mov_b32 s{sOC}, {WS_FLAG + 256*128}
v_lshlrev_b32 v16, 7, v1
v_min_u32 v16, {15*128}, v16
s_cmp_lt_u32 s{sWAVE}, 8
s_waitcnt lgkmcnt(0)
s_barrier
s_cbranch_scc0 F_nps
ds_read_b128 {vr(PA,4)}, v{VB}
ds_read_b128 {vr(PA+4,4)}, v{VB} offset:8192
ds_read_b128 {vr(PA+8,4)}, v{VB} offset:16384
s_waitcnt lgkmcnt(2)
buffer_store_dwordx4 {vr(PA,4)}, v2, s[8:11], s{sT2} offen sc1
s_waitcnt lgkmcnt(1)
buffer_store_dwordx4 {vr(PA+4,4)}, v2, s[8:11], s{sK} offen sc1
s_waitcnt lgkmcnt(0)
buffer_store_dwordx4 {vr(PA+8,4)}, v{VI}, s[8:11], s{sT2} offen sc1
buffer_load_dwordx4 {vr(REC,4)}, v2, s[32:35], s{sOFF} offen sc1
s_waitcnt vmcnt(4)
s_branch F_ps2
F_nps:
s_waitcnt vmcnt(0)
s_cmp_lg_u32 s{sWAVE}, 15
s_cbranch_scc1 F_npk0
buffer_load_dwordx2 v[24:25], v16, s[32:35], s{sOC} offen sc1
F_npk0:
buffer_load_dwordx4 {vr(REC,4)}, v2, s[32:35], s{sOFF} offen sc1
F_ps2:
s_barrier
""")
    st("pst")
    rd = reads(0, LOC2[0], XFB[0], WFB[0])
    o("\n".join(rd))
    o(f"v_mov_b64 {vr(TAG,2)}, {vr(TG0,2)}")
    get_tag(o, "m")
    for s in range(4):
        o("s_waitcnt lgkmcnt(0)")
        rd = reads(s + 1, LOC2[s + 1], XFB[(s+1) & 1], WFB[(s+1) & 1]) if s < 3 else []
        weave(mfmas(QA, s == 0, XFB[s & 1], WFB[s & 1]), rd)
    for t in range(4, 8):
        d2(t)
    o(f"""
v_mov_b64 {vr(ZR,2)}, 0
v_mov_b64 {vr(ZR+2,2)}, 0
v_add_u32 v{VB}, {L_IDX}, v2
v_add_u32 v{VI}, {L_ET}, v2
s_lshl_b32 s12, s{sWAVE}, 13
s_add_u32 s12, s12, {WS_WPACK}
s_add_u32 s13, s12, 4096
v_lshlrev_b32 v{VEND}, 4, v1
s_mov_b32 s{sT2}, 0
s_waitcnt vmcnt(5)
s_cmp_lg_u32 s{sWAVE}, 15
s_cbranch_scc1 F_npk
s_mov_b32 s{sT1}, 0
F_plk:
v_cmp_ne_u64 vcc, s[100:101], v[24:25]
s_add_u32 s{sT1}, s{sT1}, 1
s_cmp_ge_u32 s{sT1}, 0x10000
s_cbranch_scc1 F_npk
s_nop 1
s_cbranch_vccz F_npk
buffer_load_dwordx2 v[24:25], v16, s[32:35], s{sOC} offen sc1
s_waitcnt vmcnt(0)
s_branch F_plk
F_npk:
s_barrier
""")
    st("drain")
    o(f"s_cmp_lg_u32 s{sWAVE}, 0\ns_cbranch_scc1 F_nfp\ns_lshl_b32 s{sT0}, s2, 7\ns_add_u32 s{sT0}, s{sT0}, {WS_FLAG}")
    put_flag(o, f"s{sT0}")
    o("F_nfp:")
    WA = 26
    o(f"v_mov_b32 v{WA}, v{VEND}")
    wl = lambda kss: wloads(o, 0, W, kss, 12, 13, WA, False)
    wl((0, 1))
    o(f"""
ds_write_b128 v{VB}, {vr(ZR,4)}
ds_write_b128 v{VI}, {vr(ZR,4)}
ds_write_b128 v{VI}, {vr(ZR,4)} offset:16384
ds_write_b128 v{VI}, {vr(ZR,4)} offset:16448
s_mov_b32 s{sRND}, 0
s_mov_b64 s[40:41], s[20:21]
s_mov_b32 s42, {N*512}
s_waitcnt vmcnt(6)
F_cl:
v_mov_b32_dpp v{TMP}, v{REC+1} row_newbcast:0 row_mask:0xf bank_mask:0xf
v_mov_b32_dpp v{TMP+1}, v{REC} row_newbcast:0 row_mask:0xf bank_mask:0xf
v_mov_b32_dpp v{TMP+2}, v{REC+1} quad_perm:[0,0,0,0] row_mask:0xf bank_mask:0xf
v_cmp_eq_u32 vcc, s100, v{TMP}
v_cmp_ne_u32 s[{sM}:{sM+1}], s100, v{TMP+2}
s_add_u32 s{sT2}, s{sT2}, 1
v_cndmask_b32 v{TMP+1}, 0, v{TMP+1}, vcc
v_max_u32 v{TMP+3}, 1, v{TMP+1}
v_cmp_lt_u32 vcc, v{CK0}, v{TMP+3}
s_cmp_ge_u32 s{sT2}, 0x10000
s_cbranch_scc1 F_cd
s_and_b64 exec, vcc, s[{sM}:{sM+1}]
s_cbranch_execz F_cd
s_sleep 1
buffer_load_dwordx4 {vr(REC,4)}, v2, s[32:35], s{sOFF} offen sc1
s_mov_b64 exec, -1
s_waitcnt vmcnt(0)
s_branch F_cl
F_cd:
s_mov_b64 exec, -1
v_cmp_gt_u32 s[{sV0}:{sV0+1}], v{TMP+1}, v{CK2}
v_cmp_gt_u32 s[{sV1}:{sV1+1}], v{TMP+1}, v{CK1}
""")
    st("cell")
    sort_rank(o)
    wl((2, 3, 4))
    o("s_waitcnt vmcnt(5) lgkmcnt(0)\ns_barrier")
    st("y")
    XQ, WQ = [8, UA], [20, 28]
    o("\n".join(reads(4, LOC2[4], XQ[0], WQ[0])))
    sort_scatter(o)
    for s in range(4, 8):
        o("s_waitcnt lgkmcnt(0)")
        rd = reads(s + 1, LOC2[s + 1], XQ[(s+1) & 1], WQ[(s+1) & 1]) if s < 7 else []
        weave(mfmas(QA, False, XQ[s & 1], WQ[s & 1]), rd)
    o(f"""
v_mov_b32 v{VE}, v{WA}
v_lshlrev_b32 v{TMP}, 16, v{W3}
v_and_b32 v{TMP+1}, 0xffff0000, v{W3}
v_lshlrev_b32 v{TMP+2}, 16, v{W3+1}
v_and_b32 v{TMP+3}, 0xffff0000, v{W3+1}
v_mul_f32 v{TMP}, s{sSC}, v{TMP}
v_mul_f32 v{TMP+1}, s{sSC}, v{TMP+1}
v_mul_f32 v{TMP+2}, s{sSC}, v{TMP+2}
v_mul_f32 v{TMP+3}, s{sSC}, v{TMP+3}
v_cvt_pk_bf16_f32 v6, v{TMP}, v{TMP+1}
v_cvt_pk_bf16_f32 v7, v{TMP+2}, v{TMP+3}
v_add_u32 v{VB}, {L_AGB}, v2
v_mov_b64 {vr(A0,2)}, {vr(A1,2)}
""")
    for k in range(1, R):
        o(f"v_mov_b64 {vr(RING+4*k+2,2)}, v[6:7]")
    for h in range(6):
        o(f"v_pk_mul_f32 {vr(QA+2*h,2)}, {vr(QA+2*h,2)}, s[{sSC}:{sSC+1}]")
    o(f"""
s_lshl_b32 s{sOC}, s{sWAVE}, 13
s_add_u32 s{sOC}, s{sOC}, {WS_FLAG}
v_lshlrev_b32 v{TMP}, 7, v1
s_cmp_ge_u32 s{sWAVE}, 4
s_cbranch_scc1 F_np1
buffer_load_dwordx2 {vr(TMP+1,2)}, v{TMP}, s[32:35], s{sOC} offen sc1
F_np1:
s_barrier
""")
    st("x")
    for rt in range(3):
        o(f"ds_write_b128 v{IX}, {vr(QA+4*rt,4)} offset:{L_QS + rt*16*RS}")
    o(f"ds_write_b128 v{VB}, {vr(ZR,4)}\nds_write_b128 v{VB}, {vr(ZR,4)} offset:8192")
    st("u")
    o(f"""
s_cmp_ge_u32 s{sWAVE}, 4
s_cbranch_scc1 F_npp
s_mov_b32 s{sT1}, 0
s_waitcnt vmcnt(0)
F_plp:
v_cmpx_ne_u64 vcc, s[100:101], {vr(TMP+1,2)}
s_add_u32 s{sT1}, s{sT1}, 1
s_nop 3
s_cbranch_execz F_pdp
s_cmp_ge_u32 s{sT1}, 0x10000
s_cbranch_scc1 F_pdp
{next((f"s_sleep {x[3:]}" for x in OPT if x.startswith("psl")), "")}
buffer_load_dwordx2 {vr(TMP+1,2)}, v{TMP}, s[32:35], s{sOC} offen sc1
s_waitcnt vmcnt(0)
s_branch F_plp
F_pdp:
s_mov_b64 exec, -1
""")
    o(f"""
F_npp:
""")
    wloads(o, 0, W, (5, 6, 7), 12, 13, VE, False)
    o(f"""
s_mov_b32 s{sT0}, {WS_OVFC}
buffer_load_dwordx2 {vr(VOVF,2)}, v{VC}, s[32:35], s{sT0} offen sc1
s_waitcnt lgkmcnt(0)
s_barrier
L_pr:
""")
    st("b3")
    zero_cnt(o)
    prime(o)
    o(f"""
s_cmp_lg_u32 s{sRND}, 0
s_cbranch_scc1 L_go
s_call_b64 s[{sRET}:{sRET+1}], L_ugemm
L_go:
""")
    st("go")
    stamp(o, 5)
    o(f"""
s_mov_b64 vcc, 0
s_mov_b32 s{sK}, {KMAX}
s_add_u32 s{sRND}, s{sRND}, 1
s_cmp_ge_u32 s{sP}, s{sP1}
s_cbranch_scc1 L_loopdone
v_cmp_eq_u32 s[{sM}:{sM+1}], s{sP}, v{VEND}
s_sub_u32 s{sIT}, s{sP1}, s{sP}
s_add_u32 s{sIT}, s{sIT}, {R-1}
s_mul_i32 s{sIT}, s{sIT}, 171
s_lshr_b32 s{sIT}, s{sIT}, 10
s_cmp_eq_u32 s{sP}, 0
s_cselect_b32 s{sT2}, 1, 0
s_cmp_lg_u64 s[{sM}:{sM+1}], 0
s_cselect_b32 s{sT2}, 1, s{sT2}
s_xor_b32 s{sHEAD}, s{sT2}, 1
s_call_b64 s[{sRET}:{sRET+1}], L_newnode
s_setprio 3
v_mov_b64 {vr(NN,2)}, 0
v_mov_b64 {vr(NN+2,2)}, 0
v_mov_b64 {vr(D,2)}, s[{sONE}:{sONE+1}]
v_mov_b64 {vr(D+2,2)}, s[{sONE}:{sONE+1}]
s_waitcnt vmcnt({2*(R-1)}) lgkmcnt(0)
v_mfma_f32_16x16x32_bf16 {vr(T0,4)}, {vr(A0,4)}, {vr(RING,4)}, {vr(Q,4)}
s_nop 5
L_top:
""")
    U = UNR * R
    def body(k, first):
        B = RING + 4*(k % R)
        B1 = RING + 4*((k+1) % R)
        T = TT[k & 1]
        ex, pk = valu_block(T)
        if first:
            pk = f"""
v_pk_add_f32 {vr(D,2)}, {vr(E,2)}, s[{sONE}:{sONE+1}]
v_mov_b64 {vr(NN,2)}, {vr(T,2)}
v_mov_b64 {vr(NN+2,2)}, {vr(T+2,2)}
v_pk_add_f32 {vr(D+2,2)}, {vr(E+2,2)}, s[{sONE}:{sONE+1}]
"""
        o(f"""
s_waitcnt vmcnt({2*(R-2)}) lgkmcnt(0)
v_mfma_f32_16x16x32_bf16 {vr(TT[(k+1)&1],4)}, {vr(AA[(k+1)&1],4)}, {vr(B1,4)}, {vr(Q,4)}
{ex}
buffer_load_dword v{B}, v{IX}, s[16:19], 0 offen sc1
buffer_load_dword v{B+1}, v{IX}, s[16:19], 0 offen offset:256 sc1
ds_read_b32 v{IX}, v{VI} offset:{4*(k+R+1)}
ds_read2_b32 {vr(AA[k&1]+2,2)}, v{VE} offset0:{4*(k+2)} offset1:{4*(k+2)+2}
{pk}
s_sub_u32 s{sREM}, s{sREM}, 1
s_cbranch_scc1 L_call{k}
""")
    def boundary(k, done):
        if k == U - 1:
            o(f"v_add_u32 v{VI}, {4*U}, v{VI}\nv_add_u32 v{VE}, {16*U}, v{VE}")
        o(f"""
s_sub_u32 s{sIT}, s{sIT}, 1
s_cmp_ge_u32 s{sIT}, {PRIO[0]}
s_cbranch_scc1 {done}
s_setprio 2
s_cmp_ge_u32 s{sIT}, {PRIO[1]}
s_cbranch_scc1 {done}
s_setprio 1
s_cmp_ge_u32 s{sIT}, {PRIO[2]}
s_cbranch_scc1 {done}
s_setprio 0
""")
    for k in range(U):
        body(k, False)
        o(f"L_next{k}:")
        if k % R == R - 1:
            if k == U - 1:
                boundary(k, "L_top")
                o("s_branch L_top")
            else:
                boundary(k, f"L_mid{k}")
                o(f"L_mid{k}:")
    for k in range(U):
        B1 = RING + 4*((k+1) % R)
        o(f"""
L_call{k}:
s_call_b64 s[{sRET}:{sRET+1}], L_flush
s_cbranch_scc0 L_special
s_waitcnt lgkmcnt(0)
v_mfma_f32_16x16x32_bf16 {vr(TT[(k+1)&1],4)}, {vr(AA[(k+1)&1],4)}, {vr(B1,4)}, {vr(Q,4)}
""")
        if k % R == R - 1:
            boundary(k, f"L_cb{k}")
            o(f"L_cb{k}:\ns_nop 2")
        else:
            o("s_nop 5")
        body((k + 1) % U, True)
        o(f"s_branch L_next{(k + 1) % U}")
    o(f"""
L_flush:
v_rcp_f32 v{E}, v{D}
v_rcp_f32 v{E+1}, v{D+1}
v_rcp_f32 v{E+2}, v{D+2}
v_rcp_f32 v{E+3}, v{D+3}
s_mov_b32 s{sP}, s{sSEGE}
s_cbranch_vccnz L_nochk
v_pk_fma_f32 {vr(CK,2)}, {vr(NN,2)}, 0, {vr(D,2)}
v_pk_fma_f32 {vr(CK+2,2)}, {vr(NN+2,2)}, 0, {vr(D+2,2)}
v_pk_add_f32 {vr(CK,2)}, {vr(CK,2)}, {vr(CK+2,2)}
v_add_f32 v{CK}, v{CK}, v{CK+1}
v_cmp_nle_f32 s[{sM}:{sM+1}], v{CK}, s{sBND}
s_nop 3
s_cmp_eq_u64 s[{sM}:{sM+1}], 0
s_cbranch_scc1 L_nochk
s_mov_b32 s{sP}, s{sSEGS}
s_setpc_b64 s[{sRET}:{sRET+1}]
L_nochk:
v_pk_fma_f32 {vr(AC,2)}, {vr(NN,2)}, {vr(E,2)}, {vr(AC,2)}
v_pk_fma_f32 {vr(AC+2,2)}, {vr(NN+2,2)}, {vr(E+2,2)}, {vr(AC+2,2)}
s_cmp_lg_u32 s{sW1}, 0
s_cbranch_scc1 L_havew
s_mov_b32 s{sW1}, 1
""")
    wloads(o, 1, W)
    o(f"""
L_havew:
s_cmp_eq_u32 s{sP}, s{sNEND}
s_cbranch_scc1 L_fin
s_cmp_lg_u32 s{sP}, s{sP1}
s_cbranch_scc1 L_reinit
s_cmp_lg_u32 s{sHEAD}, 0
s_cbranch_scc1 L_pub
s_mov_b32 s{sT0}, s{sWAVE}
s_mov_b32 s{sT1}, s{sP1}
L_col:
s_add_u32 s{sT0}, s{sT0}, 1
s_lshl_b32 s{sT2}, s{sT0}, 2
s_add_u32 s{sT2}, s{sT2}, {L_HF}
v_mov_b32 v{CK}, s{sT2}
L_poll:
ds_read_b32 v{CK+1}, v{CK}
s_waitcnt lgkmcnt(0)
v_readfirstlane_b32 s{sT2}, v{CK+1}
s_nop 3
s_cmp_eq_u32 s{sT2}, s{sRND}
s_cbranch_scc1 L_got
s_sleep 1
s_branch L_poll
L_got:
s_lshl_b32 s{sT2}, s{sT0}, 10
s_add_u32 s{sT2}, s{sT2}, {L_HB}
v_add_u32 v{CK}, s{sT2}, v{VC}
ds_read2st64_b64 {vr(E,4)}, v{CK} offset0:0 offset1:1
s_add_u32 s{sT1}, s{sT1}, s{sCH}
s_waitcnt lgkmcnt(0)
v_pk_add_f32 {vr(AC,2)}, {vr(AC,2)}, {vr(E,2)}
v_pk_add_f32 {vr(AC+2,2)}, {vr(AC+2,2)}, {vr(E+2,2)}
s_cmp_lt_u32 s{sT1}, s{sNEND}
s_cbranch_scc1 L_col
s_branch L_wr
L_fin:
s_cmp_lg_u32 s{sHEAD}, 0
s_cbranch_scc1 L_pub
L_wr:
v_cvt_pk_bf16_f32 v{E}, v{AC}, v{AC+1}
v_cvt_pk_bf16_f32 v{E+1}, v{AC+2}, v{AC+3}
ds_write2st64_b32 v{VB}, v{E}, v{E+1} offset0:0 offset1:1
L_more:
s_mov_b32 s{sHEAD}, 0
s_cmp_lg_u32 s{sP}, s{sP1}
s_cbranch_scc1 L_newnode
s_setpc_b64 s[{sRET}:{sRET+1}]
L_pub:
s_lshl_b32 s{sT2}, s{sWAVE}, 10
s_add_u32 s{sT2}, s{sT2}, {L_HB}
v_add_u32 v{CK}, s{sT2}, v{VC}
s_lshl_b32 s{sT2}, s{sWAVE}, 2
s_add_u32 s{sT2}, s{sT2}, {L_HF}
v_mov_b32 v{CK+1}, s{sT2}
v_mov_b32 v{CK+2}, s{sRND}
ds_write2st64_b64 v{CK}, {vr(AC,2)}, {vr(AC+2,2)} offset0:0 offset1:1
s_waitcnt lgkmcnt(0)
ds_write_b32 v{CK+1}, v{CK+2}
s_branch L_more
L_old:
s_cmp_lg_u32 s{sHEAD}, 0
s_cbranch_scc1 L_reinit
ds_read2st64_b32 {vr(E,2)}, v{VB} offset0:0 offset1:1
s_waitcnt lgkmcnt(0)
v_lshlrev_b32 v{AC}, 16, v{E}
v_and_b32 v{AC+1}, 0xffff0000, v{E}
v_lshlrev_b32 v{AC+2}, 16, v{E+1}
v_and_b32 v{AC+3}, 0xffff0000, v{E+1}
s_branch L_reinit
L_newnode:
v_cmp_ge_u32 s[{sM}:{sM+1}], s{sP}, v{VEND}
v_mov_b64 {vr(AC,2)}, 0
v_mov_b64 {vr(AC+2,2)}, 0
s_nop 1
s_bcnt1_i32_b64 s{sT0}, s[{sM}:{sM+1}]
s_mul_i32 s{sT1}, s{sT0}, {RS}
v_readlane_b32 s{sNEND}, v{VEND}, s{sT0}
v_add_u32 v{VN}, s{sT1}, v{VC}
ds_read2st64_b64 {vr(Q,4)}, v{VN} offset0:0 offset1:1
s_and_b32 s{sT1}, s{sT0}, 15
s_lshl_b32 s{sT1}, s{sT1}, 4
s_lshl_b32 s{sT0}, s{sT0}, 9
s_or_b32 s{sT0}, s{sT0}, s{sT1}
s_add_u32 s{sT0}, s{sT0}, {L_AGB}
v_xor_b32 v{VB}, s{sT0}, v{LO}
s_cmp_lg_u32 s{sRND}, 1
s_cbranch_scc1 L_old
L_reinit:
s_mov_b32 s{sSEGS}, s{sP}
s_add_u32 s{sSEGE}, s{sP}, s{sK}
s_min_u32 s{sSEGE}, s{sSEGE}, s{sNEND}
s_min_u32 s{sSEGE}, s{sSEGE}, s{sP1}
s_sub_u32 s{sREM}, s{sSEGE}, s{sP}
s_sub_u32 s{sREM}, s{sREM}, 1
s_cmp_eq_u32 s{sP}, s{sP}
s_setpc_b64 s[{sRET}:{sRET+1}]
L_special:
s_cmp_eq_u32 s{sP}, s{sP1}
s_cbranch_scc1 L_loopdone
s_mov_b64 vcc, -1
s_mov_b32 s{sK}, 1
s_waitcnt vmcnt(0) lgkmcnt(0)
s_call_b64 s[{sRET}:{sRET+1}], L_reinit
L_slow:
v_mov_b64 {vr(NN,2)}, 0
v_mov_b64 {vr(NN+2,2)}, 0
v_mov_b64 {vr(D,2)}, s[{sONE}:{sONE+1}]
v_mov_b64 {vr(D+2,2)}, s[{sONE}:{sONE+1}]
s_lshl_b32 s{sT0}, s{sP}, 2
s_add_u32 s{sT0}, s{sT0}, {L_IDX}
v_mov_b32 v{VI}, s{sT0}
s_lshl_b32 s{sT0}, s{sP}, 4
v_add_u32 v{VE}, s{sT0}, v{VEL}
ds_read_b32 v{IX}, v{VI}
ds_read2_b32 {vr(A0+2,2)}, v{VE} offset0:0 offset1:2
s_waitcnt lgkmcnt(0)
buffer_load_dword v{RING}, v{IX}, s[16:19], 0 offen sc1
buffer_load_dword v{RING+1}, v{IX}, s[16:19], 0 offen offset:256 sc1
s_waitcnt vmcnt(0)
v_mfma_f32_16x16x32_bf16 {vr(T0,4)}, {vr(A0,4)}, {vr(RING,4)}, {vr(Q,4)}
s_nop 7
v_min_f32 v{T0}, 0x42fc0000, v{T0}
v_min_f32 v{T0+1}, 0x42fc0000, v{T0+1}
v_min_f32 v{T0+2}, 0x42fc0000, v{T0+2}
v_min_f32 v{T0+3}, 0x42fc0000, v{T0+3}
{valu_block(T0)[0]}
{valu_block(T0)[1]}
s_call_b64 s[{sRET}:{sRET+1}], L_flush
s_cbranch_scc1 L_slow
L_loopdone:
""")
    st("le")
    if len(STEPS) < 5: stamp(o, 6)
    o(f"""
s_setprio 0
s_cmp_lg_u32 s{sW1}, 0
s_cbranch_scc1 L_ld2
s_mov_b32 s{sW1}, 1
""")
    wloads(o, 1, W)
    o(f"""
L_ld2:
s_cmp_lg_u32 s{sRND}, 1
s_cbranch_scc1 L_rn0
s_mov_b32 s{sOB}, 0
s_mov_b32 s{sT0}, {WS_OVFC}
L_ov:
s_waitcnt vmcnt(0)
v_cmp_ne_u32 vcc, s100, v{VOVF+1}
v_cmp_ne_u32 s[{sOM}:{sOM+1}], 0, v{VOVF}
s_add_u32 s{sOB}, s{sOB}, 1
s_cmp_ge_u32 s{sOB}, 0x10000
s_cbranch_scc1 L_ovd
s_nop 0
s_cbranch_vccz L_ovd
buffer_load_dwordx2 {vr(VOVF,2)}, v{VC}, s[32:35], s{sT0} offen sc1
s_branch L_ov
L_ovd:
s_mov_b32 s{sOB}, 0
L_rn0:
v_and_b32 v{TMP}, 15, v1
v_xor_b32 v{TMP+1}, v{TMP}, v3
v_lshlrev_b32 v{TMP+1}, 4, v{TMP+1}
v_lshl_add_u32 v{TMP+1}, v{TMP}, 9, v{TMP+1}
s_waitcnt vmcnt(0)
s_cmp_eq_u64 s[{sOM}:{sOM+1}], 0
s_cbranch_scc0 L_round
""")
    o(f"v_add_u32 v4, {L_AGB}, v{TMP+1}")
    for ks in range(1, 8):
        o(f"v_xor_b32 v{4+ks}, {64*ks}, v4")
    o(f"""
v_add_u32 v{TMP+2}, s{sN0}, v{TMP}
v_lshlrev_b32 v{TMP+2}, 9, v{TMP+2}
v_lshl_add_u32 v{TMP+2}, v3, 3, v{TMP+2}
s_lshl_b32 s{sT0}, s{sWAVE}, 5
s_add_u32 s{sT1}, s{sT0}, 8192
s_add_u32 s{sT2}, s{sT0}, 16384
s_sub_u32 s{sCNT}, s{sCNT}, 32
v_cmp_gt_u32 s[{sM}:{sM+1}], s{sCNT}, v{TMP}
v_mov_b32 v12, s{sSC}
""")
    if "ostage" in OPT:
        o(f"""
v_lshrrev_b32 v13, 1, v3
s_lshl_b32 s{sT1}, s{sWAVE}, 1
v_or_b32 v13, s{sT1}, v13
v_xor_b32 v13, v13, v{TMP}
v_lshlrev_b32 v13, 4, v13
v_lshl_add_u32 v13, v{TMP}, 9, v13
v_and_b32 v14, 1, v3
v_lshl_add_u32 v13, v14, 3, v13
v_lshrrev_b32 v14, 5, v0
v_cmp_gt_u32 vcc, s{sCNT}, v14
v_and_b32 v14, 15, v14
v_lshlrev_b32 v14, 4, v14
v_xor_b32 v14, v14, v2
v_add_u32 v15, 0x4000, v2
v_mov_b32 v16, 0x7ffffff0
s_lshl_b32 s{sT0}, s{sN0}, 9
v_cndmask_b32 v15, v16, v15, vcc
""")
    o("s_waitcnt lgkmcnt(0)\ns_barrier")
    st("fb")
    OSF = "sc1" if "o_sc1" in OPT else "nt" if "o_nt" in OPT else "sc1 nt" if "o_sc1nt" in OPT else ""
    FB = [T0, T1, E, NN]
    def rd(i):
        o(f"ds_read_b128 {vr(FB[i % 4],4)}, v{4 + (i & 7)} offset:{(i >> 3)*8192}")
    def silu(rt):
        a, t = UA + 4*rt, D
        l = [f"v_exp_f32 v{t+i}, v{a+i}" for i in range(4)]
        l += [f"v_fma_f32 v{t+i}, v{t+i}, v12, v12" for i in range(4)]
        l += [f"v_rcp_f32 v{t+i}, v{t+i}" for i in range(4)]
        l += [f"v_mul_f32 v{a+i}, v{a+i}, v{t+i}" for i in range(4)]
        l += [f"v_cvt_pk_bf16_f32 v{a}, v{a}, v{a+1}", f"v_cvt_pk_bf16_f32 v{a+1}, v{a+2}, v{a+3}"]
        if "ostage" in OPT:
            l.append(f"ds_write_b64 v13, {vr(a,2)} offset:{rt*8192}")
            return l
        if rt == 2:
            l.append(f"s_mov_b64 exec, s[{sM}:{sM+1}]")
        l.append(f"buffer_store_dwordx2 {vr(a,2)}, v{TMP+2}, s[40:43], s{[sT0,sT1,sT2][rt]} offen {OSF}")
        return l
    for i in range(3):
        rd(i)
    pend = []
    for i in range(24):
        rt, ks = i >> 3, i & 7
        if i + 3 < 24:
            rd(i + 3)
        o(f"s_waitcnt lgkmcnt({min(3, 23 - i)})")
        o(f"v_mfma_f32_16x16x32_bf16 {vr(UA+4*rt,4)}, {vr(W+4*ks,4)}, {vr(FB[i % 4],4)}, {vr(UA+4*rt,4)}")
        if ks == 2 and rt > 0:
            pend = silu(rt - 1)
        n = 4 if ks < 7 else len(pend)
        o("\n".join(pend[:n]))
        pend = pend[n:]
    o("s_nop 7")
    st("fg")
    o("\n".join(silu(2)))
    if "ostage" in OPT:
        o(f"""
s_waitcnt lgkmcnt(0)
s_barrier
ds_read_b128 v[16:19], v14
ds_read_b128 v[20:23], v14 offset:16384
s_waitcnt lgkmcnt(1)
buffer_store_dwordx4 v[16:19], v2, s[40:43], s{sT0} offen {OSF}
s_cmp_ge_u32 s{sWAVE}, {X2W}
s_cbranch_scc1 L_os
s_waitcnt lgkmcnt(0)
buffer_store_dwordx4 v[20:23], v15, s[40:43], s{sT0} offen {OSF}
L_os:
""")
    st("fs")
    if STAMP:
        o(f"""
s_waitcnt vmcnt(0)
s_memrealtime s[94:95]
s_mov_b64 exec, 1
s_lshl_b32 s26, s2, 4
s_add_u32 s26, s26, s{sWAVE}
s_lshl_b32 s26, s26, 5
s_add_u32 s26, s26, {WS_STAMP + 0x100000}
s_mov_b32 s34, 0x1000000
v_mov_b32 v0, 0
s_waitcnt lgkmcnt(0)
""")
        xd = next((x for x in OPT if x.startswith("xdel")), None)
        if xd:
            k = int(xd[4:])
            sel = "s_cmp_lt_u32 s2, 64\ns_cselect_b32 s26, 0, s26" if "xrest" in OPT else ""
            o(f"""
s_sub_u32 s26, s{80+2*k}, s80
{sel}
s_mul_i32 s26, s26, 10
s_add_u32 s26, s26, s94
X_spin:
s_memrealtime s[92:93]
s_waitcnt lgkmcnt(0)
s_sub_u32 s27, s92, s26
s_cmp_lt_i32 s27, 0
s_cbranch_scc1 X_spin
s_endpgm
""")
        for i in range(8):
            o(f"v_mov_b32 v{4+i}, s{80+2*i}")
        if "dbgst" in OPT:
            o("v_not_b32 v12, v4\nv_not_b32 v13, v9\nv_not_b32 v14, v5\nv_not_b32 v15, v10")
            for i in range(12):
                o(f"buffer_atomic_umax v{4+i}, v0, s[96:99], 0 offen offset:{8+4*i} sc1")
        else:
            o("buffer_store_dwordx4 v[4:7], v0, s[32:35], s26 offen\nbuffer_store_dwordx4 v[8:11], v0, s[32:35], s26 offen offset:16")
    o(f"""
L_end:
s_endpgm
L_round:
s_waitcnt lgkmcnt(0)
s_barrier
s_ff1_i32_b64 s{sT0}, s[{sOM}:{sOM+1}]
s_mul_i32 s{sT1}, s{sT0}, {CHUNK*8}
v_readlane_b32 s{sOC}, v{VOVF}, s{sT0}
s_lshl_b32 s{sT2}, s{sOB}, 3
s_add_u32 s{sT1}, s{sT1}, s{sT2}
s_add_u32 s{sT1}, s{sT1}, {WS_OVF}
buffer_load_dwordx4 {vr(REC,4)}, v2, s[32:35], s{sT1} offen sc1
v_lshlrev_b32 v{TMP}, 1, v0
v_add_u32 v{TMP}, s{sOB}, v{TMP}
v_add_u32 v{TMP+1}, 1, v{TMP}
v_cmp_gt_u32 s[{sV0}:{sV0+1}], s{sOC}, v{TMP}
v_cmp_gt_u32 s[{sV1}:{sV1+1}], s{sOC}, v{TMP+1}
s_add_u32 s{sOB}, s{sOB}, 2048
s_cmp_lt_u32 s{sOB}, s{sOC}
s_cbranch_scc1 L_rn2
s_bitset0_b64 s[{sOM}:{sOM+1}], s{sT0}
s_mov_b32 s{sOB}, 0
L_rn2:
s_waitcnt vmcnt(0)
v_lshrrev_b32 v{TMP}, 16, v{REC+1}
v_lshrrev_b32 v{TMP+1}, 16, v{REC+3}
v_cmp_eq_u32 s[{sM}:{sM+1}], s2, v{TMP}
s_nop 3
s_and_b64 s[{sV0}:{sV0+1}], s[{sV0}:{sV0+1}], s[{sM}:{sM+1}]
v_cmp_eq_u32 s[{sM}:{sM+1}], s2, v{TMP+1}
s_nop 3
s_and_b64 s[{sV1}:{sV1+1}], s[{sV1}:{sV1+1}], s[{sM}:{sM+1}]
""")
    sort_rank(o)
    o("s_waitcnt lgkmcnt(0)\ns_barrier")
    sort_scatter(o)
    o("s_waitcnt lgkmcnt(0)\ns_barrier")
    o("s_branch L_pr\nL_ugemm:")
    XB = [QA, QA + 4, QA + 8, W3 - 2]
    seq = [(ks, rt) for ks in range(8) for rt in range(3)]
    def urd(i):
        ks, rt = seq[i]
        if rt == 0 and ks:
            o(f"v_xor_b32 v{TMP+6}, {64*ks}, v{VXA}")
        o(f"ds_read_b128 {vr(XB[i % 4],4)}, v{TMP+6 if ks else VXA} offset:{rt*8192}")
    for i in range(3):
        urd(i)
    for i, (ks, rt) in enumerate(seq):
        if i + 3 < 24:
            urd(i + 3)
        if rt == 0:
            o(f"s_waitcnt vmcnt({7-ks+1+2*R})")
        o(f"s_waitcnt lgkmcnt({min(3, 23 - i)})")
        c = "0" if ks == 0 else vr(UA+4*rt, 4)
        o(f"v_mfma_f32_16x16x32_bf16 {vr(UA+4*rt,4)}, {vr(W+4*ks,4)}, {vr(XB[i % 4],4)}, {c}")
    o("s_nop 5")
    for h in range(6):
        o(f"v_pk_mul_f32 {vr(UA+2*h,2)}, {vr(UA+2*h,2)}, s[{sSC}:{sSC+1}]")
    if "w2early" in OPT:
        o(f"s_mov_b32 s{sW1}, 1")
        wloads(o, 1, W)
    o(f"s_setpc_b64 s[{sRET}:{sRET+1}]")
    bin_overflow(o)

def main(path):
    o = Asm()
    gen(o)
    hdr = f"""; MPNN edge-MLP + segment sum + node update in one launch (256 co-resident workgroups, one per CU).
; m_in@w_msg is split as P[src] + Q[dst] + e*w3 with P = x@W1, Q = x@W2 (all pre-scaled by -log2e).
;          Hand-offs use write-through stores plus a per-launch tag (published through d_debug).
; @launch grid=(256,1,1) block=(1024,1,1) lds={L_ALLOC}
.amdgcn_target "amdgcn-amd-amdhsa--gfx950"
.text
"""
    desc = f""".section .rodata,"a"
.p2align 6
.amdhsa_kernel {KNAME}
  .amdhsa_next_free_vgpr {NV}
  .amdhsa_next_free_sgpr 102
  .amdhsa_accum_offset {(NV+3)//4*4}
  .amdhsa_group_segment_fixed_size 0
  .amdhsa_kernarg_size 72
  .amdhsa_user_sgpr_count 2
  .amdhsa_user_sgpr_kernarg_segment_ptr 1
  .amdhsa_system_sgpr_workgroup_id_x 1
.end_amdhsa_kernel
"""
    open(path, "w").write(hdr + o.text() + desc)

if __name__ == "__main__":
    if "--stamp" in sys.argv:
        sys.argv.remove("--stamp")
        STAMP = True
    for a in list(sys.argv):
        if a.startswith("--steps="):
            sys.argv.remove(a)
            STEPS = a[8:].split(",")
        if a.startswith("--poll="):
            sys.argv.remove(a)
            STEP_FLAG = int(a[7:])
        if a.startswith("--prio="):
            sys.argv.remove(a)
            PRIO = [int(x) for x in a[7:].split(",")]
        if a.startswith("--kmax="):
            sys.argv.remove(a)
            KMAX = int(a[7:])
        if a.startswith("--bt="):
            sys.argv.remove(a)
            BT = int(a[5:])
        if a.startswith("--unr="):
            sys.argv.remove(a)
            UNR = int(a[6:])
        if a.startswith("--opt="):
            sys.argv.remove(a)
            OPT |= set(a[6:].split(","))
    main(sys.argv[1] if len(sys.argv) > 1 else "gather_scatter__mpnn_edge_mlp__graph.s")
```

```python
import sys

N = 10000
WS_WPACK = 0x500000
WS_OVFC = 0x560000
WS_OVF = 0x570000
WS_FLAG = 0x6E0000
WS_CELL = 0x700000
WS_END = 0xB00000
WS_STAMP = 0xC00000
CHUNK = 2500
CAP = 28
NEGL2E = 0xBFB8AA3B
NEGLN2 = 0xBF317218
KNAME = "gather_scatter__mpnn_edge_mlp__graph_kernel"
STAMP = False
STEP_FLAG = 14
STEPS = ["s-1", "pst", "drain", "cell"]
OPT = {"ostage", "o_sc1", "nont"}

class Asm:
    def __init__(self):
        self.l = []
    def __call__(self, s):
        for line in s.strip("\n").split("\n"):
            line = line.strip()
            if line:
                self.l.append(line if line.endswith(":") else "    " + line)
    def text(self):
        l = self.l
        def sub(a_lab, b_lab, pref):
            a = l.index(a_lab); b = l.index(b_lab)
            return l[:a] + [("    s_nop 0" if any(x.strip().startswith(p) for p in pref) else x) for x in l[a:b]] + l[b:]
        if "gplain" in OPT:
            l = [x.replace(" sc1", "") if "s[16:19], 0 offen" in x else x for x in l]
        if "gnt" in OPT:
            l = [x + " nt" if "s[16:19], 0 offen" in x else x for x in l]
        if "noprio" in OPT:
            l = [x for x in l if "s_setprio" not in x]
        if "noloop_ld" in OPT: l = sub("L_top:", "L_call0:", ["buffer_load"])
        return "\n".join(l) + "\n"

def vr(a, n):
    return f"v[{a}:{a+n-1}]" if n > 1 else f"v{a}"

def srd(o, d, lo, hi, size):
    o(f"s_mov_b32 s{d}, s{lo}\ns_mov_b32 s{d+1}, s{hi}\ns_mov_b32 s{d+2}, {size}\ns_mov_b32 s{d+3}, 0x20000")

def stamp(o, i):
    if STAMP:
        if "clk2" in OPT:
            if i in (1, 2):
                o(f"s_memrealtime s[{80+2*i}:{81+2*i}]\ns_memtime s[{84+2*i}:{85+2*i}]\ns_waitcnt lgkmcnt(0)")
            elif i not in (3, 4):
                o(f"s_memrealtime s[{80+2*i}:{81+2*i}]\ns_waitcnt lgkmcnt(0)")
            return
        o(f"s_memrealtime s[{80+2*i}:{81+2*i}]\ns_waitcnt lgkmcnt(0)")

R = 6
KMAX = 24
BT = 36
UNR = 1
def tile_consts():
    from math import gcd
    rest = N - 64 * BT
    g = gcd(rest, 192); p, q = rest // g, 192 // g
    n0 = lambda t: BT * t if t <= 64 else 64 * BT + -(-(t - 64) * p // q)
    own = [t for t in range(256) for _ in range(n0(t + 1) - n0(t))]
    M1 = -(-(1 << 23) // BT)
    M2 = -(-(1 << 24) * q // p); C2 = (64 << 24) - 64 * BT * M2
    assert 0 <= C2 and 9999 * M2 + C2 < 1 << 32 and 9999 * M1 < 1 << 32
    assert all(min(d * M1 >> 23, (d * M2 + C2) >> 24) == own[d] for d in range(N))
    for sh in range(14, 24):
        MQ = -(-(1 << sh) // q)
        if (192 * p + q) * MQ < 1 << 32 and all(((j * p + q - 1) * MQ >> sh) == -(-j * p // q) for j in range(193)):
            return p, q, M1, M2, C2, MQ, sh, max(n0(t + 1) - n0(t) for t in range(256))
    raise ValueError
PRIO = [4, 3, 2]
RS = 1040
L_QS = 0
L_AGB = (48 * RS + 511) // 512 * 512
L_HB = L_AGB + 48 * 512
L_IDX = L_HB + 16 * 1024
L_ET = L_IDX + 2064 * 4
L_CNT = (L_ET + 2052 * 16 + 255) // 256 * 256
L_HF = L_CNT + 256
L_XS = (L_HF + 256 + 511) // 512 * 512
L_END = L_XS + 48 * 512
L_IMG = 65536
L_BCNT = 131072
L_PST = 0
L_PK = 65536
L_ALLOC = L_END
assert L_BCNT + 1100 <= L_CNT and L_END <= 163840
RING = 4
A0, A1, Q, T0, T1, E, NN, D, AC, UA = 28, 32, 36, 40, 44, 48, 52, 56, 60, 64
VOVF, VB, IX, AD, LO, VI, VE, VN, VC, VEND, VEL = 76, 78, 79, 80, 81, 82, 83, 84, 85, 86, 126
TMP = 87
W = 94
NV = 127
PA, QA, VXA, VWA, VWS, VTG, W3, TG0, ZR = UA, 48, AD, 36, 38, 76, 62, 60, 44
XFB, WFB = [W, W + 16], [W + 12, W + 28]
VWB = VE
CK0, CK1, CK2 = 34, 35, 37
TAG = 92
sWAVE, sN0, sCNT, sHEAD, sIT, sW1, sCH = 3, 4, 5, 6, 7, 26, 27
sP, sP1, sREM, sSEGE, sSEGS, sNEND, sK, sTOT, sRND, sOB, sOC, sOFF = range(48, 60)
sV0, sV1, sOM, sRET, sSO, sM, sONE, sSC = 60, 62, 64, 66, 68, 70, 72, 74
sM0, sBORN, sODD, sJ = 69, 65, 6, 14
sT0, sT1, sT2, sBND = 76, 77, 78, 79
sLN2 = 44
REC, RK0, RK1 = 40, 4, 5
CK = TMP + 1

def valu_block(T):
    ex = "\n".join(f"v_exp_f32 v{E+i}, v{T+i}" for i in range(4))
    pk = f"""
v_pk_fma_f32 {vr(NN,2)}, {vr(NN,2)}, {vr(E,2)}, {vr(NN,2)}
v_pk_fma_f32 {vr(NN+2,2)}, {vr(NN+2,2)}, {vr(E+2,2)}, {vr(NN+2,2)}
v_pk_fma_f32 {vr(NN,2)}, {vr(T,2)}, {vr(D,2)}, {vr(NN,2)}
v_pk_fma_f32 {vr(NN+2,2)}, {vr(T+2,2)}, {vr(D+2,2)}, {vr(NN+2,2)}
v_pk_fma_f32 {vr(D,2)}, {vr(D,2)}, {vr(E,2)}, {vr(D,2)}
v_pk_fma_f32 {vr(D+2,2)}, {vr(D+2,2)}, {vr(E+2,2)}, {vr(D+2,2)}
"""
    return ex, pk

def poll(o, tag, soff, count):
    o(f"""
v_lshlrev_b32 v{TMP}, 7, v1
s_mov_b32 s{sT1}, 0
s_mov_b64 exec, {"-1" if count == 64 else hex((1 << count) - 1)}
F_pl{tag}:
buffer_load_dwordx2 {vr(TMP+1,2)}, v{TMP}, s[32:35], {soff} offen sc1
s_add_u32 s{sT1}, s{sT1}, 1
s_waitcnt vmcnt(0)
v_cmpx_ne_u64 vcc, s[100:101], {vr(TMP+1,2)}
s_nop 4
s_cbranch_execz F_pd{tag}
s_sleep 2
s_cmp_lt_u32 s{sT1}, 0x10000
s_cbranch_scc1 F_pl{tag}
F_pd{tag}:
s_mov_b64 exec, -1
""")

def get_tag(o, tag):
    o(f"""
s_mov_b32 s{sT1}, 0
F_tg{tag}:
v_readfirstlane_b32 s100, v{TAG}
v_readfirstlane_b32 s101, v{TAG+1}
s_add_u32 s{sT1}, s{sT1}, 1
s_cmp_ge_u32 s{sT1}, 0x10000
s_cbranch_scc1 F_th{tag}
s_cmp_lt_u32 s{sT1}, 0x100
s_cselect_b32 s{sT0}, s{sBORN}, s100
s_sub_u32 s{sT0}, s100, s{sT0}
s_cmp_lg_u32 s100, 0
s_cselect_b32 s{sT0}, s{sT0}, -1
s_cmp_ge_i32 s{sT0}, 0
s_cbranch_scc1 F_th{tag}
buffer_load_dwordx2 {vr(TAG,2)}, v{VTG}, s[96:99], 0 offen sc1
s_waitcnt vmcnt(0)
s_branch F_tg{tag}
F_th{tag}:
""")

def put_flag(o, soff):
    o(f"""
v_mov_b32 v{TMP+1}, s100
v_mov_b32 v{TMP+2}, s101
s_mov_b64 exec, 1
buffer_store_dwordx2 {vr(TMP+1,2)}, v{VTG}, s[32:35], {soff} offen sc1
s_mov_b64 exec, -1
""")

def sort_rank(o):
    o(f"""
s_lshl_b32 s{sT0}, s{sN0}, 2
s_sub_u32 s{sT0}, {L_CNT}, s{sT0}
v_and_b32 v{TMP}, 0x3fff, v{REC}
v_and_b32 v{TMP+1}, 0x3fff, v{REC+2}
v_mov_b32 v{TMP+3}, 1
v_lshl_add_u32 v{TMP}, v{TMP}, 2, s{sT0}
v_lshl_add_u32 v{TMP+1}, v{TMP+1}, 2, s{sT0}
s_mov_b64 exec, s[{sV0}:{sV0+1}]
ds_add_rtn_u32 v{RK0}, v{TMP}, v{TMP+3}
s_mov_b64 exec, s[{sV1}:{sV1+1}]
ds_add_rtn_u32 v{RK1}, v{TMP+1}, v{TMP+3}
s_mov_b64 exec, -1
v_add_u32 v{TMP+4}, {L_CNT}, v{LO}
v_lshrrev_b32 v{REC}, 5, v{REC}
v_lshrrev_b32 v{REC+2}, 5, v{REC+2}
""")

def sort_scatter(o):
    o(f"""
ds_read_b32 v{TMP+2}, v{TMP+4}
v_and_b32 v{REC}, 0x7ffe00, v{REC}
v_and_b32 v{REC+2}, 0x7ffe00, v{REC+2}
s_mov_b32 s{sT0}, {L_IDX}
s_mov_b32 s{sT1}, {L_ET}
s_waitcnt lgkmcnt(0)
v_add_u32_dpp v{VEND}, v{TMP+2}, v{TMP+2} row_shr:1 row_mask:0xf bank_mask:0xf bound_ctrl:0
s_nop 1
v_add_u32_dpp v{VEND}, v{VEND}, v{VEND} row_shr:2 row_mask:0xf bank_mask:0xf bound_ctrl:0
s_nop 1
v_add_u32_dpp v{VEND}, v{VEND}, v{VEND} row_shr:4 row_mask:0xf bank_mask:0xf bound_ctrl:0
s_nop 1
v_add_u32_dpp v{VEND}, v{VEND}, v{VEND} row_shr:8 row_mask:0xf bank_mask:0xf bound_ctrl:0
s_nop 1
v_add_u32_dpp v{VEND}, v{VEND}, v{VEND} row_bcast:15 row_mask:0xa bank_mask:0xf
s_nop 1
v_add_u32_dpp v{VEND}, v{VEND}, v{VEND} row_bcast:31 row_mask:0xc bank_mask:0xf
v_sub_u32 v{TMP+3}, v{VEND}, v{TMP+2}
v_readlane_b32 s{sTOT}, v{VEND}, 63
ds_bpermute_b32 v{TMP}, v{TMP}, v{TMP+3}
ds_bpermute_b32 v{TMP+1}, v{TMP+1}, v{TMP+3}
s_nop 1
s_add_u32 s{sCH}, s{sTOT}, 15
s_lshr_b32 s{sCH}, s{sCH}, 4
s_mul_i32 s{sP}, s{sCH}, s{sWAVE}
s_add_u32 s{sP1}, s{sP}, s{sCH}
s_min_u32 s{sP}, s{sP}, s{sTOT}
s_min_u32 s{sP1}, s{sP1}, s{sTOT}
s_waitcnt lgkmcnt(0)
v_add_u32 v{TMP}, v{TMP}, v{RK0}
v_add_u32 v{TMP+1}, v{TMP+1}, v{RK1}
v_lshl_add_u32 v{TMP+2}, v{TMP}, 2, s{sT0}
v_lshl_add_u32 v{TMP+3}, v{TMP+1}, 2, s{sT0}
v_lshl_add_u32 v{TMP}, v{TMP}, 4, s{sT1}
v_lshl_add_u32 v{TMP+1}, v{TMP+1}, 4, s{sT1}
s_mov_b64 exec, s[{sV0}:{sV0+1}]
ds_write_b32 v{TMP+2}, v{REC}
ds_write_b16 v{TMP}, v{REC+1} offset:8
ds_write_b16 v{TMP}, v{REC+1} offset:14
s_mov_b64 exec, s[{sV1}:{sV1+1}]
ds_write_b32 v{TMP+3}, v{REC+2}
ds_write_b16 v{TMP+1}, v{REC+3} offset:8
ds_write_b16 v{TMP+1}, v{REC+3} offset:14
s_mov_b64 exec, -1
""")

def zero_cnt(o):
    o(f"v_mov_b32 v{TMP}, 0\nds_write_b32 v{TMP+4}, v{TMP}")

def prime(o):
    PT = T0
    o(f"""
s_lshl_b32 s{sT0}, s{sP}, 2
s_add_u32 s{sT0}, s{sT0}, {L_IDX}
v_mov_b32 v{VI}, s{sT0}
s_lshl_b32 s{sT0}, s{sP}, 4
v_add_u32 v{VE}, s{sT0}, v{VEL}
""")
    for k in range(0, R, 2):
        o(f"ds_read2_b32 {vr(PT+k,2)}, v{VI} offset0:{k} offset1:{k+1}")
    o(f"""
ds_read_b32 v{IX}, v{VI} offset:{4*R}
ds_read2_b32 {vr(A0+2,2)}, v{VE} offset0:0 offset1:2
ds_read2_b32 {vr(A1+2,2)}, v{VE} offset0:4 offset1:6
s_waitcnt lgkmcnt(0)
""")
    for k in range(R):
        B = RING + 4*k
        o(f"buffer_load_dword v{B}, v{PT+k}, s[16:19], 0 offen sc1")
        o(f"buffer_load_dword v{B+1}, v{PT+k}, s[16:19], 0 offen offset:256 sc1")

def wloads(o, mat, wreg, kss=range(8), sa=sT0, sb=sT1, va=TMP+5, setup=True):
    if not setup:
        for ks in kss:
            o(f"buffer_load_dwordx4 {vr(wreg+4*ks,4)}, v{va}, s[32:35], s{sa if ks < 4 else sb} offen offset:{(ks%4)*1024} sc1")
        return
    o(f"""
s_lshl_b32 s{sT0}, s{sWAVE}, 13
s_add_u32 s{sT0}, s{sT0}, {WS_WPACK + mat*131072}
s_add_u32 s{sT1}, s{sT0}, 4096
v_lshlrev_b32 v{TMP+5}, 4, v1
""")
    for ks in range(8):
        o(f"buffer_load_dwordx4 {vr(wreg+4*ks,4)}, v{TMP+5}, s[32:35], s{sT0 if ks < 4 else sT1} offen offset:{(ks%4)*1024} sc1")

DST, SRC, EA, OWN, RK, R0 = 8, 12, 16, 20, 24, 28
EW = [EA, 18, EA + 1, 19]
sBM = 58
def bin_rank(o):
    o(f"v_mov_b32 v{TMP+3}, 1\ns_movk_i32 s57, 256\ns_mov_b64 exec, s[{sBM}:{sBM+1}]")
    for k in range(4):
        o(f"""
v_mad_u32_u24 v{OWN+k}, v{DST+k}, s56, v45
v_mul_u32_u24 v{TMP+4}, s62, v{DST+k}
v_lshrrev_b32 v{OWN+k}, 24, v{OWN+k}
v_lshrrev_b32 v{TMP+4}, 23, v{TMP+4}
v_min_u32 v{OWN+k}, v{OWN+k}, v{TMP+4}
v_lshl_add_u32 v{TMP+4}, v{OWN+k}, 2, s60
ds_add_rtn_u32 v{RK+k}, v{TMP+4}, v{TMP+3}
""")
    for k in range(4):
        o(f"""
v_lshl_or_b32 v{R0+k}, v{SRC+k}, 14, v{DST+k}
v_and_b32 v{TMP+1}, 7, v{OWN+k}
v_lshl_add_u32 v{DST+k}, v{OWN+k}, 8, s61
v_lshl_or_b32 v{DST+k}, v{TMP+1}, 4, v{DST+k}
""")
    o(f"""
v_lshrrev_b32 v18, 16, v{EA}
v_lshrrev_b32 v19, 16, v{EA+1}
s_waitcnt lgkmcnt(0)
v_max3_u32 v{TMP}, v{RK}, v{RK+1}, v{RK+2}
v_max_u32 v{TMP}, v{TMP}, v{RK+3}
v_cmp_le_u32 vcc, {CAP}, v{TMP}
""")
    for k in range(4):
        o(f"""
v_mad_u32_u24 v{SRC+k}, v{RK+k}, 37, s57
v_lshrrev_b32 v{SRC+k}, 8, v{SRC+k}
v_add_lshl_u32 v{SRC+k}, v{SRC+k}, v{RK+k}, 3
v_xor_b32 v{DST+k}, v{SRC+k}, v{DST+k}
""")
    o("s_cbranch_vccnz F_ovf")
    for k in range(4):
        o(f"ds_write2_b32 v{DST+k}, v{R0+k}, v{EW[k]} offset0:0 offset1:1")
    o("F_ovfback:\ns_mov_b64 exec, -1")

def bin_overflow(o):
    o(f"F_ovf:\ns_mul_i32 s50, s2, {CHUNK*8}\ns_add_u32 s50, s50, {WS_OVF}\nv_mov_b32 v{TMP}, {L_BCNT+1024}")
    for k in range(4):
        o(f"""
v_cmp_gt_u32 vcc, {CAP}, v{RK+k}
s_and_saveexec_b64 s[62:63], vcc
ds_write2_b32 v{DST+k}, v{R0+k}, v{EW[k]} offset0:0 offset1:1
s_andn2_b64 exec, s[62:63], exec
s_cbranch_execz F_no{k}
ds_add_rtn_u32 v{TMP+4}, v{TMP}, v{TMP+3}
v_mov_b32 v{TMP+1}, v{R0+k}
v_and_b32 v{TMP+2}, 0xffff, v{EW[k]}
v_lshl_or_b32 v{TMP+2}, v{OWN+k}, 16, v{TMP+2}
s_waitcnt lgkmcnt(0)
v_lshlrev_b32 v{TMP+4}, 3, v{TMP+4}
buffer_store_dwordx2 {vr(TMP+1,2)}, v{TMP+4}, s[32:35], s50 offen sc1
s_waitcnt vmcnt(0)
F_no{k}:
s_mov_b64 exec, s[62:63]
""")
    o("s_branch F_ovfback")

def bin_copy(o):
    o(f"""
v_mov_b32 v31, s100
s_waitcnt lgkmcnt(5)
v_cmp_lt_u32 vcc, 14, v28
v_min_u32 v28, {CAP}, v28
v_cmp_lt_u32 s[62:63], 14, v29
v_min_u32 v29, {CAP}, v29
v_cndmask_b32 v24, v43, v41, vcc
v_cndmask_b32 v25, v43, v41, s[62:63]
s_waitcnt lgkmcnt(4)
v_cndmask_b32 v8, v8, v28, s[22:23]
v_cndmask_b32 v9, v9, v31, s[22:23]
buffer_store_dwordx4 v[8:11], v41, s[32:35], s24 offen sc1
s_waitcnt lgkmcnt(3)
v_cndmask_b32 v12, v12, v29, s[22:23]
v_cndmask_b32 v13, v13, v31, s[22:23]
buffer_store_dwordx4 v[12:15], v41, s[32:35], s25 offen sc1
s_waitcnt lgkmcnt(2)
v_cndmask_b32 v17, v17, v31, s[22:23]
buffer_store_dwordx4 v[16:19], v24, s[32:35], s24 offen offset:128 sc1
s_waitcnt lgkmcnt(1)
v_cndmask_b32 v21, v21, v31, s[22:23]
buffer_store_dwordx4 v[20:23], v25, s[32:35], s25 offen offset:128 sc1
s_cmp_lg_u32 s{sWAVE}, 0
s_cbranch_scc1 F_bc1
s_lshl_b32 s50, s2, 3
s_add_u32 s50, s50, {WS_OVFC}
s_mov_b64 exec, 1
s_waitcnt lgkmcnt(0)
buffer_store_dwordx2 v[30:31], v{VTG}, s[32:35], s50 offen sc1
s_mov_b64 exec, -1
F_bc1:
""")

def gen(o):
    global TP, TQ, M1, M2, C2
    TP, TQ, M1, M2, C2, MQ, SH, MAXROWS = tile_consts()
    X2W = (MAXROWS - 32 + 1) // 2
    XNT = "" if "nont" in OPT else "nt"
    AA = [A0, A1]
    TT = [T0, T1]
    o(f"""
.globl {KNAME}
.p2align 8
.type {KNAME},@function
{KNAME}:
s_cmp_ge_u32 s2, 256
s_cbranch_scc1 L_end
s_load_dwordx2 s[28:29], s[0:1], 0
s_load_dwordx2 s[44:45], s[0:1], 32
s_load_dwordx2 s[36:37], s[0:1], 24
s_load_dwordx2 s[12:13], s[0:1], 16
s_load_dwordx2 s[52:53], s[0:1], 8
s_load_dwordx2 s[40:41], s[0:1], 40
s_load_dwordx2 s[32:33], s[0:1], 64
s_load_dwordx2 s[96:97], s[0:1], 56
s_load_dwordx2 s[20:21], s[0:1], 48
s_memrealtime s[100:101]
""")
    if STAMP: o("s_memrealtime s[80:81]")
    ops = []
    def vm(target):
        return len(ops) - 1 - max(i for i, x in enumerate(ops) if x == target)
    LOC2 = [65536, 81920, 98304, 114688, 32768, 49152, 0, 16384]
    def d1(s, count=True):
        o(f"""
s_add_u32 m0, s{sSO}, {(s & 3) * 16384}
s_add_u32 s{sM0}, s{sSO}, {s*16384}
buffer_load_dwordx4 v{VWS}, s[44:47], s{sM0} offen lds
""")
        if count: ops.append(("d", s))
    def d2(s):
        o(f"""
s_add_u32 m0, s{sSO}, {LOC2[s]}
s_add_u32 s{sM0}, s{sSO}, {131072 + s*16384}
buffer_load_dwordx4 v{VWS}, s[44:47], s{sM0} offen lds
""")
        ops.append(("e", s))
    def dma(p, count=True):
        d1(2*p, count)
        d1(2*p + 1, count)
    o(f"""
v_lshrrev_b32 v2, 6, v0
v_and_b32 v1, 63, v0
s_mul_i32 s{sN0}, s2, {TP}
v_readfirstlane_b32 s{sWAVE}, v2
v_lshrrev_b32 v4, 5, v1
v_and_b32 v6, 31, v1
s_sub_u32 s{sN0}, s{sN0}, {64*TP - (TQ - 1)}
s_add_u32 s{sCNT}, s{sN0}, {TP}
s_mul_i32 s{sN0}, s{sN0}, {MQ}
s_mul_i32 s{sCNT}, s{sCNT}, {MQ}
s_lshr_b32 s{sN0}, s{sN0}, {SH}
s_lshr_b32 s{sCNT}, s{sCNT}, {SH}
s_sub_u32 s{sCNT}, s{sCNT}, s{sN0}
s_add_u32 s{sN0}, s{sN0}, {64*BT}
s_mul_i32 s50, s2, {BT}
s_cmp_lt_u32 s2, 64
s_cselect_b32 s{sN0}, s50, s{sN0}
s_cselect_b32 s{sCNT}, {BT}, s{sCNT}
s_lshl_b32 s50, s{sWAVE}, 1
v_add_u32 v5, s50, v4
v_lshlrev_b32 v2, 4, v0
v_and_b32 v7, 15, v5
v_xor_b32 v7, v7, v6
v_lshlrev_b32 v7, 4, v7
v_lshl_add_u32 v7, v4, 9, v7
v_lshlrev_b32 v{LO}, 2, v1
v_mov_b32 v{VTG}, 0
s_mov_b32 s30, {N*512}
s_mov_b32 s31, 0x20000
s_mov_b32 s46, {513*512}
s_mov_b32 s47, 0x20000
s_mov_b32 s38, 640000
s_mov_b32 s39, 0x20000
s_mov_b32 s14, 640000
s_mov_b32 s15, 0x20000
s_mov_b32 s54, 320000
s_mov_b32 s55, 0x20000
s_mov_b32 s98, 256
s_mov_b32 s99, 0x20000
s_lshl_b32 s{sSO}, s{sWAVE}, 10
s_lshl_b32 s51, s{sN0}, 9
s_add_u32 s51, s51, s{sSO}
s_add_u32 m0, s{sSO}, {L_XS}
s_cmp_ge_u32 s2, 64
s_cbranch_scc1 F_nobl
s_mul_i32 s49, s2, 10000
s_mul_i32 s50, s2, 5000
v_lshlrev_b32 v{TMP}, 3, v0
s_cmp_ge_u32 s{sWAVE}, 10
s_waitcnt lgkmcnt(0)
s_cbranch_scc1 F_nel
buffer_load_dwordx4 {vr(DST,4)}, v2, s[36:39], s49 offen {XNT}
buffer_load_dwordx4 {vr(SRC,4)}, v2, s[12:15], s49 offen {XNT}
buffer_load_dwordx2 {vr(EA,2)}, v{TMP}, s[52:55], s50 offen {XNT}
s_branch F_ne2
F_nel:
s_sub_u32 s50, s{sWAVE}, 10
s_cmp_ge_u32 s50, 2
s_cbranch_scc1 F_ne2
s_lshr_b32 s49, s2, 3
s_lshl_b32 s49, s49, 13
s_lshl_b32 s50, s50, 12
s_add_u32 s49, s49, s50
v_lshlrev_b32 v{TMP}, 6, v1
buffer_load_dword v77, v{TMP}, s[44:47], s49 offen
F_ne2:
v_lshlrev_b32 v{TMP}, 2, v0
v_add_u32 v{TMP}, {L_BCNT}, v{TMP}
s_cmp_ge_u32 s{sWAVE}, 5
s_cbranch_scc1 F_nbz
ds_write_b32 v{TMP}, v{VTG}
F_nbz:
s_waitcnt lgkmcnt(0)
s_barrier
s_add_u32 m0, s{sSO}, {L_XS}
s_cmp_ge_u32 s{sWAVE}, 4
buffer_load_dwordx4 v7, s[28:31], s51 offen {XNT} lds
s_cbranch_scc1 F_nox2b
s_add_u32 m0, s{sSO}, {L_XS + 16384}
s_add_u32 s50, s51, 16384
buffer_load_dwordx4 v7, s[28:31], s50 offen {XNT} lds
F_nox2b:
s_branch F_nx
F_nobl:
""")
    if "ipf" in OPT:
        o(f"""
s_cmp_lt_u32 s2, 240
s_cbranch_scc1 F_nipf
s_sub_u32 s50, s{sWAVE}, 8
s_cmp_ge_u32 s50, 2
s_cbranch_scc1 F_nipf
s_getpc_b64 s[22:23]
s_lshl_b32 s50, s50, 12
v_lshlrev_b32 v{TMP}, 6, v1
v_add_u32 v{TMP}, s50, v{TMP}
global_load_dword v77, v{TMP}, s[22:23]
F_nipf:
""")
    o(f"""
s_cmp_ge_u32 s{sWAVE}, {X2W}
s_waitcnt lgkmcnt(0)
buffer_load_dwordx4 v7, s[28:31], s51 offen {XNT} lds
s_cbranch_scc1 F_nox2
s_add_u32 m0, s{sSO}, {L_XS + 16384}
s_add_u32 s50, s51, 16384
buffer_load_dwordx4 v7, s[28:31], s50 offen {XNT} lds
s_lshl_b32 s49, s2, 4
s_add_u32 s49, s49, s{sWAVE}
s_cmp_lg_u32 s49, 0xff0
s_cbranch_scc1 F_nox2
s_or_b32 s49, s100, 1
v_mov_b32 v{TMP+1}, s49
v_mov_b32 v{TMP+2}, s101
s_mov_b64 exec, 1
buffer_store_dwordx2 {vr(TMP+1,2)}, v{VTG}, s[96:99], 0 offen sc1
s_mov_b64 exec, -1
F_nox2:
s_sub_u32 s50, s{sWAVE}, 6
s_cmp_ge_u32 s50, 2
s_cbranch_scc1 F_ntc
s_lshr_b32 s49, s2, 3
s_lshl_b32 s49, s49, 13
s_lshl_b32 s50, s50, 12
s_add_u32 s49, s49, s50
v_lshlrev_b32 v7, 6, v1
buffer_load_dword v77, v7, s[44:47], s49 offen
F_ntc:
s_mov_b32 s50, {512*512}
buffer_load_dword v{W3}, v{LO}, s[44:47], s50 offen
buffer_load_dword v{W3+1}, v{LO}, s[44:47], s50 offen offset:256
F_nx:
v_and_b32 v{TMP}, 3, v5
v_bfe_u32 v{TMP+1}, v5, 3, 1
v_lshl_or_b32 v{TMP}, v{TMP+1}, 2, v{TMP}
v_lshlrev_b32 v{TMP}, 1, v{TMP}
v_xor_b32 v{TMP}, v{TMP}, v6
v_lshlrev_b32 v{TMP}, 4, v{TMP}
v_lshl_add_u32 v{VWS}, v4, 9, v{TMP}
s_mov_b32 s42, {512*512}
s_mov_b32 s43, 0x20000
s_mov_b32 s34, {WS_END}
s_mov_b32 s35, 0x20000
s_sub_u32 s{sBORN}, s100, 1500
s_sub_u32 s48, s2, 64
""")
    if "early0" in OPT:
        o("s_cmp_lt_u32 s2, 64\ns_cbranch_scc1 F_ne0")
        dma(0)
        o("F_ne0:")
    o(f"""
v_lshlrev_b32 v{VC}, 3, v1
v_lshrrev_b32 v3, 4, v1
v_and_b32 v4, 15, v1
v_xor_b32 v{VXA}, v4, v3
v_lshlrev_b32 v{VXA}, 4, v{VXA}
v_lshl_add_u32 v{VXA}, v4, 9, v{VXA}
v_add_u32 v{VXA}, {L_XS}, v{VXA}
v_bfe_u32 v5, v1, 2, 2
v_and_b32 v6, 3, v1
v_lshl_add_u32 v{VWA}, v3, 3, v5
v_lshlrev_b32 v{VWA}, 9, v{VWA}
v_lshl_add_u32 v{VWA}, v6, 3, v{VWA}
v_and_b32 v7, 1, v3
v_lshl_or_b32 v{TMP}, v7, 2, v5
v_xor_b32 v{TMP}, s{sWAVE}, v{TMP}
v_lshl_add_u32 v{VWA}, v{TMP}, 5, v{VWA}
v_add_u32 v{VWB}, 0x10000, v{VWA}
v_add_u32 v{TMP+4}, {L_CNT}, v{LO}
ds_write2st64_b32 v{TMP+4}, v{VTG}, v{VTG} offset0:0 offset1:1
s_cmp_ge_u32 s48, 16
s_cbranch_scc1 F_npd
s_lshl_b32 s49, s48, 14
s_add_u32 m0, s{sSO}, {L_PK}
s_add_u32 s49, s49, s{sSO}
buffer_load_dwordx4 v{VWS}, s[40:43], s49 offen lds
F_npd:
s_mov_b32 s{sSC}, {NEGL2E:#x}
s_mov_b32 s{sSC+1}, {NEGL2E:#x}
v_lshrrev_b32 v{TMP}, 1, v3
s_lshl_b32 s{sT1}, s{sWAVE}, 1
v_or_b32 v{TMP}, s{sT1}, v{TMP}
v_xor_b32 v{TMP}, v{TMP}, v4
v_lshlrev_b32 v{TMP}, 4, v{TMP}
v_lshl_add_u32 v{VN}, v4, 9, v{TMP}
v_lshl_add_u32 v{VN}, v7, 3, v{VN}
v_add_u32 v{VN}, {L_PST}, v{VN}
v_lshrrev_b32 v{VB}, 5, v0
v_add_u32 v{TMP}, 32, v{VB}
v_cmp_gt_u32 vcc, s{sCNT}, v{TMP}
v_lshlrev_b32 v{VB}, 4, v{VB}
v_xor_b32 v{VB}, v{VB}, v2
v_add_u32 v{VB}, {L_PST}, v{VB}
v_add_u32 v{VI}, 0x4000, v2
v_mov_b32 v{TMP}, 0x7ffffff0
v_cndmask_b32 v{VI}, v{TMP}, v{VI}, vcc
s_cmp_lt_u32 s2, 64
s_cbranch_scc1 F_nd0
""")
    if "early0" in OPT:
        o("s_barrier")
        dma(1)
    else:
        dma(0)
    o(f"""
F_nd0:
v_cmp_eq_u32 vcc, v5, v3
v_and_b32 v{TMP+2}, 1, v1
v_lshlrev_b32 v{TMP+2}, 4, v{TMP+2}
v_mov_b32 v{TMP+3}, 0x3f80
v_lshlrev_b32 v{TMP+3}, v{TMP+2}, v{TMP+3}
v_cndmask_b32 v{TMP+3}, 0, v{TMP+3}, vcc
v_xor_b32 v{VEL}, 2, v6
v_lshlrev_b32 v{VEL}, 2, v{VEL}
v_add_u32 v{VEL}, {L_ET}, v{VEL}
v_mov_b32 v{TMP+2}, 0x30000
v_cndmask_b32 v{VEL}, v{TMP+2}, v{VEL}, vcc
v_cmp_gt_u32 vcc, 2, v6
v_mul_u32_u24 v{CK0}, 7, v5
v_lshl_add_u32 v{CK1}, v6, 1, v{CK0}
v_cndmask_b32 v{A1}, 0, v{TMP+3}, vcc
v_cndmask_b32_e64 v{A1+1}, v{TMP+3}, 0, vcc
v_cmp_eq_u32 vcc, 0, v6
v_add_u32 v{CK2}, -1, v{CK1}
v_mov_b32 v{TMP}, 64
s_movk_i32 s{sT0}, {RS}
v_cndmask_b32 v{CK2}, v{CK2}, v{TMP}, vcc
v_mul_u32_u24 v{IX}, s{sT0}, v4
v_lshl_add_u32 v{IX}, v3, 4, v{IX}
s_lshl_b32 s{sT0}, s{sWAVE}, 6
v_add_u32 v{IX}, s{sT0}, v{IX}
s_mov_b64 s[8:9], s[32:33]
s_mov_b32 s10, {N*512}
s_mov_b32 s11, 0x20000
s_mov_b32 s16, s32
s_or_b32 s17, s33, 0x40000
s_mov_b32 s18, {N*512}
s_mov_b32 s19, 0x800000
s_mov_b32 s{sONE}, 1.0
s_mov_b32 s{sONE+1}, 1.0
s_mov_b32 s{sBND}, 0x7b800000
s_mov_b32 s{sW1}, 0
s_cmp_lt_u32 s2, 64
s_cbranch_scc1 F_bin
""")
    if "early0" not in OPT:
        o("s_barrier")
        dma(1)
    o(f"""
s_branch F_nbr
F_bin:
s_movk_i32 s57, 625
v_cmp_gt_u32 s[{sBM}:{sBM+1}], s57, v0
s_mov_b32 s56, {M2}
s_mov_b32 s62, {M1}
v_mov_b32 v45, {C2}
s_mov_b32 s60, {L_BCNT}
s_mov_b32 s61, {L_IMG}
v_lshrrev_b32 v42, 3, v0
v_and_b32 v43, 7, v0
v_lshlrev_b32 v43, 4, v43
v_lshl_add_u32 v41, v42, 14, v43
v_and_b32 v40, 7, v42
v_lshlrev_b32 v40, 4, v40
v_xor_b32 v40, v40, v43
v_lshl_add_u32 v40, v42, 8, v40
v_add_u32 v40, s61, v40
v_lshl_add_u32 v42, v42, 2, s60
v_and_b32 v43, 48, v43
v_cmp_eq_u32 s[22:23], 0, v43
v_mov_b32 v43, 0x7f000000
v_mov_b32 v44, {L_BCNT+1024}
s_lshl_b32 s24, s2, 8
s_add_u32 s24, s24, {WS_CELL}
s_add_u32 s25, s24, {128*16384}
""")
    if "pre" in STEPS: stamp(o, (1, 2, 3, 4, 6)[STEPS.index("pre")])
    o(f"""
s_cmp_lt_u32 s{sWAVE}, 4
s_waitcnt vmcnt(2)
s_cbranch_scc1 F_be
s_waitcnt vmcnt(1)
F_be:
buffer_load_dwordx2 {vr(TAG,2)}, v{VTG}, s[96:99], 0 offen sc1
s_mov_b32 s50, {512*512}
buffer_load_dword v{W3}, v{LO}, s[44:47], s50 offen
buffer_load_dword v{W3+1}, v{LO}, s[44:47], s50 offen offset:256
""")
    st0 = lambda name: stamp(o, (1, 2, 3, 4, 6)[STEPS.index(name)]) if name in STEPS else None
    st0("edge")
    bin_rank(o)
    st0("rank")
    dma(0, False)
    o(f"""
s_waitcnt lgkmcnt(0)
s_barrier
ds_read2st64_b32 v[28:29], v42 offset0:0 offset1:2
ds_read_b128 v[8:11], v40
ds_read_b128 v[12:15], v40 offset:32768
ds_read_b128 v[16:19], v40 offset:128
ds_read_b128 v[20:23], v40 offset:{32768+128}
ds_read_b32 v30, v44
""")
    dma(1, False)
    o("s_waitcnt vmcnt(6)")
    get_tag(o, "b")
    bin_copy(o)
    o("F_nbr:")
    st0("copy")
    def st(name):
        if name in STEPS: stamp(o, (1, 2, 3, 4, 6)[STEPS.index(name)])
    def reads(ks, loc, xf, wf):
        a = VXA
        if ks:
            a = TMP + 6
            o(f"v_xor_b32 v{a}, {64*ks}, v{VXA}")
        wa, off = (VWA, loc) if loc < 65536 else (VWB, loc - 65536)
        l = [f"ds_read_b64_tr_b16 {vr(wf,2)}, v{wa} offset:{off}\nds_read_b64_tr_b16 {vr(wf+2,2)}, v{wa} offset:{off + 2048}"]
        l += [f"ds_read_b128 {vr(xf+4*rt,4)}, v{a} offset:{rt*8192}" for rt in range(3)]
        return l
    def mfmas(acc, first, xf, wf):
        return [f"v_mfma_f32_16x16x32_bf16 {vr(acc+4*rt,4)}, {vr(wf,4)}, {vr(xf+4*rt,4)}, {'0' if first else vr(acc+4*rt,4)}" for rt in range(3)]
    def weave(mm, rd):
        while rd or mm:
            if mm: o(mm.pop(0))
            if rd: o(rd.pop(0))
    for s in range(-1, 8):
        if s < 7:
            n = vm(("d", s + 1))
            if s <= 2:
                o(f"""
s_cmp_lt_u32 s2, 64
s_cbranch_scc1 F_wc{s+1}
s_waitcnt vmcnt({n + (1 if s >= 0 else 0)})
s_cmp_lt_u32 s48, 16
s_cbranch_scc1 F_wc{s+1}
s_waitcnt vmcnt({n})
F_wc{s+1}:
s_waitcnt vmcnt({n + 4}) lgkmcnt(0)
s_barrier
""")
            else:
                o(f"s_waitcnt vmcnt({n}) lgkmcnt(0)\ns_barrier")
        else:
            o("s_waitcnt lgkmcnt(0)\ns_barrier")
        st(f"s{s}")
        if s == -1:
            o(f"buffer_load_dwordx2 {vr(TG0,2)}, v{VTG}, s[96:99], 0 offen sc1")
            ops.append("tag")
        rd = reads(s + 1, ((s + 1) & 3) * 16384, XFB[(s+1) & 1], WFB[(s+1) & 1]) if s < 7 else []
        weave(mfmas(PA, s == 0, XFB[s & 1], WFB[s & 1]) if s >= 0 else [], rd)
        if 0 <= s <= 3: d1(s + 4)
        if s >= 4: d2(s - 4)
        if s == -1:
            o(f"""
s_cmp_ge_u32 s48, 16
s_cbranch_scc1 F_d0
ds_read_b64_tr_b16 v[4:5], v{VWB}
ds_read_b64_tr_b16 v[6:7], v{VWB} offset:2048
s_lshl_b32 s50, s{sWAVE}, 13
s_and_b32 s49, s48, 7
s_lshl_b32 s49, s49, 10
s_add_u32 s50, s50, s49
s_lshr_b32 s49, s48, 3
s_lshl_b32 s49, s49, 17
s_add_u32 s50, s50, s49
s_add_u32 s50, s50, {WS_WPACK}
v_lshlrev_b32 v12, 4, v1
s_waitcnt lgkmcnt(0)
buffer_store_dwordx4 v[4:7], v12, s[32:35], s50 offen sc1
F_d0:
""")
        if s == 3:
            assert ops.index("tag") < ops.index(("d", 4))
            o(f"s_cmp_ge_u32 s48, 16\ns_cbranch_scc1 F_d5\ns_cmp_lg_u32 s{sWAVE}, 0\ns_cbranch_scc1 F_d5\nv_mov_b64 {vr(TAG,2)}, {vr(TG0,2)}")
            get_tag(o, "p")
            o(f"s_lshl_b32 s{sT0}, s48, 7\ns_add_u32 s{sT0}, s{sT0}, {WS_FLAG + 256*128}")
            put_flag(o, f"s{sT0}")
            o("F_d5:")
    o(f"s_lshl_b32 s{sT2}, s{sN0}, 9\ns_add_u32 s{sK}, s{sT2}, 8192\ns_nop 0")
    for rt in range(3):
        a_ = PA + 4*rt
        o(f"""
v_pk_mul_f32 {vr(a_,2)}, {vr(a_,2)}, s[{sSC}:{sSC+1}]
v_pk_mul_f32 {vr(a_+2,2)}, {vr(a_+2,2)}, s[{sSC}:{sSC+1}]
v_cvt_pk_bf16_f32 v{40+2*rt}, v{a_}, v{a_+1}
v_cvt_pk_bf16_f32 v{40+2*rt+1}, v{a_+2}, v{a_+3}
ds_write_b64 v{VN}, {vr(40+2*rt,2)} offset:{rt*8192}
""")
    o(f"""
s_lshl_b32 s{sOFF}, s2, 14
s_add_u32 s{sOFF}, s{sOFF}, {WS_CELL}
s_mov_b32 s{sOC}, {WS_FLAG + 256*128}
v_lshlrev_b32 v16, 7, v1
v_min_u32 v16, {15*128}, v16
s_cmp_lt_u32 s{sWAVE}, 8
s_waitcnt lgkmcnt(0)
s_barrier
s_cbranch_scc0 F_nps
ds_read_b128 {vr(PA,4)}, v{VB}
ds_read_b128 {vr(PA+4,4)}, v{VB} offset:8192
ds_read_b128 {vr(PA+8,4)}, v{VB} offset:16384
s_waitcnt lgkmcnt(2)
buffer_store_dwordx4 {vr(PA,4)}, v2, s[8:11], s{sT2} offen sc1
s_waitcnt lgkmcnt(1)
buffer_store_dwordx4 {vr(PA+4,4)}, v2, s[8:11], s{sK} offen sc1
s_waitcnt lgkmcnt(0)
buffer_store_dwordx4 {vr(PA+8,4)}, v{VI}, s[8:11], s{sT2} offen sc1
buffer_load_dwordx4 {vr(REC,4)}, v2, s[32:35], s{sOFF} offen sc1
s_waitcnt vmcnt(4)
s_branch F_ps2
F_nps:
s_waitcnt vmcnt(0)
s_cmp_lg_u32 s{sWAVE}, 15
s_cbranch_scc1 F_npk0
buffer_load_dwordx2 v[24:25], v16, s[32:35], s{sOC} offen sc1
F_npk0:
buffer_load_dwordx4 {vr(REC,4)}, v2, s[32:35], s{sOFF} offen sc1
F_ps2:
s_barrier
""")
    st("pst")
    rd = reads(0, LOC2[0], XFB[0], WFB[0])
    o("\n".join(rd))
    o(f"v_mov_b64 {vr(TAG,2)}, {vr(TG0,2)}")
    get_tag(o, "m")
    for s in range(4):
        o("s_waitcnt lgkmcnt(0)")
        rd = reads(s + 1, LOC2[s + 1], XFB[(s+1) & 1], WFB[(s+1) & 1]) if s < 3 else []
        weave(mfmas(QA, s == 0, XFB[s & 1], WFB[s & 1]), rd)
    for t in range(4, 8):
        d2(t)
    o(f"""
v_mov_b64 {vr(ZR,2)}, 0
v_mov_b64 {vr(ZR+2,2)}, 0
v_add_u32 v{VB}, {L_IDX}, v2
v_add_u32 v{VI}, {L_ET}, v2
s_lshl_b32 s12, s{sWAVE}, 13
s_add_u32 s12, s12, {WS_WPACK}
s_add_u32 s13, s12, 4096
v_lshlrev_b32 v{VEND}, 4, v1
s_mov_b32 s{sT2}, 0
s_waitcnt vmcnt(5)
s_cmp_lg_u32 s{sWAVE}, 15
s_cbranch_scc1 F_npk
s_mov_b32 s{sT1}, 0
F_plk:
v_cmp_ne_u64 vcc, s[100:101], v[24:25]
s_add_u32 s{sT1}, s{sT1}, 1
s_cmp_ge_u32 s{sT1}, 0x10000
s_cbranch_scc1 F_npk
s_nop 1
s_cbranch_vccz F_npk
buffer_load_dwordx2 v[24:25], v16, s[32:35], s{sOC} offen sc1
s_waitcnt vmcnt(0)
s_branch F_plk
F_npk:
s_barrier
""")
    st("drain")
    o(f"s_cmp_lg_u32 s{sWAVE}, 0\ns_cbranch_scc1 F_nfp\ns_lshl_b32 s{sT0}, s2, 7\ns_add_u32 s{sT0}, s{sT0}, {WS_FLAG}")
    put_flag(o, f"s{sT0}")
    o("F_nfp:")
    WA = 26
    o(f"v_mov_b32 v{WA}, v{VEND}")
    wl = lambda kss: wloads(o, 0, W, kss, 12, 13, WA, False)
    wl((0, 1))
    o(f"""
ds_write_b128 v{VB}, {vr(ZR,4)}
ds_write_b128 v{VI}, {vr(ZR,4)}
ds_write_b128 v{VI}, {vr(ZR,4)} offset:16384
ds_write_b128 v{VI}, {vr(ZR,4)} offset:16448
s_mov_b32 s{sRND}, 0
s_mov_b64 s[40:41], s[20:21]
s_mov_b32 s42, {N*512}
s_waitcnt vmcnt(6)
F_cl:
v_mov_b32_dpp v{TMP}, v{REC+1} row_newbcast:0 row_mask:0xf bank_mask:0xf
v_mov_b32_dpp v{TMP+1}, v{REC} row_newbcast:0 row_mask:0xf bank_mask:0xf
v_mov_b32_dpp v{TMP+2}, v{REC+1} quad_perm:[0,0,0,0] row_mask:0xf bank_mask:0xf
v_cmp_eq_u32 vcc, s100, v{TMP}
v_cmp_ne_u32 s[{sM}:{sM+1}], s100, v{TMP+2}
s_add_u32 s{sT2}, s{sT2}, 1
v_cndmask_b32 v{TMP+1}, 0, v{TMP+1}, vcc
v_max_u32 v{TMP+3}, 1, v{TMP+1}
v_cmp_lt_u32 vcc, v{CK0}, v{TMP+3}
s_cmp_ge_u32 s{sT2}, 0x10000
s_cbranch_scc1 F_cd
s_and_b64 exec, vcc, s[{sM}:{sM+1}]
s_cbranch_execz F_cd
s_sleep 1
buffer_load_dwordx4 {vr(REC,4)}, v2, s[32:35], s{sOFF} offen sc1
s_mov_b64 exec, -1
s_waitcnt vmcnt(0)
s_branch F_cl
F_cd:
s_mov_b64 exec, -1
v_cmp_gt_u32 s[{sV0}:{sV0+1}], v{TMP+1}, v{CK2}
v_cmp_gt_u32 s[{sV1}:{sV1+1}], v{TMP+1}, v{CK1}
""")
    st("cell")
    sort_rank(o)
    wl((2, 3, 4))
    o("s_waitcnt vmcnt(5) lgkmcnt(0)\ns_barrier")
    st("y")
    XQ, WQ = [8, UA], [20, 28]
    o("\n".join(reads(4, LOC2[4], XQ[0], WQ[0])))
    sort_scatter(o)
    for s in range(4, 8):
        o("s_waitcnt lgkmcnt(0)")
        rd = reads(s + 1, LOC2[s + 1], XQ[(s+1) & 1], WQ[(s+1) & 1]) if s < 7 else []
        weave(mfmas(QA, False, XQ[s & 1], WQ[s & 1]), rd)
    o(f"""
v_mov_b32 v{VE}, v{WA}
v_lshlrev_b32 v{TMP}, 16, v{W3}
v_and_b32 v{TMP+1}, 0xffff0000, v{W3}
v_lshlrev_b32 v{TMP+2}, 16, v{W3+1}
v_and_b32 v{TMP+3}, 0xffff0000, v{W3+1}
v_mul_f32 v{TMP}, s{sSC}, v{TMP}
v_mul_f32 v{TMP+1}, s{sSC}, v{TMP+1}
v_mul_f32 v{TMP+2}, s{sSC}, v{TMP+2}
v_mul_f32 v{TMP+3}, s{sSC}, v{TMP+3}
v_cvt_pk_bf16_f32 v6, v{TMP}, v{TMP+1}
v_cvt_pk_bf16_f32 v7, v{TMP+2}, v{TMP+3}
v_add_u32 v{VB}, {L_AGB}, v2
v_mov_b64 {vr(A0,2)}, {vr(A1,2)}
""")
    for k in range(1, R):
        o(f"v_mov_b64 {vr(RING+4*k+2,2)}, v[6:7]")
    for h in range(6):
        o(f"v_pk_mul_f32 {vr(QA+2*h,2)}, {vr(QA+2*h,2)}, s[{sSC}:{sSC+1}]")
    o(f"""
s_lshl_b32 s{sOC}, s{sWAVE}, 13
s_add_u32 s{sOC}, s{sOC}, {WS_FLAG}
v_lshlrev_b32 v{TMP}, 7, v1
s_cmp_ge_u32 s{sWAVE}, 4
s_cbranch_scc1 F_np1
buffer_load_dwordx2 {vr(TMP+1,2)}, v{TMP}, s[32:35], s{sOC} offen sc1
F_np1:
s_barrier
""")
    st("x")
    for rt in range(3):
        o(f"ds_write_b128 v{IX}, {vr(QA+4*rt,4)} offset:{L_QS + rt*16*RS}")
    o(f"ds_write_b128 v{VB}, {vr(ZR,4)}\nds_write_b128 v{VB}, {vr(ZR,4)} offset:8192")
    st("u")
    o(f"""
s_cmp_ge_u32 s{sWAVE}, 4
s_cbranch_scc1 F_npp
s_mov_b32 s{sT1}, 0
s_waitcnt vmcnt(0)
F_plp:
v_cmpx_ne_u64 vcc, s[100:101], {vr(TMP+1,2)}
s_add_u32 s{sT1}, s{sT1}, 1
s_nop 3
s_cbranch_execz F_pdp
s_cmp_ge_u32 s{sT1}, 0x10000
s_cbranch_scc1 F_pdp
{next((f"s_sleep {x[3:]}" for x in OPT if x.startswith("psl")), "")}
buffer_load_dwordx2 {vr(TMP+1,2)}, v{TMP}, s[32:35], s{sOC} offen sc1
s_waitcnt vmcnt(0)
s_branch F_plp
F_pdp:
s_mov_b64 exec, -1
""")
    o(f"""
F_npp:
""")
    wloads(o, 0, W, (5, 6, 7), 12, 13, VE, False)
    o(f"""
s_mov_b32 s{sT0}, {WS_OVFC}
buffer_load_dwordx2 {vr(VOVF,2)}, v{VC}, s[32:35], s{sT0} offen sc1
s_waitcnt lgkmcnt(0)
s_barrier
L_pr:
""")
    st("b3")
    zero_cnt(o)
    prime(o)
    o(f"""
s_cmp_lg_u32 s{sRND}, 0
s_cbranch_scc1 L_go
s_call_b64 s[{sRET}:{sRET+1}], L_ugemm
L_go:
""")
    st("go")
    stamp(o, 5)
    o(f"""
s_mov_b64 vcc, 0
s_mov_b32 s{sK}, {KMAX}
s_add_u32 s{sRND}, s{sRND}, 1
s_cmp_ge_u32 s{sP}, s{sP1}
s_cbranch_scc1 L_loopdone
v_cmp_eq_u32 s[{sM}:{sM+1}], s{sP}, v{VEND}
s_sub_u32 s{sIT}, s{sP1}, s{sP}
s_add_u32 s{sIT}, s{sIT}, {R-1}
s_mul_i32 s{sIT}, s{sIT}, 171
s_lshr_b32 s{sIT}, s{sIT}, 10
s_cmp_eq_u32 s{sP}, 0
s_cselect_b32 s{sT2}, 1, 0
s_cmp_lg_u64 s[{sM}:{sM+1}], 0
s_cselect_b32 s{sT2}, 1, s{sT2}
v_cmp_ge_u32 s[{sM}:{sM+1}], s{sP}, v{VEND}
s_xor_b32 s{sODD}, s{sT2}, 1
s_xor_b32 s{sT2}, s{sW1}, 1
s_lshl_b32 s{sT2}, s{sT2}, 2
s_or_b32 s{sODD}, s{sODD}, s{sT2}
s_bcnt1_i32_b64 s{sJ}, s[{sM}:{sM+1}]
s_call_b64 s[{sRET}:{sRET+1}], L_node
s_setprio 3
v_mov_b64 {vr(NN,2)}, 0
v_mov_b64 {vr(NN+2,2)}, 0
v_mov_b64 {vr(D,2)}, s[{sONE}:{sONE+1}]
v_mov_b64 {vr(D+2,2)}, s[{sONE}:{sONE+1}]
s_waitcnt vmcnt({2*(R-1)}) lgkmcnt(0)
v_mfma_f32_16x16x32_bf16 {vr(T0,4)}, {vr(A0,4)}, {vr(RING,4)}, {vr(Q,4)}
s_nop 5
L_top:
""")
    U = UNR * R
    def body(k, first):
        B = RING + 4*(k % R)
        B1 = RING + 4*((k+1) % R)
        T = TT[k & 1]
        ex, pk = valu_block(T)
        if first:
            pk = f"""
v_pk_add_f32 {vr(D,2)}, {vr(E,2)}, s[{sONE}:{sONE+1}]
v_mov_b64 {vr(NN,2)}, {vr(T,2)}
v_mov_b64 {vr(NN+2,2)}, {vr(T+2,2)}
v_pk_add_f32 {vr(D+2,2)}, {vr(E+2,2)}, s[{sONE}:{sONE+1}]
"""
        o(f"""
s_waitcnt vmcnt({2*(R-2)}) lgkmcnt(0)
v_mfma_f32_16x16x32_bf16 {vr(TT[(k+1)&1],4)}, {vr(AA[(k+1)&1],4)}, {vr(B1,4)}, {vr(Q,4)}
{ex}
buffer_load_dword v{B}, v{IX}, s[16:19], 0 offen sc1
buffer_load_dword v{B+1}, v{IX}, s[16:19], 0 offen offset:256 sc1
ds_read_b32 v{IX}, v{VI} offset:{4*(k+R+1)}
ds_read2_b32 {vr(AA[k&1]+2,2)}, v{VE} offset0:{4*(k+2)} offset1:{4*(k+2)+2}
{pk}
s_sub_u32 s{sREM}, s{sREM}, 1
s_cbranch_scc1 L_call{k}
""")
    def boundary(k, done):
        if k == U - 1:
            o(f"v_add_u32 v{VI}, {4*U}, v{VI}\nv_add_u32 v{VE}, {16*U}, v{VE}")
        o(f"""
s_sub_u32 s{sIT}, s{sIT}, 1
s_cmp_ge_u32 s{sIT}, {PRIO[0]}
s_cbranch_scc1 {done}
s_setprio 2
s_cmp_ge_u32 s{sIT}, {PRIO[1]}
s_cbranch_scc1 {done}
s_setprio 1
s_cmp_ge_u32 s{sIT}, {PRIO[2]}
s_cbranch_scc1 {done}
s_setprio 0
""")
    for k in range(U):
        body(k, False)
        o(f"L_next{k}:")
        if k % R == R - 1:
            if k == U - 1:
                boundary(k, "L_top")
                o("s_branch L_top")
            else:
                boundary(k, f"L_mid{k}")
                o(f"L_mid{k}:")
    for k in range(U):
        B1 = RING + 4*((k+1) % R)
        o(f"""
L_call{k}:
s_call_b64 s[{sRET}:{sRET+1}], L_flush
s_cbranch_scc0 L_special
s_waitcnt lgkmcnt(0)
v_mfma_f32_16x16x32_bf16 {vr(TT[(k+1)&1],4)}, {vr(AA[(k+1)&1],4)}, {vr(B1,4)}, {vr(Q,4)}
""")
        if k % R == R - 1:
            boundary(k, f"L_cb{k}")
            o(f"L_cb{k}:\ns_nop 2")
        else:
            o("s_nop 5")
        body((k + 1) % U, True)
        o(f"s_branch L_next{(k + 1) % U}")
    o(f"""
L_flush:
v_rcp_f32 v{E}, v{D}
v_rcp_f32 v{E+1}, v{D+1}
v_rcp_f32 v{E+2}, v{D+2}
v_rcp_f32 v{E+3}, v{D+3}
v_pk_fma_f32 {vr(CK,2)}, {vr(NN,2)}, 0, {vr(D,2)}
v_pk_fma_f32 {vr(CK+2,2)}, {vr(NN+2,2)}, 0, {vr(D+2,2)}
v_pk_mul_f32 {vr(NN,2)}, {vr(NN,2)}, {vr(E,2)}
v_pk_add_f32 {vr(CK,2)}, {vr(CK,2)}, {vr(CK+2,2)}
v_pk_mul_f32 {vr(NN+2,2)}, {vr(NN+2,2)}, {vr(E+2,2)}
v_add_f32 v{CK}, v{CK}, v{CK+1}
v_cmp_nle_f32 s[{sM}:{sM+1}], v{CK}, s{sBND}
v_cvt_pk_bf16_f32 v{E}, v{NN}, v{NN+1}
v_cvt_pk_bf16_f32 v{E+1}, v{NN+2}, v{NN+3}
s_mov_b32 s{sP}, s{sSEGE}
s_sub_u32 s{sT0}, s{sNEND}, s{sP}
s_or_b32 s{sT0}, s{sT0}, s{sODD}
s_andn2_b64 s[{sM}:{sM+1}], s[{sM}:{sM+1}], vcc
s_cbranch_scc1 L_bad
s_cmp_lg_u32 s{sT0}, 0
s_cbranch_scc1 L_odd
ds_write2st64_b32 v{VB}, v{E}, v{E+1} offset0:0 offset1:1
L_more:
s_cmp_eq_u32 s{sP}, s{sP1}
s_cbranch_scc1 L_done
L_adv:
s_add_u32 s{sJ}, s{sJ}, 1
L_node:
s_mul_i32 s{sT1}, s{sJ}, {RS}
v_readlane_b32 s{sNEND}, v{VEND}, s{sJ}
v_add_u32 v{VN}, s{sT1}, v{VC}
s_and_b32 s{sT1}, s{sJ}, 15
s_lshl_b32 s{sT1}, s{sT1}, 4
s_lshl_b32 s{sT0}, s{sJ}, 9
s_cmp_eq_u32 s{sNEND}, s{sP}
s_cbranch_scc1 L_adv
ds_read2st64_b64 {vr(Q,4)}, v{VN} offset0:0 offset1:1
s_or_b32 s{sT0}, s{sT0}, s{sT1}
s_add_u32 s{sT0}, s{sT0}, {L_AGB}
v_xor_b32 v{VB}, s{sT0}, v{LO}
s_cmp_lg_u32 s{sRND}, 1
s_cbranch_scc1 L_old
L_reinit:
s_mov_b32 s{sSEGS}, s{sP}
s_add_u32 s{sSEGE}, s{sP}, s{sK}
s_min_u32 s{sSEGE}, s{sSEGE}, s{sNEND}
s_min_u32 s{sSEGE}, s{sSEGE}, s{sP1}
s_not_b32 s{sREM}, s{sP}
s_add_u32 s{sREM}, s{sREM}, s{sSEGE}
s_cmp_eq_u32 s{sP}, s{sP}
s_setpc_b64 s[{sRET}:{sRET+1}]
L_done:
s_cmp_lg_u32 s{sP}, s{sP}
s_setpc_b64 s[{sRET}:{sRET+1}]
L_bad:
s_mov_b32 s{sP}, s{sSEGS}
s_branch L_done
L_odd:
s_bitcmp1_b32 s{sODD}, 2
s_cbranch_scc0 L_havew
s_bitset0_b32 s{sODD}, 2
s_mov_b32 s{sW1}, 1
""")
    wloads(o, 1, W)
    o(f"""
L_havew:
s_bitcmp1_b32 s{sODD}, 1
s_cbranch_scc0 L_noac
v_pk_add_f32 {vr(NN,2)}, {vr(NN,2)}, {vr(AC,2)}
v_pk_add_f32 {vr(NN+2,2)}, {vr(NN+2,2)}, {vr(AC+2,2)}
s_bitset0_b32 s{sODD}, 1
L_noac:
s_cmp_eq_u32 s{sP}, s{sNEND}
s_cbranch_scc1 L_fin
s_cmp_eq_u32 s{sP}, s{sP1}
s_cbranch_scc1 L_tail
v_mov_b64 {vr(AC,2)}, {vr(NN,2)}
v_mov_b64 {vr(AC+2,2)}, {vr(NN+2,2)}
s_bitset1_b32 s{sODD}, 1
s_branch L_reinit
L_tail:
s_bitcmp1_b32 s{sODD}, 0
s_cbranch_scc1 L_pub
s_mov_b32 s{sT0}, s{sWAVE}
s_mov_b32 s{sT1}, s{sP1}
L_col:
s_add_u32 s{sT0}, s{sT0}, 1
s_lshl_b32 s{sT2}, s{sT0}, 2
s_add_u32 s{sT2}, s{sT2}, {L_HF}
v_mov_b32 v{CK}, s{sT2}
L_poll:
ds_read_b32 v{CK+1}, v{CK}
s_waitcnt lgkmcnt(0)
v_readfirstlane_b32 s{sT2}, v{CK+1}
s_nop 3
s_cmp_eq_u32 s{sT2}, s{sRND}
s_cbranch_scc1 L_got
s_sleep 1
s_branch L_poll
L_got:
s_lshl_b32 s{sT2}, s{sT0}, 10
s_add_u32 s{sT2}, s{sT2}, {L_HB}
v_add_u32 v{CK}, s{sT2}, v{VC}
ds_read2st64_b64 {vr(E,4)}, v{CK} offset0:0 offset1:1
s_add_u32 s{sT1}, s{sT1}, s{sCH}
s_waitcnt lgkmcnt(0)
v_pk_add_f32 {vr(NN,2)}, {vr(NN,2)}, {vr(E,2)}
v_pk_add_f32 {vr(NN+2,2)}, {vr(NN+2,2)}, {vr(E+2,2)}
s_cmp_lt_u32 s{sT1}, s{sNEND}
s_cbranch_scc1 L_col
s_branch L_wr
L_fin:
s_bitcmp1_b32 s{sODD}, 0
s_cbranch_scc1 L_pub
L_wr:
v_cvt_pk_bf16_f32 v{E}, v{NN}, v{NN+1}
v_cvt_pk_bf16_f32 v{E+1}, v{NN+2}, v{NN+3}
ds_write2st64_b32 v{VB}, v{E}, v{E+1} offset0:0 offset1:1
s_branch L_more
L_pub:
s_lshl_b32 s{sT2}, s{sWAVE}, 10
s_add_u32 s{sT2}, s{sT2}, {L_HB}
v_add_u32 v{CK}, s{sT2}, v{VC}
s_lshl_b32 s{sT2}, s{sWAVE}, 2
s_add_u32 s{sT2}, s{sT2}, {L_HF}
v_mov_b32 v{CK+1}, s{sT2}
v_mov_b32 v{CK+2}, s{sRND}
ds_write2st64_b64 v{CK}, {vr(NN,2)}, {vr(NN+2,2)} offset0:0 offset1:1
s_bitset0_b32 s{sODD}, 0
s_waitcnt lgkmcnt(0)
ds_write_b32 v{CK+1}, v{CK+2}
s_branch L_more
L_old:
s_bitcmp1_b32 s{sODD}, 0
s_cbranch_scc1 L_reinit
ds_read2st64_b32 {vr(E,2)}, v{VB} offset0:0 offset1:1
s_bitset1_b32 s{sODD}, 1
s_waitcnt lgkmcnt(0)
v_lshlrev_b32 v{AC}, 16, v{E}
v_and_b32 v{AC+1}, 0xffff0000, v{E}
v_lshlrev_b32 v{AC+2}, 16, v{E+1}
v_and_b32 v{AC+3}, 0xffff0000, v{E+1}
s_branch L_reinit
L_special:
s_cmp_eq_u32 s{sP}, s{sP1}
s_cbranch_scc1 L_loopdone
s_mov_b64 vcc, -1
s_mov_b32 s{sK}, 1
s_waitcnt vmcnt(0) lgkmcnt(0)
s_call_b64 s[{sRET}:{sRET+1}], L_reinit
L_slow:
v_mov_b64 {vr(NN,2)}, 0
v_mov_b64 {vr(NN+2,2)}, 0
v_mov_b64 {vr(D,2)}, s[{sONE}:{sONE+1}]
v_mov_b64 {vr(D+2,2)}, s[{sONE}:{sONE+1}]
s_lshl_b32 s{sT0}, s{sP}, 2
s_add_u32 s{sT0}, s{sT0}, {L_IDX}
v_mov_b32 v{VI}, s{sT0}
s_lshl_b32 s{sT0}, s{sP}, 4
v_add_u32 v{VE}, s{sT0}, v{VEL}
ds_read_b32 v{IX}, v{VI}
ds_read2_b32 {vr(A0+2,2)}, v{VE} offset0:0 offset1:2
s_waitcnt lgkmcnt(0)
buffer_load_dword v{RING}, v{IX}, s[16:19], 0 offen sc1
buffer_load_dword v{RING+1}, v{IX}, s[16:19], 0 offen offset:256 sc1
s_waitcnt vmcnt(0)
v_mfma_f32_16x16x32_bf16 {vr(T0,4)}, {vr(A0,4)}, {vr(RING,4)}, {vr(Q,4)}
s_nop 7
v_min_f32 v{T0}, 0x42fc0000, v{T0}
v_min_f32 v{T0+1}, 0x42fc0000, v{T0+1}
v_min_f32 v{T0+2}, 0x42fc0000, v{T0+2}
v_min_f32 v{T0+3}, 0x42fc0000, v{T0+3}
{valu_block(T0)[0]}
{valu_block(T0)[1]}
s_call_b64 s[{sRET}:{sRET+1}], L_flush
s_cbranch_scc1 L_slow
L_loopdone:
""")
    st("le")
    if len(STEPS) < 5: stamp(o, 6)
    o(f"""
s_setprio 0
s_cmp_lg_u32 s{sW1}, 0
s_cbranch_scc1 L_ld2
s_mov_b32 s{sW1}, 1
""")
    wloads(o, 1, W)
    o(f"""
L_ld2:
s_cmp_lg_u32 s{sRND}, 1
s_cbranch_scc1 L_rn0
s_mov_b32 s{sOB}, 0
s_mov_b32 s{sT0}, {WS_OVFC}
L_ov:
s_waitcnt vmcnt(0)
v_cmp_ne_u32 vcc, s100, v{VOVF+1}
v_cmp_ne_u32 s[{sOM}:{sOM+1}], 0, v{VOVF}
s_add_u32 s{sOB}, s{sOB}, 1
s_cmp_ge_u32 s{sOB}, 0x10000
s_cbranch_scc1 L_ovd
s_nop 0
s_cbranch_vccz L_ovd
buffer_load_dwordx2 {vr(VOVF,2)}, v{VC}, s[32:35], s{sT0} offen sc1
s_branch L_ov
L_ovd:
s_mov_b32 s{sOB}, 0
L_rn0:
v_and_b32 v{TMP}, 15, v1
v_xor_b32 v{TMP+1}, v{TMP}, v3
v_lshlrev_b32 v{TMP+1}, 4, v{TMP+1}
v_lshl_add_u32 v{TMP+1}, v{TMP}, 9, v{TMP+1}
s_waitcnt vmcnt(0)
s_cmp_eq_u64 s[{sOM}:{sOM+1}], 0
s_cbranch_scc0 L_round
""")
    o(f"v_add_u32 v4, {L_AGB}, v{TMP+1}")
    for ks in range(1, 8):
        o(f"v_xor_b32 v{4+ks}, {64*ks}, v4")
    o(f"""
v_add_u32 v{TMP+2}, s{sN0}, v{TMP}
v_lshlrev_b32 v{TMP+2}, 9, v{TMP+2}
v_lshl_add_u32 v{TMP+2}, v3, 3, v{TMP+2}
s_lshl_b32 s{sT0}, s{sWAVE}, 5
s_add_u32 s{sT1}, s{sT0}, 8192
s_add_u32 s{sT2}, s{sT0}, 16384
s_sub_u32 s{sCNT}, s{sCNT}, 32
v_cmp_gt_u32 s[{sM}:{sM+1}], s{sCNT}, v{TMP}
v_mov_b32 v12, s{sSC}
""")
    if "ostage" in OPT:
        o(f"""
v_lshrrev_b32 v13, 1, v3
s_lshl_b32 s{sT1}, s{sWAVE}, 1
v_or_b32 v13, s{sT1}, v13
v_xor_b32 v13, v13, v{TMP}
v_lshlrev_b32 v13, 4, v13
v_lshl_add_u32 v13, v{TMP}, 9, v13
v_and_b32 v14, 1, v3
v_lshl_add_u32 v13, v14, 3, v13
v_lshrrev_b32 v14, 5, v0
v_cmp_gt_u32 vcc, s{sCNT}, v14
v_and_b32 v14, 15, v14
v_lshlrev_b32 v14, 4, v14
v_xor_b32 v14, v14, v2
v_add_u32 v15, 0x4000, v2
v_mov_b32 v16, 0x7ffffff0
s_lshl_b32 s{sT0}, s{sN0}, 9
v_cndmask_b32 v15, v16, v15, vcc
""")
    o("s_waitcnt lgkmcnt(0)\ns_barrier")
    st("fb")
    OSF = "sc1" if "o_sc1" in OPT else "nt" if "o_nt" in OPT else "sc1 nt" if "o_sc1nt" in OPT else ""
    FB = [T0, T1, E, NN]
    def rd(i):
        o(f"ds_read_b128 {vr(FB[i % 4],4)}, v{4 + (i & 7)} offset:{(i >> 3)*8192}")
    def silu(rt):
        a, t = UA + 4*rt, D
        l = [f"v_exp_f32 v{t+i}, v{a+i}" for i in range(4)]
        l += [f"v_fma_f32 v{t+i}, v{t+i}, v12, v12" for i in range(4)]
        l += [f"v_rcp_f32 v{t+i}, v{t+i}" for i in range(4)]
        l += [f"v_mul_f32 v{a+i}, v{a+i}, v{t+i}" for i in range(4)]
        l += [f"v_cvt_pk_bf16_f32 v{a}, v{a}, v{a+1}", f"v_cvt_pk_bf16_f32 v{a+1}, v{a+2}, v{a+3}"]
        if "ostage" in OPT:
            l.append(f"ds_write_b64 v13, {vr(a,2)} offset:{rt*8192}")
            return l
        if rt == 2:
            l.append(f"s_mov_b64 exec, s[{sM}:{sM+1}]")
        l.append(f"buffer_store_dwordx2 {vr(a,2)}, v{TMP+2}, s[40:43], s{[sT0,sT1,sT2][rt]} offen {OSF}")
        return l
    for i in range(3):
        rd(i)
    pend = []
    for i in range(24):
        rt, ks = i >> 3, i & 7
        if i + 3 < 24:
            rd(i + 3)
        o(f"s_waitcnt lgkmcnt({min(3, 23 - i)})")
        o(f"v_mfma_f32_16x16x32_bf16 {vr(UA+4*rt,4)}, {vr(W+4*ks,4)}, {vr(FB[i % 4],4)}, {vr(UA+4*rt,4)}")
        if ks == 2 and rt > 0:
            pend = silu(rt - 1)
        n = 4 if ks < 7 else len(pend)
        o("\n".join(pend[:n]))
        pend = pend[n:]
    o("s_nop 7")
    st("fg")
    o("\n".join(silu(2)))
    if "ostage" in OPT:
        o(f"""
s_waitcnt lgkmcnt(0)
s_barrier
ds_read_b128 v[16:19], v14
ds_read_b128 v[20:23], v14 offset:16384
s_waitcnt lgkmcnt(1)
buffer_store_dwordx4 v[16:19], v2, s[40:43], s{sT0} offen {OSF}
s_cmp_ge_u32 s{sWAVE}, {X2W}
s_cbranch_scc1 L_os
s_waitcnt lgkmcnt(0)
buffer_store_dwordx4 v[20:23], v15, s[40:43], s{sT0} offen {OSF}
L_os:
""")
    st("fs")
    if STAMP:
        o(f"""
s_waitcnt vmcnt(0)
s_memrealtime s[94:95]
s_mov_b64 exec, 1
s_lshl_b32 s26, s2, 4
s_add_u32 s26, s26, s{sWAVE}
s_lshl_b32 s26, s26, 5
s_add_u32 s26, s26, {WS_STAMP + 0x100000}
s_mov_b32 s34, 0x1000000
v_mov_b32 v0, 0
s_waitcnt lgkmcnt(0)
""")
        xd = next((x for x in OPT if x.startswith("xdel")), None)
        if xd:
            k = int(xd[4:])
            sel = "s_cmp_lt_u32 s2, 64\ns_cselect_b32 s26, 0, s26" if "xrest" in OPT else ""
            o(f"""
s_sub_u32 s26, s{80+2*k}, s80
{sel}
s_mul_i32 s26, s26, 10
s_add_u32 s26, s26, s94
X_spin:
s_memrealtime s[92:93]
s_waitcnt lgkmcnt(0)
s_sub_u32 s27, s92, s26
s_cmp_lt_i32 s27, 0
s_cbranch_scc1 X_spin
s_endpgm
""")
        for i in range(8):
            o(f"v_mov_b32 v{4+i}, s{80+2*i}")
        if "dbgst" in OPT:
            o("v_not_b32 v12, v4\nv_not_b32 v13, v9\nv_not_b32 v14, v5\nv_not_b32 v15, v10")
            for i in range(12):
                o(f"buffer_atomic_umax v{4+i}, v0, s[96:99], 0 offen offset:{8+4*i} sc1")
        else:
            o("buffer_store_dwordx4 v[4:7], v0, s[32:35], s26 offen\nbuffer_store_dwordx4 v[8:11], v0, s[32:35], s26 offen offset:16")
    o(f"""
L_end:
s_endpgm
L_round:
s_waitcnt lgkmcnt(0)
s_barrier
s_ff1_i32_b64 s{sT0}, s[{sOM}:{sOM+1}]
s_mul_i32 s{sT1}, s{sT0}, {CHUNK*8}
v_readlane_b32 s{sOC}, v{VOVF}, s{sT0}
s_lshl_b32 s{sT2}, s{sOB}, 3
s_add_u32 s{sT1}, s{sT1}, s{sT2}
s_add_u32 s{sT1}, s{sT1}, {WS_OVF}
buffer_load_dwordx4 {vr(REC,4)}, v2, s[32:35], s{sT1} offen sc1
v_lshlrev_b32 v{TMP}, 1, v0
v_add_u32 v{TMP}, s{sOB}, v{TMP}
v_add_u32 v{TMP+1}, 1, v{TMP}
v_cmp_gt_u32 s[{sV0}:{sV0+1}], s{sOC}, v{TMP}
v_cmp_gt_u32 s[{sV1}:{sV1+1}], s{sOC}, v{TMP+1}
s_add_u32 s{sOB}, s{sOB}, 2048
s_cmp_lt_u32 s{sOB}, s{sOC}
s_cbranch_scc1 L_rn2
s_bitset0_b64 s[{sOM}:{sOM+1}], s{sT0}
s_mov_b32 s{sOB}, 0
L_rn2:
s_waitcnt vmcnt(0)
v_lshrrev_b32 v{TMP}, 16, v{REC+1}
v_lshrrev_b32 v{TMP+1}, 16, v{REC+3}
v_cmp_eq_u32 s[{sM}:{sM+1}], s2, v{TMP}
s_nop 3
s_and_b64 s[{sV0}:{sV0+1}], s[{sV0}:{sV0+1}], s[{sM}:{sM+1}]
v_cmp_eq_u32 s[{sM}:{sM+1}], s2, v{TMP+1}
s_nop 3
s_and_b64 s[{sV1}:{sV1+1}], s[{sV1}:{sV1+1}], s[{sM}:{sM+1}]
""")
    sort_rank(o)
    o("s_waitcnt lgkmcnt(0)\ns_barrier")
    sort_scatter(o)
    o("s_waitcnt lgkmcnt(0)\ns_barrier")
    o("s_branch L_pr\nL_ugemm:")
    XB = [QA, QA + 4, QA + 8, W3 - 2]
    seq = [(ks, rt) for ks in range(8) for rt in range(3)]
    def urd(i):
        ks, rt = seq[i]
        if rt == 0 and ks:
            o(f"v_xor_b32 v{TMP+6}, {64*ks}, v{VXA}")
        o(f"ds_read_b128 {vr(XB[i % 4],4)}, v{TMP+6 if ks else VXA} offset:{rt*8192}")
    for i in range(3):
        urd(i)
    for i, (ks, rt) in enumerate(seq):
        if i + 3 < 24:
            urd(i + 3)
        if rt == 0:
            o(f"s_waitcnt vmcnt({7-ks+1+2*R})")
        o(f"s_waitcnt lgkmcnt({min(3, 23 - i)})")
        c = "0" if ks == 0 else vr(UA+4*rt, 4)
        o(f"v_mfma_f32_16x16x32_bf16 {vr(UA+4*rt,4)}, {vr(W+4*ks,4)}, {vr(XB[i % 4],4)}, {c}")
    o("s_nop 5")
    for h in range(6):
        o(f"v_pk_mul_f32 {vr(UA+2*h,2)}, {vr(UA+2*h,2)}, s[{sSC}:{sSC+1}]")
    if "w2early" in OPT:
        o(f"s_mov_b32 s{sW1}, 1")
        wloads(o, 1, W)
    o(f"s_setpc_b64 s[{sRET}:{sRET+1}]")
    bin_overflow(o)

def main(path):
    o = Asm()
    gen(o)
    hdr = f"""; MPNN edge-MLP + segment sum + node update in one launch (256 co-resident workgroups, one per CU).
; m_in@w_msg is split as P[src] + Q[dst] + e*w3 with P = x@W1, Q = x@W2 (all pre-scaled by -log2e).
;          Hand-offs use write-through stores plus a per-launch tag (published through d_debug).
; @launch grid=(256,1,1) block=(1024,1,1) lds={L_ALLOC}
.amdgcn_target "amdgcn-amd-amdhsa--gfx950"
.text
"""
    desc = f""".section .rodata,"a"
.p2align 6
.amdhsa_kernel {KNAME}
  .amdhsa_next_free_vgpr {NV}
  .amdhsa_next_free_sgpr 102
  .amdhsa_accum_offset {(NV+3)//4*4}
  .amdhsa_group_segment_fixed_size 0
  .amdhsa_kernarg_size 72
  .amdhsa_user_sgpr_count 2
  .amdhsa_user_sgpr_kernarg_segment_ptr 1
  .amdhsa_system_sgpr_workgroup_id_x 1
.end_amdhsa_kernel
"""
    open(path, "w").write(hdr + o.text() + desc)

if __name__ == "__main__":
    if "--stamp" in sys.argv:
        sys.argv.remove("--stamp")
        STAMP = True
    for a in list(sys.argv):
        if a.startswith("--steps="):
            sys.argv.remove(a)
            STEPS = a[8:].split(",")
        if a.startswith("--poll="):
            sys.argv.remove(a)
            STEP_FLAG = int(a[7:])
        if a.startswith("--prio="):
            sys.argv.remove(a)
            PRIO = [int(x) for x in a[7:].split(",")]
        if a.startswith("--kmax="):
            sys.argv.remove(a)
            KMAX = int(a[7:])
        if a.startswith("--bt="):
            sys.argv.remove(a)
            BT = int(a[5:])
        if a.startswith("--unr="):
            sys.argv.remove(a)
            UNR = int(a[6:])
        if a.startswith("--opt="):
            sys.argv.remove(a)
            OPT |= set(a[6:].split(","))
    main(sys.argv[1] if len(sys.argv) > 1 else "gather_scatter__mpnn_edge_mlp__graph.s")
```
